```python
import torch

def _softmax(x, axis=-1):
    return torch.softmax(x, dim=axis)
def _gelu(x):
    return torch.nn.functional.gelu(x, approximate="tanh")
def _silu(x):
    return torch.nn.functional.silu(x)
def _sigmoid(x):
    return torch.sigmoid(x)
def _layernorm(x, axis=-1, eps=1e-5):
    m = x.mean(dim=axis, keepdim=True)
    v = x.var(dim=axis, keepdim=True, unbiased=False)
    return (x - m) / torch.sqrt(v + eps)
def _scatter_add(tgt, idx, src, axis=0):
    return tgt.clone().index_add_(axis, idx, src)
def _segment_sum(src, seg, n):
    out = torch.zeros((n,) + src.shape[1:], dtype=src.dtype)
    return out.index_add_(0, seg, src)
def _pad(x, pw):
    flat = tuple(v for pair in reversed(pw) for v in pair)
    return torch.nn.functional.pad(x, flat)

kernel_name = 'interleave_layers__sliding_block__glu_gated_geglu__prompt'

def setup_inputs():

    _w = (lambda a: (lambda t: t.to(torch.bfloat16) if t.is_floating_point() else t)(torch.as_tensor(a)))
    def _A_setup():
        B, S, D = 1, 2048, 640
        return {
            "x": _w((lambda *s: torch.randn(*s, dtype=torch.bfloat16) * 0.05)(B, S, D)),
            "wqkv": _w((lambda *s: torch.randn(*s, dtype=torch.bfloat16) * 0.05)(D, 3 * D)),
            "wo": _w((lambda *s: torch.randn(*s, dtype=torch.bfloat16) * 0.05)(D, D)),
        }
    _A_in = _A_setup()

    def _B_setup():
        B, S, Dm, Df = 1, 2048, 640, 1536
        return {
            "x": _w((lambda *s: torch.randn(*s, dtype=torch.bfloat16) * 0.05)(B, S, Dm)),
            "w_gate": _w((lambda *s: torch.randn(*s, dtype=torch.bfloat16) * 0.8)(Dm, Df) * (Dm ** -0.5)),
            "w_up": _w((lambda *s: torch.randn(*s, dtype=torch.bfloat16) * 0.8)(Dm, Df) * (Dm ** -0.5)),
            "w_down": _w((lambda *s: torch.randn(*s, dtype=torch.bfloat16) * 0.8)(Df, Dm) * (Df ** -0.5)),
        }
    _B_in = _B_setup()

    return {
        "A_x": _A_in["x"],
        "A_wqkv": _A_in["wqkv"],
        "A_wo": _A_in["wo"],
        "B_x": _B_in["x"],
        "B_w_gate": _B_in["w_gate"],
        "B_w_up": _B_in["w_up"],
        "B_w_down": _B_in["w_down"],
    }

def reference(A_x, A_wqkv, A_wo, B_x, B_w_gate, B_w_up, B_w_down):
    def _A_ref(x, wqkv, wo):
        B, S, D = x.shape
        H = 32; Dh = D // H; W = 256
        qkv = (lambda x, *d: x.permute(*d))((x @ wqkv).reshape(B, S, 3, H, Dh), 2, 0, 3, 1, 4)
        q, k, v = qkv[0], qkv[1], qkv[2]
        scores = torch.einsum("bhqd,bhkd->bhqk", q, k) * (Dh ** -0.5)
        idx = torch.arange(S)
        mask = (idx[:, None] - idx[None, :] >= 0) & (idx[:, None] - idx[None, :] < W)
        scores = torch.where(mask[None, None], scores, -1e9)
        p = _softmax(scores, axis=-1)
        o = torch.einsum("bhqk,bhkd->bhqd", p, v)
        return (lambda x, *d: x.permute(*d))(o, 0, 2, 1, 3).reshape(B, S, D) @ wo

    def _B_ref(x, w_gate, w_up, w_down):
        g = torch.einsum("bsd,df->bsf", x, w_gate)
        u = torch.einsum("bsd,df->bsf", x, w_up)
        h = _gelu(g) * u
        return torch.einsum("bsf,fd->bsd", h, w_down)

    x = A_x
    x = x + _A_ref(_layernorm(x, axis=-1), A_wqkv, A_wo)
    x = x + _B_ref(_layernorm(x, axis=-1), B_w_gate, B_w_up, B_w_down)
    x = x + _A_ref(_layernorm(x, axis=-1), A_wqkv, A_wo)
    x = x + _B_ref(_layernorm(x, axis=-1), B_w_gate, B_w_up, B_w_down)
    return x
```

```python
import re

def v(i, n=1): return f"v{i}" if n == 1 else f"v[{i}:{i+n-1}]"
def a(i, n=1): return f"a{i}" if n == 1 else f"a[{i}:{i+n-1}]"
def s(i, n=1): return f"s{i}" if n == 1 else f"s[{i}:{i+n-1}]"
def R(i, n=1):
    return v(i, n) if i < 256 else a(i - 256, n)

_reg = re.compile(r"^-?\|?(?:abs\()?([vas])(?:(\d+)|\[(\d+):(\d+)\])\)?\|?$")
def regs(tok):
    tok = tok.strip()
    if tok == "vcc": return {"vcc"}
    if tok in ("vcc_lo", "vcc_hi"): return {"vcc"}
    if tok in ("exec", "exec_lo", "exec_hi"): return {"exec"}
    if tok == "m0": return {"m0"}
    m = _reg.match(tok)
    if not m: return set()
    k = m.group(1)
    if m.group(2) is not None: return {k + m.group(2)}
    return {k + str(i) for i in range(int(m.group(3)), int(m.group(4)) + 1)}

TRANS = ("v_exp_f32", "v_log_f32", "v_rcp_f32", "v_rsq_f32", "v_sqrt_f32", "v_sin_f32", "v_cos_f32", "v_rcp_iflag_f32")

class Ins:
    __slots__ = ("text", "mn", "kind", "dst", "src", "srcC", "passes", "wide", "data", "states")
    def __init__(self, text):
        self.text = text
        parts = text.split(None, 1)
        mn = self.mn = parts[0]
        rest = parts[1] if len(parts) > 1 else ""
        ops = [o.strip() for o in rest.split(",")] if rest else []
        mods = []
        for k in range(len(ops)):
            sp = ops[k].split()
            ops[k] = sp[0]; mods += sp[1:]
        self.dst = set(); self.src = set(); self.srcC = set(); self.passes = 0; self.wide = False; self.data = set(); self.states = 1
        rs = [regs(o) for o in ops]
        U = lambda l: set().union(*l) if l else set()
        if mn.startswith("v_mfma"):
            self.kind = "mfma"; self.dst = rs[0]; self.src = U(rs[1:]); self.srcC = rs[3]
            self.passes = 8 if "32x32" in mn else (4 if "16x16" in mn else 2)
        elif mn.startswith("v_"):
            base = re.sub(r"_(e32|e64|dpp|sdwa)$", "", mn)
            self.kind = "trans" if base in TRANS else "valu"
            if base.startswith("v_permlane") or base == "v_swap_b32":
                self.dst = U(rs[:2]); self.src = U(rs[:2])
            elif base.startswith(("v_add_co", "v_sub_co", "v_addc_co", "v_subb_co", "v_subrev_co")):
                self.dst = U(rs[:2]); self.src = U(rs[2:])
            elif base == "v_nop":
                pass
            else:
                self.dst = rs[0]; self.src = U(rs[1:])
                if base.startswith(("v_fmac", "v_dot2c", "v_writelane")) : self.src |= rs[0]
                if base == "v_cndmask_b32" and len(ops) == 3: self.src |= {"vcc"}
        elif mn.startswith("ds_"):
            self.kind = "ds"
            if mn.startswith(("ds_read", "ds_bpermute", "ds_permute", "ds_swizzle")):
                self.dst = rs[0]; self.src = U(rs[1:])
            else:
                self.src = U(rs)
        elif mn.startswith(("buffer_", "global_")):
            self.kind = "vmem"
            lds = "lds" in mods or "_lds_" in mn
            if mn in ("buffer_wbl2", "buffer_inv"):
                pass
            elif "load" in mn and not lds:
                self.dst = rs[0]; self.src = U(rs[1:])
            elif lds:
                self.src = U(rs) | {"m0"}
            else:
                self.src = U(rs)
                if "atomic" in mn and "sc0" in mods: self.dst = rs[0]
                if mn.startswith("buffer_store"): self.data = rs[0]
                if mn.startswith("global_store"): self.data = rs[1]
                self.wide = mn.endswith(("x3", "x4"))
        elif mn.startswith(("s_load", "s_buffer_load", "s_memtime", "s_memrealtime")):
            self.kind = "smem"; self.dst = rs[0]; self.src = U(rs[1:])
        elif mn.startswith("s_"):
            self.kind = "salu"
            if mn == "s_nop": self.states = int(ops[0], 0) + 1
            if mn.startswith(("s_cmp", "s_waitcnt", "s_barrier", "s_cbranch", "s_branch", "s_nop", "s_sleep", "s_setprio", "s_endpgm", "s_bitcmp")):
                self.src = U(rs)
                if mn in ("s_cbranch_vccnz", "s_cbranch_vccz"): self.src |= {"vcc"}
            else:
                self.dst = rs[0] if rs else set(); self.src = U(rs[1:])
                if "saveexec" in mn: self.dst |= {"exec"}
        else:
            raise ValueError("unknown instruction " + text)

def need_states(p, c):
    n = 0
    pv = p.kind in ("valu", "trans"); cv = c.kind in ("valu", "trans")
    if p.kind == "mfma":
        P = p.passes
        if c.kind == "mfma":
            if p.dst & (c.src - c.srcC if not (c.srcC & p.dst) or True else set()):
                pass
            ab = set()
            ops = [o.strip() for o in c.text.split(None, 1)[1].split(",")]
            ab = regs(ops[1]) | regs(ops[2])
            if p.dst & ab: n = max(n, {2: 5, 4: 8, 8: 12}[P])
            if p.dst & c.srcC:
                if p.dst == c.srcC and p.passes == c.passes: n = max(n, {2: 2, 4: 0, 8: 0}[P])
                else: n = max(n, {2: 4, 4: 6, 8: 10}[P])
            elif p.dst & c.dst:
                n = max(n, {2: 4, 4: 6, 8: 10}[P]) if p.passes != c.passes else n
        elif cv or c.kind in ("ds", "vmem"):
            if p.dst & (c.src | c.dst): n = max(n, {2: 5, 4: 8, 8: 12}[P])
            if cv and p.srcC & c.dst: n = max(n, {2: 1, 4: 3, 8: 7}[P])
    if pv:
        vd = {r for r in p.dst if r[0] in "va" and r != "vcc"}
        sd = p.dst - vd
        if c.kind == "mfma" and vd & c.src: n = max(n, 2)
        if cv:
            if p.kind == "trans" and c.kind != "trans" and vd & c.src: n = max(n, 1)
            if c.mn.startswith("v_permlane") and vd & c.src: n = max(n, 2)
            if c.mn.endswith("_dpp") and vd & c.src: n = max(n, 2)
            if c.mn.startswith(("v_readlane", "v_readfirstlane")) and vd & c.src: n = max(n, 1)
            if sd & c.src: n = max(n, 2)
            if p.mn.startswith("v_dot") and vd & (c.src | c.dst):
                same = c.mn == p.mn
                ops = [o.strip() for o in c.text.split(None, 1)[1].split(",")]
                ab = regs(ops[1]) | regs(ops[2].split()[0]) if len(ops) > 2 else set()
                if not same or (vd & ab): n = max(n, 3)
            if ("sdwa" in p.mn or "op_sel" in p.text) and not p.mn.startswith("v_pk") and vd & (c.src | c.dst): n = max(n, 1)
        if p.mn.startswith("v_dot") and c.kind in ("ds", "vmem", "mfma") and vd & c.src: n = max(n, 3)
        if c.kind == "vmem" and sd & c.src: n = max(n, 5)
        if c.kind == "salu" and sd & c.src: n = max(n, 1)
    if p.kind == "salu" and "m0" in p.dst and c.kind == "vmem" and "m0" in c.src: n = max(n, 1)
    if p.kind == "vmem" and p.wide and p.data & c.dst: n = max(n, 2 if cv else 1)
    return n

class Emit:
    def __init__(self):
        self.out = []
        self.hist = []
        self.vm_n = 0; self.vm_done = 0
        self.ds_n = 0; self.ds_done = 0
        self.pend = {}
        self.smem_out = False
        self.nlab = 0
        self.ninst = 0
        self.nnop = 0
        self.stats = {}
    def raw(self, t): self.out.append(t)
    def label(self, base="L"):
        self.nlab += 1
        return f"{base}{self.nlab}"
    def place(self, lab):
        self.out.append(lab + ":")
    def _push(self, ins):
        self.out.append(ins.text); self.hist.append(ins); self.ninst += 1
        self.stats[ins.kind] = self.stats.get(ins.kind, 0) + 1
        if len(self.hist) > 24: self.hist.pop(0)
    def wait(self, vm=None, ds=None):
        parts = []
        if vm is not None and vm > self.vm_done:
            parts.append(f"vmcnt({min(self.vm_n - vm, 63)})"); self.vm_done = vm
        if ds is not None and ds > self.ds_done:
            parts.append(f"lgkmcnt({min(self.ds_n - ds, 15)})"); self.ds_done = ds
        if parts: self._push(Ins("s_waitcnt " + " ".join(parts)))
    def wait_smem(self):
        if self.smem_out:
            self._push(Ins("s_waitcnt lgkmcnt(0)")); self.smem_out = False; self.ds_done = self.ds_n
            self.pend = {r: x for r, x in self.pend.items() if x[0] != "sm"}
    def drain(self, vm=True, ds=True):
        if ds and self.smem_out:
            self.wait(vm=self.vm_n if vm else None); self.wait_smem(); return
        self.wait(vm=self.vm_n if vm else None, ds=self.ds_n if ds else None)
    def need(self, regset):
        vm = ds = None; sm = False
        for r in regset:
            x = self.pend.get(r)
            if x is None: continue
            if x[0] == "vm": vm = max(vm or 0, x[1])
            elif x[0] == "ds": ds = max(ds or 0, x[1])
            else: sm = True
        if sm: self.wait_smem()
        self.wait(vm=vm, ds=ds)
    def I(self, text, count=True):
        ret = None
        for t in text.split("\n"):
            t = t.strip()
            if not t: continue
            ins = Ins(t)
            self.need(ins.src | ins.dst)
            dist = 0; nops = 0
            for p in reversed(self.hist):
                n = need_states(p, ins)
                if n - dist > nops: nops = n - dist
                dist += p.states
                if dist >= 20: break
            if nops > 0:
                self.nnop += nops
                self._push(Ins(f"s_nop {nops-1}"))
            self._push(ins)
            for r in ins.dst: self.pend.pop(r, None)
            if ins.kind == "vmem" and count:
                self.vm_n += 1; ret = self.vm_n
                for r in ins.dst: self.pend[r] = ("vm", self.vm_n)
            elif ins.kind == "ds":
                self.ds_n += 1; ret = self.ds_n
                for r in ins.dst: self.pend[r] = ("ds", self.ds_n)
            elif ins.kind == "smem":
                self.smem_out = True
                for r in ins.dst: self.pend[r] = ("sm", 0)
        return ret
    __call__ = I
    def fresh(self):
        self.hist = []; self.pend = {}; self.vm_done = self.vm_n; self.ds_done = self.ds_n; self.smem_out = False
    def settle(self):
        self._push(Ins("s_nop 7")); self._push(Ins("s_nop 7"))
    def text(self): return "\n".join(self.out) + "\n"

def kernel_header(E, name):
    for t in (".text", f".globl {name}", ".p2align 8", f".type {name},@function", f"{name}:"): E.raw(t)

def kernel_desc(E, name, vgpr, agpr=0, sgpr=102):
    acc = (vgpr + 3) // 4 * 4
    total = acc + agpr if agpr else vgpr
    for t in ('.section .rodata,"a"', ".p2align 6", f".amdhsa_kernel {name}", f"  .amdhsa_next_free_vgpr {total}",
              f"  .amdhsa_next_free_sgpr {sgpr}", f"  .amdhsa_accum_offset {acc}", "  .amdhsa_group_segment_fixed_size 0",
              "  .amdhsa_kernarg_size 80", "  .amdhsa_user_sgpr_count 2", "  .amdhsa_user_sgpr_kernarg_segment_ptr 1",
              "  .amdhsa_system_sgpr_workgroup_id_x 1", "  .amdhsa_float_denorm_mode_32 3", ".end_amdhsa_kernel"): E.raw(t)
```

```python
KB = 1024; MB = 1 << 20
FLAGS = 0
CSQ   = 64 * KB
CSG   = 128 * KB
STAT  = 256 * KB
WQ    = 1 * MB
WGU   = 4 * MB
WO    = 8 * MB
WD    = 9 * MB
XT    = 12 * MB
XT_STRIDE = 3 * MB
KV    = 24 * MB
KV_STRIDE = 5 * MB
OB    = 34 * MB
OB_STRIDE = 3 * MB
HB    = 40 * MB
HB_STRIDE = 6 * MB
DBG   = 56 * MB
WS_BYTES = 268435456
```

```python
from emit import *
from layout import *

N_P0 = 544
def srd(E, base, koff, size):
    E(f"s_load_dwordx2 {s(base,2)}, s[0:1], {koff}")
    E(f"s_mov_b32 s{base+2}, {size}\ns_mov_b32 s{base+3}, 0x00020000")

def split_hi_lo(E, x, t0, t1, d):
    E(f"v_cvt_pk_bf16_f32 v{d+1}, v{x}, 0")
    E(f"v_lshlrev_b32 v{t0}, 16, v{d+1}")
    E(f"v_sub_f32 v{t1}, v{x}, v{t0}")
    E(f"v_cvt_pk_bf16_f32 v{d}, v{t0}, v{t1}")

def piece_addrs(E, ppr, stride, dst):
    magic = (65536 + ppr - 1) // ppr
    for i in range(5):
        E(f"v_add_u32 v2, {64*i}, v0")
        E(f"v_mul_u32_u24 v3, {magic}, v2\nv_lshrrev_b32 v3, 16, v3")
        E(f"v_mul_u32_u24 v4, {ppr}, v3\nv_sub_u32 v4, v2, v4\nv_lshlrev_b32 v4, 4, v4")
        E(f"v_mul_u32_u24 v3, {stride}, v3\nv_add_u32 v{dst+i}, v3, v4")

def gen_p0(E, name="p0_kernel"):
    kernel_header(E, name)
    WS = 4; SRC = 8
    srd(E, WS, 72, WS_BYTES)
    Lq, Lgu, Lo, Ld, Lx, Lend = [E.label("P0_") for _ in range(6)]
    E("s_mov_b32 s20, 0x3f803f80")
    E(f"s_cmp_lt_u32 s2, 96\ns_cbranch_scc1 {Lq}")
    E(f"s_cmp_lt_u32 s2, 288\ns_cbranch_scc1 {Lgu}")
    E(f"s_cmp_lt_u32 s2, 320\ns_cbranch_scc1 {Lo}")
    E(f"s_cmp_lt_u32 s2, 416\ns_cbranch_scc1 {Ld}")
    E(f"s_cmp_lt_u32 s2, {N_P0}\ns_cbranch_scc1 {Lx}")
    E("s_endpgm")
    E.place(Lq); E.fresh(); E.smem_out = True
    srd(E, SRC, 8, 640 * 1920 * 2)
    E("s_lshr_b32 s12, s2, 5\ns_bfe_u32 s13, s2, 0x30002\ns_and_b32 s14, s2, 3")
    piece_addrs(E, 10, 3840, 10)
    E("s_mul_i32 s15, s12, 1280\ns_mul_i32 s16, s13, 160\ns_add_u32 s15, s15, s16")
    E(f"s_mul_i32 s16, s14, {160*3840}\ns_add_u32 s15, s15, s16")
    E.wait_smem()
    for i in range(25):
        E(f"s_mov_b32 m0, {1024*i}")
        if i and i % 5 == 0: E(f"s_add_u32 s15, s15, {32*3840}")
        E(f"buffer_load_dwordx4 v{10+i%5}, {s(SRC,4)}, s15 offen lds")
    E("v_bfe_u32 v2, v0, 2, 2\nv_bfe_u32 v3, v0, 4, 1\nv_lshrrev_b32 v4, 5, v0")
    E("v_lshl_add_u32 v2, v3, 4, v2\nv_lshl_add_u32 v2, v4, 3, v2\nv_mul_u32_u24 v2, 160, v2")
    E("v_bfe_u32 v3, v0, 1, 1\nv_mul_u32_u24 v3, 80, v3\nv_add_u32 v2, v2, v3")
    E("v_and_b32 v3, 1, v0\nv_lshl_add_u32 v16, v3, 4, v2")
    E("v_mul_u32_u24 v3, 40, v3\nv_add3_u32 v17, v2, v3, 32")
    E(f"v_bfe_u32 v2, v0, 3, 1\nv_mul_u32_u24 v2, {160*KB}, v2\nv_bfe_u32 v3, v0, 4, 1\nv_lshl_add_u32 v2, v3, 11, v2")
    E("v_lshl_add_u32 v2, v4, 9, v2\nv_and_b32 v3, 7, v0\nv_lshl_add_u32 v18, v3, 4, v2")
    E("v_bfe_u32 v2, v0, 3, 1\nv_lshlrev_b32 v2, 12, v2\nv_lshl_add_u32 v19, v3, 3, v2")
    E("s_cmp_eq_u32 s12, 0\ns_cselect_b32 s17, 10, 0\ns_cmp_eq_u32 s12, 2\ns_cselect_b32 s17, 5, s17")
    for gg in range(5):
        E(f"s_add_u32 s18, s17, {gg}\ns_lshr_b32 s19, s18, 3\ns_mul_i32 s{24+gg}, s19, {80*KB}")
        E(f"s_bfe_u32 s19, s18, 0x10002\ns_lshl_b32 s19, s19, 10\ns_add_u32 s{24+gg}, s{24+gg}, s19")
        E(f"s_and_b32 s19, s18, 3\ns_lshl_b32 s21, s19, 7\ns_add_u32 s{24+gg}, s{24+gg}, s21")
        E(f"s_lshl_b32 s19, s19, 6\ns_lshr_b32 s18, s18, 2\ns_lshl_b32 s18, s18, 10\ns_add_u32 s{30+gg}, s18, s19")
        E(f"v_mov_b32 v{20+gg}, 0")
    E(f"s_mul_i32 s18, s13, {320*KB}\ns_mul_i32 s19, s14, {20*KB}\ns_add_u32 s18, s18, s19\ns_add_u32 s18, s18, {WQ}")
    for gg in range(5): E(f"s_add_u32 s{24+gg}, s{24+gg}, s18")
    E(f"s_lshl_b32 s18, s13, 13\ns_lshl_b32 s19, s14, 8\ns_add_u32 s18, s18, s19\ns_add_u32 s18, s18, {CSQ}")
    for gg in range(5): E(f"s_add_u32 s{30+gg}, s{30+gg}, s18")
    colimm = {0: 0, 1: 8, 3: 40, 4: 48, 2: 0}
    for pr in range(5):
        E.wait(vm=E.vm_n - 0 if False else 5 * (pr + 1) + (E.vm_n - 25 - 5 * pr))
        for gg in range(5):
            d = 32 + 4 * (5 * (pr % 2) + gg)
            for rd in range(2):
                E(f"ds_read_b64_tr_b16 {v(d+2*rd,2)}, v{17 if gg == 2 else 16} offset:{(32*pr+4*rd)*160 + colimm[gg]}")
        for gg in range(5):
            d = 32 + 4 * (5 * (pr % 2) + gg)
            E(f"buffer_store_dwordx4 {v(d,4)}, v18, {s(WS,4)}, s{24+gg} offen")
            E(f"s_add_u32 s{24+gg}, s{24+gg}, {4*KB}")
        for e in range(4):
            for gg in range(5):
                d = 32 + 4 * (5 * (pr % 2) + gg)
                E(f"v_dot2c_f32_bf16 v{20+gg}, s20, v{d+e}")
    for gg in range(5):
        E(f"v_mov_b32 v2, v{20+gg}\nv_permlane32_swap_b32 v2, v{20+gg}\nv_add_f32 v{20+gg}, v2, v{20+gg}")
        E(f"v_mov_b32 v2, v{20+gg}\nv_permlane16_swap_b32 v2, v{20+gg}\nv_add_f32 v{20+gg}, v2, v{20+gg}")
        split_hi_lo(E, 20 + gg, 2, 3, 80 + 2 * gg)
    E("s_mov_b64 exec, 0xffff")
    for gg in range(5): E(f"buffer_store_dwordx2 {v(80+2*gg,2)}, v19, {s(WS,4)}, s{30+gg} offen")
    E("s_endpgm")
    E.place(Lgu); E.fresh(); E.smem_out = True
    E("s_sub_u32 s12, s2, 96\ns_cmp_ge_u32 s12, 96\ns_cselect_b32 s13, 1, 0\ns_cselect_b32 s15, 96, 0\ns_sub_u32 s12, s12, s15")
    E("s_load_dwordx4 s[24:27], s[0:1], 32")
    E("s_and_b32 s14, s12, 3\ns_lshr_b32 s12, s12, 2")
    E("v_lshrrev_b32 v2, 3, v0\nv_mul_u32_u24 v2, 3072, v2\nv_and_b32 v3, 7, v0\nv_lshl_add_u32 v10, v3, 4, v2")
    E(f"s_lshl_b32 s15, s12, 7\ns_mul_i32 s16, s14, {160*3072}\ns_add_u32 s15, s15, s16")
    E.wait_smem()
    E(f"s_cmp_eq_u32 s13, 1\ns_cselect_b32 s{SRC}, s26, s24\ns_cselect_b32 s{SRC+1}, s27, s25")
    E(f"s_mov_b32 s{SRC+2}, {640*1536*2}\ns_mov_b32 s{SRC+3}, 0x00020000")
    base = E.vm_n
    for i in range(20):
        E(f"s_mov_b32 m0, {1024*i}")
        if i: E(f"s_add_u32 s15, s15, {8*3072}")
        E(f"buffer_load_dwordx4 v10, {s(SRC,4)}, s15 offen lds")
    E("v_bfe_u32 v2, v0, 2, 2\nv_lshrrev_b32 v3, 5, v0\nv_lshl_add_u32 v2, v3, 3, v2\nv_lshlrev_b32 v2, 7, v2")
    E("v_bfe_u32 v3, v0, 4, 1\nv_lshl_add_u32 v2, v3, 5, v2\nv_and_b32 v3, 1, v0\nv_lshl_add_u32 v2, v3, 4, v2")
    E("v_bfe_u32 v3, v0, 1, 1\nv_lshl_add_u32 v16, v3, 3, v2")
    E("v_lshlrev_b32 v18, 4, v0\nv_lshlrev_b32 v19, 3, v0")
    E(f"s_mul_i32 s24, s12, {160*KB}\ns_mul_i32 s16, s14, {20*KB}\ns_add_u32 s24, s24, s16\ns_lshl_b32 s16, s13, 10\ns_add_u32 s24, s24, s16")
    E(f"s_add_u32 s24, s24, {WGU}\ns_add_u32 s25, s24, {80*KB}")
    E(f"s_lshl_b32 s26, s12, 12\ns_lshl_b32 s16, s13, 10\ns_add_u32 s26, s26, s16\ns_lshl_b32 s16, s14, 8\ns_add_u32 s26, s26, s16\ns_add_u32 s26, s26, {CSG}")
    E("v_mov_b32 v20, 0\nv_mov_b32 v21, 0")
    for k2 in range(5):
        E.wait(vm=base + 4 * (k2 + 1))
        for x in range(4):
            ks, t = 2 * k2 + (x >> 1), x & 1
            d = 32 + 4 * (4 * (k2 % 2) + x)
            for rd in range(2):
                E(f"ds_read_b64_tr_b16 {v(d+2*rd,2)}, v16 offset:{(16*ks+4*rd)*128 + 64*t}")
        for x in range(4):
            d = 32 + 4 * (4 * (k2 % 2) + x)
            E(f"buffer_store_dwordx4 {v(d,4)}, v18, {s(WS,4)}, s{24+(x&1)} offen offset:{2048*(x>>1)}")
        E(f"s_add_u32 s24, s24, 4096\ns_add_u32 s25, s25, 4096")
        for e in range(4):
            for x in range(4):
                d = 32 + 4 * (4 * (k2 % 2) + x)
                E(f"v_dot2c_f32_bf16 v{20+(x&1)}, s20, v{d+e}")
    for t in range(2):
        E(f"v_mov_b32 v2, v{20+t}\nv_permlane32_swap_b32 v2, v{20+t}\nv_add_f32 v{20+t}, v2, v{20+t}")
        split_hi_lo(E, 20 + t, 2, 3, 80 + 2 * t)
    E("s_mov_b64 exec, 0xffffffff")
    for t in range(2): E(f"buffer_store_dwordx2 {v(80+2*t,2)}, v19, {s(WS,4)}, s26 offen offset:{2048*t}")
    E("s_endpgm")
    E.place(Lo); E.fresh(); E.smem_out = True
    srd(E, SRC, 16, 640 * 640 * 2)
    E("s_sub_u32 s12, s2, 288\ns_and_b32 s13, s12, 1\ns_lshr_b32 s12, s12, 1")
    piece_addrs(E, 40, 1280, 10)
    E(f"s_mul_i32 s15, s12, {40*1280}\ns_mul_i32 s16, s13, 640\ns_add_u32 s15, s15, s16")
    E.wait_smem()
    for i in range(25):
        E(f"s_mov_b32 m0, {1024*i}")
        if i and i % 5 == 0: E(f"s_add_u32 s15, s15, {8*1280}")
        E(f"buffer_load_dwordx4 v{10+i%5}, {s(SRC,4)}, s15 offen lds")
    E("v_bfe_u32 v2, v0, 2, 2\nv_mul_u32_u24 v2, 640, v2\nv_lshrrev_b32 v3, 4, v0\nv_mul_u32_u24 v4, 160, v3\nv_add_u32 v2, v2, v4")
    E("v_and_b32 v4, 3, v0\nv_lshl_add_u32 v16, v4, 5, v2\nv_lshl_add_u32 v17, v4, 3, v2")
    E(f"v_mul_u32_u24 v2, {100*KB}, v3\nv_and_b32 v4, 15, v0\nv_lshl_add_u32 v18, v4, 4, v2")
    E(f"s_mul_i32 s16, s13, {400*KB}\ns_lshr_b32 s17, s12, 2\ns_mul_i32 s17, s17, {25*KB}\ns_add_u32 s16, s16, s17\ns_add_u32 s16, s16, {WO}")
    E("s_and_b32 s17, s12, 3\ns_mul_i32 s17, s17, 5")
    rows = {0: (0, 4), 1: (8, 12), 2: (20, 24), 3: (28, 32), 4: (16, 36)}
    E.drain()
    for u in range(5):
        E(f"s_add_u32 s18, s17, {u}\ns_lshr_b32 s19, s18, 2\ns_mul_i32 s19, s19, {5*KB}\ns_and_b32 s18, s18, 3\ns_lshl_b32 s18, s18, 8")
        E("s_add_u32 s18, s18, s19\ns_add_u32 s18, s18, s16\ns_add_u32 s19, s18, 4096")
        for nt in range(5):
            d = 32 + 4 * (5 * (u % 2) + nt)
            for rd in range(2):
                E(f"ds_read_b64_tr_b16 {v(d+2*rd,2)}, v{17 if nt == 4 else 16} offset:{rows[u][rd]*640 + (128 if nt == 4 else 8*nt)}")
        for nt in range(5):
            d = 32 + 4 * (5 * (u % 2) + nt)
            E(f"buffer_store_dwordx4 {v(d,4)}, v18, {s(WS,4)}, s{19 if nt == 4 else 18} offen offset:{1024*(nt%4)}")
    E("s_endpgm")
    E.place(Ld); E.fresh(); E.smem_out = True
    srd(E, SRC, 48, 1536 * 640 * 2)
    E("s_sub_u32 s12, s2, 320\ns_and_b32 s13, s12, 1\ns_lshr_b32 s12, s12, 1")
    piece_addrs(E, 40, 1280, 10)
    E(f"s_mul_i32 s15, s12, {32*1280}\ns_mul_i32 s16, s13, 640\ns_add_u32 s15, s15, s16")
    E.wait_smem()
    for i in range(20):
        E(f"s_mov_b32 m0, {1024*i}")
        if i and i % 5 == 0: E(f"s_add_u32 s15, s15, {8*1280}")
        E(f"buffer_load_dwordx4 v{10+i%5}, {s(SRC,4)}, s15 offen lds")
    E("v_bfe_u32 v2, v0, 2, 2\nv_lshrrev_b32 v3, 4, v0\nv_lshl_add_u32 v2, v3, 3, v2\nv_mul_u32_u24 v2, 640, v2")
    E("v_and_b32 v4, 3, v0\nv_lshl_add_u32 v16, v4, 5, v2\nv_lshl_add_u32 v17, v4, 3, v2")
    E("v_lshlrev_b32 v18, 4, v0")
    E("s_mul_i32 s14, s12, 21846\ns_lshr_b32 s14, s14, 16\ns_mul_i32 s16, s14, 3\ns_sub_u32 s16, s12, s16")
    E(f"s_lshl_b32 s16, s16, 2\ns_and_b32 s17, s14, 3\ns_add_u32 s16, s16, s17\ns_mul_i32 s16, s16, {5*KB}")
    E(f"s_lshr_b32 s17, s14, 2\ns_mul_i32 s17, s17, {60*KB}\ns_add_u32 s16, s16, s17")
    E(f"s_mul_i32 s17, s13, {960*KB}\ns_add_u32 s16, s16, s17\ns_add_u32 s18, s16, {WD}")
    E.drain()
    for nb in range(4):
        E("s_add_u32 s19, s18, 4096")
        for nt in range(5):
            d = 32 + 4 * (5 * (nb % 2) + nt)
            for rd in range(2):
                E(f"ds_read_b64_tr_b16 {v(d+2*rd,2)}, v{17 if nt == 4 else 16} offset:{4*rd*640 + 160*nb + (128 if nt == 4 else 8*nt)}")
        for nt in range(5):
            d = 32 + 4 * (5 * (nb % 2) + nt)
            E(f"buffer_store_dwordx4 {v(d,4)}, v18, {s(WS,4)}, s{19 if nt == 4 else 18} offen offset:{1024*(nt%4)}")
        E(f"s_add_u32 s18, s18, {240*KB}")
    E("s_endpgm")
    E.place(Lx); E.fresh(); E.smem_out = True
    srd(E, SRC, 0, 2048 * 640 * 2)
    E("s_sub_u32 s12, s2, 416")
    E("v_and_b32 v2, 15, v0\nv_lshrrev_b32 v3, 4, v0\nv_mul_u32_u24 v4, 1280, v2\nv_lshl_add_u32 v10, v3, 4, v4")
    E(f"s_mul_i32 s15, s12, {16*1280}")
    E.wait_smem()
    for i in range(20):
        E(f"buffer_load_dwordx4 {v(16+4*i,4)}, v10, {s(SRC,4)}, s15 offen offset:{64*i}")
    E("v_lshlrev_b32 v4, 9, v3\nv_lshl_add_u32 v11, v2, 4, v4")
    E("v_lshlrev_b32 v4, 10, v3\nv_lshl_add_u32 v12, v2, 3, v4")
    E(f"s_lshr_b32 s16, s12, 1\ns_mul_i32 s16, s16, {40*KB}\ns_and_b32 s17, s12, 1\ns_lshl_b32 s17, s17, 8\ns_add_u32 s16, s16, s17\ns_add_u32 s16, s16, {XT}")
    E(f"s_lshr_b32 s17, s12, 3\ns_lshl_b32 s17, s17, 13\ns_and_b32 s18, s12, 7\ns_lshl_b32 s18, s18, 7\ns_add_u32 s17, s17, s18\ns_add_u32 s17, s17, {STAT}")
    E("s_add_u32 s18, s17, 4096")
    E("v_mov_b32 v4, 0\nv_mov_b32 v5, 0\nv_mov_b32 v6, 0\nv_mov_b32 v7, 0\nv_lshlrev_b32 v8, 3, v0")
    E(f"s_lshl_b32 s19, s12, 9\ns_add_u32 s19, s19, {FLAGS}")
    E(f"buffer_store_dwordx2 v[6:7], v8, {s(WS,4)}, s19 offen")
    E(f"buffer_store_dwordx2 v[6:7], v12, {s(WS,4)}, s18 offen")
    for i in range(20):
        E(f"buffer_store_dwordx4 {v(16+4*i,4)}, v11, {s(WS,4)}, s16 offen offset:{2048*(i%2)}")
        if i % 2: E("s_add_u32 s16, s16, 4096")
        for e in range(4):
            E(f"v_dot2c_f32_bf16 v4, s20, v{16+4*i+e}\nv_dot2c_f32_bf16 v5, v{16+4*i+e}, v{16+4*i+e}")
    E(f"buffer_store_dwordx2 v[4:5], v12, {s(WS,4)}, s17 offen")
    E("s_endpgm")
    return dict(name=name, grid=N_P0, block=64, lds=25600, vgpr=96, agpr=0, sgpr=48)

if __name__ == "__main__":
    E = Emit()
    E.raw("; @launch kernel=p0_kernel grid=(544,1,1) block=(64,1,1) lds=25600")
    E.raw('.amdgcn_target "amdgcn-amd-amdhsa--gfx950"')
    d = gen_p0(E)
    kernel_desc(E, d["name"], d["vgpr"], d["agpr"], d["sgpr"])
    open("p0.s", "w").write(E.text())
    print(E.ninst, E.nnop, E.stats)
```

```python
import sys, math
from emit import *
from layout import *
from p0 import gen_p0, N_P0

NAME = "interleave_layers__sliding_block__glu_gated_geglu__prompt"
def f2u(x):
    import struct
    return hex(struct.unpack("<I", struct.pack("<f", x))[0])

WS = 4; OUT = 8; XIN = 12
sR, sJ, sW, sTH, sNB = 16, 17, 18, 19, 20
sWQ, sWGU, sWO, sWD, sLW = 21, 22, 23, 24, 25
sXB, sKVme, sFme, sCNT = 26, 27, 28, 29
sT0 = 30
sMASK = 32
sE0 = 64
sT16 = 66
sT16H = 70
sA, sB, sC, sD, sE_, sF = 74, 75, 76, 77, 78, 79
sFL = 80
sHAL = 89
sN1, sN2 = 91, 92
sTS = 94
vL16, vL16b, vL16c = 1, 2, 3
vU = 4
vPOS = 5
vST = 6
vCS = 7
vZ = 8
vTS = 9
vRW = 10
vXW = 14; vXW5 = 15
vO4 = 16
vSW = 17
vRSTD = 18; vT = 19
vRES = 20
vNM = 40
vC1, vC2, vIV = 44, 45, 46
vKR = 47
FREE0 = 48
SLOT = 5248
ONES = 12 * SLOT
EPS = 1e-5

class Pool:
    def __init__(self, quads): self.free = list(quads)
    def get(self): return self.free.pop(0)
    def put(self, q): self.free.append(q)
    def add(self, qs): self.free += list(qs)

class Gen:
    def __init__(self, stop=99, stamps=False, mapping="mix"):
        self.E = Emit(); self.stop = stop; self.stamps = stamps; self.mapping = mapping; self.nst = 0; self.stnames = []
    def stamp(self, name):
        if not self.stamps: return
        E = self.E
        E(f"s_memrealtime {s(sTS,2)}"); E.wait_smem()
        E(f"v_writelane_b32 v{vTS}, s{sTS}, {self.nst}")
        self.nst += 1; self.stnames.append(name)
    def dma4(self, sbase, goff, ldsoff, flag=""):
        g = [f"s_add_u32 m0, s{sLW}, {ldsoff}\ns_add_u32 s{sT0}, s{sbase}, {goff}\nbuffer_load_dwordx4 v{vL16}, {s(WS,4)}, s{sT0} offen {flag} lds"]
        for i in range(1, 4): g.append(f"buffer_load_dwordx4 v{vL16}, {s(WS,4)}, s{sT0} offen offset:{1024*i} {flag} lds")
        return g
    def wread(self, dst, ldsaddr):
        b = ldsaddr >> 16
        return f"ds_read_b128 {R(dst,4)}, v{vL16+b} offset:{ldsaddr & 0xffff}"
    def signal_counter(self, kind, last):
        E = self.E
        E.wait(vm=last); E("s_barrier")
        E(f"s_mov_b64 exec, {s(sE0,2)}\nv_mov_b32 v{vT}, 1")
        E(f"buffer_atomic_add v{vT}, v{vZ}, {s(WS,4)}, s{sCNT} offen offset:{128*kind} sc1", count=False)
        E("s_mov_b64 exec, -1")
    def signal_flag(self, val):
        E = self.E
        E(f"s_mov_b64 exec, {s(sE0,2)}\nv_mov_b32 v{vT}, {val}")
        E(f"buffer_store_dword v{vT}, v{vZ}, {s(WS,4)}, s{sFme} offen sc1", count=False)
        E("s_mov_b64 exec, -1")
    def poll(self, offs, val):
        E = self.E
        E.drain(vm=False)
        Lw, Lp = E.label("W"), E.label("P")
        E(f"s_cmp_lg_u32 s{sW}, 0\ns_cbranch_scc1 {Lw}")
        for k, (sr, imm) in enumerate(offs): E(f"s_add_u32 s{sC+k}, s{sr}, {imm}")
        E(f"s_mov_b32 s{sF}, 0x100000")
        E.place(Lp)
        for k in range(len(offs)): E(f"s_load_dword s{sA+k}, {s(WS,2)}, s{sC+k} glc")
        E.wait_smem()
        if len(offs) == 2: E(f"s_min_u32 s{sA}, s{sA}, s{sB}")
        E(f"s_cmp_ge_u32 s{sA}, {val}\ns_cbranch_scc1 {Lw}")
        E(f"s_sleep 2\ns_sub_u32 s{sF}, s{sF}, 1\ns_cmp_lg_u32 s{sF}, 0\ns_cbranch_scc1 {Lp}")
        E.place(Lw)
        E("s_barrier")
    def prologue(self):
        E = self.E
        kernel_header(E, "main_kernel")
        Lgo = E.label("GO")
        E(f"s_cmp_lt_u32 s2, 256\ns_cbranch_scc1 {Lgo}\ns_endpgm")
        E.place(Lgo)
        E(f"s_load_dwordx2 {s(WS,2)}, s[0:1], 72\ns_load_dwordx2 {s(OUT,2)}, s[0:1], 56\ns_load_dwordx2 {s(XIN,2)}, s[0:1], 0")
        E(f"s_mov_b32 s{WS+2}, {WS_BYTES}\ns_mov_b32 s{WS+3}, 0x00020000")
        for b in (OUT, XIN): E(f"s_mov_b32 s{b+2}, {2048*640*2}\ns_mov_b32 s{b+3}, 0x00020000")
        E(f"v_lshrrev_b32 v{vT}, 6, v0\nv_and_b32 v0, 63, v0\nv_readfirstlane_b32 s{sW}, v{vT}")
        E(f"s_and_b32 s{sA}, s2, 7\ns_lshr_b32 s{sB}, s2, 3")
        if self.mapping == "mix":
            E(f"s_lshr_b32 s{sC}, s{sA}, 1\ns_lshl_b32 s{sC}, s{sC}, 2\ns_lshr_b32 s{sR}, s{sB}, 3\ns_add_u32 s{sR}, s{sR}, s{sC}")
            E(f"s_and_b32 s{sC}, s{sA}, 1\ns_lshl_b32 s{sC}, s{sC}, 3\ns_and_b32 s{sJ}, s{sB}, 7\ns_add_u32 s{sJ}, s{sJ}, s{sC}")
        else:
            E(f"s_lshr_b32 s{sR}, s{sB}, 4\ns_lshl_b32 s{sC}, s{sA}, 1\ns_add_u32 s{sR}, s{sR}, s{sC}\ns_and_b32 s{sJ}, s{sB}, 15")
        E(f"s_and_b32 s{sTH}, s{sJ}, 1\ns_lshr_b32 s{sNB}, s{sJ}, 1\ns_lshl_b32 s{sLW}, s{sW}, 12")
        E(f"v_lshlrev_b32 v{vL16}, 4, v0")
        E(f"s_mul_i32 s{sWQ}, s{sJ}, {160*KB}\ns_add_u32 s{sWQ}, s{sWQ}, s{sLW}\ns_add_u32 s{sWQ}, s{sWQ}, {WQ}")
        E(f"s_lshl_b32 s{sA}, s{sR}, 2\ns_add_u32 s{sA}, s{sA}, s{sW}")
        E(f"s_mul_i32 s{sXB}, s{sA}, {40*KB}")
        E.wait_smem()
    def prologue2(self):
        E = self.E
        E(f"s_mul_i32 s{sWGU}, s{sJ}, {240*KB}\ns_add_u32 s{sWGU}, s{sWGU}, s{sLW}\ns_add_u32 s{sWGU}, s{sWGU}, {WGU}")
        E(f"s_mul_i32 s{sWO}, s{sNB}, {100*KB}\ns_mul_i32 s{sA}, s{sW}, {25*KB}\ns_add_u32 s{sWO}, s{sWO}, s{sA}\ns_add_u32 s{sWO}, s{sWO}, {WO}")
        E(f"s_mul_i32 s{sWD}, s{sNB}, {240*KB}\ns_mul_i32 s{sA}, s{sW}, {60*KB}\ns_add_u32 s{sWD}, s{sWD}, s{sA}\ns_add_u32 s{sWD}, s{sWD}, {WD}")
        E(f"s_lshl_b32 s{sA}, s{sR}, 2\ns_add_u32 s{sA}, s{sA}, s{sW}")
        E(f"s_lshl_b32 s{sB}, s{sJ}, 6\ns_add_u32 s{sC}, s{sB}, s{sA}\ns_mul_i32 s{sKVme}, s{sC}, {5*KB}")
        for i in range(9):
            E(f"s_cmp_lt_u32 s{sA}, {8-i}\ns_cselect_b32 s{sFL+i}, 0x3f80, 0")
        E(f"s_lshl_b32 s{sC}, s{sR}, 2\ns_lshl_b32 s{sD}, s{sW}, 1\ns_add_u32 s{sC}, s{sC}, s{sD}")
        E(f"s_add_u32 s{sD}, s{sC}, s{sB}\ns_sub_u32 s{sD}, s{sD}, 8\ns_mul_i32 s{sHAL}, s{sD}, {5*KB}\ns_add_u32 s{sHAL}, s{sHAL}, {KV}")
        E(f"s_cmp_lt_u32 s{sC}, 8\ns_cselect_b32 s{sHAL}, {WQ}, s{sHAL}\ns_cselect_b32 s{sHAL+1}, 0, {KV_STRIDE}")
        E(f"s_lshl_b32 s{sA}, s{sR}, 4\ns_add_u32 s{sA}, s{sA}, s{sJ}\ns_lshl_b32 s{sFme}, s{sA}, 7\ns_add_u32 s{sFme}, s{sFme}, {FLAGS}")
        E(f"s_sub_u32 s{sN1}, s{sFme}, 2048\ns_cmp_lt_u32 s{sR}, 1\ns_cselect_b32 s{sN1}, s{sFme}, s{sN1}")
        E(f"s_sub_u32 s{sN2}, s{sFme}, 4096\ns_cmp_lt_u32 s{sR}, 2\ns_cselect_b32 s{sN2}, s{sFme}, s{sN2}")
        E(f"s_lshl_b32 s{sCNT}, s{sR}, 11\ns_add_u32 s{sCNT}, s{sCNT}, {FLAGS + 32*KB}")
        E(f"s_cmp_eq_u32 s{sW}, 0\ns_cselect_b64 {s(sE0,2)}, 1, 0")
        for i in range(4):
            E(f"s_add_u32 s{sA}, s{sW}, {1+i}\ns_and_b32 s{sA}, s{sA}, 3\ns_lshr_b32 s{sB}, s{sA}, 1\ns_and_b32 s{sC}, s{sA}, 1\ns_lshl_b32 s{sC}, s{sC}, 8")
            E(f"s_lshl_b32 s{sD}, s{sR}, 1\ns_add_u32 s{sD}, s{sD}, s{sTH}\ns_lshl_b32 s{sD}, s{sD}, 1\ns_add_u32 s{sB}, s{sB}, s{sD}")
            E(f"s_mul_i32 s{sT16+i}, s{sB}, {40*KB}\ns_add_u32 s{sT16+i}, s{sT16+i}, s{sC}")
            E(f"s_mul_i32 s{sT16H+i}, s{sB}, {96*KB}\ns_add_u32 s{sT16H+i}, s{sT16H+i}, s{sC}")
            E(f"s_mul_i32 s{sB}, s{sW}, {24*KB}\ns_add_u32 s{sT16H+i}, s{sT16H+i}, s{sB}")
            if i < 3:
                E(f"s_mul_i32 s{sA}, s{sA}, {15*KB}\ns_add_u32 s{sA}, s{sA}, {5*KB*i}\nv_add_u32 v{vRW+i}, s{sA}, v{vL16}")
        E(f"s_mul_i32 s{sA}, s{sW}, {15*KB}\nv_add_u32 v{vRW+3}, s{sA}, v{vL16}")
        for i in range(16):
            m = 0
            for l in range(64):
                if (i & 3) + 8 * (i >> 2) + 4 * (l >> 5) <= (l & 31): m |= 1 << l
            E(f"s_mov_b32 s{sMASK+2*i}, {hex(m & 0xffffffff)}\ns_mov_b32 s{sMASK+2*i+1}, {hex(m >> 32)}")
        t0, t1, t2 = FREE0, FREE0 + 1, FREE0 + 2
        E(f"v_add_u32 v{vL16b}, 0x10000, v{vL16}\nv_add_u32 v{vL16c}, 0x20000, v{vL16}")
        E(f"v_lshrrev_b32 v{t0}, 4, v0\nv_and_b32 v{t1}, 15, v0")
        E(f"v_lshlrev_b32 v{t2}, 9, v{t0}\nv_lshl_add_u32 v{vU}, v{t1}, 4, v{t2}")
        E(f"v_lshlrev_b32 v{t2}, 10, v{t0}\nv_lshl_add_u32 v{vXW}, v{t1}, 4, v{t2}")
        E(f"v_lshrrev_b32 v{t2}, 1, v{t0}\nv_lshlrev_b32 v{t2}, 9, v{t2}\nv_lshl_add_u32 v{vXW5}, v{t1}, 4, v{t2}")
        E(f"v_and_b32 v{t2}, 1, v{t0}\nv_lshl_add_u32 v{vXW5}, v{t2}, 3, v{vXW5}")
        E(f"v_lshlrev_b32 v{vSW}, 3, v{t1}")
        E(f"v_mul_u32_u24 v{t2}, 1280, v{t1}\nv_lshl_add_u32 v{t2+1}, v{t0}, 5, v{t2}\nv_lshl_add_u32 v{t2+2}, v{t0}, 3, v{t2}")
        self.vRM, self.vRM5 = 250, 251
        E(f"v_mov_b32 v{self.vRM}, v{t2+1}\nv_mov_b32 v{self.vRM5}, v{t2+2}")
        E(f"s_lshl_b32 s{sA}, s{sR}, 1\ns_add_u32 s{sA}, s{sA}, s{sTH}\ns_lshl_b32 s{sA}, s{sA}, 2\ns_add_u32 s{sA}, s{sA}, s{sW}")
        E(f"s_mul_i32 s{sA}, s{sA}, {16*1280}\ns_mul_i32 s{sB}, s{sNB}, 160\ns_add_u32 s93, s{sA}, s{sB}")
        E(f"v_lshrrev_b32 v{t0}, 5, v0\nv_and_b32 v{t1}, 31, v0")
        E(f"v_lshlrev_b32 v{t2}, 2, v{t0}\nv_xor_b32 v{t2}, v{t2}, v{t1}\nv_lshlrev_b32 v{t2}, 4, v{t2}\nv_lshl_add_u32 v{vPOS}, v{t0}, 9, v{t2}")
        E(f"v_lshlrev_b32 v{t2}, 3, v{t1}\nv_lshl_add_u32 v{vCS}, v{t0}, 9, v{t2}")
        E(f"s_lshl_b32 s{sA}, s{sW}, 8\nv_lshl_add_u32 v{vST}, v{t0}, 12, v{t2}\nv_add_u32 v{vST}, s{sA}, v{vST}")
        E(f"v_lshlrev_b32 v{t2}, 4, v{t1}\nv_lshl_add_u32 v{vO4}, v{t0}, 3, v{t2}")
        E(f"s_mul_i32 s{sA}, s{sW}, {SLOT}\nv_add_u32 v{vKR}, s{sA}, v{vPOS}")
        E(f"v_mov_b32 v{vZ}, 0\nv_mov_b32 v{vTS}, 0")
    def load_residual(self):
        E = self.E
        t = 232
        E(f"buffer_load_dwordx4 {v(t,4)}, v{self.vRM}, {s(XIN,4)}, s93 offen")
        E(f"buffer_load_dwordx4 {v(t+4,4)}, v{self.vRM}, {s(XIN,4)}, s93 offen offset:16")
        E(f"buffer_load_dwordx2 {v(t+8,2)}, v{self.vRM5}, {s(XIN,4)}, s93 offen offset:128")
        return [f"v_lshlrev_b32 v{vRES+2*i}, 16, v{t+i}\nv_and_b32 v{vRES+2*i+1}, 0xffff0000, v{t+i}" for i in range(10)]
    def stat_loads(self, idx):
        E = self.E; t = 244 - 8
        E(f"s_lshl_b32 s{sA}, s{sR}, 13\ns_add_u32 s{sA}, s{sA}, {STAT + idx*128*KB}")
        self.vSTT = 224
        for q in range(4): E(f"buffer_load_dwordx2 {v(self.vSTT+2*q,2)}, v{vST}, {s(WS,4)}, s{sA} offen offset:{1024*q} sc1")
    def stat_ops(self):
        t = self.vSTT
        o = []
        o += [f"v_add_f32 v{t}, v{t}, v{t+2}", f"v_add_f32 v{t+1}, v{t+1}, v{t+3}", f"v_add_f32 v{t+4}, v{t+4}, v{t+6}", f"v_add_f32 v{t+5}, v{t+5}, v{t+7}",
              f"v_add_f32 v{t}, v{t}, v{t+4}", f"v_add_f32 v{t+1}, v{t+1}, v{t+5}", f"v_mov_b32 v{t+2}, v{t}", f"v_mov_b32 v{t+3}, v{t+1}", "v_nop",
              f"v_permlane32_swap_b32 v{t+2}, v{t}", f"v_permlane32_swap_b32 v{t+3}, v{t+1}",
              f"v_add_f32 v{t}, v{t}, v{t+2}", f"v_add_f32 v{t+1}, v{t+1}, v{t+3}",
              f"v_mul_f32 v{t}, {f2u(-1/640)}, v{t}",
              f"v_mul_f32 v{t+1}, {f2u(1/640)}, v{t+1}",
              f"v_fma_f32 v{t+1}, -v{t}, v{t}, v{t+1}",
              f"v_cvt_pk_bf16_f32 v{vNM}, v{t}, v{t}",
              f"v_max_f32 v{t+1}, 0, v{t+1}",
              f"v_and_b32 v{t+2}, 0xffff0000, v{vNM}",
              f"v_add_f32 v{vIV}, {f2u(EPS)}, v{t+1}",
              f"v_sub_f32 v{t+2}, v{t}, v{t+2}",
              f"v_rsq_f32 v{vRSTD}, v{vIV}",
              f"v_cvt_pk_bf16_f32 v{vNM+1}, v{t+2}, 0",
              f"v_mov_b32 v{vNM+2}, v{vNM}",
              f"v_mov_b32 v{vNM+3}, v{vNM+1}"]
        return o
    def cs_loads(self, base, stride, ntile, dst):
        g = [f"s_mul_i32 s{sT0+1}, s{sJ}, {stride}\ns_add_u32 s{sT0+1}, s{sT0+1}, {base}"]
        for t in range(ntile):
            if t == 4: g.append(f"s_add_u32 s{sT0+1}, s{sT0+1}, 4096")
            for q in range(2):
                g.append(f"buffer_load_dwordx2 {R(dst+4*t+2*q,2)}, v{vCS}, {s(WS,4)}, s{sT0+1} offen offset:{1024*(t%4)+256*q}")
        return g
    def gemm_pass(self, acc, X, waddr, f0, nf_total, ring, cs, mem=None, valu=None, pre=None, nvalu=4):
        E = self.E; LA = 6
        mem = mem or {}; valu = list(valu or []); pre = pre or {}
        for sl in range(82):
            if sl in pre: pre[sl]()
            if sl < 80:
                ks, n = sl >> 1, sl & 1; f = f0 + sl
                if n == 0: E.need(regs(R(ring + 4 * (f % LA), 4)) | regs(R(ring + 4 * ((f + 1) % LA), 4)) | regs(R(X + 4 * ks, 4)))
                E(f"v_mfma_f32_32x32x16_bf16 {v(acc[n],16)}, {R(ring+4*(f%LA),4)}, {R(X+4*ks,4)}, {'0' if ks == 0 else v(acc[n],16)}")
                if f + LA < nf_total: E(self.wread(ring + 4 * (f % LA), waddr(f + LA)))
            else:
                n = sl - 80
                E(f"v_mfma_f32_32x32x16_bf16 {v(acc[n],16)}, {R(cs+4*n,4)}, {v(vNM,4)}, {v(acc[n],16)}")
            for g in mem.get(sl, []):
                if callable(g): g()
                else: E(g)
            b = nvalu
            while valu and b > 0 and sl >= 2:
                x = valu.pop(0)
                if callable(x): x(); continue
                E(x); b -= 2 if x.startswith(TRANS) else 1
        for x in valu:
            if callable(x): x()
            else: E(x)
    @staticmethod
    def spread(mem, groups, start, step):
        for i, g in enumerate(groups): mem.setdefault(int(start + i * step), []).append(g)
    def xloads(self, base):
        g = []
        for ks in range(40):
            t = ""
            if ks % 4 == 0: t = f"s_add_u32 s{sE_}, s{sXB}, {base + 1024*ks}\n"
            g.append(t + f"buffer_load_dwordx4 {a(4*ks,4)}, v{vL16}, {s(WS,4)}, s{sE_} offen offset:{1024*(ks%4)} sc1")
        return g
    def p1(self, L):
        E = self.E
        ACC = [48, 64, 80, 96]; RING = 112; CS = 136
        KA, KB_, KV1, VA, VB = 152, 156, 160, 164, 168
        self.QA0, self.QB0, self.QA1, self.QB1 = 172, 176, 180, 184
        xl = self.xloads(XT + 2 * L * XT_STRIDE)
        if L == 0:
            dm = [self.dma4(sWQ, 16 * KB * c, 16 * KB * c) for c in range(10)]
            tok = []
            for c in range(5):
                for g in dm[c]: t = E(g)
                tok.append(t)
                for g in xl[8 * c: 8 * c + 8] if c < 2 else []: E(g)
                if c == 0:
                    self.prologue2(); self.stamp("start")
                    self.stat_loads(0)
                    for g in self.cs_loads(CSQ, 4 * KB, 4, CS): E(g)
            xrest = xl[16:]; dmrest = dm[5:]
            resops = self.load_residual()
        else:
            self.poll([(sCNT, 128 * (8 * (L - 1) + 3))], 16)
            self.stamp("L2 P1 synced")
            self.stat_loads(2)
            for g in xl[:16]: E(g)
            xrest = xl[16:]; dmrest = []; tok = None; resops = []
        wa = lambda f: 1024 * f
        def chunk_ready(c):
            def fn():
                if tok is not None: E.wait(vm=tok[c])
                E("s_barrier")
            return fn
        if tok is None: E.need(regs(a(0, 4)))
        chunk_ready(0)()
        for f in range(6): E(self.wread(RING + 4 * f, wa(f)))
        mem = {}; pre = {}
        self.spread(mem, xrest, 0, 2)
        if L == 0:
            for c in range(1, 5): pre[16 * c - 6] = chunk_ready(c)
            def rec(g):
                def fn(): tok.append(E(g))
                return fn
            fl = []
            for d in dmrest: fl += d[:3] + [rec(d[3])]
            self.spread(mem, fl, 1, 2)
            pre[74] = chunk_ready(5)
        self.gemm_pass(ACC[:2], 256, wa, 0, 160, RING, CS, mem, self.stat_ops() + resops, pre)
        self.stamp(f"L{L} P1 passA")
        dstA = [KA, KA + 2, KV1, KB_, KB_ + 2, VA, VA + 2, KV1 + 2]
        va = []
        for G in range(8):
            b = ACC[0] + 4 * G
            va += [f"v_mul_f32 v{b+i}, v{vRSTD}, v{b+i}" for i in range(4)]
            va += [f"v_cvt_pk_bf16_f32 v{dstA[G]+i}, v{b+2*i}, v{b+2*i+1}" for i in range(2)]
        kvg = KV + L * KV_STRIDE
        st = {}
        def putA():
            E(f"s_add_u32 s{sA}, s{sKVme}, {kvg}\ns_add_u32 s{sB}, s{sA}, 4096\nv_add_u32 v{vT}, {8*SLOT}, v{vKR}")
            for reg, off in ((KA, 0), (KB_, 1024), (VA, 2048)):
                E(f"buffer_store_dwordx4 {v(reg,4)}, v{vPOS}, {s(WS,4)}, s{sA} offen offset:{off} sc1")
                E(f"ds_write_b128 v{vT}, {v(reg,4)} offset:{off}")
            st["A"] = E(f"buffer_store_dwordx4 {v(KV1,4)}, v{vPOS}, {s(WS,4)}, s{sB} offen sc1")
            E(f"ds_write_b128 v{vT}, {v(KV1,4)} offset:{4096+128}")
        va.append(putA)
        pre = {}
        pre[0] = lambda: E("s_barrier")
        if L == 0:
            for c in range(6, 10): pre[16 * c - 6 - 80] = chunk_ready(c)
        self.gemm_pass(ACC[2:], 256, wa, 80, 160, RING, CS + 8, {}, va, pre)
        self.stamp(f"L{L} P1 passB")
        qs = 20 ** -0.5 * math.log2(math.e)
        E(f"v_mul_f32 v{vT}, {f2u(qs)}, v{vRSTD}")
        dstB = [VB, VB + 2, self.QA0, self.QA0 + 2, self.QA1, self.QB0, self.QB0 + 2]
        for G in range(7):
            b = ACC[2] + 4 * G
            sc = vRSTD if G < 2 else vT
            for i in range(4): E(f"v_mul_f32 v{b+i}, v{sc}, v{b+i}")
            for i in range(2): E(f"v_cvt_pk_bf16_f32 v{dstB[G]+i}, v{b+2*i}, v{b+2*i+1}")
            if G == 1:
                E(f"s_add_u32 s{sA}, s{sKVme}, {kvg}\nv_add_u32 v{b}, {8*SLOT}, v{vKR}")
                st["B"] = E(f"buffer_store_dwordx4 {v(VB,4)}, v{vPOS}, {s(WS,4)}, s{sA} offen offset:3072 sc1")
                E(f"ds_write_b128 v{b}, {v(VB,4)} offset:3072")
        E(f"s_mov_b32 vcc_lo, -1\ns_mov_b32 vcc_hi, 0")
        for i in range(2):
            E(f"v_cndmask_b32 v{self.QB1+i}, v{self.QA1+i}, v{vZ}, vcc")
            E(f"v_cndmask_b32 v{self.QA1+i}, v{vZ}, v{self.QA1+i}, vcc")
        for q in (self.QA1, self.QB1): E(f"v_mov_b32 v{q+2}, 0xfe96\nv_mov_b32 v{q+3}, 0")
        E(f"v_mov_b32 v48, 0x3f803f80\nv_mov_b32 v49, v48\nv_mov_b32 v50, v48\nv_mov_b32 v51, v48")
        E(f"ds_write_b128 v{vL16}, v[48:51] offset:{ONES}\nds_write_b128 v{vL16}, v[48:51] offset:{ONES+1024}")
        E.wait(vm=st["B"], ds=E.ds_n); E("s_barrier")
        self.signal_flag(L + 1)
        self.poll([(sN1, 0), (sN2, 0)], L + 1)
        E(f"s_mul_i32 s{sA}, s{sW}, {2*SLOT}")
        if L: E(f"s_add_u32 s{sHAL}, s{sHAL}, s{sHAL+1}")
        for t in range(2):
            E(f"s_add_u32 m0, s{sA}, {t*SLOT}\ns_add_u32 s{sB}, s{sHAL}, {t*5*KB}")
            for i in range(4): E(f"buffer_load_dwordx4 v{vL16}, {s(WS,4)}, s{sB} offen offset:{1024*i} sc1 lds")
            E(f"s_add_u32 m0, s{sA}, {t*SLOT+4096+128}\ns_add_u32 s{sB}, s{sB}, 4096")
            last = E(f"buffer_load_dwordx4 v{vL16}, {s(WS,4)}, s{sB} offen sc1 lds")
        self.halo_tok = last
    def p2(self, L):
        E = self.E
        QA0, QB0, QA1, QB1 = self.QA0, self.QB0, self.QA1, self.QB1
        S = [48, 64, 80]; M = [96, 112]; NEG = 128; O = [144, 188]; P = [204, 212]; PM = 220
        MK = 228
        VAD = [160, 236]
        MX = [169, 170]; TT = 171
        K0 = [256 + 100, 256 + 136]; K1 = 256 + 172; VF = [256 + 208, 256 + 216, 256 + 224]
        self.WOREG = 256
        bg = []
        for f in range(25):
            t = f"s_add_u32 s{sE_}, s{sWO}, {1024*f}\n" if f % 4 == 0 else ""
            bg.append(t + f"buffer_load_dwordx4 {R(self.WOREG+4*f,4)}, v{vL16}, {s(WS,4)}, s{sE_} offen offset:{1024*(f%4)}")
        for c in range(6): bg += self.dma4(sWGU, 16 * KB * c, 64 * KB + 16 * KB * c)
        t0, t1, t2 = 48, 49, 50
        for i in range(8):
            E(f"v_cndmask_b32 v{t0}, 0, -1, {s(sMASK+4*i,2)}\nv_cndmask_b32 v{t1}, 0, -1, {s(sMASK+4*i+2,2)}")
            E(f"v_and_b32 v{t0}, 0xffff, v{t0}\nv_lshl_or_b32 v{MK+i}, v{t1}, 16, v{t0}")
        E(f"v_lshrrev_b32 v{t0}, 5, v0\nv_bfe_u32 v{t1}, v0, 2, 2\nv_lshl_add_u32 v{t0}, v{t0}, 2, v{t1}")
        E(f"v_bfe_u32 v{t1}, v0, 4, 1\nv_and_b32 v{t2}, 3, v0\nv_lshl_add_u32 v{t1}, v{t1}, 2, v{t2}")
        E(f"v_and_b32 v{t2}, 1, v0\nv_lshlrev_b32 v51, 2, v{t2}\nv_xor_b32 v51, v51, v{t0}\nv_lshlrev_b32 v51, 4, v51\nv_lshl_add_u32 v51, v{t2}, 9, v51")
        E(f"v_bfe_u32 v52, v0, 1, 1\nv_lshl_add_u32 v52, v52, 3, v51")
        E(f"v_add_u32 v53, {4096+128+8}, v51")
        E(f"s_mul_i32 s{sA}, s{sW}, {SLOT}\ns_lshl_b32 s{sB}, s{sW}, 7\ns_add_u32 s{sB}, s{sB}, {ONES+128}")
        for hd in range(2):
            E(f"v_add_u32 v54, {2048+1024*hd}, v52\nv_cmp_gt_u32 vcc, 4, v{t1}\nv_cndmask_b32 v54, v53, v54, vcc\nv_add_u32 v54, s{sA}, v54")
            E(f"v_cmp_gt_u32 {s(sC,2)}, 4, v{t1}\nv_cmp_eq_u32 vcc, {4+hd}, v{t1}\ns_or_b64 vcc, vcc, {s(sC,2)}")
            E(f"v_mov_b32 v55, s{sB}\nv_cndmask_b32 v{VAD[hd]}, v55, v54, vcc")
            E(f"v_mov_b32 v55, 128\nv_mov_b32 v56, {SLOT}\nv_cndmask_b32 v55, v55, v56, vcc")
            for i in range(1, 9): E(f"v_add_u32 v{VAD[hd]+i}, v{VAD[hd]+i-1}, v55")
        for i in range(9):
            E(f"v_mov_b32 v{t0}, s{sFL+i}\nv_accvgpr_write_b32 {R(K1+4*i+2)}, v{t0}\nv_accvgpr_write_b32 {R(K1+4*i+3)}, 0")
        E.wait(vm=self.halo_tok); E("s_barrier")
        self.stamp(f"L{L} halo in")
        order = list(range(8, -1, -1))
        def kread(hd, i): return f"ds_read_b128 {R(K0[hd]+4*i,4)}, v{vKR} offset:{i*SLOT + 1024*hd}"
        def k1read(i): return f"ds_read_b64 {R(K1+4*i,2)}, v{vKR} offset:{i*SLOT + 4096 + 128}"
        def smf(hd, i, dst, C):
            q0, q1 = (QA0, QA1) if hd == 0 else (QB0, QB1)
            return [f"v_mfma_f32_32x32x16_bf16 {v(dst,16)}, {R(K0[hd]+4*i,4)}, {v(q0,4)}, {C}",
                    f"v_mfma_f32_32x32x16_bf16 {v(dst,16)}, {R(K1+4*i,4)}, {v(q1,4)}, {v(dst,16)}"]
        def maxops(src, first):
            o = []
            for k in range(8):
                m = MX[k & 1]
                if first and k < 2: o.append(f"v_max_f32 v{m}, v{src+2*k}, v{src+2*k+1}")
                else: o.append(f"v_max3_f32 v{m}, v{src+2*k}, v{src+2*k+1}, v{m}")
            return o
        def mergeops(hd, old):
            return [f"v_cndmask_b32 v{M[hd]+k}, v{old+k}, v{M[hd]+k}, {s(sMASK+2*k,2)}" for k in range(16)]
        def finmax():
            return [f"v_max_f32 v{MX[0]}, v{MX[0]}, v{MX[1]}", f"v_mov_b32 v{MX[1]}, v{MX[0]}", "v_nop", f"v_permlane32_swap_b32 v{MX[1]}, v{MX[0]}",
                    f"v_max_f32 v{TT}, v{MX[0]}, v{MX[1]}"] + [f"v_sub_f32 v{NEG+k}, 0, v{TT}" for k in range(16)]
        def vreads(hd, i, vf): return [f"ds_read_b64_tr_b16 {R(vf+2*k,2)}, v{VAD[hd]+i} offset:{128*k}" for k in range(4)]
        def expops(src, p):
            o = []
            for k in range(8):
                o += [f"v_exp_f32 v{src+2*k}, v{src+2*k}", f"v_exp_f32 v{src+2*k+1}, v{src+2*k+1}"]
                if k: o.append(f"v_cvt_pk_bf16_f32 v{p+k-1}, v{src+2*k-2}, v{src+2*k-1}")
            o += ["v_nop", f"v_cvt_pk_bf16_f32 v{p+7}, v{src+14}, v{src+15}"]
            return o
        def pv(hd, vf, p, first):
            return [f"v_mfma_f32_32x32x16_bf16 {v(O[hd],16)}, {R(vf,4)}, {v(p,4)}, {'0' if first else v(O[hd],16)}",
                    f"v_mfma_f32_32x32x16_bf16 {v(O[hd],16)}, {R(vf+4,4)}, {v(p+4,4)}, {v(O[hd],16)}"]
        def weave(mf, mems, valu):
            n = len(mf); mems = list(mems); valu = list(valu)
            for k, m in enumerate(mf):
                E(m)
                for _ in range(-(-len(mems) // (n - k))): E(mems.pop(0))
                if bg: E(bg.pop(0))
                for _ in range(-(-len(valu) // (n - k))): E(valu.pop(0))
        for i in order[:3]: E(kread(0, i)); E(k1read(i))
        prev = None
        for n, i in enumerate(order):
            dst = M[0] if i == 8 else S[n % 2]
            mems = []
            if n + 3 < 9: mems = [kread(0, order[n + 3]), k1read(order[n + 3])]
            else: mems = [kread(1, order[n - 6])]
            weave(smf(0, i, dst, "0"), mems, maxops(prev, n == 2) if prev is not None else [])
            prev = dst if i != 8 else None
        for x in vreads(0, 8, VF[0]) + vreads(0, 0, VF[1]): E(x)
        for x in mergeops(0, prev) + maxops(M[0], False) + finmax(): E(x)
        self.stamp(f"L{L} att s1")
        for hd in range(2):
            pend_pv = []
            prevb = None
            for st in range(8):
                mf = []; mems = []; va = []
                if st < 7: mf += smf(hd, 7 - st, S[st % 2], v(NEG, 16))
                mf += pend_pv
                if st == 0:
                    va += [f"v_add_f32 v{M[hd]+k}, v{NEG}, v{M[hd]+k}" for k in range(16)] + expops(M[hd], P[0])
                    va += [f"v_bfi_b32 v{PM+k}, v{MK+k}, 0, v{P[0]+k}" for k in range(8)] + [f"v_and_b32 v{P[0]+k}, v{MK+k}, v{P[0]+k}" for k in range(8)]
                    pend_pv = pv(hd, VF[0], P[0], True) + pv(hd, VF[1], PM, False)
                    mems += vreads(hd, 7, VF[2])
                else:
                    va += expops(S[(st - 1) % 2], P[st % 2])
                    vf = VF[(st + 1) % 3]
                    pend_pv = pv(hd, vf, P[st % 2], False)
                    if st >= 2: mems += vreads(hd, 8 - st, vf)
                if hd == 0:
                    tl = [8, 7] if st == 0 else [7 - st]
                    if prevb is not None: va = maxops(prevb, st == 1) + va
                    for i in tl:
                        mf += smf(1, i, M[1] if i == 8 else S[2], "0")
                    prevb = S[2]
                    if 5 - st >= 0: mems.append(kread(1, 5 - st))
                weave(mf, mems, va)
            for x in pend_pv: E(x)
            if hd == 0:
                for x in vreads(1, 8, VF[0]) + vreads(1, 0, VF[1]): E(x)
                for x in mergeops(1, S[2]) + maxops(M[1], False) + finmax(): E(x)
                self.stamp(f"L{L} att s2")
        while bg: E(bg.pop(0))
        D = 48
        for hd in range(2):
            E(f"v_rcp_f32 v{TT}, v{O[hd]+12}")
            for k in range(12): E(f"v_mul_f32 v{O[hd]+k}, v{TT}, v{O[hd]+k}")
            for k in range(6): E(f"v_cvt_pk_bf16_f32 v{D+8*hd+k}, v{O[hd]+2*k}, v{O[hd]+2*k+1}")
        E(f"s_mov_b32 vcc_lo, -1\ns_mov_b32 vcc_hi, 0")
        for k in range(2): E(f"v_cndmask_b32 v{D+4+k}, v{D+12+k}, v{D+4+k}, vcc")
        E(f"s_mul_i32 s{sA}, s{sJ}, 2560\ns_add_u32 s{sA}, s{sA}, s{sXB}\ns_add_u32 s{sA}, s{sA}, {OB + L*OB_STRIDE}")
        E(f"buffer_store_dwordx4 {v(D,4)}, v{vL16}, {s(WS,4)}, s{sA} offen sc1")
        E(f"buffer_store_dwordx4 {v(D+8,4)}, v{vL16}, {s(WS,4)}, s{sA} offen offset:1024 sc1")
        last = E(f"buffer_store_dwordx2 {v(D+4,2)}, v{vO4}, {s(WS,4)}, s{sA} offen offset:2048 sc1")
        self.stamp(f"L{L} att done")
        self.signal_counter(8 * L + 0, last)
    def reduce_and_publish(self, ACC, steps, red, xidx, kind, final, post_barrier):
        E = self.E
        PT = 176
        wr = []
        for i in range(4):
            mf = []
            for sidx, (W, act, first) in enumerate(steps):
                for nt in range(5):
                    d = ACC[i] + 4 * nt
                    C = "0" if (first and i < 3) else v(d, 4)
                    mf.append(f"v_mfma_f32_16x16x32_bf16 {v(d,4)}, {R(W[nt],4)}, {R(act[i],4)}, {C}")
            rd = []
            for k, m in enumerate(mf):
                E(m)
                if k >= 5 and wr:
                    E(wr.pop(0))
                    if not wr and i == 3:
                        E.drain(vm=False); E("s_barrier")
                        rd = [f"ds_read_b128 {v(PT+4*q,4)}, v{vT} offset:{1024*q}" for q in range(15)]
                        E(f"v_add_u32 v{vT}, {red}, v{vRW+3}")
                elif rd:
                    E(rd.pop(0))
                    if rd: E(rd.pop(0))
            for x in rd: E(x)
            if i < 3:
                E(f"v_add_u32 v{vT}, {red}, v{vRW+i}")
                wr = [f"ds_write_b128 v{vT}, {v(ACC[i]+4*nt,4)} offset:{1024*nt}" for nt in range(5)]
        for k in range(0, 20, 2): E(f"v_pk_add_f32 {v(PT+k,2)}, {v(PT+k,2)}, {v(PT+20+k,2)}")
        for k in range(0, 20, 2): E(f"v_pk_add_f32 {v(PT+k,2)}, {v(PT+k,2)}, {v(PT+40+k,2)}")
        for k in range(0, 20, 2): E(f"v_pk_add_f32 {v(vRES+k,2)}, {v(vRES+k,2)}, {v(PT+k,2)}")
        D = PT + 20
        for k in range(10): E(f"v_cvt_pk_bf16_f32 v{D+k}, v{vRES+2*k}, v{vRES+2*k+1}")
        if final:
            E(f"buffer_store_dwordx4 {v(D,4)}, v{self.vRM}, {s(OUT,4)}, s93 offen")
            E(f"buffer_store_dwordx4 {v(D+4,4)}, v{self.vRM}, {s(OUT,4)}, s93 offen offset:16")
            E(f"buffer_store_dwordx2 {v(D+8,2)}, v{self.vRM5}, {s(OUT,4)}, s93 offen offset:128")
            return
        E(f"s_mul_i32 s{sA}, s{sNB}, {5*KB}\ns_add_u32 s{sA}, s{sA}, s{sT16+3}\ns_add_u32 s{sA}, s{sA}, {XT + xidx*XT_STRIDE}\ns_add_u32 s{sB}, s{sA}, 4096")
        E(f"buffer_store_dwordx4 {v(D,4)}, v{vXW}, {s(WS,4)}, s{sA} offen sc1")
        E(f"buffer_store_dwordx4 {v(D+4,4)}, v{vXW}, {s(WS,4)}, s{sA} offen offset:512 sc1")
        E(f"buffer_store_dwordx2 {v(D+8,2)}, v{vXW5}, {s(WS,4)}, s{sB} offen sc1")
        T = PT
        E(f"v_pk_add_f32 {v(T,2)}, {v(vRES,2)}, {v(vRES+2,2)}\nv_pk_mul_f32 {v(T+2,2)}, {v(vRES,2)}, {v(vRES,2)}")
        E(f"v_pk_fma_f32 {v(T+2,2)}, {v(vRES+2,2)}, {v(vRES+2,2)}, {v(T+2,2)}")
        for k in range(4, 20, 2):
            E(f"v_pk_add_f32 {v(T,2)}, {v(T,2)}, {v(vRES+k,2)}\nv_pk_fma_f32 {v(T+2,2)}, {v(vRES+k,2)}, {v(vRES+k,2)}, {v(T+2,2)}")
        E(f"v_add_f32 v{T}, v{T}, v{T+1}\nv_add_f32 v{T+1}, v{T+2}, v{T+3}")
        for sw in ("v_permlane32_swap_b32", "v_permlane16_swap_b32"):
            E(f"v_mov_b32 v{T+2}, v{T}\nv_mov_b32 v{T+3}, v{T+1}\n{sw} v{T+2}, v{T}\n{sw} v{T+3}, v{T+1}")
            E(f"v_add_f32 v{T}, v{T}, v{T+2}\nv_add_f32 v{T+1}, v{T+1}, v{T+3}")
        E(f"s_lshl_b32 s{sA}, s{sR}, 3\ns_add_u32 s{sA}, s{sA}, s{sNB}\ns_lshl_b32 s{sA}, s{sA}, 1\ns_add_u32 s{sA}, s{sA}, s{sTH}\ns_lshl_b32 s{sA}, s{sA}, 2")
        E(f"s_add_u32 s{sA}, s{sA}, s{sW}\ns_lshl_b32 s{sA}, s{sA}, 7\ns_add_u32 s{sA}, s{sA}, {STAT + xidx*128*KB}")
        E("s_mov_b64 exec, 0xffff")
        last = E(f"buffer_store_dwordx2 {v(T,2)}, v{vSW}, {s(WS,4)}, s{sA} offen sc1")
        E("s_mov_b64 exec, -1")
        self.signal_counter(kind, last)
        for g in post_barrier: E(g)
    def p3(self, L):
        E = self.E
        self.poll([(sCNT, 128 * (8 * L + 0))], 16)
        self.stamp(f"L{L} P3 synced")
        OF = 256 + 100
        E(f"s_mul_i32 s{sA}, s{sW}, {10*KB}\ns_add_u32 s{sA}, s{sA}, {OB + L*OB_STRIDE}")
        for i in range(4):
            for st in range(5):
                if st % 2 == 0: E(f"s_add_u32 s{sB}, s{sA}, s{sT16+i}" if st == 0 else f"s_add_u32 s{sB}, s{sB}, 4096")
                E(f"buffer_load_dwordx4 {R(OF+20*i+4*st,4)}, v{vU}, {s(WS,4)}, s{sB} offen offset:{2048*(st%2)} sc1")
        steps = [([self.WOREG + 20 * st + 4 * nt for nt in range(5)], [OF + 20 * i + 4 * st for i in range(4)], st == 0) for st in range(5)]
        post = []
        for c in range(6, 10): post += self.dma4(sWGU, 16 * KB * c, 16 * KB * (c - 6))
        self.CSG = 152
        post += self.cs_loads(CSG, 6 * KB, 6, self.CSG)
        self.reduce_and_publish([48, 68, 88, vRES], steps, 0, 2 * L + 1, 8 * L + 1, False, post)
        self.stamp(f"L{L} P3 done")
    def p4(self, L):
        E = self.E
        self.poll([(sCNT, 128 * (8 * L + 1))], 16)
        self.stamp(f"L{L} P4 synced")
        ACC = [[48, 64], [80, 96]]; RING = 112; HP = 136; T = 144
        self.stat_loads(2 * L + 1)
        xl = self.xloads(XT + (2 * L + 1) * XT_STRIDE)
        for g in xl[:16]: E(g)
        wa = lambda f: 1024 * ((64 + f) % 160)
        E.need(regs(a(0, 4))); E("s_barrier")
        for f in range(6): E(self.wread(RING + 4 * f, wa(f)))
        c1 = -2 * 0.7978845608028654 * math.log2(math.e); c2 = c1 * 0.044715
        so = self.stat_ops() + [f"v_mul_f32 v{vC1}, {f2u(c1)}, v{vRSTD}", f"v_mul_f32 v{T}, v{vRSTD}, v{vRSTD}", f"v_mul_f32 v{vC2}, {f2u(c2/c1)}, v{vC1}",
                                f"v_mul_f32 v{vC2}, v{T}, v{vC2}"]
        self.pool = Pool([256 + 160 + 4 * i for i in range(24)] + [176 + 4 * i for i in range(12)])
        self.WDF = {}
        def wdload(f):
            q = self.pool.get(); self.WDF[f] = q
            t = f"s_add_u32 s{sT0+1}, s{sWD}, {1024*f}\n" if f % 4 == 0 else ""
            return t + f"buffer_load_dwordx4 {R(q,4)}, v{vL16}, {s(WS,4)}, s{sT0+1} offen offset:{1024*(f%4)}"
        self.wdload = wdload
        st = {}
        def epi(p):
            g, u = ACC[p % 2]
            o = []
            for k0 in range(0, 16, 4):
                ks = range(k0, k0 + 4)
                o += [f"v_mul_f32 v{T+k%4}, v{g+k}, v{g+k}" for k in ks]
                o += [f"v_fma_f32 v{T+k%4}, v{T+k%4}, v{vC2}, v{vC1}" for k in ks]
                o += [f"v_mul_f32 v{T+k%4}, v{T+k%4}, v{g+k}" for k in ks]
                o += [f"v_exp_f32 v{T+k%4}, v{T+k%4}" for k in ks]
                o += [f"v_mul_f32 v{g+k}, v{g+k}, v{u+k}" for k in ks]
                o += [f"v_fma_f32 v{T+k%4}, v{T+k%4}, v{vIV}, v{vIV}" for k in ks]
                o += [f"v_rcp_f32 v{T+k%4}, v{T+k%4}" for k in ks]
                o += [f"v_mul_f32 v{g+k}, v{g+k}, v{T+k%4}" for k in ks]
                o += [f"v_cvt_pk_bf16_f32 v{HP+k//2}, v{g+k}, v{g+k+1}" for k in ks if k % 2 == 0]
            def put():
                E(f"s_lshl_b32 s{sA}, s{sR}, 2\ns_add_u32 s{sA}, s{sA}, s{sW}\ns_mul_i32 s{sA}, s{sA}, {96*KB}\ns_mul_i32 s{sB}, s{sJ}, {6*KB}")
                E(f"s_add_u32 s{sA}, s{sA}, s{sB}\ns_add_u32 s{sA}, s{sA}, {HB + L*HB_STRIDE + 2048*p}")
                E(f"buffer_store_dwordx4 {v(HP,4)}, v{vL16}, {s(WS,4)}, s{sA} offen sc1")
                st[p] = E(f"buffer_store_dwordx4 {v(HP+4,4)}, v{vL16}, {s(WS,4)}, s{sA} offen offset:1024 sc1")
            o.append(put)
            return o
        mem = {}; self.spread(mem, xl[16:], 0, 2)
        self.spread(mem, [wdload(f) for f in range(12)], 50, 2.5)
        self.gemm_pass(ACC[0], 256, wa, 0, 240, RING, self.CSG, mem, so, {})
        self.stamp(f"L{L} P4 p0")
        mem = {}; tok = []
        fl = []
        for c in range(10, 15):
            d = self.dma4(sWGU, 16 * KB * c, 64 * KB + 16 * KB * (c - 10))
            fl += d
        def rec(g):
            def fn(): tok.append(E(g))
            return fn
        fl[-1] = rec(fl[-1])
        self.spread(mem, fl, 1, 2)
        self.spread(mem, [wdload(f) for f in range(12, 24)], 44, 2.5)
        def ready():
            E.wait(vm=tok[0]); E("s_barrier")
        self.gemm_pass(ACC[1], 256, wa, 80, 240, RING, self.CSG + 8, mem, epi(0), {0: lambda: E("s_barrier"), 74: ready}, nvalu=3)
        self.stamp(f"L{L} P4 p1")
        mem = {}
        self.spread(mem, [wdload(f) for f in range(24, 36)], 1, 2.5)
        def late(f, ks):
            def fn():
                self.pool.put(256 + 4 * ks); E(wdload(f))
            return fn
        self.spread(mem, [late(36 + i, i) for i in range(16)], 34, 2.5)
        self.gemm_pass(ACC[0], 256, wa, 160, 240, RING, self.CSG + 16, mem, epi(1), {}, nvalu=3)
        self.stamp(f"L{L} P4 p2")
        for x in epi(2):
            if callable(x): x()
            else: E(x)
        self.pool.add([256 + 4 * ks for ks in range(16, 40)])
        self.stamp(f"L{L} P4 done")
        self.signal_counter(8 * L + 2, st[2])
        for f in range(52, 60): E(wdload(f))
    def p5(self, L):
        E = self.E
        ACC = [48, 68, 88, vRES]
        self.pool.add([108 + 4 * i for i in range(17)])
        self.poll([(sCNT, 128 * (8 * L + 2))], 16)
        self.stamp(f"L{L} P5 synced")
        HF = {}
        def hload(st, i):
            p, jj = divmod(st, 4)
            q = self.pool.get(); HF[(st, i)] = q
            return f"s_add_u32 s{sE_}, s{sT16H+i}, {HB + L*HB_STRIDE + 2048*(3*jj+p)}\nbuffer_load_dwordx4 {R(q,4)}, v{vU}, {s(WS,4)}, s{sE_} offen sc1"
        todo = [(st, i) for st in range(8) for i in range(4)] + [(st, i) for i in range(4) for st in range(8, 12)]
        for _ in range(16): E(hload(*todo.pop(0)))
        bg = []
        if L == 0:
            for c in range(6): bg += self.dma4(sWQ, 16 * KB * c, 16 * KB * c)
        for st in range(8):
            k = 0
            for i in range(4):
                for nt in range(5):
                    d = ACC[i] + 4 * nt
                    C = "0" if (st == 0 and i < 3) else v(d, 4)
                    E(f"v_mfma_f32_16x16x32_bf16 {v(d,4)}, {R(self.WDF[5*st+nt],4)}, {R(HF[(st,i)],4)}, {C}")
                    k += 1
                    if k % 4 == 0:
                        if todo and self.pool.free: E(hload(*todo.pop(0)))
                        elif bg: E(bg.pop(0))
                self.pool.put(HF[(st, i)])
            for nt in range(5): self.pool.put(self.WDF[5 * st + nt])
        assert not todo
        for g in bg: E(g)
        live = [self.WDF[f] for f in range(40, 60)] + [HF[(st, i)] for st in range(8, 12) for i in range(4)]
        assert not [q for q in live if 176 <= q < 236], live
        steps = [([self.WDF[5 * st + nt] for nt in range(5)], [HF[(st, i)] for i in range(4)], False) for st in range(8, 12)]
        post = []
        if L == 0:
            for c in range(6, 10): post += self.dma4(sWQ, 16 * KB * c, 16 * KB * c)
            post += self.cs_loads(CSQ, 4 * KB, 4, 136)
        self.reduce_and_publish(ACC, steps, 100 * KB, 2 * L + 2, 8 * L + 3, L == 1, post)
        self.stamp(f"L{L} P5 done")
    def finish(self):
        E = self.E
        if self.stamps:
            E(f"s_lshl_b32 s{sA}, s2, 2\ns_add_u32 s{sA}, s{sA}, s{sW}\ns_lshl_b32 s{sA}, s{sA}, 8\ns_add_u32 s{sA}, s{sA}, {DBG}")
            E(f"v_lshlrev_b32 v{vT}, 2, v0\nbuffer_store_dword v{vTS}, v{vT}, {s(WS,4)}, s{sA} offen")
        E("s_endpgm")
    def build(self):
        E = self.E
        E.raw(f"; @launch kernel=p0_kernel grid=({N_P0},1,1) block=(64,1,1) lds=25600")
        E.raw("; @launch kernel=main_kernel grid=(256,1,1) block=(256,1,1) lds=163840")
        E.raw('.amdgcn_target "amdgcn-amd-amdhsa--gfx950"')
        d = gen_p0(E); E.fresh()
        self.prologue()
        n = 0
        for L in range(2):
            for ph in (self.p1, self.p2, self.p3, self.p4, self.p5):
                if n < self.stop: ph(L)
                n += 1
        self.finish()
        kernel_desc(E, d["name"], d["vgpr"], d["agpr"], d["sgpr"])
        kernel_desc(E, "main_kernel", 256, 256, 102)
        return E.text()

if __name__ == "__main__":
    out = sys.argv[1]
    g = Gen(stop=int(sys.argv[2]) if len(sys.argv) > 2 else 99, stamps=len(sys.argv) > 3 and sys.argv[3] == "ts")
    t = g.build()
    open(out, "w").write(t)
    print(len(t), "bytes", g.E.ninst, "insts", g.E.nnop, "nop states", g.E.stats)
    if g.stamps: open(out + ".names", "w").write("\n".join(g.stnames))
```

```python
KB = 1024; MB = 1 << 20
FLAGS = 0
GCNT  = 64 * KB
CSQ   = 192 * KB
CSG   = 256 * KB
STAT  = 384 * KB
F1    = 896 * KB
F2    = 928 * KB
EPOCH = 960 * KB
WQ    = 1 * MB
WGU   = 4 * MB
WO    = 8 * MB
WD    = 9 * MB
XT    = 12 * MB
XT_STRIDE = 3 * MB
KV    = 24 * MB
KV_STRIDE = 5 * MB
OB    = 34 * MB
OB_STRIDE = 3 * MB
HB    = 40 * MB
HB_STRIDE = 6 * MB
DBG   = 56 * MB
WS_BYTES = 268435456
```

```python
from emit import *
from layout import *

N_P0 = 544
def srd(E, base, koff, size):
    E(f"s_load_dwordx2 {s(base,2)}, s[0:1], {koff}")
    E(f"s_mov_b32 s{base+2}, {size}\ns_mov_b32 s{base+3}, 0x00020000")

def split_hi_lo(E, x, t0, t1, d):
    E(f"v_cvt_pk_bf16_f32 v{d+1}, v{x}, 0")
    E(f"v_lshlrev_b32 v{t0}, 16, v{d+1}")
    E(f"v_sub_f32 v{t1}, v{x}, v{t0}")
    E(f"v_cvt_pk_bf16_f32 v{d}, v{t0}, v{t1}")

def piece_addrs(E, ppr, stride, dst):
    magic = (65536 + ppr - 1) // ppr
    for i in range(5):
        E(f"v_add_u32 v2, {64*i}, v0")
        E(f"v_mul_u32_u24 v3, {magic}, v2\nv_lshrrev_b32 v3, 16, v3")
        E(f"v_mul_u32_u24 v4, {ppr}, v3\nv_sub_u32 v4, v2, v4\nv_lshlrev_b32 v4, 4, v4")
        E(f"v_mul_u32_u24 v3, {stride}, v3\nv_add_u32 v{dst+i}, v3, v4")

def gen_p0(E, name="p0_kernel", stamps=False, pref=0):
    kernel_header(E, name)
    if stamps: E("s_memrealtime s[40:41]")
    def end():
        if stamps:
            E("s_mov_b64 exec, -1")
            E("s_memrealtime s[44:45]")
            E.drain()
            E("s_memrealtime s[42:43]"); E.wait_smem()
            E(f"v_mov_b32 v2, s40\nv_mov_b32 v3, s42\nv_mov_b32 v4, s44\nv_mov_b32 v5, s46\nv_mov_b32 v6, 0\ns_lshl_b32 s12, s2, 4\ns_add_u32 s12, s12, {DBG + 0x80000}")
            E("s_mov_b64 exec, 1")
            E("buffer_store_dwordx4 v[2:5], v6, s[4:7], s12 offen")
        E("s_endpgm")
    def mid():
        if stamps: E("s_memrealtime s[46:47]"); E.wait_smem()
    if pref:
        E("s_getpc_b64 s[36:37]")
        E.place("P0_pc")
        E("s_add_u32 s36, s36, main_kernel-P0_pc\ns_addc_u32 s37, s37, 0")
        n = -(-pref // 128 // 64)
        E(f"s_lshr_b32 s38, s2, 3\ns_and_b32 s38, s38, 63\ns_mul_i32 s38, s38, {n}\nv_min_u32 v90, {n-1}, v0\nv_add_u32 v90, s38, v90\nv_lshlrev_b32 v90, 7, v90")
        E(f"v_min_u32 v90, {pref-4}, v90")
        E("global_load_dword v91, v90, s[36:37]", count=False)
    WS = 4; SRC = 8
    srd(E, WS, 72, WS_BYTES)
    Lq, Lgu, Lo, Ld, Lx, Lend = [E.label("P0_") for _ in range(6)]
    E("s_mov_b32 s20, 0x3f803f80")
    E(f"s_cmp_lt_u32 s2, 96\ns_cbranch_scc1 {Lq}")
    E(f"s_cmp_lt_u32 s2, 288\ns_cbranch_scc1 {Lgu}")
    E(f"s_cmp_lt_u32 s2, 320\ns_cbranch_scc1 {Lo}")
    E(f"s_cmp_lt_u32 s2, 416\ns_cbranch_scc1 {Ld}")
    E(f"s_cmp_lt_u32 s2, {N_P0}\ns_cbranch_scc1 {Lx}")
    E("s_endpgm")
    E.place(Lq); E.fresh(); E.smem_out = True
    srd(E, SRC, 8, 640 * 1920 * 2)
    E("s_lshr_b32 s12, s2, 5\ns_bfe_u32 s13, s2, 0x30002\ns_and_b32 s14, s2, 3")
    piece_addrs(E, 10, 3840, 10)
    E("s_mul_i32 s15, s12, 1280\ns_mul_i32 s16, s13, 160\ns_add_u32 s15, s15, s16")
    E(f"s_mul_i32 s16, s14, {160*3840}\ns_add_u32 s15, s15, s16")
    E.wait_smem()
    for i in range(25):
        E(f"s_mov_b32 m0, {1024*i}")
        if i and i % 5 == 0: E(f"s_add_u32 s15, s15, {32*3840}")
        E(f"buffer_load_dwordx4 v{10+i%5}, {s(SRC,4)}, s15 offen lds")
    E("v_bfe_u32 v2, v0, 2, 2\nv_bfe_u32 v3, v0, 4, 1\nv_lshrrev_b32 v4, 5, v0")
    E("v_lshl_add_u32 v2, v3, 4, v2\nv_lshl_add_u32 v2, v4, 3, v2\nv_mul_u32_u24 v2, 160, v2")
    E("v_bfe_u32 v3, v0, 1, 1\nv_mul_u32_u24 v3, 80, v3\nv_add_u32 v2, v2, v3")
    E("v_and_b32 v3, 1, v0\nv_lshl_add_u32 v16, v3, 4, v2")
    E("v_mul_u32_u24 v3, 40, v3\nv_add3_u32 v17, v2, v3, 32")
    E(f"v_bfe_u32 v2, v0, 3, 1\nv_mul_u32_u24 v2, {160*KB}, v2\nv_bfe_u32 v3, v0, 4, 1\nv_lshl_add_u32 v2, v3, 11, v2")
    E("v_lshl_add_u32 v2, v4, 9, v2\nv_and_b32 v3, 7, v0\nv_lshl_add_u32 v18, v3, 4, v2")
    E("v_bfe_u32 v2, v0, 3, 1\nv_lshlrev_b32 v2, 12, v2\nv_lshl_add_u32 v19, v3, 3, v2")
    E("s_cmp_eq_u32 s12, 0\ns_cselect_b32 s17, 10, 0\ns_cmp_eq_u32 s12, 2\ns_cselect_b32 s17, 5, s17")
    for gg in range(5):
        E(f"s_add_u32 s18, s17, {gg}\ns_lshr_b32 s19, s18, 3\ns_mul_i32 s{24+gg}, s19, {80*KB}")
        E(f"s_bfe_u32 s19, s18, 0x10002\ns_lshl_b32 s19, s19, 10\ns_add_u32 s{24+gg}, s{24+gg}, s19")
        E(f"s_and_b32 s19, s18, 3\ns_lshl_b32 s21, s19, 7\ns_add_u32 s{24+gg}, s{24+gg}, s21")
        E(f"s_lshl_b32 s19, s19, 6\ns_lshr_b32 s18, s18, 2\ns_lshl_b32 s18, s18, 10\ns_add_u32 s{30+gg}, s18, s19")
        E(f"v_mov_b32 v{20+gg}, 0")
    E(f"s_mul_i32 s18, s13, {320*KB}\ns_mul_i32 s19, s14, {20*KB}\ns_add_u32 s18, s18, s19\ns_add_u32 s18, s18, {WQ}")
    for gg in range(5): E(f"s_add_u32 s{24+gg}, s{24+gg}, s18")
    E(f"s_lshl_b32 s18, s13, 13\ns_lshl_b32 s19, s14, 8\ns_add_u32 s18, s18, s19\ns_add_u32 s18, s18, {CSQ}")
    for gg in range(5): E(f"s_add_u32 s{30+gg}, s{30+gg}, s18")
    colimm = {0: 0, 1: 8, 3: 40, 4: 48, 2: 0}
    for pr in range(5):
        E.wait(vm=5 * (pr + 1) + (E.vm_n - 25 - 5 * pr))
        if pr == 0: mid()
        for gg in range(5):
            d = 32 + 4 * (5 * (pr % 2) + gg)
            for rd in range(2):
                E(f"ds_read_b64_tr_b16 {v(d+2*rd,2)}, v{17 if gg == 2 else 16} offset:{(32*pr+4*rd)*160 + colimm[gg]}")
        for gg in range(5):
            d = 32 + 4 * (5 * (pr % 2) + gg)
            E(f"buffer_store_dwordx4 {v(d,4)}, v18, {s(WS,4)}, s{24+gg} offen")
            E(f"s_add_u32 s{24+gg}, s{24+gg}, {4*KB}")
        for e in range(4):
            for gg in range(5):
                d = 32 + 4 * (5 * (pr % 2) + gg)
                E(f"v_dot2c_f32_bf16 v{20+gg}, s20, v{d+e}")
    for gg in range(5):
        E(f"v_mov_b32 v2, v{20+gg}\nv_permlane32_swap_b32 v2, v{20+gg}\nv_add_f32 v{20+gg}, v2, v{20+gg}")
        E(f"v_mov_b32 v2, v{20+gg}\nv_permlane16_swap_b32 v2, v{20+gg}\nv_add_f32 v{20+gg}, v2, v{20+gg}")
        split_hi_lo(E, 20 + gg, 2, 3, 80 + 2 * gg)
    E("s_mov_b64 exec, 0xffff")
    for gg in range(5): E(f"buffer_store_dwordx2 {v(80+2*gg,2)}, v19, {s(WS,4)}, s{30+gg} offen")
    end()
    E.place(Lgu); E.fresh(); E.smem_out = True
    E("s_sub_u32 s12, s2, 96\ns_cmp_ge_u32 s12, 96\ns_cselect_b32 s13, 1, 0\ns_cselect_b32 s15, 96, 0\ns_sub_u32 s12, s12, s15")
    E("s_load_dwordx4 s[24:27], s[0:1], 32")
    E("s_and_b32 s14, s12, 3\ns_lshr_b32 s12, s12, 2")
    E("v_lshrrev_b32 v2, 3, v0\nv_mul_u32_u24 v2, 3072, v2\nv_and_b32 v3, 7, v0\nv_lshl_add_u32 v10, v3, 4, v2")
    E(f"s_lshl_b32 s15, s12, 7\ns_mul_i32 s16, s14, {160*3072}\ns_add_u32 s15, s15, s16")
    E.wait_smem()
    E(f"s_cmp_eq_u32 s13, 1\ns_cselect_b32 s{SRC}, s26, s24\ns_cselect_b32 s{SRC+1}, s27, s25")
    E(f"s_mov_b32 s{SRC+2}, {640*1536*2}\ns_mov_b32 s{SRC+3}, 0x00020000")
    base = E.vm_n
    for i in range(20):
        E(f"s_mov_b32 m0, {1024*i}")
        if i: E(f"s_add_u32 s15, s15, {8*3072}")
        E(f"buffer_load_dwordx4 v10, {s(SRC,4)}, s15 offen lds")
    E("v_bfe_u32 v2, v0, 2, 2\nv_lshrrev_b32 v3, 5, v0\nv_lshl_add_u32 v2, v3, 3, v2\nv_lshlrev_b32 v2, 7, v2")
    E("v_bfe_u32 v3, v0, 4, 1\nv_lshl_add_u32 v2, v3, 5, v2\nv_and_b32 v3, 1, v0\nv_lshl_add_u32 v2, v3, 4, v2")
    E("v_bfe_u32 v3, v0, 1, 1\nv_lshl_add_u32 v16, v3, 3, v2")
    E("v_lshlrev_b32 v18, 4, v0\nv_lshlrev_b32 v19, 3, v0")
    E(f"s_mul_i32 s24, s12, {160*KB}\ns_mul_i32 s16, s14, {20*KB}\ns_add_u32 s24, s24, s16\ns_lshl_b32 s16, s13, 10\ns_add_u32 s24, s24, s16")
    E(f"s_add_u32 s24, s24, {WGU}\ns_add_u32 s25, s24, {80*KB}")
    E(f"s_lshl_b32 s26, s12, 12\ns_lshl_b32 s16, s13, 10\ns_add_u32 s26, s26, s16\ns_lshl_b32 s16, s14, 8\ns_add_u32 s26, s26, s16\ns_add_u32 s26, s26, {CSG}")
    E("v_mov_b32 v20, 0\nv_mov_b32 v21, 0")
    for k2 in range(5):
        E.wait(vm=base + 4 * (k2 + 1))
        if k2 == 0: mid()
        for x in range(4):
            ks, t = 2 * k2 + (x >> 1), x & 1
            d = 32 + 4 * (4 * (k2 % 2) + x)
            for rd in range(2):
                E(f"ds_read_b64_tr_b16 {v(d+2*rd,2)}, v16 offset:{(16*ks+4*rd)*128 + 64*t}")
        for x in range(4):
            d = 32 + 4 * (4 * (k2 % 2) + x)
            E(f"buffer_store_dwordx4 {v(d,4)}, v18, {s(WS,4)}, s{24+(x&1)} offen offset:{2048*(x>>1)}")
        E(f"s_add_u32 s24, s24, 4096\ns_add_u32 s25, s25, 4096")
        for e in range(4):
            for x in range(4):
                d = 32 + 4 * (4 * (k2 % 2) + x)
                E(f"v_dot2c_f32_bf16 v{20+(x&1)}, s20, v{d+e}")
    for t in range(2):
        E(f"v_mov_b32 v2, v{20+t}\nv_permlane32_swap_b32 v2, v{20+t}\nv_add_f32 v{20+t}, v2, v{20+t}")
        split_hi_lo(E, 20 + t, 2, 3, 80 + 2 * t)
    E("s_mov_b64 exec, 0xffffffff")
    for t in range(2): E(f"buffer_store_dwordx2 {v(80+2*t,2)}, v19, {s(WS,4)}, s26 offen offset:{2048*t}")
    end()
    E.place(Lo); E.fresh(); E.smem_out = True
    srd(E, SRC, 16, 640 * 640 * 2)
    E("s_sub_u32 s12, s2, 288\ns_and_b32 s13, s12, 1\ns_lshr_b32 s12, s12, 1")
    piece_addrs(E, 40, 1280, 10)
    E(f"s_mul_i32 s15, s12, {40*1280}\ns_mul_i32 s16, s13, 640\ns_add_u32 s15, s15, s16")
    E.wait_smem()
    for i in range(25):
        E(f"s_mov_b32 m0, {1024*i}")
        if i and i % 5 == 0: E(f"s_add_u32 s15, s15, {8*1280}")
        E(f"buffer_load_dwordx4 v{10+i%5}, {s(SRC,4)}, s15 offen lds")
    E("v_bfe_u32 v2, v0, 2, 2\nv_mul_u32_u24 v2, 640, v2\nv_lshrrev_b32 v3, 4, v0\nv_mul_u32_u24 v4, 160, v3\nv_add_u32 v2, v2, v4")
    E("v_and_b32 v4, 3, v0\nv_lshl_add_u32 v16, v4, 5, v2\nv_lshl_add_u32 v17, v4, 3, v2")
    E(f"v_mul_u32_u24 v2, {100*KB}, v3\nv_and_b32 v4, 15, v0\nv_lshl_add_u32 v18, v4, 4, v2")
    E(f"s_mul_i32 s16, s13, {400*KB}\ns_lshr_b32 s17, s12, 2\ns_mul_i32 s17, s17, {25*KB}\ns_add_u32 s16, s16, s17\ns_add_u32 s16, s16, {WO}")
    E("s_and_b32 s17, s12, 3\ns_lshl_b32 s21, s17, 1")
    rows = {0: (0, 4), 1: (8, 12), 2: (20, 24), 3: (28, 32), 4: (16, 36)}
    E.drain(); mid()
    for u in range(5):
        E(f"s_add_u32 s18, s{17 if u == 4 else 21}, {(0, 1, 8, 9, 16)[u]}\ns_lshr_b32 s19, s18, 2\ns_mul_i32 s19, s19, {5*KB}\ns_and_b32 s18, s18, 3\ns_lshl_b32 s18, s18, 8")
        E("s_add_u32 s18, s18, s19\ns_add_u32 s18, s18, s16\ns_add_u32 s19, s18, 4096")
        for nt in range(5):
            d = 32 + 4 * (5 * (u % 2) + nt)
            for rd in range(2):
                E(f"ds_read_b64_tr_b16 {v(d+2*rd,2)}, v{17 if nt == 4 else 16} offset:{rows[u][rd]*640 + (128 if nt == 4 else 8*nt)}")
        for nt in range(5):
            d = 32 + 4 * (5 * (u % 2) + nt)
            E(f"buffer_store_dwordx4 {v(d,4)}, v18, {s(WS,4)}, s{19 if nt == 4 else 18} offen offset:{1024*(nt%4)}")
    end()
    E.place(Ld); E.fresh(); E.smem_out = True
    srd(E, SRC, 48, 1536 * 640 * 2)
    E("s_sub_u32 s12, s2, 320\ns_and_b32 s13, s12, 1\ns_lshr_b32 s12, s12, 1")
    piece_addrs(E, 40, 1280, 10)
    E(f"s_mul_i32 s15, s12, {32*1280}\ns_mul_i32 s16, s13, 640\ns_add_u32 s15, s15, s16")
    E.wait_smem()
    for i in range(20):
        E(f"s_mov_b32 m0, {1024*i}")
        if i and i % 5 == 0: E(f"s_add_u32 s15, s15, {8*1280}")
        E(f"buffer_load_dwordx4 v{10+i%5}, {s(SRC,4)}, s15 offen lds")
    E("v_bfe_u32 v2, v0, 2, 2\nv_lshrrev_b32 v3, 4, v0\nv_lshl_add_u32 v2, v3, 3, v2\nv_mul_u32_u24 v2, 640, v2")
    E("v_and_b32 v4, 3, v0\nv_lshl_add_u32 v16, v4, 5, v2\nv_lshl_add_u32 v17, v4, 3, v2")
    E("v_lshlrev_b32 v18, 4, v0")
    E("s_mul_i32 s14, s12, 21846\ns_lshr_b32 s14, s14, 16\ns_mul_i32 s16, s14, 3\ns_sub_u32 s16, s12, s16")
    E(f"s_lshl_b32 s16, s16, 2\ns_and_b32 s17, s14, 3\ns_add_u32 s16, s16, s17\ns_mul_i32 s16, s16, {5*KB}")
    E(f"s_lshr_b32 s17, s14, 2\ns_mul_i32 s17, s17, {60*KB}\ns_add_u32 s16, s16, s17")
    E(f"s_mul_i32 s17, s13, {960*KB}\ns_add_u32 s16, s16, s17\ns_add_u32 s18, s16, {WD}")
    E.drain(); mid()
    for nb in range(4):
        E("s_add_u32 s19, s18, 4096")
        for nt in range(5):
            d = 32 + 4 * (5 * (nb % 2) + nt)
            for rd in range(2):
                E(f"ds_read_b64_tr_b16 {v(d+2*rd,2)}, v{17 if nt == 4 else 16} offset:{4*rd*640 + 160*nb + (128 if nt == 4 else 8*nt)}")
        for nt in range(5):
            d = 32 + 4 * (5 * (nb % 2) + nt)
            E(f"buffer_store_dwordx4 {v(d,4)}, v18, {s(WS,4)}, s{19 if nt == 4 else 18} offen offset:{1024*(nt%4)}")
        E(f"s_add_u32 s18, s18, {240*KB}")
    end()
    E.place(Lx); E.fresh(); E.smem_out = True
    srd(E, SRC, 0, 2048 * 640 * 2)
    E("s_sub_u32 s12, s2, 416")
    E("v_and_b32 v2, 15, v0\nv_lshrrev_b32 v3, 4, v0\nv_mul_u32_u24 v4, 1280, v2\nv_lshl_add_u32 v10, v3, 4, v4")
    E(f"s_mul_i32 s15, s12, {16*1280}")
    E.wait_smem()
    for i in range(20):
        E(f"buffer_load_dwordx4 {v(16+4*i,4)}, v10, {s(SRC,4)}, s15 offen offset:{64*i}")
    E("v_lshlrev_b32 v4, 9, v3\nv_lshl_add_u32 v11, v2, 4, v4")
    E("v_lshlrev_b32 v4, 10, v3\nv_lshl_add_u32 v12, v2, 3, v4")
    E(f"s_lshr_b32 s16, s12, 1\ns_mul_i32 s16, s16, {40*KB}\ns_and_b32 s17, s12, 1\ns_lshl_b32 s17, s17, 8\ns_add_u32 s16, s16, s17\ns_add_u32 s16, s16, {XT}")
    E(f"s_lshr_b32 s17, s12, 3\ns_lshl_b32 s17, s17, 13\ns_and_b32 s18, s12, 7\ns_lshl_b32 s18, s18, 7\ns_add_u32 s17, s17, s18\ns_add_u32 s17, s17, {STAT}")
    E("s_add_u32 s18, s17, 4096")
    E("v_mov_b32 v4, 0\nv_mov_b32 v5, 0\nv_mov_b32 v6, 0\nv_mov_b32 v7, 0\nv_lshlrev_b32 v8, 3, v0")
    E(f"s_mul_i32 s19, s12, 1536\ns_add_u32 s19, s19, {FLAGS}")
    for q in range(3): E(f"buffer_store_dwordx2 v[6:7], v8, {s(WS,4)}, s19 offen offset:{512*q}")
    E(f"buffer_store_dwordx2 v[6:7], v12, {s(WS,4)}, s18 offen")
    for i in range(20):
        E(f"buffer_store_dwordx4 {v(16+4*i,4)}, v11, {s(WS,4)}, s16 offen offset:{2048*(i%2)}")
        if i == 0: mid()
        if i % 2: E("s_add_u32 s16, s16, 4096")
        for e in range(4):
            E(f"v_dot2c_f32_bf16 v4, s20, v{16+4*i+e}\nv_dot2c_f32_bf16 v5, v{16+4*i+e}, v{16+4*i+e}")
    E(f"buffer_store_dwordx2 v[4:5], v12, {s(WS,4)}, s17 offen")
    end()
    return dict(name=name, grid=N_P0, block=64, lds=25600, vgpr=96, agpr=0, sgpr=48)

if __name__ == "__main__":
    E = Emit()
    E.raw("; @launch kernel=p0_kernel grid=(544,1,1) block=(64,1,1) lds=25600")
    E.raw('.amdgcn_target "amdgcn-amd-amdhsa--gfx950"')
    d = gen_p0(E)
    kernel_desc(E, d["name"], d["vgpr"], d["agpr"], d["sgpr"])
    open("p0.s", "w").write(E.text())
    print(E.ninst, E.nnop, E.stats)
```

```python
import sys, math, struct
from emit import *
from layout import *
from p0 import gen_p0, N_P0

def f2u(x): return hex(struct.unpack("<I", struct.pack("<f", x))[0])

WS = 4; OUT = 8; XIN = 12
sR, sJ, sW, sTH, sNB = 16, 17, 18, 19, 20
sWQ, sWGU, sWO, sWD, sLW = 21, 22, 23, 24, 25
sXB, sKVme, sOme, sHme = 26, 27, 28, 29
sT0 = 30
sMASK = 32
sRET = 64
sT16 = 66; sT16H = 70
sA, sB, sC, sD, sE_, sF = 74, 75, 76, 77, 78, 79
sFL = 80
sHAL = 89
sKP, sKC, sKT = 91, 92, 3
sRM = 93
sTS = 94
sTP, sTC, sWP, sWC = 98, 99, 100, 101
sP = 2
vL16, vL16b, vL16c = 1, 2, 3
vU = 4; vPOS = 5; vST = 6; vCS = 7; vSIG = 8; vONE = 9
vRW = 10
vXW = 14; vXW5 = 15; vO4 = 16; vSW = 17; vRSTD = 18; vT = 19
vRES = 20
vNM = 40
vC1, vC2, vIV = 44, 45, 46
vKR = 47
vRM, vRM5, vTS, vTS2 = 250, 251, 252, 253
SLOT = 5248; ONES = 12 * SLOT; EPS = 1e-5
AG = 256

class Pool:
    def __init__(self, quads=()): self.free = list(quads)
    def get(self): return self.free.pop(0)
    def put(self, q): self.free.append(q)
    def add(self, qs): self.free += list(qs)

def spread(ev, groups, start, step):
    for i, g in enumerate(groups): ev.setdefault(int(start + i * step), []).append(g)

class Gen:
    def __init__(self, stop=99, stamps=False, mapping="mix", opts=None):
        self.E = Emit(); self.stop = stop; self.stamps = stamps; self.mapping = mapping
        self.nst = 0; self.stnames = []; self.tail = []; self.o = opts or {}
    def do(self, g):
        if callable(g): return g()
        return self.E(g)
    def stamp(self, name):
        if not self.stamps: return
        E = self.E
        E(f"s_memrealtime {s(sTS,2)}\ns_memtime {s(sTS+2,2)}"); E.wait_smem()
        E(f"v_writelane_b32 v{vTS}, s{sTS}, {self.nst}\nv_writelane_b32 v{vTS2}, s{sTS+2}, {self.nst}")
        self.nst += 1; self.stnames.append(name)
    def dma4(self, sbase, goff, ldsoff, rec=None):
        g = [f"s_add_u32 m0, s{sLW}, {ldsoff}\ns_add_u32 s{sT0}, s{sbase}, {goff}\nbuffer_load_dwordx4 v{vL16}, {s(WS,4)}, s{sT0} offen lds"]
        for i in range(1, 4): g.append(f"buffer_load_dwordx4 v{vL16}, {s(WS,4)}, s{sT0} offen offset:{1024*i} lds")
        if rec is not None:
            last = g[3]
            g[3] = lambda: rec.append(self.E(last))
        return g
    def wread(self, dst, ldsaddr):
        return f"ds_read_b128 {R(dst,4)}, v{vL16+(ldsaddr >> 16)} offset:{ldsaddr & 0xffff}"
    def signal(self, sreg, imm, tok):
        def fn():
            self.E.wait(vm=tok() if callable(tok) else tok)
            self.E(f"buffer_atomic_add v{vONE}, v{vSIG}, {s(WS,4)}, s{sreg} offen offset:{imm} sc1")
        return fn
    def poll_issue(self, sreg, imm):
        return f"s_load_dword s{sP}, {s(WS,2)}, s{sreg} offset:{imm} glc"
    def poll_check(self, sreg, imm, thr, slp=4):
        def fn():
            E = self.E
            Ls, Lb = E.label("SP"), E.label("BK")
            E.wait_smem()
            E(f"s_cmp_ge_u32 s{sP}, {thr}\ns_cbranch_scc0 {Ls}")
            E.place(Lb)
            self.tail.append(f"{Ls}:\ns_mov_b32 s{sF}, 0x200000\n{Ls}_l:\ns_sleep {slp}\ns_load_dword s{sP}, {s(WS,2)}, s{sreg} offset:{imm} glc\n"
                             f"s_waitcnt lgkmcnt(0)\ns_cmp_ge_u32 s{sP}, {thr}\ns_cbranch_scc1 {Lb}\ns_sub_u32 s{sF}, s{sF}, 1\ns_cmp_lg_u32 s{sF}, 0\n"
                             f"s_cbranch_scc1 {Ls}_l\ns_branch {Lb}")
        return fn
    def poll_block(self, sreg, imm, thr):
        self.E(self.poll_issue(sreg, imm)); self.poll_check(sreg, imm, thr)()
    def T(self, kind, L): return 1024 * kind + 4 * L
    def prologue(self):
        E = self.E
        kernel_header(E, "main_kernel")
        Lgo = E.label("GO")
        E(f"s_cmp_lt_u32 s2, 256\ns_cbranch_scc1 {Lgo}\ns_endpgm")
        E.place(Lgo)
        E(f"s_load_dwordx2 {s(WS,2)}, s[0:1], 72\ns_load_dwordx2 {s(OUT,2)}, s[0:1], 56\ns_load_dwordx2 {s(XIN,2)}, s[0:1], 0")
        E(f"s_mov_b32 s{WS+2}, {WS_BYTES}\ns_mov_b32 s{WS+3}, 0x00020000")
        for b in (OUT, XIN): E(f"s_mov_b32 s{b+2}, {2048*640*2}\ns_mov_b32 s{b+3}, 0x00020000")
        E(f"v_lshrrev_b32 v{vT}, 6, v0\nv_and_b32 v0, 63, v0\nv_readfirstlane_b32 s{sW}, v{vT}")
        E(f"s_and_b32 s{sA}, s2, 7\ns_lshr_b32 s{sB}, s2, 3")
        if self.mapping == "mix":
            E(f"s_lshr_b32 s{sC}, s{sA}, 1\ns_lshl_b32 s{sC}, s{sC}, 2\ns_lshr_b32 s{sR}, s{sB}, 3\ns_add_u32 s{sR}, s{sR}, s{sC}")
            E(f"s_and_b32 s{sC}, s{sA}, 1\ns_lshl_b32 s{sC}, s{sC}, 3\ns_and_b32 s{sJ}, s{sB}, 7\ns_add_u32 s{sJ}, s{sJ}, s{sC}")
        else:
            E(f"s_lshr_b32 s{sR}, s{sB}, 4\ns_lshl_b32 s{sC}, s{sA}, 1\ns_add_u32 s{sR}, s{sR}, s{sC}\ns_and_b32 s{sJ}, s{sB}, 15")
        E(f"s_and_b32 s{sTH}, s{sJ}, 1\ns_lshr_b32 s{sNB}, s{sJ}, 1\ns_lshl_b32 s{sLW}, s{sW}, 12")
        E(f"v_lshlrev_b32 v{vL16}, 4, v0")
        E(f"s_mul_i32 s{sWQ}, s{sJ}, {160*KB}\ns_add_u32 s{sWQ}, s{sWQ}, s{sLW}\ns_add_u32 s{sWQ}, s{sWQ}, {WQ}")
        E(f"s_lshl_b32 s{sA}, s{sR}, 2\ns_add_u32 s{sA}, s{sA}, s{sW}")
        E(f"s_mul_i32 s{sXB}, s{sA}, {40*KB}")
        E.wait_smem()
    def prologue2(self):
        E = self.E
        E(f"s_mul_i32 s{sWGU}, s{sJ}, {240*KB}\ns_add_u32 s{sWGU}, s{sWGU}, s{sLW}\ns_add_u32 s{sWGU}, s{sWGU}, {WGU}")
        E(f"s_mul_i32 s{sWO}, s{sNB}, {100*KB}\ns_mul_i32 s{sA}, s{sW}, {25*KB}\ns_add_u32 s{sWO}, s{sWO}, s{sA}\ns_add_u32 s{sWO}, s{sWO}, {WO}")
        E(f"s_mul_i32 s{sWD}, s{sNB}, {240*KB}\ns_mul_i32 s{sA}, s{sW}, {60*KB}\ns_add_u32 s{sWD}, s{sWD}, s{sA}\ns_add_u32 s{sWD}, s{sWD}, {WD}")
        E(f"s_lshl_b32 s{sA}, s{sR}, 2\ns_add_u32 s{sA}, s{sA}, s{sW}")
        E(f"s_lshl_b32 s{sB}, s{sJ}, 6\ns_add_u32 s{sC}, s{sB}, s{sA}\ns_mul_i32 s{sKVme}, s{sC}, {5*KB}")
        E(f"s_lshr_b32 s{sKP}, s{sC}, 1\ns_lshl_b32 s{sKP}, s{sKP}, 7\ns_add_u32 s{sKP}, s{sKP}, {FLAGS}")
        E(f"s_mul_i32 s{sHme}, s{sA}, {96*KB}\ns_mul_i32 s{sC}, s{sJ}, {6*KB}\ns_add_u32 s{sHme}, s{sHme}, s{sC}")
        E(f"s_lshr_b32 s{sC}, s{sJ}, 2\ns_mul_i32 s{sOme}, s{sC}, {10*KB}\ns_add_u32 s{sOme}, s{sOme}, s{sXB}")
        for i in range(9):
            E(f"s_cmp_lt_u32 s{sA}, {8-i}\ns_cselect_b32 s{sFL+i}, 0x3f803f80, 0x3f800000" if False else
              f"s_cmp_lt_u32 s{sA}, {8-i}\ns_cselect_b32 s{sFL+i}, 0x3f80, 0\ns_or_b32 s{sFL+i}, s{sFL+i}, 1.0")
        E(f"s_lshl_b32 s{sC}, s{sR}, 2\ns_lshl_b32 s{sD}, s{sW}, 1\ns_add_u32 s{sC}, s{sC}, s{sD}")
        E(f"s_add_u32 s{sD}, s{sC}, s{sB}\ns_sub_u32 s{sD}, s{sD}, 8\ns_mul_i32 s{sHAL}, s{sD}, {5*KB}\ns_add_u32 s{sHAL}, s{sHAL}, {KV}")
        E(f"s_lshl_b32 s{sKC}, s{sD}, 6\ns_add_u32 s{sKC}, s{sKC}, {FLAGS}")
        E(f"s_cmp_lt_u32 s{sC}, 8\ns_cselect_b32 s{sHAL}, {WQ}, s{sHAL}\ns_cselect_b32 s{sHAL+1}, 0, {KV_STRIDE}")
        E(f"s_cselect_b32 s{sKC}, s{sKP}, s{sKC}\ns_cselect_b32 s{sKT}, 0, 2")
        E(f"s_lshl_b32 s{sA}, s{sR}, 13\ns_add_u32 s{sA}, s{sA}, {GCNT}")
        E(f"s_lshr_b32 s{sB}, s{sW}, 1\ns_lshl_b32 s{sC}, s{sB}, 2\ns_lshr_b32 s{sD}, s{sJ}, 2\ns_add_u32 s{sC}, s{sC}, s{sD}\ns_lshl_b32 s{sC}, s{sC}, 7\ns_add_u32 s{sTP}, s{sA}, s{sC}")
        E(f"s_lshl_b32 s{sC}, s{sTH}, 2\ns_add_u32 s{sC}, s{sC}, s{sW}\ns_lshl_b32 s{sC}, s{sC}, 7\ns_add_u32 s{sTC}, s{sA}, s{sC}")
        E(f"s_add_u32 s{sA}, s{sA}, {40*128}\ns_lshl_b32 s{sC}, s{sTH}, 1\ns_add_u32 s{sC}, s{sC}, s{sB}\ns_lshl_b32 s{sC}, s{sC}, 7\ns_add_u32 s{sWP}, s{sA}, s{sC}")
        E(f"s_lshl_b32 s{sC}, s{sW}, 7\ns_add_u32 s{sWC}, s{sA}, s{sC}")
        for i in range(4):
            E(f"s_add_u32 s{sA}, s{sW}, {1+i}\ns_and_b32 s{sA}, s{sA}, 3\ns_lshr_b32 s{sB}, s{sA}, 1\ns_and_b32 s{sC}, s{sA}, 1\ns_lshl_b32 s{sC}, s{sC}, 8")
            E(f"s_lshl_b32 s{sD}, s{sR}, 1\ns_add_u32 s{sD}, s{sD}, s{sTH}\ns_lshl_b32 s{sD}, s{sD}, 1\ns_add_u32 s{sB}, s{sB}, s{sD}")
            E(f"s_mul_i32 s{sT16+i}, s{sB}, {40*KB}\ns_add_u32 s{sT16+i}, s{sT16+i}, s{sC}")
            E(f"s_mul_i32 s{sT16H+i}, s{sB}, {96*KB}\ns_add_u32 s{sT16H+i}, s{sT16H+i}, s{sC}")
            E(f"s_mul_i32 s{sB}, s{sW}, {24*KB}\ns_add_u32 s{sT16H+i}, s{sT16H+i}, s{sB}")
            if i < 3:
                E(f"s_mul_i32 s{sA}, s{sA}, {15*KB}\ns_add_u32 s{sA}, s{sA}, {5*KB*i}\nv_add_u32 v{vRW+i}, s{sA}, v{vL16}")
        E(f"s_mul_i32 s{sA}, s{sW}, {15*KB}\nv_add_u32 v{vRW+3}, s{sA}, v{vL16}")
        for i in range(16):
            m = 0
            for l in range(64):
                if (i & 3) + 8 * (i >> 2) + 4 * (l >> 5) <= (l & 31): m |= 1 << l
            E(f"s_mov_b32 s{sMASK+2*i}, {hex(m & 0xffffffff)}\ns_mov_b32 s{sMASK+2*i+1}, {hex(m >> 32)}")
        t0, t1, t2 = 48, 49, 50
        E(f"v_add_u32 v{vL16b}, 0x10000, v{vL16}\nv_add_u32 v{vL16c}, 0x20000, v{vL16}")
        E(f"v_lshrrev_b32 v{t0}, 4, v0\nv_and_b32 v{t1}, 15, v0")
        E(f"v_lshlrev_b32 v{t2}, 9, v{t0}\nv_lshl_add_u32 v{vU}, v{t1}, 4, v{t2}")
        E(f"v_lshlrev_b32 v{t2}, 10, v{t0}\nv_lshl_add_u32 v{vXW}, v{t1}, 4, v{t2}")
        E(f"v_lshrrev_b32 v{t2}, 1, v{t0}\nv_lshlrev_b32 v{t2}, 9, v{t2}\nv_lshl_add_u32 v{vXW5}, v{t1}, 4, v{t2}")
        E(f"v_and_b32 v{t2}, 1, v{t0}\nv_lshl_add_u32 v{vXW5}, v{t2}, 3, v{vXW5}")
        E(f"v_lshlrev_b32 v{vSW}, 3, v{t1}\nv_lshl_add_u32 v{vSW}, v{t0}, 28, v{vSW}")
        E(f"v_mul_u32_u24 v{t2}, 1280, v{t1}\nv_lshl_add_u32 v{vRM}, v{t0}, 5, v{t2}\nv_lshl_add_u32 v{vRM5}, v{t0}, 3, v{t2}")
        E(f"s_lshl_b32 s{sA}, s{sR}, 1\ns_add_u32 s{sA}, s{sA}, s{sTH}\ns_lshl_b32 s{sA}, s{sA}, 2\ns_add_u32 s{sA}, s{sA}, s{sW}")
        E(f"s_mul_i32 s{sA}, s{sA}, {16*1280}\ns_mul_i32 s{sB}, s{sNB}, 160\ns_add_u32 s{sRM}, s{sA}, s{sB}")
        E(f"v_lshrrev_b32 v{t0}, 5, v0\nv_and_b32 v{t1}, 31, v0")
        E(f"v_lshlrev_b32 v{t2}, 2, v{t0}\nv_xor_b32 v{t2}, v{t2}, v{t1}\nv_lshlrev_b32 v{t2}, 4, v{t2}\nv_lshl_add_u32 v{vPOS}, v{t0}, 9, v{t2}")
        E(f"v_lshlrev_b32 v{t2}, 3, v{t1}\nv_lshl_add_u32 v{vCS}, v{t0}, 9, v{t2}")
        E(f"s_lshl_b32 s{sA}, s{sW}, 8\nv_lshl_add_u32 v{vST}, v{t0}, 12, v{t2}\nv_add_u32 v{vST}, s{sA}, v{vST}")
        E(f"v_lshlrev_b32 v{t2}, 4, v{t1}\nv_lshl_add_u32 v{vO4}, v{t0}, 3, v{t2}")
        E(f"s_mul_i32 s{sA}, s{sW}, {SLOT}\nv_add_u32 v{vKR}, s{sA}, v{vPOS}")
        E(f"v_min_u32 v{vSIG}, 1, v0\nv_lshlrev_b32 v{vSIG}, 28, v{vSIG}\nv_mov_b32 v{vONE}, 1")
        if self.stamps:
            E(f"v_mov_b32 v{vTS}, 0\nv_mov_b32 v{vTS2}, 0\nv_mov_b32 v254, s2")
    def load_residual(self, t):
        E = self.E
        E(f"buffer_load_dwordx4 {v(t,4)}, v{vRM}, {s(XIN,4)}, s{sRM} offen")
        E(f"buffer_load_dwordx4 {v(t+4,4)}, v{vRM}, {s(XIN,4)}, s{sRM} offen offset:16")
        E(f"buffer_load_dwordx2 {v(t+8,2)}, v{vRM5}, {s(XIN,4)}, s{sRM} offen offset:128")
        return sum([[f"v_lshlrev_b32 v{vRES+2*i}, 16, v{t+i}", f"v_and_b32 v{vRES+2*i+1}, 0xffff0000, v{t+i}"] for i in range(10)], [])
    def stat_loads(self, idx, t):
        E = self.E
        E(f"s_lshl_b32 s{sA}, s{sR}, 13\ns_add_u32 s{sA}, s{sA}, {STAT + idx*128*KB}")
        for q in range(4): E(f"buffer_load_dwordx2 {v(t+2*q,2)}, v{vST}, {s(WS,4)}, s{sA} offen offset:{1024*q} sc1")
    def stat_ops(self, t):
        return [f"v_add_f32 v{t}, v{t}, v{t+2}", f"v_add_f32 v{t+1}, v{t+1}, v{t+3}", f"v_add_f32 v{t+4}, v{t+4}, v{t+6}", f"v_add_f32 v{t+5}, v{t+5}, v{t+7}",
              f"v_add_f32 v{t}, v{t}, v{t+4}", f"v_add_f32 v{t+1}, v{t+1}, v{t+5}", f"v_mov_b32 v{t+2}, v{t}", f"v_mov_b32 v{t+3}, v{t+1}",
              f"v_permlane32_swap_b32 v{t+2}, v{t}", f"v_permlane32_swap_b32 v{t+3}, v{t+1}",
              f"v_add_f32 v{t}, v{t}, v{t+2}", f"v_add_f32 v{t+1}, v{t+1}, v{t+3}",
              f"v_mul_f32 v{t}, {f2u(-1/640)}, v{t}", f"v_mul_f32 v{t+1}, {f2u(1/640)}, v{t+1}",
              f"v_fma_f32 v{t+1}, -v{t}, v{t}, v{t+1}", f"v_cvt_pk_bf16_f32 v{vNM}, v{t}, v{t}", f"v_max_f32 v{t+1}, 0, v{t+1}",
              f"v_and_b32 v{t+2}, 0xffff0000, v{vNM}", f"v_add_f32 v{vIV}, {f2u(EPS)}, v{t+1}", f"v_sub_f32 v{t+2}, v{t}, v{t+2}",
              f"v_rsq_f32 v{vRSTD}, v{vIV}", f"v_cvt_pk_bf16_f32 v{vNM+1}, v{t+2}, 0", f"v_mov_b32 v{vNM+2}, v{vNM}", f"v_mov_b32 v{vNM+3}, v{vNM+1}"]
    def cs_loads(self, base, stride, ntile, dst):
        g = []
        for t in range(ntile):
            for q in range(2):
                p = ""
                if t == 0 and q == 0: p = f"s_mul_i32 s{sD}, s{sJ}, {stride}\ns_add_u32 s{sD}, s{sD}, {base}\n"
                if t == 4 and q == 0: p = f"s_add_u32 s{sD}, s{sD}, 4096\n"
                g.append(p + f"buffer_load_dwordx2 {R(dst+4*t+2*q,2)}, v{vCS}, {s(WS,4)}, s{sD} offen offset:{1024*(t%4)+256*q}")
        return g
    def xloads(self, base):
        g = []
        for ks in range(40):
            t = f"s_add_u32 s{sE_}, s{sXB}, {base + 1024*ks}\n" if ks % 4 == 0 else ""
            g.append(t + f"buffer_load_dwordx4 {a(4*ks,4)}, v{vL16}, {s(WS,4)}, s{sE_} offen offset:{1024*(ks%4)} sc1")
        return g
    def wstream(self, items, pos0, allw, ring, ev=None, valu=None, pre=None, nvalu=4):
        E = self.E; LA = 6
        ev = ev or {}; valu = list(valu or []); pre = pre or {}
        f = pos0
        for sl, it in enumerate(items):
            for g in pre.get(sl, []): self.do(g)
            if it[0] == "cs":
                E(f"v_mfma_f32_32x32x16_bf16 {v(it[1],16)}, {R(it[2],4)}, {v(vNM,4)}, {v(it[1],16)}")
            else:
                acc, ks, first = it
                if f % 2 == 0: E.need(regs(R(ring + 4 * (f % LA), 4)) | regs(R(ring + 4 * ((f + 1) % LA), 4)) | regs(a(4 * ks, 4)))
                E(f"v_mfma_f32_32x32x16_bf16 {v(acc,16)}, {R(ring+4*(f%LA),4)}, {a(4*ks,4)}, {'0' if first else v(acc,16)}")
                if f + LA < len(allw): E(self.wread(ring + 4 * (f % LA), allw[f + LA]))
                f += 1
            for g in ev.get(sl, []): self.do(g)
            b = nvalu
            while valu and b > 0 and valu[0][0] <= sl:
                x = valu.pop(0)[1]
                if callable(x): x(); continue
                E(x); b -= 2 if x.startswith(TRANS) else 1
        assert max(list(ev) + list(pre) + [0]) < len(items), (max(list(ev) + list(pre)), len(items))
        for _, x in valu: self.do(x)
    @staticmethod
    def pair_items(acc, cs):
        return [(acc[sl & 1], sl >> 1, sl < 2) for sl in range(80)] + [("cs", acc[0], cs), ("cs", acc[1], cs + 4)]
    def p1(self, L):
        E = self.E; o = self.o
        ACC = [48, 64, 80, 96]; RING = 112; CS = 136
        KA, KB_, KV1, VA, VB = 152, 156, 160, 164, 168
        QA0, QB0, QA1, QB1 = 172, 176, 180, 184
        self.Q = (QA0, QB0, QA1, QB1)
        MK = self.MK = 188; VAD = self.VAD = [196, 205]; K1 = self.K1 = AG
        self.WOF = [AG + 160 + 4 * f for f in range(24)] + [244]
        xl = self.xloads(XT + 2 * L * XT_STRIDE)
        allw = [1024 * f for f in range(80)] + [1024 * (80 + 2 * k) for k in range(40)] + [1024 * (81 + 2 * k) for k in range(40)]
        tok = []
        if L == 0:
            dm = [self.dma4(sWQ, 16 * KB * c, 16 * KB * c, tok) for c in range(10)]
            for c in range(5):
                for g in dm[c]: self.do(g)
                for g in xl[8 * c: 8 * c + 8] if c < 2 else []: E(g)
                if c == 0:
                    self.prologue2(); self.stamp("start")
                    self.stat_loads(0, 152)
                    for g in self.cs_loads(CSQ, 4 * KB, 4, CS): E(g)
            resops = self.load_residual(160)
            late = sum(dm[5:], [])
        else:
            self.poll_block(sWC, 512 + 4 * (L - 1), 16)
            self.stamp("L1 P1 synced")
            self.stat_loads(2, 152)
            for g in xl[:16]: E(g)
            resops = []; late = self.wq_late; tok = self.wq_tok
        def ready(c): return lambda: (E.wait(vm=tok[c]), E("s_barrier"))
        if L: E.need(regs(a(0, 4)))
        ready(0)()
        for f in range(6): E(self.wread(RING + 4 * f, allw[f]))
        ev = {}; pre = {}
        spread(ev, xl[16:], 0, 2)
        if L == 0:
            for c in range(1, 5): pre[16 * c - 6] = [ready(c)]
            spread(ev, late, 1, 2)
        else:
            spread(ev, late, 50, 1.5)
        pre[74] = [ready(5)]
        self.wstream(self.pair_items(ACC[:2], CS), 0, allw, RING, ev, [(2, x) for x in self.stat_ops(152) + resops], pre)
        self.stamp(f"L{L} P1 passA")
        def epi(G0, G1, dst, sc, at):
            r = []
            for G in range(G0, G1):
                b = ACC[0] + 4 * G
                r += [(at, f"v_mul_f32 v{b+i}, v{sc[G-G0]}, v{b+i}") for i in range(4)]
                r += [(at, f"v_cvt_pk_bf16_f32 v{dst[G-G0]+i}, v{b+2*i}, v{b+2*i+1}") for i in range(2)]
            return r
        kvg = KV + L * KV_STRIDE
        st = {}
        vKW = 214; vQS = 215
        def putA():
            E(f"s_add_u32 s{sA}, s{sKVme}, {kvg}\ns_add_u32 s{sB}, s{sA}, 4096")
            for reg, off in ((KA, 0), (KB_, 1024), (VA, 2048)):
                E(f"buffer_store_dwordx4 {v(reg,4)}, v{vPOS}, {s(WS,4)}, s{sA} offen offset:{off} sc1")
            st["A"] = E(f"buffer_store_dwordx4 {v(KV1,4)}, v{vPOS}, {s(WS,4)}, s{sB} offen sc1")
        ldsA = [f"ds_write_b128 v{vKW}, {v(reg,4)} offset:{off}" for reg, off in ((KA, 0), (KB_, 1024), (VA, 2048), (KV1, 4096 + 128))]
        def putB():
            E(f"s_add_u32 s{sA}, s{sKVme}, {kvg}")
            st["B"] = E(f"buffer_store_dwordx4 {v(VB,4)}, v{vPOS}, {s(WS,4)}, s{sA} offen offset:3072 sc1")
            E(f"ds_write_b128 v{vKW}, {v(VB,4)} offset:3072")
        qs = 20 ** -0.5 * math.log2(math.e)
        va = epi(0, 8, [KA, KA + 2, KV1, KB_, KB_ + 2, VA, VA + 2, KV1 + 2], [vRSTD] * 8, 1) + [(1, putA)]
        va += [(1, f"v_add_u32 v{vKW}, {8*SLOT}, v{vKR}"), (1, f"v_mul_f32 v{vQS}, {f2u(qs)}, v{vRSTD}")]
        t0, t1, t2 = 216, 217, 218
        cst = []
        for i in range(8):
            cst += [f"v_cndmask_b32 v{t0}, 0, -1, {s(sMASK+4*i,2)}", f"v_cndmask_b32 v{t1}, 0, -1, {s(sMASK+4*i+2,2)}",
                    f"v_and_b32 v{t0}, 0xffff, v{t0}", f"v_lshl_or_b32 v{MK+i}, v{t1}, 16, v{t0}"]
        cst += [f"v_lshrrev_b32 v{t0}, 5, v0", f"v_bfe_u32 v{t1}, v0, 2, 2", f"v_lshl_add_u32 v{t0}, v{t0}, 2, v{t1}",
                f"v_bfe_u32 v{t1}, v0, 4, 1", f"v_and_b32 v{t2}, 3, v0", f"v_lshl_add_u32 v{t1}, v{t1}, 2, v{t2}",
                f"v_and_b32 v{t2}, 1, v0", f"v_lshlrev_b32 v219, 2, v{t2}", f"v_xor_b32 v219, v219, v{t0}", f"v_lshlrev_b32 v219, 4, v219",
                f"v_lshl_add_u32 v219, v{t2}, 9, v219", f"v_bfe_u32 v220, v0, 1, 1", f"v_lshl_add_u32 v220, v220, 3, v219", f"v_add_u32 v221, {4096+128+8}, v219",
                f"v_mov_b32 v224, 128", f"v_mov_b32 v225, {SLOT}", f"v_subrev_u32 v226, v{vPOS}, v{vKR}"]
        cst += [f"s_lshl_b32 s{sC}, s{sW}, 7\ns_add_u32 s{sC}, s{sC}, {ONES+128}\nv_mov_b32 v227, s{sC}"]
        for hd in range(2):
            cst += [f"v_add_u32 v222, {2048+1024*hd}, v220", f"v_cmp_gt_u32 vcc, 4, v{t1}\nv_cndmask_b32 v222, v221, v222, vcc", f"v_add_u32 v222, v226, v222",
                    f"v_cmp_gt_u32 {s(sC,2)}, 4, v{t1}\nv_cmp_eq_u32 vcc, {4+hd}, v{t1}\ns_or_b64 vcc, vcc, {s(sC,2)}\nv_cndmask_b32 v{VAD[hd]}, v227, v222, vcc\nv_cndmask_b32 v223, v224, v225, vcc"]
            cst += [f"v_add_u32 v{VAD[hd]+i}, v{VAD[hd]+i-1}, v223" for i in range(1, 9)]
        cst += [f"v_mov_b32 v{228+i}, 0x3f803f80" for i in range(4)]
        cst += [f"ds_write_b128 v{vL16}, v[228:231] offset:{ONES}", f"ds_write_b128 v{vL16}, v[228:231] offset:{ONES+1024}"]
        va += [(1, x) for x in cst]
        va += epi(8, 10, [VB, VB + 2], [vRSTD] * 2, 43) + [(43, putB)] + epi(10, 12, [QA0, QA0 + 2], [vQS] * 2, 43)
        for i in range(9):
            va += [(52, f"v_accvgpr_write_b32 {R(K1+4*i+2)}, s{sFL+i}"), (52, f"v_accvgpr_write_b32 {R(K1+4*i+3)}, 0")]
        va += [(52, f"v_mov_b32 v{q+3}, 0") for q in (QA1, QB1)]
        items = [(ACC[2], k, k == 0) for k in range(40)] + [("cs", ACC[2], CS + 8)] + [(ACC[3], k, k == 0) for k in range(40)] + [("cs", ACC[3], CS + 12)]
        ev = {}; pre = {0: ["s_barrier"]}
        for c in range(6, 10): pre.setdefault(8 * (c - 5) - 6, []).append(ready(c))
        spread(ev, ldsA, 14, 1)
        wo = []
        for f in range(25):
            t = f"s_add_u32 s{sT0+1}, s{sWO}, {1024*f}\n" if f % 4 == 0 else ""
            wo.append(t + f"buffer_load_dwordx4 {R(self.WOF[f],4)}, v{vL16}, {s(WS,4)}, s{sT0+1} offen offset:{1024*(f%4)}")
        if L == 0 and o.get("touch", 1):
            ev.setdefault(0, []).append(f"v_lshlrev_b32 v233, 20, v0\nbuffer_load_dword v232, v233, {s(WS,4)}, 0 offen sc1")
        spread(ev, wo, 13, 2)
        sa, pa, ca, sb = o.get("sa", 36), o.get("pa", 60), o.get("ca", 68), o.get("sb", 76)
        ev.setdefault(sa, []).append(self.signal(sKP, 8 * L, lambda: st["A"]))
        ev.setdefault(pa, []).append(self.poll_issue(sKC, 8 * L))
        pre.setdefault(ca, []).append(self.poll_check(sKC, 8 * L, f"s{sKT}"))
        hal = []; self.haltok = []
        for t in range(2):
            p = f"s_mul_i32 s{sD}, s{sW}, {2*SLOT}\n" + (f"s_add_u32 s{sHAL}, s{sHAL}, s{sHAL+1}\n" if L else "") if t == 0 else ""
            hal.append(p + f"s_add_u32 m0, s{sD}, {t*SLOT}\ns_add_u32 s{sE_}, s{sHAL}, {t*5*KB}\nbuffer_load_dwordx4 v{vL16}, {s(WS,4)}, s{sE_} offen sc1 lds")
            hal += [f"buffer_load_dwordx4 v{vL16}, {s(WS,4)}, s{sE_} offen offset:{1024*i} sc1 lds" for i in (1, 2)]
            hal.append(f"s_add_u32 m0, s{sD}, {t*SLOT+4096+128}\ns_add_u32 s{sE_}, s{sE_}, 4096\nbuffer_load_dwordx4 v{vL16}, {s(WS,4)}, s{sE_} offen sc1 lds")
        lasth = hal[-1]; hal[-1] = lambda: self.haltok.append(E(lasth))
        spread(ev, hal, ca, 1)
        ev.setdefault(sb, []).append(self.signal(sKP, 8 * L + 4, lambda: st["B"]))
        self.wstream(items, 80, allw, RING, ev, va, pre, nvalu=o.get("nvB", 5))
        self.stamp(f"L{L} P1 passB")
        for _, x in epi(12, 15, [QA1, QB0, QB0 + 2], [vQS] * 3, 0): E(x)
        E(f"s_mov_b32 vcc_lo, -1\ns_mov_b32 vcc_hi, 0")
        for i in range(2):
            E(f"v_cndmask_b32 v{QB1+i}, v{QA1+i}, v{QA1+3}, vcc")
            E(f"v_cndmask_b32 v{QA1+i}, 0, v{QA1+i}, vcc")
        for k in range(6):
            for hd, (q0, q1, k0) in enumerate(((QA0, QA1, KA), (QB0, QB1, KB_))):
                qa, ka = (q0 + k, k0 + k) if k < 4 else (q1 + k - 4, KV1 + k - 4)
                E(f"v_dot2_f32_bf16 v{216+hd}, v{qa}, v{ka}, {'0' if k == 0 else v(216+hd)}")
        E(f"s_mov_b32 s{sA}, {f2u(-1e38)}")
        for hd, q1 in enumerate((QA1, QB1)): E(f"v_cvt_pk_bf16_f32 v{q1+2}, s{sA}, -v{216+hd}")
    def att_defs(self):
        QA0, QB0, QA1, QB1 = self.Q
        d = self
        d.kread = lambda hd, i, dst: f"ds_read_b128 {R(dst,4)}, v{vKR} offset:{i*SLOT + 1024*hd}"
        d.k1read = lambda i: f"ds_read_b64 {R(self.K1+4*i,2)}, v{vKR} offset:{i*SLOT + 4096 + 128}"
        def smf(hd, i, dst, k0, C="0"):
            q0, q1 = (QA0, QA1) if hd == 0 else (QB0, QB1)
            return [f"v_mfma_f32_32x32x16_bf16 {v(dst,16)}, {R(k0,4)}, {v(q0,4)}, {C}",
                    f"v_mfma_f32_32x32x16_bf16 {v(dst,16)}, {R(self.K1+4*i,4)}, {v(q1,4)}, {v(dst,16)}"]
        d.smf = smf
        d.vreads = lambda hd, i, vf: [f"ds_read_b64_tr_b16 {R(vf+2*k,2)}, v{self.VAD[hd]+i} offset:{128*k}" for k in range(4)]
        def expops(src, p):
            r = []
            for k in range(8):
                r += [f"v_exp_f32 v{src+2*k}, v{src+2*k}", f"v_exp_f32 v{src+2*k+1}, v{src+2*k+1}"]
                if k: r.append(f"v_cvt_pk_bf16_f32 v{p+k-1}, v{src+2*k-2}, v{src+2*k-1}")
            r.append(f"v_cvt_pk_bf16_f32 v{p+7}, v{src+14}, v{src+15}")
            return r
        d.expops = expops
        d.mergeops = lambda dg, old: [f"v_cndmask_b32 v{dg+k}, v{old+k}, v{dg+k}, {s(sMASK+2*k,2)}" for k in range(16)]
        d.splitops = lambda p, pm: [f"v_bfi_b32 v{pm+k}, v{self.MK+k}, 0, v{p+k}" for k in range(8)] + [f"v_and_b32 v{p+k}, v{self.MK+k}, v{p+k}" for k in range(8)]
        d.pv = lambda O, vf, p, first: [f"v_mfma_f32_32x32x16_bf16 {v(O,16)}, {R(vf,4)}, {v(p,4)}, {'0' if first else v(O,16)}",
                                        f"v_mfma_f32_32x32x16_bf16 {v(O,16)}, {R(vf+4,4)}, {v(p+4,4)}, {v(O,16)}"]
    def fallback(self, hd):
        E = Emit(); O = self.O[hd]
        S, SD, NEG, P, PM, MX = 48, 64, 214, 230, 238 - 0, 246
        PM = 152 + 8
        K0 = AG + 136; VF = AG + 140; SP = AG + 104
        E.raw(f"FB{hd}:")
        E("s_waitcnt lgkmcnt(0)"); E.settle()
        for k in range(32): E(f"v_accvgpr_write_b32 {R(SP+k)}, v{48+k}")
        E(f"v_mov_b32 v{MX+2}, 0xff7fffff")
        for i in (8, 7, 6, 5, 4, 3, 2, 1, 0):
            E(self.kread(hd, i, K0))
            for x in self.smf(hd, i, SD if i == 8 else S, K0): E(x)
            if i == 8: continue
            src = S
            if i == 0:
                for x in self.mergeops(SD, S): E(x)
                src = SD
            for k in range(8): E(f"v_max3_f32 v{MX+2}, v{src+2*k}, v{src+2*k+1}, v{MX+2}")
        E(f"v_mov_b32 v{MX+3}, v{MX+2}\nv_permlane32_swap_b32 v{MX+3}, v{MX+2}\nv_max_f32 v{MX+2}, v{MX+2}, v{MX+3}")
        for k in range(16): E(f"v_sub_f32 v{NEG+k}, 0, v{MX+2}")
        for k in range(16): E(f"v_add_f32 v{SD+k}, v{NEG}, v{SD+k}")
        for x in self.expops(SD, P) + self.splitops(P, PM): E(x)
        for x in self.vreads(hd, 8, VF) + self.pv(O, VF, P, True): E(x)
        E.settle()
        for x in self.vreads(hd, 0, VF) + self.pv(O, VF, PM, False): E(x)
        for i in range(7, 0, -1):
            E.settle()
            E(self.kread(hd, i, K0))
            for x in self.vreads(hd, i, VF) + self.smf(hd, i, S, K0, v(NEG, 16)) + self.expops(S, P) + self.pv(O, VF, P, False): E(x)
        E.settle()
        for k in range(32): E(f"v_accvgpr_read_b32 v{48+k}, {R(SP+k)}")
        E.drain(); E.settle()
        E(f"s_setpc_b64 {s(sRET,2)}")
        return E.text()
    def p2(self, L):
        E = self.E; o = self.o
        self.att_defs()
        S = [48, 64]; SD = 80; P = [96, 104]; PM = 112; O = self.O = [120, 136]; D = 152; TT = 168
        K0 = [AG + 36, AG + 40, AG + 44]; VF = [AG + 48, AG + 56, AG + 64]
        self.OF = {}
        for st in range(2):
            for i in range(4): self.OF[(st, i)] = AG + 72 + 16 * st + 4 * i
        for st in range(2, 5):
            for i in range(4): self.OF[(st, i)] = AG + 104 + 12 * i + 4 * (st - 2)
        if L == 0: self.tail += [self.fallback(0), self.fallback(1)]
        obase = OB + L * OB_STRIDE
        def oload(st, i):
            return (f"s_mul_i32 s{sE_}, s{sW}, {10*KB}\ns_add_u32 s{sE_}, s{sE_}, s{sT16+i}\ns_add_u32 s{sE_}, s{sE_}, {obase + 2048*st}\n"
                    f"buffer_load_dwordx4 {R(self.OF[(st,i)],4)}, v{vU}, {s(WS,4)}, s{sE_} offen sc1")
        def oload2(st, i):
            return f"buffer_load_dwordx4 {R(self.OF[(st,i)],4)}, v{vU}, {s(WS,4)}, s{sE_} offen offset:2048 sc1"
        self.oload, self.oload2 = oload, oload2
        E.wait(vm=self.haltok[0], ds=E.ds_n); E("s_barrier")
        self.stamp(f"L{L} halo in")
        ev = {}; pre = {}
        dm = []
        for c in range(6): dm += self.dma4(sWGU, 16 * KB * c, 64 * KB + 16 * KB * c)
        hb = []
        for t in range(2):
            hb.append(f"s_mul_i32 s{sD}, s{sW}, {2*SLOT}\ns_add_u32 m0, s{sD}, {t*SLOT+3072}\ns_add_u32 s{sE_}, s{sHAL}, {t*5*KB+3072}\nbuffer_load_dwordx4 v{vL16}, {s(WS,4)}, s{sE_} offen sc1 lds")
        lasth = hb[-1]; hb[-1] = lambda: self.haltok.append(E(lasth))
        pb, cb = o.get("pb", 6), o.get("cb", 12)
        spread(ev, dm[:4], 1, 2.5)
        ev.setdefault(pb, []).append(self.poll_issue(sKC, 8 * L + 4))
        pre.setdefault(cb, []).append(self.poll_check(sKC, 8 * L + 4, f"s{sKT}"))
        spread(ev, hb, cb, 1)
        spread(ev, dm[4:], cb + 2, 2.2)
        st = {}
        def check(hd):
            def fn():
                Lo, Lb = E.label("FO"), E.label("FR")
                E(f"v_subrev_u32 v{TT}, {hex(63 << 23)}, v{O[hd]+12}\nv_cmp_le_u32 vcc, {hex(128 << 23)}, v{TT}\ns_cbranch_vccnz {Lo}")
                E.place(Lb)
                self.tail.append(f"{Lo}:\ns_call_b64 {s(sRET,2)}, FB{hd}\ns_branch {Lb}")
            return fn
        def norm(hd):
            r = [check(hd), f"v_rcp_f32 v{TT}, v{O[hd]+12}"]
            r += [f"v_mul_f32 v{O[hd]+k}, v{TT}, v{O[hd]+k}" for k in range(12)]
            r += [f"v_cvt_pk_bf16_f32 v{D+8*hd+k}, v{O[hd]+2*k}, v{O[hd]+2*k+1}" for k in range(6)]
            return r
        def putOA():
            E(f"s_and_b32 s{sA}, s{sJ}, 3\ns_lshl_b32 s{sA}, s{sA}, 10\ns_add_u32 s{sA}, s{sA}, s{sOme}\ns_add_u32 s{sA}, s{sA}, {obase}")
            st["a"] = E(f"buffer_store_dwordx4 {v(D,4)}, v{vL16}, {s(WS,4)}, s{sA} offen sc1")
        slot = [0]
        def weave(mf, mems, valu):
            n = len(mf); mems = list(mems); valu = list(valu)
            for k, m in enumerate(mf):
                for g in pre.pop(slot[0], []): self.do(g)
                E(m)
                for _ in range(-(-len(mems) // (n - k))): E(mems.pop(0))
                for g in ev.pop(slot[0], []): self.do(g)
                for _ in range(-(-len(valu) // (n - k))): self.do(valu.pop(0))
                slot[0] += 1
        seq = [(hd, i) for hd in range(2) for i in (7, 6, 5, 4, 3, 2, 1, 8, 0)]
        kslot = {x: K0[n % 3] for n, x in enumerate(seq)}
        kq = list(seq)
        def knext():
            if not kq: return []
            hd, i = kq.pop(0)
            return [self.kread(hd, i, kslot[(hd, i)])] + ([self.k1read(i)] if hd == 0 else [])
        for x in knext() + knext() + knext(): E(x)
        for x in self.smf(0, 7, S[0], kslot[(0, 7)]): E(x)
        pend = []; vn = 0
        sa_, pa_, ca_ = o.get("osa", 58), o.get("opa", 64), o.get("oca", 69)
        ev.setdefault(sa_, []).append(self.signal(sTP, self.T(0, L), lambda: st["a"]))
        for hd in range(2):
            for n in range(8):
                mf = []; mems = []; va = []
                if n < 6:
                    mf += self.smf(hd, 6 - n, S[(n + 1) % 2], kslot[(hd, 6 - n)]); mems += knext()
                    mf += pend
                elif n == 6:
                    mf += self.smf(hd, 8, SD, kslot[(hd, 8)]) + self.smf(hd, 0, S[1], kslot[(hd, 0)]); mems += knext()
                    mf += pend
                else:
                    mf += pend
                    if hd == 0: mf += self.smf(1, 7, S[0], kslot[(1, 7)])
                    mems += knext() + knext()
                    if hd == 0: pre.setdefault(slot[0] + len(mf), []).append(lambda: (E.wait(vm=self.haltok[1]), E("s_barrier")))
                if n < 7:
                    vf = VF[vn % 3]; vn += 1
                    vr = self.vreads(hd, 7 - n, vf)
                    mems = mems + vr
                    va += self.expops(S[n % 2], P[n % 2])
                    pend = self.pv(O[hd], vf, P[n % 2], n == 0)
                    if hd == 1 and n == 1: va = norm(0) + [putOA] + va
                else:
                    v8, v0_ = VF[vn % 3], VF[(vn + 1) % 3]; vn += 2
                    mems = mems + self.vreads(hd, 8, v8) + self.vreads(hd, 0, v0_)
                    va += self.mergeops(SD, S[1]) + self.expops(SD, P[1]) + self.splitops(P[1], PM)
                    pend = self.pv(O[hd], v8, P[1], False) + self.pv(O[hd], v0_, PM, False)
                weave(mf, mems, va)
            if hd == 0: self.stamp(f"L{L} att a")
        weave(pend, [], [])
        assert not ev and not pre, (ev, pre, slot)
        E(self.poll_issue(sTC, self.T(0, L)))
        for x in norm(1): self.do(x)
        E(f"s_mov_b32 vcc_lo, -1\ns_mov_b32 vcc_hi, 0")
        for k in range(2): E(f"v_cndmask_b32 v{D+4+k}, v{D+12+k}, v{D+4+k}, vcc")
        E(f"s_and_b32 s{sB}, s{sJ}, 3\ns_lshl_b32 s{sA}, s{sB}, 10\ns_add_u32 s{sA}, s{sA}, s{sOme}\ns_add_u32 s{sA}, s{sA}, {obase + 4096}")
        E(f"s_lshl_b32 s{sB}, s{sB}, 9\ns_add_u32 s{sB}, s{sB}, s{sOme}\ns_add_u32 s{sB}, s{sB}, {obase + 8192}")
        E(f"buffer_store_dwordx4 {v(D+8,4)}, v{vL16}, {s(WS,4)}, s{sA} offen sc1")
        self.otok = E(f"buffer_store_dwordx2 {v(D+4,2)}, v{vO4}, {s(WS,4)}, s{sB} offen sc1")
        self.stamp(f"L{L} att done")
    def reduce_and_publish(self, ACC, steps, red, PT, xidx, wimm, final, bg, post):
        E = self.E
        wr = []; bg = list(bg)
        for i in range(4):
            mf = []
            for (W, act) in steps:
                for nt in range(5):
                    d = ACC[i] + 4 * nt
                    mf.append(f"v_mfma_f32_16x16x32_bf16 {v(d,4)}, {R(W[nt],4)}, {R(act[i],4)}, {v(d,4)}")
            rd = []
            for k, m in enumerate(mf):
                E(m)
                if k >= 3 and wr: E(wr.pop(0))
                elif k % 4 == 1 and bg: self.do(bg.pop(0))
            if i < 3:
                E(f"v_add_u32 v{vT}, {red}, v{vRW+i}")
                wr = [f"ds_write_b128 v{vT}, {v(ACC[i]+4*nt,4)} offset:{1024*nt}" for nt in range(5)]
        E(f"v_add_u32 v{vT}, {red}, v{vRW+3}")
        E.drain(vm=False); E("s_barrier")
        for q in range(15): E(f"ds_read_b128 {v(PT+4*q,4)}, v{vT} offset:{1024*q}")
        self.stamp("  mfma done")
        for b in (0, 20, 40):
            for k in range(0, 20, 2): E(f"v_pk_add_f32 {v(vRES+k,2)}, {v(vRES+k,2)}, {v(PT+b+k,2)}")
        D = PT + 20
        for k in range(10): E(f"v_cvt_pk_bf16_f32 v{D+k}, v{vRES+2*k}, v{vRES+2*k+1}")
        if final:
            E(f"buffer_store_dwordx4 {v(D,4)}, v{vRM}, {s(OUT,4)}, s{sRM} offen")
            E(f"buffer_store_dwordx4 {v(D+4,4)}, v{vRM}, {s(OUT,4)}, s{sRM} offen offset:16")
            E(f"buffer_store_dwordx2 {v(D+8,2)}, v{vRM5}, {s(OUT,4)}, s{sRM} offen offset:128")
            return
        E(f"s_mul_i32 s{sA}, s{sNB}, {5*KB}\ns_add_u32 s{sA}, s{sA}, s{sT16+3}\ns_add_u32 s{sA}, s{sA}, {XT + xidx*XT_STRIDE}\ns_add_u32 s{sB}, s{sA}, 4096")
        E(f"buffer_store_dwordx4 {v(D,4)}, v{vXW}, {s(WS,4)}, s{sA} offen sc1")
        E(f"buffer_store_dwordx4 {v(D+4,4)}, v{vXW}, {s(WS,4)}, s{sA} offen offset:512 sc1")
        E(f"buffer_store_dwordx2 {v(D+8,2)}, v{vXW5}, {s(WS,4)}, s{sB} offen sc1")
        T = PT
        E(f"v_pk_add_f32 {v(T,2)}, {v(vRES,2)}, {v(vRES+2,2)}\nv_pk_mul_f32 {v(T+2,2)}, {v(vRES,2)}, {v(vRES,2)}")
        E(f"v_pk_fma_f32 {v(T+2,2)}, {v(vRES+2,2)}, {v(vRES+2,2)}, {v(T+2,2)}")
        for k in range(4, 20, 2):
            E(f"v_pk_add_f32 {v(T,2)}, {v(T,2)}, {v(vRES+k,2)}\nv_pk_fma_f32 {v(T+2,2)}, {v(vRES+k,2)}, {v(vRES+k,2)}, {v(T+2,2)}")
        E(f"v_add_f32 v{T}, v{T}, v{T+1}\nv_add_f32 v{T+1}, v{T+2}, v{T+3}")
        E(f"s_lshl_b32 s{sA}, s{sR}, 3\ns_add_u32 s{sA}, s{sA}, s{sNB}\ns_lshl_b32 s{sA}, s{sA}, 1\ns_add_u32 s{sA}, s{sA}, s{sTH}\ns_lshl_b32 s{sA}, s{sA}, 2")
        for sw in ("v_permlane32_swap_b32", "v_permlane16_swap_b32"):
            E(f"v_mov_b32 v{T+2}, v{T}\nv_mov_b32 v{T+3}, v{T+1}")
            if sw[10] == "3": E(f"s_add_u32 s{sA}, s{sA}, s{sW}\ns_lshl_b32 s{sA}, s{sA}, 7")
            else: E(f"s_add_u32 s{sA}, s{sA}, {STAT + xidx*128*KB}")
            E(f"{sw} v{T+2}, v{T}\n{sw} v{T+3}, v{T+1}")
            E(f"v_add_f32 v{T}, v{T}, v{T+2}\nv_add_f32 v{T+1}, v{T+1}, v{T+3}")
        last = E(f"buffer_store_dwordx2 {v(T,2)}, v{vSW}, {s(WS,4)}, s{sA} offen sc1")
        self.stamp("  stored")
        E("s_barrier")
        n0 = self.o.get("post0", 6)
        post = list(bg) + list(post)
        for g in post[:n0]: self.do(g)
        self.signal(sWP, wimm, last)()
        self.stamp("  signalled")
        for g in post[n0:]: self.do(g)
    def mk_wdload(self):
        self.WDF = {}
        def wdload(f):
            def fn():
                q = self.pool.get(); self.WDF[f] = q
                t = f"s_add_u32 s{sT0+1}, s{sWD}, {1024*f}\n" if f % 4 == 0 else ""
                return self.E(t + f"buffer_load_dwordx4 {R(q,4)}, v{vL16}, {s(WS,4)}, s{sT0+1} offen offset:{1024*(f%4)}")
            return fn
        self.wdq = [wdload(f) for f in range(60)]
    def wd(self, n):
        r = self.wdq[:n]; self.wdq = self.wdq[n:]
        return r
    def p3(self, L):
        E = self.E; o = self.o
        ACC = [48, 68, 88, vRES]
        W = lambda st: [self.WOF[5 * st + nt] for nt in range(5)]
        self.pool = Pool([176 + 4 * i for i in range(17)])
        self.mk_wdload()
        self.poll_check(sTC, self.T(0, L), 8)()
        for i in range(4): E(self.oload(0, i)); E(self.oload2(1, i))
        self.signal(sTP, self.T(1, L), self.otok)()
        for g in self.wd(o.get("wd3", 8)): g()
        for i in range(4):
            for st in range(2):
                for nt in range(5):
                    d = ACC[i] + 4 * nt
                    E(f"v_mfma_f32_16x16x32_bf16 {v(d,4)}, {R(W(st)[nt],4)}, {R(self.OF[(st,i)],4)}, {'0' if st == 0 and i < 3 else v(d,4)}")
            if i == o.get("p3poll", 2): E(self.poll_issue(sTC, self.T(1, L)))
        E("s_barrier")
        self.stamp(f"L{L} P3 a-part")
        self.poll_check(sTC, self.T(1, L), 8)()
        self.stamp(f"L{L} P3 synced")
        for i in range(4):
            E(self.oload(2, i)); E(self.oload2(3, i))
            E(f"s_add_u32 s{sE_}, s{sE_}, 4096\nbuffer_load_dwordx4 {R(self.OF[(4,i)],4)}, v{vU}, {s(WS,4)}, s{sE_} offen sc1")
        steps = [(W(st), [self.OF[(st, i)] for i in range(4)]) for st in range(2, 5)]
        self.CSG = 152
        bg = self.wd(17 - o.get("wd3", 8))
        def freewo(): self.pool.add(self.WOF)
        self.gu_late = []
        for c in range(6, 10): self.gu_late += self.dma4(sWGU, 16 * KB * c, 16 * KB * (c - 6))
        n = o.get("gu3", 16)
        post = [freewo] + self.gu_late[:n] + self.cs_loads(CSG, 6 * KB, 6, self.CSG)
        self.gu_late = self.gu_late[n:]
        self.reduce_and_publish(ACC, steps, 0, 108 - 16 + 16, 2 * L + 1, 4 * L, False, bg, post)
        self.stamp(f"L{L} P3 done")
    def p4(self, L):
        E = self.E; o = self.o
        self.poll_block(sWC, 4 * L, 16)
        self.stamp(f"L{L} P4 synced")
        ACC = [[48, 64], [80, 96]]; RING = 112; HP = 136; T = 144
        self.stat_loads(2 * L + 1, T)
        xl = self.xloads(XT + (2 * L + 1) * XT_STRIDE)
        for g in xl[:16]: E(g)
        allw = [1024 * ((64 + f) % 160) for f in range(240)]
        E.need(regs(a(0, 4))); E("s_barrier")
        for f in range(6): E(self.wread(RING + 4 * f, allw[f]))
        c1 = -2 * 0.7978845608028654 * math.log2(math.e)
        so = self.stat_ops(T) + [f"v_mul_f32 v{vC1}, {f2u(c1)}, v{vRSTD}", f"v_mul_f32 v{T}, v{vRSTD}, v{vRSTD}", f"v_mul_f32 v{vC2}, {f2u(0.044715)}, v{vC1}",
                                 f"v_mul_f32 v{vC2}, v{T}, v{vC2}"]
        st = self.htok = {}
        def put(p):
            def fn():
                E(f"s_add_u32 s{sA}, s{sHme}, {HB + L*HB_STRIDE + 2048*p}")
                E(f"buffer_store_dwordx4 {v(HP,4)}, v{vL16}, {s(WS,4)}, s{sA} offen sc1")
                st[p] = E(f"buffer_store_dwordx4 {v(HP+4,4)}, v{vL16}, {s(WS,4)}, s{sA} offen offset:1024 sc1")
            return fn
        def epi(p):
            g, u = ACC[p % 2]; r = []
            for k0 in range(0, 16, 4):
                ks = range(k0, k0 + 4)
                r += [f"v_mul_f32 v{T+k%4}, v{g+k}, v{g+k}" for k in ks]
                r += [f"v_fma_f32 v{T+k%4}, v{T+k%4}, v{vC2}, v{vC1}" for k in ks]
                r += [f"v_mul_f32 v{T+k%4}, v{T+k%4}, v{g+k}" for k in ks]
                r += [f"v_exp_f32 v{T+k%4}, v{T+k%4}" for k in ks]
                r += [f"v_mul_f32 v{g+k}, v{g+k}, v{u+k}" for k in ks]
                r += [f"v_fma_f32 v{T+k%4}, v{T+k%4}, v{vIV}, v{vIV}" for k in ks]
                r += [f"v_rcp_f32 v{T+k%4}, v{T+k%4}" for k in ks]
                r += [f"v_mul_f32 v{g+k}, v{g+k}, v{T+k%4}" for k in ks]
                r += [f"v_cvt_pk_bf16_f32 v{HP+k//2}, v{g+k}, v{g+k+1}" for k in ks if k % 2 == 0]
            return [(2, x) for x in r + [put(p)]]
        def epi_pk(p):
            g, u = ACC[p % 2]; r = []
            for k0 in range(0, 16, 8):
                ks = range(k0, k0 + 8, 2)
                r += [f"v_pk_mul_f32 {v(T+k%8,2)}, {v(g+k,2)}, {v(g+k,2)}" for k in ks]
                r += [f"v_pk_fma_f32 {v(T+k%8,2)}, {v(T+k%8,2)}, {v(vC1,2)}, {v(vC1,2)} op_sel:[0,1,0] op_sel_hi:[1,1,0]" for k in ks]
                r += [f"v_pk_mul_f32 {v(T+k%8,2)}, {v(T+k%8,2)}, {v(g+k,2)}" for k in ks]
                r += [f"v_exp_f32 v{T+k}, v{T+k}" for k in range(8)]
                r += [f"v_pk_mul_f32 {v(g+k,2)}, {v(g+k,2)}, {v(u+k,2)}" for k in ks]
                r += [f"v_pk_fma_f32 {v(T+k%8,2)}, {v(T+k%8,2)}, {v(vIV,2)}, {v(vIV,2)} op_sel_hi:[1,0,0]" for k in ks]
                r += [f"v_rcp_f32 v{T+k}, v{T+k}" for k in range(8)]
                r += [f"v_pk_mul_f32 {v(g+k,2)}, {v(g+k,2)}, {v(T+k%8,2)}" for k in ks]
                r += [f"v_cvt_pk_bf16_f32 v{HP+k//2}, v{g+k}, v{g+k+1}" for k in ks]
            return r + [put(p)]
        self.HF = {}
        def hload(stp, i):
            def fn():
                p, jj = divmod(stp, 4)
                q = self.pool.get(); self.HF[(stp, i)] = q
                E(f"s_add_u32 s{sE_}, s{sT16H+i}, {HB + L*HB_STRIDE + 2048*(3*jj+p)}\nbuffer_load_dwordx4 {R(q,4)}, v{vU}, {s(WS,4)}, s{sE_} offen sc1")
            return fn
        self.hload = hload
        nv = o.get("nv4", 4)
        ev = {}; spread(ev, xl[16:], 0, 2)
        spread(ev, self.wd(o.get("wd40", 10)), 52, 2.8)
        self.wstream(self.pair_items(ACC[0], self.CSG), 0, allw, RING, ev, [(2, x) for x in so])
        self.stamp(f"L{L} P4 p0")
        ev = {}; tok = []; fl = []
        for c in range(10, 15): fl += self.dma4(sWGU, 16 * KB * c, 64 * KB + 16 * KB * (c - 10), tok)
        spread(ev, fl, 1, 2.2)
        spread(ev, self.wd(o.get("wd41", 15)), 46, 2.3)
        ev.setdefault(o.get("hs0", 74), []).append(self.signal(sTP, self.T(2, L), lambda: st[0]))
        self.wstream(self.pair_items(ACC[1], self.CSG + 8), 80, allw, RING, ev, epi(0),
                     {0: ["s_barrier"], 74: [lambda: (E.wait(vm=tok[4]), E("s_barrier"))]}, nvalu=nv)
        self.stamp(f"L{L} P4 p1")
        ev = {}; pre = {}
        for ks in range(40): ev.setdefault(2 * ks + 1, []).append(lambda ks=ks: self.pool.put(AG + 4 * ks))
        n2 = len(self.wdq)
        spread(ev, self.wd(n2), 5, 2.2)
        hp, hc = o.get("hp0", 34), o.get("hc0", 44)
        ev.setdefault(hp, []).append(self.poll_issue(sTC, self.T(2, L)))
        pre.setdefault(hc, []).append(self.poll_check(sTC, self.T(2, L), 8))
        spread(ev, [hload(stp, i) for stp in range(4) for i in range(4)], max(hc + 1, 5 + 2.2 * n2), 2.2)
        ev.setdefault(o.get("hs1", 74), []).append(self.signal(sTP, self.T(3, L), lambda: st[1]))
        self.wstream(self.pair_items(ACC[0], self.CSG + 16), 160, allw, RING, ev, epi(1), pre, nvalu=nv)
        self.stamp(f"L{L} P4 p2")
        ep = epi_pk(2)
        for k, x in enumerate(ep):
            self.do(x)
            if k == len(ep) - 30: E(self.poll_issue(sTC, self.T(3, L)))
        self.stamp(f"L{L} P4 done")
    def p5(self, L):
        E = self.E; o = self.o
        ACC = [48, 68, 88, vRES]
        E("s_barrier")
        self.poll_check(sTC, self.T(3, L), 8)()
        self.pool.add([108 + 4 * i for i in range(7)] + [144 + 4 * i for i in range(8)])
        ev = {}; pre = {}
        spread(ev, [self.hload(stp, i) for stp in range(4, 8) for i in range(4)], 0, 4)
        E(f"s_add_u32 s{sB}, s{sTP}, 4096")
        ev.setdefault(o.get("hs2", 42), []).append(self.signal(sB, 4 * L, self.htok[2]))
        hp, hc = o.get("hp2", 84), o.get("hc2", 100)
        ev.setdefault(hp, []).append(self.poll_issue(sTC, self.T(4, L)))
        pre.setdefault(hc, []).append(self.poll_check(sTC, self.T(4, L), 8))
        spread(ev, [self.hload(stp, i) for i in range(4) for stp in range(8, 12)], hc, 3.5)
        self.wq_tok = []; dm = []
        if L == 0:
            for c in range(10): dm += self.dma4(sWQ, 16 * KB * c, 16 * KB * c, self.wq_tok)
            spread(ev, dm[:8], 66, 4); dm = dm[8:]
        sl = 0
        for stp in range(8):
            for i in range(4):
                for nt in range(5):
                    for g in pre.pop(sl, []): self.do(g)
                    d = ACC[i] + 4 * nt
                    E(f"v_mfma_f32_16x16x32_bf16 {v(d,4)}, {R(self.WDF[5*stp+nt],4)}, {R(self.HF[(stp,i)],4)}, {'0' if stp == 0 and i < 3 else v(d,4)}")
                    for g in ev.pop(sl, []): self.do(g)
                    sl += 1
                if self.HF[(stp, i)] >= AG or self.HF[(stp, i)] < 176: self.pool.put(self.HF[(stp, i)])
            for nt in range(5):
                q = self.WDF[5 * stp + nt]
                if q >= AG or q < 176: self.pool.put(q)
        assert not ev and not pre, (ev, pre)
        self.stamp("  8 steps")
        PT = 176
        live = [self.WDF[f] for f in range(40, 60)] + [self.HF[(stp, i)] for stp in range(8, 12) for i in range(4)]
        assert not [q for q in live if PT <= q < PT + 60], live
        steps = [([self.WDF[5 * stp + nt] for nt in range(5)], [self.HF[(stp, i)] for i in range(4)]) for stp in range(8, 12)]
        bg = dm[:12]; dm = dm[12:]
        n = o.get("wq5", 8)
        post = dm[:n] + (self.cs_loads(CSQ, 4 * KB, 4, 136) if L == 0 else [])
        self.wq_late = dm[n:]
        self.reduce_and_publish(ACC, steps, 100 * KB, PT, 2 * L + 2, 512 + 4 * L, L == 1, bg, post)
        self.stamp(f"L{L} P5 done")
    def finish(self):
        E = self.E
        if self.stamps:
            E(f"v_readfirstlane_b32 s{sB}, v254")
            E(f"s_lshl_b32 s{sA}, s{sB}, 2\ns_add_u32 s{sA}, s{sA}, s{sW}\ns_lshl_b32 s{sA}, s{sA}, 8\ns_add_u32 s{sA}, s{sA}, {DBG}")
            E(f"v_lshlrev_b32 v{vT}, 2, v0\nbuffer_store_dword v{vTS}, v{vT}, {s(WS,4)}, s{sA} offen")
            E(f"s_add_u32 s{sA}, s{sA}, 0x40000\nbuffer_store_dword v{vTS2}, v{vT}, {s(WS,4)}, s{sA} offen")
        E("s_endpgm")
        for t in self.tail: E.raw(t.rstrip("\n"))
    def build(self):
        E = self.E
        E.raw(f"; @launch kernel=p0_kernel grid=({N_P0},1,1) block=(64,1,1) lds=25600")
        E.raw("; @launch kernel=main_kernel grid=(256,1,1) block=(256,1,1) lds=163840")
        E.raw('.amdgcn_target "amdgcn-amd-amdhsa--gfx950"')
        d = gen_p0(E, stamps=self.stamps, pref=self.o.get("pref", 50000)); E.fresh()
        self.prologue()
        n = 0
        for L in range(2):
            for ph in (self.p1, self.p2, self.p3, self.p4, self.p5):
                if n < self.stop: ph(L)
                n += 1
        self.finish()
        kernel_desc(E, d["name"], d["vgpr"], d["agpr"], d["sgpr"])
        kernel_desc(E, "main_kernel", 256, 256, 102)
        return E.text()

if __name__ == "__main__":
    out = sys.argv[1]
    opts = dict((k, int(x)) for k, x in (a_.split("=") for a_ in sys.argv[3:]))
    g = Gen(stamps=len(sys.argv) > 2 and sys.argv[2] == "ts", opts=opts)
    t = g.build()
    open(out, "w").write(t)
    print(len(t), "bytes", g.E.ninst, "insts", g.E.nnop, "nop states", g.E.stats)
    if g.stamps: open(out + ".names", "w").write("\n".join(g.stnames))
```

```python
from emit import *
from layout import *

SRC1 = 32; SRC2 = 36; sONE = 40
t = list(range(41, 58))
sRHO, sSIG = 58, 59
sU, sS2 = 60, 61
sTK = 62
LDS1 = 80 * KB
LDS2 = 96 * KB
vTK = 248
vA2 = 232
OOB = 0x10000000

def split_hi_lo(E, x, t0, t1, d):
    E(f"v_cvt_pk_bf16_f32 v{d+1}, v{x}, 0")
    E(f"v_lshlrev_b32 v{t0}, 16, v{d+1}")
    E(f"v_sub_f32 v{t1}, v{x}, v{t0}")
    E(f"v_cvt_pk_bf16_f32 v{d}, v{t0}, v{t1}")

class Startup:
    def __init__(self, G, M):
        self.G = G; self.E = G.E; self.M = M
    def roles(self, pQ, pO, pG, pU, pD):
        E, M = self.E, self.M
        E(f"s_add_u32 s{sRHO}, s{M.sR}, s{M.sJ}\ns_and_b32 s{sRHO}, s{sRHO}, 15\ns_add_u32 s{sSIG}, s{sRHO}, 4\ns_and_b32 s{sSIG}, s{sSIG}, 15")
        E(f"s_mov_b32 s{SRC1}, s{pQ}\ns_mov_b32 s{SRC1+1}, s{pQ+1}\ns_mov_b32 s{SRC1+2}, {640*1920*2}\ns_mov_b32 s{SRC1+3}, 0x00020000")
        E(f"s_cmp_ge_u32 s{sSIG}, 4\ns_cselect_b64 {s(SRC2,2)}, {s(pU,2)}, {s(pG,2)}")
        E(f"s_cmp_ge_u32 s{sSIG}, 8\ns_cselect_b64 {s(SRC2,2)}, {s(pD,2)}, {s(SRC2,2)}")
        E(f"s_cmp_ge_u32 s{sSIG}, 14\ns_cselect_b64 {s(SRC2,2)}, {s(pO,2)}, {s(SRC2,2)}\ns_cselect_b32 s{SRC2+2}, {640*640*2}, 0")
        E(f"s_cselect_b32 s{t[0]}, 0, {640*1536*2}\ns_add_u32 s{SRC2+2}, s{SRC2+2}, s{t[0]}\ns_mov_b32 s{SRC2+3}, 0x00020000\ns_mov_b32 s{sONE}, 0x3f803f80")
    def s1_load(self):
        E, M = self.E, self.M
        E("v_mul_u32_u24 v48, 13108, v0\nv_lshrrev_b32 v48, 16, v48\nv_mul_u32_u24 v49, 5, v48\nv_sub_u32 v49, v0, v49")
        E("v_mul_u32_u24 v48, 3840, v48\nv_lshl_add_u32 v50, v49, 4, v48")
        E(f"s_lshr_b32 s{t[1]}, s{sRHO}, 2\ns_and_b32 s{t[2]}, s{sRHO}, 3")
        E(f"s_mul_i32 s{t[3]}, s{t[1]}, 1280\ns_mul_i32 s{t[4]}, s{M.sJ}, 80\ns_add_u32 s{t[3]}, s{t[3]}, s{t[4]}")
        E(f"s_lshl_b32 s{t[4]}, s{t[2]}, 2\ns_add_u32 s{t[4]}, s{t[4]}, s{M.sW}\ns_mul_i32 s{t[4]}, s{t[4]}, {40*3840}\ns_add_u32 s{t[3]}, s{t[3]}, s{t[4]}")
        E(f"s_cmp_ge_u32 s{sRHO}, 12\ns_cselect_b32 s{t[4]}, {OOB}, 0\nv_add_u32 v50, s{t[4]}, v50")
        E(f"s_mul_i32 s{t[4]}, s{M.sW}, 3200\ns_mov_b32 exec_hi, 0x3ffff")
        for i in range(4):
            E(f"s_add_u32 m0, s{t[4]}, {LDS1 + 800*i}")
            if i: E(f"s_add_u32 s{t[3]}, s{t[3]}, {10*3840}")
            self.tok1 = E(f"buffer_load_dwordx4 v50, {s(SRC1,4)}, s{t[3]} offen lds")
        E("s_mov_b32 exec_hi, -1")
    def x_touch(self):
        E, M = self.E, self.M
        E(f"s_lshl_b32 s{t[4]}, s{M.sR}, 4\ns_add_u32 s{t[4]}, s{t[4]}, s{M.sJ}\ns_lshl_b32 s{t[4]}, s{t[4]}, 2\ns_add_u32 s{t[4]}, s{t[4]}, s{M.sW}\ns_mul_i32 s{t[4]}, s{t[4]}, 2560")
        E(f"v_min_u32 v51, 19, v0\nv_lshlrev_b32 v51, 7, v51\nbuffer_load_dword v246, v51, {s(M.XIN,4)}, s{t[4]} offen")
    def s2_addrs(self):
        E, M = self.E, self.M
        a_, b_, c_, d_, e_ = t[5], t[6], t[7], t[8], t[9]
        E(f"s_mov_b32 s{b_}, 6554\ns_cmp_lt_u32 s{sSIG}, 8\ns_cselect_b32 s{a_}, 12, 10\ns_cselect_b32 s{b_}, 5462, s{b_}\ns_cselect_b32 s{d_}, s{M.sW}, 0")
        E(f"v_mov_b32 v55, {OOB}")
        E(f"s_mov_b32 s{e_}, 1280\ns_cselect_b32 s{c_}, 3072, s{e_}\ns_lshl_b32 s{d_}, s{d_}, 9")
        E(f"s_cmp_ge_u32 s{sSIG}, 14\ns_cselect_b32 s{e_}, 50, 40\ns_lshl_b32 s{e_}, s{e_}, 3\ns_cmp_lt_u32 s{sSIG}, 8\ns_cselect_b32 s{e_}, 1920, s{e_}")
        for i in range(8):
            E(f"v_add_u32 v52, s{d_}, v0\nv_mul_u32_u24 v53, s{b_}, v52\nv_lshrrev_b32 v53, 16, v53\nv_mul_u32_u24 v54, s{a_}, v53\nv_sub_u32 v54, v52, v54")
            E(f"v_mul_u32_u24 v53, s{c_}, v53\nv_lshl_add_u32 v53, v54, 4, v53\nv_cmp_gt_u32 vcc, s{e_}, v52\nv_cndmask_b32 v{vA2+i}, v55, v53, vcc\ns_add_u32 s{d_}, s{d_}, 64")
        E(f"s_and_b32 s{a_}, s{sSIG}, 3\ns_mul_i32 s{a_}, s{a_}, {160*3072}\ns_mul_i32 s{b_}, s{M.sJ}, 192\ns_add_u32 s{a_}, s{a_}, s{b_}")
        E(f"s_cmp_ge_u32 s{sSIG}, 14\ns_cselect_b32 s{b_}, 2, 6\ns_cselect_b32 s{c_}, 14, 8\ns_cselect_b32 s{d_}, 40, 32")
        E(f"s_mul_i32 s{b_}, s{b_}, s{M.sTH}\ns_add_u32 s{b_}, s{b_}, s{sSIG}\ns_sub_u32 s{b_}, s{b_}, s{c_}\ns_lshl_b32 s{b_}, s{b_}, 2\ns_add_u32 s{sU}, s{b_}, s{M.sW}")
        E(f"s_mul_i32 s{b_}, s{sU}, s{d_}\ns_mul_i32 s{b_}, s{b_}, 1280\ns_mul_i32 s{c_}, s{M.sNB}, 160\ns_add_u32 s{b_}, s{b_}, s{c_}")
        E(f"s_cmp_lt_u32 s{sSIG}, 8\ns_cselect_b32 s{sS2}, s{a_}, s{b_}")
    def s2_load(self, i):
        M = self.M
        return f"s_lshl_b32 s{t[0]}, s{M.sLW}, 1\ns_add_u32 m0, s{t[0]}, {LDS2 + 1024*i}\nbuffer_load_dwordx4 v{vA2+i}, {s(SRC2,4)}, s{sS2} offen lds"
    def s1_proc(self):
        E, M = self.E, self.M
        Lz, Lend = E.label("WZ"), E.label("WQ")
        E(f"s_cmp_ge_u32 s{sRHO}, 12\ns_cbranch_scc1 {Lz}")
        E("v_lshrrev_b32 v48, 4, v0\nv_bfe_u32 v49, v0, 1, 1\nv_lshl_add_u32 v48, v48, 1, v49\nv_bfe_u32 v49, v0, 2, 2\nv_lshl_add_u32 v48, v48, 3, v49")
        E(f"v_mul_u32_u24 v48, 80, v48\nv_add_u32 v48, {LDS1}, v48\nv_and_b32 v49, 1, v0")
        E("v_lshrrev_b32 v51, 4, v0\nv_lshlrev_b32 v51, 11, v51\nv_bfe_u32 v52, v0, 3, 1\nv_lshl_add_u32 v51, v52, 9, v51\nv_and_b32 v52, 7, v0\nv_lshl_add_u32 v51, v52, 4, v51")
        E("v_lshrrev_b32 v53, 5, v0\nv_lshl_add_u32 v53, v53, 28, v51")
        E("v_lshrrev_b32 v54, 3, v0\nv_min_u32 v54, 1, v54\nv_lshlrev_b32 v54, 28, v54\nv_lshl_add_u32 v54, v52, 3, v54")
        E(f"s_cmp_eq_u32 s{t[1]}, 0\ns_cselect_b32 s{t[5]}, 10, 0\ns_cmp_eq_u32 s{t[1]}, 2\ns_cselect_b32 s{t[5]}, 5, s{t[5]}")
        E(f"s_mul_i32 s{t[6]}, s{M.sJ}, {160*KB}\ns_mul_i32 s{t[7]}, s{t[2]}, {20*KB}\ns_add_u32 s{t[6]}, s{t[6]}, s{t[7]}\ns_add_u32 s{t[6]}, s{t[6]}, {WQ}")
        E(f"s_lshl_b32 s{t[7]}, s{M.sJ}, 12\ns_lshl_b32 s{t[8]}, s{t[2]}, 8\ns_add_u32 s{t[7]}, s{t[7]}, s{t[8]}\ns_add_u32 s{t[7]}, s{t[7]}, {CSQ}")
        done0 = E.vm_done
        for rnd in range(2):
            if rnd == 0:
                E(f"s_and_b32 s{t[8]}, s{M.sW}, 1\ns_lshl_b32 s{t[8]}, s{t[8]}, 3\ns_lshr_b32 s{t[9]}, s{M.sW}, 1\ns_lshl_b32 s{t[9]}, s{t[9]}, 5\ns_add_u32 s{t[8]}, s{t[8]}, s{t[9]}")
                E(f"s_cmp_eq_u32 s{M.sW}, 2\ns_cselect_b32 s{t[9]}, 40, 16\ns_add_u32 s{t[10]}, s{t[5]}, s{M.sW}")
            else:
                E(f"s_cmp_lg_u32 s{M.sW}, 3\ns_cbranch_scc1 {Lend}")
                E(f"s_mov_b32 s{t[8]}, 48\ns_mov_b32 s{t[9]}, 16\ns_add_u32 s{t[10]}, s{t[5]}, 4")
            E(f"v_mul_u32_u24 v55, s{t[9]}, v49\nv_add3_u32 v55, v55, v48, s{t[8]}")
            E(f"s_lshr_b32 s{t[11]}, s{t[10]}, 3\ns_mul_i32 s{t[11]}, s{t[11]}, {80*KB}\ns_bfe_u32 s{t[12]}, s{t[10]}, 0x10002\ns_lshl_b32 s{t[12]}, s{t[12]}, 10")
            E(f"s_add_u32 s{t[11]}, s{t[11]}, s{t[12]}\ns_and_b32 s{t[12]}, s{t[10]}, 3\ns_lshl_b32 s{t[13]}, s{t[12]}, 7\ns_add_u32 s{t[11]}, s{t[11]}, s{t[13]}\ns_add_u32 s{t[11]}, s{t[11]}, s{t[6]}")
            E(f"s_lshl_b32 s{t[12]}, s{t[12]}, 6\ns_lshr_b32 s{t[13]}, s{t[10]}, 2\ns_lshl_b32 s{t[13]}, s{t[13]}, 10\ns_add_u32 s{t[12]}, s{t[12]}, s{t[13]}\ns_add_u32 s{t[12]}, s{t[12]}, s{t[7]}")
            if rnd == 0:
                E.wait(vm=self.tok1); E("s_barrier")
            d0 = 60 + 16 * rnd
            for y in range(3):
                for rd in range(2): E(f"ds_read_b64_tr_b16 {v(d0+4*y+2*rd,2)}, v55 offset:{(64*y+4*rd)*80}")
            for y in range(3):
                E(f"buffer_store_dwordx4 {v(d0+4*y,4)}, v{53 if y == 2 else 51}, {s(M.WS,4)}, s{t[11]} offen sc1", count=False)
                if y < 2: E(f"s_add_u32 s{t[11]}, s{t[11]}, {8*KB}")
            E("v_mov_b32 v56, 0")
            for y in range(3):
                if y == 2: E("s_mov_b32 exec_hi, 0")
                for e in range(4): E(f"v_dot2c_f32_bf16 v56, s{sONE}, v{d0+4*y+e}")
            E("s_mov_b32 exec_hi, -1")
            for sw in ("v_permlane32_swap_b32", "v_permlane16_swap_b32"):
                E(f"v_mov_b32 v57, v56\n{sw} v57, v56\nv_add_f32 v56, v57, v56")
            E("v_add_f32_dpp v56, v56, v56 row_ror:8 row_mask:0xf bank_mask:0xf")
            split_hi_lo(E, 56, 57, 58, d0 + 12)
            E(f"buffer_store_dwordx2 {v(d0+12,2)}, v54, {s(M.WS,4)}, s{t[12]} offen sc1", count=False)
        E(f"s_branch {Lend}")
        E.place(Lz); E.hist = []
        E("v_mov_b32 v60, 0\nv_mov_b32 v61, 0\nv_mov_b32 v62, 0\nv_mov_b32 v63, 0")
        E(f"s_lshl_b32 s{t[5]}, s{M.sJ}, 2\ns_add_u32 s{t[5]}, s{t[5]}, s{t[2]}\ns_lshl_b32 s{t[5]}, s{t[5]}, 10\ns_add_u32 s{t[5]}, s{t[5]}, {FLAGS}")
        E(f"s_lshl_b32 s{t[6]}, s{M.sR}, 2\ns_add_u32 s{t[6]}, s{t[6]}, s{M.sW}\ns_lshl_b32 s{t[6]}, s{t[6]}, 11\ns_add_u32 s{t[6]}, s{t[6]}, {GCNT}")
        E(f"s_cmp_eq_u32 s{M.sW}, 0\ns_cselect_b32 s{t[7]}, 0, {OOB}\nv_add_u32 v51, s{t[7]}, v{M.vL16}")
        E(f"s_cmp_eq_u32 s{sRHO}, 15\ns_cselect_b32 s{t[7]}, 0, {OOB}\nv_add_u32 v52, s{t[7]}, v{M.vL16}")
        E(f"buffer_store_dwordx4 v[60:63], v51, {s(M.WS,4)}, s{t[5]} offen sc1", count=False)
        for k in range(2): E(f"buffer_store_dwordx4 v[60:63], v52, {s(M.WS,4)}, s{t[6]} offen offset:{1024*k} sc1", count=False)
        E.place(Lend); E.hist = []; E.vm_done = done0
        E("s_nop 1")
    def flag(self, code):
        E, M = self.E, self.M
        L = E.label("FG")
        E(f"s_cmp_lg_u32 s{M.sW}, 0\ns_cbranch_scc1 {L}")
        E(code)
        E(f"buffer_store_dwordx2 {v(vTK,2)}, v{M.vSIG}, {s(M.WS,4)}, s{M.sA} offen sc1", count=False)
        E.place(L)
    def flag1(self):
        M = self.M
        self.flag(f"s_lshl_b32 s{M.sA}, s{M.sJ}, 4\ns_add_u32 s{M.sA}, s{M.sA}, s{sRHO}\ns_lshl_b32 s{M.sA}, s{M.sA}, 7\ns_add_u32 s{M.sA}, s{M.sA}, {F1}")
    def flag2(self):
        M = self.M
        self.flag(f"s_lshl_b32 s{M.sA}, s{M.sJ}, 4\ns_add_u32 s{M.sA}, s{M.sA}, s{M.sR}\ns_lshl_b32 s{M.sA}, s{M.sA}, 7\ns_add_u32 s{M.sA}, s{M.sA}, {F2}")
    def vpoll_issue(self, addr, dst):
        return f"buffer_load_dwordx2 {v(dst,2)}, v{addr}, {s(self.M.WS,4)}, 0 offen sc1"
    def vpoll_check(self, addr, dst, slp):
        def fn():
            E, M = self.E, self.M
            Ls, Lb = E.label("VS"), E.label("VB")
            E(f"v_cmp_ne_u64 vcc, {v(dst,2)}, {v(vTK,2)}\ns_cbranch_vccnz {Ls}")
            E.place(Lb)
            self.G.tail.append(f"{Ls}:\ns_mov_b32 s{M.sF}, 0x100000\n{Ls}_l:\ns_sleep {slp}\n{self.vpoll_issue(addr, dst)}\ns_waitcnt vmcnt(0)\n"
                               f"v_cmp_ne_u64 vcc, {v(dst,2)}, {v(vTK,2)}\ns_nop 1\ns_cbranch_vccz {Lb}\ns_sub_u32 s{M.sF}, s{M.sF}, 1\ns_cmp_lg_u32 s{M.sF}, 0\n"
                               f"s_cbranch_scc1 {Ls}_l\ns_branch {Lb}")
        return fn
    def s2_proc(self):
        E, M = self.E, self.M
        Ld, Lo, Le, Lk = E.label("S2"), E.label("S2"), E.label("S2"), E.label("S2")
        E.drain(vm=False)
        self.G.tail.append(f"{Lk}:\ns_waitcnt vmcnt(0)\ns_branch {Le}")
        B = 176
        st = lambda x: E(x, count=False)
        E(f"s_lshl_b32 s{t[0]}, s{M.sLW}, 1\ns_add_u32 s{t[0]}, s{t[0]}, {LDS2}")
        E(f"s_cmp_ge_u32 s{sSIG}, 14\ns_cbranch_scc1 {Lo}\ns_cmp_ge_u32 s{sSIG}, 8\ns_cbranch_scc1 {Ld}")
        E(f"s_cmp_eq_u32 s{M.sW}, 3\ns_cbranch_scc1 {Lk}")
        E(f"v_bfe_u32 v{B}, v0, 2, 2\nv_lshrrev_b32 v{B+1}, 5, v0\nv_lshl_add_u32 v{B}, v{B+1}, 3, v{B}\nv_mul_u32_u24 v{B}, 192, v{B}")
        E(f"v_bfe_u32 v{B+1}, v0, 4, 1\nv_lshl_add_u32 v{B}, v{B+1}, 5, v{B}\nv_and_b32 v{B+1}, 1, v0\nv_lshl_add_u32 v{B}, v{B+1}, 4, v{B}")
        E(f"v_bfe_u32 v{B+1}, v0, 1, 1\nv_lshl_add_u32 v{B}, v{B+1}, 3, v{B}\ns_lshl_b32 s{t[1]}, s{M.sW}, 6\ns_add_u32 s{t[1]}, s{t[1]}, {LDS2}\nv_add_u32 v{B}, s{t[1]}, v{B}")
        for ks in range(10):
            for rd in range(2): E(f"ds_read_b64_tr_b16 {v(B+8+4*ks+2*rd,2)}, v{B} offset:{(16*ks+4*rd)*192}")
        E(f"v_lshrrev_b32 v{B+1}, 5, v0\nv_lshlrev_b32 v{B+1}, 28, v{B+1}\nv_lshl_add_u32 v{B+1}, v0, 3, v{B+1}")
        E(f"s_mul_i32 s{t[1]}, s{M.sJ}, 3\ns_add_u32 s{t[1]}, s{t[1]}, s{M.sW}\ns_lshr_b32 s{t[2]}, s{sSIG}, 2\ns_lshl_b32 s{t[2]}, s{t[2]}, 10\ns_and_b32 s{t[5]}, s{sSIG}, 3")
        E(f"s_mul_i32 s{t[3]}, s{t[1]}, {80*KB}\ns_mul_i32 s{t[4]}, s{t[5]}, {20*KB}\ns_add_u32 s{t[3]}, s{t[3]}, s{t[4]}\ns_add_u32 s{t[3]}, s{t[3]}, s{t[2]}\ns_add_u32 s{t[3]}, s{t[3]}, {WGU}")
        E(f"s_lshl_b32 s{t[4]}, s{t[1]}, 11\ns_add_u32 s{t[4]}, s{t[4]}, s{t[2]}\ns_lshl_b32 s{t[2]}, s{t[5]}, 8\ns_add_u32 s{t[4]}, s{t[4]}, s{t[2]}\ns_add_u32 s{t[4]}, s{t[4]}, {CSG}")
        E(f"v_mov_b32 v{B+2}, 0")
        for ks in range(10):
            for e in range(4): E(f"v_dot2c_f32_bf16 v{B+2}, s{sONE}, v{B+8+4*ks+e}")
        E("s_waitcnt vmcnt(0)")
        for ks in range(10):
            st(f"buffer_store_dwordx4 {v(B+8+4*ks,4)}, v{M.vL16}, {s(M.WS,4)}, s{t[3]} offen offset:{2048*(ks%2)} sc1")
            if ks % 2: E(f"s_add_u32 s{t[3]}, s{t[3]}, 4096")
        E(f"v_mov_b32 v{B+3}, v{B+2}\nv_permlane32_swap_b32 v{B+3}, v{B+2}\nv_add_f32 v{B+2}, v{B+3}, v{B+2}")
        split_hi_lo(E, B + 2, B + 3, B + 4, B + 6)
        st(f"buffer_store_dwordx2 {v(B+6,2)}, v{B+1}, {s(M.WS,4)}, s{t[4]} offen sc1")
        E(f"s_branch {Le}")
        E.place(Ld); E.hist = []
        E(f"v_bfe_u32 v{B}, v0, 2, 2\nv_lshrrev_b32 v{B+1}, 4, v0\nv_lshl_add_u32 v{B}, v{B+1}, 3, v{B}\nv_mul_u32_u24 v{B}, 160, v{B}")
        E(f"v_add_u32 v{B}, s{t[0]}, v{B}\nv_and_b32 v{B+2}, 3, v0\nv_lshl_add_u32 v{B+1}, v{B+2}, 3, v{B}\nv_lshl_add_u32 v{B}, v{B+2}, 5, v{B}")
        for nt in range(5):
            for rd in range(2): E(f"ds_read_b64_tr_b16 {v(B+8+4*nt+2*rd,2)}, v{B+1 if nt == 4 else B} offset:{4*rd*160 + (128 if nt == 4 else 8*nt)}")
        E(f"s_mul_i32 s{t[1]}, s{sU}, 21846\ns_lshr_b32 s{t[1]}, s{t[1]}, 16\ns_mul_i32 s{t[3]}, s{t[1]}, 3\ns_sub_u32 s{t[3]}, s{sU}, s{t[3]}")
        E(f"s_lshl_b32 s{t[3]}, s{t[3]}, 2\ns_and_b32 s{t[4]}, s{t[1]}, 3\ns_add_u32 s{t[3]}, s{t[3]}, s{t[4]}\ns_mul_i32 s{t[3]}, s{t[3]}, {5*KB}")
        E(f"s_lshr_b32 s{t[4]}, s{t[1]}, 2\ns_mul_i32 s{t[4]}, s{t[4]}, {60*KB}\ns_add_u32 s{t[3]}, s{t[3]}, s{t[4]}")
        E(f"s_mul_i32 s{t[4]}, s{M.sNB}, {240*KB}\ns_add_u32 s{t[3]}, s{t[3]}, s{t[4]}\ns_add_u32 s{t[3]}, s{t[3]}, {WD}\ns_add_u32 s{t[4]}, s{t[3]}, 4096")
        E("s_waitcnt vmcnt(0)")
        for nt in range(5):
            st(f"buffer_store_dwordx4 {v(B+8+4*nt,4)}, v{M.vL16}, {s(M.WS,4)}, s{t[4] if nt == 4 else t[3]} offen offset:{1024*(nt%4)} sc1")
        E(f"s_branch {Le}")
        E.place(Lo); E.hist = []
        C = B + 40
        E(f"v_lshrrev_b32 v{B+2}, 4, v0\nv_and_b32 v{B+3}, 1, v{B+2}\nv_lshrrev_b32 v{B+4}, 5, v0\nv_mul_u32_u24 v{B+5}, 20, v{B+4}\nv_lshl_add_u32 v{B+5}, v{B+3}, 3, v{B+5}")
        E(f"v_bfe_u32 v{B}, v0, 2, 2\nv_add_u32 v{B+5}, v{B+5}, v{B}\nv_mul_u32_u24 v{B+5}, 160, v{B+5}\nv_add_u32 v{B+5}, s{t[0]}, v{B+5}")
        E(f"v_and_b32 v{B+6}, 3, v0\nv_mul_u32_u24 v{B}, 160, v{B}\nv_add_u32 v{B+7}, s{t[0]}, v{B}")
        E(f"v_lshl_add_u32 v{B}, v{B+6}, 5, v{B+5}\nv_lshl_add_u32 v{B+1}, v{B+6}, 3, v{B+5}")
        E(f"v_lshl_add_u32 v{C}, v{B+6}, 5, v{B+7}\nv_lshl_add_u32 v{C}, v{B+2}, 3, v{C}\nv_lshl_add_u32 v{C+1}, v{B+6}, 3, v{B+7}")
        for nt in range(5):
            for rd in range(2): E(f"ds_read_b64_tr_b16 {v(B+8+4*nt+2*rd,2)}, v{B+1 if nt == 4 else B} offset:{4*rd*160 + (128 if nt == 4 else 8*nt)}")
        for rd in range(2): E(f"ds_read_b64_tr_b16 {v(B+28+2*rd,2)}, v{C} offset:{(16, 36)[rd]*160}")
        for rd in range(2): E(f"ds_read_b64_tr_b16 {v(B+32+2*rd,2)}, v{C+1} offset:{(16, 36)[rd]*160 + 128}")
        E(f"v_and_b32 v{C+2}, 15, v0\nv_lshlrev_b32 v{C+2}, 4, v{C+2}\nv_mul_u32_u24 v{C+3}, {10*KB}, v{B+4}\nv_lshl_add_u32 v{C+3}, v{B+3}, 8, v{C+3}\nv_add_u32 v{C+3}, v{C+3}, v{C+2}")
        E(f"v_lshl_add_u32 v{C+4}, v{B+2}, 10, v{C+2}\nv_lshl_add_u32 v{C+5}, v{B+2}, 28, v{C+2}")
        E(f"s_lshr_b32 s{t[1]}, s{sU}, 2\ns_mul_i32 s{t[1]}, s{t[1]}, {25*KB}\ns_mul_i32 s{t[3]}, s{M.sNB}, {100*KB}\ns_add_u32 s{t[1]}, s{t[1]}, s{t[3]}\ns_add_u32 s{t[1]}, s{t[1]}, {WO}")
        E(f"s_lshr_b32 s{t[3]}, s{M.sW}, 1\ns_mul_i32 s{t[3]}, s{t[3]}, {5*KB}\ns_and_b32 s{t[4]}, s{M.sW}, 1\ns_lshl_b32 s{t[4]}, s{t[4]}, 9\ns_add_u32 s{t[3]}, s{t[3]}, s{t[4]}")
        E(f"s_add_u32 s{t[3]}, s{t[3]}, s{t[1]}\ns_add_u32 s{t[4]}, s{t[3]}, 4096")
        E(f"s_lshl_b32 s{t[5]}, s{M.sW}, 8\ns_add_u32 s{t[5]}, s{t[5]}, s{t[1]}\ns_add_u32 s{t[5]}, s{t[5]}, {20*KB}\ns_add_u32 s{t[6]}, s{t[5]}, 4096")
        E("s_waitcnt vmcnt(0)")
        for nt in range(5):
            st(f"buffer_store_dwordx4 {v(B+8+4*nt,4)}, v{C+3}, {s(M.WS,4)}, s{t[4] if nt == 4 else t[3]} offen offset:{1024*(nt%4)} sc1")
        st(f"buffer_store_dwordx4 {v(B+28,4)}, v{C+4}, {s(M.WS,4)}, s{t[5]} offen sc1")
        st(f"buffer_store_dwordx4 {v(B+32,4)}, v{C+5}, {s(M.WS,4)}, s{t[6]} offen sc1")
        E.place(Le); E.hist = []; E.vm_done = E.vm_n
        E("s_nop 1")
```

```python
import sys, math, struct
from emit import *
from layout import *
from startup2 import Startup, sTK, vTK, sONE, sRHO, OOB
KNAME = "interleave_layers__sliding_block__glu_gated_geglu__prompt_kernel"

def f2u(x): return hex(struct.unpack("<I", struct.pack("<f", x))[0])

WS = 4; OUT = 8; XIN = 12
sR, sJ, sW, sTH, sNB = 16, 17, 18, 19, 20
sWQ, sWGU, sWO, sWD, sLW = 21, 22, 23, 24, 25
sXB, sKVme, sOme, sHme = 26, 27, 28, 29
sT0 = 30
sMASK = 32
sRET = 64
sT16 = 66; sT16H = 70
sA, sB, sC, sD, sE_, sF = 74, 75, 76, 77, 78, 79
sFL = 80
sHAL = 89
sKP, sKC, sKT = 91, 92, 3
sRM = 93
sTS = 94
sTP, sTC, sWP, sWC = 98, 99, 100, 101
sP = 2
vL16, vL16b, vL16c = 1, 2, 3
vU = 4; vPOS = 5; vST = 6; vCS = 7; vSIG = 8; vONE = 9
vRW = 10
vXW = 14; vXW5 = 15; vO4 = 16; vSW = 17; vRSTD = 18; vT = 19
vRES = 20
vNM = 40
vC1, vC2, vIV = 44, 45, 46
vKR = 47
vRM, vRM5, vTS, vTS2 = 250, 251, 252, 253
SLOT = 5248; ONES = 12 * SLOT; EPS = 1e-5
AG = 256

class Pool:
    def __init__(self, quads=()): self.free = list(quads)
    def get(self): return self.free.pop(0)
    def put(self, q): self.free.append(q)
    def add(self, qs): self.free += list(qs)

def spread(ev, groups, start, step):
    for i, g in enumerate(groups): ev.setdefault(int(start + i * step), []).append(g)

class Gen:
    def __init__(self, stop=99, stamps=False, mapping="mix", opts=None):
        self.E = Emit(); self.stop = stop; self.stamps = stamps; self.mapping = mapping
        self.nst = 0; self.stnames = []; self.tail = []; self.o = opts or {}
    def do(self, g):
        if callable(g): return g()
        return self.E(g)
    def stamp(self, name):
        if not self.stamps: return
        E = self.E
        E(f"s_memrealtime {s(sTS,2)}\ns_memtime {s(sTS+2,2)}"); E.wait_smem()
        E(f"v_writelane_b32 v{vTS}, s{sTS}, {self.nst}\nv_writelane_b32 v{vTS2}, s{sTS+2}, {self.nst}")
        self.nst += 1; self.stnames.append(name)
    def dma4(self, sbase, goff, ldsoff, rec=None, fl="sc1"):
        g = [f"s_add_u32 m0, s{sLW}, {ldsoff}\ns_add_u32 s{sT0}, s{sbase}, {goff}\nbuffer_load_dwordx4 v{vL16}, {s(WS,4)}, s{sT0} offen {fl} lds"]
        for i in range(1, 4): g.append(f"buffer_load_dwordx4 v{vL16}, {s(WS,4)}, s{sT0} offen offset:{1024*i} {fl} lds")
        if rec is not None:
            last = g[3]
            g[3] = lambda: rec.append(self.E(last))
        return g
    def wread(self, dst, ldsaddr):
        return f"ds_read_b128 {R(dst,4)}, v{vL16+(ldsaddr >> 16)} offset:{ldsaddr & 0xffff}"
    def signal(self, sreg, imm, tok):
        def fn():
            self.E.wait(vm=tok() if callable(tok) else tok)
            self.E(f"buffer_atomic_add v{vONE}, v{vSIG}, {s(WS,4)}, s{sreg} offen offset:{imm} sc1")
        return fn
    def poll_issue(self, sreg, imm):
        return f"s_load_dword s{sP}, {s(WS,2)}, s{sreg} offset:{imm} glc"
    def poll_check(self, sreg, imm, thr, slp=4):
        def fn():
            E = self.E
            Ls, Lb = E.label("SP"), E.label("BK")
            E.wait_smem()
            E(f"s_cmp_ge_u32 s{sP}, {thr}\ns_cbranch_scc0 {Ls}")
            E.place(Lb)
            self.tail.append(f"{Ls}:\ns_mov_b32 s{sF}, 0x200000\n{Ls}_l:\ns_sleep {slp}\ns_load_dword s{sP}, {s(WS,2)}, s{sreg} offset:{imm} glc\n"
                             f"s_waitcnt lgkmcnt(0)\ns_cmp_ge_u32 s{sP}, {thr}\ns_cbranch_scc1 {Lb}\ns_sub_u32 s{sF}, s{sF}, 1\ns_cmp_lg_u32 s{sF}, 0\n"
                             f"s_cbranch_scc1 {Ls}_l\ns_branch {Lb}")
        return fn
    def poll_block(self, sreg, imm, thr):
        self.E(self.poll_issue(sreg, imm)); self.poll_check(sreg, imm, thr)()
    def T(self, kind, L): return 1024 * kind + 4 * L
    def prologue(self):
        E = self.E
        kernel_header(E, KNAME)
        Lgo = E.label("GO")
        E(f"s_cmp_lt_u32 s2, 256\ns_cbranch_scc1 {Lgo}\ns_endpgm")
        E.place(Lgo)
        if self.stamps: E(f"s_memrealtime {s(sTS,2)}\ns_memtime {s(sTS+2,2)}")
        E(f"s_load_dwordx2 {s(WS,2)}, s[0:1], 72\ns_load_dwordx2 {s(OUT,2)}, s[0:1], 56\ns_load_dwordx2 {s(XIN,2)}, s[0:1], 0")
        E("s_load_dwordx4 s[80:83], s[0:1], 8\ns_load_dwordx4 s[84:87], s[0:1], 32\ns_load_dwordx2 s[88:89], s[0:1], 48")
        Lp = E.label("PC")
        E(f"s_getpc_b64 {s(sRET,2)}"); E.place(Lp)
        E(f"s_lshr_b32 s{sA}, s2, 3\nv_lshl_add_u32 v{vT}, v0, 5, s{sA}\nv_lshlrev_b32 v{vT}, 7, v{vT}\nv_min_u32 v{vT}, main_end-{Lp}-4, v{vT}")
        E(f"global_load_dword v255, v{vT}, {s(sRET,2)}")
        E(f"s_mov_b32 s{WS+2}, {WS_BYTES}\ns_mov_b32 s{WS+3}, 0x00020000")
        for b in (OUT, XIN): E(f"s_mov_b32 s{b+2}, {2048*640*2}\ns_mov_b32 s{b+3}, 0x00020000")
        E(f"v_lshrrev_b32 v{vT}, 6, v0\nv_and_b32 v0, 63, v0\nv_readfirstlane_b32 s{sW}, v{vT}")
        E(f"s_and_b32 s{sA}, s2, 7\ns_lshr_b32 s{sB}, s2, 3")
        if self.mapping == "mix":
            E(f"s_lshr_b32 s{sC}, s{sA}, 1\ns_lshl_b32 s{sC}, s{sC}, 2\ns_lshr_b32 s{sR}, s{sB}, 3\ns_add_u32 s{sR}, s{sR}, s{sC}")
            E(f"s_and_b32 s{sC}, s{sA}, 1\ns_lshl_b32 s{sC}, s{sC}, 3\ns_and_b32 s{sJ}, s{sB}, 7\ns_add_u32 s{sJ}, s{sJ}, s{sC}")
        else:
            E(f"s_lshr_b32 s{sR}, s{sB}, 4\ns_lshl_b32 s{sC}, s{sA}, 1\ns_add_u32 s{sR}, s{sR}, s{sC}\ns_and_b32 s{sJ}, s{sB}, 15")
        E(f"s_and_b32 s{sTH}, s{sJ}, 1\ns_lshr_b32 s{sNB}, s{sJ}, 1\ns_lshl_b32 s{sLW}, s{sW}, 12")
        E(f"v_lshlrev_b32 v{vL16}, 4, v0")
        if self.stamps: E(f"v_mov_b32 v{vTS}, 0\nv_mov_b32 v{vTS2}, 0\nv_mov_b32 v254, s2")
        E.wait_smem()
        if self.stamps:
            E(f"v_writelane_b32 v{vTS}, s{sTS}, 0\nv_writelane_b32 v{vTS2}, s{sTS+2}, 0")
            self.nst = 1; self.stnames.append("entry")
        S = self.S = Startup(self, sys.modules[__name__])
        S.roles(80, 82, 84, 86, 88)
        S.s1_load(); S.x_touch()
        E(f"v_mov_b32 v{vTK+1}, {EPOCH}\nbuffer_load_dword v{vTK}, v{vTK+1}, {s(WS,4)}, 0 offen sc1")
        self.stamp("st S1 issued")
        E(f"s_mul_i32 s{sWQ}, s{sJ}, {160*KB}\ns_add_u32 s{sWQ}, s{sWQ}, s{sLW}\ns_add_u32 s{sWQ}, s{sWQ}, {WQ}")
        E(f"s_lshl_b32 s{sA}, s{sR}, 2\ns_add_u32 s{sA}, s{sA}, s{sW}\ns_mul_i32 s{sXB}, s{sA}, {40*KB}")
        E(f"v_min_u32 v{vSIG}, 1, v0\nv_lshlrev_b32 v{vSIG}, 28, v{vSIG}\nv_mov_b32 v{vONE}, 1")
        self.prologue2()
        S.s2_addrs()
    def masks(self):
        r = []
        for i in range(16):
            m = 0
            for l in range(64):
                if (i & 3) + 8 * (i >> 2) + 4 * (l >> 5) <= (l & 31): m |= 1 << l
            r.append(f"s_mov_b32 s{sMASK+2*i}, {hex(m & 0xffffffff)}\ns_mov_b32 s{sMASK+2*i+1}, {hex(m >> 32)}")
        return r
    def x_bounce(self, T):
        E = self.E; S = self.S
        XA = 96; XR = 100; TM = 104; PA, PD = 240, 242
        E(f"v_lshrrev_b32 v48, 3, v0\nv_mul_u32_u24 v48, 1280, v48\nv_and_b32 v49, 7, v0\nv_lshrrev_b32 v50, 4, v0\nv_xor_b32 v49, v49, v50\nv_lshl_add_u32 v{XA}, v49, 4, v48")
        E(f"v_xor_b32 v{XA+1}, 64, v{XA}\nv_add_u32 v{XA+2}, {2*9216}, v{XA}\nv_add_u32 v{XA+3}, {3*9216}, v{XA+1}\nv_add_u32 v{XA+1}, 9216, v{XA+1}")
        E(f"v_and_b32 v48, 31, v0\nv_lshrrev_b32 v49, 5, v0\nv_bfe_u32 v50, v0, 1, 3\nv_xor_b32 v49, v49, v50\nv_lshlrev_b32 v49, 4, v49\nv_lshl_add_u32 v48, v48, 7, v49")
        E(f"v_add_u32 v{XR}, s{sLW}, v48")
        for k in range(1, 4): E(f"v_xor_b32 v{XR+k}, {32*k}, v{XR}")
        E(f"s_lshl_b32 s{sA}, s{sJ}, 11\ns_add_u32 s{sA}, s{sA}, {F1}\ns_sub_u32 s{sB}, 15, s{sR}\ns_lshl_b32 s{sB}, s{sB}, 11\ns_add_u32 s{sB}, s{sB}, {F1 + 15*128}")
        E(f"v_lshl_add_u32 v48, v0, 7, s{sA}\nv_mov_b32 v49, s{sB}\nv_cmp_gt_u32 vcc, 16, v0\nv_cndmask_b32 v{PA}, v49, v48, vcc")
        E(f"s_lshl_b32 s{sA}, s{sNB}, 12\ns_add_u32 s{sA}, s{sA}, {F2}\nv_and_b32 v48, 31, v0\nv_lshl_add_u32 v{PA+1}, v48, 7, s{sA}")
        E(f"v_mov_b32 v{T}, 0\nv_mov_b32 v{T+1}, 0")
        self.stamp("st consts")
        S.s1_proc()
        self.stamp("st S1 stored")
        tok = []
        def dma(ch):
            E(f"s_add_u32 m0, s{sLW}, {16*KB*(ch%4)}\ns_add_u32 s{sE_}, s{sXB}, {128*ch}")
            for i in range(4): t = E(f"buffer_load_dwordx4 v{XA+i}, {s(XIN,4)}, s{sE_} offen offset:{1024*i} lds")
            tok.append(t)
        dma(0); dma(1)
        E(f"s_mov_b32 s{sA}, 0x9e3779b1\nv_mul_lo_u32 v{vTK}, v{vTK}, s{sA}\nv_add_u32 v{vTK}, 0x7f4a7c15, v{vTK}\nv_xor_b32 v{vTK+1}, 0x5bd1e995, v{vTK}")
        E(f"v_readfirstlane_b32 s0, v{vTK}")
        E.wait(vm=tok[0] - 3); E("s_barrier"); S.flag1()
        self.stamp("st F1")
        dma(2); dma(3)
        for ch in range(10):
            E.wait(vm=tok[ch])
            for k in range(4): E(f"ds_read_b128 {v(TM+4*k,4)}, v{XR+k} offset:{16*KB*(ch%4)}")
            for k in range(4): E(f"ds_read_b128 {a(16*ch+4*k,4)}, v{XR+k} offset:{16*KB*(ch%4)}")
            if ch < 8: S.tok2 = E(S.s2_load(ch))
            if ch == self.o.get("f1poll", 8):
                Lw = E.label("PW")
                E(f"s_cmp_lg_u32 s{sW}, 0\ns_cbranch_scc1 {Lw}")
                E(S.vpoll_issue(PA, PD), count=False); E.place(Lw)
            for e in range(8): E(f"v_dot2c_f32_bf16 v{T}, s{sONE}, v{TM+e}\nv_dot2c_f32_bf16 v{T+1}, v{TM+e}, v{TM+e}")
            E.drain(vm=False)
            if ch + 4 < 10: dma(ch + 4)
            for e in range(8, 16): E(f"v_dot2c_f32_bf16 v{T}, s{sONE}, v{TM+e}\nv_dot2c_f32_bf16 v{T+1}, v{TM+e}, v{TM+e}")
        self.stamp("st x done")
        E("s_waitcnt vmcnt(0)"); E.vm_done = E.vm_n
        Lw = E.label("PW")
        E(f"s_cmp_lg_u32 s{sW}, 0\ns_cbranch_scc1 {Lw}")
        S.vpoll_check(PA, PD, 8)()
        E.place(Lw)
        E("s_barrier")
        self.stamp("WQ synced")
    def prologue2(self):
        E = self.E
        E(f"s_mul_i32 s{sWGU}, s{sJ}, {240*KB}\ns_add_u32 s{sWGU}, s{sWGU}, s{sLW}\ns_add_u32 s{sWGU}, s{sWGU}, {WGU}")
        E(f"s_mul_i32 s{sWO}, s{sNB}, {100*KB}\ns_mul_i32 s{sA}, s{sW}, {25*KB}\ns_add_u32 s{sWO}, s{sWO}, s{sA}\ns_add_u32 s{sWO}, s{sWO}, {WO}")
        E(f"s_mul_i32 s{sWD}, s{sNB}, {240*KB}\ns_mul_i32 s{sA}, s{sW}, {60*KB}\ns_add_u32 s{sWD}, s{sWD}, s{sA}\ns_add_u32 s{sWD}, s{sWD}, {WD}")
        E(f"s_lshl_b32 s{sA}, s{sR}, 2\ns_add_u32 s{sA}, s{sA}, s{sW}")
        E(f"s_lshl_b32 s{sB}, s{sJ}, 6\ns_add_u32 s{sC}, s{sB}, s{sA}\ns_mul_i32 s{sKVme}, s{sC}, {5*KB}")
        E(f"s_lshr_b32 s{sKP}, s{sC}, 1\ns_lshl_b32 s{sKP}, s{sKP}, 7\ns_add_u32 s{sKP}, s{sKP}, {FLAGS}")
        E(f"s_mul_i32 s{sHme}, s{sA}, {96*KB}\ns_mul_i32 s{sC}, s{sJ}, {6*KB}\ns_add_u32 s{sHme}, s{sHme}, s{sC}")
        E(f"s_lshr_b32 s{sC}, s{sJ}, 2\ns_mul_i32 s{sOme}, s{sC}, {10*KB}\ns_add_u32 s{sOme}, s{sOme}, s{sXB}")
        for i in range(9):
            E(f"s_cmp_lt_u32 s{sA}, {8-i}\ns_cselect_b32 s{sFL+i}, 0x3f803f80, 0x3f800000" if False else
              f"s_cmp_lt_u32 s{sA}, {8-i}\ns_cselect_b32 s{sFL+i}, 0x3f80, 0\ns_or_b32 s{sFL+i}, s{sFL+i}, 1.0")
        E(f"s_lshl_b32 s{sC}, s{sR}, 2\ns_lshl_b32 s{sD}, s{sW}, 1\ns_add_u32 s{sC}, s{sC}, s{sD}")
        E(f"s_add_u32 s{sD}, s{sC}, s{sB}\ns_sub_u32 s{sD}, s{sD}, 8\ns_mul_i32 s{sHAL}, s{sD}, {5*KB}\ns_add_u32 s{sHAL}, s{sHAL}, {KV}")
        E(f"s_lshl_b32 s{sKC}, s{sD}, 6\ns_add_u32 s{sKC}, s{sKC}, {FLAGS}")
        E(f"s_cmp_lt_u32 s{sC}, 8\ns_cselect_b32 s{sHAL}, s{sWQ}, s{sHAL}\ns_cselect_b32 s{sHAL+1}, 0, {KV_STRIDE}")
        E(f"s_cselect_b32 s{sKC}, s{sKP}, s{sKC}\ns_cselect_b32 s{sKT}, 0, 2")
        E(f"s_lshl_b32 s{sA}, s{sR}, 13\ns_add_u32 s{sA}, s{sA}, {GCNT}")
        E(f"s_lshr_b32 s{sB}, s{sW}, 1\ns_lshl_b32 s{sC}, s{sB}, 2\ns_lshr_b32 s{sD}, s{sJ}, 2\ns_add_u32 s{sC}, s{sC}, s{sD}\ns_lshl_b32 s{sC}, s{sC}, 7\ns_add_u32 s{sTP}, s{sA}, s{sC}")
        E(f"s_lshl_b32 s{sC}, s{sTH}, 2\ns_add_u32 s{sC}, s{sC}, s{sW}\ns_lshl_b32 s{sC}, s{sC}, 7\ns_add_u32 s{sTC}, s{sA}, s{sC}")
        E(f"s_add_u32 s{sA}, s{sA}, {40*128}\ns_lshl_b32 s{sC}, s{sTH}, 1\ns_add_u32 s{sC}, s{sC}, s{sB}\ns_lshl_b32 s{sC}, s{sC}, 7\ns_add_u32 s{sWP}, s{sA}, s{sC}")
        E(f"s_lshl_b32 s{sC}, s{sW}, 7\ns_add_u32 s{sWC}, s{sA}, s{sC}")
        for i in range(4):
            E(f"s_add_u32 s{sA}, s{sW}, {1+i}\ns_and_b32 s{sA}, s{sA}, 3\ns_lshr_b32 s{sB}, s{sA}, 1\ns_and_b32 s{sC}, s{sA}, 1\ns_lshl_b32 s{sC}, s{sC}, 8")
            E(f"s_lshl_b32 s{sD}, s{sR}, 1\ns_add_u32 s{sD}, s{sD}, s{sTH}\ns_lshl_b32 s{sD}, s{sD}, 1\ns_add_u32 s{sB}, s{sB}, s{sD}")
            E(f"s_mul_i32 s{sT16+i}, s{sB}, {40*KB}\ns_add_u32 s{sT16+i}, s{sT16+i}, s{sC}")
            E(f"s_mul_i32 s{sT16H+i}, s{sB}, {96*KB}\ns_add_u32 s{sT16H+i}, s{sT16H+i}, s{sC}")
            E(f"s_mul_i32 s{sB}, s{sW}, {24*KB}\ns_add_u32 s{sT16H+i}, s{sT16H+i}, s{sB}")
            if i < 3:
                E(f"s_mul_i32 s{sA}, s{sA}, {15*KB}\ns_add_u32 s{sA}, s{sA}, {5*KB*i}\nv_add_u32 v{vRW+i}, s{sA}, v{vL16}")
        E(f"s_mul_i32 s{sA}, s{sW}, {15*KB}\nv_add_u32 v{vRW+3}, s{sA}, v{vL16}")
        t0, t1, t2 = 48, 49, 50
        E(f"v_add_u32 v{vL16b}, 0x10000, v{vL16}\nv_add_u32 v{vL16c}, 0x20000, v{vL16}")
        E(f"v_lshrrev_b32 v{t0}, 4, v0\nv_and_b32 v{t1}, 15, v0")
        E(f"v_lshlrev_b32 v{t2}, 9, v{t0}\nv_lshl_add_u32 v{vU}, v{t1}, 4, v{t2}")
        E(f"v_lshlrev_b32 v{t2}, 10, v{t0}\nv_lshl_add_u32 v{vXW}, v{t1}, 4, v{t2}")
        E(f"v_lshrrev_b32 v{t2}, 1, v{t0}\nv_lshlrev_b32 v{t2}, 9, v{t2}\nv_lshl_add_u32 v{vXW5}, v{t1}, 4, v{t2}")
        E(f"v_and_b32 v{t2}, 1, v{t0}\nv_lshl_add_u32 v{vXW5}, v{t2}, 3, v{vXW5}")
        E(f"v_lshlrev_b32 v{vSW}, 3, v{t1}\nv_lshl_add_u32 v{vSW}, v{t0}, 28, v{vSW}")
        E(f"v_mul_u32_u24 v{t2}, 1280, v{t1}\nv_lshl_add_u32 v{vRM}, v{t0}, 5, v{t2}\nv_lshl_add_u32 v{vRM5}, v{t0}, 3, v{t2}")
        E(f"s_lshl_b32 s{sA}, s{sR}, 1\ns_add_u32 s{sA}, s{sA}, s{sTH}\ns_lshl_b32 s{sA}, s{sA}, 2\ns_add_u32 s{sA}, s{sA}, s{sW}")
        E(f"s_mul_i32 s{sA}, s{sA}, {16*1280}\ns_mul_i32 s{sB}, s{sNB}, 160\ns_add_u32 s{sRM}, s{sA}, s{sB}")
        E(f"v_lshrrev_b32 v{t0}, 5, v0\nv_and_b32 v{t1}, 31, v0")
        E(f"v_lshlrev_b32 v{t2}, 2, v{t0}\nv_xor_b32 v{t2}, v{t2}, v{t1}\nv_lshlrev_b32 v{t2}, 4, v{t2}\nv_lshl_add_u32 v{vPOS}, v{t0}, 9, v{t2}")
        E(f"v_lshlrev_b32 v{t2}, 3, v{t1}\nv_lshl_add_u32 v{vCS}, v{t0}, 9, v{t2}")
        E(f"s_lshl_b32 s{sA}, s{sW}, 8\nv_lshl_add_u32 v{vST}, v{t0}, 12, v{t2}\nv_add_u32 v{vST}, s{sA}, v{vST}")
        E(f"v_lshlrev_b32 v{t2}, 4, v{t1}\nv_lshl_add_u32 v{vO4}, v{t0}, 3, v{t2}")
        E(f"s_mul_i32 s{sA}, s{sW}, {SLOT}\nv_add_u32 v{vKR}, s{sA}, v{vPOS}")
    def load_residual(self, t):
        E = self.E
        E(f"buffer_load_dwordx4 {v(t,4)}, v{vRM}, {s(XIN,4)}, s{sRM} offen")
        E(f"buffer_load_dwordx4 {v(t+4,4)}, v{vRM}, {s(XIN,4)}, s{sRM} offen offset:16")
        E(f"buffer_load_dwordx2 {v(t+8,2)}, v{vRM5}, {s(XIN,4)}, s{sRM} offen offset:128")
        return sum([[f"v_lshlrev_b32 v{vRES+2*i}, 16, v{t+i}", f"v_and_b32 v{vRES+2*i+1}, 0xffff0000, v{t+i}"] for i in range(10)], [])
    def stat_loads(self, idx, t):
        E = self.E
        E(f"s_lshl_b32 s{sA}, s{sR}, 13\ns_add_u32 s{sA}, s{sA}, {STAT + idx*128*KB}")
        for q in range(4): E(f"buffer_load_dwordx2 {v(t+2*q,2)}, v{vST}, {s(WS,4)}, s{sA} offen offset:{1024*q} sc1")
    def stat_ops(self, t):
        return [f"v_add_f32 v{t}, v{t}, v{t+2}", f"v_add_f32 v{t+1}, v{t+1}, v{t+3}", f"v_add_f32 v{t+4}, v{t+4}, v{t+6}", f"v_add_f32 v{t+5}, v{t+5}, v{t+7}",
              f"v_add_f32 v{t}, v{t}, v{t+4}", f"v_add_f32 v{t+1}, v{t+1}, v{t+5}", f"v_mov_b32 v{t+2}, v{t}", f"v_mov_b32 v{t+3}, v{t+1}",
              f"v_permlane32_swap_b32 v{t+2}, v{t}", f"v_permlane32_swap_b32 v{t+3}, v{t+1}",
              f"v_add_f32 v{t}, v{t}, v{t+2}", f"v_add_f32 v{t+1}, v{t+1}, v{t+3}",
              f"v_mul_f32 v{t}, {f2u(-1/640)}, v{t}", f"v_mul_f32 v{t+1}, {f2u(1/640)}, v{t+1}",
              f"v_fma_f32 v{t+1}, -v{t}, v{t}, v{t+1}", f"v_cvt_pk_bf16_f32 v{vNM}, v{t}, v{t}", f"v_max_f32 v{t+1}, 0, v{t+1}",
              f"v_and_b32 v{t+2}, 0xffff0000, v{vNM}", f"v_add_f32 v{vIV}, {f2u(EPS)}, v{t+1}", f"v_sub_f32 v{t+2}, v{t}, v{t+2}",
              f"v_rsq_f32 v{vRSTD}, v{vIV}", f"v_cvt_pk_bf16_f32 v{vNM+1}, v{t+2}, 0", f"v_mov_b32 v{vNM+2}, v{vNM}", f"v_mov_b32 v{vNM+3}, v{vNM+1}"]
    def cs_loads(self, base, stride, ntile, dst):
        g = []
        for t in range(ntile):
            for q in range(2):
                p = ""
                if t == 0 and q == 0: p = f"s_mul_i32 s{sD}, s{sJ}, {stride}\ns_add_u32 s{sD}, s{sD}, {base}\n"
                if t == 4 and q == 0: p = f"s_add_u32 s{sD}, s{sD}, 4096\n"
                g.append(p + f"buffer_load_dwordx2 {R(dst+4*t+2*q,2)}, v{vCS}, {s(WS,4)}, s{sD} offen offset:{1024*(t%4)+256*q} sc1")
        return g
    def xloads(self, base):
        g = []
        for ks in range(40):
            t = f"s_add_u32 s{sE_}, s{sXB}, {base + 1024*ks}\n" if ks % 4 == 0 else ""
            g.append(t + f"buffer_load_dwordx4 {a(4*ks,4)}, v{vL16}, {s(WS,4)}, s{sE_} offen offset:{1024*(ks%4)} sc1")
        return g
    def wstream(self, items, pos0, allw, ring, ev=None, valu=None, pre=None, nvalu=4):
        E = self.E; LA = 6
        ev = ev or {}; valu = list(valu or []); pre = pre or {}
        f = pos0
        for sl, it in enumerate(items):
            for g in pre.get(sl, []): self.do(g)
            if it[0] == "cs":
                E(f"v_mfma_f32_32x32x16_bf16 {v(it[1],16)}, {R(it[2],4)}, {v(vNM,4)}, {v(it[1],16)}")
            else:
                acc, ks, first = it
                if f % 2 == 0: E.need(regs(R(ring + 4 * (f % LA), 4)) | regs(R(ring + 4 * ((f + 1) % LA), 4)) | regs(a(4 * ks, 4)))
                E(f"v_mfma_f32_32x32x16_bf16 {v(acc,16)}, {R(ring+4*(f%LA),4)}, {a(4*ks,4)}, {'0' if first else v(acc,16)}")
                if f + LA < len(allw): E(self.wread(ring + 4 * (f % LA), allw[f + LA]))
                f += 1
            for g in ev.get(sl, []): self.do(g)
            b = nvalu
            while valu and b > 0 and valu[0][0] <= sl:
                x = valu.pop(0)[1]
                if callable(x): x(); continue
                E(x); b -= 2 if x.startswith(TRANS) else 1
        assert max(list(ev) + list(pre) + [0]) < len(items), (max(list(ev) + list(pre)), len(items))
        for _, x in valu: self.do(x)
    @staticmethod
    def pair_items(acc, cs):
        return [(acc[sl & 1], sl >> 1, sl < 2) for sl in range(80)] + [("cs", acc[0], cs), ("cs", acc[1], cs + 4)]
    def p1(self, L):
        E = self.E; o = self.o
        ACC = [48, 64, 80, 96]; RING = 112; CS = 136
        KA, KB_, KV1, VA, VB = 152, 156, 160, 164, 168
        QA0, QB0, QA1, QB1 = 172, 176, 180, 184
        self.Q = (QA0, QB0, QA1, QB1)
        MK = self.MK = 188; VAD = self.VAD = [196, 205]; K1 = self.K1 = AG
        self.WOF = [AG + 160 + 4 * f for f in range(24)] + [244]
        xl = self.xloads(XT + 2 * L * XT_STRIDE)
        allw = [1024 * f for f in range(80)] + [1024 * (80 + 2 * k) for k in range(40)] + [1024 * (81 + 2 * k) for k in range(40)]
        tok = []
        if L == 0:
            resops = self.load_residual(160)
            self.x_bounce(152)
            dm = [self.dma4(sWQ, 16 * KB * c, 16 * KB * c, tok) for c in range(10)]
            for g in dm[0] + dm[1]: self.do(g)
            self.S.s2_proc()
            self.stamp("st S2 stored")
            late = sum(dm[2:], [])
        else:
            self.poll_block(sWC, 512 + 4 * (L - 1), 16)
            self.stamp("L1 P1 synced")
            self.stat_loads(2, 152)
            for g in xl[:16]: E(g)
            resops = []; late = self.wq_late; tok = self.wq_tok
        def ready(c): return lambda: (E.wait(vm=tok[c]), E("s_barrier"))
        if L: E.need(regs(a(0, 4)))
        ready(0)()
        for f in range(6): E(self.wread(RING + 4 * f, allw[f]))
        ev = {}; pre = {}
        so = self.stat_ops(152)
        if L == 0:
            for c in range(2, 5): pre[16 * c - 6] = [ready(c)]
            pre[26].append(self.S.flag2)
            spread(ev, late[:12] + self.cs_loads(CSQ, 4 * KB, 4, CS) + late[12:], 0, 1.8)
            spread(ev, self.masks(), 30, 2)
            so = so[6:]
        else:
            spread(ev, xl[16:], 0, 2)
            spread(ev, late, 50, 1.5)
        pre[74] = [ready(5)]
        self.wstream(self.pair_items(ACC[:2], CS), 0, allw, RING, ev, [(2, x) for x in so + resops], pre)
        self.stamp(f"L{L} P1 passA")
        def epi(G0, G1, dst, sc, at):
            r = []
            for G in range(G0, G1):
                b = ACC[0] + 4 * G
                r += [(at, f"v_mul_f32 v{b+i}, v{sc[G-G0]}, v{b+i}") for i in range(4)]
                r += [(at, f"v_cvt_pk_bf16_f32 v{dst[G-G0]+i}, v{b+2*i}, v{b+2*i+1}") for i in range(2)]
            return r
        kvg = KV + L * KV_STRIDE
        st = {}
        vKW = 214; vQS = 215
        def putA():
            E(f"s_add_u32 s{sA}, s{sKVme}, {kvg}\ns_add_u32 s{sB}, s{sA}, 4096")
            for reg, off in ((KA, 0), (KB_, 1024), (VA, 2048)):
                E(f"buffer_store_dwordx4 {v(reg,4)}, v{vPOS}, {s(WS,4)}, s{sA} offen offset:{off} sc1")
            st["A"] = E(f"buffer_store_dwordx4 {v(KV1,4)}, v{vPOS}, {s(WS,4)}, s{sB} offen sc1")
        ldsA = [f"ds_write_b128 v{vKW}, {v(reg,4)} offset:{off}" for reg, off in ((KA, 0), (KB_, 1024), (VA, 2048), (KV1, 4096 + 128))]
        def putB():
            E(f"s_add_u32 s{sA}, s{sKVme}, {kvg}")
            st["B"] = E(f"buffer_store_dwordx4 {v(VB,4)}, v{vPOS}, {s(WS,4)}, s{sA} offen offset:3072 sc1")
            E(f"ds_write_b128 v{vKW}, {v(VB,4)} offset:3072")
        qs = 20 ** -0.5 * math.log2(math.e)
        va = epi(0, 8, [KA, KA + 2, KV1, KB_, KB_ + 2, VA, VA + 2, KV1 + 2], [vRSTD] * 8, 1) + [(1, putA)]
        va += [(1, f"v_add_u32 v{vKW}, {8*SLOT}, v{vKR}"), (1, f"v_mul_f32 v{vQS}, {f2u(qs)}, v{vRSTD}")]
        t0, t1, t2 = 216, 217, 218
        cst = []
        for i in range(8):
            cst += [f"v_cndmask_b32 v{t0}, 0, -1, {s(sMASK+4*i,2)}", f"v_cndmask_b32 v{t1}, 0, -1, {s(sMASK+4*i+2,2)}",
                    f"v_and_b32 v{t0}, 0xffff, v{t0}", f"v_lshl_or_b32 v{MK+i}, v{t1}, 16, v{t0}"]
        cst += [f"v_lshrrev_b32 v{t0}, 5, v0", f"v_bfe_u32 v{t1}, v0, 2, 2", f"v_lshl_add_u32 v{t0}, v{t0}, 2, v{t1}",
                f"v_bfe_u32 v{t1}, v0, 4, 1", f"v_and_b32 v{t2}, 3, v0", f"v_lshl_add_u32 v{t1}, v{t1}, 2, v{t2}",
                f"v_and_b32 v{t2}, 1, v0", f"v_lshlrev_b32 v219, 2, v{t2}", f"v_xor_b32 v219, v219, v{t0}", f"v_lshlrev_b32 v219, 4, v219",
                f"v_lshl_add_u32 v219, v{t2}, 9, v219", f"v_bfe_u32 v220, v0, 1, 1", f"v_lshl_add_u32 v220, v220, 3, v219", f"v_add_u32 v221, {4096+128+8}, v219",
                f"v_mov_b32 v224, 128", f"v_mov_b32 v225, {SLOT}", f"v_subrev_u32 v226, v{vPOS}, v{vKR}"]
        cst += [f"s_lshl_b32 s{sC}, s{sW}, 7\ns_add_u32 s{sC}, s{sC}, {ONES+128}\nv_mov_b32 v227, s{sC}"]
        for hd in range(2):
            cst += [f"v_add_u32 v222, {2048+1024*hd}, v220", f"v_cmp_gt_u32 vcc, 4, v{t1}\nv_cndmask_b32 v222, v221, v222, vcc", f"v_add_u32 v222, v226, v222",
                    f"v_cmp_gt_u32 {s(sC,2)}, 4, v{t1}\nv_cmp_eq_u32 vcc, {4+hd}, v{t1}\ns_or_b64 vcc, vcc, {s(sC,2)}\nv_cndmask_b32 v{VAD[hd]}, v227, v222, vcc\nv_cndmask_b32 v223, v224, v225, vcc"]
            cst += [f"v_add_u32 v{VAD[hd]+i}, v{VAD[hd]+i-1}, v223" for i in range(1, 9)]
        cst += [f"v_mov_b32 v{228+i}, 0x3f803f80" for i in range(4)]
        cst += [f"ds_write_b128 v{vL16}, v[228:231] offset:{ONES}", f"ds_write_b128 v{vL16}, v[228:231] offset:{ONES+1024}"]
        va += [(1, x) for x in cst]
        va += epi(8, 10, [VB, VB + 2], [vRSTD] * 2, 43) + [(43, putB)] + epi(10, 12, [QA0, QA0 + 2], [vQS] * 2, 43)
        for i in range(9):
            va += [(52, f"v_accvgpr_write_b32 {R(K1+4*i+2)}, s{sFL+i}"), (52, f"v_accvgpr_write_b32 {R(K1+4*i+3)}, 0")]
        va += [(52, f"v_mov_b32 v{q+3}, 0") for q in (QA1, QB1)]
        items = [(ACC[2], k, k == 0) for k in range(40)] + [("cs", ACC[2], CS + 8)] + [(ACC[3], k, k == 0) for k in range(40)] + [("cs", ACC[3], CS + 12)]
        ev = {}; pre = {0: ["s_barrier"]}
        for c in range(6, 10): pre.setdefault(8 * (c - 5) - 6, []).append(ready(c))
        spread(ev, ldsA, 14, 1)
        wo = []
        for f in range(25):
            t = f"s_add_u32 s{sT0+1}, s{sWO}, {1024*f}\n" if f % 4 == 0 else ""
            wo.append(t + f"buffer_load_dwordx4 {R(self.WOF[f],4)}, v{vL16}, {s(WS,4)}, s{sT0+1} offen offset:{1024*(f%4)} sc1")
        if L == 0:
            ev.setdefault(0, []).append(self.S.vpoll_issue(241, 242))
            pre.setdefault(13, []).append(self.S.vpoll_check(241, 242, 16))
        spread(ev, wo, 13, 2)
        sa, pa, ca, sb = o.get("sa", 36), o.get("pa", 60), o.get("ca", 68), o.get("sb", 76)
        ev.setdefault(sa, []).append(self.signal(sKP, 8 * L, lambda: st["A"]))
        ev.setdefault(pa, []).append(self.poll_issue(sKC, 8 * L))
        pre.setdefault(ca, []).append(self.poll_check(sKC, 8 * L, f"s{sKT}"))
        hal = []; self.haltok = []
        for t in range(2):
            p = f"s_mul_i32 s{sD}, s{sW}, {2*SLOT}\n" + (f"s_add_u32 s{sHAL}, s{sHAL}, s{sHAL+1}\n" if L else "") if t == 0 else ""
            hal.append(p + f"s_add_u32 m0, s{sD}, {t*SLOT}\ns_add_u32 s{sE_}, s{sHAL}, {t*5*KB}\nbuffer_load_dwordx4 v{vL16}, {s(WS,4)}, s{sE_} offen sc1 lds")
            hal += [f"buffer_load_dwordx4 v{vL16}, {s(WS,4)}, s{sE_} offen offset:{1024*i} sc1 lds" for i in (1, 2)]
            hal.append(f"s_add_u32 m0, s{sD}, {t*SLOT+4096+128}\ns_add_u32 s{sE_}, s{sE_}, 4096\nbuffer_load_dwordx4 v{vL16}, {s(WS,4)}, s{sE_} offen sc1 lds")
        lasth = hal[-1]; hal[-1] = lambda: self.haltok.append(E(lasth))
        spread(ev, hal, ca, 1)
        ev.setdefault(sb, []).append(self.signal(sKP, 8 * L + 4, lambda: st["B"]))
        self.wstream(items, 80, allw, RING, ev, va, pre, nvalu=o.get("nvB", 5))
        self.stamp(f"L{L} P1 passB")
        for _, x in epi(12, 15, [QA1, QB0, QB0 + 2], [vQS] * 3, 0): E(x)
        E(f"s_mov_b32 vcc_lo, -1\ns_mov_b32 vcc_hi, 0")
        for i in range(2):
            E(f"v_cndmask_b32 v{QB1+i}, v{QA1+i}, v{QA1+3}, vcc")
            E(f"v_cndmask_b32 v{QA1+i}, 0, v{QA1+i}, vcc")
        for k in range(6):
            for hd, (q0, q1, k0) in enumerate(((QA0, QA1, KA), (QB0, QB1, KB_))):
                qa, ka = (q0 + k, k0 + k) if k < 4 else (q1 + k - 4, KV1 + k - 4)
                E(f"v_dot2_f32_bf16 v{216+hd}, v{qa}, v{ka}, {'0' if k == 0 else v(216+hd)}")
        E(f"s_mov_b32 s{sA}, {f2u(-1e38)}")
        for hd, q1 in enumerate((QA1, QB1)): E(f"v_cvt_pk_bf16_f32 v{q1+2}, s{sA}, -v{216+hd}")
    def att_defs(self):
        QA0, QB0, QA1, QB1 = self.Q
        d = self
        d.kread = lambda hd, i, dst: f"ds_read_b128 {R(dst,4)}, v{vKR} offset:{i*SLOT + 1024*hd}"
        d.k1read = lambda i: f"ds_read_b64 {R(self.K1+4*i,2)}, v{vKR} offset:{i*SLOT + 4096 + 128}"
        def smf(hd, i, dst, k0, C="0"):
            q0, q1 = (QA0, QA1) if hd == 0 else (QB0, QB1)
            return [f"v_mfma_f32_32x32x16_bf16 {v(dst,16)}, {R(k0,4)}, {v(q0,4)}, {C}",
                    f"v_mfma_f32_32x32x16_bf16 {v(dst,16)}, {R(self.K1+4*i,4)}, {v(q1,4)}, {v(dst,16)}"]
        d.smf = smf
        d.vreads = lambda hd, i, vf: [f"ds_read_b64_tr_b16 {R(vf+2*k,2)}, v{self.VAD[hd]+i} offset:{128*k}" for k in range(4)]
        def expops(src, p):
            r = []
            for k in range(8):
                r += [f"v_exp_f32 v{src+2*k}, v{src+2*k}", f"v_exp_f32 v{src+2*k+1}, v{src+2*k+1}"]
                if k: r.append(f"v_cvt_pk_bf16_f32 v{p+k-1}, v{src+2*k-2}, v{src+2*k-1}")
            r.append(f"v_cvt_pk_bf16_f32 v{p+7}, v{src+14}, v{src+15}")
            return r
        d.expops = expops
        d.mergeops = lambda dg, old: [f"v_cndmask_b32 v{dg+k}, v{old+k}, v{dg+k}, {s(sMASK+2*k,2)}" for k in range(16)]
        d.splitops = lambda p, pm: [f"v_bfi_b32 v{pm+k}, v{self.MK+k}, 0, v{p+k}" for k in range(8)] + [f"v_and_b32 v{p+k}, v{self.MK+k}, v{p+k}" for k in range(8)]
        d.pv = lambda O, vf, p, first: [f"v_mfma_f32_32x32x16_bf16 {v(O,16)}, {R(vf,4)}, {v(p,4)}, {'0' if first else v(O,16)}",
                                        f"v_mfma_f32_32x32x16_bf16 {v(O,16)}, {R(vf+4,4)}, {v(p+4,4)}, {v(O,16)}"]
    def fallback(self, hd):
        E = Emit(); O = self.O[hd]
        S, SD, NEG, P, PM, MX = 48, 64, 214, 230, 238 - 0, 246
        PM = 152 + 8
        K0 = AG + 136; VF = AG + 140; SP = AG + 104
        E.raw(f"FB{hd}:")
        E("s_waitcnt lgkmcnt(0)"); E.settle()
        for k in range(32): E(f"v_accvgpr_write_b32 {R(SP+k)}, v{48+k}")
        E(f"v_mov_b32 v{MX+2}, 0xff7fffff")
        for i in (8, 7, 6, 5, 4, 3, 2, 1, 0):
            E(self.kread(hd, i, K0))
            for x in self.smf(hd, i, SD if i == 8 else S, K0): E(x)
            if i == 8: continue
            src = S
            if i == 0:
                for x in self.mergeops(SD, S): E(x)
                src = SD
            for k in range(8): E(f"v_max3_f32 v{MX+2}, v{src+2*k}, v{src+2*k+1}, v{MX+2}")
        E(f"v_mov_b32 v{MX+3}, v{MX+2}\nv_permlane32_swap_b32 v{MX+3}, v{MX+2}\nv_max_f32 v{MX+2}, v{MX+2}, v{MX+3}")
        for k in range(16): E(f"v_sub_f32 v{NEG+k}, 0, v{MX+2}")
        for k in range(16): E(f"v_add_f32 v{SD+k}, v{NEG}, v{SD+k}")
        for x in self.expops(SD, P) + self.splitops(P, PM): E(x)
        for x in self.vreads(hd, 8, VF) + self.pv(O, VF, P, True): E(x)
        E.settle()
        for x in self.vreads(hd, 0, VF) + self.pv(O, VF, PM, False): E(x)
        for i in range(7, 0, -1):
            E.settle()
            E(self.kread(hd, i, K0))
            for x in self.vreads(hd, i, VF) + self.smf(hd, i, S, K0, v(NEG, 16)) + self.expops(S, P) + self.pv(O, VF, P, False): E(x)
        E.settle()
        for k in range(32): E(f"v_accvgpr_read_b32 v{48+k}, {R(SP+k)}")
        E.drain(); E.settle()
        E(f"s_setpc_b64 {s(sRET,2)}")
        return E.text()
    def p2(self, L):
        E = self.E; o = self.o
        self.att_defs()
        S = [48, 64]; SD = 80; P = [96, 104]; PM = 112; O = self.O = [120, 136]; D = 152; TT = 168
        K0 = [AG + 36, AG + 40, AG + 44]; VF = [AG + 48, AG + 56, AG + 64]
        self.OF = {}
        for st in range(2):
            for i in range(4): self.OF[(st, i)] = AG + 72 + 16 * st + 4 * i
        for st in range(2, 5):
            for i in range(4): self.OF[(st, i)] = AG + 104 + 12 * i + 4 * (st - 2)
        if L == 0: self.tail += [self.fallback(0), self.fallback(1)]
        obase = OB + L * OB_STRIDE
        def oload(st, i):
            return (f"s_mul_i32 s{sE_}, s{sW}, {10*KB}\ns_add_u32 s{sE_}, s{sE_}, s{sT16+i}\ns_add_u32 s{sE_}, s{sE_}, {obase + 2048*st}\n"
                    f"buffer_load_dwordx4 {R(self.OF[(st,i)],4)}, v{vU}, {s(WS,4)}, s{sE_} offen sc1")
        def oload2(st, i):
            return f"buffer_load_dwordx4 {R(self.OF[(st,i)],4)}, v{vU}, {s(WS,4)}, s{sE_} offen offset:2048 sc1"
        self.oload, self.oload2 = oload, oload2
        E.wait(vm=self.haltok[0], ds=E.ds_n); E("s_barrier")
        self.stamp(f"L{L} halo in")
        ev = {}; pre = {}
        dm = []
        for c in range(6): dm += self.dma4(sWGU, 16 * KB * c, 64 * KB + 16 * KB * c)
        hb = []
        for t in range(2):
            hb.append(f"s_mul_i32 s{sD}, s{sW}, {2*SLOT}\ns_add_u32 m0, s{sD}, {t*SLOT+3072}\ns_add_u32 s{sE_}, s{sHAL}, {t*5*KB+3072}\nbuffer_load_dwordx4 v{vL16}, {s(WS,4)}, s{sE_} offen sc1 lds")
        lasth = hb[-1]; hb[-1] = lambda: self.haltok.append(E(lasth))
        pb, cb = o.get("pb", 6), o.get("cb", 12)
        spread(ev, dm[:4], 1, 2.5)
        ev.setdefault(pb, []).append(self.poll_issue(sKC, 8 * L + 4))
        pre.setdefault(cb, []).append(self.poll_check(sKC, 8 * L + 4, f"s{sKT}"))
        spread(ev, hb, cb, 1)
        spread(ev, dm[4:], cb + 2, 2.2)
        st = {}
        def check(hd):
            def fn():
                Lo, Lb = E.label("FO"), E.label("FR")
                E(f"v_subrev_u32 v{TT}, {hex(63 << 23)}, v{O[hd]+12}\nv_cmp_le_u32 vcc, {hex(128 << 23)}, v{TT}\ns_cbranch_vccnz {Lo}")
                E.place(Lb)
                self.tail.append(f"{Lo}:\ns_call_b64 {s(sRET,2)}, FB{hd}\ns_branch {Lb}")
            return fn
        def norm(hd):
            r = [check(hd), f"v_rcp_f32 v{TT}, v{O[hd]+12}"]
            r += [f"v_mul_f32 v{O[hd]+k}, v{TT}, v{O[hd]+k}" for k in range(12)]
            r += [f"v_cvt_pk_bf16_f32 v{D+8*hd+k}, v{O[hd]+2*k}, v{O[hd]+2*k+1}" for k in range(6)]
            return r
        def putOA():
            E(f"s_and_b32 s{sA}, s{sJ}, 3\ns_lshl_b32 s{sA}, s{sA}, 10\ns_add_u32 s{sA}, s{sA}, s{sOme}\ns_add_u32 s{sA}, s{sA}, {obase}")
            st["a"] = E(f"buffer_store_dwordx4 {v(D,4)}, v{vL16}, {s(WS,4)}, s{sA} offen sc1")
        slot = [0]
        def weave(mf, mems, valu):
            n = len(mf); mems = list(mems); valu = list(valu)
            for k, m in enumerate(mf):
                for g in pre.pop(slot[0], []): self.do(g)
                E(m)
                for _ in range(-(-len(mems) // (n - k))): E(mems.pop(0))
                for g in ev.pop(slot[0], []): self.do(g)
                for _ in range(-(-len(valu) // (n - k))): self.do(valu.pop(0))
                slot[0] += 1
        seq = [(hd, i) for hd in range(2) for i in (7, 6, 5, 4, 3, 2, 1, 8, 0)]
        kslot = {x: K0[n % 3] for n, x in enumerate(seq)}
        kq = list(seq)
        def knext():
            if not kq: return []
            hd, i = kq.pop(0)
            return [self.kread(hd, i, kslot[(hd, i)])] + ([self.k1read(i)] if hd == 0 else [])
        for x in knext() + knext() + knext(): E(x)
        for x in self.smf(0, 7, S[0], kslot[(0, 7)]): E(x)
        pend = []; vn = 0
        sa_, pa_, ca_ = o.get("osa", 58), o.get("opa", 64), o.get("oca", 69)
        ev.setdefault(sa_, []).append(self.signal(sTP, self.T(0, L), lambda: st["a"]))
        for hd in range(2):
            for n in range(8):
                mf = []; mems = []; va = []
                if n < 6:
                    mf += self.smf(hd, 6 - n, S[(n + 1) % 2], kslot[(hd, 6 - n)]); mems += knext()
                    mf += pend
                elif n == 6:
                    mf += self.smf(hd, 8, SD, kslot[(hd, 8)]) + self.smf(hd, 0, S[1], kslot[(hd, 0)]); mems += knext()
                    mf += pend
                else:
                    mf += pend
                    if hd == 0: mf += self.smf(1, 7, S[0], kslot[(1, 7)])
                    mems += knext() + knext()
                    if hd == 0: pre.setdefault(slot[0] + len(mf), []).append(lambda: (E.wait(vm=self.haltok[1]), E("s_barrier")))
                if n < 7:
                    vf = VF[vn % 3]; vn += 1
                    vr = self.vreads(hd, 7 - n, vf)
                    mems = mems + vr
                    va += self.expops(S[n % 2], P[n % 2])
                    pend = self.pv(O[hd], vf, P[n % 2], n == 0)
                    if hd == 1 and n == 1: va = norm(0) + [putOA] + va
                else:
                    v8, v0_ = VF[vn % 3], VF[(vn + 1) % 3]; vn += 2
                    mems = mems + self.vreads(hd, 8, v8) + self.vreads(hd, 0, v0_)
                    va += self.mergeops(SD, S[1]) + self.expops(SD, P[1]) + self.splitops(P[1], PM)
                    pend = self.pv(O[hd], v8, P[1], False) + self.pv(O[hd], v0_, PM, False)
                weave(mf, mems, va)
            if hd == 0: self.stamp(f"L{L} att a")
        weave(pend, [], [])
        assert not ev and not pre, (ev, pre, slot)
        E(self.poll_issue(sTC, self.T(0, L)))
        for x in norm(1): self.do(x)
        E(f"s_mov_b32 vcc_lo, -1\ns_mov_b32 vcc_hi, 0")
        for k in range(2): E(f"v_cndmask_b32 v{D+4+k}, v{D+12+k}, v{D+4+k}, vcc")
        E(f"s_and_b32 s{sB}, s{sJ}, 3\ns_lshl_b32 s{sA}, s{sB}, 10\ns_add_u32 s{sA}, s{sA}, s{sOme}\ns_add_u32 s{sA}, s{sA}, {obase + 4096}")
        E(f"s_lshl_b32 s{sB}, s{sB}, 9\ns_add_u32 s{sB}, s{sB}, s{sOme}\ns_add_u32 s{sB}, s{sB}, {obase + 8192}")
        E(f"buffer_store_dwordx4 {v(D+8,4)}, v{vL16}, {s(WS,4)}, s{sA} offen sc1")
        self.otok = E(f"buffer_store_dwordx2 {v(D+4,2)}, v{vO4}, {s(WS,4)}, s{sB} offen sc1")
        self.stamp(f"L{L} att done")
    def reduce_and_publish(self, ACC, steps, red, PT, xidx, wimm, final, bg, post):
        E = self.E
        wr = []; bg = list(bg)
        for i in range(4):
            mf = []
            for (W, act) in steps:
                for nt in range(5):
                    d = ACC[i] + 4 * nt
                    mf.append(f"v_mfma_f32_16x16x32_bf16 {v(d,4)}, {R(W[nt],4)}, {R(act[i],4)}, {v(d,4)}")
            rd = []
            for k, m in enumerate(mf):
                E(m)
                if k >= 3 and wr: E(wr.pop(0))
                elif k % 4 == 1 and bg: self.do(bg.pop(0))
            if i < 3:
                E(f"v_add_u32 v{vT}, {red}, v{vRW+i}")
                wr = [f"ds_write_b128 v{vT}, {v(ACC[i]+4*nt,4)} offset:{1024*nt}" for nt in range(5)]
        E(f"v_add_u32 v{vT}, {red}, v{vRW+3}")
        E.drain(vm=False); E("s_barrier")
        for q in range(15): E(f"ds_read_b128 {v(PT+4*q,4)}, v{vT} offset:{1024*q}")
        self.stamp("  mfma done")
        for b in (0, 20, 40):
            for k in range(0, 20, 2): E(f"v_pk_add_f32 {v(vRES+k,2)}, {v(vRES+k,2)}, {v(PT+b+k,2)}")
        D = PT + 20
        for k in range(10): E(f"v_cvt_pk_bf16_f32 v{D+k}, v{vRES+2*k}, v{vRES+2*k+1}")
        if final:
            E(f"buffer_store_dwordx4 {v(D,4)}, v{vRM}, {s(OUT,4)}, s{sRM} offen")
            E(f"buffer_store_dwordx4 {v(D+4,4)}, v{vRM}, {s(OUT,4)}, s{sRM} offen offset:16")
            E(f"buffer_store_dwordx2 {v(D+8,2)}, v{vRM5}, {s(OUT,4)}, s{sRM} offen offset:128")
            return
        E(f"s_mul_i32 s{sA}, s{sNB}, {5*KB}\ns_add_u32 s{sA}, s{sA}, s{sT16+3}\ns_add_u32 s{sA}, s{sA}, {XT + xidx*XT_STRIDE}\ns_add_u32 s{sB}, s{sA}, 4096")
        E(f"buffer_store_dwordx4 {v(D,4)}, v{vXW}, {s(WS,4)}, s{sA} offen sc1")
        E(f"buffer_store_dwordx4 {v(D+4,4)}, v{vXW}, {s(WS,4)}, s{sA} offen offset:512 sc1")
        E(f"buffer_store_dwordx2 {v(D+8,2)}, v{vXW5}, {s(WS,4)}, s{sB} offen sc1")
        T = PT
        E(f"v_pk_add_f32 {v(T,2)}, {v(vRES,2)}, {v(vRES+2,2)}\nv_pk_mul_f32 {v(T+2,2)}, {v(vRES,2)}, {v(vRES,2)}")
        E(f"v_pk_fma_f32 {v(T+2,2)}, {v(vRES+2,2)}, {v(vRES+2,2)}, {v(T+2,2)}")
        for k in range(4, 20, 2):
            E(f"v_pk_add_f32 {v(T,2)}, {v(T,2)}, {v(vRES+k,2)}\nv_pk_fma_f32 {v(T+2,2)}, {v(vRES+k,2)}, {v(vRES+k,2)}, {v(T+2,2)}")
        E(f"v_add_f32 v{T}, v{T}, v{T+1}\nv_add_f32 v{T+1}, v{T+2}, v{T+3}")
        E(f"s_lshl_b32 s{sA}, s{sR}, 3\ns_add_u32 s{sA}, s{sA}, s{sNB}\ns_lshl_b32 s{sA}, s{sA}, 1\ns_add_u32 s{sA}, s{sA}, s{sTH}\ns_lshl_b32 s{sA}, s{sA}, 2")
        for sw in ("v_permlane32_swap_b32", "v_permlane16_swap_b32"):
            E(f"v_mov_b32 v{T+2}, v{T}\nv_mov_b32 v{T+3}, v{T+1}")
            if sw[10] == "3": E(f"s_add_u32 s{sA}, s{sA}, s{sW}\ns_lshl_b32 s{sA}, s{sA}, 7")
            else: E(f"s_add_u32 s{sA}, s{sA}, {STAT + xidx*128*KB}")
            E(f"{sw} v{T+2}, v{T}\n{sw} v{T+3}, v{T+1}")
            E(f"v_add_f32 v{T}, v{T}, v{T+2}\nv_add_f32 v{T+1}, v{T+1}, v{T+3}")
        last = E(f"buffer_store_dwordx2 {v(T,2)}, v{vSW}, {s(WS,4)}, s{sA} offen sc1")
        self.stamp("  stored")
        E("s_barrier")
        n0 = self.o.get("post0", 6)
        post = list(bg) + list(post)
        for g in post[:n0]: self.do(g)
        self.signal(sWP, wimm, last)()
        self.stamp("  signalled")
        for g in post[n0:]: self.do(g)
    def mk_wdload(self):
        self.WDF = {}
        def wdload(f):
            def fn():
                q = self.pool.get(); self.WDF[f] = q
                t = f"s_add_u32 s{sT0+1}, s{sWD}, {1024*f}\n" if f % 4 == 0 else ""
                return self.E(t + f"buffer_load_dwordx4 {R(q,4)}, v{vL16}, {s(WS,4)}, s{sT0+1} offen offset:{1024*(f%4)} sc1")
            return fn
        self.wdq = [wdload(f) for f in range(60)]
    def wd(self, n):
        r = self.wdq[:n]; self.wdq = self.wdq[n:]
        return r
    def p3(self, L):
        E = self.E; o = self.o
        ACC = [48, 68, 88, vRES]
        W = lambda st: [self.WOF[5 * st + nt] for nt in range(5)]
        self.pool = Pool([176 + 4 * i for i in range(17)])
        self.mk_wdload()
        self.poll_check(sTC, self.T(0, L), 8)()
        for i in range(4): E(self.oload(0, i)); E(self.oload2(1, i))
        self.signal(sTP, self.T(1, L), self.otok)()
        for g in self.wd(o.get("wd3", 8)): g()
        for i in range(4):
            for st in range(2):
                for nt in range(5):
                    d = ACC[i] + 4 * nt
                    E(f"v_mfma_f32_16x16x32_bf16 {v(d,4)}, {R(W(st)[nt],4)}, {R(self.OF[(st,i)],4)}, {'0' if st == 0 and i < 3 else v(d,4)}")
            if i == o.get("p3poll", 2): E(self.poll_issue(sTC, self.T(1, L)))
        E("s_barrier")
        self.stamp(f"L{L} P3 a-part")
        self.poll_check(sTC, self.T(1, L), 8)()
        self.stamp(f"L{L} P3 synced")
        for i in range(4):
            E(self.oload(2, i)); E(self.oload2(3, i))
            E(f"s_add_u32 s{sE_}, s{sE_}, 4096\nbuffer_load_dwordx4 {R(self.OF[(4,i)],4)}, v{vU}, {s(WS,4)}, s{sE_} offen sc1")
        steps = [(W(st), [self.OF[(st, i)] for i in range(4)]) for st in range(2, 5)]
        self.CSG = 152
        bg = self.wd(17 - o.get("wd3", 8))
        def freewo(): self.pool.add(self.WOF)
        self.gu_late = []
        for c in range(6, 10): self.gu_late += self.dma4(sWGU, 16 * KB * c, 16 * KB * (c - 6))
        n = o.get("gu3", 16)
        post = [freewo] + self.gu_late[:n] + self.cs_loads(CSG, 6 * KB, 6, self.CSG)
        self.gu_late = self.gu_late[n:]
        self.reduce_and_publish(ACC, steps, 0, 108 - 16 + 16, 2 * L + 1, 4 * L, False, bg, post)
        self.stamp(f"L{L} P3 done")
    def p4(self, L):
        E = self.E; o = self.o
        self.poll_block(sWC, 4 * L, 16)
        self.stamp(f"L{L} P4 synced")
        ACC = [[48, 64], [80, 96]]; RING = 112; HP = 136; T = 144
        self.stat_loads(2 * L + 1, T)
        xl = self.xloads(XT + (2 * L + 1) * XT_STRIDE)
        for g in xl[:16]: E(g)
        allw = [1024 * ((64 + f) % 160) for f in range(240)]
        E.need(regs(a(0, 4))); E("s_barrier")
        for f in range(6): E(self.wread(RING + 4 * f, allw[f]))
        c1 = -2 * 0.7978845608028654 * math.log2(math.e)
        so = self.stat_ops(T) + [f"v_mul_f32 v{vC1}, {f2u(c1)}, v{vRSTD}", f"v_mul_f32 v{T}, v{vRSTD}, v{vRSTD}", f"v_mul_f32 v{vC2}, {f2u(0.044715)}, v{vC1}",
                                 f"v_mul_f32 v{vC2}, v{T}, v{vC2}"]
        st = self.htok = {}
        def put(p):
            def fn():
                E(f"s_add_u32 s{sA}, s{sHme}, {HB + L*HB_STRIDE + 2048*p}")
                E(f"buffer_store_dwordx4 {v(HP,4)}, v{vL16}, {s(WS,4)}, s{sA} offen sc1")
                st[p] = E(f"buffer_store_dwordx4 {v(HP+4,4)}, v{vL16}, {s(WS,4)}, s{sA} offen offset:1024 sc1")
            return fn
        def epi(p):
            g, u = ACC[p % 2]; r = []
            for k0 in range(0, 16, 4):
                ks = range(k0, k0 + 4)
                r += [f"v_mul_f32 v{T+k%4}, v{g+k}, v{g+k}" for k in ks]
                r += [f"v_fma_f32 v{T+k%4}, v{T+k%4}, v{vC2}, v{vC1}" for k in ks]
                r += [f"v_mul_f32 v{T+k%4}, v{T+k%4}, v{g+k}" for k in ks]
                r += [f"v_exp_f32 v{T+k%4}, v{T+k%4}" for k in ks]
                r += [f"v_mul_f32 v{g+k}, v{g+k}, v{u+k}" for k in ks]
                r += [f"v_fma_f32 v{T+k%4}, v{T+k%4}, v{vIV}, v{vIV}" for k in ks]
                r += [f"v_rcp_f32 v{T+k%4}, v{T+k%4}" for k in ks]
                r += [f"v_mul_f32 v{g+k}, v{g+k}, v{T+k%4}" for k in ks]
                r += [f"v_cvt_pk_bf16_f32 v{HP+k//2}, v{g+k}, v{g+k+1}" for k in ks if k % 2 == 0]
            return [(2, x) for x in r + [put(p)]]
        def epi_pk(p):
            g, u = ACC[p % 2]; r = []
            for k0 in range(0, 16, 8):
                ks = range(k0, k0 + 8, 2)
                r += [f"v_pk_mul_f32 {v(T+k%8,2)}, {v(g+k,2)}, {v(g+k,2)}" for k in ks]
                r += [f"v_pk_fma_f32 {v(T+k%8,2)}, {v(T+k%8,2)}, {v(vC1,2)}, {v(vC1,2)} op_sel:[0,1,0] op_sel_hi:[1,1,0]" for k in ks]
                r += [f"v_pk_mul_f32 {v(T+k%8,2)}, {v(T+k%8,2)}, {v(g+k,2)}" for k in ks]
                r += [f"v_exp_f32 v{T+k}, v{T+k}" for k in range(8)]
                r += [f"v_pk_mul_f32 {v(g+k,2)}, {v(g+k,2)}, {v(u+k,2)}" for k in ks]
                r += [f"v_pk_fma_f32 {v(T+k%8,2)}, {v(T+k%8,2)}, {v(vIV,2)}, {v(vIV,2)} op_sel_hi:[1,0,0]" for k in ks]
                r += [f"v_rcp_f32 v{T+k}, v{T+k}" for k in range(8)]
                r += [f"v_pk_mul_f32 {v(g+k,2)}, {v(g+k,2)}, {v(T+k%8,2)}" for k in ks]
                r += [f"v_cvt_pk_bf16_f32 v{HP+k//2}, v{g+k}, v{g+k+1}" for k in ks]
            return r + [put(p)]
        self.HF = {}
        def hload(stp, i):
            def fn():
                p, jj = divmod(stp, 4)
                q = self.pool.get(); self.HF[(stp, i)] = q
                E(f"s_add_u32 s{sE_}, s{sT16H+i}, {HB + L*HB_STRIDE + 2048*(3*jj+p)}\nbuffer_load_dwordx4 {R(q,4)}, v{vU}, {s(WS,4)}, s{sE_} offen sc1")
            return fn
        self.hload = hload
        nv = o.get("nv4", 4)
        ev = {}; spread(ev, xl[16:], 0, 2)
        spread(ev, self.wd(o.get("wd40", 10)), 52, 2.8)
        self.wstream(self.pair_items(ACC[0], self.CSG), 0, allw, RING, ev, [(2, x) for x in so])
        self.stamp(f"L{L} P4 p0")
        ev = {}; tok = []; fl = []
        for c in range(10, 15): fl += self.dma4(sWGU, 16 * KB * c, 64 * KB + 16 * KB * (c - 10), tok)
        spread(ev, fl, 1, 2.2)
        spread(ev, self.wd(o.get("wd41", 15)), 46, 2.3)
        ev.setdefault(o.get("hs0", 74), []).append(self.signal(sTP, self.T(2, L), lambda: st[0]))
        self.wstream(self.pair_items(ACC[1], self.CSG + 8), 80, allw, RING, ev, epi(0),
                     {0: ["s_barrier"], 74: [lambda: (E.wait(vm=tok[4]), E("s_barrier"))]}, nvalu=nv)
        self.stamp(f"L{L} P4 p1")
        ev = {}; pre = {}
        for ks in range(40): ev.setdefault(2 * ks + 1, []).append(lambda ks=ks: self.pool.put(AG + 4 * ks))
        n2 = len(self.wdq)
        spread(ev, self.wd(n2), 5, 2.2)
        hp, hc = o.get("hp0", 34), o.get("hc0", 44)
        ev.setdefault(hp, []).append(self.poll_issue(sTC, self.T(2, L)))
        pre.setdefault(hc, []).append(self.poll_check(sTC, self.T(2, L), 8))
        spread(ev, [hload(stp, i) for stp in range(4) for i in range(4)], max(hc + 1, 5 + 2.2 * n2), 2.2)
        ev.setdefault(o.get("hs1", 74), []).append(self.signal(sTP, self.T(3, L), lambda: st[1]))
        self.wstream(self.pair_items(ACC[0], self.CSG + 16), 160, allw, RING, ev, epi(1), pre, nvalu=nv)
        self.stamp(f"L{L} P4 p2")
        ep = epi_pk(2)
        for k, x in enumerate(ep):
            self.do(x)
            if k == len(ep) - 30: E(self.poll_issue(sTC, self.T(3, L)))
        self.stamp(f"L{L} P4 done")
    def p5(self, L):
        E = self.E; o = self.o
        ACC = [48, 68, 88, vRES]
        E("s_barrier")
        self.poll_check(sTC, self.T(3, L), 8)()
        self.pool.add([108 + 4 * i for i in range(7)] + [144 + 4 * i for i in range(8)])
        ev = {}; pre = {}
        spread(ev, [self.hload(stp, i) for stp in range(4, 8) for i in range(4)], 0, 4)
        E(f"s_add_u32 s{sB}, s{sTP}, 4096")
        ev.setdefault(o.get("hs2", 42), []).append(self.signal(sB, 4 * L, self.htok[2]))
        hp, hc = o.get("hp2", 84), o.get("hc2", 100)
        ev.setdefault(hp, []).append(self.poll_issue(sTC, self.T(4, L)))
        pre.setdefault(hc, []).append(self.poll_check(sTC, self.T(4, L), 8))
        spread(ev, [self.hload(stp, i) for i in range(4) for stp in range(8, 12)], hc, 3.5)
        self.wq_tok = []; dm = []
        if L == 0:
            for c in range(10): dm += self.dma4(sWQ, 16 * KB * c, 16 * KB * c, self.wq_tok)
            spread(ev, dm[:8], 66, 4); dm = dm[8:]
        sl = 0
        for stp in range(8):
            for i in range(4):
                for nt in range(5):
                    for g in pre.pop(sl, []): self.do(g)
                    d = ACC[i] + 4 * nt
                    E(f"v_mfma_f32_16x16x32_bf16 {v(d,4)}, {R(self.WDF[5*stp+nt],4)}, {R(self.HF[(stp,i)],4)}, {'0' if stp == 0 and i < 3 else v(d,4)}")
                    for g in ev.pop(sl, []): self.do(g)
                    sl += 1
                if self.HF[(stp, i)] >= AG or self.HF[(stp, i)] < 176: self.pool.put(self.HF[(stp, i)])
            for nt in range(5):
                q = self.WDF[5 * stp + nt]
                if q >= AG or q < 176: self.pool.put(q)
        assert not ev and not pre, (ev, pre)
        self.stamp("  8 steps")
        PT = 176
        live = [self.WDF[f] for f in range(40, 60)] + [self.HF[(stp, i)] for stp in range(8, 12) for i in range(4)]
        assert not [q for q in live if PT <= q < PT + 60], live
        steps = [([self.WDF[5 * stp + nt] for nt in range(5)], [self.HF[(stp, i)] for i in range(4)]) for stp in range(8, 12)]
        bg = dm[:12]; dm = dm[12:]
        n = o.get("wq5", 8)
        post = dm[:n] + (self.cs_loads(CSQ, 4 * KB, 4, 136) if L == 0 else [])
        self.wq_late = dm[n:]
        self.reduce_and_publish(ACC, steps, 100 * KB, PT, 2 * L + 2, 512 + 4 * L, L == 1, bg, post)
        self.stamp(f"L{L} P5 done")
    def finish(self):
        E = self.E
        E(f"s_or_b32 s{sA}, s{sR}, s{sJ}\ns_or_b32 s{sA}, s{sA}, s{sW}\ns_cmp_eq_u32 s{sA}, 0\ns_cselect_b32 s{sA}, 0, {OOB}")
        E(f"v_add_u32 v48, s{sA}, v{vSIG}\nv_mov_b32 v49, s0\ns_mov_b32 s{sA}, {EPOCH}\nbuffer_store_dword v49, v48, {s(WS,4)}, s{sA} offen sc1")
        if self.stamps:
            E(f"v_readfirstlane_b32 s{sB}, v254")
            E(f"s_lshl_b32 s{sA}, s{sB}, 2\ns_add_u32 s{sA}, s{sA}, s{sW}\ns_lshl_b32 s{sA}, s{sA}, 8\ns_add_u32 s{sA}, s{sA}, {DBG}")
            E(f"v_lshlrev_b32 v{vT}, 2, v0\nbuffer_store_dword v{vTS}, v{vT}, {s(WS,4)}, s{sA} offen")
            E(f"s_add_u32 s{sA}, s{sA}, 0x40000\nbuffer_store_dword v{vTS2}, v{vT}, {s(WS,4)}, s{sA} offen")
        E("s_endpgm")
        for t in self.tail: E.raw(t.rstrip("\n"))
        E.raw("main_end:")
    def build(self):
        E = self.E
        E.raw("; @launch grid=(256,1,1) block=(256,1,1) lds=163840")
        E.raw('.amdgcn_target "amdgcn-amd-amdhsa--gfx950"')
        self.prologue()
        n = 0
        for L in range(2):
            for ph in (self.p1, self.p2, self.p3, self.p4, self.p5):
                if n < self.stop: ph(L)
                n += 1
        self.finish()
        kernel_desc(E, KNAME, 256, 256, 102)
        return E.text()

if __name__ == "__main__":
    out = sys.argv[1]
    opts = dict((k, int(x)) for k, x in (a_.split("=") for a_ in sys.argv[3:]))
    g = Gen(stamps=len(sys.argv) > 2 and sys.argv[2] == "ts", opts=opts)
    t = g.build()
    open(out, "w").write(t)
    print(len(t), "bytes", g.E.ninst, "insts", g.E.nnop, "nop states", g.E.stats)
    if g.stamps: open(out + ".names", "w").write("\n".join(g.stnames))
```

```python
import re

def v(i, n=1): return f"v{i}" if n == 1 else f"v[{i}:{i+n-1}]"
def a(i, n=1): return f"a{i}" if n == 1 else f"a[{i}:{i+n-1}]"
def s(i, n=1): return f"s{i}" if n == 1 else f"s[{i}:{i+n-1}]"
def R(i, n=1):
    return v(i, n) if i < 256 else a(i - 256, n)

_reg = re.compile(r"^-?\|?(?:abs\()?([vas])(?:(\d+)|\[(\d+):(\d+)\])\)?\|?$")
def regs(tok):
    tok = tok.strip()
    if tok == "vcc": return {"vcc"}
    if tok in ("vcc_lo", "vcc_hi"): return {"vcc"}
    if tok in ("exec", "exec_lo", "exec_hi"): return {"exec"}
    if tok == "m0": return {"m0"}
    m = _reg.match(tok)
    if not m: return set()
    k = m.group(1)
    if m.group(2) is not None: return {k + m.group(2)}
    return {k + str(i) for i in range(int(m.group(3)), int(m.group(4)) + 1)}

TRANS = ("v_exp_f32", "v_log_f32", "v_rcp_f32", "v_rsq_f32", "v_sqrt_f32", "v_sin_f32", "v_cos_f32", "v_rcp_iflag_f32")

class Ins:
    __slots__ = ("text", "mn", "kind", "dst", "src", "srcC", "passes", "wide", "data", "states")
    def __init__(self, text):
        self.text = text
        parts = text.split(None, 1)
        mn = self.mn = parts[0]
        rest = parts[1] if len(parts) > 1 else ""
        ops = [o.strip() for o in rest.split(",")] if rest else []
        mods = []
        for k in range(len(ops)):
            sp = ops[k].split()
            ops[k] = sp[0]; mods += sp[1:]
        self.dst = set(); self.src = set(); self.srcC = set(); self.passes = 0; self.wide = False; self.data = set(); self.states = 1
        rs = [regs(o) for o in ops]
        U = lambda l: set().union(*l) if l else set()
        if mn.startswith("v_mfma"):
            self.kind = "mfma"; self.dst = rs[0]; self.src = U(rs[1:]); self.srcC = rs[3]
            self.passes = 8 if "32x32" in mn else (4 if "16x16" in mn else 2)
        elif mn.startswith("v_"):
            base = re.sub(r"_(e32|e64|dpp|sdwa)$", "", mn)
            self.kind = "trans" if base in TRANS else "valu"
            if base.startswith("v_permlane") or base == "v_swap_b32":
                self.dst = U(rs[:2]); self.src = U(rs[:2])
            elif base.startswith(("v_add_co", "v_sub_co", "v_addc_co", "v_subb_co", "v_subrev_co")):
                self.dst = U(rs[:2]); self.src = U(rs[2:])
            elif base == "v_nop":
                pass
            else:
                self.dst = rs[0]; self.src = U(rs[1:])
                if base.startswith(("v_fmac", "v_dot2c", "v_writelane")) : self.src |= rs[0]
                if base == "v_cndmask_b32" and len(ops) == 3: self.src |= {"vcc"}
        elif mn.startswith("ds_"):
            self.kind = "ds"
            if mn.startswith(("ds_read", "ds_bpermute", "ds_permute", "ds_swizzle")):
                self.dst = rs[0]; self.src = U(rs[1:])
            else:
                self.src = U(rs)
        elif mn.startswith(("buffer_", "global_")):
            self.kind = "vmem"
            lds = "lds" in mods or "_lds_" in mn
            if mn in ("buffer_wbl2", "buffer_inv"):
                pass
            elif "load" in mn and not lds:
                self.dst = rs[0]; self.src = U(rs[1:])
            elif lds:
                self.src = U(rs) | {"m0"}
            else:
                self.src = U(rs)
                if "atomic" in mn and "sc0" in mods: self.dst = rs[0]
                if mn.startswith("buffer_store"): self.data = rs[0]
                if mn.startswith("global_store"): self.data = rs[1]
                self.wide = mn.endswith(("x3", "x4"))
        elif mn.startswith(("s_load", "s_buffer_load", "s_memtime", "s_memrealtime")):
            self.kind = "smem"; self.dst = rs[0]; self.src = U(rs[1:])
        elif mn.startswith("s_"):
            self.kind = "salu"
            if mn == "s_nop": self.states = int(ops[0], 0) + 1
            if mn.startswith(("s_cmp", "s_waitcnt", "s_barrier", "s_cbranch", "s_branch", "s_nop", "s_sleep", "s_setprio", "s_endpgm", "s_bitcmp")):
                self.src = U(rs)
                if mn in ("s_cbranch_vccnz", "s_cbranch_vccz"): self.src |= {"vcc"}
            else:
                self.dst = rs[0] if rs else set(); self.src = U(rs[1:])
                if "saveexec" in mn: self.dst |= {"exec"}
        else:
            raise ValueError("unknown instruction " + text)

def need_states(p, c):
    n = 0
    pv = p.kind in ("valu", "trans"); cv = c.kind in ("valu", "trans")
    if p.kind == "mfma":
        P = p.passes
        if c.kind == "mfma":
            if p.dst & (c.src - c.srcC if not (c.srcC & p.dst) or True else set()):
                pass
            ab = set()
            ops = [o.strip() for o in c.text.split(None, 1)[1].split(",")]
            ab = regs(ops[1]) | regs(ops[2])
            if p.dst & ab: n = max(n, {2: 5, 4: 8, 8: 12}[P])
            if p.dst & c.srcC:
                if p.dst == c.srcC and p.passes == c.passes: n = max(n, {2: 2, 4: 0, 8: 0}[P])
                else: n = max(n, {2: 4, 4: 6, 8: 10}[P])
            elif p.dst & c.dst:
                n = max(n, {2: 4, 4: 6, 8: 10}[P]) if p.passes != c.passes else n
        elif cv or c.kind in ("ds", "vmem"):
            if p.dst & (c.src | c.dst): n = max(n, {2: 5, 4: 8, 8: 12}[P])
            if cv and p.srcC & c.dst: n = max(n, {2: 1, 4: 3, 8: 7}[P])
    if pv:
        vd = {r for r in p.dst if r[0] in "va" and r != "vcc"}
        sd = p.dst - vd
        if c.kind == "mfma" and vd & c.src: n = max(n, 2)
        if cv:
            if p.kind == "trans" and c.kind != "trans" and vd & c.src: n = max(n, 1)
            if c.mn.startswith("v_permlane") and vd & c.src: n = max(n, 2)
            if c.mn.endswith("_dpp") and vd & c.src: n = max(n, 2)
            if c.mn.startswith(("v_readlane", "v_readfirstlane")) and vd & c.src: n = max(n, 1)
            if sd & c.src: n = max(n, 2)
            if p.mn.startswith("v_dot") and vd & (c.src | c.dst):
                same = c.mn == p.mn
                ops = [o.strip() for o in c.text.split(None, 1)[1].split(",")]
                ab = regs(ops[1]) | regs(ops[2].split()[0]) if len(ops) > 2 else set()
                if not same or (vd & ab): n = max(n, 3)
            if ("sdwa" in p.mn or "op_sel" in p.text) and not p.mn.startswith("v_pk") and vd & (c.src | c.dst): n = max(n, 1)
        if p.mn.startswith("v_dot") and c.kind in ("ds", "vmem", "mfma") and vd & c.src: n = max(n, 3)
        if c.kind == "vmem" and sd & c.src: n = max(n, 5)
        if c.kind == "salu" and sd & c.src: n = max(n, 1)
    if p.kind == "salu" and "m0" in p.dst and c.kind == "vmem" and "m0" in c.src: n = max(n, 1)
    if p.kind == "vmem" and p.wide and p.data & c.dst: n = max(n, 2 if cv else 1)
    return n

class Emit:
    def __init__(self):
        self.out = []
        self.hist = []
        self.vm_n = 0; self.vm_done = 0
        self.ds_n = 0; self.ds_done = 0
        self.pend = {}
        self.smem_out = False
        self.nlab = 0
        self.ninst = 0
        self.nnop = 0
        self.stats = {}
        self.lastw = {}
        self.cost = 0
    def raw(self, t): self.out.append(t)
    def label(self, base="L"):
        self.nlab += 1
        return f"{base}{self.nlab}"
    def place(self, lab):
        self.out.append(lab + ":")
    def _push(self, ins):
        pv = bool(self.hist) and self.hist[-1].kind in ("valu", "trans")
        k = ins.kind
        c = 8 if k in ("mfma", "trans", "vmem") else 4 * ins.states
        if k == "ds" and ins.mn.startswith("ds_write"): c = 20
        if k in ("ds", "vmem") and pv: c += 8
        self.cost += c
        if k in ("salu", "smem"):
            for r in ins.dst: self.lastw[r] = ins.text
        self.out.append(ins.text); self.hist.append(ins); self.ninst += 1
        self.stats[ins.kind] = self.stats.get(ins.kind, 0) + 1
        if len(self.hist) > 24: self.hist.pop(0)
    def wait(self, vm=None, ds=None):
        parts = []
        if vm is not None and vm > self.vm_done:
            parts.append(f"vmcnt({min(self.vm_n - vm, 63)})"); self.vm_done = vm
        if ds is not None and ds > self.ds_done:
            parts.append(f"lgkmcnt({min(self.ds_n - ds, 15)})"); self.ds_done = ds
        if parts: self._push(Ins("s_waitcnt " + " ".join(parts)))
    def wait_smem(self):
        if self.smem_out:
            self._push(Ins("s_waitcnt lgkmcnt(0)")); self.smem_out = False; self.ds_done = self.ds_n
            self.pend = {r: x for r, x in self.pend.items() if x[0] != "sm"}
    def drain(self, vm=True, ds=True):
        if ds and self.smem_out:
            self.wait(vm=self.vm_n if vm else None); self.wait_smem(); return
        self.wait(vm=self.vm_n if vm else None, ds=self.ds_n if ds else None)
    def need(self, regset):
        vm = ds = None; sm = False
        for r in regset:
            x = self.pend.get(r)
            if x is None: continue
            if x[0] == "vm": vm = max(vm or 0, x[1])
            elif x[0] == "ds": ds = max(ds or 0, x[1])
            else: sm = True
        if sm: self.wait_smem()
        self.wait(vm=vm, ds=ds)
    def I(self, text, count=True):
        ret = None
        for t in text.split("\n"):
            t = t.strip()
            if not t: continue
            if t[0] == "@": self.place(t[1:]); continue
            ins = Ins(t)
            self.need(ins.src | ins.dst)
            dist = 0; nops = 0
            for p in reversed(self.hist):
                n = need_states(p, ins)
                if n - dist > nops: nops = n - dist
                dist += p.states
                if dist >= 20: break
            if nops > 0:
                self.nnop += nops
                self._push(Ins(f"s_nop {nops-1}"))
            self._push(ins)
            for r in ins.dst: self.pend.pop(r, None)
            if ins.kind == "vmem" and count:
                self.vm_n += 1; ret = self.vm_n
                for r in ins.dst: self.pend[r] = ("vm", self.vm_n)
            elif ins.kind == "ds":
                self.ds_n += 1; ret = self.ds_n
                for r in ins.dst: self.pend[r] = ("ds", self.ds_n)
            elif ins.kind == "smem":
                self.smem_out = True
                for r in ins.dst: self.pend[r] = ("sm", 0)
        return ret
    __call__ = I
    def fresh(self):
        self.hist = []; self.pend = {}; self.vm_done = self.vm_n; self.ds_done = self.ds_n; self.smem_out = False
    def settle(self):
        self._push(Ins("s_nop 7")); self._push(Ins("s_nop 7"))
    def text(self): return "\n".join(self.out) + "\n"

def kernel_header(E, name):
    for t in (".text", f".globl {name}", ".p2align 8", f".type {name},@function", f"{name}:"): E.raw(t)

def kernel_desc(E, name, vgpr, agpr=0, sgpr=102):
    acc = (vgpr + 3) // 4 * 4
    total = acc + agpr if agpr else vgpr
    for t in ('.section .rodata,"a"', ".p2align 6", f".amdhsa_kernel {name}", f"  .amdhsa_next_free_vgpr {total}",
              f"  .amdhsa_next_free_sgpr {sgpr}", f"  .amdhsa_accum_offset {acc}", "  .amdhsa_group_segment_fixed_size 0",
              "  .amdhsa_kernarg_size 80", "  .amdhsa_user_sgpr_count 2", "  .amdhsa_user_sgpr_kernarg_segment_ptr 1",
              "  .amdhsa_system_sgpr_workgroup_id_x 1", "  .amdhsa_float_denorm_mode_32 3", ".end_amdhsa_kernel"): E.raw(t)
```

```python
from emit import *
from layout import *

SRC1 = 32; SRC2 = 36; sONE = 40
t = list(range(41, 58))
sRHO, sSIG = 58, 59
sU, sS2 = 60, 61
sTK = 62
LDS1 = 80 * KB
LDS2 = 128 * KB
vTK = 248
vA2 = 232
OOB = 0x10000000

def split_hi_lo(E, x, t0, t1, d):
    E(f"v_cvt_pk_bf16_f32 v{d+1}, v{x}, 0")
    E(f"v_lshlrev_b32 v{t0}, 16, v{d+1}")
    E(f"v_sub_f32 v{t1}, v{x}, v{t0}")
    E(f"v_cvt_pk_bf16_f32 v{d}, v{t0}, v{t1}")

class Startup:
    def __init__(self, G, M):
        self.G = G; self.E = G.E; self.M = M
    def roles(self, pQ, pO, pG, pU, pD):
        E, M = self.E, self.M
        E(f"s_add_u32 s{sRHO}, s{M.sR}, s{M.sJ}\ns_and_b32 s{sRHO}, s{sRHO}, 15\ns_add_u32 s{sSIG}, s{sRHO}, 4\ns_and_b32 s{sSIG}, s{sSIG}, 15")
        E(f"s_mov_b32 s{SRC1}, s{pQ}\ns_mov_b32 s{SRC1+1}, s{pQ+1}\ns_mov_b32 s{SRC1+2}, {640*1920*2}\ns_mov_b32 s{SRC1+3}, 0x00020000")
        E(f"s_cmp_ge_u32 s{sSIG}, 4\ns_cselect_b64 {s(SRC2,2)}, {s(pU,2)}, {s(pG,2)}")
        E(f"s_cmp_ge_u32 s{sSIG}, 8\ns_cselect_b64 {s(SRC2,2)}, {s(pD,2)}, {s(SRC2,2)}")
        E(f"s_cmp_ge_u32 s{sSIG}, 14\ns_cselect_b64 {s(SRC2,2)}, {s(pO,2)}, {s(SRC2,2)}\ns_cselect_b32 s{SRC2+2}, {640*640*2}, 0")
        E(f"s_cselect_b32 s{t[0]}, 0, {640*1536*2}\ns_add_u32 s{SRC2+2}, s{SRC2+2}, s{t[0]}\ns_mov_b32 s{SRC2+3}, 0x00020000\ns_mov_b32 s{sONE}, 0x3f803f80")
    def s1_load(self):
        E, M = self.E, self.M
        E("v_mul_u32_u24 v48, 13108, v0\nv_lshrrev_b32 v48, 16, v48\nv_mul_u32_u24 v49, 5, v48\nv_sub_u32 v49, v0, v49")
        E("v_mul_u32_u24 v48, 3840, v48\nv_lshl_add_u32 v50, v49, 4, v48")
        E(f"s_lshr_b32 s{t[1]}, s{sRHO}, 2\ns_and_b32 s{t[2]}, s{sRHO}, 3")
        E(f"s_mul_i32 s{t[3]}, s{t[1]}, 1280\ns_mul_i32 s{t[4]}, s{M.sJ}, 80\ns_add_u32 s{t[3]}, s{t[3]}, s{t[4]}")
        E(f"s_lshl_b32 s{t[4]}, s{t[2]}, 2\ns_add_u32 s{t[4]}, s{t[4]}, s{M.sW}\ns_mul_i32 s{t[4]}, s{t[4]}, {40*3840}\ns_add_u32 s{t[3]}, s{t[3]}, s{t[4]}")
        E(f"s_cmp_ge_u32 s{sRHO}, 12\ns_cselect_b32 s{t[4]}, {OOB}, 0\nv_add_u32 v50, s{t[4]}, v50")
        E(f"s_mul_i32 s{t[4]}, s{M.sW}, 3200\ns_mov_b32 exec_hi, 0x3ffff")
        for i in range(4):
            E(f"s_add_u32 m0, s{t[4]}, {LDS1 + 800*i}")
            if i: E(f"s_add_u32 s{t[3]}, s{t[3]}, {10*3840}")
            self.tok1 = E(f"buffer_load_dwordx4 v50, {s(SRC1,4)}, s{t[3]} offen {'nt' if self.G.o.get('nt1', 1) else ''} lds")
        E("s_mov_b32 exec_hi, -1")
    def x_touch(self):
        E, M = self.E, self.M
        E(f"s_lshl_b32 s{t[4]}, s{M.sR}, 4\ns_add_u32 s{t[4]}, s{t[4]}, s{M.sJ}\ns_lshl_b32 s{t[4]}, s{t[4]}, 2\ns_add_u32 s{t[4]}, s{t[4]}, s{M.sW}\ns_mul_i32 s{t[4]}, s{t[4]}, 2560")
        E(f"v_min_u32 v51, 19, v0\nv_lshlrev_b32 v51, 7, v51\nbuffer_load_dword v246, v51, {s(M.XIN,4)}, s{t[4]} offen")
    def s2_addrs(self):
        E, M = self.E, self.M
        a_, b_, c_, d_, e_ = t[5], t[6], t[7], t[8], t[9]
        E(f"s_mov_b32 s{b_}, 6554\ns_cmp_lt_u32 s{sSIG}, 8\ns_cselect_b32 s{a_}, 12, 10\ns_cselect_b32 s{b_}, 5462, s{b_}\ns_cselect_b32 s{d_}, s{M.sW}, 0")
        E(f"v_mov_b32 v55, {OOB}")
        E(f"s_mov_b32 s{e_}, 1280\ns_cselect_b32 s{c_}, 3072, s{e_}\ns_lshl_b32 s{d_}, s{d_}, 9")
        E(f"s_cmp_ge_u32 s{sSIG}, 14\ns_cselect_b32 s{e_}, 50, 40\ns_lshl_b32 s{e_}, s{e_}, 3\ns_cmp_lt_u32 s{sSIG}, 8\ns_cselect_b32 s{e_}, 1920, s{e_}")
        for i in range(8):
            E(f"v_add_u32 v52, s{d_}, v0\nv_mul_u32_u24 v53, s{b_}, v52\nv_lshrrev_b32 v53, 16, v53\nv_mul_u32_u24 v54, s{a_}, v53\nv_sub_u32 v54, v52, v54")
            E(f"v_mul_u32_u24 v53, s{c_}, v53\nv_lshl_add_u32 v53, v54, 4, v53\nv_cmp_gt_u32 vcc, s{e_}, v52\nv_cndmask_b32 v{vA2+i}, v55, v53, vcc\ns_add_u32 s{d_}, s{d_}, 64")
        E(f"s_and_b32 s{a_}, s{sSIG}, 3\ns_mul_i32 s{a_}, s{a_}, {160*3072}\ns_mul_i32 s{b_}, s{M.sJ}, 192\ns_add_u32 s{a_}, s{a_}, s{b_}")
        E(f"s_cmp_ge_u32 s{sSIG}, 14\ns_cselect_b32 s{b_}, 2, 6\ns_cselect_b32 s{c_}, 14, 8\ns_cselect_b32 s{d_}, 40, 32")
        E(f"s_mul_i32 s{b_}, s{b_}, s{M.sTH}\ns_add_u32 s{b_}, s{b_}, s{sSIG}\ns_sub_u32 s{b_}, s{b_}, s{c_}\ns_lshl_b32 s{b_}, s{b_}, 2\ns_add_u32 s{sU}, s{b_}, s{M.sW}")
        E(f"s_mul_i32 s{b_}, s{sU}, s{d_}\ns_mul_i32 s{b_}, s{b_}, 1280\ns_mul_i32 s{c_}, s{M.sNB}, 160\ns_add_u32 s{b_}, s{b_}, s{c_}")
        E(f"s_cmp_lt_u32 s{sSIG}, 8\ns_cselect_b32 s{sS2}, s{a_}, s{b_}")
    def s2_load(self, i):
        M = self.M
        return f"s_lshl_b32 s{t[0]}, s{M.sLW}, 1\ns_add_u32 m0, s{t[0]}, {LDS2 + 1024*i}\nbuffer_load_dwordx4 v{vA2+i}, {s(SRC2,4)}, s{sS2} offen {'nt' if self.G.o.get('nt2', 1) else ''} lds"
    def s1_proc(self):
        E, M = self.E, self.M
        Lz, Lend = E.label("WZ"), E.label("WQ")
        E(f"s_cmp_ge_u32 s{sRHO}, 12\ns_cbranch_scc1 {Lz}")
        E("v_lshrrev_b32 v48, 4, v0\nv_bfe_u32 v49, v0, 1, 1\nv_lshl_add_u32 v48, v48, 1, v49\nv_bfe_u32 v49, v0, 2, 2\nv_lshl_add_u32 v48, v48, 3, v49")
        E(f"v_mul_u32_u24 v48, 80, v48\nv_add_u32 v48, {LDS1}, v48\nv_and_b32 v49, 1, v0")
        E("v_bfe_u32 v52, v0, 3, 1\nv_lshlrev_b32 v59, 9, v52\nv_and_b32 v52, 7, v0\nv_lshl_add_u32 v59, v52, 4, v59")
        E("v_lshrrev_b32 v54, 3, v0\nv_min_u32 v54, 1, v54\nv_lshlrev_b32 v54, 28, v54\nv_lshl_add_u32 v54, v52, 4, v54")
        E(f"s_cmp_eq_u32 s{t[1]}, 0\ns_cselect_b32 s{t[5]}, 10, 0\ns_cmp_eq_u32 s{t[1]}, 2\ns_cselect_b32 s{t[5]}, 5, s{t[5]}")
        E(f"s_mul_i32 s{t[6]}, s{M.sJ}, {160*KB}\ns_add_u32 s{t[6]}, s{t[6]}, {WQ}")
        E(f"s_lshl_b32 s{t[7]}, s{M.sJ}, 12\ns_mul_i32 s{t[8]}, s{t[2]}, 0x108\ns_and_b32 s{t[8]}, s{t[8]}, 0x208\ns_add_u32 s{t[7]}, s{t[7]}, s{t[8]}\ns_add_u32 s{t[7]}, s{t[7]}, {CSQ}")
        done0 = E.vm_done
        for rnd in range(2):
            if rnd == 0:
                E(f"s_and_b32 s{t[8]}, s{M.sW}, 1\ns_lshl_b32 s{t[8]}, s{t[8]}, 3\ns_lshr_b32 s{t[9]}, s{M.sW}, 1\ns_lshl_b32 s{t[9]}, s{t[9]}, 5\ns_add_u32 s{t[8]}, s{t[8]}, s{t[9]}")
                E(f"s_cmp_eq_u32 s{M.sW}, 2\ns_cselect_b32 s{t[9]}, 40, 16\ns_add_u32 s{t[10]}, s{t[5]}, s{M.sW}")
            else:
                E(f"s_cmp_lg_u32 s{M.sW}, 3\ns_cbranch_scc1 {Lend}")
                E(f"s_mov_b32 s{t[8]}, 48\ns_mov_b32 s{t[9]}, 16\ns_add_u32 s{t[10]}, s{t[5]}, 4")
            E(f"v_mul_u32_u24 v55, s{t[9]}, v49\nv_add3_u32 v55, v55, v48, s{t[8]}")
            E(f"s_cmp_ge_u32 s{t[10]}, 8\ns_cselect_b32 s{t[14]}, 1, 2\ns_cselect_b32 s{t[15]}, 40, 1\ns_cselect_b32 s{t[11]}, {80*KB}, 0\ns_lshl_b32 s{t[14]}, s{t[14]}, 10")
            E(f"s_mul_i32 s{t[12]}, s{t[2]}, 10\ns_mul_i32 s{t[12]}, s{t[12]}, s{t[14]}\ns_add_u32 s{t[11]}, s{t[11]}, s{t[12]}")
            E(f"v_lshrrev_b32 v51, 4, v0\nv_mad_u32_u24 v51, v51, s{t[14]}, v59\nv_lshrrev_b32 v53, 5, v0\nv_lshl_add_u32 v53, v53, 28, v51\ns_lshl_b32 s{t[14]}, s{t[14]}, 2")
            E(f"s_bfe_u32 s{t[12]}, s{t[10]}, 0x10002\ns_mul_i32 s{t[12]}, s{t[12]}, s{t[15]}\ns_lshl_b32 s{t[12]}, s{t[12]}, 10")
            E(f"s_add_u32 s{t[11]}, s{t[11]}, s{t[12]}\ns_and_b32 s{t[12]}, s{t[10]}, 3\ns_lshl_b32 s{t[13]}, s{t[12]}, 7\ns_add_u32 s{t[11]}, s{t[11]}, s{t[13]}\ns_add_u32 s{t[11]}, s{t[11]}, s{t[6]}")
            E(f"s_lshl_b32 s{t[12]}, s{t[12]}, 7\ns_lshr_b32 s{t[13]}, s{t[10]}, 2\ns_lshl_b32 s{t[13]}, s{t[13]}, 10\ns_add_u32 s{t[12]}, s{t[12]}, s{t[13]}\ns_add_u32 s{t[12]}, s{t[12]}, s{t[7]}")
            if rnd == 0:
                E.wait(vm=self.tok1); E("s_barrier")
            d0 = 60 + 16 * rnd
            for y in range(3):
                for rd in range(2): E(f"ds_read_b64_tr_b16 {v(d0+4*y+2*rd,2)}, v55 offset:{(64*y+4*rd)*80}")
            for y in range(3):
                E(f"buffer_store_dwordx4 {v(d0+4*y,4)}, v{53 if y == 2 else 51}, {s(M.WS,4)}, s{t[11]} offen sc1", count=False)
                if y < 2: E(f"s_add_u32 s{t[11]}, s{t[11]}, s{t[14]}")
            E("v_mov_b32 v56, 0")
            for y in range(3):
                if y == 2: E("s_mov_b32 exec_hi, 0")
                for e in range(4): E(f"v_dot2c_f32_bf16 v56, s{sONE}, v{d0+4*y+e}")
            E("s_mov_b32 exec_hi, -1")
            for sw in ("v_permlane32_swap_b32", "v_permlane16_swap_b32"):
                E(f"v_mov_b32 v57, v56\n{sw} v57, v56\nv_add_f32 v56, v57, v56")
            E("v_add_f32_dpp v56, v56, v56 row_ror:8 row_mask:0xf bank_mask:0xf")
            split_hi_lo(E, 56, 57, 58, d0 + 12)
            E(f"buffer_store_dwordx2 {v(d0+12,2)}, v54, {s(M.WS,4)}, s{t[12]} offen sc1", count=False)
        E(f"s_branch {Lend}")
        E.place(Lz); E.hist = []
        E("v_mov_b32 v60, 0\nv_mov_b32 v61, 0\nv_mov_b32 v62, 0\nv_mov_b32 v63, 0")
        E(f"s_lshl_b32 s{t[5]}, s{M.sJ}, 2\ns_add_u32 s{t[5]}, s{t[5]}, s{t[2]}\ns_lshl_b32 s{t[5]}, s{t[5]}, 10\ns_add_u32 s{t[5]}, s{t[5]}, {FLAGS}")
        E(f"s_lshl_b32 s{t[6]}, s{M.sR}, 2\ns_add_u32 s{t[6]}, s{t[6]}, s{M.sW}\ns_lshl_b32 s{t[6]}, s{t[6]}, 11\ns_add_u32 s{t[6]}, s{t[6]}, {GCNT}")
        E(f"s_cmp_eq_u32 s{M.sW}, 0\ns_cselect_b32 s{t[7]}, 0, {OOB}\nv_add_u32 v51, s{t[7]}, v{M.vL16}")
        E(f"s_cmp_eq_u32 s{sRHO}, 15\ns_cselect_b32 s{t[7]}, 0, {OOB}\nv_add_u32 v52, s{t[7]}, v{M.vL16}")
        E(f"buffer_store_dwordx4 v[60:63], v51, {s(M.WS,4)}, s{t[5]} offen sc1", count=False)
        for k in range(2): E(f"buffer_store_dwordx4 v[60:63], v52, {s(M.WS,4)}, s{t[6]} offen offset:{1024*k} sc1", count=False)
        E.place(Lend); E.hist = []; E.vm_done = done0
        E("s_nop 1")
    def flag(self, code):
        E, M = self.E, self.M
        L = E.label("FG")
        E(f"s_cmp_lg_u32 s{M.sW}, 0\ns_cbranch_scc1 {L}")
        E(code)
        E(f"buffer_store_dwordx2 {v(vTK,2)}, v{M.vSIG}, {s(M.WS,4)}, s{M.sA} offen sc1", count=False)
        E.place(L)
    def flag1(self):
        M = self.M
        self.flag(f"s_lshl_b32 s{M.sA}, s{M.sJ}, 4\ns_add_u32 s{M.sA}, s{M.sA}, s{sRHO}\ns_lshl_b32 s{M.sA}, s{M.sA}, 7\ns_add_u32 s{M.sA}, s{M.sA}, {F1}")
    def flag2(self):
        M = self.M
        self.flag(f"s_lshl_b32 s{M.sA}, s{M.sJ}, 4\ns_add_u32 s{M.sA}, s{M.sA}, s{M.sR}\ns_lshl_b32 s{M.sA}, s{M.sA}, 7\ns_add_u32 s{M.sA}, s{M.sA}, {F2}")
    def vpoll_issue(self, addr, dst):
        return f"buffer_load_dwordx2 {v(dst,2)}, v{addr}, {s(self.M.WS,4)}, 0 offen sc1"
    def vpoll_check(self, addr, dst, slp):
        def fn():
            E, M = self.E, self.M
            Ls, Lb = E.label("VS"), E.label("VB")
            E(f"v_cmp_ne_u64 vcc, {v(dst,2)}, {v(vTK,2)}\ns_cbranch_vccnz {Ls}")
            E.place(Lb)
            self.G.tail.append(f"{Ls}:\ns_mov_b32 s{M.sF}, 0x100000\n{Ls}_l:\ns_sleep {slp}\n{self.vpoll_issue(addr, dst)}\ns_waitcnt vmcnt(0)\n"
                               f"v_cmp_ne_u64 vcc, {v(dst,2)}, {v(vTK,2)}\ns_nop 1\ns_cbranch_vccz {Lb}\ns_sub_u32 s{M.sF}, s{M.sF}, 1\ns_cmp_lg_u32 s{M.sF}, 0\n"
                               f"s_cbranch_scc1 {Ls}_l\ns_branch {Lb}")
        return fn
    def s2_proc(self):
        E, M = self.E, self.M
        Ld, Lo, Le, Lk = E.label("S2"), E.label("S2"), E.label("S2"), E.label("S2")
        E.drain(vm=False)
        dummy = f"buffer_store_dword v231, v231, {s(M.WS,4)}, 0 offen"
        self.G.tail.append(f"{Lk}:\n" + "\n".join([dummy] * 11) + f"\ns_branch {Le}")
        E(f"v_mov_b32 v231, {OOB}")
        B = 176
        st = lambda x: E(x, count=False)
        E(f"s_lshl_b32 s{t[0]}, s{M.sLW}, 1\ns_add_u32 s{t[0]}, s{t[0]}, {LDS2}")
        E(f"s_cmp_ge_u32 s{sSIG}, 14\ns_cbranch_scc1 {Lo}\ns_cmp_ge_u32 s{sSIG}, 8\ns_cbranch_scc1 {Ld}")
        E(f"s_cmp_eq_u32 s{M.sW}, 3\ns_cbranch_scc1 {Lk}")
        E(f"v_bfe_u32 v{B}, v0, 2, 2\nv_lshrrev_b32 v{B+1}, 5, v0\nv_lshl_add_u32 v{B}, v{B+1}, 3, v{B}\nv_mul_u32_u24 v{B}, 192, v{B}")
        E(f"v_bfe_u32 v{B+1}, v0, 4, 1\nv_lshl_add_u32 v{B}, v{B+1}, 5, v{B}\nv_and_b32 v{B+1}, 1, v0\nv_lshl_add_u32 v{B}, v{B+1}, 4, v{B}")
        E(f"v_bfe_u32 v{B+1}, v0, 1, 1\nv_lshl_add_u32 v{B}, v{B+1}, 3, v{B}\ns_lshl_b32 s{t[1]}, s{M.sW}, 6\ns_add_u32 s{t[1]}, s{t[1]}, {LDS2}\nv_add_u32 v{B}, s{t[1]}, v{B}")
        for ks in range(10):
            for rd in range(2): E(f"ds_read_b64_tr_b16 {v(B+8+4*ks+2*rd,2)}, v{B} offset:{(16*ks+4*rd)*192}")
        E(f"v_lshrrev_b32 v{B+1}, 5, v0\nv_lshlrev_b32 v{B+1}, 28, v{B+1}\nv_lshl_add_u32 v{B+1}, v0, 4, v{B+1}")
        E(f"s_mul_i32 s{t[1]}, s{M.sJ}, 3\ns_add_u32 s{t[1]}, s{t[1]}, s{M.sW}\ns_lshr_b32 s{t[2]}, s{sSIG}, 2\ns_lshl_b32 s{t[2]}, s{t[2]}, 10\ns_and_b32 s{t[5]}, s{sSIG}, 3")
        E(f"s_mul_i32 s{t[3]}, s{t[1]}, {80*KB}\ns_mul_i32 s{t[4]}, s{t[5]}, {20*KB}\ns_add_u32 s{t[3]}, s{t[3]}, s{t[4]}\ns_add_u32 s{t[3]}, s{t[3]}, s{t[2]}\ns_add_u32 s{t[3]}, s{t[3]}, {WGU}")
        E(f"s_lshl_b32 s{t[4]}, s{t[1]}, 11\ns_add_u32 s{t[4]}, s{t[4]}, s{t[2]}\ns_mul_i32 s{t[2]}, s{t[5]}, 0x108\ns_and_b32 s{t[2]}, s{t[2]}, 0x208\ns_add_u32 s{t[4]}, s{t[4]}, s{t[2]}\ns_add_u32 s{t[4]}, s{t[4]}, {CSG}")
        E(f"v_mov_b32 v{B+2}, 0")
        for ks in range(10):
            for e in range(4): E(f"v_dot2c_f32_bf16 v{B+2}, s{sONE}, v{B+8+4*ks+e}")
        for ks in range(10):
            st(f"buffer_store_dwordx4 {v(B+8+4*ks,4)}, v{M.vL16}, {s(M.WS,4)}, s{t[3]} offen offset:{2048*(ks%2)} sc1")
            if ks % 2: E(f"s_add_u32 s{t[3]}, s{t[3]}, 4096")
        E(f"v_mov_b32 v{B+3}, v{B+2}\nv_permlane32_swap_b32 v{B+3}, v{B+2}\nv_add_f32 v{B+2}, v{B+3}, v{B+2}")
        split_hi_lo(E, B + 2, B + 3, B + 4, B + 6)
        st(f"buffer_store_dwordx2 {v(B+6,2)}, v{B+1}, {s(M.WS,4)}, s{t[4]} offen sc1")
        E(f"s_branch {Le}")
        E.place(Ld); E.hist = []
        E(f"v_bfe_u32 v{B}, v0, 2, 2\nv_lshrrev_b32 v{B+1}, 4, v0\nv_lshl_add_u32 v{B}, v{B+1}, 3, v{B}\nv_mul_u32_u24 v{B}, 160, v{B}")
        E(f"v_add_u32 v{B}, s{t[0]}, v{B}\nv_and_b32 v{B+2}, 3, v0\nv_lshl_add_u32 v{B+1}, v{B+2}, 3, v{B}\nv_lshl_add_u32 v{B}, v{B+2}, 5, v{B}")
        for nt in range(5):
            for rd in range(2): E(f"ds_read_b64_tr_b16 {v(B+8+4*nt+2*rd,2)}, v{B+1 if nt == 4 else B} offset:{4*rd*160 + (128 if nt == 4 else 8*nt)}")
        E(f"s_mul_i32 s{t[1]}, s{sU}, 21846\ns_lshr_b32 s{t[1]}, s{t[1]}, 16\ns_mul_i32 s{t[3]}, s{t[1]}, 3\ns_sub_u32 s{t[3]}, s{sU}, s{t[3]}")
        E(f"s_lshl_b32 s{t[3]}, s{t[3]}, 2\ns_and_b32 s{t[4]}, s{t[1]}, 3\ns_add_u32 s{t[3]}, s{t[3]}, s{t[4]}\ns_mul_i32 s{t[3]}, s{t[3]}, {5*KB}")
        E(f"s_lshr_b32 s{t[4]}, s{t[1]}, 2\ns_mul_i32 s{t[4]}, s{t[4]}, {60*KB}\ns_add_u32 s{t[3]}, s{t[3]}, s{t[4]}")
        E(f"s_mul_i32 s{t[4]}, s{M.sNB}, {240*KB}\ns_add_u32 s{t[3]}, s{t[3]}, s{t[4]}\ns_add_u32 s{t[3]}, s{t[3]}, {WD}\ns_add_u32 s{t[4]}, s{t[3]}, 4096")
        for nt in range(5):
            st(f"buffer_store_dwordx4 {v(B+8+4*nt,4)}, v{M.vL16}, {s(M.WS,4)}, s{t[4] if nt == 4 else t[3]} offen offset:{1024*(nt%4)} sc1")
        for _ in range(6): st(dummy)
        E(f"s_branch {Le}")
        E.place(Lo); E.hist = []
        C = B + 40
        E(f"v_lshrrev_b32 v{B+2}, 4, v0\nv_and_b32 v{B+3}, 1, v{B+2}\nv_lshrrev_b32 v{B+4}, 5, v0\nv_mul_u32_u24 v{B+5}, 20, v{B+4}\nv_lshl_add_u32 v{B+5}, v{B+3}, 3, v{B+5}")
        E(f"v_bfe_u32 v{B}, v0, 2, 2\nv_add_u32 v{B+5}, v{B+5}, v{B}\nv_mul_u32_u24 v{B+5}, 160, v{B+5}\nv_add_u32 v{B+5}, s{t[0]}, v{B+5}")
        E(f"v_and_b32 v{B+6}, 3, v0\nv_mul_u32_u24 v{B}, 160, v{B}\nv_add_u32 v{B+7}, s{t[0]}, v{B}")
        E(f"v_lshl_add_u32 v{B}, v{B+6}, 5, v{B+5}\nv_lshl_add_u32 v{B+1}, v{B+6}, 3, v{B+5}")
        E(f"v_lshl_add_u32 v{C}, v{B+6}, 5, v{B+7}\nv_lshl_add_u32 v{C}, v{B+2}, 3, v{C}\nv_lshl_add_u32 v{C+1}, v{B+6}, 3, v{B+7}")
        for nt in range(5):
            for rd in range(2): E(f"ds_read_b64_tr_b16 {v(B+8+4*nt+2*rd,2)}, v{B+1 if nt == 4 else B} offset:{4*rd*160 + (128 if nt == 4 else 8*nt)}")
        for rd in range(2): E(f"ds_read_b64_tr_b16 {v(B+28+2*rd,2)}, v{C} offset:{(16, 36)[rd]*160}")
        for rd in range(2): E(f"ds_read_b64_tr_b16 {v(B+32+2*rd,2)}, v{C+1} offset:{(16, 36)[rd]*160 + 128}")
        E(f"v_and_b32 v{C+2}, 15, v0\nv_lshlrev_b32 v{C+2}, 4, v{C+2}\nv_mul_u32_u24 v{C+3}, {10*KB}, v{B+4}\nv_lshl_add_u32 v{C+3}, v{B+3}, 8, v{C+3}\nv_add_u32 v{C+3}, v{C+3}, v{C+2}")
        E(f"v_lshl_add_u32 v{C+4}, v{B+2}, 10, v{C+2}\nv_lshl_add_u32 v{C+5}, v{B+2}, 28, v{C+2}")
        E(f"s_lshr_b32 s{t[1]}, s{sU}, 2\ns_mul_i32 s{t[1]}, s{t[1]}, {25*KB}\ns_mul_i32 s{t[3]}, s{M.sNB}, {100*KB}\ns_add_u32 s{t[1]}, s{t[1]}, s{t[3]}\ns_add_u32 s{t[1]}, s{t[1]}, {WO}")
        E(f"s_lshr_b32 s{t[3]}, s{M.sW}, 1\ns_mul_i32 s{t[3]}, s{t[3]}, {5*KB}\ns_and_b32 s{t[4]}, s{M.sW}, 1\ns_lshl_b32 s{t[4]}, s{t[4]}, 9\ns_add_u32 s{t[3]}, s{t[3]}, s{t[4]}")
        E(f"s_add_u32 s{t[3]}, s{t[3]}, s{t[1]}\ns_add_u32 s{t[4]}, s{t[3]}, 4096")
        E(f"s_lshl_b32 s{t[5]}, s{M.sW}, 8\ns_add_u32 s{t[5]}, s{t[5]}, s{t[1]}\ns_add_u32 s{t[5]}, s{t[5]}, {20*KB}\ns_add_u32 s{t[6]}, s{t[5]}, 4096")
        for nt in range(5):
            st(f"buffer_store_dwordx4 {v(B+8+4*nt,4)}, v{C+3}, {s(M.WS,4)}, s{t[4] if nt == 4 else t[3]} offen offset:{1024*(nt%4)} sc1")
        st(f"buffer_store_dwordx4 {v(B+28,4)}, v{C+4}, {s(M.WS,4)}, s{t[5]} offen sc1")
        st(f"buffer_store_dwordx4 {v(B+32,4)}, v{C+5}, {s(M.WS,4)}, s{t[6]} offen sc1")
        for _ in range(4): st(dummy)
        E.place(Le); E.hist = []
        E.vm_n += 11; self.tok3 = E.vm_n
        E("s_nop 1")
```

```python
import sys, math, struct
from emit import *
from layout import *
from startup3 import Startup, sTK, vTK, sONE, sRHO, OOB
KNAME = "interleave_layers__sliding_block__glu_gated_geglu__prompt_kernel"

def f2u(x): return hex(struct.unpack("<I", struct.pack("<f", x))[0])

WS = 4; OUT = 8; XIN = 12
sR, sJ, sW, sTH, sNB = 16, 17, 18, 19, 20
sWQ, sWGU, sWO, sWD, sLW = 21, 22, 23, 24, 25
sXB, sKVme, sOme, sHme = 26, 27, 28, 29
sT0 = 30
sMASK = 32
sRET = 64
sT16 = 66; sT16H = 70
sA, sB, sC, sD, sE_, sF = 74, 75, 76, 77, 78, 79
sFL = 80
sHAL = 89
sKP, sKC, sKT = 91, 92, 3
sRM = 93
sTS = 94
sTP, sTC, sWP, sWC = 98, 99, 100, 101
sP = 2
vL16, vL16b, vL16c = 1, 2, 3
vU = 4; vPOS = 5; vST = 6; vCS = 7; vSIG = 8; vONE = 9
vRW = 10
vXW = 14; vXW5 = 15; vO4 = 16; vSW = 17; vRSTD = 18; vT = 19
vRES = 20
vNM = 40
vC1, vC2, vIV = 44, 45, 46
vKR = 47
vRM, vRM5, vTS, vTS2 = 250, 251, 252, 253
vP = 255; vDUM = 254; vSR = 255
sTCR = 1
vTL = 7
sPV = 15
sH8, sH16, sHX = 12, 13, 14
SLOT = 5248; ONES = 12 * SLOT; EPS = 1e-5
AG = 256
NX0 = 10

class Pool:
    def __init__(self, quads=()): self.free = list(quads)
    def get(self): return self.free.pop(0)
    def put(self, q): self.free.append(q)
    def add(self, qs): self.free += list(qs)

def spread(ev, groups, start, step):
    for i, g in enumerate(groups): ev.setdefault(int(start + i * step), []).append(g)

class Gen:
    def __init__(self, stop=99, stamps=False, mapping="mix", opts=None):
        self.E = Emit(); self.stop = stop; self.stamps = stamps; self.mapping = mapping
        self.sites = []; self.nst = 0; self.stnames = []; self.tail = []; self.o = opts or {}
    def do(self, g):
        if isinstance(g, tuple):
            for x in g: r = self.do(x)
            return r
        if callable(g): return g()
        return self.E(g)
    @staticmethod
    def flat(g):
        if isinstance(g, tuple): return list(g)
        if callable(g): return [g]
        l = g.split("\n")
        return [x for x in ("\n".join(l[:-1]), l[-1]) if x]
    def stamp(self, name):
        if not self.stamps: return
        if self.o.get("ends") and name not in ("L1 P5 done", "L1 P1 synced", "WQ synced", "L0 P4 synced", "L1 P4 synced", "L0 P3 synced", "L1 P3 synced", "L0 halo in", "L1 halo in"): return
        E = self.E
        E(f"s_memrealtime {s(sTS,2)}\ns_memtime {s(sTS+2,2)}"); E.wait_smem()
        E(f"v_writelane_b32 v{vTS}, s{sTS}, {self.nst}\nv_writelane_b32 v{vTS2}, s{sTS+2}, {self.nst}")
        self.nst += 1; self.stnames.append(name)
    def dma4(self, sbase, goff, ldsoff, rec=None, fl="sc1"):
        g = [f"s_add_u32 m0, s{sLW}, {ldsoff}\ns_add_u32 s{sT0}, s{sbase}, {goff}\nbuffer_load_dwordx4 v{vL16}, {s(WS,4)}, s{sT0} offen {fl} lds"]
        for i in range(1, 4): g.append(f"buffer_load_dwordx4 v{vL16}, {s(WS,4)}, s{sT0} offen offset:{1024*i} {fl} lds")
        if rec is not None:
            last = g[3]
            g[3] = lambda: rec.append(self.E(last))
        return g
    def wread(self, dst, ldsaddr):
        return f"ds_read_b128 {R(dst,4)}, v{vL16+(ldsaddr >> 16)} offset:{ldsaddr & 0xffff}"
    def signal(self, sreg, imm, tok, va=None):
        def fn():
            self.E.wait(vm=tok() if callable(tok) else tok)
            self.E(f"buffer_atomic_add v{vONE}, v{va or vSIG}, {s(WS,4)}, s{sreg} offen offset:{imm} sc1")
        return fn
    def poll_issue(self, sreg, imm):
        if self.o.get("spoll", 1): return f"s_load_dword s{sPV}, {s(WS,2)}, s{sreg} offset:{imm} glc"
        return f"buffer_load_dword v{vP}, v{vSIG}, {s(WS,4)}, s{sreg} offen offset:{imm} sc1"
    def poll_check(self, sreg, imm, thr, slp=None):
        def fn():
            E = self.E
            Ls, Lb = E.label("SP"), E.label("BK")
            sc = self.o.get("spoll", 1)
            if sc: E.wait_smem()
            else: E(f"v_readfirstlane_b32 s{sPV}, v{vP}")
            E(f"s_cmp_ge_u32 s{sPV}, {thr}\ns_cbranch_scc0 {Ls}")
            E.place(Lb)
            sl = self.o.get("slp", 0) if slp is None else slp
            cnt = ""
            if self.stamps and self.o.get("ends"):
                self.sites.append(f"{sreg}/{imm}")
                cnt = f"s_sub_u32 s{sPV}, 0x200001, s{sF}\nv_writelane_b32 v{vTS2}, s{sPV}, {30 + len(self.sites)}\n"
            self.tail.append(f"{Ls}:\ns_mov_b32 s{sF}, 0x200000\n{Ls}_l:\n" + cnt + (f"s_sleep {sl}\n" if sl else "") + self.poll_issue(sreg, imm) +
                             ("\ns_waitcnt lgkmcnt(0)\n" if sc else f"\ns_waitcnt vmcnt(0)\nv_readfirstlane_b32 s{sPV}, v{vP}\ns_nop 0\n") +
                             f"s_cmp_ge_u32 s{sPV}, {thr}\ns_cbranch_scc1 {Lb}\ns_sub_u32 s{sF}, s{sF}, 1\ns_cmp_lg_u32 s{sF}, 0\n"
                             f"s_cbranch_scc1 {Ls}_l\ns_branch {Lb}")
        return fn
    def poll_block(self, sreg, imm, thr):
        self.E(self.poll_issue(sreg, imm)); self.poll_check(sreg, imm, thr)()
    def T(self, kind, L): return 1024 * kind + 4 * L if kind < 4 else 8 + 4 * L
    def touch(self, sreg, sh, off):
        def fn():
            self.E(f"s_add_u32 s{sP}, s{sreg}, s{sh}\ns_add_u32 s{sP}, s{sP}, {off}\nbuffer_load_dword v{vDUM}, v{vTL}, {s(WS,4)}, s{sP} offen sc1")
            self.E.pend.pop(f"v{vDUM}", None)
        m = self.o.get("touch", 0)
        return fn if (m & (1 if sh == sHX else 2)) else (lambda: None)
    def prologue(self):
        E = self.E
        kernel_header(E, KNAME)
        Lgo = E.label("GO")
        E(f"s_cmp_lt_u32 s2, 256\ns_cbranch_scc1 {Lgo}\ns_endpgm")
        E.place(Lgo)
        if self.stamps: E(f"s_memrealtime {s(sTS,2)}\ns_memtime {s(sTS+2,2)}")
        E(f"s_load_dwordx2 {s(WS,2)}, s[0:1], 72\ns_load_dwordx2 {s(OUT,2)}, s[0:1], 56\ns_load_dwordx2 {s(XIN,2)}, s[0:1], 0")
        E("s_load_dwordx4 s[80:83], s[0:1], 8\ns_load_dwordx4 s[84:87], s[0:1], 32\ns_load_dwordx2 s[88:89], s[0:1], 48")
        Lp = E.label("PC")
        E(f"s_getpc_b64 {s(sRET,2)}"); E.place(Lp)
        E(f"s_lshr_b32 s{sA}, s2, 3\nv_lshl_add_u32 v{vT}, v0, 5, s{sA}\nv_lshlrev_b32 v{vT}, 7, v{vT}\nv_min_u32 v{vT}, main_end-{Lp}-4, v{vT}")
        E(f"global_load_dword v247, v{vT}, {s(sRET,2)}")
        E(f"s_mov_b32 s{WS+2}, {WS_BYTES}\ns_mov_b32 s{WS+3}, 0x00020000")
        for b in (OUT, XIN): E(f"s_mov_b32 s{b+2}, {2048*640*2}\ns_mov_b32 s{b+3}, 0x00020000")
        E(f"v_lshrrev_b32 v{vT}, 6, v0\nv_and_b32 v0, 63, v0\nv_readfirstlane_b32 s{sW}, v{vT}")
        E(f"s_and_b32 s{sA}, s2, 7\ns_lshr_b32 s{sB}, s2, 3")
        if self.mapping == "mix":
            E(f"s_lshr_b32 s{sC}, s{sA}, 1\ns_lshl_b32 s{sC}, s{sC}, 2\ns_lshr_b32 s{sR}, s{sB}, 3\ns_add_u32 s{sR}, s{sR}, s{sC}")
            E(f"s_and_b32 s{sC}, s{sA}, 1\ns_lshl_b32 s{sC}, s{sC}, 3\ns_and_b32 s{sJ}, s{sB}, 7\ns_add_u32 s{sJ}, s{sJ}, s{sC}")
        else:
            E(f"s_lshr_b32 s{sR}, s{sB}, 4\ns_lshl_b32 s{sC}, s{sA}, 1\ns_add_u32 s{sR}, s{sR}, s{sC}\ns_and_b32 s{sJ}, s{sB}, 15")
        E(f"s_and_b32 s{sTH}, s{sJ}, 1\ns_lshr_b32 s{sNB}, s{sJ}, 1\ns_lshl_b32 s{sLW}, s{sW}, 12")
        E(f"v_lshlrev_b32 v{vL16}, 4, v0")
        if self.stamps: E(f"v_mov_b32 v{vTS}, 0\nv_mov_b32 v{vTS2}, 0")
        E.wait_smem()
        if self.stamps:
            E(f"v_writelane_b32 v{vTS2}, s2, 63")
            E(f"v_writelane_b32 v{vTS}, s{sTS}, 0\nv_writelane_b32 v{vTS2}, s{sTS+2}, 0")
            self.nst = 1; self.stnames.append("entry")
        wo_ = self.o.get("wsoff", 0) << 20
        if wo_: E(f"s_add_u32 s{WS}, s{WS}, {wo_}\ns_addc_u32 s{WS+1}, s{WS+1}, 0\ns_mov_b32 s{WS+2}, {WS_BYTES - wo_}")
        S = self.S = Startup(self, sys.modules[__name__])
        S.roles(80, 82, 84, 86, 88)
        S.s1_load(); S.x_touch()
        E(f"v_mov_b32 v{vTK+1}, {EPOCH}\nbuffer_load_dword v{vTK}, v{vTK+1}, {s(WS,4)}, 0 offen sc1")
        self.stamp("st S1 issued")
        S.s2_addrs()
        self.s2q = [(lambda i=i: setattr(S, "tok2", E(S.s2_load(i)))) for i in range(8)]
        if self.o.get("s2when", 0) == 0:
            while self.s2q: self.s2q.pop(0)()
        E(f"s_lshl_b32 s{sA}, s{sR}, 2\ns_add_u32 s{sA}, s{sA}, s{sW}\ns_mul_i32 s{sXB}, s{sA}, {40*KB}")
    def masks(self):
        r = []
        for i in range(16):
            m = 0
            for l in range(64):
                if (i & 3) + 8 * (i >> 2) + 4 * (l >> 5) <= (l & 31): m |= 1 << l
            r.append(f"s_mov_b32 s{sMASK+2*i}, {hex(m & 0xffffffff)}\ns_mov_b32 s{sMASK+2*i+1}, {hex(m >> 32)}")
        return r
    def x_bounce(self, T):
        E = self.E; S = self.S
        XA = 96; XR = 100; TM = 104; PA, PD = 240, 242
        o = self.o
        E(f"v_lshrrev_b32 v48, 3, v0\nv_mul_u32_u24 v48, 1280, v48\nv_and_b32 v49, 7, v0\nv_lshrrev_b32 v50, 4, v0\nv_xor_b32 v49, v49, v50\nv_lshl_add_u32 v{XA}, v49, 4, v48")
        E(f"v_xor_b32 v{XA+1}, 64, v{XA}\nv_add_u32 v{XA+2}, {2*9216}, v{XA}\nv_add_u32 v{XA+3}, {3*9216}, v{XA+1}\nv_add_u32 v{XA+1}, 9216, v{XA+1}")
        tok = []
        def dma(ch):
            E(f"s_add_u32 m0, s{sLW}, {16*KB*(ch%4)}\ns_add_u32 s{sE_}, s{sXB}, {128*ch}")
            for i in range(4): t = E(f"buffer_load_dwordx4 v{XA+i}, {s(XIN,4)}, s{sE_} offen offset:{1024*i} lds")
            tok.append(t)
        n0 = o.get("xpre", 0)
        for ch in range(n0): dma(ch)
        S.s1_proc()
        self.stamp("st S1 stored")
        if o.get("s2when", 0) == 1:
            while self.s2q: self.s2q.pop(0)()
        for ch in range(n0, 3): dma(ch)
        E(f"s_mul_i32 s{sWQ}, s{sJ}, {160*KB}\ns_add_u32 s{sWQ}, s{sWQ}, s{sLW}\ns_add_u32 s{sWQ}, s{sWQ}, {WQ}")
        E(f"v_min_u32 v{vSIG}, 1, v0\nv_lshlrev_b32 v{vSIG}, 28, v{vSIG}\nv_mov_b32 v{vONE}, 1")
        E(f"v_and_b32 v48, 31, v0\nv_lshrrev_b32 v49, 5, v0\nv_bfe_u32 v50, v0, 1, 3\nv_xor_b32 v49, v49, v50\nv_lshlrev_b32 v49, 4, v49\nv_lshl_add_u32 v48, v48, 7, v49")
        E(f"v_add_u32 v{XR}, s{sLW}, v48")
        for k in range(1, 4): E(f"v_xor_b32 v{XR+k}, {32*k}, v{XR}")
        E(f"v_mov_b32 v{T}, 0\nv_mov_b32 v{T+1}, 0")
        E(f"s_mov_b32 s{sA}, 0x9e3779b1\nv_mul_lo_u32 v{vTK}, v{vTK}, s{sA}\nv_add_u32 v{vTK}, 0x7f4a7c15, v{vTK}\nv_xor_b32 v{vTK+1}, 0x5bd1e995, v{vTK}")
        E(f"v_readfirstlane_b32 s0, v{vTK}")
        dma(3)
        side = Emit(); self.E = side
        side(f"s_lshl_b32 s{sA}, s{sJ}, 11\ns_add_u32 s{sA}, s{sA}, {F1}\ns_sub_u32 s{sB}, 15, s{sR}\ns_lshl_b32 s{sB}, s{sB}, 11\ns_add_u32 s{sB}, s{sB}, {F1 + 15*128}")
        side(f"v_lshl_add_u32 v48, v0, 7, s{sA}\nv_mov_b32 v49, s{sB}\nv_cmp_gt_u32 vcc, 16, v0\nv_cndmask_b32 v{PA}, v49, v48, vcc")
        side(f"s_lshl_b32 s{sA}, s{sNB}, 12\ns_add_u32 s{sA}, s{sA}, {F2}\nv_and_b32 v48, 31, v0\nv_lshl_add_u32 v{PA+1}, v48, 7, s{sA}")
        self.prologue2()
        self.E = E
        cst = [x for x in side.out if not x.startswith("s_nop")]
        def take(n):
            while n < len(cst) and (cst[n].startswith("s_cselect") or cst[n - 1].startswith("s_cmp")): n += 1
            r = cst[:n]; del cst[:n]
            return r
        f1at = o.get("f1at", 0)
        for ch in range(10):
            E.wait(vm=tok[ch])
            for k in range(4): E(f"ds_read_b128 {v(TM+4*k,4)}, v{XR+k} offset:{16*KB*(ch%4)}")
            for k in range(4): E(f"ds_read_b128 {a(16*ch+4*k,4)}, v{XR+k} offset:{16*KB*(ch%4)}")
            if ch == f1at:
                assert ch >= n0
                E("s_barrier"); S.flag1(); self.stamp("st F1")
            if ch in (2, 5, 8)[:o.get("s2x", 3)] and self.s2q: self.s2q.pop(0)()
            if ch == o.get("f1poll", 8):
                Lw = E.label("PW")
                E(f"s_cmp_lg_u32 s{sW}, 0\ns_cbranch_scc1 {Lw}")
                E(S.vpoll_issue(PA, PD), count=False); E.place(Lw)
            for e in range(8): E(f"v_dot2c_f32_bf16 v{T}, s{sONE}, v{TM+e}\nv_dot2c_f32_bf16 v{T+1}, v{TM+e}, v{TM+e}")
            E.drain(vm=False)
            if ch + 4 < 10: dma(ch + 4)
            for e in range(8, 16): E(f"v_dot2c_f32_bf16 v{T}, s{sONE}, v{TM+e}\nv_dot2c_f32_bf16 v{T+1}, v{TM+e}, v{TM+e}")
            if f1at <= ch <= 8:
                for x in take(len(cst) if ch == 8 else -(-len(cst) // (9 - ch))): E(x)
            if ch == 8: self.resops = self.load_residual(160)
        self.stamp("st x done")
        E("s_waitcnt vmcnt(0)"); E.vm_done = E.vm_n
        Lw = E.label("PW")
        E(f"s_cmp_lg_u32 s{sW}, 0\ns_cbranch_scc1 {Lw}")
        S.vpoll_check(PA, PD, 8)()
        E.place(Lw)
        E("s_barrier")
        self.stamp("WQ synced")
    def sharers(self):
        return [f"s_and_b32 s{sA}, s{sR}, 3\ns_lshl_b32 s{sH8}, s{sA}, 1\ns_add_u32 s{sH8}, s{sH8}, s{sTH}\ns_lshl_b32 s{sH8}, s{sH8}, 11",
                f"s_and_b32 s{sA}, s{sR}, 3\ns_lshl_b32 s{sH16}, s{sA}, 2\ns_add_u32 s{sH16}, s{sH16}, s{sW}\ns_lshl_b32 s{sH16}, s{sH16}, 11\ns_sub_u32 s{sH16}, s{sH16}, s{sLW}",
                f"s_and_b32 s{sHX}, s{sJ}, 7\ns_lshl_b32 s{sHX}, s{sHX}, 11"]
    def prologue2(self):
        E = self.E; NREP = self.o.get("nrep", 4)
        E(f"s_mul_i32 s{sWGU}, s{sJ}, {240*KB}\ns_add_u32 s{sWGU}, s{sWGU}, s{sLW}\ns_add_u32 s{sWGU}, s{sWGU}, {WGU}")
        E(f"s_mul_i32 s{sWO}, s{sNB}, {100*KB}\ns_mul_i32 s{sA}, s{sW}, {25*KB}\ns_add_u32 s{sWO}, s{sWO}, s{sA}\ns_add_u32 s{sWO}, s{sWO}, {WO}")
        E(f"s_mul_i32 s{sWD}, s{sNB}, {240*KB}\ns_mul_i32 s{sA}, s{sW}, {60*KB}\ns_add_u32 s{sWD}, s{sWD}, s{sA}\ns_add_u32 s{sWD}, s{sWD}, {WD}")
        E(f"s_lshl_b32 s{sA}, s{sR}, 2\ns_add_u32 s{sA}, s{sA}, s{sW}")
        E(f"s_lshl_b32 s{sB}, s{sJ}, 6\ns_add_u32 s{sC}, s{sB}, s{sA}\ns_mul_i32 s{sKVme}, s{sC}, {5*KB}")
        E(f"s_lshr_b32 s{sKP}, s{sC}, 1\ns_lshl_b32 s{sKP}, s{sKP}, 7\ns_add_u32 s{sKP}, s{sKP}, {FLAGS}")
        E(f"s_mul_i32 s{sHme}, s{sA}, {96*KB}\ns_mul_i32 s{sC}, s{sJ}, {6*KB}\ns_add_u32 s{sHme}, s{sHme}, s{sC}")
        E(f"s_lshr_b32 s{sC}, s{sJ}, 2\ns_mul_i32 s{sOme}, s{sC}, {10*KB}\ns_add_u32 s{sOme}, s{sOme}, s{sXB}")
        for i in range(9):
            E(f"s_cmp_lt_u32 s{sA}, {8-i}\ns_cselect_b32 s{sFL+i}, 0x3f803f80, 0x3f800000" if False else
              f"s_cmp_lt_u32 s{sA}, {8-i}\ns_cselect_b32 s{sFL+i}, 0x3f80, 0\ns_or_b32 s{sFL+i}, s{sFL+i}, 1.0")
        E(f"s_lshl_b32 s{sC}, s{sR}, 2\ns_lshl_b32 s{sD}, s{sW}, 1\ns_add_u32 s{sC}, s{sC}, s{sD}")
        E(f"s_add_u32 s{sD}, s{sC}, s{sB}\ns_sub_u32 s{sD}, s{sD}, 8\ns_mul_i32 s{sHAL}, s{sD}, {5*KB}\ns_add_u32 s{sHAL}, s{sHAL}, {KV}")
        E(f"s_lshl_b32 s{sKC}, s{sD}, 6\ns_add_u32 s{sKC}, s{sKC}, {FLAGS}")
        E(f"s_cmp_lt_u32 s{sC}, 8\ns_cselect_b32 s{sHAL}, s{sWQ}, s{sHAL}\ns_cselect_b32 s{sHAL+1}, 0, {KV_STRIDE}")
        E(f"s_cselect_b32 s{sKC}, s{sKP}, s{sKC}\ns_cselect_b32 s{sKT}, 0, 2")
        E(f"s_lshl_b32 s{sA}, s{sR}, 13\ns_add_u32 s{sA}, s{sA}, {GCNT}")
        E(f"s_lshr_b32 s{sB}, s{sW}, 1\ns_lshl_b32 s{sC}, s{sB}, 2\ns_lshr_b32 s{sD}, s{sJ}, 2\ns_add_u32 s{sC}, s{sC}, s{sD}\ns_lshl_b32 s{sC}, s{sC}, 7\ns_add_u32 s{sTP}, s{sA}, s{sC}")
        E(f"s_lshl_b32 s{sC}, s{sTH}, 2\ns_add_u32 s{sC}, s{sC}, s{sW}\ns_lshl_b32 s{sC}, s{sC}, 7\ns_add_u32 s{sTC}, s{sA}, s{sC}")
        E(f"s_and_b32 s{sC}, s{sNB}, {NREP-1}\ns_lshl_b32 s{sC}, s{sC}, 10\ns_add_u32 s{sTCR}, s{sTC}, s{sC}")
        E(f"s_add_u32 s{sA}, s{sA}, {32*128}\ns_lshl_b32 s{sC}, s{sTH}, 1\ns_add_u32 s{sC}, s{sC}, s{sB}\ns_lshl_b32 s{sC}, s{sC}, 7\ns_add_u32 s{sWP}, s{sA}, s{sC}")
        E(f"s_lshl_b32 s{sC}, s{sW}, 7\ns_add_u32 s{sWC}, s{sA}, s{sC}\ns_and_b32 s{sC}, s{sNB}, {NREP-1}\ns_lshl_b32 s{sC}, s{sC}, 10\ns_add_u32 s{sWC}, s{sWC}, s{sC}")
        E(f"v_lshlrev_b32 v{vSR}, 10, v0\nv_mov_b32 v48, {OOB}\nv_cmp_gt_u32 vcc, {NREP}, v0\nv_cndmask_b32 v{vSR}, v48, v{vSR}, vcc")
        for i in range(4):
            E(f"s_add_u32 s{sA}, s{sW}, {1+i}\ns_and_b32 s{sA}, s{sA}, 3\ns_lshr_b32 s{sB}, s{sA}, 1\ns_and_b32 s{sC}, s{sA}, 1\ns_lshl_b32 s{sC}, s{sC}, 8")
            E(f"s_lshl_b32 s{sD}, s{sR}, 1\ns_add_u32 s{sD}, s{sD}, s{sTH}\ns_lshl_b32 s{sD}, s{sD}, 1\ns_add_u32 s{sB}, s{sB}, s{sD}")
            E(f"s_mul_i32 s{sT16+i}, s{sB}, {40*KB}\ns_add_u32 s{sT16+i}, s{sT16+i}, s{sC}")
            E(f"s_mul_i32 s{sT16H+i}, s{sB}, {96*KB}\ns_add_u32 s{sT16H+i}, s{sT16H+i}, s{sC}")
            E(f"s_mul_i32 s{sB}, s{sW}, {24*KB}\ns_add_u32 s{sT16H+i}, s{sT16H+i}, s{sB}")
            if i < 3:
                E(f"s_mul_i32 s{sA}, s{sA}, {15*KB}\ns_add_u32 s{sA}, s{sA}, {5*KB*i}\nv_add_u32 v{vRW+i}, s{sA}, v{vL16}")
        E(f"s_mul_i32 s{sA}, s{sW}, {15*KB}\nv_add_u32 v{vRW+3}, s{sA}, v{vL16}")
        t0, t1, t2 = 48, 49, 50
        E(f"v_add_u32 v{vL16b}, 0x10000, v{vL16}\nv_add_u32 v{vL16c}, 0x20000, v{vL16}")
        E(f"v_lshrrev_b32 v{t0}, 4, v0\nv_and_b32 v{t1}, 15, v0")
        E(f"v_lshlrev_b32 v{t2}, 9, v{t0}\nv_lshl_add_u32 v{vU}, v{t1}, 4, v{t2}")
        E(f"v_lshlrev_b32 v{t2}, 10, v{t0}\nv_lshl_add_u32 v{vXW}, v{t1}, 4, v{t2}")
        E(f"v_lshrrev_b32 v{t2}, 1, v{t0}\nv_lshlrev_b32 v{t2}, 9, v{t2}\nv_lshl_add_u32 v{vXW5}, v{t1}, 4, v{t2}")
        E(f"v_and_b32 v{t2}, 1, v{t0}\nv_lshl_add_u32 v{vXW5}, v{t2}, 3, v{vXW5}")
        E(f"v_lshlrev_b32 v{vTL}, 7, v{t1}\nv_lshl_add_u32 v{vTL}, v{t0}, 28, v{vTL}")
        E(f"v_lshlrev_b32 v{vSW}, 3, v{t1}\nv_lshl_add_u32 v{vSW}, v{t0}, 28, v{vSW}")
        E(f"v_mul_u32_u24 v{t2}, 1280, v{t1}\nv_lshl_add_u32 v{vRM}, v{t0}, 5, v{t2}\nv_lshl_add_u32 v{vRM5}, v{t0}, 3, v{t2}")
        E(f"s_lshl_b32 s{sA}, s{sR}, 1\ns_add_u32 s{sA}, s{sA}, s{sTH}\ns_lshl_b32 s{sA}, s{sA}, 2\ns_add_u32 s{sA}, s{sA}, s{sW}")
        E(f"s_mul_i32 s{sA}, s{sA}, {16*1280}\ns_mul_i32 s{sB}, s{sNB}, 160\ns_add_u32 s{sRM}, s{sA}, s{sB}")
        E(f"v_lshrrev_b32 v{t0}, 5, v0\nv_and_b32 v{t1}, 31, v0")
        E(f"v_lshlrev_b32 v{t2}, 2, v{t0}\nv_xor_b32 v{t2}, v{t2}, v{t1}\nv_lshlrev_b32 v{t2}, 4, v{t2}\nv_lshl_add_u32 v{vPOS}, v{t0}, 9, v{t2}")
        E(f"v_lshlrev_b32 v{t2}, 3, v{t1}")
        E(f"s_lshl_b32 s{sA}, s{sW}, 8\nv_lshl_add_u32 v{vST}, v{t0}, 12, v{t2}\nv_add_u32 v{vST}, s{sA}, v{vST}")
        E(f"v_lshlrev_b32 v{t2}, 4, v{t1}\nv_lshl_add_u32 v{vO4}, v{t0}, 3, v{t2}")
        E(f"s_mul_i32 s{sA}, s{sW}, {SLOT}\nv_add_u32 v{vKR}, s{sA}, v{vPOS}")
    def load_residual(self, t):
        E = self.E
        E(f"buffer_load_dwordx4 {v(t,4)}, v{vRM}, {s(XIN,4)}, s{sRM} offen")
        E(f"buffer_load_dwordx4 {v(t+4,4)}, v{vRM}, {s(XIN,4)}, s{sRM} offen offset:16")
        E(f"buffer_load_dwordx2 {v(t+8,2)}, v{vRM5}, {s(XIN,4)}, s{sRM} offen offset:128")
        return sum([[f"v_lshlrev_b32 v{vRES+2*i}, 16, v{t+i}", f"v_and_b32 v{vRES+2*i+1}, 0xffff0000, v{t+i}"] for i in range(10)], [])
    def stat_loads(self, idx, t):
        return [(f"s_lshl_b32 s{sC}, s{sR}, 13\ns_add_u32 s{sC}, s{sC}, {STAT + idx*128*KB}\n" if q == 0 else "") +
                f"buffer_load_dwordx2 {v(t+2*q,2)}, v{vST}, {s(WS,4)}, s{sC} offen offset:{1024*q} sc1" for q in range(4)]
    def stat_ops(self, t):
        return [f"v_add_f32 v{t}, v{t}, v{t+2}", f"v_add_f32 v{t+1}, v{t+1}, v{t+3}", f"v_add_f32 v{t+4}, v{t+4}, v{t+6}", f"v_add_f32 v{t+5}, v{t+5}, v{t+7}",
              f"v_add_f32 v{t}, v{t}, v{t+4}", f"v_add_f32 v{t+1}, v{t+1}, v{t+5}", f"v_mov_b32 v{t+2}, v{t}", f"v_mov_b32 v{t+3}, v{t+1}",
              f"v_permlane32_swap_b32 v{t+2}, v{t}", f"v_permlane32_swap_b32 v{t+3}, v{t+1}",
              f"v_add_f32 v{t}, v{t}, v{t+2}", f"v_add_f32 v{t+1}, v{t+1}, v{t+3}",
              f"v_mul_f32 v{t}, {f2u(-1/640)}, v{t}", f"v_mul_f32 v{t+1}, {f2u(1/640)}, v{t+1}",
              f"v_fma_f32 v{t+1}, -v{t}, v{t}, v{t+1}", f"v_cvt_pk_bf16_f32 v{vNM}, v{t}, v{t}", f"v_max_f32 v{t+1}, 0, v{t+1}",
              f"v_and_b32 v{t+2}, 0xffff0000, v{vNM}", f"v_add_f32 v{vIV}, {f2u(EPS)}, v{t+1}", f"v_sub_f32 v{t+2}, v{t}, v{t+2}",
              f"v_rsq_f32 v{vRSTD}, v{vIV}", f"v_cvt_pk_bf16_f32 v{vNM+1}, v{t+2}, 0", f"v_mov_b32 v{vNM+2}, v{vNM}", f"v_mov_b32 v{vNM+3}, v{vNM+1}"]
    def cs_loads(self, base, stride, ntile, dst):
        g = []
        for t in range(ntile):
            p = ""
            if t == 0: p = f"s_mul_i32 s{sD}, s{sJ}, {stride}\ns_add_u32 s{sD}, s{sD}, {base}\n"
            if t == 4: p = f"s_add_u32 s{sD}, s{sD}, 4096\n"
            g.append(p + f"buffer_load_dwordx4 {R(dst+4*t,4)}, v{vL16}, {s(WS,4)}, s{sD} offen offset:{1024*(t%4)} sc1")
        return g
    def xloads(self, base):
        g = []
        for ks in range(40):
            t = f"s_add_u32 s{sE_}, s{sXB}, {base + 1024*ks}\n" if ks % 4 == 0 else ""
            g.append(t + f"buffer_load_dwordx4 {a(4*ks,4)}, v{vL16}, {s(WS,4)}, s{sE_} offen offset:{1024*(ks%4)} sc1")
        return g
    def xstart(self, xl, base):
        n = self.o.get("xt", 2)
        for g in xl[:n]: self.E(g)
        for k in range(2): self.touch(sXB, sHX, base + 8 * KB + 16 * KB * k)()
        for g in xl[n:NX0]: self.E(g)
    def xt(self, i): return XT + XT_STRIDE * (1 if i == 3 and self.o.get("reuse", 7) & 4 else i)
    def fine(self, tag, sl):
        st = self.o.get("fine_" + tag, 0)
        if st and sl and sl % st == 0: self.stamp(f"{tag}@{sl}")
    def wstream(self, items, pos0, allw, ring, ev=None, valu=None, pre=None, budget=32, tag=""):
        E = self.E; LA = 6
        ev = ev or {}; valu = list(valu or []); pre = pre or {}
        f = pos0; over = 0; defer = []
        for sl, it in enumerate(items):
            self.fine(tag, sl)
            for g in pre.get(sl, []): self.do(g)
            if it[0] == "cs":
                E(f"v_mfma_f32_32x32x16_bf16 {v(it[1],16)}, {R(it[2],4)}, {v(vNM,4)}, {v(it[1],16)}")
                c0 = E.cost - 8
            else:
                acc, ks, first = it
                if f % 2 == 0: E.need(regs(R(ring + 4 * (f % LA), 4)) | regs(R(ring + 4 * ((f + 1) % LA), 4)) | regs(a(4 * ks, 4)))
                E(f"v_mfma_f32_32x32x16_bf16 {v(acc,16)}, {R(ring+4*(f%LA),4)}, {a(4*ks,4)}, {'0' if first else v(acc,16)}")
                c0 = E.cost - 8
                if f + LA < len(allw): E(self.wread(ring + 4 * (f % LA), allw[f + LA]))
                f += 1
            for g in ev.get(sl, []): self.do(g)
            if defer and self.o.get("verbose"): print("   ", tag, "deferred op at slot", sl)
            if defer: self.do(defer.pop(0))
            lim = budget - (4 if f % 2 == 0 else 0)
            while valu and valu[0][0] <= sl:
                x = valu[0][1]
                if isinstance(x, list): defer += x; valu.pop(0); continue
                c = sum(8 if y.startswith(TRANS) else 4 for y in x.split("\n"))
                if E.cost - c0 + c > lim and not (c > 16 and E.cost - c0 <= 12): break
                valu.pop(0); E(x)
            over += max(0, E.cost - c0 - lim)
        if self.o.get("verbose"): print(tag, "over budget", over, "left valu", len(valu))
        valu += [(0, defer)]
        assert max(list(ev) + list(pre) + [0]) < len(items), (max(list(ev) + list(pre)), len(items))
        for _, x in valu:
            for y in (x if isinstance(x, list) else [x]): self.do(y)
    @staticmethod
    def pair_items(acc, cs):
        return [(acc[sl & 1], sl >> 1, sl < 2) for sl in range(80)] + [("cs", acc[0], cs), ("cs", acc[1], cs + 4)]
    def p1(self, L):
        E = self.E; o = self.o
        ACC = [48, 64, 80, 96]; RING = 112; CS = 136
        KA, KB_, KV1, VA, VB = 152, 156, 160, 164, 168
        QA0, QB0, QA1, QB1 = 172, 176, 180, 184
        self.Q = (QA0, QB0, QA1, QB1)
        MK = self.MK = 188; VAD = self.VAD = [196, 205]; K1 = self.K1 = AG
        self.WOF = [AG + 160 + 4 * f for f in range(24)] + [244]
        xl = self.xloads(self.xt(2 * L))
        allw = [1024 * f for f in range(80)] + [1024 * f for f in range(80, 160)]
        tok = []
        if L == 0:
            self.x_bounce(152)
            resops = self.resops
            dm = [self.dma4(sWQ, 16 * KB * c, 16 * KB * c, tok) for c in range(10)]
            for g in self.sharers(): E(g)
            for g in dm[0]: self.do(g)
            for k in range(1, 3): self.touch(sWQ, sH16, 32 * KB * k)()
            for g in dm[1]: self.do(g)
            late = sum(dm[2:], [])
        else:
            E.wait(vm=self.wq_tok[1]); E("s_barrier")
            for f in range(6): E(self.wread(RING + 4 * f, allw[f]))
            self.poll_block(sWC, 512 + 4 * (L - 1), 16)
            self.stamp("L1 P1 synced")
            self.xstart(xl, self.xt(2 * L))
            resops = []; late = self.wq_late; tok = self.wq_tok
        def ready(c): return lambda: (E.wait(vm=tok[c]), E("s_barrier"))
        if L == 0:
            ready(0)()
            for f in range(6): E(self.wread(RING + 4 * f, allw[f]))
        ev = {}; pre = {}
        so = self.stat_ops(152)
        if L == 0:
            for c in range(1, 5): pre[16 * c - 6] = [ready(c)]
            seq = []
            for c in range(2, 8):
                seq += dm[c]
                if self.s2q: seq.append(self.s2q.pop(0))
                if c == 4: seq += self.cs_loads(CSQ, 4 * KB, 4, CS)
            seq += self.s2q
            spread(ev, seq, 0, o.get("lateS", 26) / 10)
            lateB = dm[8] + dm[9]
            so = [(2, x) for x in so[6:] + resops]
        else:
            pre[26] = [ready(len(tok) - 1)]
            assert len(tok) >= 7
            spread(ev, xl[NX0:] , 0, 2)
            spread(ev, self.stat_loads(2, 152), 21, 2)
            spread(ev, late, 60, 1.8)
            so = [(50, x) for x in so]
        if L: spread(ev, [self.touch(sWO, sH8, 16 * KB * k) for k in range(2)], 61, 14)
        if L == 0: pre[74] = [ready(5)]
        self.wstream(self.pair_items(ACC[:2], CS), 0, allw, RING, ev, so, pre, tag=f"A{L}")
        self.stamp(f"L{L} P1 passA")
        def epi(G0, G1, dst, sc, at):
            r = []
            for G in range(G0, G1):
                b = ACC[0] + 4 * G
                r += [(at, f"v_mul_f32 v{b+i}, v{sc[G-G0]}, v{b+i}") for i in range(4)]
                r += [(at, f"v_cvt_pk_bf16_f32 v{dst[G-G0]+i}, v{b+2*i}, v{b+2*i+1}") for i in range(2)]
            return r
        kvg = KV + L * KV_STRIDE
        st = {}
        vKW = 214; vQS = 215
        stA = [f"buffer_store_dwordx4 {v(reg,4)}, v{vPOS}, {s(WS,4)}, s{sA} offen offset:{off} sc1" for reg, off in ((KA, 0), (KB_, 1024), (VA, 2048))]
        stA[0] = f"s_add_u32 s{sA}, s{sKVme}, {kvg}\ns_add_u32 s{sB}, s{sA}, 4096\n" + stA[0]
        stA.append(lambda: st.__setitem__("A", E(f"buffer_store_dwordx4 {v(KV1,4)}, v{vPOS}, {s(WS,4)}, s{sB} offen sc1")))
        ldsA = [f"ds_write_b128 v{vKW}, {v(reg,4)} offset:{off}" for reg, off in ((KA, 0), (KB_, 1024), (VA, 2048), (KV1, 4096 + 128))]
        putB = [lambda: st.__setitem__("B", E(f"s_add_u32 s{sA}, s{sKVme}, {kvg}\nbuffer_store_dwordx4 {v(VB,4)}, v{vPOS}, {s(WS,4)}, s{sA} offen offset:3072 sc1")),
                f"ds_write_b128 v{vKW}, {v(VB,4)} offset:3072"]
        qs = 20 ** -0.5 * math.log2(math.e)
        va = epi(0, 8, [KA, KA + 2, KV1, KB_, KB_ + 2, VA, VA + 2, KV1 + 2], [vRSTD] * 8, 1)
        for k, G in reversed(list(enumerate((1, 4, 6, 7)))): va.insert(6 * (G + 1), (1, [stA[k]]))
        va += [(1 if L else 26, f"v_add_u32 v{vKW}, {8*SLOT}, v{vKR}"), (1 if L else 26, f"v_mul_f32 v{vQS}, {f2u(qs)}, v{vRSTD}")]
        t0, t1, t2 = 216, 217, 218
        cst = []
        for i in range(8):
            cst += [f"v_cndmask_b32 v{t0}, 0, -1, {s(sMASK+4*i,2)}", f"v_cndmask_b32 v{t1}, 0, -1, {s(sMASK+4*i+2,2)}",
                    f"v_and_b32 v{t0}, 0xffff, v{t0}", f"v_lshl_or_b32 v{MK+i}, v{t1}, 16, v{t0}"]
        cst += [f"v_lshrrev_b32 v{t0}, 5, v0", f"v_bfe_u32 v{t1}, v0, 2, 2", f"v_lshl_add_u32 v{t0}, v{t0}, 2, v{t1}",
                f"v_bfe_u32 v{t1}, v0, 4, 1", f"v_and_b32 v{t2}, 3, v0", f"v_lshl_add_u32 v{t1}, v{t1}, 2, v{t2}",
                f"v_and_b32 v{t2}, 1, v0", f"v_lshlrev_b32 v219, 2, v{t2}", f"v_xor_b32 v219, v219, v{t0}", f"v_lshlrev_b32 v219, 4, v219",
                f"v_lshl_add_u32 v219, v{t2}, 9, v219", f"v_bfe_u32 v220, v0, 1, 1", f"v_lshl_add_u32 v220, v220, 3, v219", f"v_add_u32 v221, {4096+128+8}, v219",
                f"v_mov_b32 v224, 128", f"v_mov_b32 v225, {SLOT}", f"v_subrev_u32 v226, v{vPOS}, v{vKR}"]
        cst += [f"s_lshl_b32 s{sC}, s{sW}, 7\ns_add_u32 s{sC}, s{sC}, {ONES+128}\nv_mov_b32 v227, s{sC}"]
        for hd in range(2):
            cst += [f"v_add_u32 v222, {2048+1024*hd}, v220", f"v_cmp_gt_u32 vcc, 4, v{t1}\nv_cndmask_b32 v222, v221, v222, vcc", f"v_add_u32 v222, v226, v222",
                    f"v_cmp_gt_u32 {s(sC,2)}, 4, v{t1}\nv_cmp_eq_u32 vcc, {4+hd}, v{t1}\ns_or_b64 vcc, vcc, {s(sC,2)}\nv_cndmask_b32 v{VAD[hd]}, v227, v222, vcc\nv_cndmask_b32 v223, v224, v225, vcc"]
            cst += [f"v_add_u32 v{VAD[hd]+i}, v{VAD[hd]+i-1}, v223" for i in range(1, 9)]
        cst = [f"v_mov_b32 v{228+i}, 0x3f803f80" for i in range(4)] + cst
        n1 = o.get("cst1", 50)
        if L == 0: n1 = 30
        va += [(1 if L else 27, x) for x in cst[:n1]]
        va += epi(8, 10, [VB, VB + 2], [vRSTD] * 2, 43) + [(43, putB)] + epi(10, 12, [QA0, QA0 + 2], [vQS] * 2, 43)
        va += [(43, x) for x in cst[n1:]]
        for i in range(9):
            va += [(52, f"v_accvgpr_write_b32 {R(K1+4*i+2)}, s{sFL+i}"), (52, f"v_accvgpr_write_b32 {R(K1+4*i+3)}, 0")]
        va += [(52, f"v_mov_b32 v{q+3}, 0") for q in (QA1, QB1)]
        items = [(ACC[2], k, k == 0) for k in range(40)] + [("cs", ACC[2], CS + 8)] + [(ACC[3], k, k == 0) for k in range(40)] + [("cs", ACC[3], CS + 12)]
        ev = {}; pre = {}
        if L == 0:
            s2 = o.get("s2B", 16)
            pre[10] = [ready(6)]
            pre[s2] = [lambda: (E.wait(vm=max(self.S.tok2, tok[7])), E("s_barrier"), self.S.s2_proc(), self.stamp("st S2 stored"), E("s_barrier"))]
            pre[43] = [ready(9), self.S.flag2]
            spread(ev, lateB, s2, 1.5)
            spread(ev, self.masks(), s2, 0.6)
        else: pre[26] = [ready(9)]
        spread(ev, ldsA + [f"ds_write_b128 v{vL16}, v[228:231] offset:{ONES}", f"ds_write_b128 v{vL16}, v[228:231] offset:{ONES+1024}"], 26 if L else 29, 2)
        wo = []
        for f in range(25):
            t = f"s_add_u32 s{sT0+1}, s{sWO}, {1024*f}\n" if f % 4 == 0 else ""
            wo.append(t + f"buffer_load_dwordx4 {R(self.WOF[f],4)}, v{vL16}, {s(WS,4)}, s{sT0+1} offen offset:{1024*(f%4)} sc1")
        if L == 0:
            pass
        nwo = o.get("wob", 14)
        if L == 0:
            nwo = 0
        else:
            spread(ev, wo[:nwo], 13, 44 / nwo)
        self.wo_late = wo[nwo:]
        spread(ev, [self.touch(sWGU, sH16, 32 * KB * k) for k in range(2)], 40, 16)
        sa, pa, ca, sb = o.get("sa", 34), o.get("pa", 50), o.get("ca", 70), o.get("sb", 79)
        if L == 0: sa, pa, ca = o.get("sa0", 17), o.get("pa0", 38), o.get("ca0", 60)
        ev.setdefault(sa, []).append(self.signal(sKP, 8 * L, lambda: st["A"]))
        ev.setdefault(pa, []).append(self.poll_issue(sKC, 8 * L))
        pre.setdefault(ca, []).append(self.poll_check(sKC, 8 * L, f"s{sKT}"))
        hal = []; self.haltok = []
        for t in range(2):
            p = f"s_mul_i32 s{sB}, s{sW}, {2*SLOT}\n" + (f"s_add_u32 s{sHAL}, s{sHAL}, s{sHAL+1}\n" if L else "") if t == 0 else ""
            hal.append(p + f"s_add_u32 m0, s{sB}, {t*SLOT}\ns_add_u32 s{sE_}, s{sHAL}, {t*5*KB}\nbuffer_load_dwordx4 v{vL16}, {s(WS,4)}, s{sE_} offen sc1 lds")
            hal += [f"buffer_load_dwordx4 v{vL16}, {s(WS,4)}, s{sE_} offen offset:{1024*i} sc1 lds" for i in (1, 2)]
            hal.append(f"s_add_u32 m0, s{sB}, {t*SLOT+4096+128}\ns_add_u32 s{sE_}, s{sE_}, 4096\nbuffer_load_dwordx4 v{vL16}, {s(WS,4)}, s{sE_} offen sc1 lds")
        lasth = hal[-1]; hal[-1] = lambda: self.haltok.append(E(lasth))
        spread(ev, hal, ca, 1)
        ev.setdefault(sb, []).append(self.signal(sKP, 8 * L + 4, lambda: st["B"]))
        self.wstream(items, 80, allw, RING, ev, va, pre, budget=o.get("budB", 32), tag=f"B{L}")
        self.stamp(f"L{L} P1 passB")
        if L == 0: E(self.S.vpoll_issue(241, 242))
        for _, x in epi(12, 15, [QA1, QB0, QB0 + 2], [vQS] * 3, 0): E(x)
        E(f"s_mov_b32 vcc_lo, -1\ns_mov_b32 vcc_hi, 0")
        for i in range(2):
            E(f"v_cndmask_b32 v{QB1+i}, v{QA1+i}, v{QA1+3}, vcc")
            E(f"v_cndmask_b32 v{QA1+i}, 0, v{QA1+i}, vcc")
        for k in range(6):
            for hd, (q0, q1, k0) in enumerate(((QA0, QA1, KA), (QB0, QB1, KB_))):
                qa, ka = (q0 + k, k0 + k) if k < 4 else (q1 + k - 4, KV1 + k - 4)
                E(f"v_dot2_f32_bf16 v{216+hd}, v{qa}, v{ka}, {'0' if k == 0 else v(216+hd)}")
        E(f"s_mov_b32 s{sA}, {f2u(-1e38)}")
        for hd, q1 in enumerate((QA1, QB1)): E(f"v_cvt_pk_bf16_f32 v{q1+2}, s{sA}, -v{216+hd}")
    def att_defs(self):
        QA0, QB0, QA1, QB1 = self.Q
        d = self
        d.kread = lambda hd, i, dst: f"ds_read_b128 {R(dst,4)}, v{vKR} offset:{i*SLOT + 1024*hd}"
        d.k1read = lambda i: f"ds_read_b64 {R(self.K1+4*i,2)}, v{vKR} offset:{i*SLOT + 4096 + 128}"
        def smf(hd, i, dst, k0, C="0"):
            q0, q1 = (QA0, QA1) if hd == 0 else (QB0, QB1)
            return [f"v_mfma_f32_32x32x16_bf16 {v(dst,16)}, {R(k0,4)}, {v(q0,4)}, {C}",
                    f"v_mfma_f32_32x32x16_bf16 {v(dst,16)}, {R(self.K1+4*i,4)}, {v(q1,4)}, {v(dst,16)}"]
        d.smf = smf
        d.vreads = lambda hd, i, vf: [f"ds_read_b64_tr_b16 {R(vf+2*k,2)}, v{self.VAD[hd]+i} offset:{128*k}" for k in range(4)]
        def expops(src, p):
            r = []
            for k in range(8):
                r += [f"v_exp_f32 v{src+2*k}, v{src+2*k}", f"v_exp_f32 v{src+2*k+1}, v{src+2*k+1}"]
                if k: r.append(f"v_cvt_pk_bf16_f32 v{p+k-1}, v{src+2*k-2}, v{src+2*k-1}")
            r.append(f"v_cvt_pk_bf16_f32 v{p+7}, v{src+14}, v{src+15}")
            return r
        d.expops = expops
        d.mergeops = lambda dg, old: [f"v_cndmask_b32 v{dg+k}, v{old+k}, v{dg+k}, {s(sMASK+2*k,2)}" for k in range(16)]
        d.splitops = lambda p, pm: [f"v_bfi_b32 v{pm+k}, v{self.MK+k}, 0, v{p+k}" for k in range(8)] + [f"v_and_b32 v{p+k}, v{self.MK+k}, v{p+k}" for k in range(8)]
        d.pv = lambda O, vf, p, first: [f"v_mfma_f32_32x32x16_bf16 {v(O,16)}, {R(vf,4)}, {v(p,4)}, {'0' if first else v(O,16)}",
                                        f"v_mfma_f32_32x32x16_bf16 {v(O,16)}, {R(vf+4,4)}, {v(p+4,4)}, {v(O,16)}"]
    def fallback(self, hd):
        E = Emit(); O = self.O[hd]
        S, SD, NEG, P, PM, MX = 48, 64, 214, 230, 238 - 0, 246
        PM = 152 + 8
        K0 = AG + 136; VF = AG + 140; SP = AG + 104
        E.raw(f"FB{hd}:")
        E("s_waitcnt lgkmcnt(0)"); E.settle()
        for k in range(32): E(f"v_accvgpr_write_b32 {R(SP+k)}, v{48+k}")
        E(f"v_mov_b32 v{MX+2}, 0xff7fffff")
        for i in (8, 7, 6, 5, 4, 3, 2, 1, 0):
            E(self.kread(hd, i, K0))
            for x in self.smf(hd, i, SD if i == 8 else S, K0): E(x)
            if i == 8: continue
            src = S
            if i == 0:
                for x in self.mergeops(SD, S): E(x)
                src = SD
            for k in range(8): E(f"v_max3_f32 v{MX+2}, v{src+2*k}, v{src+2*k+1}, v{MX+2}")
        E(f"v_mov_b32 v{MX+3}, v{MX+2}\nv_permlane32_swap_b32 v{MX+3}, v{MX+2}\nv_max_f32 v{MX+2}, v{MX+2}, v{MX+3}")
        for k in range(16): E(f"v_sub_f32 v{NEG+k}, 0, v{MX+2}")
        for k in range(16): E(f"v_add_f32 v{SD+k}, v{NEG}, v{SD+k}")
        for x in self.expops(SD, P) + self.splitops(P, PM): E(x)
        for x in self.vreads(hd, 8, VF) + self.pv(O, VF, P, True): E(x)
        E.settle()
        for x in self.vreads(hd, 0, VF) + self.pv(O, VF, PM, False): E(x)
        for i in range(7, 0, -1):
            E.settle()
            E(self.kread(hd, i, K0))
            for x in self.vreads(hd, i, VF) + self.smf(hd, i, S, K0, v(NEG, 16)) + self.expops(S, P) + self.pv(O, VF, P, False): E(x)
        E.settle()
        for k in range(32): E(f"v_accvgpr_read_b32 v{48+k}, {R(SP+k)}")
        E.drain(); E.settle()
        E(f"s_setpc_b64 {s(sRET,2)}")
        return E.text()
    def p2(self, L):
        E = self.E; o = self.o
        self.att_defs()
        S = [48, 64]; SD = 80; P = [96, 104]; PM = 112; O = self.O = [120, 136]; D = 152; TT = 168
        K0 = [AG + 36, AG + 40, AG + 44]; VF = [AG + 48, AG + 56, AG + 64]
        self.OF = {}
        for st in range(2):
            for i in range(4): self.OF[(st, i)] = AG + 72 + 16 * st + 4 * i
        for st in range(2, 5):
            for i in range(4): self.OF[(st, i)] = AG + 104 + 12 * i + 4 * (st - 2)
        if L == 0: self.tail += [self.fallback(0), self.fallback(1)]
        obase = OB + L * OB_STRIDE
        def oload(st, i):
            return (f"s_mul_i32 s{sE_}, s{sW}, {10*KB}\ns_add_u32 s{sE_}, s{sE_}, s{sT16+i}\ns_add_u32 s{sE_}, s{sE_}, {obase + 2048*st}\n"
                    f"buffer_load_dwordx4 {R(self.OF[(st,i)],4)}, v{vU}, {s(WS,4)}, s{sE_} offen sc1")
        def oload2(st, i):
            return f"buffer_load_dwordx4 {R(self.OF[(st,i)],4)}, v{vU}, {s(WS,4)}, s{sE_} offen offset:2048 sc1"
        self.oload, self.oload2 = oload, oload2
        E.wait(vm=self.haltok[0], ds=E.ds_n); E("s_barrier")
        self.stamp(f"L{L} halo in")
        ev = {}; pre = {}
        if L == 0: pre[o.get("f2c", 2)] = [self.S.vpoll_check(241, 242, 4)]
        dm = []
        for c in range(6): dm += self.dma4(sWGU, 16 * KB * c, 64 * KB + 16 * KB * c)
        hb = []
        for t in range(2):
            hb.append(f"s_mul_i32 s{sD}, s{sW}, {2*SLOT}\ns_add_u32 m0, s{sD}, {t*SLOT+3072}\ns_add_u32 s{sE_}, s{sHAL}, {t*5*KB+3072}\nbuffer_load_dwordx4 v{vL16}, {s(WS,4)}, s{sE_} offen sc1 lds")
        lasth = hb[-1]; hb[-1] = lambda: self.haltok.append(E(lasth))
        pb, cb = o.get("pb", 4), o.get("cb", 16)
        nl = len(self.wo_late)
        n1 = min(nl, 7)
        spread(ev, self.wo_late[:n1], 0 if L else o.get("f2c", 2), 2.1 if L else 1.8)
        ev.setdefault(pb, []).append(self.poll_issue(sKC, 8 * L + 4))
        pre.setdefault(cb, []).append(self.poll_check(sKC, 8 * L + 4, f"s{sKT}"))
        spread(ev, hb, cb, 1)
        rest = self.wo_late[n1:] + dm
        spread(ev, rest, cb + 2, (o.get("bgend", 68) - cb - 2) / len(rest))
        spread(ev, [self.touch(sWGU, sH16, 32 * KB * k) for k in range(2, 5)] + [self.touch(sWD, sH8, 0)], 10, 14)
        st = {}
        def check(hd):
            def fn():
                Lo, Lb = E.label("FO"), E.label("FR")
                E(f"v_subrev_u32 v{TT}, {hex(63 << 23)}, v{O[hd]+12}\nv_cmp_le_u32 vcc, {hex(128 << 23)}, v{TT}\ns_cbranch_vccnz {Lo}")
                E.place(Lb)
                self.tail.append(f"{Lo}:\ns_call_b64 {s(sRET,2)}, FB{hd}\ns_branch {Lb}")
            return fn
        def norm(hd):
            r = [check(hd), f"v_rcp_f32 v{TT}, v{O[hd]+12}"]
            r += [f"v_mul_f32 v{O[hd]+k}, v{TT}, v{O[hd]+k}" for k in range(12)]
            r += [f"v_cvt_pk_bf16_f32 v{D+8*hd+k}, v{O[hd]+2*k}, v{O[hd]+2*k+1}" for k in range(6)]
            return r
        def putOA():
            E(f"s_and_b32 s{sA}, s{sJ}, 3\ns_lshl_b32 s{sA}, s{sA}, 10\ns_add_u32 s{sA}, s{sA}, s{sOme}\ns_add_u32 s{sA}, s{sA}, {obase}")
            st["a"] = E(f"buffer_store_dwordx4 {v(D,4)}, v{vL16}, {s(WS,4)}, s{sA} offen sc1")
        slot = [0]
        def weave(mf, mems, valu):
            n = len(mf); mems = list(mems); valu = list(valu)
            for k, m in enumerate(mf):
                self.fine(f"t{L}", slot[0])
                for g in pre.pop(slot[0], []): self.do(g)
                E(m)
                for _ in range(-(-len(mems) // (n - k))): E(mems.pop(0))
                for g in ev.pop(slot[0], []): self.do(g)
                for _ in range(-(-len(valu) // (n - k))): self.do(valu.pop(0))
                slot[0] += 1
        seq = [(hd, i) for hd in range(2) for i in (7, 6, 5, 4, 3, 2, 1, 8, 0)]
        kslot = {x: K0[n % 3] for n, x in enumerate(seq)}
        kq = list(seq)
        def knext():
            if not kq: return []
            hd, i = kq.pop(0)
            return [self.kread(hd, i, kslot[(hd, i)])] + ([self.k1read(i)] if hd == 0 else [])
        for x in knext() + knext() + knext(): E(x)
        for x in self.smf(0, 7, S[0], kslot[(0, 7)]): E(x)
        pend = []; vn = 0
        sa_, pa_ = o.get("osa", 56), o.get("opa", 66)
        ev.setdefault(pa_, []).append(self.poll_issue(sTC, self.T(0, L)))
        ev.setdefault(sa_, []).append(self.signal(sTP, self.T(0, L), lambda: st["a"]))
        for hd in range(2):
            for n in range(8):
                mf = []; mems = []; va = []
                if n < 6:
                    mf += self.smf(hd, 6 - n, S[(n + 1) % 2], kslot[(hd, 6 - n)]); mems += knext()
                    mf += pend
                elif n == 6:
                    mf += self.smf(hd, 8, SD, kslot[(hd, 8)]) + self.smf(hd, 0, S[1], kslot[(hd, 0)]); mems += knext()
                    mf += pend
                else:
                    mf += pend
                    if hd == 0: mf += self.smf(1, 7, S[0], kslot[(1, 7)])
                    mems += knext() + knext()
                    if hd == 0: pre.setdefault(slot[0] + len(mf), []).append(lambda: (E.wait(vm=self.haltok[1]), E("s_barrier")))
                if n < 7:
                    vf = VF[vn % 3]; vn += 1
                    vr = self.vreads(hd, 7 - n, vf)
                    mems = mems + vr
                    va += self.expops(S[n % 2], P[n % 2])
                    pend = self.pv(O[hd], vf, P[n % 2], n == 0)
                    if hd == 1 and n == 1: va = norm(0) + [putOA] + va
                else:
                    v8, v0_ = VF[vn % 3], VF[(vn + 1) % 3]; vn += 2
                    mems = mems + self.vreads(hd, 8, v8) + self.vreads(hd, 0, v0_)
                    va += self.mergeops(SD, S[1]) + self.expops(SD, P[1]) + self.splitops(P[1], PM)
                    pend = self.pv(O[hd], v8, P[1], False) + self.pv(O[hd], v0_, PM, False)
                weave(mf, mems, va)
            if hd == 0: self.stamp(f"L{L} att a")
        weave(pend, [], [])
        assert not ev and not pre, (ev, pre, slot)
        for x in norm(1): self.do(x)
        E(f"s_mov_b32 vcc_lo, -1\ns_mov_b32 vcc_hi, 0")
        for k in range(2): E(f"v_cndmask_b32 v{D+4+k}, v{D+12+k}, v{D+4+k}, vcc")
        E(f"s_and_b32 s{sB}, s{sJ}, 3\ns_lshl_b32 s{sA}, s{sB}, 10\ns_add_u32 s{sA}, s{sA}, s{sOme}\ns_add_u32 s{sA}, s{sA}, {obase + 4096}")
        E(f"s_lshl_b32 s{sB}, s{sB}, 9\ns_add_u32 s{sB}, s{sB}, s{sOme}\ns_add_u32 s{sB}, s{sB}, {obase + 8192}")
        E(f"buffer_store_dwordx4 {v(D+8,4)}, v{vL16}, {s(WS,4)}, s{sA} offen sc1")
        self.otok = E(f"buffer_store_dwordx2 {v(D+4,2)}, v{vO4}, {s(WS,4)}, s{sB} offen sc1")
        self.stamp(f"L{L} att done")
    def reduce_and_publish(self, ACC, steps, red, PT, xidx, wimm, final, bg, post, bg0=1, bgstep=5):
        E = self.E
        wr = []; bg = list(bg)
        for i in range(4):
            mf = []
            for (W, act) in steps:
                for nt in range(5):
                    d = ACC[i] + 4 * nt
                    mf.append(f"v_mfma_f32_16x16x32_bf16 {v(d,4)}, {R(W[nt],4)}, {R(act[i],4)}, {v(d,4)}")
            rd = []
            for k, m in enumerate(mf):
                E(m)
                if k >= 3 and wr: E(wr.pop(0))
                elif k % bgstep == 1 and i >= bg0 and bg: self.do(bg.pop(0))
            if i < 3:
                E(f"v_add_u32 v{vT}, {red}, v{vRW+i}")
                wr = [f"ds_write_b128 v{vT}, {v(ACC[i]+4*nt,4)} offset:{1024*nt}" for nt in range(5)]
        E(f"v_add_u32 v{vT}, {red}, v{vRW+3}")
        E.drain(vm=False); E("s_barrier")
        for q in range(15): E(f"ds_read_b128 {v(PT+4*q,4)}, v{vT} offset:{1024*q}")
        self.stamp("  mfma done")
        for b in (0, 20, 40):
            for k in range(0, 20, 2): E(f"v_pk_add_f32 {v(vRES+k,2)}, {v(vRES+k,2)}, {v(PT+b+k,2)}")
        D = PT + 20
        for k in range(10): E(f"v_cvt_pk_bf16_f32 v{D+k}, v{vRES+2*k}, v{vRES+2*k+1}")
        if final:
            E(f"buffer_store_dwordx4 {v(D,4)}, v{vRM}, {s(OUT,4)}, s{sRM} offen")
            E(f"buffer_store_dwordx4 {v(D+4,4)}, v{vRM}, {s(OUT,4)}, s{sRM} offen offset:16")
            E(f"buffer_store_dwordx2 {v(D+8,2)}, v{vRM5}, {s(OUT,4)}, s{sRM} offen offset:128")
            return
        E(f"s_mul_i32 s{sA}, s{sNB}, {5*KB}\ns_add_u32 s{sA}, s{sA}, s{sT16+3}\ns_add_u32 s{sA}, s{sA}, {self.xt(xidx)}\ns_add_u32 s{sB}, s{sA}, 4096")
        E(f"buffer_store_dwordx4 {v(D,4)}, v{vXW}, {s(WS,4)}, s{sA} offen sc1")
        E(f"buffer_store_dwordx4 {v(D+4,4)}, v{vXW}, {s(WS,4)}, s{sA} offen offset:512 sc1")
        E(f"buffer_store_dwordx2 {v(D+8,2)}, v{vXW5}, {s(WS,4)}, s{sB} offen sc1")
        T = PT
        E(f"v_pk_add_f32 {v(T,2)}, {v(vRES,2)}, {v(vRES+2,2)}\nv_pk_mul_f32 {v(T+2,2)}, {v(vRES,2)}, {v(vRES,2)}")
        E(f"v_pk_fma_f32 {v(T+2,2)}, {v(vRES+2,2)}, {v(vRES+2,2)}, {v(T+2,2)}")
        for k in range(4, 20, 2):
            E(f"v_pk_add_f32 {v(T,2)}, {v(T,2)}, {v(vRES+k,2)}\nv_pk_fma_f32 {v(T+2,2)}, {v(vRES+k,2)}, {v(vRES+k,2)}, {v(T+2,2)}")
        E(f"v_add_f32 v{T}, v{T}, v{T+1}\nv_add_f32 v{T+1}, v{T+2}, v{T+3}")
        E(f"s_lshl_b32 s{sA}, s{sR}, 3\ns_add_u32 s{sA}, s{sA}, s{sNB}\ns_lshl_b32 s{sA}, s{sA}, 1\ns_add_u32 s{sA}, s{sA}, s{sTH}\ns_lshl_b32 s{sA}, s{sA}, 2")
        for sw in ("v_permlane32_swap_b32", "v_permlane16_swap_b32"):
            E(f"v_mov_b32 v{T+2}, v{T}\nv_mov_b32 v{T+3}, v{T+1}")
            if sw[10] == "3": E(f"s_add_u32 s{sA}, s{sA}, s{sW}\ns_lshl_b32 s{sA}, s{sA}, 7")
            else: E(f"s_add_u32 s{sA}, s{sA}, {STAT + xidx*128*KB}")
            E(f"{sw} v{T+2}, v{T}\n{sw} v{T+3}, v{T+1}")
            E(f"v_add_f32 v{T}, v{T}, v{T+2}\nv_add_f32 v{T+1}, v{T+1}, v{T+3}")
        last = E(f"buffer_store_dwordx2 {v(T,2)}, v{vSW}, {s(WS,4)}, s{sA} offen sc1")
        self.stamp("  stored")
        E("s_barrier")
        n0 = self.o.get("post0", 5)
        post = list(bg) + list(post)
        for g in post[:n0]: self.do(g)
        self.signal(sWP, wimm, last, vSR)()
        self.stamp("  signalled")
        for g in post[n0:]: self.do(g)
    def mk_wdload(self):
        self.WDF = {}
        def wdload(f):
            def fn():
                q = self.pool.get(); self.WDF[f] = q
                t = f"s_add_u32 s{sT0+1}, s{sWD}, {1024*f}\n" if f % 4 == 0 else ""
                return self.E(t + f"buffer_load_dwordx4 {R(q,4)}, v{vL16}, {s(WS,4)}, s{sT0+1} offen offset:{1024*(f%4)} sc1")
            return fn
        self.wdq = [wdload(f) for f in range(60)]
    def wd(self, n):
        r = self.wdq[:n]; self.wdq = self.wdq[n:]
        return r
    def p3(self, L):
        E = self.E; o = self.o
        ACC = [48, 68, 88, vRES]
        W = lambda st: [self.WOF[5 * st + nt] for nt in range(5)]
        self.pool = Pool([176 + 4 * i for i in range(17)])
        self.mk_wdload()
        self.poll_check(sTC, self.T(0, L), 8)()
        for i in range(4): E(self.oload(0, i)); E(self.oload2(1, i))
        self.signal(sTP, 16 + 4 * L, self.otok, vSR)()
        bgw = self.wd(o.get("wd3", 4)); k = 0
        for i in range(4):
            for st in range(2):
                for nt in range(5):
                    d = ACC[i] + 4 * nt
                    E(f"v_mfma_f32_16x16x32_bf16 {v(d,4)}, {R(W(st)[nt],4)}, {R(self.OF[(st,i)],4)}, {'0' if st == 0 and i < 3 else v(d,4)}")
                    if k % 4 == 0 and bgw: bgw.pop(0)()
                    if k == o.get("p3poll", 20): E(self.poll_issue(sTCR, 16 + 4 * L))
                    k += 1
        self.stamp(f"L{L} P3 a-part")
        self.poll_check(sTCR, 16 + 4 * L, 8)()
        self.stamp(f"L{L} P3 synced")
        for i in range(4):
            E(self.oload(2, i)); E(self.oload2(3, i))
            E(f"s_add_u32 s{sE_}, s{sE_}, 4096\nbuffer_load_dwordx4 {R(self.OF[(4,i)],4)}, v{vU}, {s(WS,4)}, s{sE_} offen sc1")
        E("s_barrier")
        steps = [(W(st), [self.OF[(st, i)] for i in range(4)]) for st in range(2, 5)]
        self.CSG = 152
        bg = self.wd(o.get("wd3b", 6))
        def freewo(): self.pool.add(self.WOF)
        self.gu_late = []
        self.gu_tok = []
        for c in range(6, 10): self.gu_late += self.dma4(sWGU, 16 * KB * c, 16 * KB * (c - 6), self.gu_tok)
        n = o.get("gu3", 16)
        post = [freewo] + self.gu_late[:n]
        self.gu_late = self.gu_late[n:]
        self.reduce_and_publish(ACC, steps, 0, 108 - 16 + 16, 2 * L + 1, 4 * L, False, bg, post)
        self.stamp(f"L{L} P3 done")
    def p4(self, L):
        E = self.E; o = self.o
        ACC = [[48, 64], [80, 96]]; RING = 112; HP = 136; T = 144
        allw = [1024 * ((64 + f) % 160) for f in range(240)]
        for f in range(6): E(self.wread(RING + 4 * f, allw[f]))
        self.poll_block(sWC, 4 * L, 16)
        self.stamp(f"L{L} P4 synced")
        xl = self.xloads(self.xt(2 * L + 1))
        self.xstart(xl, self.xt(2 * L + 1))
        c1 = -2 * 0.7978845608028654 * math.log2(math.e)
        so = self.stat_ops(T) + [f"v_mul_f32 v{vC1}, {f2u(c1)}, v{vRSTD}", f"v_mul_f32 v{T}, v{vRSTD}, v{vRSTD}", f"v_mul_f32 v{vC2}, {f2u(0.044715)}, v{vC1}",
                                 f"v_mul_f32 v{vC2}, v{T}, v{vC2}"]
        st = self.htok = {}
        def put(p, k):
            if k == 0: return f"s_add_u32 s{sA}, s{sHme}, {HB + L*HB_STRIDE + 2048*p}\nbuffer_store_dwordx4 {v(HP,4)}, v{vL16}, {s(WS,4)}, s{sA} offen sc1"
            return lambda: st.__setitem__(p, E(f"buffer_store_dwordx4 {v(HP+4,4)}, v{vL16}, {s(WS,4)}, s{sA} offen offset:1024 sc1"))
        def epi(p):
            g, u = ACC[p % 2]; r = []
            for k0 in range(0, 16, 4):
                ks = range(k0, k0 + 4)
                r += [f"v_mul_f32 v{T+k%4}, v{g+k}, v{g+k}" for k in ks]
                r += [f"v_fma_f32 v{T+k%4}, v{T+k%4}, v{vC2}, v{vC1}" for k in ks]
                r += [f"v_mul_f32 v{T+k%4}, v{T+k%4}, v{g+k}" for k in ks]
                r += [f"v_exp_f32 v{T+k%4}, v{T+k%4}" for k in ks]
                r += [f"v_mul_f32 v{g+k}, v{g+k}, v{u+k}" for k in ks]
                r += [f"v_fma_f32 v{T+k%4}, v{T+k%4}, v{vIV}, v{vIV}" for k in ks]
                r += [f"v_rcp_f32 v{T+k%4}, v{T+k%4}" for k in ks]
                r += [f"v_mul_f32 v{g+k}, v{g+k}, v{T+k%4}" for k in ks]
                r += [f"v_cvt_pk_bf16_f32 v{HP+k//2}, v{g+k}, v{g+k+1}" for k in ks if k % 2 == 0]
                if k0 in (4, 12): r.append([put(p, k0 // 8)])
            return [(2, x) for x in r]
        def epi_pk(p):
            g, u = ACC[p % 2]; r = []
            for k0 in range(0, 16, 8):
                ks = range(k0, k0 + 8, 2)
                r += [f"v_pk_mul_f32 {v(T+k%8,2)}, {v(g+k,2)}, {v(g+k,2)}" for k in ks]
                r += [f"v_pk_fma_f32 {v(T+k%8,2)}, {v(T+k%8,2)}, {v(vC1,2)}, {v(vC1,2)} op_sel:[0,1,0] op_sel_hi:[1,1,0]" for k in ks]
                r += [f"v_pk_mul_f32 {v(T+k%8,2)}, {v(T+k%8,2)}, {v(g+k,2)}" for k in ks]
                r += [f"v_exp_f32 v{T+k}, v{T+k}" for k in range(8)]
                r += [f"v_pk_mul_f32 {v(g+k,2)}, {v(g+k,2)}, {v(u+k,2)}" for k in ks]
                r += [f"v_pk_fma_f32 {v(T+k%8,2)}, {v(T+k%8,2)}, {v(vIV,2)}, {v(vIV,2)} op_sel_hi:[1,0,0]" for k in ks]
                r += [f"v_rcp_f32 v{T+k}, v{T+k}" for k in range(8)]
                r += [f"v_pk_mul_f32 {v(g+k,2)}, {v(g+k,2)}, {v(T+k%8,2)}" for k in ks]
                r += [f"v_cvt_pk_bf16_f32 v{HP+k//2}, v{g+k}, v{g+k+1}" for k in ks]
                r.append(put(p, k0 // 8))
            return r
        self.HF = {}
        def hload(stp, i):
            p, jj = divmod(stp, 4)
            def fn():
                q = self.pool.get(); self.HF[(stp, i)] = q
                E(f"buffer_load_dwordx4 {R(q,4)}, v{vU}, {s(WS,4)}, s{sE_} offen sc1")
            return (f"s_add_u32 s{sE_}, s{sT16H+i}, {HB + L*HB_STRIDE + 2048*(3*jj+p)}", fn)
        self.hload = hload
        nv = o.get("bud4", 32)
        ev = {}; spread(ev, xl[NX0:], 0, 2)
        spread(ev, self.stat_loads(2 * L + 1, T), 21, 2)
        csl = self.cs_loads(CSG, 6 * KB, 6, self.CSG)
        spread(ev, csl[:2], 31, 2)
        spread(ev, self.gu_late + csl[2:] + self.wd(o.get("wd40", 6)), 61, 2)
        spread(ev, [self.touch(sWGU, sH16, 32 * KB * 5), self.touch(sWD, sH8, 16 * KB), self.touch(sWGU, sH16, 32 * KB * 6)], 45, 15)
        self.wstream(self.pair_items(ACC[0], self.CSG), 0, allw, RING, ev, [(50, x) for x in so], tag=f"p0{L}")
        self.stamp(f"L{L} P4 p0")
        ev = {}; tok = []; fl = []
        for c in range(10, 15): fl += self.dma4(sWGU, 16 * KB * c, 64 * KB + 16 * KB * (c - 10), tok)
        spread(ev, fl, 1, 2.2)
        n1 = o.get("wd41", 16)
        spread(ev, self.wd(n1), 46, 35 / n1)
        spread(ev, [self.touch(sWGU, sH16, 32 * KB * 7), self.touch(sWD, sH8, 32 * KB), self.touch(sWD, sH8, 48 * KB)], 6, 24)
        self.wstream(self.pair_items(ACC[1], self.CSG + 8), 80, allw, RING, ev, epi(0),
                     {0: ["s_barrier"], 10: [lambda: (E.wait(vm=self.gu_tok[3]), E("s_barrier"))], 74: [lambda: (E.wait(vm=tok[4]), E("s_barrier"))]}, budget=nv, tag=f"p1{L}")
        self.stamp(f"L{L} P4 p1")
        ev = {}; pre = {}
        for ks in range(40): ev.setdefault(2 * ks + 1, []).append(lambda ks=ks: self.pool.put(AG + 4 * ks))
        n2 = min(len(self.wdq), o.get("wd42", 20))
        spread(ev, self.wd(n2), 1, 2.2)
        hp, hc = o.get("hp0", 22), o.get("hc0", 44)
        ev.setdefault(o.get("hs0", 2), []).append(self.signal(sTP, self.T(2, L), lambda: st[0]))
        if L == 0: spread(ev, [self.touch(sWQ, sH16, 32 * KB * k) for k in range(2)], 30, 30)
        ev.setdefault(hp, []).append(self.poll_issue(sTC, self.T(2, L)))
        pre.setdefault(hc, []).append(self.poll_check(sTC, self.T(2, L), 8))
        spread(ev, [hload(stp, i) for stp in range(4) for i in range(4)], max(hc + 1, 1 + 2.2 * n2), 2.2)
        ev.setdefault(o.get("hs1", 81), []).append(self.signal(sTP, self.T(3, L), lambda: st[1]))
        self.wstream(self.pair_items(ACC[0], self.CSG + 16), 160, allw, RING, ev, epi(1), pre, budget=nv, tag=f"p2{L}")
        self.stamp(f"L{L} P4 p2")
        ep = epi_pk(2)
        for k, x in enumerate(ep):
            self.do(x)
            if k == o.get("hp1", 70): E(self.poll_issue(sTC, self.T(3, L)))
            elif k % 12 == 6 and k < 40 and self.wdq and self.pool.free: self.wd(1)[0]()
        self.stamp(f"L{L} P4 done")
    def p5(self, L):
        E = self.E; o = self.o
        ACC = [48, 68, 88, vRES]
        E("s_barrier")
        self.pool.add([108 + 4 * i for i in range(7)] + [144 + 4 * i for i in range(8)])
        ev = {}; pre = {}
        hc1 = o.get("hc1", 30)
        pre.setdefault(hc1, []).append(self.poll_check(sTC, self.T(3, L), 8))
        spread(ev, [self.hload(stp, i) for stp in range(4, 8) for i in range(4)] + self.wd(60), hc1, 3.2)
        ev.setdefault(o.get("hs2", 44), []).append(self.signal(sTP, self.T(4, L), self.htok[2]))
        hp, hc = o.get("hp2", 76), o.get("hc2", 112)
        ev.setdefault(hp, []).append(self.poll_issue(sTC, self.T(4, L)))
        pre.setdefault(hc, []).append(self.poll_check(sTC, self.T(4, L), 8))
        spread(ev, [self.hload(stp, i) for i in range(4) for stp in range(8, 12)], hc, 2.9)
        self.wq_tok = []; dm = []
        if L == 0:
            for c in range(10): dm += self.dma4(sWQ, 16 * KB * c, 16 * KB * c, self.wq_tok)
            spread(ev, [self.touch(sWQ, sH16, 32 * KB * k) for k in range(2, 5)], 30, 36)
            spread(ev, dm[:4], 96, 4); dm = dm[4:]
        sl = 0; q = []
        for stp in range(8):
            for i in range(4):
                for nt in range(5):
                    self.fine(f"d{L}", sl)
                    for g in pre.pop(sl, []): self.do(g)
                    d = ACC[i] + 4 * nt
                    E(f"v_mfma_f32_16x16x32_bf16 {v(d,4)}, {R(self.WDF[5*stp+nt],4)}, {R(self.HF[(stp,i)],4)}, {'0' if stp == 0 and i < 3 else v(d,4)}")
                    for g in ev.pop(sl, []): q += self.flat(g)
                    if q and (nt != 4 or len(q) > 3): self.do(q.pop(0))
                    sl += 1
                if self.HF[(stp, i)] >= AG or self.HF[(stp, i)] < 176: self.pool.put(self.HF[(stp, i)])
            for nt in range(5):
                qq = self.WDF[5 * stp + nt]
                if qq >= AG or qq < 176: self.pool.put(qq)
        for k in sorted(ev):
            for g in ev[k]: q.append(g)
        for g in q: self.do(g)
        assert not pre
        self.stamp("  8 steps")
        PT = 176
        live = [self.WDF[f] for f in range(40, 60)] + [self.HF[(stp, i)] for stp in range(8, 12) for i in range(4)]
        assert not [q for q in live if PT <= q < PT + 60], live
        steps = [([self.WDF[5 * stp + nt] for nt in range(5)], [self.HF[(stp, i)] for i in range(4)]) for stp in range(8, 12)]
        bg = dm[:12]; dm = dm[12:]
        n = o.get("wq5", 12)
        post = (self.cs_loads(CSQ, 4 * KB, 4, 136) if L == 0 else []) + dm[:n]
        self.wq_late = dm[n:]
        self.reduce_and_publish(ACC, steps, 100 * KB, PT, 2 * L + 2, 512 + 4 * L, L == 1, bg, post, bg0=0, bgstep=4)
        self.stamp(f"L{L} P5 done")
    def finish(self):
        E = self.E
        E(f"s_or_b32 s{sA}, s{sR}, s{sJ}\ns_or_b32 s{sA}, s{sA}, s{sW}\ns_cmp_eq_u32 s{sA}, 0\ns_cselect_b32 s{sA}, 0, {OOB}")
        E(f"v_add_u32 v48, s{sA}, v{vSIG}\nv_mov_b32 v49, s0\ns_mov_b32 s{sA}, {EPOCH}\nbuffer_store_dword v49, v48, {s(WS,4)}, s{sA} offen sc1")
        if self.stamps:
            E(f"v_readlane_b32 s{sB}, v{vTS2}, 63\ns_lshl_b32 s{sA}, s{sB}, 2\ns_add_u32 s{sA}, s{sA}, s{sW}\ns_lshl_b32 s{sA}, s{sA}, 8\ns_add_u32 s{sA}, s{sA}, {DBG}")
            E(f"v_lshlrev_b32 v{vT}, 2, v0\nbuffer_store_dword v{vTS}, v{vT}, {s(WS,4)}, s{sA} offen")
            E(f"s_add_u32 s{sA}, s{sA}, 0x40000\nbuffer_store_dword v{vTS2}, v{vT}, {s(WS,4)}, s{sA} offen")
        E("s_endpgm")
        for t in self.tail: E.raw(t.rstrip("\n"))
        E.raw("main_end:")
    def build(self):
        E = self.E
        g = globals(); ru = self.o.get("reuse", 7)
        if ru & 1: g["HB_STRIDE"] = 0
        if ru & 2: g["OB_STRIDE"] = 0
        if ru & 8: g["KV_STRIDE"] = 0
        E.raw("; @launch grid=(256,1,1) block=(256,1,1) lds=163840")
        E.raw('.amdgcn_target "amdgcn-amd-amdhsa--gfx950"')
        self.prologue()
        n = 0
        for L in range(2):
            for ph in (self.p1, self.p2, self.p3, self.p4, self.p5):
                if n < self.stop: ph(L)
                n += 1
        self.finish()
        kernel_desc(E, KNAME, 256, 256, 102)
        return E.text()

if __name__ == "__main__":
    out = sys.argv[1]
    opts = dict((k, int(x)) for k, x in (a_.split("=") for a_ in sys.argv[3:]))
    g = Gen(stamps=len(sys.argv) > 2 and sys.argv[2] == "ts", opts=opts, mapping="grp" if opts.get("grp") else "mix")
    t = g.build()
    open(out, "w").write(t)
    print(len(t), "bytes", g.E.ninst, "insts", g.E.nnop, "nop states", g.E.stats)
    if g.stamps: open(out + ".names", "w").write("\n".join(g.stnames))
```

```python
import sys, math, struct
from emit import *
from layout import *
from startup3 import Startup, sTK, vTK, sONE, sRHO, OOB
KNAME = "interleave_layers__sliding_block__glu_gated_geglu__prompt_kernel"

def f2u(x): return hex(struct.unpack("<I", struct.pack("<f", x))[0])

WS = 4; OUT = 8; XIN = 12
sR, sJ, sW, sTH, sNB = 16, 17, 18, 19, 20
sWQ, sWGU, sWO, sWD, sLW = 21, 22, 23, 24, 25
sXB, sKVme, sOme, sHme = 26, 27, 28, 29
sT0 = 30
sMASK = 32
sRET = 64
sT16 = 66; sT16H = 70
sA, sB, sC, sD, sE_, sF = 74, 75, 76, 77, 78, 79
sFL = 80
sHAL = 89
sKP, sKC, sKT = 91, 92, 3
sRM = 93
sTS = 94
sTP, sTC, sWP, sWC = 98, 99, 100, 101
sP = 2
vL16, vL16b, vL16c = 1, 2, 3
vU = 4; vPOS = 5; vST = 6; vCS = 7; vSIG = 8; vONE = 9
vRW = 10
vXW = 14; vXW5 = 15; vO4 = 16; vSW = 17; vRSTD = 18; vT = 19
vRES = 20
vNM = 40
vC1, vC2, vIV = 44, 45, 46
vKR = 47
vRM, vRM5, vTS, vTS2 = 250, 251, 252, 253
vP = 255; vDUM = 254; vSR = 255
sTCR = 1
vTL = 7
sPV = 15
sH8, sH16, sHX = 12, 13, 14
SLOT = 5248; ONES = 12 * SLOT; EPS = 1e-5
AG = 256
FINAL = ""
NX0 = 10

class Pool:
    def __init__(self, quads=()): self.free = list(quads)
    def get(self): return self.free.pop(0)
    def put(self, q): self.free.append(q)
    def add(self, qs): self.free += list(qs)

def spread(ev, groups, start, step):
    for i, g in enumerate(groups): ev.setdefault(int(start + i * step), []).append(g)

class Gen:
    def __init__(self, stop=99, stamps=False, mapping="mix", opts=None):
        self.E = Emit(); self.stop = stop; self.stamps = stamps; self.mapping = mapping
        self.sites = []; self.nst = 0; self.stnames = []; self.tail = []; self.o = opts or {}
    def do(self, g):
        if isinstance(g, tuple):
            for x in g: r = self.do(x)
            return r
        if callable(g): return g()
        return self.E(g)
    @staticmethod
    def flat(g):
        if isinstance(g, tuple): return list(g)
        if callable(g): return [g]
        l = g.split("\n")
        return [x for x in ("\n".join(l[:-1]), l[-1]) if x]
    def stamp(self, name):
        ec = self.o.get("echo", 0)
        if ec and name == ("", "WQ synced", "L0 halo in", "L0 P4 synced", "L1 P1 synced", "L1 P5 done", "L1 P4 synced")[ec]:
            self.E(f"s_memrealtime {s(sTS+2,2)}"); self.E.wait_smem()
        if not self.stamps: return
        if self.o.get("ends") and name not in ("L1 P5 done", "L1 P1 synced", "WQ synced", "L0 P4 synced", "L1 P4 synced", "L0 P3 synced", "L1 P3 synced", "L0 halo in", "L1 halo in"): return
        E = self.E
        E(f"s_memrealtime {s(sTS,2)}\ns_memtime {s(sTS+2,2)}"); E.wait_smem()
        E(f"v_writelane_b32 v{vTS}, s{sTS}, {self.nst}\nv_writelane_b32 v{vTS2}, s{sTS+2}, {self.nst}")
        self.nst += 1; self.stnames.append(name)
    def dma4(self, sbase, goff, ldsoff, rec=None, fl="sc1"):
        g = [f"s_add_u32 m0, s{sLW}, {ldsoff}\ns_add_u32 s{sT0}, s{sbase}, {goff}\nbuffer_load_dwordx4 v{vL16}, {s(WS,4)}, s{sT0} offen {fl} lds"]
        for i in range(1, 4): g.append(f"buffer_load_dwordx4 v{vL16}, {s(WS,4)}, s{sT0} offen offset:{1024*i} {fl} lds")
        if rec is not None:
            last = g[3]
            g[3] = lambda: rec.append(self.E(last))
        return g
    def wread(self, dst, ldsaddr):
        return f"ds_read_b128 {R(dst,4)}, v{vL16+(ldsaddr >> 16)} offset:{ldsaddr & 0xffff}"
    def signal(self, sreg, imm, tok, va=None):
        def fn():
            self.E.wait(vm=tok() if callable(tok) else tok)
            self.E(f"buffer_atomic_add v{vONE}, v{va or vSIG}, {s(WS,4)}, s{sreg} offen offset:{imm} sc1")
        return fn
    def poll_issue(self, sreg, imm):
        if self.o.get("spoll", 1): return f"s_load_dword s{sPV}, {s(WS,2)}, s{sreg} offset:{imm} glc"
        return f"buffer_load_dword v{vP}, v{vSIG}, {s(WS,4)}, s{sreg} offen offset:{imm} sc1"
    def poll_check(self, sreg, imm, thr, slp=None):
        def fn():
            E = self.E
            Ls, Lb = E.label("SP"), E.label("BK")
            sc = self.o.get("spoll", 1)
            if sc: E.wait_smem()
            else: E(f"v_readfirstlane_b32 s{sPV}, v{vP}")
            E(f"s_cmp_ge_u32 s{sPV}, {thr}\ns_cbranch_scc0 {Ls}")
            E.place(Lb)
            sl = self.o.get("slp", 0) if slp is None else slp
            cnt = ""
            if self.stamps and self.o.get("ends"):
                self.sites.append(f"{sreg}/{imm}")
                cnt = f"s_sub_u32 s{sPV}, 0x200001, s{sF}\nv_writelane_b32 v{vTS2}, s{sPV}, {30 + len(self.sites)}\n"
            self.tail.append(f"{Ls}:\ns_mov_b32 s{sF}, 0x200000\n{Ls}_l:\n" + cnt + (f"s_sleep {sl}\n" if sl else "") + self.poll_issue(sreg, imm) +
                             ("\ns_waitcnt lgkmcnt(0)\n" if sc else f"\ns_waitcnt vmcnt(0)\nv_readfirstlane_b32 s{sPV}, v{vP}\ns_nop 0\n") +
                             f"s_cmp_ge_u32 s{sPV}, {thr}\ns_cbranch_scc1 {Lb}\ns_sub_u32 s{sF}, s{sF}, 1\ns_cmp_lg_u32 s{sF}, 0\n"
                             f"s_cbranch_scc1 {Ls}_l\ns_branch {Lb}")
        return fn
    def poll_block(self, sreg, imm, thr):
        self.E(self.poll_issue(sreg, imm)); self.poll_check(sreg, imm, thr)()
    def T(self, kind, L): return 1024 * kind + 4 * L if kind < 4 else 8 + 4 * L
    def touch(self, sreg, sh, off):
        def fn():
            self.E(f"s_add_u32 s{sP}, s{sreg}, s{sh}\ns_add_u32 s{sP}, s{sP}, {off}\nbuffer_load_dword v{vDUM}, v{vTL}, {s(WS,4)}, s{sP} offen sc1")
            self.E.pend.pop(f"v{vDUM}", None)
        m = self.o.get("touch", 0)
        return fn if (m & (1 if sh == sHX else 2)) else (lambda: None)
    def prologue(self):
        E = self.E
        kernel_header(E, KNAME)
        Lgo = E.label("GO")
        E(f"s_cmp_lt_u32 s2, 256\ns_cbranch_scc1 {Lgo}\ns_endpgm")
        E.place(Lgo)
        if self.stamps: E(f"s_memrealtime {s(sTS,2)}\ns_memtime {s(sTS+2,2)}")
        if self.o.get("echo"): E(f"s_memrealtime {s(sTS,2)}")
        E(f"s_load_dwordx2 {s(WS,2)}, s[0:1], 72\ns_load_dwordx2 {s(OUT,2)}, s[0:1], 56\ns_load_dwordx2 {s(XIN,2)}, s[0:1], 0")
        E("s_load_dwordx4 s[80:83], s[0:1], 8\ns_load_dwordx4 s[84:87], s[0:1], 32\ns_load_dwordx2 s[88:89], s[0:1], 48")
        Lp = E.label("PC")
        E(f"s_getpc_b64 {s(sRET,2)}"); E.place(Lp)
        E(f"s_lshr_b32 s{sA}, s2, 3\nv_lshl_add_u32 v{vT}, v0, 5, s{sA}\nv_lshlrev_b32 v{vT}, 7, v{vT}\nv_min_u32 v{vT}, main_end-{Lp}-4, v{vT}")
        E(f"global_load_dword v247, v{vT}, {s(sRET,2)}")
        E(f"s_mov_b32 s{WS+2}, {WS_BYTES}\ns_mov_b32 s{WS+3}, 0x00020000")
        for b in (OUT, XIN): E(f"s_mov_b32 s{b+2}, {2048*640*2}\ns_mov_b32 s{b+3}, 0x00020000")
        E(f"v_lshrrev_b32 v{vT}, 6, v0\nv_and_b32 v0, 63, v0\nv_readfirstlane_b32 s{sW}, v{vT}")
        E(f"s_and_b32 s{sA}, s2, 7\ns_lshr_b32 s{sB}, s2, 3")
        if self.mapping == "mix":
            E(f"s_lshr_b32 s{sC}, s{sA}, 1\ns_lshl_b32 s{sC}, s{sC}, 2\ns_lshr_b32 s{sR}, s{sB}, 3\ns_add_u32 s{sR}, s{sR}, s{sC}")
            E(f"s_and_b32 s{sC}, s{sA}, 1\ns_lshl_b32 s{sC}, s{sC}, 3\ns_and_b32 s{sJ}, s{sB}, 7\ns_add_u32 s{sJ}, s{sJ}, s{sC}")
        else:
            E(f"s_lshr_b32 s{sR}, s{sB}, 4\ns_lshl_b32 s{sC}, s{sA}, 1\ns_add_u32 s{sR}, s{sR}, s{sC}\ns_and_b32 s{sJ}, s{sB}, 15")
        E(f"s_and_b32 s{sTH}, s{sJ}, 1\ns_lshr_b32 s{sNB}, s{sJ}, 1\ns_lshl_b32 s{sLW}, s{sW}, 12")
        E(f"v_lshlrev_b32 v{vL16}, 4, v0")
        if self.stamps: E(f"v_mov_b32 v{vTS}, 0\nv_mov_b32 v{vTS2}, 0")
        E.wait_smem()
        if self.stamps:
            E(f"v_writelane_b32 v{vTS2}, s2, 63")
            E(f"v_writelane_b32 v{vTS}, s{sTS}, 0\nv_writelane_b32 v{vTS2}, s{sTS+2}, 0")
            self.nst = 1; self.stnames.append("entry")
        wo_ = self.o.get("wsoff", 0) << 20
        if wo_: E(f"s_add_u32 s{WS}, s{WS}, {wo_}\ns_addc_u32 s{WS+1}, s{WS+1}, 0\ns_mov_b32 s{WS+2}, {WS_BYTES - wo_}")
        S = self.S = Startup(self, sys.modules[__name__])
        S.roles(80, 82, 84, 86, 88)
        S.s1_load(); S.x_touch()
        E(f"v_mov_b32 v{vTK+1}, {EPOCH}\nbuffer_load_dword v{vTK}, v{vTK+1}, {s(WS,4)}, 0 offen sc1")
        self.stamp("st S1 issued")
        S.s2_addrs()
        self.s2q = [(lambda i=i: setattr(S, "tok2", E(S.s2_load(i)))) for i in range(8)]
        if self.o.get("s2when", 0) == 0:
            while self.s2q: self.s2q.pop(0)()
        E(f"s_lshl_b32 s{sA}, s{sR}, 2\ns_add_u32 s{sA}, s{sA}, s{sW}\ns_mul_i32 s{sXB}, s{sA}, {40*KB}")
    def masks(self):
        r = []
        for i in range(16):
            m = 0
            for l in range(64):
                if (i & 3) + 8 * (i >> 2) + 4 * (l >> 5) <= (l & 31): m |= 1 << l
            r.append(f"s_mov_b32 s{sMASK+2*i}, {hex(m & 0xffffffff)}\ns_mov_b32 s{sMASK+2*i+1}, {hex(m >> 32)}")
        return r
    def x_bounce(self, T):
        E = self.E; S = self.S
        XA = 96; XR = 100; TM = 104; PA, PD = 240, 242
        o = self.o
        E(f"v_lshrrev_b32 v48, 3, v0\nv_mul_u32_u24 v48, 1280, v48\nv_and_b32 v49, 7, v0\nv_lshrrev_b32 v50, 4, v0\nv_xor_b32 v49, v49, v50\nv_lshl_add_u32 v{XA}, v49, 4, v48")
        E(f"v_xor_b32 v{XA+1}, 64, v{XA}\nv_add_u32 v{XA+2}, {2*9216}, v{XA}\nv_add_u32 v{XA+3}, {3*9216}, v{XA+1}\nv_add_u32 v{XA+1}, 9216, v{XA+1}")
        tok = []
        def dma(ch):
            E(f"s_add_u32 m0, s{sLW}, {16*KB*(ch%4)}\ns_add_u32 s{sE_}, s{sXB}, {128*ch}")
            for i in range(4): t = E(f"buffer_load_dwordx4 v{XA+i}, {s(XIN,4)}, s{sE_} offen offset:{1024*i} lds")
            tok.append(t)
        n0 = o.get("xpre", 0)
        for ch in range(n0): dma(ch)
        S.s1_proc()
        self.stamp("st S1 stored")
        if o.get("s2when", 0) == 1:
            while self.s2q: self.s2q.pop(0)()
        for ch in range(n0, 3): dma(ch)
        E(f"s_mul_i32 s{sWQ}, s{sJ}, {160*KB}\ns_add_u32 s{sWQ}, s{sWQ}, s{sLW}\ns_add_u32 s{sWQ}, s{sWQ}, {WQ}")
        E(f"v_min_u32 v{vSIG}, 1, v0\nv_lshlrev_b32 v{vSIG}, 28, v{vSIG}\nv_mov_b32 v{vONE}, 1")
        E(f"v_and_b32 v48, 31, v0\nv_lshrrev_b32 v49, 5, v0\nv_bfe_u32 v50, v0, 1, 3\nv_xor_b32 v49, v49, v50\nv_lshlrev_b32 v49, 4, v49\nv_lshl_add_u32 v48, v48, 7, v49")
        E(f"v_add_u32 v{XR}, s{sLW}, v48")
        for k in range(1, 4): E(f"v_xor_b32 v{XR+k}, {32*k}, v{XR}")
        E(f"v_mov_b32 v{T}, 0\nv_mov_b32 v{T+1}, 0")
        E(f"s_mov_b32 s{sA}, 0x9e3779b1\nv_mul_lo_u32 v{vTK}, v{vTK}, s{sA}\nv_add_u32 v{vTK}, 0x7f4a7c15, v{vTK}\nv_xor_b32 v{vTK+1}, 0x5bd1e995, v{vTK}")
        E(f"v_readfirstlane_b32 s0, v{vTK}")
        dma(3)
        side = Emit(); self.E = side
        side(f"s_lshl_b32 s{sA}, s{sJ}, 11\ns_add_u32 s{sA}, s{sA}, {F1}\ns_sub_u32 s{sB}, 15, s{sR}\ns_lshl_b32 s{sB}, s{sB}, 11\ns_add_u32 s{sB}, s{sB}, {F1 + 15*128}")
        side(f"v_lshl_add_u32 v48, v0, 7, s{sA}\nv_mov_b32 v49, s{sB}\nv_cmp_gt_u32 vcc, 16, v0\nv_cndmask_b32 v{PA}, v49, v48, vcc")
        side(f"s_lshl_b32 s{sA}, s{sNB}, 12\ns_add_u32 s{sA}, s{sA}, {F2}\nv_and_b32 v48, 31, v0\nv_lshl_add_u32 v{PA+1}, v48, 7, s{sA}")
        self.prologue2()
        self.E = E
        cst = [x for x in side.out if not x.startswith("s_nop")]
        def take(n):
            while n < len(cst) and (cst[n].startswith("s_cselect") or cst[n - 1].startswith("s_cmp")): n += 1
            r = cst[:n]; del cst[:n]
            return r
        f1at = o.get("f1at", 0)
        for ch in range(10):
            E.wait(vm=tok[ch])
            for k in range(4): E(f"ds_read_b128 {v(TM+4*k,4)}, v{XR+k} offset:{16*KB*(ch%4)}")
            for k in range(4): E(f"ds_read_b128 {a(16*ch+4*k,4)}, v{XR+k} offset:{16*KB*(ch%4)}")
            if ch == f1at:
                assert ch >= n0
                E("s_barrier"); S.flag1(); self.stamp("st F1")
            if ch in (2, 5, 8)[:o.get("s2x", 3)] and self.s2q: self.s2q.pop(0)()
            if ch == o.get("f1poll", 8):
                Lw = E.label("PW")
                E(f"s_cmp_lg_u32 s{sW}, 0\ns_cbranch_scc1 {Lw}")
                E(S.vpoll_issue(PA, PD), count=False); E.place(Lw)
            for e in range(8): E(f"v_dot2c_f32_bf16 v{T}, s{sONE}, v{TM+e}\nv_dot2c_f32_bf16 v{T+1}, v{TM+e}, v{TM+e}")
            E.drain(vm=False)
            if ch + 4 < 10: dma(ch + 4)
            for e in range(8, 16): E(f"v_dot2c_f32_bf16 v{T}, s{sONE}, v{TM+e}\nv_dot2c_f32_bf16 v{T+1}, v{TM+e}, v{TM+e}")
            if f1at <= ch <= 8:
                for x in take(len(cst) if ch == 8 else -(-len(cst) // (9 - ch))): E(x)
            if ch == 8: self.resops = self.load_residual(160)
        self.stamp("st x done")
        E("s_waitcnt vmcnt(0)"); E.vm_done = E.vm_n
        Lw = E.label("PW")
        E(f"s_cmp_lg_u32 s{sW}, 0\ns_cbranch_scc1 {Lw}")
        S.vpoll_check(PA, PD, 8)()
        E.place(Lw)
        E("s_barrier")
        self.stamp("WQ synced")
    def sharers(self):
        return [f"s_and_b32 s{sA}, s{sR}, 3\ns_lshl_b32 s{sH8}, s{sA}, 1\ns_add_u32 s{sH8}, s{sH8}, s{sTH}\ns_lshl_b32 s{sH8}, s{sH8}, 11",
                f"s_and_b32 s{sA}, s{sR}, 3\ns_lshl_b32 s{sH16}, s{sA}, 2\ns_add_u32 s{sH16}, s{sH16}, s{sW}\ns_lshl_b32 s{sH16}, s{sH16}, 11\ns_sub_u32 s{sH16}, s{sH16}, s{sLW}",
                f"s_and_b32 s{sHX}, s{sJ}, 7\ns_lshl_b32 s{sHX}, s{sHX}, 11"]
    def prologue2(self):
        E = self.E; NREP = self.o.get("nrep", 4)
        E(f"s_mul_i32 s{sWGU}, s{sJ}, {240*KB}\ns_add_u32 s{sWGU}, s{sWGU}, s{sLW}\ns_add_u32 s{sWGU}, s{sWGU}, {WGU}")
        E(f"s_mul_i32 s{sWO}, s{sNB}, {100*KB}\ns_mul_i32 s{sA}, s{sW}, {25*KB}\ns_add_u32 s{sWO}, s{sWO}, s{sA}\ns_add_u32 s{sWO}, s{sWO}, {WO}")
        E(f"s_mul_i32 s{sWD}, s{sNB}, {240*KB}\ns_mul_i32 s{sA}, s{sW}, {60*KB}\ns_add_u32 s{sWD}, s{sWD}, s{sA}\ns_add_u32 s{sWD}, s{sWD}, {WD}")
        E(f"s_lshl_b32 s{sA}, s{sR}, 2\ns_add_u32 s{sA}, s{sA}, s{sW}")
        E(f"s_lshl_b32 s{sB}, s{sJ}, 6\ns_add_u32 s{sC}, s{sB}, s{sA}\ns_mul_i32 s{sKVme}, s{sC}, {5*KB}")
        E(f"s_lshr_b32 s{sKP}, s{sC}, 1\ns_lshl_b32 s{sKP}, s{sKP}, 7\ns_add_u32 s{sKP}, s{sKP}, {FLAGS}")
        E(f"s_mul_i32 s{sHme}, s{sA}, {96*KB}\ns_mul_i32 s{sC}, s{sJ}, {6*KB}\ns_add_u32 s{sHme}, s{sHme}, s{sC}")
        E(f"s_lshr_b32 s{sC}, s{sJ}, 2\ns_mul_i32 s{sOme}, s{sC}, {10*KB}\ns_add_u32 s{sOme}, s{sOme}, s{sXB}")
        for i in range(9):
            E(f"s_cmp_lt_u32 s{sA}, {8-i}\ns_cselect_b32 s{sFL+i}, 0x3f803f80, 0x3f800000" if False else
              f"s_cmp_lt_u32 s{sA}, {8-i}\ns_cselect_b32 s{sFL+i}, 0x3f80, 0\ns_or_b32 s{sFL+i}, s{sFL+i}, 1.0")
        E(f"s_lshl_b32 s{sC}, s{sR}, 2\ns_lshl_b32 s{sD}, s{sW}, 1\ns_add_u32 s{sC}, s{sC}, s{sD}")
        ovl = self.o.get("ovl", 2)
        if ovl:
            E(f"s_sub_u32 s{sD}, s{sC}, 8\ns_mul_i32 s{sHAL}, s{sD}, {96*KB}\ns_mul_i32 s{sD}, s{sJ}, {6*KB}\ns_add_u32 s{sHAL}, s{sHAL}, s{sD}\ns_add_u32 s{sHAL}, s{sHAL}, {HB}")
            E(f"s_add_u32 s{sD}, s{sC}, s{sB}\ns_sub_u32 s{sD}, s{sD}, 8\ns_add_u32 s{sKVme}, s{sKP}, 32\ns_mov_b32 s{sHAL+1}, {96*KB}")
        else:
            E(f"s_add_u32 s{sD}, s{sC}, s{sB}\ns_sub_u32 s{sD}, s{sD}, 8\ns_mul_i32 s{sHAL}, s{sD}, {5*KB}\ns_add_u32 s{sHAL}, s{sHAL}, {KV}")
        E(f"s_lshl_b32 s{sKC}, s{sD}, 6\ns_add_u32 s{sKC}, s{sKC}, {FLAGS}")
        E(f"s_cmp_lt_u32 s{sC}, 8\ns_cselect_b32 s{sHAL}, s{sWQ}, s{sHAL}")
        E(f"s_cselect_b32 s{sHAL+1}, {5*KB}, s{sHAL+1}\ns_cselect_b32 s{sKVme}, s{sKVme}, s{sKC}" if ovl else f"s_cselect_b32 s{sHAL+1}, 0, {KV_STRIDE}")
        E(f"s_cselect_b32 s{sKC}, s{sKP}, s{sKC}\ns_cselect_b32 s{sKT}, 0, 2")
        E(f"s_lshl_b32 s{sA}, s{sR}, 13\ns_add_u32 s{sA}, s{sA}, {GCNT}")
        E(f"s_lshr_b32 s{sB}, s{sW}, 1\ns_lshl_b32 s{sC}, s{sB}, 2\ns_lshr_b32 s{sD}, s{sJ}, 2\ns_add_u32 s{sC}, s{sC}, s{sD}\ns_lshl_b32 s{sC}, s{sC}, 7\ns_add_u32 s{sTP}, s{sA}, s{sC}")
        E(f"s_lshl_b32 s{sC}, s{sTH}, 2\ns_add_u32 s{sC}, s{sC}, s{sW}\ns_lshl_b32 s{sC}, s{sC}, 7\ns_add_u32 s{sTC}, s{sA}, s{sC}")
        E(f"s_and_b32 s{sC}, s{sNB}, {NREP-1}\ns_lshl_b32 s{sC}, s{sC}, 10\ns_add_u32 s{sTCR}, s{sTC}, s{sC}")
        E(f"s_add_u32 s{sA}, s{sA}, {32*128}\ns_lshl_b32 s{sC}, s{sTH}, 1\ns_add_u32 s{sC}, s{sC}, s{sB}\ns_lshl_b32 s{sC}, s{sC}, 7\ns_add_u32 s{sWP}, s{sA}, s{sC}")
        E(f"s_lshl_b32 s{sC}, s{sW}, 7\ns_add_u32 s{sWC}, s{sA}, s{sC}\ns_and_b32 s{sC}, s{sNB}, {NREP-1}\ns_lshl_b32 s{sC}, s{sC}, 10\ns_add_u32 s{sWC}, s{sWC}, s{sC}")
        E(f"v_lshlrev_b32 v{vSR}, 10, v0\nv_mov_b32 v48, {OOB}\nv_cmp_gt_u32 vcc, {NREP}, v0\nv_cndmask_b32 v{vSR}, v48, v{vSR}, vcc")
        for i in range(4):
            E(f"s_add_u32 s{sA}, s{sW}, {1+i}\ns_and_b32 s{sA}, s{sA}, 3\ns_lshr_b32 s{sB}, s{sA}, 1\ns_and_b32 s{sC}, s{sA}, 1\ns_lshl_b32 s{sC}, s{sC}, 8")
            E(f"s_lshl_b32 s{sD}, s{sR}, 1\ns_add_u32 s{sD}, s{sD}, s{sTH}\ns_lshl_b32 s{sD}, s{sD}, 1\ns_add_u32 s{sB}, s{sB}, s{sD}")
            E(f"s_mul_i32 s{sT16+i}, s{sB}, {40*KB}\ns_add_u32 s{sT16+i}, s{sT16+i}, s{sC}")
            E(f"s_mul_i32 s{sT16H+i}, s{sB}, {96*KB}\ns_add_u32 s{sT16H+i}, s{sT16H+i}, s{sC}")
            E(f"s_mul_i32 s{sB}, s{sW}, {24*KB}\ns_add_u32 s{sT16H+i}, s{sT16H+i}, s{sB}")
            if i < 3:
                E(f"s_mul_i32 s{sA}, s{sA}, {15*KB}\ns_add_u32 s{sA}, s{sA}, {5*KB*i}\nv_add_u32 v{vRW+i}, s{sA}, v{vL16}")
        E(f"s_mul_i32 s{sA}, s{sW}, {15*KB}\nv_add_u32 v{vRW+3}, s{sA}, v{vL16}")
        t0, t1, t2 = 48, 49, 50
        E(f"v_add_u32 v{vL16b}, 0x10000, v{vL16}\nv_add_u32 v{vL16c}, 0x20000, v{vL16}")
        E(f"v_lshrrev_b32 v{t0}, 4, v0\nv_and_b32 v{t1}, 15, v0")
        E(f"v_lshlrev_b32 v{t2}, 9, v{t0}\nv_lshl_add_u32 v{vU}, v{t1}, 4, v{t2}")
        E(f"v_lshlrev_b32 v{t2}, 10, v{t0}\nv_lshl_add_u32 v{vXW}, v{t1}, 4, v{t2}")
        E(f"v_lshrrev_b32 v{t2}, 1, v{t0}\nv_lshlrev_b32 v{t2}, 9, v{t2}\nv_lshl_add_u32 v{vXW5}, v{t1}, 4, v{t2}")
        E(f"v_and_b32 v{t2}, 1, v{t0}\nv_lshl_add_u32 v{vXW5}, v{t2}, 3, v{vXW5}")
        E(f"v_lshlrev_b32 v{vTL}, 7, v{t1}\nv_lshl_add_u32 v{vTL}, v{t0}, 28, v{vTL}")
        E(f"v_lshlrev_b32 v{vSW}, 3, v{t1}\nv_lshl_add_u32 v{vSW}, v{t0}, 28, v{vSW}")
        E(f"v_mul_u32_u24 v{t2}, 1280, v{t1}\nv_lshl_add_u32 v{vRM}, v{t0}, 5, v{t2}\nv_lshl_add_u32 v{vRM5}, v{t0}, 3, v{t2}")
        E(f"s_lshl_b32 s{sA}, s{sR}, 1\ns_add_u32 s{sA}, s{sA}, s{sTH}\ns_lshl_b32 s{sA}, s{sA}, 2\ns_add_u32 s{sA}, s{sA}, s{sW}")
        E(f"s_mul_i32 s{sA}, s{sA}, {16*1280}\ns_mul_i32 s{sB}, s{sNB}, 160\ns_add_u32 s{sRM}, s{sA}, s{sB}")
        E(f"v_lshrrev_b32 v{t0}, 5, v0\nv_and_b32 v{t1}, 31, v0")
        E(f"v_lshlrev_b32 v{t2}, 2, v{t0}\nv_xor_b32 v{t2}, v{t2}, v{t1}\nv_lshlrev_b32 v{t2}, 4, v{t2}\nv_lshl_add_u32 v{vPOS}, v{t0}, 9, v{t2}")
        E(f"v_lshlrev_b32 v{t2}, 3, v{t1}")
        E(f"s_lshl_b32 s{sA}, s{sW}, 8\nv_lshl_add_u32 v{vST}, v{t0}, 12, v{t2}\nv_add_u32 v{vST}, s{sA}, v{vST}")
        E(f"v_lshlrev_b32 v{t2}, 4, v{t1}\nv_lshl_add_u32 v{vO4}, v{t0}, 3, v{t2}")
        E(f"s_mul_i32 s{sA}, s{sW}, {SLOT}\nv_add_u32 v{vKR}, s{sA}, v{vPOS}")
    def load_residual(self, t):
        E = self.E
        E(f"buffer_load_dwordx4 {v(t,4)}, v{vRM}, {s(XIN,4)}, s{sRM} offen")
        E(f"buffer_load_dwordx4 {v(t+4,4)}, v{vRM}, {s(XIN,4)}, s{sRM} offen offset:16")
        E(f"buffer_load_dwordx2 {v(t+8,2)}, v{vRM5}, {s(XIN,4)}, s{sRM} offen offset:128")
        return sum([[f"v_lshlrev_b32 v{vRES+2*i}, 16, v{t+i}", f"v_and_b32 v{vRES+2*i+1}, 0xffff0000, v{t+i}"] for i in range(10)], [])
    def stat_loads(self, idx, t):
        return [(f"s_lshl_b32 s{sC}, s{sR}, 13\ns_add_u32 s{sC}, s{sC}, {STAT + idx*128*KB}\n" if q == 0 else "") +
                f"buffer_load_dwordx2 {v(t+2*q,2)}, v{vST}, {s(WS,4)}, s{sC} offen offset:{1024*q} sc1" for q in range(4)]
    def stat_ops(self, t):
        return [f"v_add_f32 v{t}, v{t}, v{t+2}", f"v_add_f32 v{t+1}, v{t+1}, v{t+3}", f"v_add_f32 v{t+4}, v{t+4}, v{t+6}", f"v_add_f32 v{t+5}, v{t+5}, v{t+7}",
              f"v_add_f32 v{t}, v{t}, v{t+4}", f"v_add_f32 v{t+1}, v{t+1}, v{t+5}", f"v_mov_b32 v{t+2}, v{t}", f"v_mov_b32 v{t+3}, v{t+1}",
              f"v_permlane32_swap_b32 v{t+2}, v{t}", f"v_permlane32_swap_b32 v{t+3}, v{t+1}",
              f"v_add_f32 v{t}, v{t}, v{t+2}", f"v_add_f32 v{t+1}, v{t+1}, v{t+3}",
              f"v_mul_f32 v{t}, {f2u(-1/640)}, v{t}", f"v_mul_f32 v{t+1}, {f2u(1/640)}, v{t+1}",
              f"v_fma_f32 v{t+1}, -v{t}, v{t}, v{t+1}", f"v_cvt_pk_bf16_f32 v{vNM}, v{t}, v{t}", f"v_max_f32 v{t+1}, 0, v{t+1}",
              f"v_and_b32 v{t+2}, 0xffff0000, v{vNM}", f"v_add_f32 v{vIV}, {f2u(EPS)}, v{t+1}", f"v_sub_f32 v{t+2}, v{t}, v{t+2}",
              f"v_rsq_f32 v{vRSTD}, v{vIV}", f"v_cvt_pk_bf16_f32 v{vNM+1}, v{t+2}, 0", f"v_mov_b32 v{vNM+2}, v{vNM}", f"v_mov_b32 v{vNM+3}, v{vNM+1}"]
    def cs_loads(self, base, stride, ntile, dst):
        g = []
        for t in range(ntile):
            p = ""
            if t == 0: p = f"s_mul_i32 s{sD}, s{sJ}, {stride}\ns_add_u32 s{sD}, s{sD}, {base}\n"
            if t == 4: p = f"s_add_u32 s{sD}, s{sD}, 4096\n"
            g.append(p + f"buffer_load_dwordx4 {R(dst+4*t,4)}, v{vL16}, {s(WS,4)}, s{sD} offen offset:{1024*(t%4)} sc1")
        return g
    def xloads(self, base):
        g = []
        for ks in range(40):
            t = f"s_add_u32 s{sE_}, s{sXB}, {base + 1024*ks}\n" if ks % 4 == 0 else ""
            g.append(t + f"buffer_load_dwordx4 {a(4*ks,4)}, v{vL16}, {s(WS,4)}, s{sE_} offen offset:{1024*(ks%4)} sc1")
        return g
    def xstart(self, xl, base):
        n = self.o.get("xt", 2)
        for g in xl[:n]: self.E(g)
        for k in range(2): self.touch(sXB, sHX, base + 8 * KB + 16 * KB * k)()
        for g in xl[n:NX0]: self.E(g)
        if self.o.get("sep", 0): self.statsig()
    def xt(self, i):
        if self.o.get("ab", 0): return XT + XT_STRIDE * {0: 0, 1: 1, 2: 0, 3: 0 if self.o["ab"] == 1 else 2}[i]
        return XT + XT_STRIDE * (1 if i == 3 and self.o.get("reuse", 7) & 4 else i)
    def fine(self, tag, sl):
        st = self.o.get("fine_" + tag, 0)
        if st and sl and sl % st == 0: self.stamp(f"{tag}@{sl}")
    def wstream(self, items, pos0, allw, ring, ev=None, valu=None, pre=None, budget=32, tag=""):
        E = self.E; LA = 6
        ev = ev or {}; valu = list(valu or []); pre = pre or {}
        f = pos0; over = 0; defer = []
        for sl, it in enumerate(items):
            self.fine(tag, sl)
            for g in pre.get(sl, []): self.do(g)
            if it[0] == "cs":
                assert not any(isinstance(x, str) and f"v{vNM+3}," in x for _, x in valu), "stats not ready"
                E(f"v_mfma_f32_32x32x16_bf16 {v(it[1],16)}, {R(it[2],4)}, {v(vNM,4)}, {v(it[1],16)}")
                c0 = E.cost - 8
            else:
                acc, ks, first = it
                if f % 2 == 0: E.need(regs(R(ring + 4 * (f % LA), 4)) | regs(R(ring + 4 * ((f + 1) % LA), 4)) | regs(a(4 * ks, 4)))
                E(f"v_mfma_f32_32x32x16_bf16 {v(acc,16)}, {R(ring+4*(f%LA),4)}, {a(4*ks,4)}, {'0' if first else v(acc,16)}")
                c0 = E.cost - 8
                if f + LA < len(allw): E(self.wread(ring + 4 * (f % LA), allw[f + LA]))
                f += 1
            for g in ev.get(sl, []): self.do(g)
            if defer and self.o.get("verbose"): print("   ", tag, "deferred op at slot", sl)
            if defer: self.do(defer.pop(0))
            lim = budget - (4 if f % 2 == 0 else 0)
            while valu and valu[0][0] <= sl:
                x = valu[0][1]
                if isinstance(x, list): defer += x; valu.pop(0); continue
                c = sum(8 if y.startswith(TRANS) else 4 for y in x.split("\n"))
                if E.cost - c0 + c > lim and not (c > 16 and E.cost - c0 <= 12): break
                valu.pop(0); E(x)
            over += max(0, E.cost - c0 - lim)
        if self.o.get("verbose"): print(tag, "over budget", over, "left valu", len(valu))
        valu += [(0, defer)]
        assert max(list(ev) + list(pre) + [0]) < len(items), (max(list(ev) + list(pre)), len(items))
        for _, x in valu:
            for y in (x if isinstance(x, list) else [x]): self.do(y)
    @staticmethod
    def pair_items(acc, cs):
        return [(acc[sl & 1], sl >> 1, sl < 2) for sl in range(80)] + [("cs", acc[0], cs), ("cs", acc[1], cs + 4)]
    def p1(self, L):
        E = self.E; o = self.o
        ACC = [48, 64, 80, 96]; RING = 112; CS = 136
        KA, KB_, KV1, VA, VB = 152, 156, 160, 164, 168
        QA0, QB0, QA1, QB1 = 172, 176, 180, 184
        self.Q = (QA0, QB0, QA1, QB1)
        MK = self.MK = 188; VAD = self.VAD = [196, 205]; K1 = self.K1 = AG
        self.WOF = [AG + 160 + 4 * f for f in range(24)] + [244]
        xl = self.xloads(self.xt(2 * L))
        allw = [1024 * f for f in range(80)] + [1024 * f for f in range(80, 160)]
        tok = []
        if L == 0:
            self.x_bounce(152)
            resops = self.resops
            dm = [self.dma4(sWQ, 16 * KB * c, 16 * KB * c, tok) for c in range(10)]
            for g in self.sharers(): E(g)
            for g in dm[0]: self.do(g)
            for k in range(1, 3): self.touch(sWQ, sH16, 32 * KB * k)()
            for g in dm[1]: self.do(g)
            late = sum(dm[2:], [])
        else:
            E.wait(vm=self.wq_tok[1]); E("s_barrier")
            for f in range(6): E(self.wread(RING + 4 * f, allw[f]))
            self.poll_block(sWC, 512 + 4 * (L - 1), 16)
            self.stamp("L1 P1 synced")
            self.xstart(xl, self.xt(2 * L))
            resops = []; late = self.wq_late; tok = self.wq_tok
        def ready(c): return lambda: (E.wait(vm=tok[c]), E("s_barrier"))
        if L == 0:
            ready(0)()
            for f in range(6): E(self.wread(RING + 4 * f, allw[f]))
        ev = {}; pre = {}
        so = self.stat_ops(152)
        if L == 0:
            for c in range(1, 5): pre[16 * c - 6] = [ready(c)]
            seq = []
            for c in range(2, 8):
                seq += dm[c]
                if self.s2q: seq.append(self.s2q.pop(0))
                if c == 4: seq += self.cs_loads(CSQ, 4 * KB, 4, CS)
            seq += self.s2q
            spread(ev, seq, 0, o.get("lateS", 22) / 10)
            lateB = dm[8] + dm[9]
            so = [(2, x) for x in so[6:] + resops]
        else:
            pre[26] = [ready(len(tok) - 1)]
            assert len(tok) >= 7
            spread(ev, xl[NX0:] , 0, 2)
            if o.get("sep", 0):
                ev.setdefault(17, []).append(self.poll_issue(sWC, 512 + 8 + 4 * (L - 1)))
                pre[38] = [self.poll_check(sWC, 512 + 8 + 4 * (L - 1), 16)]
            spread(ev, self.stat_loads(2, 152), 39, 2)
            spread(ev, late, 60, 1.8)
            so = [(66, x) for x in so]
        if L: spread(ev, [self.touch(sWO, sH8, 16 * KB * k) for k in range(2)], 61, 14)
        if L == 0: pre[74] = [ready(5)]
        self.wstream(self.pair_items(ACC[:2], CS), 0, allw, RING, ev, so, pre, tag=f"A{L}")
        self.stamp(f"L{L} P1 passA")
        def epi(G0, G1, dst, sc, at):
            r = []
            for G in range(G0, G1):
                b = ACC[0] + 4 * G
                r += [(at, f"v_mul_f32 v{b+i}, v{sc[G-G0]}, v{b+i}") for i in range(4)]
                r += [(at, f"v_cvt_pk_bf16_f32 v{dst[G-G0]+i}, v{b+2*i}, v{b+2*i+1}") for i in range(2)]
            return r
        ovl = o.get("ovl", 2)
        kvg = HB + (6 * MB if L and ovl == 2 else 0) if ovl else KV + L * KV_STRIDE
        sKVme = sHme if ovl else globals()["sKVme"]
        st = {}
        vKW = 214; vQS = 215
        stA = [f"buffer_store_dwordx4 {v(reg,4)}, v{vPOS}, {s(WS,4)}, s{sA} offen offset:{off} sc1" for reg, off in ((KA, 0), (KB_, 1024), (VA, 2048))]
        stA[0] = f"s_add_u32 s{sA}, s{sKVme}, {kvg}\ns_add_u32 s{sB}, s{sA}, 4096\n" + stA[0]
        stA.append(lambda: st.__setitem__("A", E(f"buffer_store_dwordx4 {v(KV1,4)}, v{vPOS}, {s(WS,4)}, s{sB} offen sc1")))
        ldsA = [f"ds_write_b128 v{vKW}, {v(reg,4)} offset:{off}" for reg, off in ((KA, 0), (KB_, 1024), (VA, 2048), (KV1, 4096 + 128))]
        putB = [lambda: st.__setitem__("B", E(f"s_add_u32 s{sA}, s{sKVme}, {kvg}\nbuffer_store_dwordx4 {v(VB,4)}, v{vPOS}, {s(WS,4)}, s{sA} offen offset:3072 sc1")),
                f"ds_write_b128 v{vKW}, {v(VB,4)} offset:3072"]
        qs = 20 ** -0.5 * math.log2(math.e)
        va = epi(0, 8, [KA, KA + 2, KV1, KB_, KB_ + 2, VA, VA + 2, KV1 + 2], [vRSTD] * 8, 1)
        for k, G in reversed(list(enumerate((1, 4, 6, 7)))): va.insert(6 * (G + 1), (1, [stA[k]]))
        va += [(1 if L else 26, f"v_add_u32 v{vKW}, {8*SLOT}, v{vKR}"), (1 if L else 26, f"v_mul_f32 v{vQS}, {f2u(qs)}, v{vRSTD}")]
        t0, t1, t2 = 216, 217, 218
        cst = []
        for i in range(8):
            cst += [f"v_cndmask_b32 v{t0}, 0, -1, {s(sMASK+4*i,2)}", f"v_cndmask_b32 v{t1}, 0, -1, {s(sMASK+4*i+2,2)}",
                    f"v_and_b32 v{t0}, 0xffff, v{t0}", f"v_lshl_or_b32 v{MK+i}, v{t1}, 16, v{t0}"]
        cst += [f"v_lshrrev_b32 v{t0}, 5, v0", f"v_bfe_u32 v{t1}, v0, 2, 2", f"v_lshl_add_u32 v{t0}, v{t0}, 2, v{t1}",
                f"v_bfe_u32 v{t1}, v0, 4, 1", f"v_and_b32 v{t2}, 3, v0", f"v_lshl_add_u32 v{t1}, v{t1}, 2, v{t2}",
                f"v_and_b32 v{t2}, 1, v0", f"v_lshlrev_b32 v219, 2, v{t2}", f"v_xor_b32 v219, v219, v{t0}", f"v_lshlrev_b32 v219, 4, v219",
                f"v_lshl_add_u32 v219, v{t2}, 9, v219", f"v_bfe_u32 v220, v0, 1, 1", f"v_lshl_add_u32 v220, v220, 3, v219", f"v_add_u32 v221, {4096+128+8}, v219",
                f"v_mov_b32 v224, 128", f"v_mov_b32 v225, {SLOT}", f"v_subrev_u32 v226, v{vPOS}, v{vKR}"]
        cst += [f"s_lshl_b32 s{sC}, s{sW}, 7\ns_add_u32 s{sC}, s{sC}, {ONES+128}\nv_mov_b32 v227, s{sC}"]
        for hd in range(2):
            cst += [f"v_add_u32 v222, {2048+1024*hd}, v220", f"v_cmp_gt_u32 vcc, 4, v{t1}\nv_cndmask_b32 v222, v221, v222, vcc", f"v_add_u32 v222, v226, v222",
                    f"v_cmp_gt_u32 {s(sC,2)}, 4, v{t1}\nv_cmp_eq_u32 vcc, {4+hd}, v{t1}\ns_or_b64 vcc, vcc, {s(sC,2)}\nv_cndmask_b32 v{VAD[hd]}, v227, v222, vcc\nv_cndmask_b32 v223, v224, v225, vcc"]
            cst += [f"v_add_u32 v{VAD[hd]+i}, v{VAD[hd]+i-1}, v223" for i in range(1, 9)]
        cst = [f"v_mov_b32 v{228+i}, 0x3f803f80" for i in range(4)] + cst
        n1 = o.get("cst1", 50)
        if L == 0: n1 = 30
        va += [(1 if L else 27, x) for x in cst[:n1]]
        va += epi(8, 10, [VB, VB + 2], [vRSTD] * 2, 43) + [(43, putB)] + epi(10, 12, [QA0, QA0 + 2], [vQS] * 2, 43)
        va += [(43, x) for x in cst[n1:]]
        for i in range(9):
            va += [(52, f"v_accvgpr_write_b32 {R(K1+4*i+2)}, s{sFL+i}"), (52, f"v_accvgpr_write_b32 {R(K1+4*i+3)}, 0")]
        va += [(52, f"v_mov_b32 v{q+3}, 0") for q in (QA1, QB1)]
        items = [(ACC[2], k, k == 0) for k in range(40)] + [("cs", ACC[2], CS + 8)] + [(ACC[3], k, k == 0) for k in range(40)] + [("cs", ACC[3], CS + 12)]
        ev = {}; pre = {}
        if L == 0:
            s2 = o.get("s2B", 16)
            pre[10] = [ready(6)]
            pre[s2] = [lambda: (E.wait(vm=max(self.S.tok2, tok[7])), E("s_barrier"), self.S.s2_proc(), self.stamp("st S2 stored"), E("s_barrier"))]
            pre[43] = [ready(9), self.S.flag2]
            spread(ev, lateB, s2, 1.5)
            spread(ev, self.masks(), s2, 0.6)
        else: pre[26] = [ready(9)]
        spread(ev, ldsA + [f"ds_write_b128 v{vL16}, v[228:231] offset:{ONES}", f"ds_write_b128 v{vL16}, v[228:231] offset:{ONES+1024}"], 26 if L else 29, 2)
        wo = []
        for f in range(25):
            t = f"s_add_u32 s{sT0+1}, s{sWO}, {1024*f}\n" if f % 4 == 0 else ""
            wo.append(t + f"buffer_load_dwordx4 {R(self.WOF[f],4)}, v{vL16}, {s(WS,4)}, s{sT0+1} offen offset:{1024*(f%4)} sc1")
        if L == 0:
            pass
        nwo = o.get("wob", 14)
        if L == 0:
            nwo = 0
        else:
            spread(ev, wo[:nwo], 13, 44 / nwo)
        self.wo_late = wo[nwo:]
        spread(ev, [self.touch(sWGU, sH16, 32 * KB * k) for k in range(2)], 40, 16)
        sa, pa, ca, sb = o.get("sa", 34), o.get("pa", 50), o.get("ca", 70), o.get("sb", 79)
        if L == 0: sa, pa, ca = o.get("sa0", 17), o.get("pa0", 38), o.get("ca0", 60)
        ev.setdefault(sa, []).append(self.signal(sKP, 8 * L, lambda: st["A"]))
        ev.setdefault(pa, []).append(self.poll_issue(sKC, 8 * L))
        pre.setdefault(ca, []).append(self.poll_check(sKC, 8 * L, f"s{sKT}"))
        hal = []; self.haltok = []
        for t in range(2):
            p = f"s_mul_i32 s{sB}, s{sW}, {2*SLOT}\n" + (f"s_add_u32 s{sHAL}, s{sHAL}, s{sHAL+1}\n" if L and not ovl else "") if t == 0 else ""
            if t == 0 and L and ovl == 2: p += f"s_mul_i32 s{sE_}, s{sKT}, {3*MB}\ns_add_u32 s{sHAL}, s{sHAL}, s{sE_}\n"
            hal.append(p + f"s_add_u32 m0, s{sB}, {t*SLOT}\ns_add_u32 s{sE_}, s{sHAL}, {s(sHAL+1) if ovl and t else t*5*KB}\nbuffer_load_dwordx4 v{vL16}, {s(WS,4)}, s{sE_} offen sc1 lds")
            hal += [f"buffer_load_dwordx4 v{vL16}, {s(WS,4)}, s{sE_} offen offset:{1024*i} sc1 lds" for i in (1, 2)]
            hal.append(f"s_add_u32 m0, s{sB}, {t*SLOT+4096+128}\ns_add_u32 s{sE_}, s{sE_}, 4096\nbuffer_load_dwordx4 v{vL16}, {s(WS,4)}, s{sE_} offen sc1 lds")
        lasth = hal[-1]; hal[-1] = lambda: self.haltok.append(E(lasth))
        spread(ev, hal, ca, 1)
        ev.setdefault(sb, []).append(self.signal(sKP, 8 * L + 4, lambda: st["B"]))
        self.wstream(items, 80, allw, RING, ev, va, pre, budget=o.get("budB", 32), tag=f"B{L}")
        self.stamp(f"L{L} P1 passB")
        if L == 0: E(self.S.vpoll_issue(241, 242))
        for _, x in epi(12, 15, [QA1, QB0, QB0 + 2], [vQS] * 3, 0): E(x)
        E(f"s_mov_b32 vcc_lo, -1\ns_mov_b32 vcc_hi, 0")
        for i in range(2):
            E(f"v_cndmask_b32 v{QB1+i}, v{QA1+i}, v{QA1+3}, vcc")
            E(f"v_cndmask_b32 v{QA1+i}, 0, v{QA1+i}, vcc")
        for k in range(6):
            for hd, (q0, q1, k0) in enumerate(((QA0, QA1, KA), (QB0, QB1, KB_))):
                qa, ka = (q0 + k, k0 + k) if k < 4 else (q1 + k - 4, KV1 + k - 4)
                E(f"v_dot2_f32_bf16 v{216+hd}, v{qa}, v{ka}, {'0' if k == 0 else v(216+hd)}")
        E(f"s_mov_b32 s{sA}, {f2u(-1e38)}")
        for hd, q1 in enumerate((QA1, QB1)): E(f"v_cvt_pk_bf16_f32 v{q1+2}, s{sA}, -v{216+hd}")
    def att_defs(self):
        QA0, QB0, QA1, QB1 = self.Q
        d = self
        d.kread = lambda hd, i, dst: f"ds_read_b128 {R(dst,4)}, v{vKR} offset:{i*SLOT + 1024*hd}"
        d.k1read = lambda i: f"ds_read_b64 {R(self.K1+4*i,2)}, v{vKR} offset:{i*SLOT + 4096 + 128}"
        def smf(hd, i, dst, k0, C="0"):
            q0, q1 = (QA0, QA1) if hd == 0 else (QB0, QB1)
            return [f"v_mfma_f32_32x32x16_bf16 {v(dst,16)}, {R(k0,4)}, {v(q0,4)}, {C}",
                    f"v_mfma_f32_32x32x16_bf16 {v(dst,16)}, {R(self.K1+4*i,4)}, {v(q1,4)}, {v(dst,16)}"]
        d.smf = smf
        d.vreads = lambda hd, i, vf: [f"ds_read_b64_tr_b16 {R(vf+2*k,2)}, v{self.VAD[hd]+i} offset:{128*k}" for k in range(4)]
        def expops(src, p):
            r = []
            for k in range(8):
                r += [f"v_exp_f32 v{src+2*k}, v{src+2*k}", f"v_exp_f32 v{src+2*k+1}, v{src+2*k+1}"]
                if k: r.append(f"v_cvt_pk_bf16_f32 v{p+k-1}, v{src+2*k-2}, v{src+2*k-1}")
            r.append(f"v_cvt_pk_bf16_f32 v{p+7}, v{src+14}, v{src+15}")
            return r
        d.expops = expops
        d.mergeops = lambda dg, old: [f"v_cndmask_b32 v{dg+k}, v{old+k}, v{dg+k}, {s(sMASK+2*k,2)}" for k in range(16)]
        d.splitops = lambda p, pm: [f"v_bfi_b32 v{pm+k}, v{self.MK+k}, 0, v{p+k}" for k in range(8)] + [f"v_and_b32 v{p+k}, v{self.MK+k}, v{p+k}" for k in range(8)]
        d.pv = lambda O, vf, p, first: [f"v_mfma_f32_32x32x16_bf16 {v(O,16)}, {R(vf,4)}, {v(p,4)}, {'0' if first else v(O,16)}",
                                        f"v_mfma_f32_32x32x16_bf16 {v(O,16)}, {R(vf+4,4)}, {v(p+4,4)}, {v(O,16)}"]
    def fallback(self, hd):
        E = Emit(); O = self.O[hd]
        S, SD, NEG, P, PM, MX = 48, 64, 214, 230, 238 - 0, 246
        PM = 152 + 8
        K0 = AG + 136; VF = AG + 140; SP = AG + 104
        E.raw(f"FB{hd}:")
        E("s_waitcnt lgkmcnt(0)"); E.settle()
        for k in range(32): E(f"v_accvgpr_write_b32 {R(SP+k)}, v{48+k}")
        E(f"v_mov_b32 v{MX+2}, 0xff7fffff")
        for i in (8, 7, 6, 5, 4, 3, 2, 1, 0):
            E(self.kread(hd, i, K0))
            for x in self.smf(hd, i, SD if i == 8 else S, K0): E(x)
            if i == 8: continue
            src = S
            if i == 0:
                for x in self.mergeops(SD, S): E(x)
                src = SD
            for k in range(8): E(f"v_max3_f32 v{MX+2}, v{src+2*k}, v{src+2*k+1}, v{MX+2}")
        E(f"v_mov_b32 v{MX+3}, v{MX+2}\nv_permlane32_swap_b32 v{MX+3}, v{MX+2}\nv_max_f32 v{MX+2}, v{MX+2}, v{MX+3}")
        for k in range(16): E(f"v_sub_f32 v{NEG+k}, 0, v{MX+2}")
        for k in range(16): E(f"v_add_f32 v{SD+k}, v{NEG}, v{SD+k}")
        for x in self.expops(SD, P) + self.splitops(P, PM): E(x)
        for x in self.vreads(hd, 8, VF) + self.pv(O, VF, P, True): E(x)
        E.settle()
        for x in self.vreads(hd, 0, VF) + self.pv(O, VF, PM, False): E(x)
        for i in range(7, 0, -1):
            E.settle()
            E(self.kread(hd, i, K0))
            for x in self.vreads(hd, i, VF) + self.smf(hd, i, S, K0, v(NEG, 16)) + self.expops(S, P) + self.pv(O, VF, P, False): E(x)
        E.settle()
        for k in range(32): E(f"v_accvgpr_read_b32 v{48+k}, {R(SP+k)}")
        E.drain(); E.settle()
        E(f"s_setpc_b64 {s(sRET,2)}")
        return E.text()
    def p2(self, L):
        E = self.E; o = self.o
        self.att_defs()
        S = [48, 64]; SD = 80; P = [96, 104]; PM = 112; O = self.O = [120, 136]; D = 152; TT = 168
        K0 = [AG + 36, AG + 40, AG + 44]; VF = [AG + 48, AG + 56, AG + 64]
        self.OF = {}
        for st in range(2):
            for i in range(4): self.OF[(st, i)] = AG + 72 + 16 * st + 4 * i
        for st in range(2, 5):
            for i in range(4): self.OF[(st, i)] = AG + 104 + 12 * i + 4 * (st - 2)
        if L == 0: self.tail += [self.fallback(0), self.fallback(1)]
        obase = OB + L * OB_STRIDE
        if o.get("ab", 0): obase = XT + XT_STRIDE * L
        self.obase = obase
        def oload(st, i):
            return (f"s_mul_i32 s{sE_}, s{sW}, {10*KB}\ns_add_u32 s{sE_}, s{sE_}, s{sT16+i}\ns_add_u32 s{sE_}, s{sE_}, {obase + 2048*st}\n"
                    f"buffer_load_dwordx4 {R(self.OF[(st,i)],4)}, v{vU}, {s(WS,4)}, s{sE_} offen sc1")
        def oload2(st, i):
            return f"buffer_load_dwordx4 {R(self.OF[(st,i)],4)}, v{vU}, {s(WS,4)}, s{sE_} offen offset:2048 sc1"
        self.oload, self.oload2 = oload, oload2
        E.wait(vm=self.haltok[0], ds=E.ds_n); E("s_barrier")
        self.stamp(f"L{L} halo in")
        ev = {}; pre = {}
        if L == 0: pre[o.get("f2c", 2)] = [self.S.vpoll_check(241, 242, 4)]
        dm = []
        for c in range(6): dm += self.dma4(sWGU, 16 * KB * c, 64 * KB + 16 * KB * c)
        hb = []
        for t in range(2):
            hb.append(f"s_mul_i32 s{sD}, s{sW}, {2*SLOT}\ns_add_u32 m0, s{sD}, {t*SLOT}\ns_add_u32 s{sE_}, s{sHAL}, {s(sHAL+1) if o.get('ovl', 2) and t else t*5*KB}\nbuffer_load_dwordx4 v{vL16}, {s(WS,4)}, s{sE_} offen offset:3072 sc1 lds")
        lasth = hb[-1]; hb[-1] = lambda: self.haltok.append(E(lasth))
        pb, cb = o.get("pb", 4), o.get("cb", 16)
        nl = len(self.wo_late)
        n1 = min(nl, 7)
        spread(ev, self.wo_late[:n1], 0 if L else o.get("f2c", 2), 2.1 if L else 1.8)
        ev.setdefault(pb, []).append(self.poll_issue(sKC, 8 * L + 4))
        pre.setdefault(cb, []).append(self.poll_check(sKC, 8 * L + 4, f"s{sKT}"))
        spread(ev, hb, cb, 1)
        rest = self.wo_late[n1:] + dm
        spread(ev, rest, cb + 2, (o.get("bgend", 68) - cb - 2) / len(rest))
        spread(ev, [self.touch(sWGU, sH16, 32 * KB * k) for k in range(2, 5)] + [self.touch(sWD, sH8, 0)], 10, 14)
        st = {}
        def check(hd):
            def fn():
                Lo, Lb = E.label("FO"), E.label("FR")
                E(f"v_subrev_u32 v{TT}, {hex(63 << 23)}, v{O[hd]+12}\nv_cmp_le_u32 vcc, {hex(128 << 23)}, v{TT}\ns_cbranch_vccnz {Lo}")
                E.place(Lb)
                self.tail.append(f"{Lo}:\ns_call_b64 {s(sRET,2)}, FB{hd}\ns_branch {Lb}")
            return fn
        def norm(hd):
            r = [check(hd), f"v_rcp_f32 v{TT}, v{O[hd]+12}"]
            r += [f"v_mul_f32 v{O[hd]+k}, v{TT}, v{O[hd]+k}" for k in range(12)]
            r += [f"v_cvt_pk_bf16_f32 v{D+8*hd+k}, v{O[hd]+2*k}, v{O[hd]+2*k+1}" for k in range(6)]
            return r
        def putOA():
            E(f"s_and_b32 s{sA}, s{sJ}, 3\ns_lshl_b32 s{sA}, s{sA}, 10\ns_add_u32 s{sA}, s{sA}, s{sOme}\ns_add_u32 s{sA}, s{sA}, {obase}")
            st["a"] = E(f"buffer_store_dwordx4 {v(D,4)}, v{vL16}, {s(WS,4)}, s{sA} offen sc1")
        slot = [0]
        def weave(mf, mems, valu):
            n = len(mf); mems = list(mems); valu = list(valu)
            for k, m in enumerate(mf):
                self.fine(f"t{L}", slot[0])
                for g in pre.pop(slot[0], []): self.do(g)
                E(m)
                for _ in range(-(-len(mems) // (n - k))): E(mems.pop(0))
                for g in ev.pop(slot[0], []): self.do(g)
                for _ in range(-(-len(valu) // (n - k))): self.do(valu.pop(0))
                slot[0] += 1
        seq = [(hd, i) for hd in range(2) for i in (7, 6, 5, 4, 3, 2, 1, 8, 0)]
        kslot = {x: K0[n % 3] for n, x in enumerate(seq)}
        kq = list(seq)
        def knext():
            if not kq: return []
            hd, i = kq.pop(0)
            return [self.kread(hd, i, kslot[(hd, i)])] + ([self.k1read(i)] if hd == 0 else [])
        for x in knext() + knext() + knext(): E(x)
        for x in self.smf(0, 7, S[0], kslot[(0, 7)]): E(x)
        pend = []; vn = 0
        sa_, pa_ = o.get("osa", 56), o.get("opa", 69)
        ev.setdefault(pa_, []).append(self.poll_issue(sTC, self.T(0, L)))
        ev.setdefault(sa_, []).append(self.signal(sTP, self.T(0, L), lambda: st["a"]))
        for hd in range(2):
            for n in range(8):
                mf = []; mems = []; va = []
                if n < 6:
                    mf += self.smf(hd, 6 - n, S[(n + 1) % 2], kslot[(hd, 6 - n)]); mems += knext()
                    mf += pend
                elif n == 6:
                    mf += self.smf(hd, 8, SD, kslot[(hd, 8)]) + self.smf(hd, 0, S[1], kslot[(hd, 0)]); mems += knext()
                    mf += pend
                else:
                    mf += pend
                    if hd == 0: mf += self.smf(1, 7, S[0], kslot[(1, 7)])
                    mems += knext() + knext()
                    if hd == 0: pre.setdefault(slot[0] + len(mf), []).append(lambda: (E.wait(vm=self.haltok[1]), E("s_barrier")))
                    if hd == 0 and o.get("ovl", 2) and not (L and o.get("ovl", 2) == 2): ev.setdefault(slot[0] + len(mf), []).append(self.signal(sKVme, 16 + 4 * L, lambda: self.haltok[1]))
                if n < 7:
                    vf = VF[vn % 3]; vn += 1
                    vr = self.vreads(hd, 7 - n, vf)
                    mems = mems + vr
                    va += self.expops(S[n % 2], P[n % 2])
                    pend = self.pv(O[hd], vf, P[n % 2], n == 0)
                    if hd == 1 and n == 1: va = norm(0) + [putOA] + va
                else:
                    v8, v0_ = VF[vn % 3], VF[(vn + 1) % 3]; vn += 2
                    mems = mems + self.vreads(hd, 8, v8) + self.vreads(hd, 0, v0_)
                    va += self.mergeops(SD, S[1]) + self.expops(SD, P[1]) + self.splitops(P[1], PM)
                    pend = self.pv(O[hd], v8, P[1], False) + self.pv(O[hd], v0_, PM, False)
                weave(mf, mems, va)
            if hd == 0: self.stamp(f"L{L} att a")
        weave(pend, [], [])
        assert not ev and not pre, (ev, pre, slot)
        for x in norm(1): self.do(x)
        E(f"s_mov_b32 vcc_lo, -1\ns_mov_b32 vcc_hi, 0")
        for k in range(2): E(f"v_cndmask_b32 v{D+4+k}, v{D+12+k}, v{D+4+k}, vcc")
        E(f"s_and_b32 s{sB}, s{sJ}, 3\ns_lshl_b32 s{sA}, s{sB}, 10\ns_add_u32 s{sA}, s{sA}, s{sOme}\ns_add_u32 s{sA}, s{sA}, {obase + 4096}")
        E(f"s_lshl_b32 s{sB}, s{sB}, 9\ns_add_u32 s{sB}, s{sB}, s{sOme}\ns_add_u32 s{sB}, s{sB}, {obase + 8192}")
        E(f"buffer_store_dwordx4 {v(D+8,4)}, v{vL16}, {s(WS,4)}, s{sA} offen sc1")
        self.otok = E(f"buffer_store_dwordx2 {v(D+4,2)}, v{vO4}, {s(WS,4)}, s{sB} offen sc1")
        self.stamp(f"L{L} att done")
    def reduce_and_publish(self, ACC, steps, red, PT, xidx, wimm, final, bg, post, bg0=1, bgstep=5):
        E = self.E
        wr = []; bg = list(bg); rd = []
        sal = []
        if not final:
            sal = [f"s_mul_i32 s{sA}, s{sNB}, {5*KB}\ns_add_u32 s{sA}, s{sA}, s{sT16+3}", f"s_add_u32 s{sA}, s{sA}, {self.xt(xidx)}\ns_add_u32 s{sB}, s{sA}, 4096",
                   f"s_lshl_b32 s{sC}, s{sR}, 3\ns_add_u32 s{sC}, s{sC}, s{sNB}", f"s_lshl_b32 s{sC}, s{sC}, 1\ns_add_u32 s{sC}, s{sC}, s{sTH}",
                   f"s_lshl_b32 s{sC}, s{sC}, 2\ns_add_u32 s{sC}, s{sC}, s{sW}", f"s_lshl_b32 s{sC}, s{sC}, 7\ns_add_u32 s{sC}, s{sC}, {STAT + xidx*128*KB}"]
        AW = [PT + 56 + i for i in range(3)]
        for i in range(3): E(f"v_add_u32 v{AW[i]}, {red}, v{vRW+i}")
        E(f"v_add_u32 v{vT}, {red}, v{vRW+3}")
        order = [(q, nt) for nt in range(5) for q in range(3)]
        for i in range(4):
            mf = []
            for (W, act) in steps:
                for nt in range(5):
                    d = ACC[i] + 4 * nt
                    mf.append(f"v_mfma_f32_16x16x32_bf16 {v(d,4)}, {R(W[nt],4)}, {R(act[i],4)}, {v(d,4)}")
            for k, m in enumerate(mf):
                E(m)
                if k >= 3 and wr: E(wr.pop(0))
                elif i == 3 and k == len(mf) - self.o.get("rbar", 4):
                    E.drain(vm=False); E("s_barrier")
                    rd = [f"ds_read_b128 {v(PT+20*q+4*nt,4)}, v{vT} offset:{1024*(5*q+nt)}" for q, nt in order]
                elif rd: E(rd.pop(0)); E(rd.pop(0))
                elif k % bgstep == 1 and i >= bg0 and bg: self.do(bg.pop(0))
                elif i == 0 and sal: E(sal.pop(0))
            if i < 3: wr = [f"ds_write_b128 v{AW[i]}, {v(ACC[i]+4*nt,4)} offset:{1024*nt}" for nt in range(5)]
        for x in rd: E(x)
        assert not sal
        self.stamp("  mfma done")
        D = ACC[0]
        if final:
            stores = [f"buffer_store_dwordx4 {v(D,4)}, v{vRM}, {s(OUT,4)}, s{sRM} offen {FINAL}", f"buffer_store_dwordx4 {v(D+4,4)}, v{vRM}, {s(OUT,4)}, s{sRM} offen offset:16 {FINAL}",
                      f"buffer_store_dwordx2 {v(D+8,2)}, v{vRM5}, {s(OUT,4)}, s{sRM} offen offset:128 {FINAL}"]
        else:
            stores = [f"buffer_store_dwordx4 {v(D,4)}, v{vXW}, {s(WS,4)}, s{sA} offen sc1", f"buffer_store_dwordx4 {v(D+4,4)}, v{vXW}, {s(WS,4)}, s{sA} offen offset:512 sc1",
                      f"buffer_store_dwordx2 {v(D+8,2)}, v{vXW5}, {s(WS,4)}, s{sB} offen sc1"]
        for nts in ((0, 1), (2, 3), (4,)):
            ks = [4 * nt + e for nt in nts for e in (0, 2)]
            for k in ks: E(f"v_pk_add_f32 {v(PT+k,2)}, {v(PT+k,2)}, {v(PT+20+k,2)}")
            for k in ks: E(f"v_pk_add_f32 {v(vRES+k,2)}, {v(vRES+k,2)}, {v(PT+40+k,2)}")
            for k in ks: E(f"v_pk_add_f32 {v(vRES+k,2)}, {v(vRES+k,2)}, {v(PT+k,2)}")
            for k in ks: E(f"v_cvt_pk_bf16_f32 v{D+k//2}, v{vRES+k}, v{vRES+k+1}")
        for x in stores: data = E(x)
        if final: return
        self.stamp("  stored")
        T = PT
        E(f"v_pk_add_f32 {v(T,2)}, {v(vRES,2)}, {v(vRES+2,2)}\nv_pk_mul_f32 {v(T+2,2)}, {v(vRES,2)}, {v(vRES,2)}")
        E(f"v_pk_fma_f32 {v(T+2,2)}, {v(vRES+2,2)}, {v(vRES+2,2)}, {v(T+2,2)}")
        for k in range(4, 20, 2):
            E(f"v_pk_add_f32 {v(T,2)}, {v(T,2)}, {v(vRES+k,2)}\nv_pk_fma_f32 {v(T+2,2)}, {v(vRES+k,2)}, {v(vRES+k,2)}, {v(T+2,2)}")
        E(f"v_add_f32 v{T}, v{T}, v{T+1}\nv_add_f32 v{T+1}, v{T+2}, v{T+3}")
        for sw in ("v_permlane32_swap_b32", "v_permlane16_swap_b32"):
            E(f"v_mov_b32 v{T+2}, v{T}\nv_mov_b32 v{T+3}, v{T+1}")
            E(f"{sw} v{T+2}, v{T}\n{sw} v{T+3}, v{T+1}")
            E(f"v_add_f32 v{T}, v{T}, v{T+2}\nv_add_f32 v{T+1}, v{T+1}, v{T+3}")
        last = E(f"buffer_store_dwordx2 {v(T,2)}, v{vSW}, {s(WS,4)}, s{sC} offen sc1")
        E("s_barrier")
        n0 = self.o.get("post0", 5); n1 = n0 + self.o.get("post1", 4)
        post = list(bg) + list(post)
        for g in post[:n0]: self.do(g)
        self.signal(sWP, wimm, data if self.o.get("sep", 0) else last, vSR)()
        self.stamp("  signalled")
        for g in post[n0:]: self.do(g)
        self.statsig = self.signal(sWP, wimm + 8, last, vSR)
    def mk_wdload(self):
        self.WDF = {}
        def wdload(f):
            def fn():
                q = self.pool.get(); self.WDF[f] = q
                t = f"s_add_u32 s{sT0+1}, s{sWD}, {1024*f}\n" if f % 4 == 0 else ""
                return self.E(t + f"buffer_load_dwordx4 {R(q,4)}, v{vL16}, {s(WS,4)}, s{sT0+1} offen offset:{1024*(f%4)} sc1")
            return fn
        self.wdq = [wdload(f) for f in range(60)]
    def wd(self, n):
        r = self.wdq[:n]; self.wdq = self.wdq[n:]
        return r
    def p3(self, L):
        E = self.E; o = self.o
        ACC = [48, 68, 88, vRES]
        W = lambda st: [self.WOF[5 * st + nt] for nt in range(5)]
        self.pool = Pool([176 + 4 * i for i in range(17)])
        self.mk_wdload()
        SO = [sH8, sH16, sHX, sD]
        E(f"s_mul_i32 s{sE_}, s{sW}, {10*KB}\ns_add_u32 s{sE_}, s{sE_}, {self.obase}\nv_add_u32 v{vT}, 4096, v{vU}")
        for i in range(4): E(f"s_add_u32 s{SO[i]}, s{sE_}, s{sT16+i}")
        ol = lambda st, i, va, off: f"buffer_load_dwordx4 {R(self.OF[(st,i)],4)}, v{va}, {s(WS,4)}, s{SO[i]} offen offset:{off} sc1"
        self.poll_check(sTC, self.T(0, L), 8)()
        for i in range(4): E(ol(0, i, vU, 0)); E(ol(1, i, vU, 2048))
        self.signal(sTP, 16 + 4 * L, self.otok, vSR)()
        E("s_barrier")
        bgw = self.wd(o.get("wd3", 4)); k = 0
        for i in range(4):
            for st in range(2):
                for nt in range(5):
                    d = ACC[i] + 4 * nt
                    E(f"v_mfma_f32_16x16x32_bf16 {v(d,4)}, {R(W(st)[nt],4)}, {R(self.OF[(st,i)],4)}, {'0' if st == 0 and i < 3 else v(d,4)}")
                    if k % 4 == 0 and bgw: bgw.pop(0)()
                    if k % 4 == 2 and k < 16: E(f"s_add_u32 s{SO[k//4]}, s{SO[k//4]}, 4096")
                    if k == o.get("p3poll", 30): E(self.poll_issue(sTCR, 16 + 4 * L))
                    k += 1
        self.stamp(f"L{L} P3 a-part")
        self.poll_check(sTCR, 16 + 4 * L, 8)()
        self.stamp(f"L{L} P3 synced")
        for i in range(4): E(ol(2, i, vU, 0)); E(ol(3, i, vU, 2048)); E(ol(4, i, vT, 0))
        steps = [(W(st), [self.OF[(st, i)] for i in range(4)]) for st in range(2, 5)]
        self.CSG = 152
        bg = self.wd(o.get("wd3b", 6))
        def freewo(): self.pool.add(self.WOF)
        self.gu_late = []
        self.gu_tok = []
        for c in range(6, 10): self.gu_late += self.dma4(sWGU, 16 * KB * c, 16 * KB * (c - 6), self.gu_tok)
        n = o.get("gu3", 16)
        post = [freewo] + self.gu_late[:n]
        self.gu_late = self.gu_late[n:]
        self.reduce_and_publish(ACC, steps, 0, 108 - 16 + 16, 2 * L + 1, 4 * L, False, bg, post)
        self.stamp(f"L{L} P3 done")
    def p4(self, L):
        E = self.E; o = self.o
        ACC = [[48, 64], [80, 96]]; RING = 112; HP = 136; T = 144
        allw = [1024 * ((64 + f) % 160) for f in range(240)]
        for f in range(6): E(self.wread(RING + 4 * f, allw[f]))
        self.poll_block(sWC, 4 * L, 16)
        self.stamp(f"L{L} P4 synced")
        xl = self.xloads(self.xt(2 * L + 1))
        self.xstart(xl, self.xt(2 * L + 1))
        c1 = -2 * 0.7978845608028654 * math.log2(math.e)
        so = self.stat_ops(T) + [f"v_mul_f32 v{vC1}, {f2u(c1)}, v{vRSTD}", f"v_mul_f32 v{T}, v{vRSTD}, v{vRSTD}", f"v_mul_f32 v{vC2}, {f2u(0.044715)}, v{vC1}",
                                 f"v_mul_f32 v{vC2}, v{T}, v{vC2}"]
        st = self.htok = {}
        def put(p, k):
            if k == 0: return f"s_add_u32 s{sA}, s{sHme}, {HB + L*HB_STRIDE + 2048*p}\nbuffer_store_dwordx4 {v(HP,4)}, v{vL16}, {s(WS,4)}, s{sA} offen sc1"
            return lambda: st.__setitem__(p, E(f"buffer_store_dwordx4 {v(HP+4,4)}, v{vL16}, {s(WS,4)}, s{sA} offen offset:1024 sc1"))
        def epi(p):
            g, u = ACC[p % 2]; r = []
            for k0 in range(0, 16, 4):
                ks = range(k0, k0 + 4)
                r += [f"v_mul_f32 v{T+k%4}, v{g+k}, v{g+k}" for k in ks]
                r += [f"v_fma_f32 v{T+k%4}, v{T+k%4}, v{vC2}, v{vC1}" for k in ks]
                r += [f"v_mul_f32 v{T+k%4}, v{T+k%4}, v{g+k}" for k in ks]
                r += [f"v_exp_f32 v{T+k%4}, v{T+k%4}" for k in ks]
                r += [f"v_mul_f32 v{g+k}, v{g+k}, v{u+k}" for k in ks]
                r += [f"v_fma_f32 v{T+k%4}, v{T+k%4}, v{vIV}, v{vIV}" for k in ks]
                r += [f"v_rcp_f32 v{T+k%4}, v{T+k%4}" for k in ks]
                r += [f"v_mul_f32 v{g+k}, v{g+k}, v{T+k%4}" for k in ks]
                r += [f"v_cvt_pk_bf16_f32 v{HP+k//2}, v{g+k}, v{g+k+1}" for k in ks if k % 2 == 0]
                if k0 in (4, 12): r.append([put(p, k0 // 8)])
            return [(2, x) for x in r]
        def epi_pk(p):
            g, u = ACC[p % 2]; r = []
            for k0 in range(0, 16, 8):
                ks = range(k0, k0 + 8, 2)
                r += [f"v_pk_mul_f32 {v(T+k%8,2)}, {v(g+k,2)}, {v(g+k,2)}" for k in ks]
                r += [f"v_pk_fma_f32 {v(T+k%8,2)}, {v(T+k%8,2)}, {v(vC1,2)}, {v(vC1,2)} op_sel:[0,1,0] op_sel_hi:[1,1,0]" for k in ks]
                r += [f"v_pk_mul_f32 {v(T+k%8,2)}, {v(T+k%8,2)}, {v(g+k,2)}" for k in ks]
                r += [f"v_exp_f32 v{T+k}, v{T+k}" for k in range(8)]
                r += [f"v_pk_mul_f32 {v(g+k,2)}, {v(g+k,2)}, {v(u+k,2)}" for k in ks]
                r += [f"v_pk_fma_f32 {v(T+k%8,2)}, {v(T+k%8,2)}, {v(vIV,2)}, {v(vIV,2)} op_sel_hi:[1,0,0]" for k in ks]
                r += [f"v_rcp_f32 v{T+k}, v{T+k}" for k in range(8)]
                r += [f"v_pk_mul_f32 {v(g+k,2)}, {v(g+k,2)}, {v(T+k%8,2)}" for k in ks]
                r += [f"v_cvt_pk_bf16_f32 v{HP+k//2}, v{g+k}, v{g+k+1}" for k in ks]
                r.append(put(p, k0 // 8))
            return r
        self.HF = {}
        def hload(stp, i):
            p, jj = divmod(stp, 4)
            def fn():
                q = self.pool.get(); self.HF[(stp, i)] = q
                E(f"buffer_load_dwordx4 {R(q,4)}, v{vU}, {s(WS,4)}, s{sE_} offen sc1")
            return (f"s_add_u32 s{sE_}, s{sT16H+i}, {HB + L*HB_STRIDE + 2048*(3*jj+p)}", fn)
        self.hload = hload
        nv = o.get("bud4", 32)
        ev = {}; spread(ev, xl[NX0:], 0, 2)
        if o.get("sep", 0): ev.setdefault(17, []).append(self.poll_issue(sWC, 8 + 4 * L))
        spread(ev, self.stat_loads(2 * L + 1, T), 39, 2)
        csl = self.cs_loads(CSG, 6 * KB, 6, self.CSG)
        spread(ev, csl[:2], 47, 2)
        pre = {38: [self.poll_check(sWC, 8 + 4 * L, 16)]} if o.get("sep", 0) else {}
        if o.get("ovl", 2) and not (L and o.get("ovl", 2) == 2):
            ev.setdefault(51, []).append(f"s_sub_u32 s{sH8}, 15, s{sR}\ns_min_u32 s{sH8}, s{sH8}, 2\n" + self.poll_issue(sKP, 16 + 4 * L))
            pre[76] = [self.poll_check(sKP, 16 + 4 * L, f"s{sH8}")]
        spread(ev, self.gu_late + csl[2:] + self.wd(o.get("wd40", 6)), 61, 2)
        spread(ev, [self.touch(sWGU, sH16, 32 * KB * 5), self.touch(sWD, sH8, 16 * KB), self.touch(sWGU, sH16, 32 * KB * 6)], 45, 15)
        self.wstream(self.pair_items(ACC[0], self.CSG), 0, allw, RING, ev, [(65, x) for x in so], pre, tag=f"p0{L}")
        self.stamp(f"L{L} P4 p0")
        ev = {}; tok = []; fl = []
        for c in range(10, 15): fl += self.dma4(sWGU, 16 * KB * c, 64 * KB + 16 * KB * (c - 10), tok)
        spread(ev, fl, 1, 2.2)
        n1 = o.get("wd41", 16)
        spread(ev, self.wd(n1), 46, 35 / n1)
        spread(ev, [self.touch(sWGU, sH16, 32 * KB * 7), self.touch(sWD, sH8, 32 * KB), self.touch(sWD, sH8, 48 * KB)], 6, 24)
        self.wstream(self.pair_items(ACC[1], self.CSG + 8), 80, allw, RING, ev, epi(0),
                     {0: ["s_barrier"], 10: [lambda: (E.wait(vm=self.gu_tok[3]), E("s_barrier"))], 74: [lambda: (E.wait(vm=tok[4]), E("s_barrier"))]}, budget=nv, tag=f"p1{L}")
        self.stamp(f"L{L} P4 p1")
        ev = {}; pre = {}
        for ks in range(40): ev.setdefault(2 * ks + 1, []).append(lambda ks=ks: self.pool.put(AG + 4 * ks))
        n2 = min(len(self.wdq), o.get("wd42", 20))
        spread(ev, self.wd(n2), 1, 2.2)
        hp, hc = o.get("hp0", 22), o.get("hc0", 44)
        ev.setdefault(o.get("hs0", 2), []).append(self.signal(sTP, self.T(2, L), lambda: st[0]))
        if L == 0: spread(ev, [self.touch(sWQ, sH16, 32 * KB * k) for k in range(2)], 30, 30)
        ev.setdefault(hp, []).append(self.poll_issue(sTC, self.T(2, L)))
        pre.setdefault(hc, []).append(self.poll_check(sTC, self.T(2, L), 8))
        spread(ev, [hload(stp, i) for stp in range(4) for i in range(4)], max(hc + 1, 1 + 2.2 * n2), 2.2)
        ev.setdefault(o.get("hs1", 81), []).append(self.signal(sTP, self.T(3, L), lambda: st[1]))
        self.wstream(self.pair_items(ACC[0], self.CSG + 16), 160, allw, RING, ev, epi(1), pre, budget=nv, tag=f"p2{L}")
        self.stamp(f"L{L} P4 p2")
        ep = epi_pk(2)
        for k, x in enumerate(ep):
            self.do(x)
            if k == o.get("hp1", 70): E(self.poll_issue(sTC, self.T(3, L)))
            elif k % 12 == 6 and k < 40 and self.wdq and self.pool.free: self.wd(1)[0]()
        self.stamp(f"L{L} P4 done")
    def p5(self, L):
        E = self.E; o = self.o
        ACC = [48, 68, 88, vRES]
        E("s_barrier")
        self.pool.add([108 + 4 * i for i in range(7)] + [144 + 4 * i for i in range(8)])
        ev = {}; pre = {}
        hc1 = o.get("hc1", 30)
        pre.setdefault(hc1, []).append(self.poll_check(sTC, self.T(3, L), 8))
        spread(ev, [self.hload(stp, i) for stp in range(4, 8) for i in range(4)] + self.wd(60), hc1, 3.2)
        ev.setdefault(o.get("hs2", 44), []).append(self.signal(sTP, self.T(4, L), self.htok[2]))
        hp, hc = o.get("hp2", 76), o.get("hc2", 112)
        ev.setdefault(hp, []).append(self.poll_issue(sTC, self.T(4, L)))
        pre.setdefault(hc, []).append(self.poll_check(sTC, self.T(4, L), 8))
        spread(ev, [self.hload(stp, i) for i in range(4) for stp in range(8, 12)], hc, 2.9)
        self.wq_tok = []; dm = []
        if L == 0:
            for c in range(10): dm += self.dma4(sWQ, 16 * KB * c, 16 * KB * c, self.wq_tok)
            spread(ev, [self.touch(sWQ, sH16, 32 * KB * k) for k in range(2, 5)], 30, 36)
            spread(ev, dm[:4], 96, 4); dm = dm[4:]
        sl = 0; q = []
        for stp in range(8):
            for i in range(4):
                for nt in range(5):
                    self.fine(f"d{L}", sl)
                    for g in pre.pop(sl, []): self.do(g)
                    d = ACC[i] + 4 * nt
                    E(f"v_mfma_f32_16x16x32_bf16 {v(d,4)}, {R(self.WDF[5*stp+nt],4)}, {R(self.HF[(stp,i)],4)}, {'0' if stp == 0 and i < 3 else v(d,4)}")
                    for g in ev.pop(sl, []): q += self.flat(g)
                    if q and (nt != 4 or len(q) > 3): self.do(q.pop(0))
                    sl += 1
                if self.HF[(stp, i)] >= AG or self.HF[(stp, i)] < 176: self.pool.put(self.HF[(stp, i)])
            for nt in range(5):
                qq = self.WDF[5 * stp + nt]
                if qq >= AG or qq < 176: self.pool.put(qq)
        for k in sorted(ev):
            for g in ev[k]: q.append(g)
        for g in q: self.do(g)
        assert not pre
        self.stamp("  8 steps")
        PT = 176
        live = [self.WDF[f] for f in range(40, 60)] + [self.HF[(stp, i)] for stp in range(8, 12) for i in range(4)]
        assert not [q for q in live if PT <= q < PT + 60], live
        steps = [([self.WDF[5 * stp + nt] for nt in range(5)], [self.HF[(stp, i)] for i in range(4)]) for stp in range(8, 12)]
        bg = dm[:12]; dm = dm[12:]
        n = o.get("wq5", 12)
        post = (self.cs_loads(CSQ, 4 * KB, 4, 136) if L == 0 else []) + dm[:n]
        self.wq_late = dm[n:]
        self.reduce_and_publish(ACC, steps, 100 * KB, PT, 2 * L + 2, 512 + 4 * L, L == 1, bg, post, bg0=0, bgstep=4)
        self.stamp(f"L{L} P5 done")
    def finish(self):
        E = self.E
        E(f"s_or_b32 s{sA}, s{sR}, s{sJ}\ns_or_b32 s{sA}, s{sA}, s{sW}\ns_cmp_eq_u32 s{sA}, 0\ns_cselect_b32 s{sA}, 0, {OOB}")
        E(f"v_add_u32 v48, s{sA}, v{vSIG}\nv_mov_b32 v49, s0\ns_mov_b32 s{sA}, {EPOCH}\nbuffer_store_dword v49, v48, {s(WS,4)}, s{sA} offen sc1")
        if self.o.get("echo"):
            E(f"s_sub_u32 s{sA}, s{sTS+2}, s{sTS}\ns_memrealtime {s(sTS,2)}"); E.wait_smem()
            E.place("ECHO")
            E(f"s_memrealtime {s(sTS+2,2)}"); E.wait_smem()
            E(f"s_sub_u32 s{sB}, s{sTS+2}, s{sTS}\ns_cmp_lt_u32 s{sB}, s{sA}\ns_cbranch_scc1 ECHO")
        if self.stamps:
            E(f"v_readlane_b32 s{sB}, v{vTS2}, 63\ns_lshl_b32 s{sA}, s{sB}, 2\ns_add_u32 s{sA}, s{sA}, s{sW}\ns_lshl_b32 s{sA}, s{sA}, 8\ns_add_u32 s{sA}, s{sA}, {DBG}")
            E(f"v_lshlrev_b32 v{vT}, 2, v0\nbuffer_store_dword v{vTS}, v{vT}, {s(WS,4)}, s{sA} offen")
            E(f"s_add_u32 s{sA}, s{sA}, 0x40000\nbuffer_store_dword v{vTS2}, v{vT}, {s(WS,4)}, s{sA} offen")
        E("s_endpgm")
        for t in self.tail: E.raw(t.rstrip("\n"))
        E.raw("main_end:")
    def build(self):
        E = self.E
        globals()["FINAL"] = ("", "sc1", "nt", "sc0 sc1")[self.o.get("fin", 0)]
        g = globals(); ru = self.o.get("reuse", 7)
        if ru & 1: g["HB_STRIDE"] = 0
        if ru & 2: g["OB_STRIDE"] = 0
        if ru & 8: g["KV_STRIDE"] = 0
        E.raw("; @launch grid=(256,1,1) block=(256,1,1) lds=163840")
        E.raw('.amdgcn_target "amdgcn-amd-amdhsa--gfx950"')
        self.prologue()
        n = 0
        for L in range(2):
            for ph in (self.p1, self.p2, self.p3, self.p4, self.p5):
                if n < self.stop: ph(L)
                n += 1
        self.finish()
        kernel_desc(E, KNAME, 256, 256, 102)
        return E.text()

if __name__ == "__main__":
    out = sys.argv[1]
    opts = dict((k, int(x)) for k, x in (a_.split("=") for a_ in sys.argv[3:]))
    g = Gen(stamps=len(sys.argv) > 2 and sys.argv[2] == "ts", opts=opts, mapping="grp" if opts.get("grp") else "mix")
    t = g.build()
    open(out, "w").write(t)
    print(len(t), "bytes", g.E.ninst, "insts", g.E.nnop, "nop states", g.E.stats)
    if g.stamps: open(out + ".names", "w").write("\n".join(g.stnames))
```

```python
KB = 1024; MB = 1 << 20
FLAGS = 0
GCNT  = 64 * KB
CSQ   = 192 * KB
CSG   = 256 * KB
STAT  = 384 * KB
F1    = 896 * KB
F2    = 928 * KB
EPOCH = 960 * KB
VOTE  = 964 * KB
WQ    = 1 * MB
WGU   = 4 * MB
WO    = 8 * MB
WD    = 9 * MB
XT    = 12 * MB
XT_STRIDE = 3 * MB
KV    = 24 * MB
KV_STRIDE = 5 * MB
OB    = 34 * MB
OB_STRIDE = 3 * MB
HB    = 40 * MB
HB_STRIDE = 6 * MB
DBG   = 58 * MB
WS_BYTES = 268435456

ARENA = 16 * MB
A_H   = 0
ASTR  = 4 * MB + 48 * KB
A_KV1 = 128 * MB
A_B   = 64 * MB
A_X   = [None, A_B, A_B + 320 * KB, A_B]
A_O   = A_B + 640 * KB
A_ST  = A_B + 960 * KB - 16 * KB
A_CNT = A_B + 1008 * KB
A_KVF = A_B + 1024 * KB
WBASE = ARENA + 66 * MB
```

```python
from emit import *
from layout import *

SRC1 = 32; SRC2 = 36; sONE = 40
t = list(range(41, 58))
sRHO, sSIG = 58, 59
sU, sS2 = 60, 61
sTK = 62
LDS1 = 0 * KB
LDS2 = 128 * KB
vTK = 248
vA2 = 232
OOB = 0x10000000

def split_hi_lo(E, x, t0, t1, d):
    E(f"v_cvt_pk_bf16_f32 v{d+1}, v{x}, 0")
    E(f"v_lshlrev_b32 v{t0}, 16, v{d+1}")
    E(f"v_sub_f32 v{t1}, v{x}, v{t0}")
    E(f"v_cvt_pk_bf16_f32 v{d}, v{t0}, v{t1}")

class Startup:
    def __init__(self, G, M):
        self.G = G; self.E = G.E; self.M = M
    def roles(self, pQ, pO, pG, pU, pD):
        E, M = self.E, self.M
        E(f"s_add_u32 s{sRHO}, s{M.sR}, s{M.sJ}\ns_and_b32 s{sRHO}, s{sRHO}, 15\ns_add_u32 s{sSIG}, s{sRHO}, 4\ns_and_b32 s{sSIG}, s{sSIG}, 15")
        E(f"s_mov_b32 s{SRC1}, s{pQ}\ns_mov_b32 s{SRC1+1}, s{pQ+1}\ns_mov_b32 s{SRC1+2}, {640*1920*2}\ns_mov_b32 s{SRC1+3}, 0x00020000")
        E(f"s_cmp_ge_u32 s{sSIG}, 4\ns_cselect_b64 {s(SRC2,2)}, {s(pU,2)}, {s(pG,2)}")
        E(f"s_cmp_ge_u32 s{sSIG}, 8\ns_cselect_b64 {s(SRC2,2)}, {s(pD,2)}, {s(SRC2,2)}")
        E(f"s_cmp_ge_u32 s{sSIG}, 14\ns_cselect_b64 {s(SRC2,2)}, {s(pO,2)}, {s(SRC2,2)}\ns_cselect_b32 s{SRC2+2}, {640*640*2}, 0")
        E(f"s_cselect_b32 s{t[0]}, 0, {640*1536*2}\ns_add_u32 s{SRC2+2}, s{SRC2+2}, s{t[0]}\ns_mov_b32 s{SRC2+3}, 0x00020000\ns_mov_b32 s{sONE}, 0x3f803f80")
    def s1_load(self):
        E, M = self.E, self.M
        E("v_mul_u32_u24 v48, 6554, v0\nv_lshrrev_b32 v48, 16, v48\nv_mul_u32_u24 v49, 10, v48\nv_sub_u32 v49, v0, v49")
        E("v_mul_u32_u24 v48, 3840, v48\nv_lshl_add_u32 v50, v49, 4, v48")
        E(f"s_lshr_b32 s{t[1]}, s{sRHO}, 2\ns_and_b32 s{t[2]}, s{sRHO}, 3\ns_lshl_b32 s{t[2]}, s{t[2]}, 1\ns_add_u32 s{t[2]}, s{t[2]}, s{M.sTH}")
        E(f"s_mul_i32 s{t[3]}, s{t[1]}, 1280\ns_mul_i32 s{t[4]}, s{M.sNB}, 160\ns_add_u32 s{t[3]}, s{t[3]}, s{t[4]}")
        E(f"s_lshl_b32 s{t[4]}, s{t[2]}, 2\ns_add_u32 s{t[4]}, s{t[4]}, s{M.sW}\ns_mul_i32 s{t[4]}, s{t[4]}, {20*3840}\ns_add_u32 s{t[3]}, s{t[3]}, s{t[4]}")
        E(f"s_cmp_ge_u32 s{sRHO}, 12\ns_cselect_b32 s{t[4]}, {OOB}, 0\nv_add_u32 v50, s{t[4]}, v50")
        E(f"s_mul_i32 s{t[4]}, s{M.sW}, 3200\ns_mov_b32 exec_hi, 0x3ffff")
        for i in range(4):
            E(f"s_add_u32 m0, s{t[4]}, {LDS1 + 800*i}")
            if i: E(f"s_add_u32 s{t[3]}, s{t[3]}, {5*3840}")
            self.tok1 = E(f"buffer_load_dwordx4 v50, {s(SRC1,4)}, s{t[3]} offen {'nt' if self.G.o.get('nt1', 1) else ''} lds")
        E("s_mov_b32 exec_hi, -1")
    def x_touch(self):
        E, M = self.E, self.M
        E(f"s_lshl_b32 s{t[4]}, s{M.sR}, 4\ns_add_u32 s{t[4]}, s{t[4]}, s{M.sJ}\ns_lshl_b32 s{t[4]}, s{t[4]}, 2\ns_add_u32 s{t[4]}, s{t[4]}, s{M.sW}\ns_mul_i32 s{t[4]}, s{t[4]}, 2560")
        E(f"v_min_u32 v51, 19, v0\nv_lshlrev_b32 v51, 7, v51\nbuffer_load_dword v246, v51, {s(M.XIN,4)}, s{t[4]} offen")
    def s2_addrs(self):
        E, M = self.E, self.M
        a_, b_, c_, d_, e_ = t[5], t[6], t[7], t[8], t[9]
        E(f"s_mov_b32 s{b_}, 6554\ns_cmp_lt_u32 s{sSIG}, 8\ns_cselect_b32 s{a_}, 24, 10\ns_cselect_b32 s{b_}, 2731, s{b_}\ns_cselect_b32 s{d_}, s{M.sW}, 0")
        E(f"v_mov_b32 v55, {OOB}")
        E(f"s_mov_b32 s{e_}, 1280\ns_cselect_b32 s{c_}, 3072, s{e_}\ns_lshl_b32 s{d_}, s{d_}, 9")
        E(f"s_cmp_ge_u32 s{sSIG}, 14\ns_cselect_b32 s{e_}, 50, 40\ns_lshl_b32 s{e_}, s{e_}, 3\ns_cmp_lt_u32 s{sSIG}, 8\ns_cselect_b32 s{e_}, 1920, s{e_}")
        for i in range(8):
            E(f"v_add_u32 v52, s{d_}, v0\nv_mul_u32_u24 v53, s{b_}, v52\nv_lshrrev_b32 v53, 16, v53\nv_mul_u32_u24 v54, s{a_}, v53\nv_sub_u32 v54, v52, v54")
            E(f"v_mul_u32_u24 v53, s{c_}, v53\nv_lshl_add_u32 v53, v54, 4, v53\nv_cmp_gt_u32 vcc, s{e_}, v52\nv_cndmask_b32 v{vA2+i}, v55, v53, vcc\ns_add_u32 s{d_}, s{d_}, 64")
        E(f"s_and_b32 s{a_}, s{sSIG}, 3\ns_lshl_b32 s{a_}, s{a_}, 1\ns_add_u32 s{a_}, s{a_}, s{M.sTH}\ns_mul_i32 s{a_}, s{a_}, {80*3072}\ns_mul_i32 s{b_}, s{M.sNB}, 384\ns_add_u32 s{a_}, s{a_}, s{b_}")
        E(f"s_cmp_ge_u32 s{sSIG}, 14\ns_cselect_b32 s{b_}, 2, 6\ns_cselect_b32 s{c_}, 14, 8\ns_cselect_b32 s{d_}, 40, 32")
        E(f"s_mul_i32 s{b_}, s{b_}, s{M.sTH}\ns_add_u32 s{b_}, s{b_}, s{sSIG}\ns_sub_u32 s{b_}, s{b_}, s{c_}\ns_lshl_b32 s{b_}, s{b_}, 2\ns_add_u32 s{sU}, s{b_}, s{M.sW}")
        E(f"s_mul_i32 s{b_}, s{sU}, s{d_}\ns_mul_i32 s{b_}, s{b_}, 1280\ns_mul_i32 s{c_}, s{M.sNB}, 160\ns_add_u32 s{b_}, s{b_}, s{c_}")
        E(f"s_cmp_lt_u32 s{sSIG}, 8\ns_cselect_b32 s{sS2}, s{a_}, s{b_}")
    def s2_load(self, i):
        M = self.M
        return f"s_lshl_b32 s{t[0]}, s{M.sLW}, 1\ns_add_u32 m0, s{t[0]}, {LDS2 + 1024*i}\nbuffer_load_dwordx4 v{vA2+i}, {s(SRC2,4)}, s{sS2} offen {'nt' if self.G.o.get('nt2', 1) else ''} lds"
    def s1_proc(self):
        E, M = self.E, self.M
        Lz, Lend = E.label("WZ"), E.label("WQ")
        E(f"s_cmp_ge_u32 s{sRHO}, 12\ns_cbranch_scc1 {Lz}")
        E("v_lshrrev_b32 v48, 4, v0\nv_bfe_u32 v49, v0, 2, 2\nv_lshl_add_u32 v48, v48, 3, v49\nv_mul_u32_u24 v48, 160, v48")
        E(f"v_bfe_u32 v49, v0, 1, 1\nv_mul_u32_u24 v49, 80, v49\nv_add3_u32 v48, v48, v49, {LDS1}\nv_and_b32 v49, 1, v0")
        E(f"v_bfe_u32 v52, v0, 3, 1\nv_mul_u32_u24 v59, {160*KB}, v52\nv_lshlrev_b32 v54, 12, v52\nv_bfe_u32 v52, v0, 4, 1\nv_lshl_add_u32 v59, v52, 9, v59")
        E("v_and_b32 v52, 7, v0\nv_lshl_add_u32 v59, v52, 4, v59\nv_lshl_add_u32 v54, v52, 4, v54\nv_lshrrev_b32 v52, 4, v0\nv_lshl_add_u32 v54, v52, 28, v54")
        E(f"s_cmp_eq_u32 s{t[1]}, 0\ns_cselect_b32 s{t[5]}, 10, 0\ns_cmp_eq_u32 s{t[1]}, 2\ns_cselect_b32 s{t[5]}, 5, s{t[5]}")
        E(f"s_mul_i32 s{t[6]}, s{M.sNB}, {320*KB}\ns_add_u32 s{t[6]}, s{t[6]}, {WQ}")
        E(f"s_lshl_b32 s{t[7]}, s{M.sNB}, 13\ns_mul_i32 s{t[8]}, s{t[2]}, 0x84\ns_and_b32 s{t[8]}, s{t[8]}, 0x20c\ns_add_u32 s{t[7]}, s{t[7]}, s{t[8]}\ns_add_u32 s{t[7]}, s{t[7]}, {CSQ}")
        done0 = E.vm_done
        for rnd in range(2):
            if rnd == 0:
                E(f"s_and_b32 s{t[8]}, s{M.sW}, 1\ns_lshl_b32 s{t[8]}, s{t[8]}, 3\ns_lshr_b32 s{t[9]}, s{M.sW}, 1\ns_lshl_b32 s{t[9]}, s{t[9]}, 5\ns_add_u32 s{t[8]}, s{t[8]}, s{t[9]}")
                E(f"s_cmp_eq_u32 s{M.sW}, 2\ns_cselect_b32 s{t[9]}, 40, 16\ns_add_u32 s{t[10]}, s{t[5]}, s{M.sW}")
            else:
                E(f"s_cmp_lg_u32 s{M.sW}, 3\ns_cbranch_scc1 {Lend}")
                E(f"s_mov_b32 s{t[8]}, 48\ns_mov_b32 s{t[9]}, 16\ns_add_u32 s{t[10]}, s{t[5]}, 4")
            E(f"v_mul_u32_u24 v55, s{t[9]}, v49\nv_add3_u32 v55, v55, v48, s{t[8]}")
            E(f"s_cmp_ge_u32 s{t[10]}, 8\ns_cselect_b32 s{t[14]}, 1, 2\ns_cselect_b32 s{t[15]}, 40, 1\ns_cselect_b32 s{t[11]}, {80*KB}, 0\ns_lshl_b32 s{t[14]}, s{t[14]}, 10")
            E(f"s_mul_i32 s{t[12]}, s{t[2]}, 5\ns_mul_i32 s{t[12]}, s{t[12]}, s{t[14]}\ns_add_u32 s{t[11]}, s{t[11]}, s{t[12]}")
            E(f"v_lshrrev_b32 v53, 5, v0\nv_mad_u32_u24 v51, v53, s{t[14]}, v59\nv_lshl_add_u32 v53, v53, 28, v51\ns_lshl_b32 s{t[14]}, s{t[14]}, 1")
            E(f"s_bfe_u32 s{t[12]}, s{t[10]}, 0x10002\ns_mul_i32 s{t[12]}, s{t[12]}, s{t[15]}\ns_lshl_b32 s{t[12]}, s{t[12]}, 10")
            E(f"s_add_u32 s{t[11]}, s{t[11]}, s{t[12]}\ns_and_b32 s{t[12]}, s{t[10]}, 3\ns_lshl_b32 s{t[12]}, s{t[12]}, 7\ns_add_u32 s{t[11]}, s{t[11]}, s{t[12]}\ns_add_u32 s{t[11]}, s{t[11]}, s{t[6]}")
            E(f"s_lshr_b32 s{t[13]}, s{t[10]}, 2\ns_lshl_b32 s{t[13]}, s{t[13]}, 10\ns_add_u32 s{t[12]}, s{t[12]}, s{t[13]}\ns_add_u32 s{t[12]}, s{t[12]}, s{t[7]}")
            if rnd == 0:
                E.wait(vm=self.tok1); E("s_barrier")
            d0 = 60 + 16 * rnd
            for y in range(3):
                for rd in range(2): E(f"ds_read_b64_tr_b16 {v(d0+4*y+2*rd,2)}, v55 offset:{(32*y+4*rd)*160}")
            for y in range(3):
                E(f"buffer_store_dwordx4 {v(d0+4*y,4)}, v{53 if y == 2 else 51}, {s(M.WS,4)}, s{t[11]} offen sc1", count=False)
                if y < 2: E(f"s_add_u32 s{t[11]}, s{t[11]}, s{t[14]}")
            E("v_mov_b32 v56, 0")
            for y in range(3):
                if y == 2: E("s_mov_b32 exec_hi, 0")
                for e in range(4): E(f"v_dot2c_f32_bf16 v56, s{sONE}, v{d0+4*y+e}")
            E("s_mov_b32 exec_hi, -1")
            for sw in ("v_permlane32_swap_b32", "v_permlane16_swap_b32"):
                E(f"v_mov_b32 v57, v56\n{sw} v57, v56\nv_add_f32 v56, v57, v56")
            split_hi_lo(E, 56, 57, 58, d0 + 12)
            E(f"buffer_store_dword v{d0+12}, v54, {s(M.WS,4)}, s{t[12]} offen sc1", count=False)
        E(f"s_branch {Lend}")
        E.place(Lz); E.hist = []
        E("v_mov_b32 v60, 0\nv_mov_b32 v61, 0\nv_mov_b32 v62, 0\nv_mov_b32 v63, 0")
        E(f"s_lshl_b32 s{t[5]}, s{M.sJ}, 2\ns_and_b32 s{t[6]}, s{sRHO}, 3\ns_add_u32 s{t[5]}, s{t[5]}, s{t[6]}\ns_lshl_b32 s{t[5]}, s{t[5]}, 10\ns_add_u32 s{t[5]}, s{t[5]}, {FLAGS}")
        E((self.G.slot13(t[6], t[7]) if hasattr(self.G, "slot13") else f"s_lshl_b32 s{t[6]}, s{M.sR}, 13") + f"\ns_lshl_b32 s{t[7]}, s{M.sW}, 11\ns_add_u32 s{t[6]}, s{t[6]}, s{t[7]}\ns_add_u32 s{t[6]}, s{t[6]}, {GCNT}")
        E(f"s_cmp_eq_u32 s{M.sW}, 0\ns_cselect_b32 s{t[7]}, 0, {OOB}\nv_add_u32 v51, s{t[7]}, v{M.vL16}")
        E(f"s_cmp_eq_u32 s{sRHO}, 15\ns_cselect_b32 s{t[7]}, 0, {OOB}\nv_add_u32 v52, s{t[7]}, v{M.vL16}")
        E(f"buffer_store_dwordx4 v[60:63], v51, {s(M.WS,4)}, s{t[5]} offen sc1", count=False)
        for k in range(2): E(f"buffer_store_dwordx4 v[60:63], v52, {s(M.WS,4)}, s{t[6]} offen offset:{1024*k} sc1", count=False)
        E.place(Lend); E.hist = []; E.vm_done = done0
        E("s_nop 1")
    def flag(self, code):
        E, M = self.E, self.M
        L = E.label("FG")
        E(f"s_cmp_lg_u32 s{M.sW}, 0\ns_cbranch_scc1 {L}")
        E(code)
        E(f"buffer_store_dwordx2 {v(vTK,2)}, v{M.vSIG}, {s(M.WS,4)}, s{M.sA} offen sc1", count=False)
        E.place(L)
    def flag1(self):
        M = self.M
        self.flag(f"s_lshl_b32 s{M.sA}, s{M.sJ}, 4\ns_add_u32 s{M.sA}, s{M.sA}, s{sRHO}\ns_lshl_b32 s{M.sA}, s{M.sA}, 7\ns_add_u32 s{M.sA}, s{M.sA}, {F1}")
    def flag2(self):
        M = self.M
        self.flag(f"s_lshl_b32 s{M.sA}, s{M.sJ}, 4\ns_add_u32 s{M.sA}, s{M.sA}, s{M.sR}\ns_lshl_b32 s{M.sA}, s{M.sA}, 7\ns_add_u32 s{M.sA}, s{M.sA}, {F2}")
    def vpoll_issue(self, addr, dst):
        return f"buffer_load_dwordx2 {v(dst,2)}, v{addr}, {s(self.M.WS,4)}, 0 offen sc1"
    def vpoll_check(self, addr, dst, slp):
        def fn():
            E, M = self.E, self.M
            Ls, Lb = E.label("VS"), E.label("VB")
            E(f"v_cmp_ne_u64 vcc, {v(dst,2)}, {v(vTK,2)}\ns_cbranch_vccnz {Ls}")
            E.place(Lb)
            self.G.tail.append(f"{Ls}:\ns_mov_b32 s{M.sF}, 0x100000\n{Ls}_l:\ns_sleep {slp}\n{self.vpoll_issue(addr, dst)}\ns_waitcnt vmcnt(0)\n"
                               f"v_cmp_ne_u64 vcc, {v(dst,2)}, {v(vTK,2)}\ns_nop 1\ns_cbranch_vccz {Lb}\ns_sub_u32 s{M.sF}, s{M.sF}, 1\ns_cmp_lg_u32 s{M.sF}, 0\n"
                               f"s_cbranch_scc1 {Ls}_l\ns_branch {Lb}")
        return fn
    def s2_prep(self):
        E, M = self.E, self.M
        Ld, Lo, Le = E.label("S2"), E.label("S2"), E.label("S2")
        AD = 224; B = 176; C = 168; u = [t[0]] + t[10:16]; u = {0: t[0], 1: t[10], 2: t[11], 3: t[12], 4: t[13], 5: t[14], 6: t[15]}
        for i in range(11): E(f"v_mov_b32 v{AD+i}, {OOB}")
        E(f"s_lshl_b32 s{u[0]}, s{M.sLW}, 1\ns_add_u32 s{u[0]}, s{u[0]}, {LDS2}")
        E(f"s_cmp_ge_u32 s{sSIG}, 14\ns_cbranch_scc1 {Lo}\ns_cmp_ge_u32 s{sSIG}, 8\ns_cbranch_scc1 {Ld}")
        E(f"s_cmp_eq_u32 s{M.sW}, 3\ns_cbranch_scc1 {Le}")
        E(f"v_bfe_u32 v{B}, v0, 2, 2\nv_lshrrev_b32 v{B+1}, 5, v0\nv_lshl_add_u32 v{B}, v{B+1}, 3, v{B}\nv_mul_u32_u24 v{B}, 384, v{B}")
        E(f"v_bfe_u32 v{B+1}, v0, 4, 1\nv_lshl_add_u32 v{B}, v{B+1}, 5, v{B}\nv_and_b32 v{B+1}, 1, v0\nv_lshl_add_u32 v{B}, v{B+1}, 4, v{B}")
        E(f"v_bfe_u32 v{B+1}, v0, 1, 1\nv_lshl_add_u32 v{B}, v{B+1}, 3, v{B}\ns_lshl_b32 s{u[1]}, s{M.sW}, 6\ns_add_u32 s{u[1]}, s{u[1]}, {LDS2}\nv_add_u32 v{B}, s{u[1]}, v{B}")
        E(f"v_lshrrev_b32 v{B+1}, 5, v0\nv_mul_u32_u24 v{B+1}, {6*KB - 512}, v{B+1}\nv_add_u32 v{B+1}, v{B+1}, v{M.vL16}")
        E(f"s_mul_i32 s{u[1]}, s{M.sNB}, 6\ns_add_u32 s{u[1]}, s{u[1]}, s{M.sW}\ns_lshr_b32 s{u[2]}, s{sSIG}, 2\ns_lshl_b32 s{u[2]}, s{u[2]}, 10")
        E(f"s_and_b32 s{u[5]}, s{sSIG}, 3\ns_lshl_b32 s{u[5]}, s{u[5]}, 1\ns_add_u32 s{u[5]}, s{u[5]}, s{M.sTH}")
        E(f"s_mul_i32 s{u[3]}, s{u[1]}, {80*KB}\ns_mul_i32 s{u[4]}, s{u[5]}, {10*KB}\ns_add_u32 s{u[3]}, s{u[3]}, s{u[4]}\ns_add_u32 s{u[3]}, s{u[3]}, s{u[2]}\ns_add_u32 s{u[3]}, s{u[3]}, {WGU}")
        E(f"s_lshl_b32 s{u[4]}, s{u[1]}, 11\ns_add_u32 s{u[4]}, s{u[4]}, s{u[2]}\ns_mul_i32 s{u[2]}, s{u[5]}, 0x84\ns_and_b32 s{u[2]}, s{u[2]}, 0x20c\ns_add_u32 s{u[4]}, s{u[4]}, s{u[2]}\ns_add_u32 s{u[4]}, s{u[4]}, {CSG}")
        E(f"v_add_u32 v{AD}, s{u[3]}, v{M.vL16}\nv_add_u32 v{AD+10}, s{u[4]}, v{B+1}")
        for k in range(1, 10): E(f"v_add_u32 v{AD+k}, {240*KB*(k // 5) + 2048*(k % 5)}, v{AD}")
        E(f"s_branch {Le}")
        E.place(Ld); E.hist = []
        E(f"v_bfe_u32 v{B}, v0, 2, 2\nv_lshrrev_b32 v{B+1}, 4, v0\nv_lshl_add_u32 v{B}, v{B+1}, 3, v{B}\nv_mul_u32_u24 v{B}, 160, v{B}")
        E(f"v_add_u32 v{B}, s{u[0]}, v{B}\nv_and_b32 v{B+2}, 3, v0\nv_lshl_add_u32 v{B+1}, v{B+2}, 3, v{B}\nv_lshl_add_u32 v{B}, v{B+2}, 5, v{B}")
        E(f"v_mov_b32 v{C}, s{u[0]}\nv_mov_b32 v{C+1}, s{u[0]}")
        E(f"s_mul_i32 s{u[1]}, s{sU}, 21846\ns_lshr_b32 s{u[1]}, s{u[1]}, 16\ns_mul_i32 s{u[3]}, s{u[1]}, 3\ns_sub_u32 s{u[3]}, s{sU}, s{u[3]}")
        E(f"s_lshl_b32 s{u[3]}, s{u[3]}, 2\ns_and_b32 s{u[4]}, s{u[1]}, 3\ns_add_u32 s{u[3]}, s{u[3]}, s{u[4]}\ns_mul_i32 s{u[3]}, s{u[3]}, {5*KB}")
        E(f"s_lshr_b32 s{u[4]}, s{u[1]}, 2\ns_mul_i32 s{u[4]}, s{u[4]}, {60*KB}\ns_add_u32 s{u[3]}, s{u[3]}, s{u[4]}")
        E(f"s_mul_i32 s{u[4]}, s{M.sNB}, {240*KB}\ns_add_u32 s{u[3]}, s{u[3]}, s{u[4]}\ns_add_u32 s{u[3]}, s{u[3]}, {WD}")
        E(f"v_add_u32 v{AD}, s{u[3]}, v{M.vL16}")
        for nt in range(1, 5): E(f"v_add_u32 v{AD+nt}, {1024*nt}, v{AD}")
        E(f"s_branch {Le}")
        E.place(Lo); E.hist = []
        E(f"v_lshrrev_b32 v{B+2}, 4, v0\nv_and_b32 v{B+3}, 1, v{B+2}\nv_lshrrev_b32 v{B+4}, 5, v0\nv_mul_u32_u24 v{B+5}, 20, v{B+4}\nv_lshl_add_u32 v{B+5}, v{B+3}, 3, v{B+5}")
        E(f"v_bfe_u32 v{B}, v0, 2, 2\nv_add_u32 v{B+5}, v{B+5}, v{B}\nv_mul_u32_u24 v{B+5}, 160, v{B+5}\nv_add_u32 v{B+5}, s{u[0]}, v{B+5}")
        E(f"v_and_b32 v{B+6}, 3, v0\nv_mul_u32_u24 v{B}, 160, v{B}\nv_add_u32 v{B+7}, s{u[0]}, v{B}")
        E(f"v_lshl_add_u32 v{B}, v{B+6}, 5, v{B+5}\nv_lshl_add_u32 v{B+1}, v{B+6}, 3, v{B+5}")
        E(f"v_lshl_add_u32 v{C}, v{B+6}, 5, v{B+7}\nv_lshl_add_u32 v{C}, v{B+2}, 3, v{C}\nv_lshl_add_u32 v{C+1}, v{B+6}, 3, v{B+7}")
        E(f"v_and_b32 v{C+2}, 15, v0\nv_lshlrev_b32 v{C+2}, 4, v{C+2}\nv_mul_u32_u24 v{C+3}, {10*KB}, v{B+4}\nv_lshl_add_u32 v{C+3}, v{B+3}, 8, v{C+3}\nv_add_u32 v{C+3}, v{C+3}, v{C+2}")
        E(f"v_lshl_add_u32 v{C+4}, v{B+2}, 10, v{C+2}\nv_lshl_add_u32 v{C+5}, v{B+2}, 28, v{C+2}")
        E(f"s_lshr_b32 s{u[1]}, s{sU}, 2\ns_mul_i32 s{u[1]}, s{u[1]}, {25*KB}\ns_mul_i32 s{u[3]}, s{M.sNB}, {100*KB}\ns_add_u32 s{u[1]}, s{u[1]}, s{u[3]}\ns_add_u32 s{u[1]}, s{u[1]}, {WO}")
        E(f"s_lshr_b32 s{u[3]}, s{M.sW}, 1\ns_mul_i32 s{u[3]}, s{u[3]}, {5*KB}\ns_and_b32 s{u[4]}, s{M.sW}, 1\ns_lshl_b32 s{u[4]}, s{u[4]}, 9\ns_add_u32 s{u[3]}, s{u[3]}, s{u[4]}")
        E(f"s_add_u32 s{u[3]}, s{u[3]}, s{u[1]}")
        E(f"s_lshl_b32 s{u[5]}, s{M.sW}, 8\ns_add_u32 s{u[5]}, s{u[5]}, s{u[1]}\ns_add_u32 s{u[5]}, s{u[5]}, {20*KB}\ns_add_u32 s{u[6]}, s{u[5]}, 4096")
        E(f"v_add_u32 v{AD}, s{u[3]}, v{C+3}\nv_add_u32 v{AD+5}, s{u[5]}, v{C+4}\nv_add_u32 v{AD+6}, s{u[6]}, v{C+5}")
        for nt in range(1, 5): E(f"v_add_u32 v{AD+nt}, {1024*nt}, v{AD}")
        E.place(Le); E.hist = []
        E("s_nop 1")
    def s2_read(self):
        E, M = self.E, self.M
        Ld, Le = E.label("S2"), E.label("S2")
        AD = 224; B = 176; C = 168
        E.drain(vm=False)
        E(f"s_cmp_ge_u32 s{sSIG}, 8\ns_cbranch_scc1 {Ld}\ns_cmp_eq_u32 s{M.sW}, 3\ns_cbranch_scc1 {Le}")
        for ks in range(10):
            for rd in range(2): E(f"ds_read_b64_tr_b16 {v(B+8+4*ks+2*rd,2)}, v{B} offset:{(16*(ks%5)+4*rd)*384 + 192*(ks//5)}")
        E(f"s_branch {Le}")
        E.place(Ld); E.hist = []; E.pend = {k: x for k, x in E.pend.items() if x[0] != "ds"}
        for nt in range(5):
            for rd in range(2): E(f"ds_read_b64_tr_b16 {v(B+8+4*nt+2*rd,2)}, v{B+1 if nt == 4 else B} offset:{4*rd*160 + (128 if nt == 4 else 8*nt)}")
        for rd in range(2): E(f"ds_read_b64_tr_b16 {v(B+28+2*rd,2)}, v{C} offset:{(16, 36)[rd]*160}")
        for rd in range(2): E(f"ds_read_b64_tr_b16 {v(B+32+2*rd,2)}, v{C+1} offset:{(16, 36)[rd]*160 + 128}")
        E.place(Le); E.hist = []
        E.drain(vm=False)
        cs = [f"v_mov_b32 v{B+2}, 0", f"v_mov_b32 v{B+3}, 0"]
        for k in range(20):
            cs += [f"v_lshlrev_b32 v{B+4}, 16, v{B+8+k}", f"v_lshlrev_b32 v{B+5}, 16, v{B+28+k}", f"v_add_f32 v{B+2}, v{B+2}, v{B+4}", f"v_add_f32 v{B+3}, v{B+3}, v{B+5}",
                   f"v_and_b32 v{B+4}, 0xffff0000, v{B+8+k}", f"v_and_b32 v{B+5}, 0xffff0000, v{B+28+k}", f"v_add_f32 v{B+2}, v{B+2}, v{B+4}", f"v_add_f32 v{B+3}, v{B+3}, v{B+5}"]
        cs += [f"v_permlane32_swap_b32 v{B+2}, v{B+3}", f"v_add_f32 v{B+2}, v{B+3}, v{B+2}",
               f"v_cvt_pk_bf16_f32 v{B+7}, v{B+2}, 0", f"v_lshlrev_b32 v{B+3}, 16, v{B+7}", f"v_sub_f32 v{B+4}, v{B+2}, v{B+3}", f"v_cvt_pk_bf16_f32 v{B+6}, v{B+3}, v{B+4}"]
        r = [f"buffer_store_dwordx4 {v(B+8+4*i,4)}, v{AD+i}, {s(M.WS,4)}, 0 offen sc1" for i in range(10)]
        return cs, r, lambda: setattr(self, "tok3", E(f"buffer_store_dword v{B+6}, v{AD+10}, {s(M.WS,4)}, 0 offen sc1"))
```

```python
import sys, math, struct
from emit import *
from layout import *
from startup5 import Startup, sTK, vTK, sONE, sRHO, OOB
KNAME = "interleave_layers__sliding_block__glu_gated_geglu__prompt_kernel"

def f2u(x): return hex(struct.unpack("<I", struct.pack("<f", x))[0])

WS = 4; OUT = 8; XIN = 12
sR, sJ, sW, sTH, sNB = 16, 17, 18, 19, 20
sWQ, sWGU, sWO, sWD, sLW = 21, 22, 23, 24, 25
sXB, sKVme, sOme, sHme = 26, 27, 28, 29
sT0 = 30
sMASK = 32
sRET = 64
sT16 = 66; sT16H = 70
sA, sB, sC, sD, sE_, sF = 74, 75, 76, 77, 78, 79
sFL = 80
sHAL = 89
sKP, sKC, sKT = 91, 92, 3
sRM = 93
sTS = 94
sTP, sTC, sWP, sWC = 98, 99, 100, 101
sP = 2
vL16, vL16b, vL16c = 1, 2, 3
vU = 4; vPOS = 5; vST = 6; vCS = 7; vSIG = 8; vONE = 9
vRW = 10
vXW = 14; vXW5 = 15; vO4 = 16; vSW = 17; vRSTD = 18; vT = 19
vRES = 20
vNM = 40
vC1, vC2, vIV = 44, 45, 46
vKR = 47
vRM, vRM5, vTS, vTS2 = 250, 251, 252, 253
vP = 255; vDUM = 254; vSR = 255
sTCR = 1
vTL = 7
sPV = 15
sH8, sH16, sHX = 12, 13, 14
SLOT = 5248; ONES = 12 * SLOT; EPS = 1e-5
AG = 256
EARLY = [216 + 4 * i for i in range(7)]
FINAL = ""
NX0 = 10

class Pool:
    def __init__(self, quads=()): self.free = list(quads)
    def get(self): return self.free.pop(0)
    def put(self, q): self.free.append(q)
    def add(self, qs): self.free += list(qs)

def spread(ev, groups, start, step):
    for i, g in enumerate(groups): ev.setdefault(int(start + i * step), []).append(g)

class Gen:
    def __init__(self, stop=99, stamps=False, mapping="mix", opts=None):
        self.E = Emit(); self.stop = stop; self.stamps = stamps; self.mapping = mapping
        self.sites = []; self.nst = 0; self.stnames = []; self.tail = []; self.o = opts or {}
    def do(self, g):
        if isinstance(g, tuple):
            for x in g: r = self.do(x)
            return r
        if callable(g): return g()
        return self.E(g)
    @staticmethod
    def flat(g):
        if isinstance(g, tuple): return list(g)
        if callable(g): return [g]
        l = g.split("\n")
        return [x for x in ("\n".join(l[:-1]), l[-1]) if x]
    def stamp(self, name):
        ec = self.o.get("echo", 0)
        if ec and name == ("", "WQ synced", "L0 halo in", "L0 P4 synced", "L1 P1 synced", "L1 P5 done", "L1 P4 synced", "L1 halo in", "L1 P3 synced", "L1 P4 p2", "L0 P3 synced")[ec]:
            self.E(f"s_memrealtime {s(sTS+2,2)}"); self.E.wait_smem()
        if not self.stamps or self.E.smem_out: return
        if self.o.get("ends") and name not in ("L1 P5 done", "L1 P1 synced", "WQ synced", "L0 P4 synced", "L1 P4 synced", "L0 P3 synced", "L1 P3 synced", "L0 halo in", "L1 halo in"): return
        E = self.E
        E(f"s_memrealtime {s(sTS,2)}\ns_memtime {s(sTS+2,2)}"); E.wait_smem()
        E(f"v_writelane_b32 v{vTS}, s{sTS}, {self.nst}\nv_writelane_b32 v{vTS2}, s{sTS+2}, {self.nst}")
        self.nst += 1; self.stnames.append(name)
    def dma4(self, sbase, goff, ldsoff, rec=None, fl="sc1"):
        g = [f"s_add_u32 m0, s{sLW}, {ldsoff}\ns_add_u32 s{sT0}, s{sbase}, {goff}\nbuffer_load_dwordx4 v{vL16}, {s(WS,4)}, s{sT0} offen {fl} lds"]
        for i in range(1, 4): g.append(f"buffer_load_dwordx4 v{vL16}, {s(WS,4)}, s{sT0} offen offset:{1024*i} {fl} lds")
        h = g[0].split("\n")
        def guarded(x, r):
            def fn():
                assert self.E.lastw["m0"] == h[0] and self.E.lastw[f"s{sT0}"] == h[1], "DMA group interleaved"
                t = self.E(x)
                if r is not None: r.append(t)
            return fn
        return [g[0], guarded(g[1], None), guarded(g[2], None), guarded(g[3], rec)]
    def wread(self, dst, ldsaddr):
        return f"ds_read_b128 {R(dst,4)}, v{vL16+(ldsaddr >> 16)} offset:{ldsaddr & 0xffff}"
    def signal(self, sreg, imm, tok, va=None):
        def fn():
            self.E.wait(vm=tok() if callable(tok) else tok)
            self.E(f"buffer_atomic_add v{vONE}, v{va or vSIG}, {s(WS,4)}, s{sreg} offen offset:{imm} sc1")
        return fn
    def poll_issue(self, sreg, imm):
        if self.o.get("spoll", 1): return f"s_load_dword s{sPV}, {s(WS,2)}, s{sreg} offset:{imm} glc"
        return f"buffer_load_dword v{vP}, v{vSIG}, {s(WS,4)}, s{sreg} offen offset:{imm} sc1"
    def poll_check(self, sreg, imm, thr, slp=None):
        def fn():
            E = self.E
            Ls, Lb = E.label("SP"), E.label("BK")
            sc = self.o.get("spoll", 1)
            assert E.lastw.get(f"s{sPV}") == self.poll_issue(sreg, imm), "poll checked without its load"
            E.lastw[f"s{sPV}"] = None
            if sc: E.wait_smem()
            else: E(f"v_readfirstlane_b32 s{sPV}, v{vP}")
            E(f"s_cmp_ge_u32 s{sPV}, {thr}\ns_cbranch_scc0 {Ls}")
            E.place(Lb)
            sl = self.o.get("slp", 0) if slp is None else slp
            cnt = ""
            if self.stamps and self.o.get("ends"):
                self.sites.append(f"{sreg}/{imm}")
                cnt = f"s_sub_u32 s{sPV}, 0x200001, s{sF}\nv_writelane_b32 v{vTS2}, s{sPV}, {12 + len(self.sites)}\n"
            self.tail.append(f"{Ls}:\ns_mov_b32 s{sF}, 0x200000\n{Ls}_l:\n" + cnt + (f"s_sleep {sl}\n" if sl else "") + self.poll_issue(sreg, imm) +
                             ("\ns_waitcnt lgkmcnt(0)\n" if sc else f"\ns_waitcnt vmcnt(0)\nv_readfirstlane_b32 s{sPV}, v{vP}\ns_nop 0\n") +
                             f"s_cmp_ge_u32 s{sPV}, {thr}\ns_cbranch_scc1 {Lb}\ns_sub_u32 s{sF}, s{sF}, 1\ns_cmp_lg_u32 s{sF}, 0\n"
                             f"s_cbranch_scc1 {Ls}_l\ns_branch {Lb}")
        return fn
    def validate(self, quads, reload, tmp):
        rs = [q + e for q in quads for e in range(4)]
        ops = [f"v_max3_u32 v{tmp}, v{rs[0]}, v{rs[1]}, v{rs[2]}"]
        rest = rs[3:]
        while rest:
            if len(rest) >= 2: ops.append(f"v_max3_u32 v{tmp}, v{rest[0]}, v{rest[1]}, v{tmp}"); rest = rest[2:]
            else: ops.append(f"v_max_u32 v{tmp}, v{rest[0]}, v{tmp}"); rest = []
        ops.append(f"v_cmp_eq_u32 vcc, -1, v{tmp}")
        def br():
            E = self.E
            Ls, Lb = E.label("RT"), E.label("RB")
            E(f"s_cbranch_vccnz {Ls}"); E.place(Lb)
            cnt = ""
            if self.stamps and self.o.get("ends"):
                self.sites.append("val")
                cnt = f"s_sub_u32 s{sTS}, 0x200001, s{sF}\nv_writelane_b32 v{vTS2}, s{sTS}, {12 + len(self.sites)}\n"
            self.tail.append(f"{Ls}:\ns_mov_b32 s{sF}, 0x200000\n{Ls}_l:\n" + cnt + "\n".join(reload) + "\ns_waitcnt vmcnt(0)\n" + "\n".join(ops) +
                             f"\ns_sub_u32 s{sF}, s{sF}, 1\ns_nop 0\ns_cbranch_vccz {Lb}\ns_cmp_lg_u32 s{sF}, 0\ns_cbranch_scc1 {Ls}_l\ns_branch {Lb}")
        g = ["\n".join(ops[k:k + 2]) for k in range(0, len(ops), 2)]
        n0 = len(self.E.out); g0 = g[0]
        def first():
            for q in quads:
                assert any(x.startswith(f"buffer_load_dwordx4 {v(q,4)},") for x in self.E.out[n0:]), q
            self.E(g0)
        return [first] + g[1:] + [br]
    def xpoison(self, idx, reg):
        if not self.o.get("early", 0): return []
        return [f"s_add_u32 s{sP}, s{sT16+3}, {self.xt(idx)}\ns_mul_i32 s{sF}, s{sNB}, {5*KB}\ns_add_u32 s{sP}, s{sP}, s{sF}\nbuffer_store_dwordx4 {v(reg,4)}, v{vXW}, {s(WS,4)}, s{sP} offen sc1",
                f"buffer_store_dwordx4 {v(reg,4)}, v{vXW}, {s(WS,4)}, s{sP} offen offset:512 sc1",
                f"s_add_u32 s{sP}, s{sP}, 4096\nbuffer_store_dwordx2 {v(reg,2)}, v{vXW5}, {s(WS,4)}, s{sP} offen sc1",
                f"s_lshl_b32 s{sP}, s{sR}, 4\ns_add_u32 s{sP}, s{sP}, s{sJ}\ns_lshl_b32 s{sP}, s{sP}, 2\ns_add_u32 s{sP}, s{sP}, s{sW}",
                f"s_lshl_b32 s{sP}, s{sP}, 7\ns_add_u32 s{sP}, s{sP}, {STAT + idx*128*KB}\nbuffer_store_dwordx2 {v(reg,2)}, v{vSW}, {s(WS,4)}, s{sP} offen sc1"]
    def nan_net(self, acc, xl, items, allw, ring, imm, stat):
        xr = self.xr
        def fn():
            E = self.E
            Ls, Lb = E.label("NN"), E.label("NB")
            E(f"v_cmp_{'o' if self.o.get('forcenan') else 'u'}_f32 vcc, v{acc}, v{acc}\ns_cbranch_vccnz {Ls}"); E.place(Lb)
            F = Emit(); F.raw(f"{Ls}:")
            if self.stamps and self.o.get("ends"):
                self.sites.append("nan"); F(f"s_mov_b32 s{sTS}, 1\nv_writelane_b32 v{vTS2}, s{sTS}, {12 + len(self.sites)}")
            F("s_waitcnt vmcnt(0) lgkmcnt(0)"); F.settle()
            F(f"s_mov_b32 s{sF}, 0x200000"); F.raw(f"{Ls}_p:")
            F(self.poll_issue(sWC, imm + 8)); F.wait_smem()
            F(f"s_cmp_ge_u32 s{sPV}, 16\ns_cbranch_scc1 {Ls}_q\ns_sub_u32 s{sF}, s{sF}, 1\ns_cmp_lg_u32 s{sF}, 0\ns_cbranch_scc1 {Ls}_p"); F.raw(f"{Ls}_q:")
            F(f"s_mov_b32 s{sF}, s{sE_}")
            for g in xl: F(g)
            F(f"s_mov_b32 s{sE_}, s{sF}\ns_mov_b32 s{sF}, s{sC}")
            for g in stat: F(g)
            F(f"s_mov_b32 s{sC}, s{sF}")
            f = 0
            for k in range(6): F(self.wread(ring + 4 * k, allw[k]))
            for it in items:
                if it[0] == "cs": F(f"v_mfma_f32_32x32x16_bf16 {v(it[1],16)}, {R(it[2],4)}, {v(vNM,4)}, {v(it[1],16)}")
                else:
                    F(f"v_mfma_f32_32x32x16_bf16 {v(it[0],16)}, {R(ring+4*(f%6),4)}, {a(xr(it[1]),4)}, {'0' if it[2] else v(it[0],16)}")
                    F(self.wread(ring + 4 * (f % 6), allw[f + 6])); f += 1
            F.drain(); F.settle()
            F(f"s_branch {Lb}")
            self.tail.append(F.text())
        return fn
    def poll_block(self, sreg, imm, thr):
        if not self.preissued: self.E(self.poll_issue(sreg, imm))
        self.poll_check(sreg, imm, thr)()
    def T(self, kind, L): return 1024 * kind + 4 * L if kind < 4 else 8 + 4 * L
    def touch(self, sreg, sh, off):
        def fn():
            self.E(f"s_add_u32 s{sP}, s{sreg}, s{sh}\ns_add_u32 s{sP}, s{sP}, {off}\nbuffer_load_dword v{vDUM}, v{vTL}, {s(WS,4)}, s{sP} offen sc1")
            self.E.pend.pop(f"v{vDUM}", None)
        m = self.o.get("touch", 0)
        return fn if (m & (1 if sh == sHX else 2)) else (lambda: None)
    def prologue(self):
        E = self.E
        kernel_header(E, KNAME)
        Lgo = E.label("GO")
        E(f"s_cmp_lt_u32 s2, 256\ns_cbranch_scc1 {Lgo}\ns_endpgm")
        E.place(Lgo)
        if self.stamps: E(f"s_memrealtime {s(sTS,2)}\ns_memtime {s(sTS+2,2)}")
        if self.o.get("echo"): E(f"s_memrealtime {s(sTS,2)}")
        E(f"s_load_dwordx2 {s(WS,2)}, s[0:1], 72\ns_load_dwordx2 {s(OUT,2)}, s[0:1], 56\ns_load_dwordx2 {s(XIN,2)}, s[0:1], 0")
        E("s_load_dwordx4 s[80:83], s[0:1], 8\ns_load_dwordx4 s[84:87], s[0:1], 32\ns_load_dwordx2 s[88:89], s[0:1], 48")
        Lp = E.label("PC")
        E(f"s_getpc_b64 {s(sRET,2)}"); E.place(Lp)
        E(f"s_lshr_b32 s{sA}, s2, 3\nv_lshl_add_u32 v{vT}, v0, 5, s{sA}\nv_lshlrev_b32 v{vT}, 7, v{vT}\nv_min_u32 v{vT}, main_end-{Lp}-4, v{vT}")
        E(f"global_load_dword v247, v{vT}, {s(sRET,2)}")
        E(f"s_mov_b32 s{WS+2}, {WS_BYTES}\ns_mov_b32 s{WS+3}, 0x00020000")
        for b in (OUT, XIN): E(f"s_mov_b32 s{b+2}, {2048*640*2}\ns_mov_b32 s{b+3}, 0x00020000")
        E(f"v_lshrrev_b32 v{vT}, 6, v0\nv_and_b32 v0, 63, v0\nv_readfirstlane_b32 s{sW}, v{vT}")
        E(f"s_and_b32 s{sA}, s2, 7\ns_lshr_b32 s{sB}, s2, 3")
        if self.mapping == "mix":
            E(f"s_lshr_b32 s{sC}, s{sA}, 1\ns_lshl_b32 s{sC}, s{sC}, 2\ns_lshr_b32 s{sR}, s{sB}, 3\ns_add_u32 s{sR}, s{sR}, s{sC}")
            E(f"s_and_b32 s{sC}, s{sA}, 1\ns_lshl_b32 s{sC}, s{sC}, 3\ns_and_b32 s{sJ}, s{sB}, 7\ns_add_u32 s{sJ}, s{sJ}, s{sC}")
        else:
            E(f"s_lshr_b32 s{sR}, s{sB}, 4\ns_lshl_b32 s{sC}, s{sA}, 1\ns_add_u32 s{sR}, s{sR}, s{sC}\ns_and_b32 s{sJ}, s{sB}, 15")
        E(f"s_and_b32 s{sTH}, s{sJ}, 1\ns_lshr_b32 s{sNB}, s{sJ}, 1\ns_lshl_b32 s{sLW}, s{sW}, 12")
        E(f"v_lshlrev_b32 v{vL16}, 4, v0")
        if self.stamps: E(f"v_mov_b32 v{vTS}, 0\nv_mov_b32 v{vTS2}, 0")
        E.wait_smem()
        if self.stamps:
            E(f"v_writelane_b32 v{vTS2}, s2, 63")
            E(f"v_writelane_b32 v{vTS}, s{sTS}, 0\nv_writelane_b32 v{vTS2}, s{sTS+2}, 0")
            self.nst = 1; self.stnames.append("entry")
        wo_ = self.o.get("wsoff", 0) << 20
        if wo_: E(f"s_add_u32 s{WS}, s{WS}, {wo_}\ns_addc_u32 s{WS+1}, s{WS+1}, 0\ns_mov_b32 s{WS+2}, {WS_BYTES - wo_}")
        S = self.S = Startup(self, sys.modules[__name__])
        S.roles(80, 82, 84, 86, 88)
        S.s1_load(); S.x_touch()
        E(f"v_mov_b32 v{vTK+1}, {EPOCH}\nbuffer_load_dword v{vTK}, v{vTK+1}, {s(WS,4)}, 0 offen sc1")
        self.stamp("st S1 issued")
        S.s2_addrs()
        self.s2q = [(lambda i=i: setattr(S, "tok2", E(S.s2_load(i)))) for i in range(8)]
        if self.o.get("s2when", 2) == 0:
            while self.s2q: self.s2q.pop(0)()
        E(f"s_lshl_b32 s{sA}, s{sR}, 2\ns_add_u32 s{sA}, s{sA}, s{sW}\ns_mul_i32 s{sXB}, s{sA}, {40*KB}")
    def masks(self):
        r = []
        for i in range(16):
            m = 0
            for l in range(64):
                if (i & 3) + 8 * (i >> 2) + 4 * (l >> 5) <= (l & 31): m |= 1 << l
            r.append(f"s_mov_b32 s{sMASK+2*i}, {hex(m & 0xffffffff)}\ns_mov_b32 s{sMASK+2*i+1}, {hex(m >> 32)}")
        return r
    def x_bounce(self, T, wdm):
        E = self.E; S = self.S
        XA = 96; XR = 100; TM = 104; PA, PD = 240, 242
        o = self.o; X0 = 64 * KB
        E(f"v_lshrrev_b32 v48, 3, v0\nv_mul_u32_u24 v48, 1280, v48\nv_and_b32 v49, 7, v0\nv_lshrrev_b32 v50, 4, v0\nv_xor_b32 v49, v49, v50\nv_lshl_add_u32 v{XA}, v49, 4, v48")
        E(f"v_xor_b32 v{XA+1}, 64, v{XA}\nv_add_u32 v{XA+2}, {2*9216}, v{XA}\nv_add_u32 v{XA+3}, {3*9216}, v{XA+1}\nv_add_u32 v{XA+1}, 9216, v{XA+1}")
        tok = []
        def dma(ch):
            E(f"s_add_u32 m0, s{sLW}, {X0 + 16*KB*(ch%4)}\ns_add_u32 s{sE_}, s{sXB}, {128*ch}")
            for i in range(4): t = E(f"buffer_load_dwordx4 v{XA+i}, {s(XIN,4)}, s{sE_} offen offset:{1024*i} lds")
            tok.append(t)
        E(f"s_mul_i32 s{sWQ}, s{sJ}, {160*KB}\ns_add_u32 s{sWQ}, s{sWQ}, s{sLW}\ns_add_u32 s{sWQ}, s{sWQ}, {WQ}")
        E(f"v_min_u32 v{vSIG}, 1, v0\nv_lshlrev_b32 v{vSIG}, 28, v{vSIG}\nv_mov_b32 v{vONE}, 1")
        E(f"v_and_b32 v48, 31, v0\nv_lshrrev_b32 v49, 5, v0\nv_bfe_u32 v50, v0, 1, 3\nv_xor_b32 v49, v49, v50\nv_lshlrev_b32 v49, 4, v49\nv_lshl_add_u32 v48, v48, 7, v49")
        E(f"s_add_u32 s{sA}, s{sLW}, {X0}\nv_add_u32 v{XR}, s{sA}, v48")
        for k in range(1, 4): E(f"v_xor_b32 v{XR+k}, {32*k}, v{XR}")
        E(f"v_mov_b32 v{T}, 0\nv_mov_b32 v{T+1}, 0")
        E(f"s_lshl_b32 s{sA}, s{sNB}, 12\ns_add_u32 s{sA}, s{sA}, {F1}\ns_sub_u32 s{sB}, 15, s{sR}\ns_lshl_b32 s{sB}, s{sB}, 11\ns_add_u32 s{sB}, s{sB}, {F1 + 15*128}")
        E(f"v_lshl_add_u32 v48, v0, 7, s{sA}\nv_mov_b32 v49, s{sB}\nv_cmp_gt_u32 vcc, 32, v0\nv_cndmask_b32 v{PA}, v49, v48, vcc")
        E(f"s_lshl_b32 s{sA}, s{sNB}, 12\ns_add_u32 s{sA}, s{sA}, {F2}\nv_and_b32 v48, 31, v0\nv_lshl_add_u32 v{PA+1}, v48, 7, s{sA}")
        prep = S.s2_prep if not o.get("s2when", 2) else (lambda: None)
        if o.get("cfirst", 1): self.prologue2(); prep()
        S.s1_proc()
        self.stamp("st S1 stored")
        for ch in range(0, 2): dma(ch)
        if not o.get("cfirst", 1): self.prologue2(); prep()
        E(f"s_mov_b32 s{sA}, 0x9e3779b1\nv_mul_lo_u32 v{vTK}, v{vTK}, s{sA}\nv_add_u32 v{vTK}, 0x7f4a7c15, v{vTK}\nv_xor_b32 v{vTK+1}, 0x5bd1e995, v{vTK}")
        E(f"v_readfirstlane_b32 s0, v{vTK}")
        dma(2)
        E.wait(vm=tok[0] - 3); E("s_barrier"); S.flag1(); self.stamp("st F1")
        dma(3)
        self.s2r = None
        nx = o.get("s2x", 10) if not o.get("s2when", 2) else 0
        if nx: self.s2r = S.s2_read()
        pi, pc = o.get("f1poll", 5), o.get("f1chk", 8)
        def dots(ch):
            tm = TM + 16 * (ch & 1)
            for e in range(16): E(f"v_dot2c_f32_bf16 v{T}, s{sONE}, v{tm+e}\nv_dot2c_f32_bf16 v{T+1}, v{tm+e}, v{tm+e}")
        for ch in range(10):
            E.wait(vm=tok[ch])
            for k in range(4): E(f"ds_read_b128 {v(TM+16*(ch&1)+4*k,4)}, v{XR+k} offset:{16*KB*(ch%4)}")
            for k in range(4): E(f"ds_read_b128 {a(16*ch+4*k,4)}, v{XR+k} offset:{16*KB*(ch%4)}")
            if ch == pi:
                E(f"s_cmp_eq_u32 s{sW}, 0\ns_cselect_b32 s{sA}, 0, {OOB}\nv_add_u32 v{PA}, s{sA}, v{PA}")
                E(S.vpoll_issue(PA, PD))
            if ch: dots(ch - 1)
            E.drain(vm=False)
            if ch + 4 < 10: dma(ch + 4)
            if ch == o.get("s2ch", 0):
                while self.s2q: self.s2q.pop(0)()
                if o.get("s2when", 2): S.s2_prep()
            for _ in range(o.get("s2n", 2)):
                if ch < nx and ch >= o.get("s2f", 5) and self.s2r[1]: E(self.s2r[1].pop(0))
            if ch == pc:
                Lw = E.label("PW")
                E.need(regs(v(PD, 2)))
                E(f"s_cmp_lg_u32 s{sW}, 0\ns_cbranch_scc1 {Lw}")
                S.vpoll_check(PA, PD, 4)()
                E.place(Lw)
                E("s_barrier")
                self.stamp("WQ synced")
            if ch >= pc and wdm:
                for _ in range(o.get("wfirst", 1)):
                    for g in wdm.pop(0): self.do(g)
        dots(9)
        self.stamp("st x done")
    def sharers(self):
        return [f"s_and_b32 s{sA}, s{sR}, 3\ns_lshl_b32 s{sH8}, s{sA}, 1\ns_add_u32 s{sH8}, s{sH8}, s{sTH}\ns_lshl_b32 s{sH8}, s{sH8}, 11",
                f"s_and_b32 s{sA}, s{sR}, 3\ns_lshl_b32 s{sH16}, s{sA}, 2\ns_add_u32 s{sH16}, s{sH16}, s{sW}\ns_lshl_b32 s{sH16}, s{sH16}, 11\ns_sub_u32 s{sH16}, s{sH16}, s{sLW}",
                f"s_and_b32 s{sHX}, s{sJ}, 7\ns_lshl_b32 s{sHX}, s{sHX}, 11"]
    def prologue2(self):
        E = self.E; NREP = self.o.get("nrep", 4)
        E(f"s_mul_i32 s{sWGU}, s{sJ}, {240*KB}\ns_add_u32 s{sWGU}, s{sWGU}, s{sLW}\ns_add_u32 s{sWGU}, s{sWGU}, {WGU}")
        E(f"s_mul_i32 s{sWO}, s{sNB}, {100*KB}\ns_mul_i32 s{sA}, s{sW}, {25*KB}\ns_add_u32 s{sWO}, s{sWO}, s{sA}\ns_add_u32 s{sWO}, s{sWO}, {WO}")
        E(f"s_mul_i32 s{sWD}, s{sNB}, {240*KB}\ns_mul_i32 s{sA}, s{sW}, {60*KB}\ns_add_u32 s{sWD}, s{sWD}, s{sA}\ns_add_u32 s{sWD}, s{sWD}, {WD}")
        E(f"s_lshl_b32 s{sA}, s{sR}, 2\ns_add_u32 s{sA}, s{sA}, s{sW}")
        E(f"s_lshl_b32 s{sB}, s{sJ}, 6\ns_add_u32 s{sC}, s{sB}, s{sA}\ns_mul_i32 s{sKVme}, s{sC}, {5*KB}")
        E(f"s_lshr_b32 s{sKP}, s{sC}, 1\ns_lshl_b32 s{sKP}, s{sKP}, 7\ns_add_u32 s{sKP}, s{sKP}, {FLAGS}")
        E(f"s_mul_i32 s{sHme}, s{sA}, {96*KB}\ns_mul_i32 s{sC}, s{sJ}, {6*KB}\ns_add_u32 s{sHme}, s{sHme}, s{sC}")
        E(f"s_lshr_b32 s{sC}, s{sJ}, 2\ns_mul_i32 s{sOme}, s{sC}, {10*KB}\ns_add_u32 s{sOme}, s{sOme}, s{sXB}")
        for i in range(9):
            E(f"s_cmp_lt_u32 s{sA}, {8-i}\ns_cselect_b32 s{sFL+i}, 0x3f803f80, 0x3f800000" if False else
              f"s_cmp_lt_u32 s{sA}, {8-i}\ns_cselect_b32 s{sFL+i}, 0x3f80, 0\ns_or_b32 s{sFL+i}, s{sFL+i}, 1.0")
        E(f"s_lshl_b32 s{sC}, s{sR}, 2\ns_lshl_b32 s{sD}, s{sW}, 1\ns_add_u32 s{sC}, s{sC}, s{sD}")
        ovl = self.o.get("ovl", 3)
        if ovl:
            E(f"s_sub_u32 s{sD}, s{sC}, 8\ns_mul_i32 s{sHAL}, s{sD}, {96*KB}\ns_mul_i32 s{sD}, s{sJ}, {6*KB}\ns_add_u32 s{sHAL}, s{sHAL}, s{sD}\ns_add_u32 s{sHAL}, s{sHAL}, {HB + (6*MB if ovl == 3 else 0)}")
            E(f"s_add_u32 s{sD}, s{sC}, s{sB}\ns_sub_u32 s{sD}, s{sD}, 8\ns_add_u32 s{sKVme}, s{sKP}, 32\ns_mov_b32 s{sHAL+1}, {96*KB}")
        else:
            E(f"s_add_u32 s{sD}, s{sC}, s{sB}\ns_sub_u32 s{sD}, s{sD}, 8\ns_mul_i32 s{sHAL}, s{sD}, {5*KB}\ns_add_u32 s{sHAL}, s{sHAL}, {KV}")
        E(f"s_lshl_b32 s{sKC}, s{sD}, 6\ns_add_u32 s{sKC}, s{sKC}, {FLAGS}")
        E(f"s_cmp_lt_u32 s{sC}, 8\ns_cselect_b32 s{sHAL}, s{sWQ}, s{sHAL}")
        E(f"s_cselect_b32 s{sHAL+1}, {5*KB}, s{sHAL+1}\ns_cselect_b32 s{sKVme}, s{sKVme}, s{sKC}" if ovl else f"s_cselect_b32 s{sHAL+1}, 0, {KV_STRIDE}")
        E(f"s_cselect_b32 s{sKC}, s{sKP}, s{sKC}\ns_cselect_b32 s{sKT}, 0, 2")
        E(self.slot13(sA, sB) + f"\ns_add_u32 s{sA}, s{sA}, {GCNT}")
        E(f"s_lshr_b32 s{sB}, s{sW}, 1\ns_lshl_b32 s{sC}, s{sB}, 2\ns_lshr_b32 s{sD}, s{sJ}, 2\ns_add_u32 s{sC}, s{sC}, s{sD}\ns_lshl_b32 s{sC}, s{sC}, 7\ns_add_u32 s{sTP}, s{sA}, s{sC}")
        E(f"s_lshl_b32 s{sC}, s{sTH}, 2\ns_add_u32 s{sC}, s{sC}, s{sW}\ns_lshl_b32 s{sC}, s{sC}, 7\ns_add_u32 s{sTC}, s{sA}, s{sC}")
        E(f"s_and_b32 s{sC}, s{sNB}, {NREP-1}\ns_lshl_b32 s{sC}, s{sC}, 10\ns_add_u32 s{sTCR}, s{sTC}, s{sC}")
        E(f"s_add_u32 s{sA}, s{sA}, {32*128}\ns_lshl_b32 s{sC}, s{sTH}, 1\ns_add_u32 s{sC}, s{sC}, s{sB}\ns_lshl_b32 s{sC}, s{sC}, 7\ns_add_u32 s{sWP}, s{sA}, s{sC}")
        E(f"s_lshl_b32 s{sC}, s{sW}, 7\ns_add_u32 s{sWC}, s{sA}, s{sC}\ns_and_b32 s{sC}, s{sNB}, {NREP-1}\ns_lshl_b32 s{sC}, s{sC}, 10\ns_add_u32 s{sWC}, s{sWC}, s{sC}")
        E(f"v_lshlrev_b32 v{vSR}, 10, v0\nv_mov_b32 v48, {OOB}\nv_cmp_gt_u32 vcc, {NREP}, v0\nv_cndmask_b32 v{vSR}, v48, v{vSR}, vcc")
        for i in range(4):
            E(f"s_add_u32 s{sA}, s{sW}, {1+i}\ns_and_b32 s{sA}, s{sA}, 3\ns_lshr_b32 s{sB}, s{sA}, 1\ns_and_b32 s{sC}, s{sA}, 1\ns_lshl_b32 s{sC}, s{sC}, 8")
            E(f"s_lshl_b32 s{sD}, s{sR}, 1\ns_add_u32 s{sD}, s{sD}, s{sTH}\ns_lshl_b32 s{sD}, s{sD}, 1\ns_add_u32 s{sB}, s{sB}, s{sD}")
            E(f"s_mul_i32 s{sT16+i}, s{sB}, {40*KB}\ns_add_u32 s{sT16+i}, s{sT16+i}, s{sC}")
            E(f"s_mul_i32 s{sT16H+i}, s{sB}, {96*KB}\ns_add_u32 s{sT16H+i}, s{sT16H+i}, s{sC}")
            E(f"s_mul_i32 s{sB}, s{sW}, {24*KB}\ns_add_u32 s{sT16H+i}, s{sT16H+i}, s{sB}")
            if i < 3:
                E(f"s_mul_i32 s{sA}, s{sA}, {15*KB}\ns_add_u32 s{sA}, s{sA}, {5*KB*i}\nv_add_u32 v{vRW+i}, s{sA}, v{vL16}")
        E(f"s_mul_i32 s{sA}, s{sW}, {15*KB}\nv_add_u32 v{vRW+3}, s{sA}, v{vL16}")
        t0, t1, t2 = 48, 49, 50
        E(f"v_add_u32 v{vL16b}, 0x10000, v{vL16}\nv_add_u32 v{vL16c}, 0x20000, v{vL16}")
        E(f"v_lshrrev_b32 v{t0}, 4, v0\nv_and_b32 v{t1}, 15, v0")
        E(f"v_lshlrev_b32 v{t2}, 9, v{t0}\nv_lshl_add_u32 v{vU}, v{t1}, 4, v{t2}")
        E(f"v_lshlrev_b32 v{t2}, 10, v{t0}\nv_lshl_add_u32 v{vXW}, v{t1}, 4, v{t2}")
        E(f"v_lshrrev_b32 v{t2}, 1, v{t0}\nv_lshlrev_b32 v{t2}, 9, v{t2}\nv_lshl_add_u32 v{vXW5}, v{t1}, 4, v{t2}")
        E(f"v_and_b32 v{t2}, 1, v{t0}\nv_lshl_add_u32 v{vXW5}, v{t2}, 3, v{vXW5}")
        E(f"v_lshlrev_b32 v{vTL}, 7, v{t1}\nv_lshl_add_u32 v{vTL}, v{t0}, 28, v{vTL}")
        E(f"v_lshlrev_b32 v{vSW}, 3, v{t1}\nv_lshl_add_u32 v{vSW}, v{t0}, 28, v{vSW}")
        E(f"v_mul_u32_u24 v{t2}, 1280, v{t1}\nv_lshl_add_u32 v{vRM}, v{t0}, 5, v{t2}\nv_lshl_add_u32 v{vRM5}, v{t0}, 3, v{t2}")
        E(f"s_lshl_b32 s{sA}, s{sR}, 1\ns_add_u32 s{sA}, s{sA}, s{sTH}\ns_lshl_b32 s{sA}, s{sA}, 2\ns_add_u32 s{sA}, s{sA}, s{sW}")
        E(f"s_mul_i32 s{sA}, s{sA}, {16*1280}\ns_mul_i32 s{sB}, s{sNB}, 160\ns_add_u32 s{sRM}, s{sA}, s{sB}")
        E(f"v_lshrrev_b32 v{t0}, 5, v0\nv_and_b32 v{t1}, 31, v0")
        E(f"v_lshlrev_b32 v{t2}, 2, v{t0}\nv_xor_b32 v{t2}, v{t2}, v{t1}\nv_lshlrev_b32 v{t2}, 4, v{t2}\nv_lshl_add_u32 v{vPOS}, v{t0}, 9, v{t2}")
        E(f"v_lshlrev_b32 v{t2}, 3, v{t1}")
        E(f"s_lshl_b32 s{sA}, s{sW}, 8\nv_lshl_add_u32 v{vST}, v{t0}, 12, v{t2}\nv_add_u32 v{vST}, s{sA}, v{vST}")
        E(f"v_lshlrev_b32 v{t2}, 4, v{t1}\nv_lshl_add_u32 v{vO4}, v{t0}, 3, v{t2}")
        E(f"s_mul_i32 s{sA}, s{sW}, {SLOT}\nv_add_u32 v{vKR}, s{sA}, v{vPOS}")
    def slot13(self, d, t):
        n = self.o.get("numa", -1)
        if n < 0: return f"s_lshl_b32 s{d}, s{sR}, 13"
        return f"s_lshr_b32 s{t}, s{sR}, 3\ns_xor_b32 s{t}, s{t}, {n}\ns_and_b32 s{d}, s{sR}, 7\ns_lshl_b32 s{d}, s{d}, 1\ns_add_u32 s{d}, s{d}, s{t}\ns_lshl_b32 s{d}, s{d}, 13"
    def load_residual(self, t):
        ld = [f"buffer_load_dwordx4 {v(t,4)}, v{vRM}, {s(XIN,4)}, s{sRM} offen", f"buffer_load_dwordx4 {v(t+4,4)}, v{vRM}, {s(XIN,4)}, s{sRM} offen offset:16",
              f"buffer_load_dwordx2 {v(t+8,2)}, v{vRM5}, {s(XIN,4)}, s{sRM} offen offset:128"]
        return ld, sum([[f"v_lshlrev_b32 v{vRES+2*i}, 16, v{t+i}", f"v_and_b32 v{vRES+2*i+1}, 0xffff0000, v{t+i}"] for i in range(10)], [])
    def stat_loads(self, idx, t):
        return [(f"s_and_b32 s{sC}, s{sTC}, 0xffffe000\ns_add_u32 s{sC}, s{sC}, {STAT - GCNT + idx*128*KB}\n" if q == 0 else "") +
                f"buffer_load_dwordx2 {v(t+2*q,2)}, v{vST}, {s(WS,4)}, s{sC} offen offset:{1024*q} sc1" for q in range(4)]
    def stat_ops(self, t):
        return [f"v_add_f32 v{t}, v{t}, v{t+2}", f"v_add_f32 v{t+1}, v{t+1}, v{t+3}", f"v_add_f32 v{t+4}, v{t+4}, v{t+6}", f"v_add_f32 v{t+5}, v{t+5}, v{t+7}",
              f"v_add_f32 v{t}, v{t}, v{t+4}", f"v_add_f32 v{t+1}, v{t+1}, v{t+5}", f"v_mov_b32 v{t+2}, v{t}", f"v_mov_b32 v{t+3}, v{t+1}",
              f"v_permlane32_swap_b32 v{t+2}, v{t}", f"v_permlane32_swap_b32 v{t+3}, v{t+1}",
              f"v_add_f32 v{t}, v{t}, v{t+2}", f"v_add_f32 v{t+1}, v{t+1}, v{t+3}",
              f"v_fma_f32 v{t}, v{t+1}, 0, v{t}",
              f"v_mul_f32 v{t}, {f2u(-1/640)}, v{t}", f"v_mul_f32 v{t+1}, {f2u(1/640)}, v{t+1}",
              f"v_fma_f32 v{t+1}, -v{t}, v{t}, v{t+1}", f"v_cvt_pk_bf16_f32 v{vNM}, v{t}, v{t}", f"v_max_f32 v{t+1}, 0, v{t+1}",
              f"v_mov_b32 v{vNM+1}, v{vNM}", f"v_add_f32 v{vIV}, {f2u(EPS)}, v{t+1}", f"v_mov_b32 v{vNM+2}, v{vNM}",
              f"v_rsq_f32 v{vRSTD}, v{vIV}", f"v_mov_b32 v{vNM+3}, v{vNM}"]
    def cs_loads(self, base, stride, ntile, dst):
        g = []
        for t in range(ntile):
            p = ""
            if t == 0: p = f"s_mul_i32 s{sD}, s{sJ}, {stride}\ns_add_u32 s{sD}, s{sD}, {base}\n"
            if t == 4: p = f"s_add_u32 s{sD}, s{sD}, 4096\n"
            g.append(p + f"buffer_load_dwordx4 {R(dst+4*t,4)}, v{vL16}, {s(WS,4)}, s{sD} offen offset:{1024*(t%4)} sc1")
        return g
    def xloads(self, base):
        g = []
        for ks in range(40):
            t = f"s_add_u32 s{sE_}, s{sXB}, {base + 1024*ks}\n" if ks % 4 == 0 else ""
            g.append(t + f"buffer_load_dwordx4 {a(self.xr(ks),4)}, v{vL16}, {s(WS,4)}, s{sE_} offen offset:{1024*(ks%4)} sc1")
        return g
    def xstart(self, xl, base):
        n = self.o.get("xt", 2)
        for g in xl[:n]: self.E(g)
        for k in range(2): self.touch(sXB, sHX, base + 8 * KB + 16 * KB * k)()
        for g in xl[n:NX0]: self.E(g)
    def xt(self, i):
        if self.o.get("ab", 0): return XT + XT_STRIDE * {0: 0, 1: 1, 2: 0, 3: 0 if self.o["ab"] == 1 else 2}[i]
        return XT + XT_STRIDE * (1 if i == 3 and self.o.get("reuse", 7) & 4 else i)
    def fine(self, tag, sl):
        st = self.o.get("fine_" + tag, 0)
        if st and sl and sl % st == 0: self.stamp(f"{tag}@{sl}")
    def wstream(self, items, pos0, allw, ring, ev=None, valu=None, pre=None, budget=32, tag=""):
        E = self.E; LA = 6
        ev = ev or {}; valu = list(valu or []); pre = pre or {}
        f = pos0; over = 0; defer = []
        for sl, it in enumerate(items):
            self.fine(tag, sl)
            for g in pre.get(sl, []): self.do(g)
            if it[0] == "cs":
                assert not any(isinstance(x, str) and f"v{vNM+3}," in x for _, x in valu), "stats not ready"
                E(f"v_mfma_f32_32x32x16_bf16 {v(it[1],16)}, {R(it[2],4)}, {v(vNM,4)}, {v(it[1],16)}")
                c0 = E.cost - 8
            else:
                acc, ks, first = it
                if f % 2 == 0: E.need(regs(R(ring + 4 * (f % LA), 4)) | regs(R(ring + 4 * ((f + 1) % LA), 4)) | regs(a(self.xr(ks), 4)))
                E(f"v_mfma_f32_32x32x16_bf16 {v(acc,16)}, {R(ring+4*(f%LA),4)}, {a(self.xr(ks),4)}, {'0' if first else v(acc,16)}")
                c0 = E.cost - 8
                if f + LA < len(allw): E(self.wread(ring + 4 * (f % LA), allw[f + LA]))
                f += 1
            for g in ev.get(sl, []): self.do(g)
            if defer and self.o.get("verbose"): print("   ", tag, "deferred op at slot", sl)
            if defer: self.do(defer.pop(0))
            lim = budget - (4 if f % 2 == 0 else 0)
            while valu and valu[0][0] <= sl:
                x = valu[0][1]
                if isinstance(x, list): defer += x; valu.pop(0); continue
                c = sum(8 if y.startswith(TRANS) else 4 for y in x.split("\n"))
                if E.cost - c0 + c > lim and not (c > 16 and E.cost - c0 <= 12): break
                valu.pop(0); E(x)
            over += max(0, E.cost - c0 - lim)
        if self.o.get("verbose"): print(tag, "over budget", over, "left valu", len(valu))
        valu += [(0, defer)]
        assert max(list(ev) + list(pre) + [0]) < len(items), (max(list(ev) + list(pre)), len(items))
        for _, x in valu:
            for y in (x if isinstance(x, list) else [x]): self.do(y)
    @staticmethod
    def pair_items(acc, cs):
        return [(acc[sl & 1], sl >> 1, sl < 2) for sl in range(80)] + [("cs", acc[0], cs), ("cs", acc[1], cs + 4)]
    def p1(self, L):
        E = self.E; o = self.o
        ACC = [48, 64, 80, 96]; RING = 112; CS = 136
        KA, KB_, KV1, VA, VB = 152, 156, 160, 164, 168
        QA0, QB0, QA1, QB1 = 172, 176, 180, 184
        self.Q = (QA0, QB0, QA1, QB1)
        MK = self.MK = 188; VAD = self.VAD = [196, 205]; K1 = self.K1 = AG
        self.WOF = [AG + 160 + 4 * f for f in range(24)] + [244]
        self.xr = lambda ks: 4 * ks
        xl = self.xloads(self.xt(2 * L))
        allw = [1024 * f for f in range(80)] + [1024 * f for f in range(80, 160)]
        tok = []
        if L == 0:
            dm = [self.dma4(sWQ, 16 * KB * c, 16 * KB * c, tok) for c in range(10)]
            wdm = list(dm)
            self.x_bounce(152, wdm)
            c0 = 10 - len(wdm)
            if o.get("s2when", 2): E.wait(vm=self.S.tok2); E("s_barrier")
            s2cs, s2st, s2last = self.s2r or self.S.s2_read()
            self.stamp("st S2 read")
            late = sum(dm[2:], [])
        else:
            E.wait(vm=self.wq_tok[1]); E("s_barrier")
            for f in range(6): E(self.wread(RING + 4 * f, allw[f]))
            self.poll_block(sWC, 512 + 4 * (L - 1), 16)
            self.stamp("L1 P1 synced")
            self.xstart(xl, self.xt(2 * L))
            resops = []; late = self.wq_late; tok = self.wq_tok
        def ready(c): return lambda: (E.wait(vm=tok[c]), E("s_barrier"))
        if L == 0:
            ready(0)()
            for f in range(6): E(self.wread(RING + 4 * f, allw[f]))
        ev = {}; pre = {}
        so = self.stat_ops(152)
        if L == 0:
            for c in range(1, 5): pre[16 * c - 6] = [ready(c)]
            nA = o.get("lateA", 9)
            seq = []
            for c in range(c0, nA):
                seq += dm[c]
                if c == 4: seq += self.cs_loads(CSQ, 4 * KB, 4, CS)
            spread(ev, seq, 0, o.get("lateS", 26) / 10)
            spread(ev, s2st, o.get("s2s0", 0), o.get("s2sS", 10) / 10)
            spread(ev, self.masks(), 31, 3)
            lateB = sum(dm[nA:], [])
            rl, resops = self.load_residual(160)
            spread(ev, rl, o.get("res0", 21), 8)
            so = [(1, x) for x in so[6:] + s2cs] + [(1, [s2last])] + [(60, x) for x in resops]
        else:
            pre[26] = [ready(len(tok) - 1)]
            assert len(tok) >= 7
            spread(ev, xl[NX0:] , 0, o.get('xS', 20) / 10)
            if o.get("early", 0): ev.setdefault(11, []).append(self.statsig)
            spread(ev, self.stat_loads(2, 152), 39, 2)
            spread(ev, late, o.get('lt0', 60), (81.9 - o.get('lt0', 60)) / max(len(late), 1))
            so = [(66, x) for x in so]
        if L: spread(ev, [self.touch(sWO, sH8, 16 * KB * k) for k in range(2)], 61, 14)
        if L == 0: pre[74] = [ready(5)]
        self.wstream(self.pair_items(ACC[:2], CS), 0, allw, RING, ev, so, pre, tag=f"A{L}")
        self.stamp(f"L{L} P1 passA")
        def epi(G0, G1, dst, sc, at):
            r = []
            for G in range(G0, G1):
                b = ACC[0] + 4 * G
                r += [(at, f"v_mul_f32 v{b+i}, v{sc[G-G0]}, v{b+i}") for i in range(4)]
                r += [(at, f"v_cvt_pk_bf16_f32 v{dst[G-G0]+i}, v{b+2*i}, v{b+2*i+1}") for i in range(2)]
            return r
        ovl = o.get("ovl", 3)
        kvg = HB + (6 * MB if (L and ovl == 2) or ovl == 3 else 0) if ovl else KV + L * KV_STRIDE
        sKVme = sHme if ovl else globals()["sKVme"]
        st = {}
        vKW = 214; vQS = 215
        stA = [f"buffer_store_dwordx4 {v(reg,4)}, v{vPOS}, {s(WS,4)}, s{sA} offen offset:{off} sc1" for reg, off in ((KA, 0), (KB_, 1024), (VA, 2048))]
        stA[0] = f"s_add_u32 s{sA}, s{sKVme}, {kvg}\ns_add_u32 s{sB}, s{sA}, 4096\n" + stA[0]
        stA.append(lambda: st.__setitem__("A", E(f"buffer_store_dwordx4 {v(KV1,4)}, v{vPOS}, {s(WS,4)}, s{sB} offen sc1")))
        ldsA = [f"ds_write_b128 v{vKW}, {v(reg,4)} offset:{off}" for reg, off in ((KA, 0), (KB_, 1024), (VA, 2048), (KV1, 4096 + 128))]
        putB = [lambda: st.__setitem__("B", E(f"s_add_u32 s{sA}, s{sKVme}, {kvg}\nbuffer_store_dwordx4 {v(VB,4)}, v{vPOS}, {s(WS,4)}, s{sA} offen offset:3072 sc1")),
                f"ds_write_b128 v{vKW}, {v(VB,4)} offset:3072"]
        qs = 20 ** -0.5 * math.log2(math.e)
        va = epi(0, 8, [KA, KA + 2, KV1, KB_, KB_ + 2, VA, VA + 2, KV1 + 2], [vRSTD] * 8, 1)
        for k, G in reversed(list(enumerate((1, 4, 6, 7)))): va.insert(6 * (G + 1), (1, [stA[k]]))
        va += [(1, f"v_add_u32 v{vKW}, {8*SLOT}, v{vKR}"), (1, f"v_mul_f32 v{vQS}, {f2u(qs)}, v{vRSTD}")]
        t0, t1, t2 = 216, 217, 218
        cst = []
        for i in range(8):
            cst += [f"v_cndmask_b32 v{t0}, 0, -1, {s(sMASK+4*i,2)}", f"v_cndmask_b32 v{t1}, 0, -1, {s(sMASK+4*i+2,2)}",
                    f"v_and_b32 v{t0}, 0xffff, v{t0}", f"v_lshl_or_b32 v{MK+i}, v{t1}, 16, v{t0}"]
        cst += [f"v_lshrrev_b32 v{t0}, 5, v0", f"v_bfe_u32 v{t1}, v0, 2, 2", f"v_lshl_add_u32 v{t0}, v{t0}, 2, v{t1}",
                f"v_bfe_u32 v{t1}, v0, 4, 1", f"v_and_b32 v{t2}, 3, v0", f"v_lshl_add_u32 v{t1}, v{t1}, 2, v{t2}",
                f"v_and_b32 v{t2}, 1, v0", f"v_lshlrev_b32 v219, 2, v{t2}", f"v_xor_b32 v219, v219, v{t0}", f"v_lshlrev_b32 v219, 4, v219",
                f"v_lshl_add_u32 v219, v{t2}, 9, v219", f"v_bfe_u32 v220, v0, 1, 1", f"v_lshl_add_u32 v220, v220, 3, v219", f"v_add_u32 v221, {4096+128+8}, v219",
                f"v_mov_b32 v224, 128", f"v_mov_b32 v225, {SLOT}", f"v_subrev_u32 v226, v{vPOS}, v{vKR}"]
        cst += [f"s_lshl_b32 s{sC}, s{sW}, 7\ns_add_u32 s{sC}, s{sC}, {ONES+128}\nv_mov_b32 v227, s{sC}"]
        for hd in range(2):
            cst += [f"v_add_u32 v222, {2048+1024*hd}, v220", f"v_cmp_gt_u32 vcc, 4, v{t1}\nv_cndmask_b32 v222, v221, v222, vcc", f"v_add_u32 v222, v226, v222",
                    f"v_cmp_gt_u32 {s(sC,2)}, 4, v{t1}\nv_cmp_eq_u32 vcc, {4+hd}, v{t1}\ns_or_b64 vcc, vcc, {s(sC,2)}\nv_cndmask_b32 v{VAD[hd]}, v227, v222, vcc\nv_cndmask_b32 v223, v224, v225, vcc"]
            cst += [f"v_add_u32 v{VAD[hd]+i}, v{VAD[hd]+i-1}, v223" for i in range(1, 9)]
        cst = [f"v_mov_b32 v{228+i}, 0x3f803f80" for i in range(4)] + cst
        n1 = o.get("cst1", 50)
        va += [(1, x) for x in cst[:n1]]
        va += epi(8, 10, [VB, VB + 2], [vRSTD] * 2, 43) + [(43, putB)] + epi(10, 12, [QA0, QA0 + 2], [vQS] * 2, 43)
        va += [(43, x) for x in cst[n1:]]
        for i in range(9):
            va += [(52, f"v_accvgpr_write_b32 {R(K1+4*i+2)}, s{sFL+i}"), (52, f"v_accvgpr_write_b32 {R(K1+4*i+3)}, 0")]
        va += [(52, f"v_mov_b32 v{q+3}, 0") for q in (QA1, QB1)] + [(52, f"v_mov_b32 v{164+i}, -1") for i in range(4)]
        items = [(ACC[2], k, k == 0) for k in range(40)] + [("cs", ACC[2], CS + 8)] + [(ACC[3], k, k == 0) for k in range(40)] + [("cs", ACC[3], CS + 12)]
        ev = {}; pre = {}
        if L == 0:
            pre[10] = [ready(6)]
            endA = E.vm_n
            pre[26] = [lambda: E.wait(vm=endA), ready(7), self.S.flag2]
            pre[43] = [ready(9)]
            spread(ev, lateB, 0, 2.5)
        else:
            if o.get("early", 0):
                pre[2] = [self.nan_net(ACC[0], xl, self.pair_items(ACC[:2], CS) + items[:2], allw, RING, 512, self.stat_loads(2, 152) + self.stat_ops(152))]
                va = [(max(2, sl), x) for sl, x in va]
            pre[26] = [ready(9)]
        spread(ev, ldsA + [f"ds_write_b128 v{vL16}, v[228:231] offset:{ONES}", f"ds_write_b128 v{vL16}, v[228:231] offset:{ONES+1024}"], 26, 2)
        wo = []
        for f in range(25):
            t = f"s_add_u32 s{sT0+1}, s{sWO}, {1024*f}\n" if f % 4 == 0 else ""
            wo.append(t + f"buffer_load_dwordx4 {R(self.WOF[f],4)}, v{vL16}, {s(WS,4)}, s{sT0+1} offen offset:{1024*(f%4)} sc1")
        if L == 0:
            pass
        nwo = o.get("wob", 14)
        if L == 0:
            nwo = 0
        else:
            spread(ev, wo[:nwo], o.get('wo0', 13), (o.get('wo1', 57) - o.get('wo0', 13)) / nwo)
        self.wo_late = wo[nwo:]
        spread(ev, [self.touch(sWGU, sH16, 32 * KB * k) for k in range(2)], 40, 16)
        sa, pa, ca, sb = o.get("sa", 34), o.get("pa", 50), o.get("ca", 70), o.get("sb", 79)
        ev.setdefault(sa, []).append(self.signal(sKP, 8 * L, lambda: st["A"]))
        ev.setdefault(pa, []).append(self.poll_issue(sKC, 8 * L))
        pre.setdefault(ca, []).append(self.poll_check(sKC, 8 * L, f"s{sKT}"))
        hal = []; self.haltok = []
        for t in range(2):
            p = f"s_mul_i32 s{sB}, s{sW}, {2*SLOT}\n" + (f"s_add_u32 s{sHAL}, s{sHAL}, s{sHAL+1}\n" if L and not ovl else "") if t == 0 else ""
            if t == 0 and L and ovl == 2: p += f"s_mul_i32 s{sE_}, s{sKT}, {3*MB}\ns_add_u32 s{sHAL}, s{sHAL}, s{sE_}\n"
            hal.append(p + f"s_add_u32 m0, s{sB}, {t*SLOT}\ns_add_u32 s{sE_}, s{sHAL}, {s(sHAL+1) if ovl and t else t*5*KB}\nbuffer_load_dwordx4 v{vL16}, {s(WS,4)}, s{sE_} offen sc1 lds")
            hal += [f"buffer_load_dwordx4 v{vL16}, {s(WS,4)}, s{sE_} offen offset:{1024*i} sc1 lds" for i in (1, 2)]
            hal.append(f"s_add_u32 m0, s{sB}, {t*SLOT+4096+128}\ns_add_u32 s{sE_}, s{sE_}, 4096\nbuffer_load_dwordx4 v{vL16}, {s(WS,4)}, s{sE_} offen sc1 lds")
        lasth = hal[-1]; hal[-1] = lambda: self.haltok.append(E(lasth))
        assert ca > 44
        spread(ev, hal, ca, o.get("halS", 10) / 10)
        ev.setdefault(sb, []).append(self.signal(sKP, 8 * L + 4, lambda: st["B"]))
        self.wstream(items, 80, allw, RING, ev, va, pre, budget=o.get("budB", 32), tag=f"B{L}")
        self.stamp(f"L{L} P1 passB")
        if L == 0: E(self.S.vpoll_issue(241, 242))
        for _, x in epi(12, 15, [QA1, QB0, QB0 + 2], [vQS] * 3, 0): E(x)
        E(f"s_mov_b32 vcc_lo, -1\ns_mov_b32 vcc_hi, 0")
        for i in range(2):
            E(f"v_cndmask_b32 v{QB1+i}, v{QA1+i}, v{QA1+3}, vcc")
            E(f"v_cndmask_b32 v{QA1+i}, 0, v{QA1+i}, vcc")
        for k in range(6):
            for hd, (q0, q1, k0) in enumerate(((QA0, QA1, KA), (QB0, QB1, KB_))):
                qa, ka = (q0 + k, k0 + k) if k < 4 else (q1 + k - 4, KV1 + k - 4)
                E(f"v_dot2_f32_bf16 v{216+hd}, v{qa}, v{ka}, {'0' if k == 0 else v(216+hd)}")
        E(f"s_mov_b32 s{sA}, {f2u(-1e38)}")
        for hd, q1 in enumerate((QA1, QB1)): E(f"v_cvt_pk_bf16_f32 v{q1+2}, s{sA}, -v{216+hd}")
    def att_defs(self):
        QA0, QB0, QA1, QB1 = self.Q
        d = self
        d.kread = lambda hd, i, dst: f"ds_read_b128 {R(dst,4)}, v{vKR} offset:{i*SLOT + 1024*hd}"
        d.k1read = lambda i: f"ds_read_b64 {R(self.K1+4*i,2)}, v{vKR} offset:{i*SLOT + 4096 + 128}"
        def smf(hd, i, dst, k0, C="0"):
            q0, q1 = (QA0, QA1) if hd == 0 else (QB0, QB1)
            return [f"v_mfma_f32_32x32x16_bf16 {v(dst,16)}, {R(k0,4)}, {v(q0,4)}, {C}",
                    f"v_mfma_f32_32x32x16_bf16 {v(dst,16)}, {R(self.K1+4*i,4)}, {v(q1,4)}, {v(dst,16)}"]
        d.smf = smf
        d.vreads = lambda hd, i, vf: [f"ds_read_b64_tr_b16 {R(vf+2*k,2)}, v{self.VAD[hd]+i} offset:{128*k}" for k in range(4)]
        def expops(src, p):
            r = []
            for k in range(8):
                r += [f"v_exp_f32 v{src+2*k}, v{src+2*k}", f"v_exp_f32 v{src+2*k+1}, v{src+2*k+1}"]
                if k: r.append(f"v_cvt_pk_bf16_f32 v{p+k-1}, v{src+2*k-2}, v{src+2*k-1}")
            r.append(f"v_cvt_pk_bf16_f32 v{p+7}, v{src+14}, v{src+15}")
            return r
        d.expops = expops
        d.mergeops = lambda dg, old: [f"v_cndmask_b32 v{dg+k}, v{old+k}, v{dg+k}, {s(sMASK+2*k,2)}" for k in range(16)]
        d.splitops = lambda p, pm: [f"v_bfi_b32 v{pm+k}, v{self.MK+k}, 0, v{p+k}" for k in range(8)] + [f"v_and_b32 v{p+k}, v{self.MK+k}, v{p+k}" for k in range(8)]
        d.pv = lambda O, vf, p, first: [f"v_mfma_f32_32x32x16_bf16 {v(O,16)}, {R(vf,4)}, {v(p,4)}, {'0' if first else v(O,16)}",
                                        f"v_mfma_f32_32x32x16_bf16 {v(O,16)}, {R(vf+4,4)}, {v(p+4,4)}, {v(O,16)}"]
    def fallback(self, hd):
        E = Emit(); O = self.O[hd]
        S, SD, NEG, P, PM, MX = 48, 64, 214, 230, 238 - 0, 246
        PM = 152 + 8
        K0 = AG + 136; VF = AG + 140; SP = AG + 104
        E.raw(f"FB{hd}:")
        E("s_waitcnt vmcnt(0) lgkmcnt(0)"); E.settle()
        for k in range(32): E(f"v_accvgpr_write_b32 {R(SP+k)}, v{48+k}")
        E(f"v_mov_b32 v{MX+2}, 0xff7fffff")
        for i in (8, 7, 6, 5, 4, 3, 2, 1, 0):
            E(self.kread(hd, i, K0))
            for x in self.smf(hd, i, SD if i == 8 else S, K0): E(x)
            if i == 8: continue
            src = S
            if i == 0:
                for x in self.mergeops(SD, S): E(x)
                src = SD
            for k in range(8): E(f"v_max3_f32 v{MX+2}, v{src+2*k}, v{src+2*k+1}, v{MX+2}")
        E(f"v_mov_b32 v{MX+3}, v{MX+2}\nv_permlane32_swap_b32 v{MX+3}, v{MX+2}\nv_max_f32 v{MX+2}, v{MX+2}, v{MX+3}")
        for k in range(16): E(f"v_sub_f32 v{NEG+k}, 0, v{MX+2}")
        for k in range(16): E(f"v_add_f32 v{SD+k}, v{NEG}, v{SD+k}")
        for x in self.expops(SD, P) + self.splitops(P, PM): E(x)
        for x in self.vreads(hd, 8, VF) + self.pv(O, VF, P, True): E(x)
        E.settle()
        for x in self.vreads(hd, 0, VF) + self.pv(O, VF, PM, False): E(x)
        for i in range(7, 0, -1):
            E.settle()
            E(self.kread(hd, i, K0))
            for x in self.vreads(hd, i, VF) + self.smf(hd, i, S, K0, v(NEG, 16)) + self.expops(S, P) + self.pv(O, VF, P, False): E(x)
        E.settle()
        for k in range(32): E(f"v_accvgpr_read_b32 v{48+k}, {R(SP+k)}")
        E.settle()
        for f, q in enumerate(EARLY):
            E(f"s_add_u32 s{sF}, s{sWD}, {1024*f}\nbuffer_load_dwordx4 {R(q,4)}, v{vL16}, {s(WS,4)}, s{sF} offen sc1")
        E.drain(); E.settle()
        E(f"s_setpc_b64 {s(sRET,2)}")
        return E.text()
    def p2(self, L):
        E = self.E; o = self.o
        self.att_defs()
        S = [48, 64]; SD = 80; P = [96, 104]; PM = 112; O = self.O = [120, 136]; D = 152; TT = 168
        K0 = [AG + 36, AG + 40, AG + 44]; VF = [AG + 48, AG + 56, AG + 64]
        self.OF = {}
        for st in range(2):
            for i in range(4): self.OF[(st, i)] = AG + 72 + 16 * st + 4 * i
        for st in range(2, 5):
            for i in range(4): self.OF[(st, i)] = (108 + 12 * i if i < 3 else 176) + 4 * (st - 2)
        if L == 0: self.tail += [self.fallback(0), self.fallback(1)]
        obase = OB + L * OB_STRIDE
        if o.get("ab", 0): obase = XT + XT_STRIDE * L
        self.obase = obase
        def oload(st, i):
            return (f"s_mul_i32 s{sE_}, s{sW}, {10*KB}\ns_add_u32 s{sE_}, s{sE_}, s{sT16+i}\ns_add_u32 s{sE_}, s{sE_}, {obase + 2048*st}\n"
                    f"buffer_load_dwordx4 {R(self.OF[(st,i)],4)}, v{vU}, {s(WS,4)}, s{sE_} offen sc1")
        def oload2(st, i):
            return f"buffer_load_dwordx4 {R(self.OF[(st,i)],4)}, v{vU}, {s(WS,4)}, s{sE_} offen offset:2048 sc1"
        self.oload, self.oload2 = oload, oload2
        E.wait(vm=self.haltok[0], ds=E.ds_n); E("s_barrier")
        self.stamp(f"L{L} halo in")
        ev = {}; pre = {}
        if L == 0: pre[o.get("f2c", 6)] = [self.S.vpoll_check(241, 242, 4)]
        dm = []
        for c in range(6): dm += self.dma4(sWGU, 16 * KB * c, 64 * KB + 16 * KB * c)
        hb = []
        for t in range(2):
            hb.append(f"s_mul_i32 s{sD}, s{sW}, {2*SLOT}\ns_add_u32 m0, s{sD}, {t*SLOT}\ns_add_u32 s{sE_}, s{sHAL}, {s(sHAL+1) if o.get('ovl', 3) and t else t*5*KB}\nbuffer_load_dwordx4 v{vL16}, {s(WS,4)}, s{sE_} offen offset:3072 sc1 lds")
        lasth = hb[-1]; hb[-1] = lambda: self.haltok.append(E(lasth))
        pb, cb = o.get("pb", 4), o.get("cb", 16)
        nl = len(self.wo_late)
        n1 = min(nl, int((cb - (0 if L else o.get('f2c', 6))) / 2.1))
        spread(ev, self.wo_late[:n1], 0 if L else o.get("f2c", 6), 2.1 if L else 1.8)
        ev.setdefault(pb, []).append(self.poll_issue(sKC, 8 * L + 4))
        pre.setdefault(cb, []).append(self.poll_check(sKC, 8 * L + 4, f"s{sKT}"))
        spread(ev, hb, cb, 1)
        self.pool = Pool(EARLY); self.mk_wdload()
        rest = self.wo_late[n1:] + dm + self.wd(o.get("wd2" if L else "wd20", 7 if L else 0))
        spread(ev, rest, cb + 2, (o.get("bgend", 68) - cb - 2) / len(rest))
        spread(ev, [self.touch(sWGU, sH16, 32 * KB * k) for k in range(2, 5)] + [self.touch(sWD, sH8, 0)], 10, 14)
        spread(ev, [f"s_and_b32 s{sA}, s{sJ}, 3\ns_lshl_b32 s{sB}, s{sA}, 10\ns_add_u32 s{sB}, s{sB}, s{sOme}\ns_add_u32 s{sB}, s{sB}, {obase}\n"
                    f"s_add_u32 s{sC}, s{sB}, 4096\nbuffer_store_dwordx4 v[164:167], v{vL16}, {s(WS,4)}, s{sC} offen sc1",
                    f"s_lshl_b32 s{sA}, s{sA}, 9\ns_add_u32 s{sA}, s{sA}, s{sOme}\ns_add_u32 s{sA}, s{sA}, {obase + 8192}\n"
                    f"buffer_store_dwordx2 v[164:165], v{vO4}, {s(WS,4)}, s{sA} offen sc1"] + self.xpoison(2 * L + 1, 164), min(o.get("poi", 5), 20), 2)
        if o.get("senth", 0) and o.get("poiw", 1) == 0:
            assert o.get("ovl", 3) == 3
            spread(ev, [(f"s_add_u32 s{sP}, s{sHme}, {HB + L*HB_STRIDE + 2048}\n" if k == 0 else "") +
                        f"buffer_store_dwordx4 v[164:167], v{vL16}, {s(WS,4)}, s{sP} offen offset:{1024*k} sc1" for k in range(4)], o.get("poih", 20), 4)
        SO = self.SO = [sH8, sH16, sHX, sD]
        self.ol = ol = lambda st, i, va, off: f"buffer_load_dwordx4 {R(self.OF[(st,i)],4)}, v{va}, {s(WS,4)}, s{SO[i]} offen offset:{off} sc1"
        ev.setdefault(45, []).append(f"s_mul_i32 s{sE_}, s{sW}, {10*KB}\ns_add_u32 s{sE_}, s{sE_}, {obase}\n" + "\n".join(f"s_add_u32 s{SO[i]}, s{sE_}, s{sT16+i}" for i in range(4)))
        self.aq = [self.poll_check(sTC, self.T(0, L), 8)] + sum([[ol(0, i, vU, 0), ol(1, i, vU, 2048)] for i in range(4)], [])
        oca = o.get("oca", 99)
        if oca < 70:
            pre.setdefault(oca, []).append(self.aq[0])
            spread(ev, self.aq[1:], oca, (70 - oca) / 8); self.aq = []
        st = {}
        def check(hd):
            def fn():
                Lo, Lb = E.label("FO"), E.label("FR")
                E(f"v_subrev_u32 v{TT}, {hex(63 << 23)}, v{O[hd]+12}\nv_cmp_le_u32 vcc, {hex(128 << 23)}, v{TT}\ns_cbranch_vccnz {Lo}")
                E.place(Lb)
                self.tail.append(f"{Lo}:\ns_call_b64 {s(sRET,2)}, FB{hd}\ns_branch {Lb}")
            return fn
        def norm(hd):
            r = [check(hd), f"v_rcp_f32 v{TT}, v{O[hd]+12}"]
            r += [f"v_mul_f32 v{O[hd]+k}, v{TT}, v{O[hd]+k}" for k in range(12)]
            r += [f"v_cvt_pk_bf16_f32 v{D+8*hd+k}, v{O[hd]+2*k}, v{O[hd]+2*k+1}" for k in range(6)]
            return r
        def putOA():
            st["a"] = E(f"buffer_store_dwordx4 {v(D,4)}, v{vL16}, {s(WS,4)}, s{sB} offen sc1")
        slot = [0]
        def weave(mf, mems, valu):
            n = len(mf); mems = list(mems); valu = list(valu)
            for k, m in enumerate(mf):
                self.fine(f"t{L}", slot[0])
                for g in pre.pop(slot[0], []): self.do(g)
                E(m)
                for _ in range(-(-len(mems) // (n - k))): E(mems.pop(0))
                for g in ev.pop(slot[0], []): self.do(g)
                for _ in range(-(-len(valu) // (n - k))): self.do(valu.pop(0))
                slot[0] += 1
        seq = [(hd, i) for hd in range(2) for i in (7, 6, 5, 4, 3, 2, 1, 8, 0)]
        kslot = {x: K0[n % 3] for n, x in enumerate(seq)}
        kq = list(seq)
        def knext():
            if not kq: return []
            hd, i = kq.pop(0)
            return [self.kread(hd, i, kslot[(hd, i)])] + ([self.k1read(i)] if hd == 0 else [])
        for x in knext() + knext() + knext(): E(x)
        for x in self.smf(0, 7, S[0], kslot[(0, 7)]): E(x)
        pend = []; vn = 0
        sa_, pa_ = o.get("osa", 56), o.get("opa", 69)
        ev.setdefault(pa_, []).append(self.poll_issue(sTC, self.T(0, L)))
        ev.setdefault(sa_, []).append(self.signal(sTP, self.T(0, L), lambda: st["a"]))
        for hd in range(2):
            for n in range(8):
                mf = []; mems = []; va = []
                if n < 6:
                    mf += self.smf(hd, 6 - n, S[(n + 1) % 2], kslot[(hd, 6 - n)]); mems += knext()
                    mf += pend
                elif n == 6:
                    mf += self.smf(hd, 8, SD, kslot[(hd, 8)]) + self.smf(hd, 0, S[1], kslot[(hd, 0)]); mems += knext()
                    mf += pend
                else:
                    mf += pend
                    if hd == 0: mf += self.smf(1, 7, S[0], kslot[(1, 7)])
                    mems += knext() + knext()
                    if hd == 0: pre.setdefault(slot[0] + len(mf), []).append(lambda: (E.wait(vm=self.haltok[1]), E("s_barrier")))
                    if hd == 0 and o.get("ovl", 3) and not (L and o.get("ovl", 3) >= 2): ev.setdefault(slot[0] + len(mf), []).append(self.signal(sKVme, 16 + 4 * L, lambda: self.haltok[1]))
                if n < 7:
                    vf = VF[vn % 3]; vn += 1
                    vr = self.vreads(hd, 7 - n, vf)
                    mems = mems + vr
                    va += self.expops(S[n % 2], P[n % 2])
                    pend = self.pv(O[hd], vf, P[n % 2], n == 0)
                    if hd == 1 and n == 1: va = norm(0) + [putOA] + va
                else:
                    v8, v0_ = VF[vn % 3], VF[(vn + 1) % 3]; vn += 2
                    mems = mems + self.vreads(hd, 8, v8) + self.vreads(hd, 0, v0_)
                    va += self.mergeops(SD, S[1]) + self.expops(SD, P[1]) + self.splitops(P[1], PM)
                    pend = self.pv(O[hd], v8, P[1], False) + self.pv(O[hd], v0_, PM, False)
                weave(mf, mems, va)
            if hd == 0: self.stamp(f"L{L} att a")
        weave(pend, [], [])
        assert not ev and not pre, (ev, pre, slot)
        for x in norm(1): self.do(x)
        E(f"s_mov_b32 vcc_lo, -1\ns_mov_b32 vcc_hi, 0")
        for k in range(2): E(f"v_cndmask_b32 v{D+4+k}, v{D+12+k}, v{D+4+k}, vcc")
        E(f"buffer_store_dwordx4 {v(D+8,4)}, v{vL16}, {s(WS,4)}, s{sC} offen sc1")
        self.otok = E(f"buffer_store_dwordx2 {v(D+4,2)}, v{vO4}, {s(WS,4)}, s{sA} offen sc1")
        self.stamp(f"L{L} att done")
    def reduce_and_publish(self, ACC, steps, red, PT, xidx, wimm, final, bg, post, bg0=1, bgstep=5, vals=None):
        E = self.E
        wr = []; bg = list(bg); rd = []
        sal = []
        if not final:
            sal = [f"s_mul_i32 s{sA}, s{sNB}, {5*KB}\ns_add_u32 s{sA}, s{sA}, s{sT16+3}", f"s_add_u32 s{sA}, s{sA}, {self.xt(xidx)}\ns_add_u32 s{sB}, s{sA}, 4096",
                   f"s_lshl_b32 s{sC}, s{sJ}, 2\ns_add_u32 s{sC}, s{sC}, s{sW}", f"s_lshl_b32 s{sC}, s{sC}, 7\ns_and_b32 s{sP}, s{sTC}, 0xffffe000",
                   f"s_add_u32 s{sC}, s{sC}, s{sP}\ns_add_u32 s{sC}, s{sC}, {STAT - GCNT + xidx*128*KB}"]
        AW = [PT + 56 + i for i in range(3)]
        for i in range(3): E(f"v_add_u32 v{AW[i]}, {red}, v{vRW+i}")
        E(f"v_add_u32 v{vT}, {red}, v{vRW+3}")
        order = [(q, nt) for nt in range(5) for q in range(3)]
        for i in range(4):
            mf = []
            for (W, act) in steps:
                for nt in range(5):
                    d = ACC[i] + 4 * nt
                    mf.append(f"v_mfma_f32_16x16x32_bf16 {v(d,4)}, {R(W[nt],4)}, {R(act[i],4)}, {v(d,4)}")
            for k, m in enumerate(mf):
                E(m)
                if k >= 3 and wr: E(wr.pop(0))
                elif vals and i < 3 and k >= len(mf) - len(vals[i + 1]): self.do(vals[i + 1].pop(0))
                elif i == 3 and k == len(mf) - self.o.get("rbar", 4):
                    E.drain(vm=False); E("s_barrier")
                    rd = [f"ds_read_b128 {v(PT+20*q+4*nt,4)}, v{vT} offset:{1024*(5*q+nt)}" for q, nt in order]
                elif rd: E(rd.pop(0)); E(rd.pop(0))
                elif k % bgstep == 1 and i >= bg0 and bg: self.do(bg.pop(0))
                elif i == 0 and sal: E(sal.pop(0))
            assert not (vals and i < 3 and vals[i + 1])
            if i < 3: wr = [f"ds_write_b128 v{AW[i]}, {v(ACC[i]+4*nt,4)} offset:{1024*nt}" for nt in range(5)]
        for x in rd: E(x)
        assert not sal
        self.stamp("  mfma done")
        D = ACC[0]
        if final:
            stores = [f"buffer_store_dwordx4 {v(D,4)}, v{vRM}, {s(OUT,4)}, s{sRM} offen {FINAL}", f"buffer_store_dwordx4 {v(D+4,4)}, v{vRM}, {s(OUT,4)}, s{sRM} offen offset:16 {FINAL}",
                      f"buffer_store_dwordx2 {v(D+8,2)}, v{vRM5}, {s(OUT,4)}, s{sRM} offen offset:128 {FINAL}"]
        else:
            stores = [f"buffer_store_dwordx4 {v(D,4)}, v{vXW}, {s(WS,4)}, s{sA} offen sc1", f"buffer_store_dwordx4 {v(D+4,4)}, v{vXW}, {s(WS,4)}, s{sA} offen offset:512 sc1",
                      f"buffer_store_dwordx2 {v(D+8,2)}, v{vXW5}, {s(WS,4)}, s{sB} offen sc1"]
        for nts in ((0, 1), (2, 3), (4,)):
            ks = [4 * nt + e for nt in nts for e in (0, 2)]
            for k in ks: E(f"v_pk_add_f32 {v(PT+k,2)}, {v(PT+k,2)}, {v(PT+20+k,2)}")
            for k in ks: E(f"v_pk_add_f32 {v(vRES+k,2)}, {v(vRES+k,2)}, {v(PT+40+k,2)}")
            for k in ks: E(f"v_pk_add_f32 {v(vRES+k,2)}, {v(vRES+k,2)}, {v(PT+k,2)}")
            for k in ks: E(f"v_cvt_pk_bf16_f32 v{D+k//2}, v{vRES+k}, v{vRES+k+1}")
        for x in stores: data = E(x)
        if final: return
        early = self.o.get("early", 0)
        if early: E(f"buffer_atomic_add v{vONE}, v{vSR}, {s(WS,4)}, s{sWP} offen offset:{wimm} sc1")
        self.stamp("  stored")
        T = PT
        E(f"v_pk_add_f32 {v(T,2)}, {v(vRES,2)}, {v(vRES+2,2)}\nv_pk_mul_f32 {v(T+2,2)}, {v(vRES,2)}, {v(vRES,2)}")
        E(f"v_pk_fma_f32 {v(T+2,2)}, {v(vRES+2,2)}, {v(vRES+2,2)}, {v(T+2,2)}")
        for k in range(4, 20, 2):
            E(f"v_pk_add_f32 {v(T,2)}, {v(T,2)}, {v(vRES+k,2)}\nv_pk_fma_f32 {v(T+2,2)}, {v(vRES+k,2)}, {v(vRES+k,2)}, {v(T+2,2)}")
        E(f"v_add_f32 v{T}, v{T}, v{T+1}\nv_add_f32 v{T+1}, v{T+2}, v{T+3}")
        for sw in ("v_permlane32_swap_b32", "v_permlane16_swap_b32"):
            E(f"v_mov_b32 v{T+2}, v{T}\nv_mov_b32 v{T+3}, v{T+1}")
            E(f"{sw} v{T+2}, v{T}\n{sw} v{T+3}, v{T+1}")
            E(f"v_add_f32 v{T}, v{T}, v{T+2}\nv_add_f32 v{T+1}, v{T+1}, v{T+3}")
        last = E(f"buffer_store_dwordx2 {v(T,2)}, v{vSW}, {s(WS,4)}, s{sC} offen sc1")
        E("s_barrier")
        n0 = self.o.get("post0", 5); n1 = n0 + self.o.get("post1", 4)
        post = list(bg) + list(post)
        for g in post[:n0]: self.do(g)
        if not early: self.signal(sWP, wimm, last, vSR)()
        self.stamp("  signalled")
        self.preissued = False
        pp = self.o.get("pp", 99)
        for k, g in enumerate(post[n0:]):
            if early and n0 + k == pp: E(self.poll_issue(sWC, wimm)); self.preissued = True
            self.do(g)
        self.statsig = self.signal(sWP, wimm + 8, last, vSR)
    def mk_wdload(self):
        self.WDF = {}
        def wdload(f):
            def fn():
                q = self.pool.get(); self.WDF[f] = q
                t = f"s_add_u32 s{sT0+1}, s{sWD}, {1024*f}\n" if f % 4 == 0 else ""
                assert t or self.E.lastw[f"s{sT0+1}"] == f"s_add_u32 s{sT0+1}, s{sWD}, {1024*(f & ~3)}"
                return self.E(t + f"buffer_load_dwordx4 {R(q,4)}, v{vL16}, {s(WS,4)}, s{sT0+1} offen offset:{1024*(f%4)} sc1")
            return fn
        self.wdq = [wdload(f) for f in range(60)]
    def wd(self, n):
        r = self.wdq[:n]; self.wdq = self.wdq[n:]
        return r
    def p3(self, L):
        E = self.E; o = self.o
        ACC = [48, 68, 88, vRES]
        W = lambda st: [self.WOF[5 * st + nt] for nt in range(5)]
        self.pool.add([188 + 4 * i for i in range(7)])
        SO = self.SO; ol = self.ol; vU4 = 172
        for g in self.aq: self.do(g)
        E(f"v_add_u32 v{vU4}, 4096, v{vU}")
        for i in range(4): E(f"s_add_u32 s{SO[i]}, s{SO[i]}, 4096")
        E("s_barrier")
        bl = [[ol(2, i, vU, 0), ol(3, i, vU, 2048), ol(4, i, vU4, 0)] for i in range(4)]
        vals = [self.validate([self.OF[(st, i)] for st in range(2, 5)], bl[i], 168) for i in range(4)]
        q = sum(bl, [])
        if o.get("obw", 1): E.wait(vm=self.otok)
        for _ in range(o.get("obn", 3)): E(q.pop(0))
        k = 0
        for i in range(4):
            for st in range(2):
                for nt in range(5):
                    d = ACC[i] + 4 * nt
                    E(f"v_mfma_f32_16x16x32_bf16 {v(d,4)}, {R(W(st)[nt],4)}, {R(self.OF[(st,i)],4)}, {'0' if st == 0 and i < 3 else v(d,4)}")
                    if k % o.get("obs", 3) == 0 and q: E(q.pop(0))
                    elif k >= 40 - len(vals[0]) and k < 39: self.do(vals[0].pop(0))
                    k += 1
        assert not q
        for g in vals[0]: self.do(g)
        self.stamp(f"L{L} P3 synced")
        steps = [(W(st), [self.OF[(st, i)] for i in range(4)]) for st in range(2, 5)]
        self.CSG = 152
        bg = self.wd(o.get("wd3b", 6))
        self.vals = vals
        def freewo(): self.pool.add([176, 180, 184] + [AG + 104 + 4 * i for i in range(14)] + self.WOF[:10] + self.WOF[24:])
        self.gu_late = []
        self.gu_tok = []
        for c in range(6, 10): self.gu_late += self.dma4(sWGU, 16 * KB * c, 16 * KB * (c - 6), self.gu_tok)
        n = o.get("gu3", 16)
        post = [freewo] + self.gu_late[:n]
        self.gu_late = self.gu_late[n:]
        self.reduce_and_publish(ACC, steps, 0, 108 - 16 + 16, 2 * L + 1, 4 * L, False, bg, post, vals=vals)
        self.stamp(f"L{L} P3 done")
    def p4(self, L):
        E = self.E; o = self.o
        ACC = [[48, 64], [80, 96]]; RING = 112; HP = 136; T = 144
        allw = [1024 * ((64 + f) % 160) for f in range(240)]
        for f in range(6): E(self.wread(RING + 4 * f, allw[f]))
        self.poll_block(sWC, 4 * L, 16)
        self.stamp(f"L{L} P4 synced")
        self.xr = lambda ks: 4 * ks if ks < 26 else 200 + 4 * (ks - 26)
        xl = self.xloads(self.xt(2 * L + 1))
        self.xstart(xl, self.xt(2 * L + 1))
        c1 = -2 * 0.7978845608028654 * math.log2(math.e)
        so = self.stat_ops(T) + [f"v_mul_f32 v{vC1}, {f2u(c1)}, v{vRSTD}", f"v_mul_f32 v{T}, v{vRSTD}, v{vRSTD}", f"v_mul_f32 v{vC2}, {f2u(0.044715)}, v{vC1}",
                                 f"v_mul_f32 v{vC2}, v{T}, v{vC2}"]
        st = self.htok = {}
        def put(p, k):
            if k == 0: return f"s_add_u32 s{sA}, s{sHme}, {HB + L*HB_STRIDE + 2048*p}\nbuffer_store_dwordx4 {v(HP,4)}, v{vL16}, {s(WS,4)}, s{sA} offen sc1"
            return lambda: st.__setitem__(p, E(f"buffer_store_dwordx4 {v(HP+4,4)}, v{vL16}, {s(WS,4)}, s{sA} offen offset:1024 sc1"))
        def epi(p):
            g, u = ACC[p % 2]; r = []
            for k0 in range(0, 16, 4):
                ks = range(k0, k0 + 4)
                r += [f"v_mul_f32 v{T+k%4}, v{g+k}, v{g+k}" for k in ks]
                r += [f"v_fma_f32 v{T+k%4}, v{T+k%4}, v{vC2}, v{vC1}" for k in ks]
                r += [f"v_mul_f32 v{T+k%4}, v{T+k%4}, v{g+k}" for k in ks]
                r += [f"v_exp_f32 v{T+k%4}, v{T+k%4}" for k in ks]
                r += [f"v_mul_f32 v{g+k}, v{g+k}, v{u+k}" for k in ks]
                r += [f"v_fma_f32 v{T+k%4}, v{T+k%4}, v{vIV}, v{vIV}" for k in ks]
                r += [f"v_rcp_f32 v{T+k%4}, v{T+k%4}" for k in ks]
                r += [f"v_mul_f32 v{g+k}, v{g+k}, v{T+k%4}" for k in ks]
                r += [f"v_cvt_pk_bf16_f32 v{HP+k//2}, v{g+k}, v{g+k+1}" for k in ks if k % 2 == 0]
                if k0 in (4, 12): r.append([put(p, k0 // 8)])
            return [(2, x) for x in r]
        def epi_pk(p):
            g, u = ACC[p % 2]; r = []
            for k0 in range(0, 16, 8):
                ks = range(k0, k0 + 8, 2)
                r += [f"v_pk_mul_f32 {v(T+k%8,2)}, {v(g+k,2)}, {v(g+k,2)}" for k in ks]
                r += [f"v_pk_fma_f32 {v(T+k%8,2)}, {v(T+k%8,2)}, {v(vC1,2)}, {v(vC1,2)} op_sel:[0,1,0] op_sel_hi:[1,1,0]" for k in ks]
                r += [f"v_pk_mul_f32 {v(T+k%8,2)}, {v(T+k%8,2)}, {v(g+k,2)}" for k in ks]
                r += [f"v_exp_f32 v{T+k}, v{T+k}" for k in range(8)]
                r += [f"v_pk_mul_f32 {v(g+k,2)}, {v(g+k,2)}, {v(u+k,2)}" for k in ks]
                r += [f"v_pk_fma_f32 {v(T+k%8,2)}, {v(T+k%8,2)}, {v(vIV,2)}, {v(vIV,2)} op_sel_hi:[1,0,0]" for k in ks]
                r += [f"v_rcp_f32 v{T+k}, v{T+k}" for k in range(8)]
                r += [f"v_pk_mul_f32 {v(g+k,2)}, {v(g+k,2)}, {v(T+k%8,2)}" for k in ks]
                r += [f"v_cvt_pk_bf16_f32 v{HP+k//2}, v{g+k}, v{g+k+1}" for k in ks]
                r.append(put(p, k0 // 8))
            return r
        self.HF = {}
        def hload(stp, i, fixed=None):
            p, jj = divmod(stp, 4)
            if fixed is not None:
                self.HF[(stp, i)] = fixed
                return f"s_add_u32 s{sE_}, s{sT16H+i}, {HB + L*HB_STRIDE + 2048*(3*jj+p)}\nbuffer_load_dwordx4 {R(fixed,4)}, v{vU}, {s(WS,4)}, s{sE_} offen sc1"
            def fn():
                q = self.pool.get(); self.HF[(stp, i)] = q
                E(f"buffer_load_dwordx4 {R(q,4)}, v{vU}, {s(WS,4)}, s{sE_} offen sc1")
            return (f"s_add_u32 s{sE_}, s{sT16H+i}, {HB + L*HB_STRIDE + 2048*(3*jj+p)}", fn)
        self.hload = hload
        nv = o.get("bud4", 32)
        ev = {}; spread(ev, xl[NX0:], 0, o.get('xS', 20) / 10)
        if o.get("early", 0): ev.setdefault(11, []).append(self.statsig)
        spread(ev, self.stat_loads(2 * L + 1, T), 39, 2)
        csl = self.cs_loads(CSG, 6 * KB, 6, self.CSG)
        spread(ev, csl[:2], 47, 2)
        pre = {}
        if o.get("ovl", 3) and not (L and o.get("ovl", 3) >= 2):
            ev.setdefault(51, []).append(f"s_sub_u32 s{sH8}, 15, s{sR}\ns_min_u32 s{sH8}, s{sH8}, 2\n" + self.poll_issue(sKP, 16 + 4 * L))
            pre[76] = [self.poll_check(sKP, 16 + 4 * L, f"s{sH8}")]
        spread(ev, self.gu_late + self.wd(min(o.get("wd40", 10), 10 - len(self.gu_late))), 61, 2)
        spread(ev, [self.touch(sWGU, sH16, 32 * KB * 5), self.touch(sWD, sH8, 16 * KB), self.touch(sWGU, sH16, 32 * KB * 6)], 45, 15)
        pv = [(30, f"v_mov_b32 v{HP+i}, -1") for i in range(4)] + [(30, self.xpoison(2, HP))] if L == 0 and o.get("early", 0) else []
        sh = o.get("senth", 0)
        if sh and o.get("poiw", 1) == 1:
            assert o.get("ovl", 3) == 3
            pv += [(40, f"v_mov_b32 v{HP+4+i}, -1") for i in range(4)]
            spread(ev, [(f"s_add_u32 s{sB}, s{sHme}, {HB + L*HB_STRIDE + 2048}\n" if k == 0 else "") +
                        f"buffer_store_dwordx4 {v(HP+4,4)}, v{vL16}, {s(WS,4)}, s{sB} offen offset:{1024*k} sc1" for k in range(4)], o.get("poi0", 74), o.get("poiS", 2))
        self.wstream(self.pair_items(ACC[0], self.CSG), 0, allw, RING, ev, pv + [(65, x) for x in so], pre, tag=f"p0{L}")
        self.stamp(f"L{L} P4 p0")
        ev = {}; tok = []; fl = []
        for c in range(10, 15): fl += self.dma4(sWGU, 16 * KB * c, 64 * KB + 16 * KB * (c - 10), tok)
        spread(ev, fl, 2, 2.15)
        net = [self.nan_net(ACC[0][0], xl, self.pair_items(ACC[0], self.CSG) + self.pair_items(ACC[1], 0)[:2], allw, RING, 4 * L, self.stat_loads(2 * L + 1, T) + so)] if o.get("early", 0) else []
        n1 = min(o.get("wd41", 13), len(self.pool.free))
        spread(ev, csl[2:] + self.wd(n1), 46, 35 / max(n1 + 4, 16))
        spread(ev, [self.touch(sWGU, sH16, 32 * KB * 7), self.touch(sWD, sH8, 32 * KB), self.touch(sWD, sH8, 48 * KB)], 6, 24)
        self.wstream(self.pair_items(ACC[1], self.CSG + 8), 80, allw, RING, ev, epi(0),
                     {2: net + ["s_barrier"], 10: [lambda: (E.wait(vm=self.gu_tok[3]), E("s_barrier"))], 74: [lambda: (E.wait(vm=tok[4]), E("s_barrier"))]}, budget=nv, tag=f"p1{L}")
        self.stamp(f"L{L} P4 p1")
        ev = {}; pre = {}
        for ks in range(40): ev.setdefault(2 * ks + 1, []).append(lambda ks=ks: self.pool.put(AG + self.xr(ks)))
        n2 = min(len(self.wdq), o.get("wd42", 20))
        spread(ev, self.wd(n2), 3, 2.1)
        hp, hc = o.get("hp0", 22), o.get("hc0", 44)
        ev.setdefault(o.get("hs0", 2), []).append(self.signal(sTP, self.T(2, L), lambda: st[0]))
        if L == 0: spread(ev, [self.touch(sWQ, sH16, 32 * KB * k) for k in range(2)], 30, 30)
        ev.setdefault(hp, []).append(self.poll_issue(sTC, self.T(2, L)))
        pre.setdefault(hc, []).append(self.poll_check(sTC, self.T(2, L), 8))
        spread(ev, [hload(stp, i) for stp in range(4) for i in range(4)], max(hc + 1, 3 + 2.1 * n2), 2.2)
        if not sh: ev.setdefault(o.get("hs1", 81), []).append(self.signal(sTP, self.T(3, L), lambda: st[1]))
        self.wstream(self.pair_items(ACC[0], self.CSG + 16), 160, allw, RING, ev, epi(1), pre, budget=nv, tag=f"p2{L}")
        self.stamp(f"L{L} P4 p2")
        ep = epi_pk(2)
        for k, x in enumerate(ep):
            self.do(x)
            if k == o.get("hp1", 70) and not sh: E(self.poll_issue(sTC, self.T(3, L)))
            elif k % 12 == 6 and k < 40 and self.wdq and self.pool.free: self.wd(1)[0]()
        self.stamp(f"L{L} P4 done")
    def p5(self, L):
        E = self.E; o = self.o
        ACC = [48, 68, 88, vRES]
        E("s_barrier")
        ev = {}; pre = {}; sh = o.get("senth", 0); vals = None; val1 = {}
        if sh:
            r1 = [108 + 4 * i for i in range(7)] + [144 + 4 * i for i in range(7)] + [136, 140]
            l1 = [[self.hload(stp, i, r1.pop(0)) for i in range(4)] for stp in range(4, 8)]
            l2 = [[self.hload(stp, i, 176 + 16 * i + 4 * (stp - 8)) for stp in range(8, 12)] for i in range(4)]
            rl = lambda x: [y.replace(f"s{sE_}", f"s{sP}") for y in x]
            for k in range(4): val1[4 + k] = self.validate([self.HF[(4 + k, i)] for i in range(4)], rl(l1[k]), 172)
            vals = [self.validate([self.HF[(stp, i)] for stp in range(8, 12)], rl(l2[i]), 172) for i in range(4)]
            val1[8] = vals[0]
            rest = sum(l1, []) + self.wd(60)
            nl = o.get("h2late", 4)
            l2f = sum(l2, []); late2 = l2f[16 - nl:]
            h2s = o.get("h2s", 104)
            spread(ev, rest, o.get("h1s", 2), (h2s - 4) / len(rest))
            spread(ev, l2f[:16 - nl], h2s, (150 - h2s) / (16 - nl))
        else:
            self.pool.add([108 + 4 * i for i in range(7)] + [144 + 4 * i for i in range(8)])
            hc1 = o.get("hc1", 30)
            pre.setdefault(hc1, []).append(self.poll_check(sTC, self.T(3, L), 8))
            spread(ev, [self.hload(stp, i) for stp in range(4, 8) for i in range(4)] + self.wd(60), hc1, o.get('h1S', 32) / 10)
            ev.setdefault(o.get("hs2", 44), []).append(self.signal(sTP, self.T(4, L), self.htok[2]))
            hp, hc = o.get("hp2", 76), o.get("hc2", 112)
            ev.setdefault(hp, []).append(self.poll_issue(sTC, self.T(4, L)))
            pre.setdefault(hc, []).append(self.poll_check(sTC, self.T(4, L), 8))
            spread(ev, [self.hload(stp, i) for i in range(4) for stp in range(8, 12)], hc, o.get('h2S', 29) / 10)
        self.wq_tok = []; dm = []
        if L == 0:
            for c in range(10): dm += self.dma4(sWQ, 16 * KB * c, 16 * KB * c, self.wq_tok)
            spread(ev, [self.touch(sWQ, sH16, 32 * KB * k) for k in range(2, 5)], 30, 36)
            if not sh: spread(ev, dm[:4], 96, 4); dm = dm[4:]
        sl = 0; q = []
        for stp in range(8):
            for i in range(4):
                for nt in range(5):
                    self.fine(f"d{L}", sl)
                    for g in pre.pop(sl, []): self.do(g)
                    d = ACC[i] + 4 * nt
                    E(f"v_mfma_f32_16x16x32_bf16 {v(d,4)}, {R(self.WDF[5*stp+nt],4)}, {R(self.HF[(stp,i)],4)}, {'0' if stp == 0 and i < 3 else v(d,4)}")
                    for g in ev.pop(sl, []): q += self.flat(g)
                    vv = val1.get(stp + 1)
                    if vv and 20 - sl % 20 <= len(vv): self.do(vv.pop(0))
                    elif q and (nt != 4 or len(q) > 3): self.do(q.pop(0))
                    sl += 1
                if self.HF[(stp, i)] >= AG or (self.HF[(stp, i)] < 176 and not sh): self.pool.put(self.HF[(stp, i)])
            for nt in range(5):
                qq = self.WDF[5 * stp + nt]
                assert not (sh and 176 <= qq < 244 and stp > 3)
                if qq >= AG or qq < 176: self.pool.put(qq)
        for k in sorted(ev):
            for g in ev[k]: q.append(g)
        for g in q: self.do(g)
        assert not pre
        self.stamp("  8 steps")
        PT = 108 if sh else 176
        live = [self.WDF[f] for f in range(40, 60)] + [self.HF[(stp, i)] for stp in range(8, 12) for i in range(4)]
        assert not [q for q in live if PT <= q < PT + 60], live
        steps = [([self.WDF[5 * stp + nt] for nt in range(5)], [self.HF[(stp, i)] for i in range(4)]) for stp in range(8, 12)]
        bg = (late2 if sh else []) + dm[:12]; dm = dm[12:]
        n = o.get("wq5", 16 if sh else 12)
        post = (self.cs_loads(CSQ, 4 * KB, 4, 136) if L == 0 else []) + dm[:n]
        self.wq_late = dm[n:]
        self.reduce_and_publish(ACC, steps, 100 * KB, PT, 2 * L + 2, 512 + 4 * L, L == 1, bg, post, bg0=0, bgstep=4, vals=vals)
        self.stamp(f"L{L} P5 done")
    def finish(self):
        E = self.E
        E(f"s_or_b32 s{sA}, s{sR}, s{sJ}\ns_or_b32 s{sA}, s{sA}, s{sW}\ns_cmp_eq_u32 s{sA}, 0\ns_cselect_b32 s{sA}, 0, {OOB}")
        E(f"v_add_u32 v48, s{sA}, v{vSIG}\nv_mov_b32 v49, s0\ns_mov_b32 s{sA}, {EPOCH}\nbuffer_store_dword v49, v48, {s(WS,4)}, s{sA} offen sc1")
        if self.o.get("echo"):
            E(f"s_sub_u32 s{sA}, s{sTS+2}, s{sTS}\ns_mul_i32 s{sA}, s{sA}, {self.o.get('emul', 1)}\ns_add_u32 s{sA}, s{sA}, {self.o.get('eadd', 0)}\ns_memrealtime {s(sTS,2)}"); E.wait_smem()
            E.place("ECHO")
            E(f"s_memrealtime {s(sTS+2,2)}"); E.wait_smem()
            E(f"s_sub_u32 s{sB}, s{sTS+2}, s{sTS}\ns_cmp_lt_u32 s{sB}, s{sA}\ns_cbranch_scc1 ECHO")
        if self.stamps:
            E(f"v_readlane_b32 s{sB}, v{vTS2}, 63\ns_lshl_b32 s{sA}, s{sB}, 2\ns_add_u32 s{sA}, s{sA}, s{sW}\ns_lshl_b32 s{sA}, s{sA}, 8\ns_add_u32 s{sA}, s{sA}, {DBG}")
            E(f"v_lshlrev_b32 v{vT}, 2, v0\nbuffer_store_dword v{vTS}, v{vT}, {s(WS,4)}, s{sA} offen")
            E(f"s_add_u32 s{sA}, s{sA}, 0x40000\nbuffer_store_dword v{vTS2}, v{vT}, {s(WS,4)}, s{sA} offen")
        E("s_endpgm")
        for t in self.tail: E.raw(t.rstrip("\n"))
        E.raw("main_end:")
    def build(self):
        E = self.E
        globals()["NX0"] = self.o.get("nx0", 10)
        globals()["FINAL"] = ("", "sc1", "nt", "sc0 sc1")[self.o.get("fin", 0)]
        g = globals(); ru = self.o.get("reuse", 7)
        if ru & 1: g["HB_STRIDE"] = 0
        if ru & 2: g["OB_STRIDE"] = 0
        if ru & 8: g["KV_STRIDE"] = 0
        E.raw("; @launch grid=(256,1,1) block=(256,1,1) lds=163840")
        E.raw('.amdgcn_target "amdgcn-amd-amdhsa--gfx950"')
        self.prologue()
        n = 0
        for L in range(2):
            for ph in (self.p1, self.p2, self.p3, self.p4, self.p5):
                if n < self.stop: ph(L)
                n += 1
        self.finish()
        kernel_desc(E, KNAME, 256, 256, 102)
        return E.text()

if __name__ == "__main__":
    out = sys.argv[1]
    opts = dict((k, int(x)) for k, x in (a_.split("=") for a_ in sys.argv[3:]))
    g = Gen(stamps=len(sys.argv) > 2 and sys.argv[2] == "ts", opts=opts, mapping="grp" if opts.get("grp") else "mix")
    t = g.build()
    open(out, "w").write(t)
    print(len(t), "bytes", g.E.ninst, "insts", g.E.nnop, "nop states", g.E.stats)
    if g.stamps: open(out + ".names", "w").write("\n".join(g.stnames))
```

```python
from emit import *
from layout import *

SRC1 = 32; SRC2 = 36; sONE = 40
t = list(range(41, 58))
sRHO, sSIG = 58, 59
sU, sS2 = 60, 61
sTK = 62
LDS1 = 0 * KB
LDS2 = 128 * KB
vTK = 248
vA2 = 232
OOB = 0x10000000
NRACE = 2

def split_hi_lo(E, x, t0, t1, d):
    E(f"v_cvt_pk_bf16_f32 v{d+1}, v{x}, 0")
    E(f"v_lshlrev_b32 v{t0}, 16, v{d+1}")
    E(f"v_sub_f32 v{t1}, v{x}, v{t0}")
    E(f"v_cvt_pk_bf16_f32 v{d}, v{t0}, v{t1}")

class Startup:
    def __init__(self, G, M):
        self.G = G; self.E = G.E; self.M = M
    def roles(self, pQ, pO, pG, pU, pD):
        E, M = self.E, self.M
        E(f"s_add_u32 s{sRHO}, s{M.sR}, s{M.sJ}\ns_and_b32 s{sRHO}, s{sRHO}, 15\ns_add_u32 s{sSIG}, s{sRHO}, 4\ns_and_b32 s{sSIG}, s{sSIG}, 15")
        E(f"s_mov_b32 s{SRC1}, s{pQ}\ns_mov_b32 s{SRC1+1}, s{pQ+1}\ns_mov_b32 s{SRC1+2}, {640*1920*2}\ns_mov_b32 s{SRC1+3}, 0x00020000")
        E(f"s_cmp_ge_u32 s{sSIG}, 4\ns_cselect_b64 {s(SRC2,2)}, {s(pU,2)}, {s(pG,2)}")
        E(f"s_cmp_ge_u32 s{sSIG}, 8\ns_cselect_b64 {s(SRC2,2)}, {s(pD,2)}, {s(SRC2,2)}")
        E(f"s_cmp_ge_u32 s{sSIG}, 14\ns_cselect_b64 {s(SRC2,2)}, {s(pO,2)}, {s(SRC2,2)}\ns_cselect_b32 s{SRC2+2}, {640*640*2}, 0")
        E(f"s_cselect_b32 s{t[0]}, 0, {640*1536*2}\ns_add_u32 s{SRC2+2}, s{SRC2+2}, s{t[0]}\ns_mov_b32 s{SRC2+3}, 0x00020000\ns_mov_b32 s{sONE}, 0x3f803f80")
    def s1_load(self):
        E, M = self.E, self.M
        E("v_mul_u32_u24 v48, 6554, v0\nv_lshrrev_b32 v48, 16, v48\nv_mul_u32_u24 v49, 10, v48\nv_sub_u32 v49, v0, v49")
        E("v_mul_u32_u24 v48, 3840, v48\nv_lshl_add_u32 v50, v49, 4, v48")
        E(f"s_lshr_b32 s{t[1]}, s{sRHO}, 2\ns_and_b32 s{t[2]}, s{sRHO}, 3\ns_lshl_b32 s{t[2]}, s{t[2]}, 1\ns_add_u32 s{t[2]}, s{t[2]}, s{M.sTH}")
        E(f"s_mul_i32 s{t[3]}, s{t[1]}, 1280\ns_mul_i32 s{t[4]}, s{M.sNB}, 160\ns_add_u32 s{t[3]}, s{t[3]}, s{t[4]}")
        E(f"s_lshl_b32 s{t[4]}, s{t[2]}, 2\ns_add_u32 s{t[4]}, s{t[4]}, s{M.sW}\ns_mul_i32 s{t[4]}, s{t[4]}, {20*3840}\ns_add_u32 s{t[3]}, s{t[3]}, s{t[4]}")
        E(f"s_cmp_ge_u32 s{sRHO}, 12\ns_cselect_b32 s{t[4]}, {OOB}, 0\nv_add_u32 v50, s{t[4]}, v50")
        E(f"s_mul_i32 s{t[4]}, s{M.sW}, 3200\ns_mov_b32 exec_hi, 0x3ffff")
        for i in range(4):
            E(f"s_add_u32 m0, s{t[4]}, {LDS1 + 800*i}")
            if i: E(f"s_add_u32 s{t[3]}, s{t[3]}, {5*3840}")
            self.tok1 = E(f"buffer_load_dwordx4 v50, {s(SRC1,4)}, s{t[3]} offen {'nt' if self.G.o.get('nt1', 1) else ''} lds")
        E("s_mov_b32 exec_hi, -1")
    def leader_clear(self):
        E, M = self.E, self.M
        L = E.label("LC")
        E(f"s_cmp_lg_u32 s{sRHO}, 15\ns_cbranch_scc1 {L}")
        E("v_mov_b32 v60, 0\nv_mov_b32 v61, 0\nv_mov_b32 v62, 0\nv_mov_b32 v63, 0")
        E(f"s_mul_i32 s{t[3]}, s{M.sR}, {ASTR}\ns_lshr_b32 s{t[4]}, s{M.sW}, 1\ns_lshl_b32 s{t[4]}, s{t[4]}, 14\ns_add_u32 s{t[3]}, s{t[3]}, s{t[4]}")
        E(f"s_and_b32 s{t[4]}, s{M.sW}, 1\ns_lshl_b32 s{t[4]}, s{t[4]}, 12\ns_add_u32 s{t[3]}, s{t[3]}, s{t[4]}\ns_add_u32 s{t[3]}, s{t[3]}, {ARENA + A_CNT}\ns_add_u32 s{t[4]}, s{t[3]}, 8192")
        for b_ in (3, 4):
            for k in range(4): E(f"buffer_store_dwordx4 v[60:63], v{M.vL16}, {s(M.WS,4)}, s{t[b_]} offen offset:{1024*k} sc1", count=False)
        E.raw(f"s_load_dword s{t[16]}, {s(M.WS,2)}, s{t[3]} offset:0x8000")
        E.place(L); E.hist = []
        E("s_nop 1")
    def x_touch(self):
        E, M = self.E, self.M
        E(f"s_lshl_b32 s{t[4]}, s{M.sR}, 4\ns_add_u32 s{t[4]}, s{t[4]}, s{M.sJ}\ns_lshl_b32 s{t[4]}, s{t[4]}, 2\ns_add_u32 s{t[4]}, s{t[4]}, s{M.sW}\ns_mul_i32 s{t[4]}, s{t[4]}, 2560")
        E(f"v_min_u32 v51, 19, v0\nv_lshlrev_b32 v51, 7, v51\nbuffer_load_dword v246, v51, {s(M.XIN,4)}, s{t[4]} offen")
    def s2_addrs(self):
        E, M = self.E, self.M
        a_, b_, c_, d_, e_ = t[5], t[6], t[7], t[8], t[9]
        E(f"s_mov_b32 s{b_}, 6554\ns_cmp_lt_u32 s{sSIG}, 8\ns_cselect_b32 s{a_}, 24, 10\ns_cselect_b32 s{b_}, 2731, s{b_}\ns_cselect_b32 s{d_}, s{M.sW}, 0")
        E(f"v_mov_b32 v55, {OOB}")
        E(f"s_mov_b32 s{e_}, 1280\ns_cselect_b32 s{c_}, 3072, s{e_}\ns_lshl_b32 s{d_}, s{d_}, 9")
        E(f"s_cmp_ge_u32 s{sSIG}, 14\ns_cselect_b32 s{e_}, 50, 40\ns_lshl_b32 s{e_}, s{e_}, 3\ns_cmp_lt_u32 s{sSIG}, 8\ns_cselect_b32 s{e_}, 1920, s{e_}")
        for i in range(8):
            E(f"v_add_u32 v52, s{d_}, v0\nv_mul_u32_u24 v53, s{b_}, v52\nv_lshrrev_b32 v53, 16, v53\nv_mul_u32_u24 v54, s{a_}, v53\nv_sub_u32 v54, v52, v54")
            E(f"v_mul_u32_u24 v53, s{c_}, v53\nv_lshl_add_u32 v53, v54, 4, v53\nv_cmp_gt_u32 vcc, s{e_}, v52\nv_cndmask_b32 v{vA2+i}, v55, v53, vcc\ns_add_u32 s{d_}, s{d_}, 64")
        E(f"s_and_b32 s{a_}, s{sSIG}, 3\ns_lshl_b32 s{a_}, s{a_}, 1\ns_add_u32 s{a_}, s{a_}, s{M.sTH}\ns_mul_i32 s{a_}, s{a_}, {80*3072}\ns_mul_i32 s{b_}, s{M.sNB}, 384\ns_add_u32 s{a_}, s{a_}, s{b_}")
        E(f"s_cmp_ge_u32 s{sSIG}, 14\ns_cselect_b32 s{b_}, 2, 6\ns_cselect_b32 s{c_}, 14, 8\ns_cselect_b32 s{d_}, 40, 32")
        E(f"s_mul_i32 s{b_}, s{b_}, s{M.sTH}\ns_add_u32 s{b_}, s{b_}, s{sSIG}\ns_sub_u32 s{b_}, s{b_}, s{c_}\ns_lshl_b32 s{b_}, s{b_}, 2\ns_add_u32 s{sU}, s{b_}, s{M.sW}")
        E(f"s_mul_i32 s{b_}, s{sU}, s{d_}\ns_mul_i32 s{b_}, s{b_}, 1280\ns_mul_i32 s{c_}, s{M.sNB}, 160\ns_add_u32 s{b_}, s{b_}, s{c_}")
        E(f"s_cmp_lt_u32 s{sSIG}, 8\ns_cselect_b32 s{sS2}, s{a_}, s{b_}")
    def s2_load(self, i):
        M = self.M
        return f"s_lshl_b32 s{t[0]}, s{M.sLW}, 1\ns_add_u32 m0, s{t[0]}, {LDS2 + 1024*i}\nbuffer_load_dwordx4 v{vA2+i}, {s(SRC2,4)}, s{sS2} offen {'nt' if self.G.o.get('nt2', 1) else ''} lds"
    def s1_proc(self):
        E, M = self.E, self.M
        Lz, Lend = E.label("WZ"), E.label("WQ")
        E(f"s_cmp_ge_u32 s{sRHO}, 12\ns_cbranch_scc1 {Lz}")
        E("v_lshrrev_b32 v48, 4, v0\nv_bfe_u32 v49, v0, 2, 2\nv_lshl_add_u32 v48, v48, 3, v49\nv_mul_u32_u24 v48, 160, v48")
        E(f"v_bfe_u32 v49, v0, 1, 1\nv_mul_u32_u24 v49, 80, v49\nv_add3_u32 v48, v48, v49, {LDS1}\nv_and_b32 v49, 1, v0")
        E(f"v_bfe_u32 v52, v0, 3, 1\nv_mul_u32_u24 v59, {160*KB}, v52\nv_lshlrev_b32 v54, 12, v52\nv_bfe_u32 v52, v0, 4, 1\nv_lshl_add_u32 v59, v52, 9, v59")
        E("v_and_b32 v52, 7, v0\nv_lshl_add_u32 v59, v52, 4, v59\nv_lshl_add_u32 v54, v52, 4, v54\nv_lshrrev_b32 v52, 4, v0\nv_lshl_add_u32 v54, v52, 28, v54")
        E(f"s_cmp_eq_u32 s{t[1]}, 0\ns_cselect_b32 s{t[5]}, 10, 0\ns_cmp_eq_u32 s{t[1]}, 2\ns_cselect_b32 s{t[5]}, 5, s{t[5]}")
        E(f"s_mul_i32 s{t[6]}, s{M.sNB}, {320*KB}\ns_add_u32 s{t[6]}, s{t[6]}, {WQ}")
        E(f"s_lshl_b32 s{t[7]}, s{M.sNB}, 13\ns_mul_i32 s{t[8]}, s{t[2]}, 0x84\ns_and_b32 s{t[8]}, s{t[8]}, 0x20c\ns_add_u32 s{t[7]}, s{t[7]}, s{t[8]}\ns_add_u32 s{t[7]}, s{t[7]}, {CSQ}")
        done0 = E.vm_done
        for rnd in range(2):
            if rnd == 0:
                E(f"s_and_b32 s{t[8]}, s{M.sW}, 1\ns_lshl_b32 s{t[8]}, s{t[8]}, 3\ns_lshr_b32 s{t[9]}, s{M.sW}, 1\ns_lshl_b32 s{t[9]}, s{t[9]}, 5\ns_add_u32 s{t[8]}, s{t[8]}, s{t[9]}")
                E(f"s_cmp_eq_u32 s{M.sW}, 2\ns_cselect_b32 s{t[9]}, 40, 16\ns_add_u32 s{t[10]}, s{t[5]}, s{M.sW}")
            else:
                E(f"s_cmp_lg_u32 s{M.sW}, 3\ns_cbranch_scc1 {Lend}")
                E(f"s_mov_b32 s{t[8]}, 48\ns_mov_b32 s{t[9]}, 16\ns_add_u32 s{t[10]}, s{t[5]}, 4")
            E(f"v_mul_u32_u24 v55, s{t[9]}, v49\nv_add3_u32 v55, v55, v48, s{t[8]}")
            E(f"s_cmp_ge_u32 s{t[10]}, 8\ns_cselect_b32 s{t[14]}, 1, 2\ns_cselect_b32 s{t[15]}, 40, 1\ns_cselect_b32 s{t[11]}, {80*KB}, 0\ns_lshl_b32 s{t[14]}, s{t[14]}, 10")
            E(f"s_mul_i32 s{t[12]}, s{t[2]}, 5\ns_mul_i32 s{t[12]}, s{t[12]}, s{t[14]}\ns_add_u32 s{t[11]}, s{t[11]}, s{t[12]}")
            E(f"v_lshrrev_b32 v53, 5, v0\nv_mad_u32_u24 v51, v53, s{t[14]}, v59\nv_lshl_add_u32 v53, v53, 28, v51\ns_lshl_b32 s{t[14]}, s{t[14]}, 1")
            E(f"s_bfe_u32 s{t[12]}, s{t[10]}, 0x10002\ns_mul_i32 s{t[12]}, s{t[12]}, s{t[15]}\ns_lshl_b32 s{t[12]}, s{t[12]}, 10")
            E(f"s_add_u32 s{t[11]}, s{t[11]}, s{t[12]}\ns_and_b32 s{t[12]}, s{t[10]}, 3\ns_lshl_b32 s{t[12]}, s{t[12]}, 7\ns_add_u32 s{t[11]}, s{t[11]}, s{t[12]}\ns_add_u32 s{t[11]}, s{t[11]}, s{t[6]}")
            E(f"s_lshr_b32 s{t[13]}, s{t[10]}, 2\ns_lshl_b32 s{t[13]}, s{t[13]}, 10\ns_add_u32 s{t[12]}, s{t[12]}, s{t[13]}\ns_add_u32 s{t[12]}, s{t[12]}, s{t[7]}")
            if rnd == 0:
                E.wait(vm=self.tok1); E("s_barrier")
            d0 = 60 + 16 * rnd
            for y in range(3):
                for rd in range(2): E(f"ds_read_b64_tr_b16 {v(d0+4*y+2*rd,2)}, v55 offset:{(32*y+4*rd)*160}")
            for y in range(3):
                E(f"buffer_store_dwordx4 {v(d0+4*y,4)}, v{53 if y == 2 else 51}, {s(M.WS,4)}, s{t[11]} offen sc1", count=False)
                if y < 2: E(f"s_add_u32 s{t[11]}, s{t[11]}, s{t[14]}")
            E("v_mov_b32 v56, 0")
            for y in range(3):
                if y == 2: E("s_mov_b32 exec_hi, 0")
                for e in range(4): E(f"v_dot2c_f32_bf16 v56, s{sONE}, v{d0+4*y+e}")
            E("s_mov_b32 exec_hi, -1")
            for sw in ("v_permlane32_swap_b32", "v_permlane16_swap_b32"):
                E(f"v_mov_b32 v57, v56\n{sw} v57, v56\nv_add_f32 v56, v57, v56")
            split_hi_lo(E, 56, 57, 58, d0 + 12)
            E(f"buffer_store_dword v{d0+12}, v54, {s(M.WS,4)}, s{t[12]} offen sc1", count=False)
        E(f"s_branch {Lend}")
        E.place(Lz); E.hist = []
        E(f"s_cmp_lg_u32 s{sRHO}, 15\ns_cbranch_scc1 {Lend}")
        E(f"s_mov_b32 s{t[5]}, s{t[3]}\ns_add_u32 s{t[6]}, s{t[3]}, 8192")
        E(f"s_mov_b32 s{t[7]}, 0\ns_waitcnt vmcnt(0)")
        E("s_memtime s[50:51]"); E.wait_smem()
        for k in range(self.G.o.get("nrace", NRACE)):
            E(f"s_load_dword s49, {s(M.WS,2)}, s{t[5]} offset:{1152*k} glc"); E.wait_smem()
            E("s_memtime s[52:53]"); E.wait_smem()
            E(f"s_sub_u32 s54, s52, s50\ns_load_dword s49, {s(M.WS,2)}, s{t[6]} offset:{1152*k} glc"); E.wait_smem()
            E("s_memtime s[50:51]"); E.wait_smem()
            E(f"s_sub_u32 s55, s50, s52\ns_cmp_lt_u32 s55, s54\ns_addc_u32 s{t[7]}, s{t[7]}, 0")
        E(f"s_lshl_b32 s{t[5]}, s{M.sR}, 5\ns_add_u32 s{t[5]}, s{t[5]}, s{M.sW}\ns_lshl_b32 s{t[5]}, s{t[5]}, 2\ns_add_u32 s{t[5]}, s{t[5]}, {VOTE}\nv_mov_b32 v60, s{t[7]}")
        E(f"buffer_store_dword v60, v{M.vSIG}, {s(M.WS,4)}, s{t[5]} offen sc1", count=False)
        E.place(Lend); E.hist = []; E.vm_done = done0
        E("s_nop 1")
    def flag(self, code):
        E, M = self.E, self.M
        L = E.label("FG")
        E(f"s_cmp_lg_u32 s{M.sW}, 0\ns_cbranch_scc1 {L}")
        E(code)
        E(f"buffer_store_dwordx2 {v(vTK,2)}, v{M.vSIG}, {s(M.WS,4)}, s{M.sA} offen sc1", count=False)
        E.place(L)
    def flag1(self):
        M = self.M
        self.flag(f"s_lshl_b32 s{M.sA}, s{M.sJ}, 4\ns_add_u32 s{M.sA}, s{M.sA}, s{sRHO}\ns_lshl_b32 s{M.sA}, s{M.sA}, 7\ns_add_u32 s{M.sA}, s{M.sA}, {F1}")
    def flag2(self):
        M = self.M
        self.flag(f"s_lshl_b32 s{M.sA}, s{M.sJ}, 4\ns_add_u32 s{M.sA}, s{M.sA}, s{M.sR}\ns_lshl_b32 s{M.sA}, s{M.sA}, 7\ns_add_u32 s{M.sA}, s{M.sA}, {F2}")
    def vpoll_issue(self, addr, dst):
        return f"buffer_load_dwordx2 {v(dst,2)}, v{addr}, {s(self.M.WS,4)}, 0 offen sc1"
    def vpoll_check(self, addr, dst, slp):
        def fn():
            E, M = self.E, self.M
            Ls, Lb = E.label("VS"), E.label("VB")
            E(f"v_cmp_ne_u64 vcc, {v(dst,2)}, {v(vTK,2)}\ns_cbranch_vccnz {Ls}")
            E.place(Lb)
            self.G.tail.append(f"{Ls}:\ns_mov_b32 s{M.sF}, 0x100000\n{Ls}_l:\ns_sleep {slp}\n{self.vpoll_issue(addr, dst)}\ns_waitcnt vmcnt(0)\n"
                               f"v_cmp_ne_u64 vcc, {v(dst,2)}, {v(vTK,2)}\ns_nop 1\ns_cbranch_vccz {Lb}\ns_sub_u32 s{M.sF}, s{M.sF}, 1\ns_cmp_lg_u32 s{M.sF}, 0\n"
                               f"s_cbranch_scc1 {Ls}_l\ns_branch {Lb}")
        return fn
    def s2_prep(self):
        E, M = self.E, self.M
        Ld, Lo, Le = E.label("S2"), E.label("S2"), E.label("S2")
        AD = 224; B = 176; C = 168; u = [t[0]] + t[10:16]; u = {0: t[0], 1: t[10], 2: t[11], 3: t[12], 4: t[13], 5: t[14], 6: t[15]}
        for i in range(11): E(f"v_mov_b32 v{AD+i}, {OOB}")
        E(f"s_lshl_b32 s{u[0]}, s{M.sLW}, 1\ns_add_u32 s{u[0]}, s{u[0]}, {LDS2}")
        E(f"s_cmp_ge_u32 s{sSIG}, 14\ns_cbranch_scc1 {Lo}\ns_cmp_ge_u32 s{sSIG}, 8\ns_cbranch_scc1 {Ld}")
        E(f"s_cmp_eq_u32 s{M.sW}, 3\ns_cbranch_scc1 {Le}")
        E(f"v_bfe_u32 v{B}, v0, 2, 2\nv_lshrrev_b32 v{B+1}, 5, v0\nv_lshl_add_u32 v{B}, v{B+1}, 3, v{B}\nv_mul_u32_u24 v{B}, 384, v{B}")
        E(f"v_bfe_u32 v{B+1}, v0, 4, 1\nv_lshl_add_u32 v{B}, v{B+1}, 5, v{B}\nv_and_b32 v{B+1}, 1, v0\nv_lshl_add_u32 v{B}, v{B+1}, 4, v{B}")
        E(f"v_bfe_u32 v{B+1}, v0, 1, 1\nv_lshl_add_u32 v{B}, v{B+1}, 3, v{B}\ns_lshl_b32 s{u[1]}, s{M.sW}, 6\ns_add_u32 s{u[1]}, s{u[1]}, {LDS2}\nv_add_u32 v{B}, s{u[1]}, v{B}")
        E(f"v_lshrrev_b32 v{B+1}, 5, v0\nv_mul_u32_u24 v{B+1}, {6*KB - 512}, v{B+1}\nv_add_u32 v{B+1}, v{B+1}, v{M.vL16}")
        E(f"s_mul_i32 s{u[1]}, s{M.sNB}, 6\ns_add_u32 s{u[1]}, s{u[1]}, s{M.sW}\ns_lshr_b32 s{u[2]}, s{sSIG}, 2\ns_lshl_b32 s{u[2]}, s{u[2]}, 10")
        E(f"s_and_b32 s{u[5]}, s{sSIG}, 3\ns_lshl_b32 s{u[5]}, s{u[5]}, 1\ns_add_u32 s{u[5]}, s{u[5]}, s{M.sTH}")
        E(f"s_mul_i32 s{u[3]}, s{u[1]}, {80*KB}\ns_mul_i32 s{u[4]}, s{u[5]}, {10*KB}\ns_add_u32 s{u[3]}, s{u[3]}, s{u[4]}\ns_add_u32 s{u[3]}, s{u[3]}, s{u[2]}\ns_add_u32 s{u[3]}, s{u[3]}, {WGU}")
        E(f"s_lshl_b32 s{u[4]}, s{u[1]}, 11\ns_add_u32 s{u[4]}, s{u[4]}, s{u[2]}\ns_mul_i32 s{u[2]}, s{u[5]}, 0x84\ns_and_b32 s{u[2]}, s{u[2]}, 0x20c\ns_add_u32 s{u[4]}, s{u[4]}, s{u[2]}\ns_add_u32 s{u[4]}, s{u[4]}, {CSG}")
        E(f"v_add_u32 v{AD}, s{u[3]}, v{M.vL16}\nv_add_u32 v{AD+10}, s{u[4]}, v{B+1}")
        for k in range(1, 10): E(f"v_add_u32 v{AD+k}, {240*KB*(k // 5) + 2048*(k % 5)}, v{AD}")
        E(f"s_branch {Le}")
        E.place(Ld); E.hist = []
        E(f"v_bfe_u32 v{B}, v0, 2, 2\nv_lshrrev_b32 v{B+1}, 4, v0\nv_lshl_add_u32 v{B}, v{B+1}, 3, v{B}\nv_mul_u32_u24 v{B}, 160, v{B}")
        E(f"v_add_u32 v{B}, s{u[0]}, v{B}\nv_and_b32 v{B+2}, 3, v0\nv_lshl_add_u32 v{B+1}, v{B+2}, 3, v{B}\nv_lshl_add_u32 v{B}, v{B+2}, 5, v{B}")
        E(f"v_mov_b32 v{C}, s{u[0]}\nv_mov_b32 v{C+1}, s{u[0]}")
        E(f"s_mul_i32 s{u[1]}, s{sU}, 21846\ns_lshr_b32 s{u[1]}, s{u[1]}, 16\ns_mul_i32 s{u[3]}, s{u[1]}, 3\ns_sub_u32 s{u[3]}, s{sU}, s{u[3]}")
        E(f"s_lshl_b32 s{u[3]}, s{u[3]}, 2\ns_and_b32 s{u[4]}, s{u[1]}, 3\ns_add_u32 s{u[3]}, s{u[3]}, s{u[4]}\ns_mul_i32 s{u[3]}, s{u[3]}, {5*KB}")
        E(f"s_lshr_b32 s{u[4]}, s{u[1]}, 2\ns_mul_i32 s{u[4]}, s{u[4]}, {60*KB}\ns_add_u32 s{u[3]}, s{u[3]}, s{u[4]}")
        E(f"s_mul_i32 s{u[4]}, s{M.sNB}, {240*KB}\ns_add_u32 s{u[3]}, s{u[3]}, s{u[4]}\ns_add_u32 s{u[3]}, s{u[3]}, {WD}")
        E(f"v_add_u32 v{AD}, s{u[3]}, v{M.vL16}")
        for nt in range(1, 5): E(f"v_add_u32 v{AD+nt}, {1024*nt}, v{AD}")
        E(f"s_branch {Le}")
        E.place(Lo); E.hist = []
        E(f"v_lshrrev_b32 v{B+2}, 4, v0\nv_and_b32 v{B+3}, 1, v{B+2}\nv_lshrrev_b32 v{B+4}, 5, v0\nv_mul_u32_u24 v{B+5}, 20, v{B+4}\nv_lshl_add_u32 v{B+5}, v{B+3}, 3, v{B+5}")
        E(f"v_bfe_u32 v{B}, v0, 2, 2\nv_add_u32 v{B+5}, v{B+5}, v{B}\nv_mul_u32_u24 v{B+5}, 160, v{B+5}\nv_add_u32 v{B+5}, s{u[0]}, v{B+5}")
        E(f"v_and_b32 v{B+6}, 3, v0\nv_mul_u32_u24 v{B}, 160, v{B}\nv_add_u32 v{B+7}, s{u[0]}, v{B}")
        E(f"v_lshl_add_u32 v{B}, v{B+6}, 5, v{B+5}\nv_lshl_add_u32 v{B+1}, v{B+6}, 3, v{B+5}")
        E(f"v_lshl_add_u32 v{C}, v{B+6}, 5, v{B+7}\nv_lshl_add_u32 v{C}, v{B+2}, 3, v{C}\nv_lshl_add_u32 v{C+1}, v{B+6}, 3, v{B+7}")
        E(f"v_and_b32 v{C+2}, 15, v0\nv_lshlrev_b32 v{C+2}, 4, v{C+2}\nv_mul_u32_u24 v{C+3}, {10*KB}, v{B+4}\nv_lshl_add_u32 v{C+3}, v{B+3}, 8, v{C+3}\nv_add_u32 v{C+3}, v{C+3}, v{C+2}")
        E(f"v_lshl_add_u32 v{C+4}, v{B+2}, 10, v{C+2}\nv_lshl_add_u32 v{C+5}, v{B+2}, 28, v{C+2}")
        E(f"s_lshr_b32 s{u[1]}, s{sU}, 2\ns_mul_i32 s{u[1]}, s{u[1]}, {25*KB}\ns_mul_i32 s{u[3]}, s{M.sNB}, {100*KB}\ns_add_u32 s{u[1]}, s{u[1]}, s{u[3]}\ns_add_u32 s{u[1]}, s{u[1]}, {WO}")
        E(f"s_lshr_b32 s{u[3]}, s{M.sW}, 1\ns_mul_i32 s{u[3]}, s{u[3]}, {5*KB}\ns_and_b32 s{u[4]}, s{M.sW}, 1\ns_lshl_b32 s{u[4]}, s{u[4]}, 9\ns_add_u32 s{u[3]}, s{u[3]}, s{u[4]}")
        E(f"s_add_u32 s{u[3]}, s{u[3]}, s{u[1]}")
        E(f"s_lshl_b32 s{u[5]}, s{M.sW}, 8\ns_add_u32 s{u[5]}, s{u[5]}, s{u[1]}\ns_add_u32 s{u[5]}, s{u[5]}, {20*KB}\ns_add_u32 s{u[6]}, s{u[5]}, 4096")
        E(f"v_add_u32 v{AD}, s{u[3]}, v{C+3}\nv_add_u32 v{AD+5}, s{u[5]}, v{C+4}\nv_add_u32 v{AD+6}, s{u[6]}, v{C+5}")
        for nt in range(1, 5): E(f"v_add_u32 v{AD+nt}, {1024*nt}, v{AD}")
        E.place(Le); E.hist = []
        E("s_nop 1")
    def s2_read(self):
        E, M = self.E, self.M
        Ld, Le = E.label("S2"), E.label("S2")
        AD = 224; B = 176; C = 168
        E.drain(vm=False)
        E(f"s_cmp_ge_u32 s{sSIG}, 8\ns_cbranch_scc1 {Ld}\ns_cmp_eq_u32 s{M.sW}, 3\ns_cbranch_scc1 {Le}")
        for ks in range(10):
            for rd in range(2): E(f"ds_read_b64_tr_b16 {v(B+8+4*ks+2*rd,2)}, v{B} offset:{(16*(ks%5)+4*rd)*384 + 192*(ks//5)}")
        E(f"s_branch {Le}")
        E.place(Ld); E.hist = []; E.pend = {k: x for k, x in E.pend.items() if x[0] != "ds"}
        for nt in range(5):
            for rd in range(2): E(f"ds_read_b64_tr_b16 {v(B+8+4*nt+2*rd,2)}, v{B+1 if nt == 4 else B} offset:{4*rd*160 + (128 if nt == 4 else 8*nt)}")
        for rd in range(2): E(f"ds_read_b64_tr_b16 {v(B+28+2*rd,2)}, v{C} offset:{(16, 36)[rd]*160}")
        for rd in range(2): E(f"ds_read_b64_tr_b16 {v(B+32+2*rd,2)}, v{C+1} offset:{(16, 36)[rd]*160 + 128}")
        E.place(Le); E.hist = []
        E.drain(vm=False)
        cs = [f"v_mov_b32 v{B+2}, 0", f"v_mov_b32 v{B+3}, 0"]
        for k in range(20):
            cs += [f"v_lshlrev_b32 v{B+4}, 16, v{B+8+k}", f"v_lshlrev_b32 v{B+5}, 16, v{B+28+k}", f"v_add_f32 v{B+2}, v{B+2}, v{B+4}", f"v_add_f32 v{B+3}, v{B+3}, v{B+5}",
                   f"v_and_b32 v{B+4}, 0xffff0000, v{B+8+k}", f"v_and_b32 v{B+5}, 0xffff0000, v{B+28+k}", f"v_add_f32 v{B+2}, v{B+2}, v{B+4}", f"v_add_f32 v{B+3}, v{B+3}, v{B+5}"]
        cs += [f"v_permlane32_swap_b32 v{B+2}, v{B+3}", f"v_add_f32 v{B+2}, v{B+3}, v{B+2}",
               f"v_cvt_pk_bf16_f32 v{B+7}, v{B+2}, 0", f"v_lshlrev_b32 v{B+3}, 16, v{B+7}", f"v_sub_f32 v{B+4}, v{B+2}, v{B+3}", f"v_cvt_pk_bf16_f32 v{B+6}, v{B+3}, v{B+4}"]
        r = [f"buffer_store_dwordx4 {v(B+8+4*i,4)}, v{AD+i}, {s(M.WS,4)}, 0 offen sc1" for i in range(10)]
        return cs, r, lambda: setattr(self, "tok3", E(f"buffer_store_dword v{B+6}, v{AD+10}, {s(M.WS,4)}, 0 offen sc1"))
```

```python
import sys, math, struct
from emit import *
from layout import *
from startup6 import Startup, NRACE, sTK, vTK, sONE, sRHO, OOB
KNAME = "interleave_layers__sliding_block__glu_gated_geglu__prompt_kernel"

def f2u(x): return hex(struct.unpack("<I", struct.pack("<f", x))[0])

WS = 4; OUT = 8; XIN = 12
sR, sJ, sW, sTH, sNB = 16, 17, 18, 19, 20
sWQ, sWGU, sWO, sWD, sLW = 21, 22, 23, 24, 25
sXB, sKVme, sOme, sHme = 26, 27, 28, 29
sT0 = 30
sMASK = 32
sRET = 64
sT16 = 66; sT16H = 70
sA, sB, sC, sD, sE_, sF = 74, 75, 76, 77, 78, 79
sFL = 80
sHAL = 89
sKP, sKC, sKT = 91, 92, 3
sRM = 93
sTS = 94
sTP, sTC, sWP, sWC = 98, 99, 100, 101
sP = 2
vL16, vL16b, vL16c = 1, 2, 3
vU = 4; vPOS = 5; vST = 6; vCS = 7; vSIG = 8; vONE = 9
vRW = 10
vXW = 14; vXW5 = 15; vO4 = 16; vSW = 17; vRSTD = 18; vT = 19
vRES = 20
vNM = 40
vC1, vC2, vIV = 44, 45, 46
vKR = 47
vRM, vRM5, vTS, vTS2 = 250, 251, 252, 253
vP = 255; vDUM = 254; vSR = 255
sAR = 1
vTL = 7
sPV = 15
sH8, sH16, sHX = 12, 13, 14
SLOT = 5248; ONES = 12 * SLOT; EPS = 1e-5
AG = 256
EARLY = [216 + 4 * i for i in range(7)]
FINAL = ""
NX0 = 10

class Pool:
    def __init__(self, quads=()): self.free = list(quads)
    def get(self): return self.free.pop(0)
    def put(self, q): self.free.append(q)
    def add(self, qs): self.free += list(qs)

def spread(ev, groups, start, step):
    for i, g in enumerate(groups): ev.setdefault(int(start + i * step), []).append(g)

class Gen:
    def __init__(self, stop=99, stamps=False, mapping="mix", opts=None):
        self.E = Emit(); self.stop = stop; self.stamps = stamps; self.mapping = mapping
        self.sites = []; self.nst = 0; self.stnames = []; self.tail = []; self.o = opts or {}
    def do(self, g):
        if isinstance(g, tuple):
            for x in g: r = self.do(x)
            return r
        if callable(g): return g()
        return self.E(g)
    @staticmethod
    def flat(g):
        if isinstance(g, tuple): return list(g)
        if callable(g): return [g]
        l = g.split("\n")
        return [x for x in ("\n".join(l[:-1]), l[-1]) if x]
    def stamp(self, name):
        if self.o.get("verbose") == 2:
            print(f"{name:18s} issue cost {self.E.cost - getattr(self, 'c0', 0):6d}  vmem {self.E.stats.get('vmem', 0) - getattr(self, 'v0', 0)}"); self.c0 = self.E.cost; self.v0 = self.E.stats.get('vmem', 0)
        ec = self.o.get("echo", 0)
        if ec and name == ("", "WQ synced", "L0 halo in", "L0 P4 synced", "L1 P1 synced", "L1 P5 done", "L1 P4 synced", "L1 halo in", "L1 P3 synced", "L1 P4 p2", "L0 P3 synced")[ec]:
            self.E(f"s_memrealtime {s(sTS+2,2)}"); self.E.wait_smem()
        if not self.stamps or self.E.smem_out: return
        if self.o.get("ends") and name not in ("L1 P5 done", "L1 P1 synced", "WQ synced", "L0 P4 synced", "L1 P4 synced", "L0 P3 synced", "L1 P3 synced", "L0 halo in", "L1 halo in"): return
        E = self.E
        E(f"s_memrealtime {s(sTS,2)}\ns_memtime {s(sTS+2,2)}"); E.wait_smem()
        E(f"v_writelane_b32 v{vTS}, s{sTS}, {self.nst}\nv_writelane_b32 v{vTS2}, s{sTS+2}, {self.nst}")
        self.nst += 1; self.stnames.append(name)
    def dma4(self, sbase, goff, ldsoff, rec=None, fl="sc1"):
        g = [f"s_add_u32 m0, s{sLW}, {ldsoff}\ns_add_u32 s{sT0}, s{sbase}, {goff}\nbuffer_load_dwordx4 v{vL16}, {s(WS,4)}, s{sT0} offen {fl} lds"]
        for i in range(1, 4): g.append(f"buffer_load_dwordx4 v{vL16}, {s(WS,4)}, s{sT0} offen offset:{1024*i} {fl} lds")
        h = g[0].split("\n")
        def guarded(x, r):
            def fn():
                assert self.E.lastw["m0"] == h[0] and self.E.lastw[f"s{sT0}"] == h[1], "DMA group interleaved"
                t = self.E(x)
                if r is not None: r.append(t)
            return fn
        return [g[0], guarded(g[1], None), guarded(g[2], None), guarded(g[3], rec)]
    def wread(self, dst, ldsaddr):
        return f"ds_read_b128 {R(dst,4)}, v{vL16+(ldsaddr >> 16)} offset:{ldsaddr & 0xffff}"
    def signal(self, sreg, imm, tok, va=None):
        def fn():
            self.E.wait(vm=tok() if callable(tok) else tok)
            self.E(f"buffer_atomic_add v{vONE}, v{va or vSIG}, {s(WS,4)}, s{sreg} offen offset:{imm} sc1")
        return fn
    def poll_issue(self, sreg, imm):
        if self.o.get("spoll", 1): return f"s_load_dword s{sPV}, {s(WS,2)}, s{sreg} offset:{imm} glc"
        return f"buffer_load_dword v{vP}, v{vSIG}, {s(WS,4)}, s{sreg} offen offset:{imm} sc1"
    def poll_check(self, sreg, imm, thr, slp=None):
        def fn():
            E = self.E
            Ls, Lb = E.label("SP"), E.label("BK")
            sc = self.o.get("spoll", 1)
            assert E.lastw.get(f"s{sPV}") == self.poll_issue(sreg, imm), "poll checked without its load"
            E.lastw[f"s{sPV}"] = None
            if sc: E.wait_smem()
            else: E(f"v_readfirstlane_b32 s{sPV}, v{vP}")
            E(f"s_cmp_ge_u32 s{sPV}, {thr}\ns_cbranch_scc0 {Ls}")
            E.place(Lb)
            sl = self.o.get("slp", 0) if slp is None else slp
            cnt = ""
            if self.stamps and self.o.get("ends"):
                self.sites.append(f"{sreg}/{imm}")
                cnt = f"s_sub_u32 s{sPV}, 0x200001, s{sF}\nv_writelane_b32 v{vTS2}, s{sPV}, {12 + len(self.sites)}\n"
            self.tail.append(f"{Ls}:\ns_mov_b32 s{sF}, 0x200000\n{Ls}_l:\n" + cnt + (f"s_sleep {sl}\n" if sl else "") + self.poll_issue(sreg, imm) +
                             ("\ns_waitcnt lgkmcnt(0)\n" if sc else f"\ns_waitcnt vmcnt(0)\nv_readfirstlane_b32 s{sPV}, v{vP}\ns_nop 0\n") +
                             f"s_cmp_ge_u32 s{sPV}, {thr}\ns_cbranch_scc1 {Lb}\ns_sub_u32 s{sF}, s{sF}, 1\ns_cmp_lg_u32 s{sF}, 0\n"
                             f"s_cbranch_scc1 {Ls}_l\ns_branch {Lb}")
        return fn
    def validate(self, quads, reload, tmp):
        rs = [q + e for q in quads for e in range(4)]
        ops = [f"v_max3_u32 v{tmp}, v{rs[0]}, v{rs[1]}, v{rs[2]}"]
        rest = rs[3:]
        while rest:
            if len(rest) >= 2: ops.append(f"v_max3_u32 v{tmp}, v{rest[0]}, v{rest[1]}, v{tmp}"); rest = rest[2:]
            else: ops.append(f"v_max_u32 v{tmp}, v{rest[0]}, v{tmp}"); rest = []
        ops.append(f"v_cmp_eq_u32 vcc, -1, v{tmp}")
        def br():
            E = self.E
            Ls, Lb = E.label("RT"), E.label("RB")
            E(f"s_cbranch_vccnz {Ls}"); E.place(Lb)
            cnt = ""
            if self.stamps and self.o.get("ends"):
                self.sites.append("val")
                cnt = f"s_sub_u32 s{sTS}, 0x200001, s{sF}\nv_writelane_b32 v{vTS2}, s{sTS}, {12 + len(self.sites)}\n"
            self.tail.append(f"{Ls}:\ns_mov_b32 s{sF}, 0x200000\n{Ls}_l:\n" + cnt + "\n".join(reload) + "\ns_waitcnt vmcnt(0)\n" + "\n".join(ops) +
                             f"\ns_sub_u32 s{sF}, s{sF}, 1\ns_nop 0\ns_cbranch_vccz {Lb}\ns_cmp_lg_u32 s{sF}, 0\ns_cbranch_scc1 {Ls}_l\ns_branch {Lb}")
        g = ["\n".join(ops[k:k + 2]) for k in range(0, len(ops), 2)]
        n0 = len(self.E.out); g0 = g[0]
        def first():
            for q in quads:
                assert any(x.startswith(f"buffer_load_dwordx4 {v(q,4)},") for x in self.E.out[n0:]), q
            self.E(g0)
        return [first] + g[1:] + [br]
    def xpoison(self, idx, reg):
        if not self.o.get("early", 0): return []
        return [f"s_add_u32 s{sP}, s{sT16+3}, {self.xt(idx)}\ns_mul_i32 s{sF}, s{sNB}, {5*KB}\ns_add_u32 s{sP}, s{sP}, s{sF}\nbuffer_store_dwordx4 {v(reg,4)}, v{vXW}, {s(WS,4)}, s{sP} offen sc1",
                f"buffer_store_dwordx4 {v(reg,4)}, v{vXW}, {s(WS,4)}, s{sP} offen offset:512 sc1",
                f"s_add_u32 s{sP}, s{sP}, 4096\nbuffer_store_dwordx2 {v(reg,2)}, v{vXW5}, {s(WS,4)}, s{sP} offen sc1",
                f"s_lshl_b32 s{sP}, s{sR}, 4\ns_add_u32 s{sP}, s{sP}, s{sJ}\ns_lshl_b32 s{sP}, s{sP}, 2\ns_add_u32 s{sP}, s{sP}, s{sW}",
                f"s_lshl_b32 s{sP}, s{sP}, 7\ns_add_u32 s{sP}, s{sP}, {STAT + idx*128*KB}\nbuffer_store_dwordx2 {v(reg,2)}, v{vSW}, {s(WS,4)}, s{sP} offen sc1"]
    def nan_net(self, acc, xl, items, allw, ring, imm, stat):
        xr = self.xr
        def fn():
            E = self.E
            Ls, Lb = E.label("NN"), E.label("NB")
            E(f"v_cmp_{'o' if self.o.get('forcenan') else 'u'}_f32 vcc, v{acc}, v{acc}\ns_cbranch_vccnz {Ls}"); E.place(Lb)
            F = Emit(); F.raw(f"{Ls}:")
            if self.stamps and self.o.get("ends"):
                self.sites.append("nan"); F(f"s_mov_b32 s{sTS}, 1\nv_writelane_b32 v{vTS2}, s{sTS}, {12 + len(self.sites)}")
            F("s_waitcnt vmcnt(0) lgkmcnt(0)"); F.settle()
            F(f"s_mov_b32 s{sF}, 0x200000"); F.raw(f"{Ls}_p:")
            F(self.poll_issue(sWC, imm + 8)); F.wait_smem()
            F(f"s_cmp_ge_u32 s{sPV}, 16\ns_cbranch_scc1 {Ls}_q\ns_sub_u32 s{sF}, s{sF}, 1\ns_cmp_lg_u32 s{sF}, 0\ns_cbranch_scc1 {Ls}_p"); F.raw(f"{Ls}_q:")
            F(f"s_mov_b32 s{sF}, s{sE_}")
            for g in xl: F(g)
            F(f"s_mov_b32 s{sE_}, s{sF}\ns_mov_b32 s{sF}, s{sC}")
            for g in stat: F(g)
            F(f"s_mov_b32 s{sC}, s{sF}")
            f = 0
            for k in range(6): F(self.wread(ring + 4 * k, allw[k]))
            for it in items:
                if it[0] == "cs": F(f"v_mfma_f32_32x32x16_bf16 {v(it[1],16)}, {R(it[2],4)}, {v(vNM,4)}, {v(it[1],16)}")
                else:
                    F(f"v_mfma_f32_32x32x16_bf16 {v(it[0],16)}, {R(ring+4*(f%6),4)}, {a(xr(it[1]),4)}, {'0' if it[2] else v(it[0],16)}")
                    F(self.wread(ring + 4 * (f % 6), allw[f + 6])); f += 1
            F.drain(); F.settle()
            F(f"s_branch {Lb}")
            self.tail.append(F.text())
        return fn
    def poll_block(self, sreg, imm, thr):
        if not self.preissued: self.E(self.poll_issue(sreg, imm))
        self.poll_check(sreg, imm, thr)()
    def T(self, kind, L): return 1024 * kind + 4 * L if kind < 4 else 8 + 4 * L
    def touch(self, sreg, sh, off):
        def fn():
            self.E(f"s_add_u32 s{sP}, s{sreg}, s{sh}\ns_add_u32 s{sP}, s{sP}, {off}\nbuffer_load_dword v{vDUM}, v{vTL}, {s(WS,4)}, s{sP} offen sc1")
            self.E.pend.pop(f"v{vDUM}", None)
        m = self.o.get("touch", 0)
        return fn if (m & (1 if sh == sHX else 2)) else (lambda: None)
    def prologue(self):
        E = self.E
        kernel_header(E, KNAME)
        Lgo = E.label("GO")
        E(f"s_cmp_lt_u32 s2, 256\ns_cbranch_scc1 {Lgo}\ns_endpgm")
        E.place(Lgo)
        if self.stamps: E(f"s_memrealtime {s(sTS,2)}\ns_memtime {s(sTS+2,2)}")
        if self.o.get("echo"): E(f"s_memrealtime {s(sTS,2)}")
        E(f"s_load_dwordx2 {s(WS,2)}, s[0:1], 72\ns_load_dwordx2 {s(OUT,2)}, s[0:1], 56\ns_load_dwordx2 {s(XIN,2)}, s[0:1], 0")
        E("s_load_dwordx4 s[80:83], s[0:1], 8\ns_load_dwordx4 s[84:87], s[0:1], 32\ns_load_dwordx2 s[88:89], s[0:1], 48")
        Lp = E.label("PC")
        E(f"s_getpc_b64 {s(sRET,2)}"); E.place(Lp)
        E(f"s_lshr_b32 s{sA}, s2, 3\nv_lshl_add_u32 v{vT}, v0, 5, s{sA}\nv_lshlrev_b32 v{vT}, 7, v{vT}\nv_min_u32 v{vT}, main_end-{Lp}-4, v{vT}")
        E(f"global_load_dword v247, v{vT}, {s(sRET,2)}")
        E(f"s_mov_b32 s{WS+2}, {WS_BYTES}\ns_mov_b32 s{WS+3}, 0x00020000")
        for b in (OUT, XIN): E(f"s_mov_b32 s{b+2}, {2048*640*2}\ns_mov_b32 s{b+3}, 0x00020000")
        E(f"v_lshrrev_b32 v{vT}, 6, v0\nv_and_b32 v0, 63, v0\nv_readfirstlane_b32 s{sW}, v{vT}")
        E(f"s_and_b32 s{sA}, s2, 7\ns_lshr_b32 s{sB}, s2, 3")
        if self.mapping == "mix":
            E(f"s_lshr_b32 s{sC}, s{sA}, 1\ns_lshl_b32 s{sC}, s{sC}, 2\ns_lshr_b32 s{sR}, s{sB}, 3\ns_add_u32 s{sR}, s{sR}, s{sC}")
            E(f"s_and_b32 s{sC}, s{sA}, 1\ns_lshl_b32 s{sC}, s{sC}, 3\ns_and_b32 s{sJ}, s{sB}, 7\ns_add_u32 s{sJ}, s{sJ}, s{sC}")
        else:
            E(f"s_lshr_b32 s{sR}, s{sB}, 4\ns_lshl_b32 s{sC}, s{sA}, 1\ns_add_u32 s{sR}, s{sR}, s{sC}\ns_and_b32 s{sJ}, s{sB}, 15")
        E(f"s_and_b32 s{sTH}, s{sJ}, 1\ns_lshr_b32 s{sNB}, s{sJ}, 1\ns_lshl_b32 s{sLW}, s{sW}, 12")
        E(f"v_lshlrev_b32 v{vL16}, 4, v0")
        if self.stamps: E(f"v_mov_b32 v{vTS}, 0\nv_mov_b32 v{vTS2}, 0")
        E.wait_smem()
        if self.stamps:
            E(f"v_writelane_b32 v{vTS2}, s2, 63")
            E(f"v_writelane_b32 v{vTS}, s{sTS}, 0\nv_writelane_b32 v{vTS2}, s{sTS+2}, 0")
            self.nst = 1; self.stnames.append("entry")
        if self.o.get("align", 1):
            E(f"s_sub_u32 s{sA}, 0, s{WS}\ns_and_b32 s{sA}, s{sA}, 0x1fffff\ns_add_u32 s{WS}, s{WS}, s{sA}\ns_addc_u32 s{WS+1}, s{WS+1}, 0\ns_mov_b32 s{WS+2}, {WS_BYTES - 2*MB}")
        wo_ = self.o.get("wsoff", 0) << 20
        if wo_: E(f"s_add_u32 s{WS}, s{WS}, {wo_}\ns_addc_u32 s{WS+1}, s{WS+1}, 0\ns_mov_b32 s{WS+2}, {WS_BYTES - wo_}")
        S = self.S = Startup(self, sys.modules[__name__])
        S.roles(80, 82, 84, 86, 88)
        S.s1_load(); S.x_touch(); S.leader_clear()
        E(f"v_mov_b32 v{vTK+1}, {EPOCH}\nbuffer_load_dword v{vTK}, v{vTK+1}, {s(WS,4)}, 0 offen sc1")
        self.stamp("st S1 issued")
        S.s2_addrs()
        self.s2q = [(lambda i=i: setattr(S, "tok2", E(S.s2_load(i)))) for i in range(8)]
        if self.o.get("s2when", 2) == 0:
            while self.s2q: self.s2q.pop(0)()
        E(f"s_lshl_b32 s{sA}, s{sR}, 2\ns_add_u32 s{sA}, s{sA}, s{sW}\ns_mul_i32 s{sTK}, s{sA}, {40*KB}")
    def masks(self):
        r = []
        for i in range(16):
            m = 0
            for l in range(64):
                if (i & 3) + 8 * (i >> 2) + 4 * (l >> 5) <= (l & 31): m |= 1 << l
            r.append(f"s_mov_b32 s{sMASK+2*i}, {hex(m & 0xffffffff)}\ns_mov_b32 s{sMASK+2*i+1}, {hex(m >> 32)}")
        return r
    def x_bounce(self, T, wdm):
        E = self.E; S = self.S
        XA = 96; XR = 100; TM = 104; PA, PD = 240, 242
        o = self.o; X0 = 64 * KB
        E(f"v_lshrrev_b32 v48, 3, v0\nv_mul_u32_u24 v48, 1280, v48\nv_and_b32 v49, 7, v0\nv_lshrrev_b32 v50, 4, v0\nv_xor_b32 v49, v49, v50\nv_lshl_add_u32 v{XA}, v49, 4, v48")
        E(f"v_xor_b32 v{XA+1}, 64, v{XA}\nv_add_u32 v{XA+2}, {2*9216}, v{XA}\nv_add_u32 v{XA+3}, {3*9216}, v{XA+1}\nv_add_u32 v{XA+1}, 9216, v{XA+1}")
        tok = []
        def dma(ch):
            E(f"s_add_u32 m0, s{sLW}, {X0 + 16*KB*(ch%4)}\ns_add_u32 s{sE_}, s{sTK}, {128*ch}")
            for i in range(4): t = E(f"buffer_load_dwordx4 v{XA+i}, {s(XIN,4)}, s{sE_} offen offset:{1024*i} lds")
            tok.append(t)
        E(f"s_mul_i32 s{sWQ}, s{sJ}, {160*KB}\ns_add_u32 s{sWQ}, s{sWQ}, s{sLW}\ns_add_u32 s{sWQ}, s{sWQ}, {WQ}")
        E(f"v_min_u32 v{vSIG}, 1, v0\nv_lshlrev_b32 v{vSIG}, 28, v{vSIG}\nv_mov_b32 v{vONE}, 1")
        E(f"v_and_b32 v48, 31, v0\nv_lshrrev_b32 v49, 5, v0\nv_bfe_u32 v50, v0, 1, 3\nv_xor_b32 v49, v49, v50\nv_lshlrev_b32 v49, 4, v49\nv_lshl_add_u32 v48, v48, 7, v49")
        E(f"s_add_u32 s{sA}, s{sLW}, {X0}\nv_add_u32 v{XR}, s{sA}, v48")
        for k in range(1, 4): E(f"v_xor_b32 v{XR+k}, {32*k}, v{XR}")
        E(f"v_mov_b32 v{T}, 0\nv_mov_b32 v{T+1}, 0")
        E(f"s_lshl_b32 s{sA}, s{sNB}, 12\ns_add_u32 s{sA}, s{sA}, {F1}\ns_sub_u32 s{sB}, 15, s{sR}\ns_mov_b32 s{sC}, {F1 + 15*128}")
        E(f"v_and_b32 v49, 3, v0\nv_min_u32 v49, 2, v49\nv_add_u32 v49, s{sB}, v49\nv_min_u32 v49, 15, v49\nv_lshl_add_u32 v49, v49, 11, s{sC}")
        E(f"s_lshr_b32 s{sB}, s{sW}, 1\ns_add_u32 s{sB}, s{sB}, s{sR}\ns_max_u32 s{sB}, s{sB}, 2\ns_sub_u32 s{sB}, s{sB}, 2\ns_lshl_b32 s{sB}, s{sB}, 7\ns_add_u32 s{sB}, s{sB}, {VOTE}")
        E(f"s_lshl_b32 s{sC}, s{sR}, 7\ns_add_u32 s{sC}, s{sC}, {VOTE}\nv_mov_b32 v174, {OOB}\nv_writelane_b32 v174, s{sC}, 0\nv_writelane_b32 v174, s{sB}, 32")
        E(f"v_lshl_add_u32 v48, v0, 7, s{sA}\nv_cmp_gt_u32 vcc, 32, v0\nv_cndmask_b32 v{PA}, v49, v48, vcc")
        E(f"s_lshl_b32 s{sA}, s{sNB}, 12\ns_add_u32 s{sA}, s{sA}, {F2}\nv_and_b32 v48, 31, v0\nv_lshl_add_u32 v{PA+1}, v48, 7, s{sA}")
        prep = S.s2_prep if not o.get("s2when", 2) else (lambda: None)
        if o.get("cfirst", 1): self.prologue2(); prep()
        S.s1_proc()
        self.stamp("st S1 stored")
        for ch in range(0, 2): dma(ch)
        if not o.get("cfirst", 1): self.prologue2(); prep()
        E(f"s_mov_b32 s{sA}, 0x9e3779b1\nv_mul_lo_u32 v{vTK}, v{vTK}, s{sA}\nv_add_u32 v{vTK}, 0x7f4a7c15, v{vTK}\nv_xor_b32 v{vTK+1}, 0x5bd1e995, v{vTK}")
        E(f"v_readfirstlane_b32 s0, v{vTK}")
        dma(2)
        E.wait(vm=tok[0] - 3); E("s_barrier"); S.flag1(); self.stamp("st F1")
        dma(3)
        self.s2r = None
        nx = o.get("s2x", 10) if not o.get("s2when", 2) else 0
        if nx: self.s2r = S.s2_read()
        pi, pc = o.get("f1poll", 5), o.get("f1chk", 8)
        def dots(ch):
            tm = TM + 16 * (ch & 1)
            for e in range(16): E(f"v_dot2c_f32_bf16 v{T}, s{sONE}, v{tm+e}\nv_dot2c_f32_bf16 v{T+1}, v{tm+e}, v{tm+e}")
        for ch in range(10):
            E.wait(vm=tok[ch])
            for k in range(4): E(f"ds_read_b128 {v(TM+16*(ch&1)+4*k,4)}, v{XR+k} offset:{16*KB*(ch%4)}")
            for k in range(4): E(f"ds_read_b128 {a(16*ch+4*k,4)}, v{XR+k} offset:{16*KB*(ch%4)}")
            if ch == pi:
                E(f"s_cmp_eq_u32 s{sW}, 0\ns_cselect_b32 s{sA}, 0, {OOB}\nv_add_u32 v{PA}, s{sA}, v{PA}")
                E(S.vpoll_issue(PA, PD))
            if ch: dots(ch - 1)
            E.drain(vm=False)
            if ch + 4 < 10: dma(ch + 4)
            if ch == o.get("s2ch", 0):
                while self.s2q: self.s2q.pop(0)()
                if o.get("s2when", 2): S.s2_prep()
            for _ in range(o.get("s2n", 2)):
                if ch < nx and ch >= o.get("s2f", 5) and self.s2r[1]: E(self.s2r[1].pop(0))
            if ch == pc:
                Lw = E.label("PW")
                E.need(regs(v(PD, 2)))
                E(f"s_cmp_lg_u32 s{sW}, 0\ns_cbranch_scc1 {Lw}")
                S.vpoll_check(PA, PD, 4)()
                E.place(Lw)
                E("s_barrier")
                self.stamp("WQ synced")
            if ch >= pc and wdm:
                for _ in range(o.get("wfirst", 1)):
                    for g in wdm.pop(0): self.do(g)
        dots(9)
        self.stamp("st x done")
    def sharers(self):
        return [f"s_and_b32 s{sA}, s{sR}, 3\ns_lshl_b32 s{sH8}, s{sA}, 1\ns_add_u32 s{sH8}, s{sH8}, s{sTH}\ns_lshl_b32 s{sH8}, s{sH8}, 11",
                f"s_and_b32 s{sA}, s{sR}, 3\ns_lshl_b32 s{sH16}, s{sA}, 2\ns_add_u32 s{sH16}, s{sH16}, s{sW}\ns_lshl_b32 s{sH16}, s{sH16}, 11\ns_sub_u32 s{sH16}, s{sH16}, s{sLW}",
                f"s_and_b32 s{sHX}, s{sJ}, 7\ns_lshl_b32 s{sHX}, s{sHX}, 11"]
    def prologue2(self):
        E = self.E; NREP = self.o.get("nrep", 4)
        E(f"s_mul_i32 s{sWGU}, s{sJ}, {240*KB}\ns_add_u32 s{sWGU}, s{sWGU}, s{sLW}\ns_add_u32 s{sWGU}, s{sWGU}, {WGU}")
        E(f"s_mul_i32 s{sWO}, s{sNB}, {100*KB}\ns_mul_i32 s{sA}, s{sW}, {25*KB}\ns_add_u32 s{sWO}, s{sWO}, s{sA}\ns_add_u32 s{sWO}, s{sWO}, {WO}")
        E(f"s_mul_i32 s{sWD}, s{sNB}, {240*KB}\ns_mul_i32 s{sA}, s{sW}, {60*KB}\ns_add_u32 s{sWD}, s{sWD}, s{sA}\ns_add_u32 s{sWD}, s{sWD}, {WD}")
        E(f"s_lshl_b32 s{sA}, s{sR}, 2\ns_add_u32 s{sA}, s{sA}, s{sW}")
        for i in range(9):
            E(f"s_cmp_lt_u32 s{sA}, {8-i}\ns_cselect_b32 s{sFL+i}, 0x3f803f80, 0x3f800000" if False else
              f"s_cmp_lt_u32 s{sA}, {8-i}\ns_cselect_b32 s{sFL+i}, 0x3f80, 0\ns_or_b32 s{sFL+i}, s{sFL+i}, 1.0")
        E(f"v_lshlrev_b32 v{vSR}, 10, v0\nv_mov_b32 v48, {OOB}\nv_cmp_gt_u32 vcc, {NREP}, v0\nv_cndmask_b32 v{vSR}, v48, v{vSR}, vcc")
        for i in range(3):
            E(f"s_add_u32 s{sA}, s{sW}, {1+i}\ns_and_b32 s{sA}, s{sA}, 3\ns_mul_i32 s{sA}, s{sA}, {15*KB}\ns_add_u32 s{sA}, s{sA}, {5*KB*i}\nv_add_u32 v{vRW+i}, s{sA}, v{vL16}")
        E(f"s_mul_i32 s{sA}, s{sW}, {15*KB}\nv_add_u32 v{vRW+3}, s{sA}, v{vL16}")
        t0, t1, t2 = 48, 49, 50
        E(f"v_add_u32 v{vL16b}, 0x10000, v{vL16}\nv_add_u32 v{vL16c}, 0x20000, v{vL16}")
        E(f"v_lshrrev_b32 v{t0}, 4, v0\nv_and_b32 v{t1}, 15, v0")
        E(f"v_lshlrev_b32 v{t2}, 9, v{t0}\nv_lshl_add_u32 v{vU}, v{t1}, 4, v{t2}")
        E(f"v_lshlrev_b32 v{t2}, 10, v{t0}\nv_lshl_add_u32 v{vXW}, v{t1}, 4, v{t2}")
        E(f"v_lshrrev_b32 v{t2}, 1, v{t0}\nv_lshlrev_b32 v{t2}, 9, v{t2}\nv_lshl_add_u32 v{vXW5}, v{t1}, 4, v{t2}")
        E(f"v_and_b32 v{t2}, 1, v{t0}\nv_lshl_add_u32 v{vXW5}, v{t2}, 3, v{vXW5}")
        E(f"s_mul_i32 s{sA}, s{sNB}, {5*KB}\nv_add_u32 v{vXW}, s{sA}, v{vXW}\ns_add_u32 s{sA}, s{sA}, 4096\nv_add_u32 v{vXW5}, s{sA}, v{vXW5}")
        for r_ in (vXW, vXW5): E(f"v_and_b32 v{t2}, 0xffffe000, v{r_}\nv_add_u32 v{r_}, v{t2}, v{r_}")
        E(f"v_lshlrev_b32 v{vTL}, 7, v{t1}\nv_lshl_add_u32 v{vTL}, v{t0}, 28, v{vTL}")
        E(f"v_lshlrev_b32 v{vSW}, 3, v{t1}\nv_lshl_add_u32 v{vSW}, v{t0}, 28, v{vSW}")
        E(f"v_mul_u32_u24 v{t2}, 1280, v{t1}\nv_lshl_add_u32 v{vRM}, v{t0}, 5, v{t2}\nv_lshl_add_u32 v{vRM5}, v{t0}, 3, v{t2}")
        E(f"s_lshl_b32 s{sA}, s{sR}, 1\ns_add_u32 s{sA}, s{sA}, s{sTH}\ns_lshl_b32 s{sA}, s{sA}, 2\ns_add_u32 s{sA}, s{sA}, s{sW}")
        E(f"s_mul_i32 s{sA}, s{sA}, {16*1280}\ns_mul_i32 s{sB}, s{sNB}, 160\ns_add_u32 s{sRM}, s{sA}, s{sB}")
        E(f"v_lshrrev_b32 v{t0}, 5, v0\nv_and_b32 v{t1}, 31, v0")
        E(f"v_lshlrev_b32 v{t2}, 2, v{t0}\nv_xor_b32 v{t2}, v{t2}, v{t1}\nv_lshlrev_b32 v{t2}, 4, v{t2}\nv_lshl_add_u32 v{vPOS}, v{t0}, 9, v{t2}")
        E(f"v_lshlrev_b32 v{t2}, 3, v{t1}")
        E(f"s_lshl_b32 s{sA}, s{sW}, 8\nv_lshl_add_u32 v{vST}, v{t0}, 12, v{t2}\nv_add_u32 v{vST}, s{sA}, v{vST}")
        E(f"v_lshlrev_b32 v{t2}, 4, v{t1}\nv_lshl_add_u32 v{vO4}, v{t0}, 3, v{t2}")
        E(f"s_mul_i32 s{sA}, s{sW}, {SLOT}\nv_add_u32 v{vKR}, s{sA}, v{vPOS}")
        for g in self.arena_consts(): E(g)
    def arena_fix(self, VV):
        n = self.o.get("numa", -1)
        va = [f"v_add3_u32 v{VV}, v{VV}, v{VV+1}, v{VV+2}", f"v_add_u32 v{VV}, v{VV}, v{VV+3}",
              f"v_cmp_le_u32 vcc, {3*self.o.get('nrace', NRACE)}, v{VV}\nv_cndmask_b32 v{VV}, 0, 1, vcc", f"v_lshlrev_b32 v{VV}, 13, v{VV}",
              f"v_readlane_b32 s64, v{VV}, 0", f"v_readlane_b32 s65, v{VV}, 32"]
        r = []
        if self.stamps: r.append(f"v_writelane_b32 v{vTS}, s64, 62")
        if n >= 0:
            r += [f"s_lshr_b32 s64, s{sR}, 3\ns_xor_b32 s64, s64, {n}\ns_lshl_b32 s64, s64, 13",
                  f"s_lshr_b32 s65, s{sW}, 1\ns_add_u32 s65, s65, s{sR}\ns_sub_u32 s65, s65, 2", f"s_bfe_u32 s65, s65, 0x10003\ns_xor_b32 s65, s65, {n}\ns_lshl_b32 s65, s65, 13"]
        own = [sXB, sHme, sKP, sOme, sTP, sTC, sWP, sWC] + [sT16 + i for i in range(8)]
        r += ["\n".join(f"s_add_u32 s{x}, s{x}, s64" for x in own[k:k + 2]) for k in range(0, 16, 2)]
        r += [f"s_cmp_eq_u32 s{sKT}, 0\ns_cselect_b32 s64, s64, s65\ns_cselect_b32 s65, 0, s65",
              f"s_add_u32 s{sHAL}, s{sHAL}, s65\ns_add_u32 s{sKC}, s{sKC}, s64\ns_add_u32 s{sKVme}, s{sKVme}, s64"]
        return va + [r]
    def arena_consts(self):
        NREP = self.o.get("nrep", 4)
        r = [f"s_mul_i32 s{sAR}, s{sR}, {ASTR}\ns_add_u32 s{sAR}, s{sAR}, {ARENA}",
             f"s_lshr_b32 s{sB}, s{sW}, 1\ns_mul_i32 s{sA}, s{sB}, {ASTR}\ns_add_u32 s{sA}, s{sA}, s{sAR}",
             f"s_sub_u32 s{sA}, s{sA}, {2*ASTR}",
             f"s_mul_i32 s{sXB}, s{sW}, {80*KB}\ns_add_u32 s{sXB}, s{sXB}, s{sAR}",
             f"s_lshl_b32 s{sC}, s{sJ}, 14\ns_and_b32 s{sD}, s{sJ}, 3\ns_lshl_b32 s{sD}, s{sD}, 10\ns_add_u32 s{sC}, s{sC}, s{sD}\ns_lshl_b32 s{sHme}, s{sW}, 18\ns_add_u32 s{sHme}, s{sHme}, s{sC}",
             f"s_add_u32 s{sHme}, s{sHme}, s{sAR}\ns_and_b32 s{sD}, s{sW}, 1\ns_lshl_b32 s{sHAL}, s{sD}, 19",
             f"s_add_u32 s{sHAL}, s{sHAL}, s{sC}\ns_add_u32 s{sHAL}, s{sHAL}, s{sA}\ns_add_u32 s{sHAL}, s{sHAL}, {A_KV1}\ns_lshl_b32 s{sC}, s{sJ}, 1",
             f"s_add_u32 s{sKC}, s{sC}, s{sD}\ns_lshl_b32 s{sKC}, s{sKC}, 7\ns_add_u32 s{sKC}, s{sKC}, s{sA}",
             f"s_add_u32 s{sKC}, s{sKC}, {A_KVF}\ns_add_u32 s{sKP}, s{sC}, s{sB}\ns_lshl_b32 s{sKP}, s{sKP}, 7",
             f"s_add_u32 s{sKP}, s{sKP}, s{sAR}\ns_add_u32 s{sKP}, s{sKP}, {A_KVF}\ns_add_u32 s{sKVme}, s{sKP}, 32",
             f"s_add_u32 s{sC}, s{sR}, s{sB}\ns_mov_b32 s{sHAL+1}, {256*KB}\ns_cmp_lt_u32 s{sC}, 2\ns_cselect_b32 s{sHAL}, s{sWQ}, s{sHAL}\n"
             f"s_cselect_b32 s{sHAL+1}, {5*KB}, s{sHAL+1}\ns_cselect_b32 s{sKVme}, s{sKVme}, s{sKC}\ns_cselect_b32 s{sKC}, s{sKP}, s{sKC}\ns_cselect_b32 s{sKT}, 0, 2",
             f"s_lshr_b32 s{sD}, s{sJ}, 2\ns_lshl_b32 s{sOme}, s{sD}, 14\ns_add_u32 s{sOme}, s{sOme}, s{sXB}",
             f"s_add_u32 s{sA}, s{sAR}, {A_CNT}\ns_lshl_b32 s{sC}, s{sB}, 2\ns_add_u32 s{sC}, s{sC}, s{sD}",
             f"s_lshl_b32 s{sC}, s{sC}, 7\ns_add_u32 s{sTP}, s{sA}, s{sC}\ns_lshl_b32 s{sC}, s{sTH}, 2",
             f"s_add_u32 s{sC}, s{sC}, s{sW}\ns_lshl_b32 s{sC}, s{sC}, 7\ns_add_u32 s{sTC}, s{sA}, s{sC}",
             f"s_and_b32 s{sD}, s{sNB}, {NREP-1}\ns_lshl_b32 s{sD}, s{sD}, 10",
             f"s_add_u32 s{sA}, s{sA}, {32*128}\ns_lshl_b32 s{sC}, s{sTH}, 1\ns_add_u32 s{sC}, s{sC}, s{sB}",
             f"s_lshl_b32 s{sC}, s{sC}, 7\ns_add_u32 s{sWP}, s{sA}, s{sC}\ns_lshl_b32 s{sC}, s{sW}, 7",
             f"s_add_u32 s{sWC}, s{sA}, s{sC}\ns_add_u32 s{sWC}, s{sWC}, s{sD}"]
        for i in range(4):
            r += [f"s_add_u32 s{sA}, s{sW}, {1+i}\ns_bfe_u32 s{sB}, s{sA}, 0x10001\ns_and_b32 s{sC}, s{sA}, 1",
                  f"s_lshl_b32 s{sC}, s{sC}, 8\ns_add_u32 s{sC}, s{sC}, s{sAR}\ns_lshl_b32 s{sD}, s{sTH}, 1",
                  f"s_add_u32 s{sB}, s{sB}, s{sD}\ns_mul_i32 s{sT16+i}, s{sB}, {80*KB}\ns_add_u32 s{sT16+i}, s{sT16+i}, s{sC}",
                  f"s_lshl_b32 s{sB}, s{sB}, 2\ns_add_u32 s{sB}, s{sB}, s{sW}\ns_lshl_b32 s{sB}, s{sB}, 16\ns_add_u32 s{sT16H+i}, s{sB}, s{sC}"]
        return r
    def load_residual(self, t):
        ld = [f"buffer_load_dwordx4 {v(t,4)}, v{vRM}, {s(XIN,4)}, s{sRM} offen", f"buffer_load_dwordx4 {v(t+4,4)}, v{vRM}, {s(XIN,4)}, s{sRM} offen offset:16",
              f"buffer_load_dwordx2 {v(t+8,2)}, v{vRM5}, {s(XIN,4)}, s{sRM} offen offset:128"]
        return ld, sum([[f"v_lshlrev_b32 v{vRES+2*i}, 16, v{t+i}", f"v_and_b32 v{vRES+2*i+1}, 0xffff0000, v{t+i}"] for i in range(10)], [])
    def stat_loads(self, idx, t):
        return [(f"s_and_b32 s{sC}, s{sTC}, 0xffffe000\ns_add_u32 s{sC}, s{sC}, {(A_ST - A_CNT + idx*16*KB) & 0xffffffff}\n" if q == 0 else "") +
                f"buffer_load_dwordx2 {v(t+2*q,2)}, v{vST}, {s(WS,4)}, s{sC} offen offset:{1024*q} sc1" for q in range(4)]
    def stat_ops(self, t):
        return [f"v_add_f32 v{t}, v{t}, v{t+2}", f"v_add_f32 v{t+1}, v{t+1}, v{t+3}", f"v_add_f32 v{t+4}, v{t+4}, v{t+6}", f"v_add_f32 v{t+5}, v{t+5}, v{t+7}",
              f"v_add_f32 v{t}, v{t}, v{t+4}", f"v_add_f32 v{t+1}, v{t+1}, v{t+5}", f"v_mov_b32 v{t+2}, v{t}", f"v_mov_b32 v{t+3}, v{t+1}",
              f"v_permlane32_swap_b32 v{t+2}, v{t}", f"v_permlane32_swap_b32 v{t+3}, v{t+1}",
              f"v_add_f32 v{t}, v{t}, v{t+2}", f"v_add_f32 v{t+1}, v{t+1}, v{t+3}",
              f"v_fma_f32 v{t}, v{t+1}, 0, v{t}",
              f"v_mul_f32 v{t}, {f2u(-1/640)}, v{t}", f"v_mul_f32 v{t+1}, {f2u(1/640)}, v{t+1}",
              f"v_fma_f32 v{t+1}, -v{t}, v{t}, v{t+1}", f"v_cvt_pk_bf16_f32 v{vNM}, v{t}, v{t}", f"v_max_f32 v{t+1}, 0, v{t+1}",
              f"v_mov_b32 v{vNM+1}, v{vNM}", f"v_add_f32 v{vIV}, {f2u(EPS)}, v{t+1}", f"v_mov_b32 v{vNM+2}, v{vNM}",
              f"v_rsq_f32 v{vRSTD}, v{vIV}", f"v_mov_b32 v{vNM+3}, v{vNM}"]
    def cs_loads(self, base, stride, ntile, dst):
        g = []
        for t in range(ntile):
            p = ""
            if t == 0: p = f"s_mul_i32 s{sD}, s{sJ}, {stride}\ns_add_u32 s{sD}, s{sD}, {base}\n"
            if t == 4: p = f"s_add_u32 s{sD}, s{sD}, 4096\n"
            g.append(p + f"buffer_load_dwordx4 {R(dst+4*t,4)}, v{vL16}, {s(WS,4)}, s{sD} offen offset:{1024*(t%4)} sc1")
        return g
    def xloads(self, base):
        g = []
        for ks in range(40):
            t = f"s_add_u32 s{sE_}, s{sXB}, {base + 16*KB*(ks >> 3) + 1024*(ks & 4)}\n" if ks % 4 == 0 else ""
            g.append(t + f"buffer_load_dwordx4 {a(self.xr(ks),4)}, v{vL16}, {s(WS,4)}, s{sE_} offen offset:{1024*(ks%4)} sc1")
        return g
    def xstart(self, xl, base):
        n = self.o.get("xt", 2)
        for g in xl[:n]: self.E(g)
        for k in range(2): self.touch(sXB, sHX, base + 8 * KB + 16 * KB * k)()
        for g in xl[n:NX0]: self.E(g)
    def xt(self, i): return A_X[i] or 0
    def fine(self, tag, sl):
        st = self.o.get("fine_" + tag, 0)
        if st and sl and sl % st == 0: self.stamp(f"{tag}@{sl}")
    def wstream(self, items, pos0, allw, ring, ev=None, valu=None, pre=None, budget=32, tag=""):
        E = self.E; LA = 6
        ev = ev or {}; valu = list(valu or []); pre = pre or {}
        f = pos0; over = 0; defer = []
        for sl, it in enumerate(items):
            self.fine(tag, sl)
            for g in pre.get(sl, []): self.do(g)
            if it[0] == "cs":
                assert not any(isinstance(x, str) and f"v{vNM+3}," in x for _, x in valu), "stats not ready"
                E(f"v_mfma_f32_32x32x16_bf16 {v(it[1],16)}, {R(it[2],4)}, {v(vNM,4)}, {v(it[1],16)}")
                c0 = E.cost - 8
            else:
                acc, ks, first = it
                if f % 2 == 0: E.need(regs(R(ring + 4 * (f % LA), 4)) | regs(R(ring + 4 * ((f + 1) % LA), 4)) | regs(a(self.xr(ks), 4)))
                E(f"v_mfma_f32_32x32x16_bf16 {v(acc,16)}, {R(ring+4*(f%LA),4)}, {a(self.xr(ks),4)}, {'0' if first else v(acc,16)}")
                c0 = E.cost - 8
                if f + LA < len(allw): E(self.wread(ring + 4 * (f % LA), allw[f + LA]))
                f += 1
            for g in ev.get(sl, []): self.do(g)
            if defer and self.o.get("verbose") == 1: print("   ", tag, "deferred op at slot", sl)
            if defer: self.do(defer.pop(0))
            lim = budget - (4 if f % 2 == 0 else 0)
            while valu and valu[0][0] <= sl:
                x = valu[0][1]
                if isinstance(x, list): defer += x; valu.pop(0); continue
                c = sum(8 if y.startswith(TRANS) else 4 for y in x.split("\n"))
                if E.cost - c0 + c > lim and not (c > 16 and E.cost - c0 <= 12): break
                valu.pop(0); E(x)
            over += max(0, E.cost - c0 - lim)
        if self.o.get("verbose"): print(tag, "over budget", over, "left valu", len(valu))
        valu += [(0, defer)]
        assert max(list(ev) + list(pre) + [0]) < len(items), (max(list(ev) + list(pre)), len(items))
        for _, x in valu:
            for y in (x if isinstance(x, list) else [x]): self.do(y)
    @staticmethod
    def pair_items(acc, cs):
        return [(acc[sl & 1], sl >> 1, sl < 2) for sl in range(80)] + [("cs", acc[0], cs), ("cs", acc[1], cs + 4)]
    def p1(self, L):
        E = self.E; o = self.o
        ACC = [48, 64, 80, 96]; RING = 112; CS = 136
        KA, KB_, KV1, VA, VB = 152, 156, 160, 164, 168
        QA0, QB0, QA1, QB1 = 172, 176, 180, 184
        self.Q = (QA0, QB0, QA1, QB1)
        MK = self.MK = 188; VAD = self.VAD = [196, 205]; K1 = self.K1 = AG
        self.WOF = [AG + 160 + 4 * f for f in range(24)] + [244]
        self.xr = lambda ks: 4 * ks
        xl = self.xloads(self.xt(2 * L))
        allw = [1024 * f for f in range(80)] + [1024 * f for f in range(80, 160)]
        tok = []
        if L == 0:
            dm = [self.dma4(sWQ, 16 * KB * c, 16 * KB * c, tok) for c in range(10)]
            wdm = list(dm)
            self.x_bounce(152, wdm)
            c0 = 10 - len(wdm)
            if o.get("s2when", 2): E.wait(vm=self.S.tok2); E("s_barrier")
            s2cs, s2st, s2last = self.s2r or self.S.s2_read()
            self.stamp("st S2 read")
            late = sum(dm[2:], [])
        else:
            E.wait(vm=self.wq_tok[1]); E("s_barrier")
            for f in range(6): E(self.wread(RING + 4 * f, allw[f]))
            self.poll_block(sWC, 512 + 4 * (L - 1), 16)
            self.stamp("L1 P1 synced")
            self.xstart(xl, self.xt(2 * L))
            resops = []; late = self.wq_late; tok = self.wq_tok
        def ready(c): return lambda: (E.wait(vm=tok[c]), E("s_barrier"))
        if L == 0:
            ready(0)()
            for f in range(6): E(self.wread(RING + 4 * f, allw[f]))
        ev = {}; pre = {}
        so = self.stat_ops(152)
        if L == 0:
            for c in range(1, 5): pre[16 * c - 6] = [ready(c)]
            nA = o.get("lateA", 9)
            seq = []
            for c in range(c0, nA):
                seq += dm[c]
                if c == 4: seq += self.cs_loads(CSQ, 4 * KB, 4, CS)
            spread(ev, seq, 0, o.get("lateS", 26) / 10)
            spread(ev, s2st, o.get("s2s0", 0), o.get("s2sS", 10) / 10)
            spread(ev, self.masks(), 31, 3)
            lateB = sum(dm[nA:], [])
            rl, resops = self.load_residual(160)
            spread(ev, rl, o.get("res0", 21), 8)
            ev.setdefault(13, []).append(f"buffer_load_dwordx4 v[156:159], v174, {s(WS,4)}, 0 offen sc1")
            so = [(1, x) for x in so[6:] + s2cs] + [(1, [s2last])] + [(50, x) for x in self.arena_fix(156)] + [(60, x) for x in resops]
        else:
            pre[26] = [ready(len(tok) - 1)]
            assert len(tok) >= 7
            spread(ev, xl[NX0:] , 0, o.get('xS', 20) / 10)
            if o.get("early", 0): ev.setdefault(11, []).append(self.statsig)
            spread(ev, self.stat_loads(2, 152), 39, 2)
            spread(ev, late, o.get('lt0', 60), (81.9 - o.get('lt0', 60)) / max(len(late), 1))
            so = [(66, x) for x in so]
        if L: spread(ev, [self.touch(sWO, sH8, 16 * KB * k) for k in range(2)], 61, 14)
        if L == 0: pre[74] = [ready(5)]
        self.wstream(self.pair_items(ACC[:2], CS), 0, allw, RING, ev, so, pre, tag=f"A{L}")
        self.stamp(f"L{L} P1 passA")
        def epi(G0, G1, dst, sc, at):
            r = []
            for G in range(G0, G1):
                b = ACC[0] + 4 * G
                r += [(at, f"v_mul_f32 v{b+i}, v{sc[G-G0]}, v{b+i}") for i in range(4)]
                r += [(at, f"v_cvt_pk_bf16_f32 v{dst[G-G0]+i}, v{b+2*i}, v{b+2*i+1}") for i in range(2)]
            return r
        kvg = A_KV1
        sKVme = sHme
        st = {}
        vKW = 214; vQS = 215
        stA = [f"buffer_store_dwordx4 {v(reg,4)}, v{vPOS}, {s(WS,4)}, s{sA} offen offset:{off} sc1" for reg, off in ((KA, 0), (KB_, 1024), (VA, 2048))]
        stA[0] = f"s_add_u32 s{sA}, s{sKVme}, {kvg}\ns_add_u32 s{sB}, s{sA}, 4096\n" + stA[0]
        stA.append(lambda: st.__setitem__("A", E(f"buffer_store_dwordx4 {v(KV1,4)}, v{vPOS}, {s(WS,4)}, s{sB} offen sc1")))
        ldsA = [f"ds_write_b128 v{vKW}, {v(reg,4)} offset:{off}" for reg, off in ((KA, 0), (KB_, 1024), (VA, 2048), (KV1, 4096 + 128))]
        putB = [lambda: st.__setitem__("B", E(f"s_add_u32 s{sA}, s{sKVme}, {kvg}\nbuffer_store_dwordx4 {v(VB,4)}, v{vPOS}, {s(WS,4)}, s{sA} offen offset:3072 sc1")),
                f"ds_write_b128 v{vKW}, {v(VB,4)} offset:3072"]
        qs = 20 ** -0.5 * math.log2(math.e)
        va = epi(0, 8, [KA, KA + 2, KV1, KB_, KB_ + 2, VA, VA + 2, KV1 + 2], [vRSTD] * 8, 1)
        for k, G in reversed(list(enumerate((1, 4, 6, 7)))): va.insert(6 * (G + 1), (1, [stA[k]]))
        va += [(1, f"v_add_u32 v{vKW}, {8*SLOT}, v{vKR}"), (1, f"v_mul_f32 v{vQS}, {f2u(qs)}, v{vRSTD}")]
        t0, t1, t2 = 216, 217, 218
        cst = []
        for i in range(8):
            cst += [f"v_cndmask_b32 v{t0}, 0, -1, {s(sMASK+4*i,2)}", f"v_cndmask_b32 v{t1}, 0, -1, {s(sMASK+4*i+2,2)}",
                    f"v_and_b32 v{t0}, 0xffff, v{t0}", f"v_lshl_or_b32 v{MK+i}, v{t1}, 16, v{t0}"]
        cst += [f"v_lshrrev_b32 v{t0}, 5, v0", f"v_bfe_u32 v{t1}, v0, 2, 2", f"v_lshl_add_u32 v{t0}, v{t0}, 2, v{t1}",
                f"v_bfe_u32 v{t1}, v0, 4, 1", f"v_and_b32 v{t2}, 3, v0", f"v_lshl_add_u32 v{t1}, v{t1}, 2, v{t2}",
                f"v_and_b32 v{t2}, 1, v0", f"v_lshlrev_b32 v219, 2, v{t2}", f"v_xor_b32 v219, v219, v{t0}", f"v_lshlrev_b32 v219, 4, v219",
                f"v_lshl_add_u32 v219, v{t2}, 9, v219", f"v_bfe_u32 v220, v0, 1, 1", f"v_lshl_add_u32 v220, v220, 3, v219", f"v_add_u32 v221, {4096+128+8}, v219",
                f"v_mov_b32 v224, 128", f"v_mov_b32 v225, {SLOT}", f"v_subrev_u32 v226, v{vPOS}, v{vKR}"]
        cst += [f"s_lshl_b32 s{sC}, s{sW}, 7\ns_add_u32 s{sC}, s{sC}, {ONES+128}\nv_mov_b32 v227, s{sC}"]
        for hd in range(2):
            cst += [f"v_add_u32 v222, {2048+1024*hd}, v220", f"v_cmp_gt_u32 vcc, 4, v{t1}\nv_cndmask_b32 v222, v221, v222, vcc", f"v_add_u32 v222, v226, v222",
                    f"v_cmp_gt_u32 {s(sC,2)}, 4, v{t1}\nv_cmp_eq_u32 vcc, {4+hd}, v{t1}\ns_or_b64 vcc, vcc, {s(sC,2)}\nv_cndmask_b32 v{VAD[hd]}, v227, v222, vcc\nv_cndmask_b32 v223, v224, v225, vcc"]
            cst += [f"v_add_u32 v{VAD[hd]+i}, v{VAD[hd]+i-1}, v223" for i in range(1, 9)]
        cst = [f"v_mov_b32 v{228+i}, 0x3f803f80" for i in range(4)] + cst
        n1 = o.get("cst1", 50)
        va += [(1, x) for x in cst[:n1]]
        va += epi(8, 10, [VB, VB + 2], [vRSTD] * 2, 43) + [(43, putB)] + epi(10, 12, [QA0, QA0 + 2], [vQS] * 2, 43)
        va += [(43, x) for x in cst[n1:]]
        for i in range(9):
            va += [(52, f"v_accvgpr_write_b32 {R(K1+4*i+2)}, s{sFL+i}"), (52, f"v_accvgpr_write_b32 {R(K1+4*i+3)}, 0")]
        va += [(52, f"v_mov_b32 v{q+3}, 0") for q in (QA1, QB1)] + [(52, f"v_mov_b32 v{164+i}, -1") for i in range(4)]
        items = [(ACC[2], k, k == 0) for k in range(40)] + [("cs", ACC[2], CS + 8)] + [(ACC[3], k, k == 0) for k in range(40)] + [("cs", ACC[3], CS + 12)]
        ev = {}; pre = {}
        if L == 0:
            pre[10] = [ready(6)]
            endA = E.vm_n
            pre[26] = [lambda: E.wait(vm=endA), ready(7), self.S.flag2]
            pre[43] = [ready(9)]
            spread(ev, lateB, 0, 2.5)
        else:
            if o.get("early", 0):
                pre[2] = [self.nan_net(ACC[0], xl, self.pair_items(ACC[:2], CS) + items[:2], allw, RING, 512, self.stat_loads(2, 152) + self.stat_ops(152))]
                va = [(max(2, sl), x) for sl, x in va]
            pre[26] = [ready(9)]
        spread(ev, ldsA + [f"ds_write_b128 v{vL16}, v[228:231] offset:{ONES}", f"ds_write_b128 v{vL16}, v[228:231] offset:{ONES+1024}"], 26, 2)
        wo = []
        for f in range(25):
            t = f"s_add_u32 s{sT0+1}, s{sWO}, {1024*f}\n" if f % 4 == 0 else ""
            wo.append(t + f"buffer_load_dwordx4 {R(self.WOF[f],4)}, v{vL16}, {s(WS,4)}, s{sT0+1} offen offset:{1024*(f%4)} sc1")
        if L == 0:
            pass
        nwo = o.get("wob", 14)
        if L == 0:
            nwo = 0
        else:
            spread(ev, wo[:nwo], o.get('wo0', 13), (o.get('wo1', 57) - o.get('wo0', 13)) / nwo)
        self.wo_late = wo[nwo:]
        spread(ev, [self.touch(sWGU, sH16, 32 * KB * k) for k in range(2)], 40, 16)
        sa, pa, ca, sb = o.get("sa", 34), o.get("pa", 50), o.get("ca", 70), o.get("sb", 79)
        ev.setdefault(sa, []).append(self.signal(sKP, 8 * L, lambda: st["A"]))
        ev.setdefault(pa, []).append(self.poll_issue(sKC, 8 * L))
        pre.setdefault(ca, []).append(self.poll_check(sKC, 8 * L, f"s{sKT}"))
        hal = []; self.haltok = []
        for t in range(2):
            p = f"s_mul_i32 s{sB}, s{sW}, {2*SLOT}\n" if t == 0 else ""
            hal.append(p + f"s_add_u32 m0, s{sB}, {t*SLOT}\ns_add_u32 s{sE_}, s{sHAL}, {s(sHAL+1) if t else 0}\nbuffer_load_dwordx4 v{vL16}, {s(WS,4)}, s{sE_} offen sc1 lds")
            hal += [f"buffer_load_dwordx4 v{vL16}, {s(WS,4)}, s{sE_} offen offset:{1024*i} sc1 lds" for i in (1, 2)]
            hal.append(f"s_add_u32 m0, s{sB}, {t*SLOT+4096+128}\ns_add_u32 s{sE_}, s{sE_}, 4096\nbuffer_load_dwordx4 v{vL16}, {s(WS,4)}, s{sE_} offen sc1 lds")
        lasth = hal[-1]; hal[-1] = lambda: self.haltok.append(E(lasth))
        assert ca > 44
        spread(ev, hal, ca, o.get("halS", 10) / 10)
        ev.setdefault(sb, []).append(self.signal(sKP, 8 * L + 4, lambda: st["B"]))
        self.wstream(items, 80, allw, RING, ev, va, pre, budget=o.get("budB", 32), tag=f"B{L}")
        self.stamp(f"L{L} P1 passB")
        if L == 0: E(self.S.vpoll_issue(241, 242))
        for _, x in epi(12, 15, [QA1, QB0, QB0 + 2], [vQS] * 3, 0): E(x)
        E(f"s_mov_b32 vcc_lo, -1\ns_mov_b32 vcc_hi, 0")
        for i in range(2):
            E(f"v_cndmask_b32 v{QB1+i}, v{QA1+i}, v{QA1+3}, vcc")
            E(f"v_cndmask_b32 v{QA1+i}, 0, v{QA1+i}, vcc")
        for k in range(6):
            for hd, (q0, q1, k0) in enumerate(((QA0, QA1, KA), (QB0, QB1, KB_))):
                qa, ka = (q0 + k, k0 + k) if k < 4 else (q1 + k - 4, KV1 + k - 4)
                E(f"v_dot2_f32_bf16 v{216+hd}, v{qa}, v{ka}, {'0' if k == 0 else v(216+hd)}")
        E(f"s_mov_b32 s{sA}, {f2u(-1e38)}")
        for hd, q1 in enumerate((QA1, QB1)): E(f"v_cvt_pk_bf16_f32 v{q1+2}, s{sA}, -v{216+hd}")
    def att_defs(self):
        QA0, QB0, QA1, QB1 = self.Q
        d = self
        d.kread = lambda hd, i, dst: f"ds_read_b128 {R(dst,4)}, v{vKR} offset:{i*SLOT + 1024*hd}"
        d.k1read = lambda i: f"ds_read_b64 {R(self.K1+4*i,2)}, v{vKR} offset:{i*SLOT + 4096 + 128}"
        def smf(hd, i, dst, k0, C="0"):
            q0, q1 = (QA0, QA1) if hd == 0 else (QB0, QB1)
            return [f"v_mfma_f32_32x32x16_bf16 {v(dst,16)}, {R(k0,4)}, {v(q0,4)}, {C}",
                    f"v_mfma_f32_32x32x16_bf16 {v(dst,16)}, {R(self.K1+4*i,4)}, {v(q1,4)}, {v(dst,16)}"]
        d.smf = smf
        d.vreads = lambda hd, i, vf: [f"ds_read_b64_tr_b16 {R(vf+2*k,2)}, v{self.VAD[hd]+i} offset:{128*k}" for k in range(4)]
        def expops(src, p):
            r = []
            for k in range(8):
                r += [f"v_exp_f32 v{src+2*k}, v{src+2*k}", f"v_exp_f32 v{src+2*k+1}, v{src+2*k+1}"]
                if k: r.append(f"v_cvt_pk_bf16_f32 v{p+k-1}, v{src+2*k-2}, v{src+2*k-1}")
            r.append(f"v_cvt_pk_bf16_f32 v{p+7}, v{src+14}, v{src+15}")
            return r
        d.expops = expops
        d.mergeops = lambda dg, old: [f"v_cndmask_b32 v{dg+k}, v{old+k}, v{dg+k}, {s(sMASK+2*k,2)}" for k in range(16)]
        d.splitops = lambda p, pm: [f"v_bfi_b32 v{pm+k}, v{self.MK+k}, 0, v{p+k}" for k in range(8)] + [f"v_and_b32 v{p+k}, v{self.MK+k}, v{p+k}" for k in range(8)]
        d.pv = lambda O, vf, p, first: [f"v_mfma_f32_32x32x16_bf16 {v(O,16)}, {R(vf,4)}, {v(p,4)}, {'0' if first else v(O,16)}",
                                        f"v_mfma_f32_32x32x16_bf16 {v(O,16)}, {R(vf+4,4)}, {v(p+4,4)}, {v(O,16)}"]
    def fallback(self, hd):
        E = Emit(); O = self.O[hd]
        S, SD, NEG, P, PM, MX = 48, 64, 214, 230, 238 - 0, 246
        PM = 152 + 8
        K0 = AG + 136; VF = AG + 140; SP = AG + 104
        E.raw(f"FB{hd}:")
        E("s_waitcnt vmcnt(0) lgkmcnt(0)"); E.settle()
        for k in range(32): E(f"v_accvgpr_write_b32 {R(SP+k)}, v{48+k}")
        E(f"v_mov_b32 v{MX+2}, 0xff7fffff")
        for i in (8, 7, 6, 5, 4, 3, 2, 1, 0):
            E(self.kread(hd, i, K0))
            for x in self.smf(hd, i, SD if i == 8 else S, K0): E(x)
            if i == 8: continue
            src = S
            if i == 0:
                for x in self.mergeops(SD, S): E(x)
                src = SD
            for k in range(8): E(f"v_max3_f32 v{MX+2}, v{src+2*k}, v{src+2*k+1}, v{MX+2}")
        E(f"v_mov_b32 v{MX+3}, v{MX+2}\nv_permlane32_swap_b32 v{MX+3}, v{MX+2}\nv_max_f32 v{MX+2}, v{MX+2}, v{MX+3}")
        for k in range(16): E(f"v_sub_f32 v{NEG+k}, 0, v{MX+2}")
        for k in range(16): E(f"v_add_f32 v{SD+k}, v{NEG}, v{SD+k}")
        for x in self.expops(SD, P) + self.splitops(P, PM): E(x)
        for x in self.vreads(hd, 8, VF) + self.pv(O, VF, P, True): E(x)
        E.settle()
        for x in self.vreads(hd, 0, VF) + self.pv(O, VF, PM, False): E(x)
        for i in range(7, 0, -1):
            E.settle()
            E(self.kread(hd, i, K0))
            for x in self.vreads(hd, i, VF) + self.smf(hd, i, S, K0, v(NEG, 16)) + self.expops(S, P) + self.pv(O, VF, P, False): E(x)
        E.settle()
        for k in range(32): E(f"v_accvgpr_read_b32 v{48+k}, {R(SP+k)}")
        E.settle()
        for f, q in enumerate(EARLY):
            E(f"s_add_u32 s{sF}, s{sWD}, {1024*f}\nbuffer_load_dwordx4 {R(q,4)}, v{vL16}, {s(WS,4)}, s{sF} offen sc1")
        E.drain(); E.settle()
        E(f"s_setpc_b64 {s(sRET,2)}")
        return E.text()
    def p2(self, L):
        E = self.E; o = self.o
        self.att_defs()
        S = [48, 64]; SD = 80; P = [96, 104]; PM = 112; O = self.O = [120, 136]; D = 152; TT = 168
        K0 = [AG + 36, AG + 40, AG + 44]; VF = [AG + 48, AG + 56, AG + 64]
        self.OF = {}
        for st in range(2):
            for i in range(4): self.OF[(st, i)] = AG + 72 + 16 * st + 4 * i
        for st in range(2, 5):
            for i in range(4): self.OF[(st, i)] = (108 + 12 * i if i < 3 else 176) + 4 * (st - 2)
        if L == 0: self.tail += [self.fallback(0), self.fallback(1)]
        obase = self.obase = A_O
        E.wait(vm=self.haltok[0], ds=E.ds_n); E("s_barrier")
        self.stamp(f"L{L} halo in")
        ev = {}; pre = {}
        if L == 0: pre[o.get("f2c", 6)] = [self.S.vpoll_check(241, 242, 4)]
        dm = []
        for c in range(6): dm += self.dma4(sWGU, 16 * KB * c, 64 * KB + 16 * KB * c)
        hb = []
        for t in range(2):
            hb.append(f"s_mul_i32 s{sD}, s{sW}, {2*SLOT}\ns_add_u32 m0, s{sD}, {t*SLOT}\ns_add_u32 s{sE_}, s{sHAL}, {s(sHAL+1) if o.get('ovl', 3) and t else t*5*KB}\nbuffer_load_dwordx4 v{vL16}, {s(WS,4)}, s{sE_} offen offset:3072 sc1 lds")
        lasth = hb[-1]; hb[-1] = lambda: self.haltok.append(E(lasth))
        pb, cb = o.get("pb", 4), o.get("cb", 16)
        nl = len(self.wo_late)
        n1 = min(nl, int((cb - (0 if L else o.get('f2c', 6))) / 2.1))
        spread(ev, self.wo_late[:n1], 0 if L else o.get("f2c", 6), 2.1 if L else 1.8)
        ev.setdefault(pb, []).append(self.poll_issue(sKC, 8 * L + 4))
        pre.setdefault(cb, []).append(self.poll_check(sKC, 8 * L + 4, f"s{sKT}"))
        spread(ev, hb, cb, 1)
        self.pool = Pool(EARLY); self.mk_wdload()
        rest = self.wo_late[n1:] + dm + self.wd(o.get("wd2" if L else "wd20", 7 if L else 0))
        spread(ev, rest, cb + 2, (o.get("bgend", 68) - cb - 2) / len(rest))
        spread(ev, [self.touch(sWGU, sH16, 32 * KB * k) for k in range(2, 5)] + [self.touch(sWD, sH8, 0)], 10, 14)
        spread(ev, [f"s_and_b32 s{sA}, s{sJ}, 3\ns_lshl_b32 s{sB}, s{sA}, 10\ns_add_u32 s{sB}, s{sB}, s{sOme}\ns_add_u32 s{sB}, s{sB}, {obase}\n"
                    f"s_add_u32 s{sC}, s{sB}, 4096\nbuffer_store_dwordx4 v[164:167], v{vL16}, {s(WS,4)}, s{sC} offen sc1",
                    f"s_lshl_b32 s{sA}, s{sJ}, 9\ns_add_u32 s{sA}, s{sA}, s{sXB}\ns_add_u32 s{sA}, s{sA}, {obase + 64*KB}\n"
                    f"buffer_store_dwordx2 v[164:165], v{vO4}, {s(WS,4)}, s{sA} offen sc1"] + self.xpoison(2 * L + 1, 164), min(o.get("poi", 5), 20), 2)
        if o.get("senth", 0) and o.get("poiw", 1) == 0:
            assert o.get("ovl", 3) == 3
            spread(ev, [(f"s_add_u32 s{sP}, s{sHme}, {HB + L*HB_STRIDE + 2048}\n" if k == 0 else "") +
                        f"buffer_store_dwordx4 v[164:167], v{vL16}, {s(WS,4)}, s{sP} offen offset:{1024*k} sc1" for k in range(4)], o.get("poih", 20), 4)
        SO = self.SO = [sH8, sH16, sHX, sD]
        self.ol = ol = lambda st, i, va, off: f"buffer_load_dwordx4 {R(self.OF[(st,i)],4)}, v{va}, {s(WS,4)}, s{SO[i]} offen offset:{off} sc1"
        ev.setdefault(45, []).append(f"s_lshl_b32 s{sE_}, s{sW}, 14\ns_add_u32 s{sE_}, s{sE_}, {obase}\n" + "\n".join(f"s_add_u32 s{SO[i]}, s{sE_}, s{sT16+i}" for i in range(4)))
        self.aq = [self.poll_check(sTC, self.T(0, L), 8)] + sum([[ol(0, i, vU, 0), ol(1, i, vU, 2048)] for i in range(4)], [])
        oca = o.get("oca", 99)
        if oca < 70:
            pre.setdefault(oca, []).append(self.aq[0])
            spread(ev, self.aq[1:], oca, (70 - oca) / 8); self.aq = []
        st = {}
        def check(hd):
            def fn():
                Lo, Lb = E.label("FO"), E.label("FR")
                E(f"v_subrev_u32 v{TT}, {hex(63 << 23)}, v{O[hd]+12}\nv_cmp_le_u32 vcc, {hex(128 << 23)}, v{TT}\ns_cbranch_vccnz {Lo}")
                E.place(Lb)
                self.tail.append(f"{Lo}:\ns_call_b64 {s(sRET,2)}, FB{hd}\ns_branch {Lb}")
            return fn
        def norm(hd):
            r = [check(hd), f"v_rcp_f32 v{TT}, v{O[hd]+12}"]
            r += [f"v_mul_f32 v{O[hd]+k}, v{TT}, v{O[hd]+k}" for k in range(12)]
            r += [f"v_cvt_pk_bf16_f32 v{D+8*hd+k}, v{O[hd]+2*k}, v{O[hd]+2*k+1}" for k in range(6)]
            return r
        def putOA():
            st["a"] = E(f"buffer_store_dwordx4 {v(D,4)}, v{vL16}, {s(WS,4)}, s{sB} offen sc1")
        slot = [0]
        def weave(mf, mems, valu):
            n = len(mf); mems = list(mems); valu = list(valu)
            for k, m in enumerate(mf):
                self.fine(f"t{L}", slot[0])
                for g in pre.pop(slot[0], []): self.do(g)
                E(m)
                for _ in range(-(-len(mems) // (n - k))): E(mems.pop(0))
                for g in ev.pop(slot[0], []): self.do(g)
                for _ in range(-(-len(valu) // (n - k))): self.do(valu.pop(0))
                slot[0] += 1
        seq = [(hd, i) for hd in range(2) for i in (7, 6, 5, 4, 3, 2, 1, 8, 0)]
        kslot = {x: K0[n % 3] for n, x in enumerate(seq)}
        kq = list(seq)
        def knext():
            if not kq: return []
            hd, i = kq.pop(0)
            return [self.kread(hd, i, kslot[(hd, i)])] + ([self.k1read(i)] if hd == 0 else [])
        for x in knext() + knext() + knext(): E(x)
        for x in self.smf(0, 7, S[0], kslot[(0, 7)]): E(x)
        pend = []; vn = 0
        sa_, pa_ = o.get("osa", 56), o.get("opa", 69)
        ev.setdefault(pa_, []).append(self.poll_issue(sTC, self.T(0, L)))
        ev.setdefault(sa_, []).append(self.signal(sTP, self.T(0, L), lambda: st["a"]))
        for hd in range(2):
            for n in range(8):
                mf = []; mems = []; va = []
                if n < 6:
                    mf += self.smf(hd, 6 - n, S[(n + 1) % 2], kslot[(hd, 6 - n)]); mems += knext()
                    mf += pend
                elif n == 6:
                    mf += self.smf(hd, 8, SD, kslot[(hd, 8)]) + self.smf(hd, 0, S[1], kslot[(hd, 0)]); mems += knext()
                    mf += pend
                else:
                    mf += pend
                    if hd == 0: mf += self.smf(1, 7, S[0], kslot[(1, 7)])
                    mems += knext() + knext()
                    if hd == 0: pre.setdefault(slot[0] + len(mf), []).append(lambda: (E.wait(vm=self.haltok[1]), E("s_barrier")))
                    if hd == 0 and o.get("ovl", 3) and not (L and o.get("ovl", 3) >= 2): ev.setdefault(slot[0] + len(mf), []).append(self.signal(sKVme, 16 + 4 * L, lambda: self.haltok[1]))
                if n < 7:
                    vf = VF[vn % 3]; vn += 1
                    vr = self.vreads(hd, 7 - n, vf)
                    mems = mems + vr
                    va += self.expops(S[n % 2], P[n % 2])
                    pend = self.pv(O[hd], vf, P[n % 2], n == 0)
                    if hd == 1 and n == 1: va = norm(0) + [putOA] + va
                else:
                    v8, v0_ = VF[vn % 3], VF[(vn + 1) % 3]; vn += 2
                    mems = mems + self.vreads(hd, 8, v8) + self.vreads(hd, 0, v0_)
                    va += self.mergeops(SD, S[1]) + self.expops(SD, P[1]) + self.splitops(P[1], PM)
                    pend = self.pv(O[hd], v8, P[1], False) + self.pv(O[hd], v0_, PM, False)
                weave(mf, mems, va)
            if hd == 0: self.stamp(f"L{L} att a")
        weave(pend, [], [])
        assert not ev and not pre, (ev, pre, slot)
        for x in norm(1): self.do(x)
        E(f"s_mov_b32 vcc_lo, -1\ns_mov_b32 vcc_hi, 0")
        for k in range(2): E(f"v_cndmask_b32 v{D+4+k}, v{D+12+k}, v{D+4+k}, vcc")
        E(f"buffer_store_dwordx4 {v(D+8,4)}, v{vL16}, {s(WS,4)}, s{sC} offen sc1")
        self.otok = E(f"buffer_store_dwordx2 {v(D+4,2)}, v{vO4}, {s(WS,4)}, s{sA} offen sc1")
        self.stamp(f"L{L} att done")
    def reduce_and_publish(self, ACC, steps, red, PT, xidx, wimm, final, bg, post, bg0=1, bgstep=5, vals=None):
        E = self.E
        bg = list(bg); rd = []; self.nextbg = 0
        sal = []
        if not final:
            sal = [f"s_add_u32 s{sA}, s{sT16+3}, {self.xt(xidx)}",
                   f"s_lshl_b32 s{sC}, s{sJ}, 2\ns_add_u32 s{sC}, s{sC}, s{sW}", f"s_lshl_b32 s{sC}, s{sC}, 7\ns_and_b32 s{sP}, s{sTC}, 0xffffe000",
                   f"s_add_u32 s{sC}, s{sC}, s{sP}\ns_add_u32 s{sC}, s{sC}, {(A_ST - A_CNT + xidx*16*KB) & 0xffffffff}"]
        AW = [PT + 56 + i for i in range(3)]
        for i in range(3): E(f"v_add_u32 v{AW[i]}, {red}, v{vRW+i}")
        E(f"v_add_u32 v{vT}, {red}, v{vRW+3}")
        order = [(q, nt) for nt in range(5) for q in range(3)]
        ns = len(steps); nr = 5 * ns; lag = self.o.get("wlag", 5)
        wat = {nr * i + ns * (nt + 1) - 1 + lag: f"ds_write_b128 v{AW[i]}, {v(ACC[i]+4*nt,4)} offset:{1024*nt}" for i in range(3) for nt in range(5)}
        bar = min(max(wat) + self.o.get("rbar", 4), 4 * nr - 1)
        bgq = []
        for i in range(4):
            left = [x for x in range(nr * i, nr * (i + 1)) if x not in wat]
            for nt in range(5):
                for si, (W, act) in enumerate(steps):
                    k = nr * i + ns * nt + si; d = ACC[i] + 4 * nt
                    E(f"v_mfma_f32_16x16x32_bf16 {v(d,4)}, {R(W[nt],4)}, {R(act[i],4)}, {v(d,4)}")
                    if k in wat: E(wat[k])
                    elif vals and i < 3 and len([x for x in left if x >= k]) <= len(vals[i + 1]): self.do(vals[i + 1].pop(0))
                    elif k == bar:
                        E.drain(vm=False); E("s_barrier")
                        rd = [f"ds_read_b128 {v(PT+20*q+4*n_,4)}, v{vT} offset:{1024*(5*q+n_)}" for q, n_ in order]
                    elif rd:
                        E(rd.pop(0))
                        if rd: E(rd.pop(0))
                    elif i == 0 and sal: E(sal.pop(0))
                    else:
                        if not bgq and bg and i >= bg0 and k >= self.nextbg: bgq = self.flat(bg.pop(0)); self.nextbg = k + bgstep
                        if bgq: self.do(bgq.pop(0))
            assert not (vals and i < 3 and vals[i + 1])
        for x in bgq: self.do(x)
        for x in rd: E(x)
        assert not sal
        self.stamp("  mfma done")
        D = ACC[0]
        if final:
            stores = [f"buffer_store_dwordx4 {v(D,4)}, v{vRM}, {s(OUT,4)}, s{sRM} offen {FINAL}", f"buffer_store_dwordx4 {v(D+4,4)}, v{vRM}, {s(OUT,4)}, s{sRM} offen offset:16 {FINAL}",
                      f"buffer_store_dwordx2 {v(D+8,2)}, v{vRM5}, {s(OUT,4)}, s{sRM} offen offset:128 {FINAL}"]
        else:
            stores = [f"buffer_store_dwordx4 {v(D,4)}, v{vXW}, {s(WS,4)}, s{sA} offen sc1", f"buffer_store_dwordx4 {v(D+4,4)}, v{vXW}, {s(WS,4)}, s{sA} offen offset:512 sc1",
                      f"buffer_store_dwordx2 {v(D+8,2)}, v{vXW5}, {s(WS,4)}, s{sA} offen sc1"]
        for nts in ((0, 1), (2, 3), (4,)):
            ks = [4 * nt + e for nt in nts for e in (0, 2)]
            for k in ks: E(f"v_pk_add_f32 {v(PT+k,2)}, {v(PT+k,2)}, {v(PT+20+k,2)}")
            for k in ks: E(f"v_pk_add_f32 {v(vRES+k,2)}, {v(vRES+k,2)}, {v(PT+40+k,2)}")
            for k in ks: E(f"v_pk_add_f32 {v(vRES+k,2)}, {v(vRES+k,2)}, {v(PT+k,2)}")
            for k in ks: E(f"v_cvt_pk_bf16_f32 v{D+k//2}, v{vRES+k}, v{vRES+k+1}")
        for x in stores: data = E(x)
        if final: return
        early = self.o.get("early", 0)
        if early: E(f"buffer_atomic_add v{vONE}, v{vSR}, {s(WS,4)}, s{sWP} offen offset:{wimm} sc1")
        self.stamp("  stored")
        T = PT
        E(f"v_pk_add_f32 {v(T,2)}, {v(vRES,2)}, {v(vRES+2,2)}\nv_pk_mul_f32 {v(T+2,2)}, {v(vRES,2)}, {v(vRES,2)}")
        E(f"v_pk_fma_f32 {v(T+2,2)}, {v(vRES+2,2)}, {v(vRES+2,2)}, {v(T+2,2)}")
        for k in range(4, 20, 2):
            E(f"v_pk_add_f32 {v(T,2)}, {v(T,2)}, {v(vRES+k,2)}\nv_pk_fma_f32 {v(T+2,2)}, {v(vRES+k,2)}, {v(vRES+k,2)}, {v(T+2,2)}")
        E(f"v_add_f32 v{T}, v{T}, v{T+1}\nv_add_f32 v{T+1}, v{T+2}, v{T+3}")
        for sw in ("v_permlane32_swap_b32", "v_permlane16_swap_b32"):
            E(f"v_mov_b32 v{T+2}, v{T}\nv_mov_b32 v{T+3}, v{T+1}")
            E(f"{sw} v{T+2}, v{T}\n{sw} v{T+3}, v{T+1}")
            E(f"v_add_f32 v{T}, v{T}, v{T+2}\nv_add_f32 v{T+1}, v{T+1}, v{T+3}")
        last = E(f"buffer_store_dwordx2 {v(T,2)}, v{vSW}, {s(WS,4)}, s{sC} offen sc1")
        E("s_barrier")
        n0 = self.o.get("post0", 5); n1 = n0 + self.o.get("post1", 4)
        post = list(bg) + list(post)
        for g in post[:n0]: self.do(g)
        if not early: self.signal(sWP, wimm, last, vSR)()
        self.stamp("  signalled")
        self.preissued = False
        pp = self.o.get("pp", 99)
        for k, g in enumerate(post[n0:]):
            if early and n0 + k == pp: E(self.poll_issue(sWC, wimm)); self.preissued = True
            self.do(g)
        self.statsig = self.signal(sWP, wimm + 8, last, vSR)
    def mk_wdload(self):
        self.WDF = {}
        def wdload(f):
            def fn():
                q = self.pool.get(); self.WDF[f] = q
                t = f"s_add_u32 s{sT0+1}, s{sWD}, {1024*f}\n" if f % 4 == 0 else ""
                assert t or self.E.lastw[f"s{sT0+1}"] == f"s_add_u32 s{sT0+1}, s{sWD}, {1024*(f & ~3)}"
                return self.E(t + f"buffer_load_dwordx4 {R(q,4)}, v{vL16}, {s(WS,4)}, s{sT0+1} offen offset:{1024*(f%4)} sc1")
            return fn
        self.wdq = [wdload(f) for f in range(60)]
    def wd(self, n):
        r = self.wdq[:n]; self.wdq = self.wdq[n:]
        return r
    def p3(self, L):
        E = self.E; o = self.o
        ACC = [48, 68, 88, vRES]
        W = lambda st: [self.WOF[5 * st + nt] for nt in range(5)]
        self.pool.add([188 + 4 * i for i in range(7)])
        SO = self.SO; ol = self.ol; vU4 = 172
        for g in self.aq: self.do(g)
        E(f"s_mul_i32 s{sE_}, s{sW}, {14*KB}\ns_sub_u32 s{sE_}, {60*KB}, s{sE_}\nv_add_u32 v{vU4}, s{sE_}, v{vU}")
        for i in range(4): E(f"s_add_u32 s{SO[i]}, s{SO[i]}, 4096")
        E("s_barrier")
        bl = [[ol(2, i, vU, 0), ol(3, i, vU, 2048), ol(4, i, vU4, 0)] for i in range(4)]
        vals = [self.validate([self.OF[(st, i)] for st in range(2, 5)], bl[i], 168) for i in range(4)]
        q = sum(bl, [])
        if o.get("obw", 1): E.wait(vm=self.otok)
        for _ in range(o.get("obn", 3)): E(q.pop(0))
        k = 0
        for i in range(4):
            for st in range(2):
                for nt in range(5):
                    d = ACC[i] + 4 * nt
                    E(f"v_mfma_f32_16x16x32_bf16 {v(d,4)}, {R(W(st)[nt],4)}, {R(self.OF[(st,i)],4)}, {'0' if st == 0 and i < 3 else v(d,4)}")
                    if k % o.get("obs", 3) == 0 and q: E(q.pop(0))
                    elif k >= 40 - len(vals[0]) and k < 39: self.do(vals[0].pop(0))
                    k += 1
        assert not q
        for g in vals[0]: self.do(g)
        self.stamp(f"L{L} P3 synced")
        steps = [(W(st), [self.OF[(st, i)] for i in range(4)]) for st in range(2, 5)]
        self.CSG = 152
        bg = self.wd(o.get("wd3b", 6))
        self.vals = vals
        def freewo(): self.pool.add([176, 180, 184] + [AG + 104 + 4 * i for i in range(14)] + self.WOF[:10] + self.WOF[24:])
        self.gu_late = []
        self.gu_tok = []
        for c in range(6, 10): self.gu_late += self.dma4(sWGU, 16 * KB * c, 16 * KB * (c - 6), self.gu_tok)
        n = o.get("gu3", 16)
        post = [freewo] + self.gu_late[:n]
        self.gu_late = self.gu_late[n:]
        self.reduce_and_publish(ACC, steps, 0, 108 - 16 + 16, 2 * L + 1, 4 * L, False, bg, post, vals=vals)
        self.stamp(f"L{L} P3 done")
    def p4(self, L):
        E = self.E; o = self.o
        ACC = [[48, 64], [80, 96]]; RING = 112; HP = 136; T = 144
        allw = [1024 * ((64 + f) % 160) for f in range(240)]
        for f in range(6): E(self.wread(RING + 4 * f, allw[f]))
        self.poll_block(sWC, 4 * L, 16)
        self.stamp(f"L{L} P4 synced")
        self.xr = lambda ks: 4 * ks if ks < 26 else 200 + 4 * (ks - 26)
        xl = self.xloads(self.xt(2 * L + 1))
        self.xstart(xl, self.xt(2 * L + 1))
        c1 = -2 * 0.7978845608028654 * math.log2(math.e)
        so = self.stat_ops(T) + [f"v_mul_f32 v{vC1}, {f2u(c1)}, v{vRSTD}", f"v_mul_f32 v{T}, v{vRSTD}, v{vRSTD}", f"v_mul_f32 v{vC2}, {f2u(0.044715)}, v{vC1}",
                                 f"v_mul_f32 v{vC2}, v{T}, v{vC2}"]
        st = self.htok = {}
        def put(p, k):
            if k == 0: return f"buffer_store_dwordx4 {v(HP,4)}, v{vL16}, {s(WS,4)}, s{sA} offen sc1"
            return lambda: st.__setitem__(p, E(f"buffer_store_dwordx4 {v(HP+4,4)}, v{vL16}, {s(WS,4)}, s{sA} offen offset:1024 sc1"))
        haddr = lambda p: [f"s_add_u32 s{sA}, s{sJ}, {p}\ns_and_b32 s{sA}, s{sA}, 3\ns_lshl_b32 s{sA}, s{sA}, 11", f"s_and_b32 s{sB}, s{sHme}, 0xffffe000\ns_add_u32 s{sA}, s{sA}, s{sB}"]
        def epi(p):
            g, u = ACC[p % 2]; r = [haddr(p)]
            for k0 in range(0, 16, 4):
                ks = range(k0, k0 + 4)
                r += [f"v_mul_f32 v{T+k%4}, v{g+k}, v{g+k}" for k in ks]
                r += [f"v_fma_f32 v{T+k%4}, v{T+k%4}, v{vC2}, v{vC1}" for k in ks]
                r += [f"v_mul_f32 v{T+k%4}, v{T+k%4}, v{g+k}" for k in ks]
                r += [f"v_exp_f32 v{T+k%4}, v{T+k%4}" for k in ks]
                r += [f"v_mul_f32 v{g+k}, v{g+k}, v{u+k}" for k in ks]
                r += [f"v_fma_f32 v{T+k%4}, v{T+k%4}, v{vIV}, v{vIV}" for k in ks]
                r += [f"v_rcp_f32 v{T+k%4}, v{T+k%4}" for k in ks]
                r += [f"v_mul_f32 v{g+k}, v{g+k}, v{T+k%4}" for k in ks]
                r += [f"v_cvt_pk_bf16_f32 v{HP+k//2}, v{g+k}, v{g+k+1}" for k in ks if k % 2 == 0]
                if k0 in (4, 12): r.append([put(p, k0 // 8)])
            return [(2, x) for x in r]
        def epi_pk(p):
            g, u = ACC[p % 2]; r = []
            for k0 in range(0, 16, 8):
                ks = range(k0, k0 + 8, 2)
                r += [f"v_pk_mul_f32 {v(T+k%8,2)}, {v(g+k,2)}, {v(g+k,2)}" for k in ks]
                r += [f"v_pk_fma_f32 {v(T+k%8,2)}, {v(T+k%8,2)}, {v(vC1,2)}, {v(vC1,2)} op_sel:[0,1,0] op_sel_hi:[1,1,0]" for k in ks]
                r += [f"v_pk_mul_f32 {v(T+k%8,2)}, {v(T+k%8,2)}, {v(g+k,2)}" for k in ks]
                r += [f"v_exp_f32 v{T+k}, v{T+k}" for k in range(8)]
                r += [f"v_pk_mul_f32 {v(g+k,2)}, {v(g+k,2)}, {v(u+k,2)}" for k in ks]
                r += [f"v_pk_fma_f32 {v(T+k%8,2)}, {v(T+k%8,2)}, {v(vIV,2)}, {v(vIV,2)} op_sel_hi:[1,0,0]" for k in ks]
                r += [f"v_rcp_f32 v{T+k}, v{T+k}" for k in range(8)]
                r += [f"v_pk_mul_f32 {v(g+k,2)}, {v(g+k,2)}, {v(T+k%8,2)}" for k in ks]
                r += [f"v_cvt_pk_bf16_f32 v{HP+k//2}, v{g+k}, v{g+k+1}" for k in ks]
                r.append(put(p, k0 // 8))
            return r
        self.HF = {}
        def hload(stp, i, fixed=None):
            p, jj = divmod(stp, 4)
            if fixed is not None:
                self.HF[(stp, i)] = fixed
                return f"s_add_u32 s{sE_}, s{sT16H+i}, {A_H + 16*KB*jj + 2048*((p + jj) & 3)}\nbuffer_load_dwordx4 {R(fixed,4)}, v{vU}, {s(WS,4)}, s{sE_} offen sc1"
            def fn():
                q = self.pool.get(); self.HF[(stp, i)] = q
                E(f"buffer_load_dwordx4 {R(q,4)}, v{vU}, {s(WS,4)}, s{sE_} offen sc1")
            return (f"s_add_u32 s{sE_}, s{sT16H+i}, {A_H + 16*KB*jj + 2048*((p + jj) & 3)}", fn)
        self.hload = hload
        nv = o.get("bud4", 32)
        ev = {}; spread(ev, xl[NX0:], 0, o.get('xS', 20) / 10)
        if o.get("early", 0): ev.setdefault(11, []).append(self.statsig)
        spread(ev, self.stat_loads(2 * L + 1, T), 39, 2)
        csl = self.cs_loads(CSG, 6 * KB, 6, self.CSG)
        spread(ev, csl[:2], 47, 2)
        pre = {}
        if o.get("ovl", 3) and not (L and o.get("ovl", 3) >= 2):
            ev.setdefault(51, []).append(f"s_sub_u32 s{sH8}, 15, s{sR}\ns_min_u32 s{sH8}, s{sH8}, 2\n" + self.poll_issue(sKP, 16 + 4 * L))
            pre[76] = [self.poll_check(sKP, 16 + 4 * L, f"s{sH8}")]
        spread(ev, self.gu_late + self.wd(min(o.get("wd40", 10), 10 - len(self.gu_late))), 61, 2)
        spread(ev, [self.touch(sWGU, sH16, 32 * KB * 5), self.touch(sWD, sH8, 16 * KB), self.touch(sWGU, sH16, 32 * KB * 6)], 45, 15)
        pv = [(30, f"v_mov_b32 v{HP+i}, -1") for i in range(4)] + [(30, self.xpoison(2, HP))] if L == 0 and o.get("early", 0) else []
        sh = o.get("senth", 0)
        if sh and o.get("poiw", 1) == 1:
            assert o.get("ovl", 3) == 3
            pv += [(40, f"v_mov_b32 v{HP+4+i}, -1") for i in range(4)]
            spread(ev, [(f"s_add_u32 s{sB}, s{sHme}, {HB + L*HB_STRIDE + 2048}\n" if k == 0 else "") +
                        f"buffer_store_dwordx4 {v(HP+4,4)}, v{vL16}, {s(WS,4)}, s{sB} offen offset:{1024*k} sc1" for k in range(4)], o.get("poi0", 74), o.get("poiS", 2))
        self.wstream(self.pair_items(ACC[0], self.CSG), 0, allw, RING, ev, pv + [(65, x) for x in so], pre, tag=f"p0{L}")
        self.stamp(f"L{L} P4 p0")
        ev = {}; tok = []; fl = []
        for c in range(10, 15): fl += self.dma4(sWGU, 16 * KB * c, 64 * KB + 16 * KB * (c - 10), tok)
        spread(ev, fl, 2, 2.15)
        net = [self.nan_net(ACC[0][0], xl, self.pair_items(ACC[0], self.CSG) + self.pair_items(ACC[1], 0)[:2], allw, RING, 4 * L, self.stat_loads(2 * L + 1, T) + so)] if o.get("early", 0) else []
        n1 = min(o.get("wd41", 13), len(self.pool.free))
        spread(ev, csl[2:] + self.wd(n1), 46, 35 / max(n1 + 4, 16))
        spread(ev, [self.touch(sWGU, sH16, 32 * KB * 7), self.touch(sWD, sH8, 32 * KB), self.touch(sWD, sH8, 48 * KB)], 6, 24)
        self.wstream(self.pair_items(ACC[1], self.CSG + 8), 80, allw, RING, ev, epi(0),
                     {2: net + ["s_barrier"], 10: [lambda: (E.wait(vm=self.gu_tok[3]), E("s_barrier"))], 74: [lambda: (E.wait(vm=tok[4]), E("s_barrier"))]}, budget=nv, tag=f"p1{L}")
        self.stamp(f"L{L} P4 p1")
        ev = {}; pre = {}
        for ks in range(40): ev.setdefault(2 * ks + 1, []).append(lambda ks=ks: self.pool.put(AG + self.xr(ks)))
        n2 = min(len(self.wdq), o.get("wd42", 20))
        spread(ev, self.wd(n2), 3, 2.1)
        hp, hc = o.get("hp0", 22), o.get("hc0", 44)
        ev.setdefault(o.get("hs0", 2), []).append(self.signal(sTP, self.T(2, L), lambda: st[0]))
        if L == 0: spread(ev, [self.touch(sWQ, sH16, 32 * KB * k) for k in range(2)], 30, 30)
        ev.setdefault(hp, []).append(self.poll_issue(sTC, self.T(2, L)))
        pre.setdefault(hc, []).append(self.poll_check(sTC, self.T(2, L), 8))
        spread(ev, [hload(stp, i) for stp in range(4) for i in range(4)], max(hc + 1, 3 + 2.1 * n2), 2.2)
        if not sh: ev.setdefault(o.get("hs1", 81), []).append(self.signal(sTP, self.T(3, L), lambda: st[1]))
        self.wstream(self.pair_items(ACC[0], self.CSG + 16), 160, allw, RING, ev, epi(1), pre, budget=nv, tag=f"p2{L}")
        self.stamp(f"L{L} P4 p2")
        for x in haddr(2): E(x)
        ep = epi_pk(2)
        for k, x in enumerate(ep):
            self.do(x)
            if k == o.get("hp1", 70) and not sh: E(self.poll_issue(sTC, self.T(3, L)))
            elif k % 12 == 6 and k < 40 and self.wdq and self.pool.free: self.wd(1)[0]()
        self.stamp(f"L{L} P4 done")
    def p5(self, L):
        E = self.E; o = self.o
        ACC = [48, 68, 88, vRES]
        E("s_barrier")
        ev = {}; pre = {}; sh = o.get("senth", 0); vals = None; val1 = {}
        if sh:
            r1 = [108 + 4 * i for i in range(7)] + [144 + 4 * i for i in range(7)] + [136, 140]
            l1 = [[self.hload(stp, i, r1.pop(0)) for i in range(4)] for stp in range(4, 8)]
            l2 = [[self.hload(stp, i, 176 + 16 * i + 4 * (stp - 8)) for stp in range(8, 12)] for i in range(4)]
            rl = lambda x: [y.replace(f"s{sE_}", f"s{sP}") for y in x]
            for k in range(4): val1[4 + k] = self.validate([self.HF[(4 + k, i)] for i in range(4)], rl(l1[k]), 172)
            vals = [self.validate([self.HF[(stp, i)] for stp in range(8, 12)], rl(l2[i]), 172) for i in range(4)]
            val1[8] = vals[0]
            rest = sum(l1, []) + self.wd(60)
            nl = o.get("h2late", 4)
            l2f = sum(l2, []); late2 = l2f[16 - nl:]
            h2s = o.get("h2s", 104)
            spread(ev, rest, o.get("h1s", 2), (h2s - 4) / len(rest))
            spread(ev, l2f[:16 - nl], h2s, (150 - h2s) / (16 - nl))
        else:
            self.pool.add([108 + 4 * i for i in range(7)] + [144 + 4 * i for i in range(8)])
            hc1 = o.get("hc1", 30)
            pre.setdefault(hc1, []).append(self.poll_check(sTC, self.T(3, L), 8))
            spread(ev, [self.hload(stp, i) for stp in range(4, 8) for i in range(4)] + self.wd(60), hc1, o.get('h1S', 32) / 10)
            ev.setdefault(o.get("hs2", 44), []).append(self.signal(sTP, self.T(4, L), self.htok[2]))
            hp, hc = o.get("hp2", 76), o.get("hc2", 112)
            ev.setdefault(hp, []).append(self.poll_issue(sTC, self.T(4, L)))
            pre.setdefault(hc, []).append(self.poll_check(sTC, self.T(4, L), 8))
            spread(ev, [self.hload(stp, i) for i in range(4) for stp in range(8, 12)], hc, o.get('h2S', 29) / 10)
        self.wq_tok = []; dm = []
        if L == 0:
            for c in range(10): dm += self.dma4(sWQ, 16 * KB * c, 16 * KB * c, self.wq_tok)
            spread(ev, [self.touch(sWQ, sH16, 32 * KB * k) for k in range(2, 5)], 30, 36)
            if not sh: spread(ev, dm[:4], 96, 4); dm = dm[4:]
        sl = 0; q = []
        for stp in range(8):
            for i in range(4):
                for nt in range(5):
                    self.fine(f"d{L}", sl)
                    for g in pre.pop(sl, []): self.do(g)
                    d = ACC[i] + 4 * nt
                    E(f"v_mfma_f32_16x16x32_bf16 {v(d,4)}, {R(self.WDF[5*stp+nt],4)}, {R(self.HF[(stp,i)],4)}, {'0' if stp == 0 and i < 3 else v(d,4)}")
                    for g in ev.pop(sl, []): q += self.flat(g)
                    vv = val1.get(stp + 1)
                    if vv and 20 - sl % 20 <= len(vv): self.do(vv.pop(0))
                    elif q and (nt != 4 or len(q) > 3): self.do(q.pop(0))
                    sl += 1
                if self.HF[(stp, i)] >= AG or (self.HF[(stp, i)] < 176 and not sh): self.pool.put(self.HF[(stp, i)])
            for nt in range(5):
                qq = self.WDF[5 * stp + nt]
                assert not (sh and 176 <= qq < 244 and stp > 3)
                if qq >= AG or qq < 176: self.pool.put(qq)
        for k in sorted(ev):
            for g in ev[k]: q.append(g)
        for g in q: self.do(g)
        assert not pre
        self.stamp("  8 steps")
        PT = 108 if sh else 176
        live = [self.WDF[f] for f in range(40, 60)] + [self.HF[(stp, i)] for stp in range(8, 12) for i in range(4)]
        assert not [q for q in live if PT <= q < PT + 60], live
        steps = [([self.WDF[5 * stp + nt] for nt in range(5)], [self.HF[(stp, i)] for i in range(4)]) for stp in range(8, 12)]
        bg = (late2 if sh else []) + dm[:12]; dm = dm[12:]
        n = o.get("wq5", 16 if sh else 12)
        post = (self.cs_loads(CSQ, 4 * KB, 4, 136) if L == 0 else []) + dm[:n]
        self.wq_late = dm[n:]
        self.reduce_and_publish(ACC, steps, 100 * KB, PT, 2 * L + 2, 512 + 4 * L, L == 1, bg, post, bg0=0, bgstep=4, vals=vals)
        self.stamp(f"L{L} P5 done")
    def finish(self):
        E = self.E
        E(f"s_or_b32 s{sA}, s{sR}, s{sJ}\ns_or_b32 s{sA}, s{sA}, s{sW}\ns_cmp_eq_u32 s{sA}, 0\ns_cselect_b32 s{sA}, 0, {OOB}")
        E(f"v_add_u32 v48, s{sA}, v{vSIG}\nv_mov_b32 v49, s0\ns_mov_b32 s{sA}, {EPOCH}\nbuffer_store_dword v49, v48, {s(WS,4)}, s{sA} offen sc1")
        if self.o.get("echo"):
            E(f"s_sub_u32 s{sA}, s{sTS+2}, s{sTS}\ns_mul_i32 s{sA}, s{sA}, {self.o.get('emul', 1)}\ns_add_u32 s{sA}, s{sA}, {self.o.get('eadd', 0)}\ns_memrealtime {s(sTS,2)}"); E.wait_smem()
            E.place("ECHO")
            E(f"s_memrealtime {s(sTS+2,2)}"); E.wait_smem()
            E(f"s_sub_u32 s{sB}, s{sTS+2}, s{sTS}\ns_cmp_lt_u32 s{sB}, s{sA}\ns_cbranch_scc1 ECHO")
        if self.stamps:
            E(f"v_readlane_b32 s{sB}, v{vTS2}, 63\ns_lshl_b32 s{sA}, s{sB}, 2\ns_add_u32 s{sA}, s{sA}, s{sW}\ns_lshl_b32 s{sA}, s{sA}, 8\ns_add_u32 s{sA}, s{sA}, {DBG}")
            E(f"v_lshlrev_b32 v{vT}, 2, v0\nbuffer_store_dword v{vTS}, v{vT}, {s(WS,4)}, s{sA} offen")
            E(f"s_add_u32 s{sA}, s{sA}, 0x40000\nbuffer_store_dword v{vTS2}, v{vT}, {s(WS,4)}, s{sA} offen")
        E("s_endpgm")
        for t in self.tail: E.raw(t.rstrip("\n"))
        E.raw("main_end:")
    def build(self):
        E = self.E
        globals()["NX0"] = self.o.get("nx0", 10)
        globals()["FINAL"] = ("", "sc1", "nt", "sc0 sc1")[self.o.get("fin", 0)]
        g = globals(); ru = self.o.get("reuse", 7)
        if ru & 1: g["HB_STRIDE"] = 0
        if ru & 2: g["OB_STRIDE"] = 0
        if ru & 8: g["KV_STRIDE"] = 0
        E.raw("; @launch grid=(256,1,1) block=(256,1,1) lds=163840")
        E.raw('.amdgcn_target "amdgcn-amd-amdhsa--gfx950"')
        self.prologue()
        n = 0
        for L in range(2):
            for ph in (self.p1, self.p2, self.p3, self.p4, self.p5):
                if n < self.stop: ph(L)
                n += 1
        self.finish()
        kernel_desc(E, KNAME, 256, 256, 102)
        return E.text()

if __name__ == "__main__":
    out = sys.argv[1]
    opts = dict((k, int(x)) for k, x in (a_.split("=") for a_ in sys.argv[3:]))
    g = Gen(stamps=len(sys.argv) > 2 and sys.argv[2] == "ts", opts=opts, mapping="grp" if opts.get("grp") else "mix")
    t = g.build()
    open(out, "w").write(t)
    print(len(t), "bytes", g.E.ninst, "insts", g.E.nnop, "nop states", g.E.stats)
    if g.stamps: open(out + ".names", "w").write("\n".join(g.stnames))
```

```python
from emit import *
from layout import *

SRC1 = 32; SRC2 = 36; sONE = 40
t = list(range(41, 58))
sRHO, sSIG = 58, 59
sU, sS2 = 60, 61
sTK = 62
LDS1 = 0 * KB
LDS2 = 128 * KB
vTK = 248
vA2 = 232
OOB = 0x10000000
NRACE = 2

def split_hi_lo(E, x, t0, t1, d):
    E(f"v_cvt_pk_bf16_f32 v{d+1}, v{x}, 0")
    E(f"v_lshlrev_b32 v{t0}, 16, v{d+1}")
    E(f"v_sub_f32 v{t1}, v{x}, v{t0}")
    E(f"v_cvt_pk_bf16_f32 v{d}, v{t0}, v{t1}")

class Startup:
    def __init__(self, G, M):
        self.G = G; self.E = G.E; self.M = M
    def roles(self, pQ, pO, pG, pU, pD):
        E, M = self.E, self.M
        E(f"s_add_u32 s{sRHO}, s{M.sR}, s{M.sJ}\ns_and_b32 s{sRHO}, s{sRHO}, 15\ns_add_u32 s{sSIG}, s{sRHO}, 4\ns_and_b32 s{sSIG}, s{sSIG}, 15")
        E(f"s_mov_b32 s{SRC1}, s{pQ}\ns_mov_b32 s{SRC1+1}, s{pQ+1}\ns_mov_b32 s{SRC1+2}, {640*1920*2}\ns_mov_b32 s{SRC1+3}, 0x00020000")
        E(f"s_cmp_ge_u32 s{sSIG}, 4\ns_cselect_b64 {s(SRC2,2)}, {s(pU,2)}, {s(pG,2)}")
        E(f"s_cmp_ge_u32 s{sSIG}, 8\ns_cselect_b64 {s(SRC2,2)}, {s(pD,2)}, {s(SRC2,2)}")
        E(f"s_cmp_ge_u32 s{sSIG}, 14\ns_cselect_b64 {s(SRC2,2)}, {s(pO,2)}, {s(SRC2,2)}\ns_cselect_b32 s{SRC2+2}, {640*640*2}, 0")
        E(f"s_cselect_b32 s{t[0]}, 0, {640*1536*2}\ns_add_u32 s{SRC2+2}, s{SRC2+2}, s{t[0]}\ns_mov_b32 s{SRC2+3}, 0x00020000\ns_mov_b32 s{sONE}, 0x3f803f80")
    def s1_load(self):
        E, M = self.E, self.M
        E("v_mul_u32_u24 v48, 6554, v0\nv_lshrrev_b32 v48, 16, v48\nv_mul_u32_u24 v49, 10, v48\nv_sub_u32 v49, v0, v49")
        E("v_mul_u32_u24 v48, 3840, v48\nv_lshl_add_u32 v50, v49, 4, v48")
        E(f"s_lshr_b32 s{t[1]}, s{sRHO}, 2\ns_and_b32 s{t[2]}, s{sRHO}, 3\ns_lshl_b32 s{t[2]}, s{t[2]}, 1\ns_add_u32 s{t[2]}, s{t[2]}, s{M.sTH}")
        E(f"s_mul_i32 s{t[3]}, s{t[1]}, 1280\ns_mul_i32 s{t[4]}, s{M.sNB}, 160\ns_add_u32 s{t[3]}, s{t[3]}, s{t[4]}")
        E(f"s_lshl_b32 s{t[4]}, s{t[2]}, 2\ns_add_u32 s{t[4]}, s{t[4]}, s{M.sW}\ns_mul_i32 s{t[4]}, s{t[4]}, {20*3840}\ns_add_u32 s{t[3]}, s{t[3]}, s{t[4]}")
        E(f"s_cmp_ge_u32 s{sRHO}, 12\ns_cselect_b32 s{t[4]}, {OOB}, 0\nv_add_u32 v50, s{t[4]}, v50")
        E(f"s_mul_i32 s{t[4]}, s{M.sW}, 3200\ns_mov_b32 exec_hi, 0x3ffff")
        for i in range(4):
            E(f"s_add_u32 m0, s{t[4]}, {LDS1 + 800*i}")
            if i: E(f"s_add_u32 s{t[3]}, s{t[3]}, {5*3840}")
            self.tok1 = E(f"buffer_load_dwordx4 v50, {s(SRC1,4)}, s{t[3]} offen {'nt' if self.G.o.get('nt1', 1) else ''} lds")
        E("s_mov_b32 exec_hi, -1")
    def leader_clear(self):
        E, M = self.E, self.M
        L = E.label("LC")
        E(f"s_cmp_lg_u32 s{sRHO}, 15\ns_cbranch_scc1 {L}")
        E("v_mov_b32 v60, 0\nv_mov_b32 v61, 0\nv_mov_b32 v62, 0\nv_mov_b32 v63, 0")
        E(f"s_mul_i32 s{t[3]}, s{M.sR}, {ASTR}\ns_add_u32 s{t[3]}, s{t[3]}, {ARENA + A_CNT}\ns_lshl_b32 s{t[4]}, s{M.sW}, 13\ns_add_u32 s{t[4]}, s{t[4]}, s{t[3]}")
        E(f"s_lshr_b32 s{t[16]}, s{M.sW}, 1\nv_lshrrev_b32 v64, s{t[16]}, v0\nv_and_b32 v65, s{t[16]}, v0\nv_lshlrev_b32 v65, 4, v65\nv_lshl_add_u32 v64, v64, 7, v65")
        E(f"buffer_store_dwordx4 v[60:63], v64, {s(M.WS,4)}, s{t[4]} offen sc1", count=False)
        E(f"s_lshl_b32 s{t[4]}, s{M.sW}, 8\ns_add_u32 s{t[3]}, s{t[3]}, s{t[4]}\ns_add_u32 s{t[3]}, s{t[3]}, {20*KB}")
        for k in range(self.G.o.get("nrace", NRACE)):
            for h in range(2): E.raw(f"s_load_dword s{t[16]}, {s(M.WS,2)}, s{t[3]} offset:{1152*k + 8192*h} glc")
        E.place(L); E.hist = []
        E("s_nop 1")
    def leader_race(self):
        E, M = self.E, self.M
        L = E.label("LR")
        E(f"s_cmp_lg_u32 s{sRHO}, 15\ns_cbranch_scc1 {L}")
        E(f"s_mov_b32 s{t[7]}, 0\ns_waitcnt lgkmcnt(0)")
        E("s_memtime s[50:51]"); E.wait_smem()
        for k in range(self.G.o.get("nrace", NRACE)):
            E(f"s_load_dword s49, {s(M.WS,2)}, s{t[3]} offset:{1152*k} glc"); E.wait_smem()
            E("s_memtime s[52:53]"); E.wait_smem()
            E(f"s_sub_u32 s54, s52, s50\ns_load_dword s49, {s(M.WS,2)}, s{t[3]} offset:{1152*k + 8192} glc"); E.wait_smem()
            E("s_memtime s[50:51]"); E.wait_smem()
            E(f"s_sub_u32 s55, s50, s52\ns_cmp_lt_u32 s55, s54\ns_addc_u32 s{t[7]}, s{t[7]}, 0")
        E(f"s_lshl_b32 s{t[5]}, s{M.sR}, 5\ns_add_u32 s{t[5]}, s{t[5]}, s{M.sW}\ns_lshl_b32 s{t[5]}, s{t[5]}, 2\ns_add_u32 s{t[5]}, s{t[5]}, {VOTE}\nv_add_u32 v60, s{t[7]}, v{vTK}")
        E(f"buffer_store_dword v60, v{M.vSIG}, {s(M.WS,4)}, s{t[5]} offen sc1", count=False)
        E.place(L); E.hist = []
    def x_touch(self):
        E, M = self.E, self.M
        E(f"s_lshl_b32 s{t[4]}, s{M.sR}, 4\ns_add_u32 s{t[4]}, s{t[4]}, s{M.sJ}\ns_lshl_b32 s{t[4]}, s{t[4]}, 2\ns_add_u32 s{t[4]}, s{t[4]}, s{M.sW}\ns_mul_i32 s{t[4]}, s{t[4]}, 2560")
        E(f"v_min_u32 v51, 19, v0\nv_lshlrev_b32 v51, 7, v51\nbuffer_load_dword v246, v51, {s(M.XIN,4)}, s{t[4]} offen")
    def s2_addrs(self):
        E, M = self.E, self.M
        a_, b_, c_, d_, e_ = t[5], t[6], t[7], t[8], t[9]
        E(f"s_mov_b32 s{b_}, 6554\ns_cmp_lt_u32 s{sSIG}, 8\ns_cselect_b32 s{a_}, 24, 10\ns_cselect_b32 s{b_}, 2731, s{b_}\ns_cselect_b32 s{d_}, s{M.sW}, 0")
        E(f"v_mov_b32 v55, {OOB}")
        E(f"s_mov_b32 s{e_}, 1280\ns_cselect_b32 s{c_}, 3072, s{e_}\ns_lshl_b32 s{d_}, s{d_}, 9")
        E(f"s_cmp_ge_u32 s{sSIG}, 14\ns_cselect_b32 s{e_}, 50, 40\ns_lshl_b32 s{e_}, s{e_}, 3\ns_cmp_lt_u32 s{sSIG}, 8\ns_cselect_b32 s{e_}, 1920, s{e_}")
        for i in range(8):
            E(f"v_add_u32 v52, s{d_}, v0\nv_mul_u32_u24 v53, s{b_}, v52\nv_lshrrev_b32 v53, 16, v53\nv_mul_u32_u24 v54, s{a_}, v53\nv_sub_u32 v54, v52, v54")
            E(f"v_mul_u32_u24 v53, s{c_}, v53\nv_lshl_add_u32 v53, v54, 4, v53\nv_cmp_gt_u32 vcc, s{e_}, v52\nv_cndmask_b32 v{vA2+i}, v55, v53, vcc\ns_add_u32 s{d_}, s{d_}, 64")
        E(f"s_and_b32 s{a_}, s{sSIG}, 3\ns_lshl_b32 s{a_}, s{a_}, 1\ns_add_u32 s{a_}, s{a_}, s{M.sTH}\ns_mul_i32 s{a_}, s{a_}, {80*3072}\ns_mul_i32 s{b_}, s{M.sNB}, 384\ns_add_u32 s{a_}, s{a_}, s{b_}")
        E(f"s_cmp_ge_u32 s{sSIG}, 14\ns_cselect_b32 s{b_}, 2, 6\ns_cselect_b32 s{c_}, 14, 8\ns_cselect_b32 s{d_}, 40, 32")
        E(f"s_mul_i32 s{b_}, s{b_}, s{M.sTH}\ns_add_u32 s{b_}, s{b_}, s{sSIG}\ns_sub_u32 s{b_}, s{b_}, s{c_}\ns_lshl_b32 s{b_}, s{b_}, 2\ns_add_u32 s{sU}, s{b_}, s{M.sW}")
        E(f"s_mul_i32 s{b_}, s{sU}, s{d_}\ns_mul_i32 s{b_}, s{b_}, 1280\ns_mul_i32 s{c_}, s{M.sNB}, 160\ns_add_u32 s{b_}, s{b_}, s{c_}")
        E(f"s_cmp_lt_u32 s{sSIG}, 8\ns_cselect_b32 s{sS2}, s{a_}, s{b_}")
    def s2_load(self, i):
        M = self.M
        return f"s_lshl_b32 s{t[0]}, s{M.sLW}, 1\ns_add_u32 m0, s{t[0]}, {LDS2 + 1024*i}\nbuffer_load_dwordx4 v{vA2+i}, {s(SRC2,4)}, s{sS2} offen {'nt' if self.G.o.get('nt2', 1) else ''} lds"
    def s1_proc(self):
        E, M = self.E, self.M
        Lz, Lend = E.label("WZ"), E.label("WQ")
        E(f"s_cmp_ge_u32 s{sRHO}, 12\ns_cbranch_scc1 {Lz}")
        E("v_lshrrev_b32 v48, 4, v0\nv_bfe_u32 v49, v0, 2, 2\nv_lshl_add_u32 v48, v48, 3, v49\nv_mul_u32_u24 v48, 160, v48")
        E(f"v_bfe_u32 v49, v0, 1, 1\nv_mul_u32_u24 v49, 80, v49\nv_add3_u32 v48, v48, v49, {LDS1}\nv_and_b32 v49, 1, v0")
        E(f"v_bfe_u32 v52, v0, 3, 1\nv_mul_u32_u24 v59, {160*KB}, v52\nv_lshlrev_b32 v54, 12, v52\nv_bfe_u32 v52, v0, 4, 1\nv_lshl_add_u32 v59, v52, 9, v59")
        E("v_and_b32 v52, 7, v0\nv_lshl_add_u32 v59, v52, 4, v59\nv_lshl_add_u32 v54, v52, 4, v54\nv_lshrrev_b32 v52, 4, v0\nv_lshl_add_u32 v54, v52, 28, v54")
        E(f"s_cmp_eq_u32 s{t[1]}, 0\ns_cselect_b32 s{t[5]}, 10, 0\ns_cmp_eq_u32 s{t[1]}, 2\ns_cselect_b32 s{t[5]}, 5, s{t[5]}")
        E(f"s_mul_i32 s{t[6]}, s{M.sNB}, {320*KB}\ns_add_u32 s{t[6]}, s{t[6]}, {WQ}")
        E(f"s_lshl_b32 s{t[7]}, s{M.sNB}, 13\ns_mul_i32 s{t[8]}, s{t[2]}, 0x84\ns_and_b32 s{t[8]}, s{t[8]}, 0x20c\ns_add_u32 s{t[7]}, s{t[7]}, s{t[8]}\ns_add_u32 s{t[7]}, s{t[7]}, {CSQ}")
        done0 = E.vm_done
        for rnd in range(2):
            if rnd == 0:
                E(f"s_and_b32 s{t[8]}, s{M.sW}, 1\ns_lshl_b32 s{t[8]}, s{t[8]}, 3\ns_lshr_b32 s{t[9]}, s{M.sW}, 1\ns_lshl_b32 s{t[9]}, s{t[9]}, 5\ns_add_u32 s{t[8]}, s{t[8]}, s{t[9]}")
                E(f"s_cmp_eq_u32 s{M.sW}, 2\ns_cselect_b32 s{t[9]}, 40, 16\ns_add_u32 s{t[10]}, s{t[5]}, s{M.sW}")
            else:
                E(f"s_cmp_lg_u32 s{M.sW}, 3\ns_cbranch_scc1 {Lend}")
                E(f"s_mov_b32 s{t[8]}, 48\ns_mov_b32 s{t[9]}, 16\ns_add_u32 s{t[10]}, s{t[5]}, 4")
            E(f"v_mul_u32_u24 v55, s{t[9]}, v49\nv_add3_u32 v55, v55, v48, s{t[8]}")
            E(f"s_cmp_ge_u32 s{t[10]}, 8\ns_cselect_b32 s{t[14]}, 1, 2\ns_cselect_b32 s{t[15]}, 40, 1\ns_cselect_b32 s{t[11]}, {80*KB}, 0\ns_lshl_b32 s{t[14]}, s{t[14]}, 10")
            E(f"s_mul_i32 s{t[12]}, s{t[2]}, 5\ns_mul_i32 s{t[12]}, s{t[12]}, s{t[14]}\ns_add_u32 s{t[11]}, s{t[11]}, s{t[12]}")
            E(f"v_lshrrev_b32 v53, 5, v0\nv_mad_u32_u24 v51, v53, s{t[14]}, v59\nv_lshl_add_u32 v53, v53, 28, v51\ns_lshl_b32 s{t[14]}, s{t[14]}, 1")
            E(f"s_bfe_u32 s{t[12]}, s{t[10]}, 0x10002\ns_mul_i32 s{t[12]}, s{t[12]}, s{t[15]}\ns_lshl_b32 s{t[12]}, s{t[12]}, 10")
            E(f"s_add_u32 s{t[11]}, s{t[11]}, s{t[12]}\ns_and_b32 s{t[12]}, s{t[10]}, 3\ns_lshl_b32 s{t[12]}, s{t[12]}, 7\ns_add_u32 s{t[11]}, s{t[11]}, s{t[12]}\ns_add_u32 s{t[11]}, s{t[11]}, s{t[6]}")
            E(f"s_lshr_b32 s{t[13]}, s{t[10]}, 2\ns_lshl_b32 s{t[13]}, s{t[13]}, 10\ns_add_u32 s{t[12]}, s{t[12]}, s{t[13]}\ns_add_u32 s{t[12]}, s{t[12]}, s{t[7]}")
            if rnd == 0:
                E.wait(vm=self.tok1); E("s_barrier")
            d0 = 60 + 16 * rnd
            for y in range(3):
                for rd in range(2): E(f"ds_read_b64_tr_b16 {v(d0+4*y+2*rd,2)}, v55 offset:{(32*y+4*rd)*160}")
            for y in range(3):
                E(f"buffer_store_dwordx4 {v(d0+4*y,4)}, v{53 if y == 2 else 51}, {s(M.WS,4)}, s{t[11]} offen sc1", count=False)
                if y < 2: E(f"s_add_u32 s{t[11]}, s{t[11]}, s{t[14]}")
            E("v_mov_b32 v56, 0")
            for y in range(3):
                if y == 2: E("s_mov_b32 exec_hi, 0")
                for e in range(4): E(f"v_dot2c_f32_bf16 v56, s{sONE}, v{d0+4*y+e}")
            E("s_mov_b32 exec_hi, -1")
            for sw in ("v_permlane32_swap_b32", "v_permlane16_swap_b32"):
                E(f"v_mov_b32 v57, v56\n{sw} v57, v56\nv_add_f32 v56, v57, v56")
            split_hi_lo(E, 56, 57, 58, d0 + 12)
            E(f"buffer_store_dword v{d0+12}, v54, {s(M.WS,4)}, s{t[12]} offen sc1", count=False)
        E.place(Lz)
        E.place(Lend); E.hist = []; E.vm_done = done0
        E("s_nop 1")
    def flag(self, code):
        E, M = self.E, self.M
        L = E.label("FG")
        E(f"s_cmp_lg_u32 s{M.sW}, 0\ns_cbranch_scc1 {L}")
        E(code)
        E(f"buffer_store_dwordx2 {v(vTK,2)}, v{M.vSIG}, {s(M.WS,4)}, s{M.sA} offen sc1", count=False)
        E.place(L)
    def flag1(self):
        M = self.M
        self.flag(f"s_lshl_b32 s{M.sA}, s{M.sJ}, 4\ns_add_u32 s{M.sA}, s{M.sA}, s{sRHO}\ns_lshl_b32 s{M.sA}, s{M.sA}, 7\ns_add_u32 s{M.sA}, s{M.sA}, {F1}")
    def flag2(self):
        M = self.M
        self.flag(f"s_lshl_b32 s{M.sA}, s{M.sJ}, 4\ns_add_u32 s{M.sA}, s{M.sA}, s{M.sR}\ns_lshl_b32 s{M.sA}, s{M.sA}, 7\ns_add_u32 s{M.sA}, s{M.sA}, {F2}")
    def vpoll_issue(self, addr, dst):
        return f"buffer_load_dwordx2 {v(dst,2)}, v{addr}, {s(self.M.WS,4)}, 0 offen sc1"
    def vpoll_check(self, addr, dst, slp):
        def fn():
            E, M = self.E, self.M
            Ls, Lb = E.label("VS"), E.label("VB")
            E(f"v_cmp_ne_u64 vcc, {v(dst,2)}, {v(vTK,2)}\ns_cbranch_vccnz {Ls}")
            E.place(Lb)
            self.G.tail.append(f"{Ls}:\ns_mov_b32 s{M.sF}, 0x100000\n{Ls}_l:\ns_sleep {slp}\n{self.vpoll_issue(addr, dst)}\ns_waitcnt vmcnt(0)\n"
                               f"v_cmp_ne_u64 vcc, {v(dst,2)}, {v(vTK,2)}\ns_nop 1\ns_cbranch_vccz {Lb}\ns_sub_u32 s{M.sF}, s{M.sF}, 1\ns_cmp_lg_u32 s{M.sF}, 0\n"
                               f"s_cbranch_scc1 {Ls}_l\ns_branch {Lb}")
        return fn
    def s2_prep(self):
        E, M = self.E, self.M
        Ld, Lo, Le = E.label("S2"), E.label("S2"), E.label("S2")
        AD = 224; B = 176; C = 168; u = [t[0]] + t[10:16]; u = {0: t[0], 1: t[10], 2: t[11], 3: t[12], 4: t[13], 5: t[14], 6: t[15]}
        for i in range(11): E(f"v_mov_b32 v{AD+i}, {OOB}")
        E(f"s_lshl_b32 s{u[0]}, s{M.sLW}, 1\ns_add_u32 s{u[0]}, s{u[0]}, {LDS2}")
        E(f"s_cmp_ge_u32 s{sSIG}, 14\ns_cbranch_scc1 {Lo}\ns_cmp_ge_u32 s{sSIG}, 8\ns_cbranch_scc1 {Ld}")
        E(f"s_cmp_eq_u32 s{M.sW}, 3\ns_cbranch_scc1 {Le}")
        E(f"v_bfe_u32 v{B}, v0, 2, 2\nv_lshrrev_b32 v{B+1}, 5, v0\nv_lshl_add_u32 v{B}, v{B+1}, 3, v{B}\nv_mul_u32_u24 v{B}, 384, v{B}")
        E(f"v_bfe_u32 v{B+1}, v0, 4, 1\nv_lshl_add_u32 v{B}, v{B+1}, 5, v{B}\nv_and_b32 v{B+1}, 1, v0\nv_lshl_add_u32 v{B}, v{B+1}, 4, v{B}")
        E(f"v_bfe_u32 v{B+1}, v0, 1, 1\nv_lshl_add_u32 v{B}, v{B+1}, 3, v{B}\ns_lshl_b32 s{u[1]}, s{M.sW}, 6\ns_add_u32 s{u[1]}, s{u[1]}, {LDS2}\nv_add_u32 v{B}, s{u[1]}, v{B}")
        E(f"v_lshrrev_b32 v{B+1}, 5, v0\nv_mul_u32_u24 v{B+1}, {6*KB - 512}, v{B+1}\nv_add_u32 v{B+1}, v{B+1}, v{M.vL16}")
        E(f"s_mul_i32 s{u[1]}, s{M.sNB}, 6\ns_add_u32 s{u[1]}, s{u[1]}, s{M.sW}\ns_lshr_b32 s{u[2]}, s{sSIG}, 2\ns_lshl_b32 s{u[2]}, s{u[2]}, 10")
        E(f"s_and_b32 s{u[5]}, s{sSIG}, 3\ns_lshl_b32 s{u[5]}, s{u[5]}, 1\ns_add_u32 s{u[5]}, s{u[5]}, s{M.sTH}")
        E(f"s_mul_i32 s{u[3]}, s{u[1]}, {80*KB}\ns_mul_i32 s{u[4]}, s{u[5]}, {10*KB}\ns_add_u32 s{u[3]}, s{u[3]}, s{u[4]}\ns_add_u32 s{u[3]}, s{u[3]}, s{u[2]}\ns_add_u32 s{u[3]}, s{u[3]}, {WGU}")
        E(f"s_lshl_b32 s{u[4]}, s{u[1]}, 11\ns_add_u32 s{u[4]}, s{u[4]}, s{u[2]}\ns_mul_i32 s{u[2]}, s{u[5]}, 0x84\ns_and_b32 s{u[2]}, s{u[2]}, 0x20c\ns_add_u32 s{u[4]}, s{u[4]}, s{u[2]}\ns_add_u32 s{u[4]}, s{u[4]}, {CSG}")
        E(f"v_add_u32 v{AD}, s{u[3]}, v{M.vL16}\nv_add_u32 v{AD+10}, s{u[4]}, v{B+1}")
        for k in range(1, 10): E(f"v_add_u32 v{AD+k}, {240*KB*(k // 5) + 2048*(k % 5)}, v{AD}")
        E(f"s_branch {Le}")
        E.place(Ld); E.hist = []
        E(f"v_bfe_u32 v{B}, v0, 2, 2\nv_lshrrev_b32 v{B+1}, 4, v0\nv_lshl_add_u32 v{B}, v{B+1}, 3, v{B}\nv_mul_u32_u24 v{B}, 160, v{B}")
        E(f"v_add_u32 v{B}, s{u[0]}, v{B}\nv_and_b32 v{B+2}, 3, v0\nv_lshl_add_u32 v{B+1}, v{B+2}, 3, v{B}\nv_lshl_add_u32 v{B}, v{B+2}, 5, v{B}")
        E(f"v_mov_b32 v{C}, s{u[0]}\nv_mov_b32 v{C+1}, s{u[0]}")
        E(f"s_mul_i32 s{u[1]}, s{sU}, 21846\ns_lshr_b32 s{u[1]}, s{u[1]}, 16\ns_mul_i32 s{u[3]}, s{u[1]}, 3\ns_sub_u32 s{u[3]}, s{sU}, s{u[3]}")
        E(f"s_lshl_b32 s{u[3]}, s{u[3]}, 2\ns_and_b32 s{u[4]}, s{u[1]}, 3\ns_add_u32 s{u[3]}, s{u[3]}, s{u[4]}\ns_mul_i32 s{u[3]}, s{u[3]}, {5*KB}")
        E(f"s_lshr_b32 s{u[4]}, s{u[1]}, 2\ns_mul_i32 s{u[4]}, s{u[4]}, {60*KB}\ns_add_u32 s{u[3]}, s{u[3]}, s{u[4]}")
        E(f"s_mul_i32 s{u[4]}, s{M.sNB}, {240*KB}\ns_add_u32 s{u[3]}, s{u[3]}, s{u[4]}\ns_add_u32 s{u[3]}, s{u[3]}, {WD}")
        E(f"v_add_u32 v{AD}, s{u[3]}, v{M.vL16}")
        for nt in range(1, 5): E(f"v_add_u32 v{AD+nt}, {1024*nt}, v{AD}")
        E(f"s_branch {Le}")
        E.place(Lo); E.hist = []
        E(f"v_lshrrev_b32 v{B+2}, 4, v0\nv_and_b32 v{B+3}, 1, v{B+2}\nv_lshrrev_b32 v{B+4}, 5, v0\nv_mul_u32_u24 v{B+5}, 20, v{B+4}\nv_lshl_add_u32 v{B+5}, v{B+3}, 3, v{B+5}")
        E(f"v_bfe_u32 v{B}, v0, 2, 2\nv_add_u32 v{B+5}, v{B+5}, v{B}\nv_mul_u32_u24 v{B+5}, 160, v{B+5}\nv_add_u32 v{B+5}, s{u[0]}, v{B+5}")
        E(f"v_and_b32 v{B+6}, 3, v0\nv_mul_u32_u24 v{B}, 160, v{B}\nv_add_u32 v{B+7}, s{u[0]}, v{B}")
        E(f"v_lshl_add_u32 v{B}, v{B+6}, 5, v{B+5}\nv_lshl_add_u32 v{B+1}, v{B+6}, 3, v{B+5}")
        E(f"v_lshl_add_u32 v{C}, v{B+6}, 5, v{B+7}\nv_lshl_add_u32 v{C}, v{B+2}, 3, v{C}\nv_lshl_add_u32 v{C+1}, v{B+6}, 3, v{B+7}")
        E(f"v_and_b32 v{C+2}, 15, v0\nv_lshlrev_b32 v{C+2}, 4, v{C+2}\nv_mul_u32_u24 v{C+3}, {10*KB}, v{B+4}\nv_lshl_add_u32 v{C+3}, v{B+3}, 8, v{C+3}\nv_add_u32 v{C+3}, v{C+3}, v{C+2}")
        E(f"v_lshl_add_u32 v{C+4}, v{B+2}, 10, v{C+2}\nv_lshl_add_u32 v{C+5}, v{B+2}, 28, v{C+2}")
        E(f"s_lshr_b32 s{u[1]}, s{sU}, 2\ns_mul_i32 s{u[1]}, s{u[1]}, {25*KB}\ns_mul_i32 s{u[3]}, s{M.sNB}, {100*KB}\ns_add_u32 s{u[1]}, s{u[1]}, s{u[3]}\ns_add_u32 s{u[1]}, s{u[1]}, {WO}")
        E(f"s_lshr_b32 s{u[3]}, s{M.sW}, 1\ns_mul_i32 s{u[3]}, s{u[3]}, {5*KB}\ns_and_b32 s{u[4]}, s{M.sW}, 1\ns_lshl_b32 s{u[4]}, s{u[4]}, 9\ns_add_u32 s{u[3]}, s{u[3]}, s{u[4]}")
        E(f"s_add_u32 s{u[3]}, s{u[3]}, s{u[1]}")
        E(f"s_lshl_b32 s{u[5]}, s{M.sW}, 8\ns_add_u32 s{u[5]}, s{u[5]}, s{u[1]}\ns_add_u32 s{u[5]}, s{u[5]}, {20*KB}\ns_add_u32 s{u[6]}, s{u[5]}, 4096")
        E(f"v_add_u32 v{AD}, s{u[3]}, v{C+3}\nv_add_u32 v{AD+5}, s{u[5]}, v{C+4}\nv_add_u32 v{AD+6}, s{u[6]}, v{C+5}")
        for nt in range(1, 5): E(f"v_add_u32 v{AD+nt}, {1024*nt}, v{AD}")
        E.place(Le); E.hist = []
        E("s_nop 1")
    def s2_read(self):
        E, M = self.E, self.M
        Ld, Le = E.label("S2"), E.label("S2")
        AD = 224; B = 176; C = 168
        E.drain(vm=False)
        E(f"s_cmp_ge_u32 s{sSIG}, 8\ns_cbranch_scc1 {Ld}\ns_cmp_eq_u32 s{M.sW}, 3\ns_cbranch_scc1 {Le}")
        for ks in range(10):
            for rd in range(2): E(f"ds_read_b64_tr_b16 {v(B+8+4*ks+2*rd,2)}, v{B} offset:{(16*(ks%5)+4*rd)*384 + 192*(ks//5)}")
        E(f"s_branch {Le}")
        E.place(Ld); E.hist = []; E.pend = {k: x for k, x in E.pend.items() if x[0] != "ds"}
        for nt in range(5):
            for rd in range(2): E(f"ds_read_b64_tr_b16 {v(B+8+4*nt+2*rd,2)}, v{B+1 if nt == 4 else B} offset:{4*rd*160 + (128 if nt == 4 else 8*nt)}")
        for rd in range(2): E(f"ds_read_b64_tr_b16 {v(B+28+2*rd,2)}, v{C} offset:{(16, 36)[rd]*160}")
        for rd in range(2): E(f"ds_read_b64_tr_b16 {v(B+32+2*rd,2)}, v{C+1} offset:{(16, 36)[rd]*160 + 128}")
        E.place(Le); E.hist = []
        E.drain(vm=False)
        cs = [f"v_mov_b32 v{B+2}, 0", f"v_mov_b32 v{B+3}, 0"]
        for k in range(20):
            cs += [f"v_lshlrev_b32 v{B+4}, 16, v{B+8+k}", f"v_lshlrev_b32 v{B+5}, 16, v{B+28+k}", f"v_add_f32 v{B+2}, v{B+2}, v{B+4}", f"v_add_f32 v{B+3}, v{B+3}, v{B+5}",
                   f"v_and_b32 v{B+4}, 0xffff0000, v{B+8+k}", f"v_and_b32 v{B+5}, 0xffff0000, v{B+28+k}", f"v_add_f32 v{B+2}, v{B+2}, v{B+4}", f"v_add_f32 v{B+3}, v{B+3}, v{B+5}"]
        cs += [f"v_permlane32_swap_b32 v{B+2}, v{B+3}", f"v_add_f32 v{B+2}, v{B+3}, v{B+2}",
               f"v_cvt_pk_bf16_f32 v{B+7}, v{B+2}, 0", f"v_lshlrev_b32 v{B+3}, 16, v{B+7}", f"v_sub_f32 v{B+4}, v{B+2}, v{B+3}", f"v_cvt_pk_bf16_f32 v{B+6}, v{B+3}, v{B+4}"]
        r = [f"buffer_store_dwordx4 {v(B+8+4*i,4)}, v{AD+i}, {s(M.WS,4)}, 0 offen sc1" for i in range(10)]
        return cs, r, lambda: setattr(self, "tok3", E(f"buffer_store_dword v{B+6}, v{AD+10}, {s(M.WS,4)}, 0 offen sc1"))
```

```python
import sys, math, struct, stubs
from emit import *
from layout import *
from startup6 import Startup, NRACE, sTK, vTK, sONE, sRHO, OOB
KNAME = "interleave_layers__sliding_block__glu_gated_geglu__prompt_kernel"

def f2u(x): return hex(struct.unpack("<I", struct.pack("<f", x))[0])

WS = 4; OUT = 8; XIN = 12
sR, sJ, sW, sTH, sNB = 16, 17, 18, 19, 20
sWQ, sWGU, sWO, sWD, sLW = 21, 22, 23, 24, 25
sXB, sKVme, sOme, sHme = 26, 27, 28, 29
sT0 = 30
sMASK = 32
sRET = 64
sT16 = 66; sT16H = 70
sA, sB, sC, sD, sE_, sF = 74, 75, 76, 77, 78, 79
sFL = 80
sHAL = 89
sKP, sKC, sKT = 91, 92, 3
sRM = 93
sTS = 94
sTP, sTC, sWP, sWC = 98, 99, 100, 101
sP = 2
vL16, vL16b, vL16c = 1, 2, 3
vU = 4; vPOS = 5; vST = 6; vCS = 7; vSIG = 8; vONE = 9
vRW = 10
vXW = 14; vXW5 = 15; vO4 = 16; vSW = 17; vRSTD = 18; vT = 19
vRES = 20
vNM = 40
vC1, vC2, vIV = 44, 45, 46
vKR = 47
vRM, vRM5, vTS, vTS2 = 250, 251, 252, 253
vP = 255; vDUM = 254; vSR = 255
sAR = 1
vTL = 7
sPV = 15
sH8, sH16, sHX = 12, 13, 14
SLOT = 5248; ONES = 12 * SLOT; EPS = 1e-5
AG = 256
EARLY = [216 + 4 * i for i in range(7)]
FINAL = ""
NX0 = 10

class Pool:
    def __init__(self, quads=()): self.free = list(quads)
    def get(self): return self.free.pop(0)
    def put(self, q): self.free.append(q)
    def add(self, qs): self.free += list(qs)

def spread(ev, groups, start, step):
    for i, g in enumerate(groups): ev.setdefault(int(start + i * step), []).append(g)

class Gen:
    def __init__(self, stop=99, stamps=False, mapping="mix", opts=None):
        self.E = Emit(); self.stop = stop; self.stamps = stamps; self.mapping = mapping
        self.sites = []; self.nst = 0; self.stnames = []; self.tail = []; self.o = opts or {}
    def do(self, g):
        if isinstance(g, tuple):
            for x in g: r = self.do(x)
            return r
        if callable(g): return g()
        return self.E(g)
    @staticmethod
    def flat(g):
        if isinstance(g, tuple): return list(g)
        if callable(g): return [g]
        l = g.split("\n")
        return [x for x in ("\n".join(l[:-1]), l[-1]) if x]
    def stamp(self, name):
        if self.o.get("verbose") == 2:
            print(f"{name:18s} issue cost {self.E.cost - getattr(self, 'c0', 0):6d}  vmem {self.E.stats.get('vmem', 0) - getattr(self, 'v0', 0)}"); self.c0 = self.E.cost; self.v0 = self.E.stats.get('vmem', 0)
        ec = self.o.get("echo", 0)
        if ec and name == ("", "WQ synced", "L0 halo in", "L0 P4 synced", "L1 P1 synced", "L1 P5 done", "L1 P4 synced", "L1 halo in", "L1 P3 synced", "L1 P4 p2", "L0 P3 synced")[ec]:
            self.E(f"s_memrealtime {s(sTS+2,2)}"); self.E.wait_smem()
        if not self.stamps or self.E.smem_out: return
        if self.o.get("ends") and name not in ("L1 P5 done", "L1 P1 synced", "WQ synced", "L0 P4 synced", "L1 P4 synced", "L0 P3 synced", "L1 P3 synced", "L0 halo in", "L1 halo in"): return
        E = self.E
        E(f"s_memrealtime {s(sTS,2)}\ns_memtime {s(sTS+2,2)}"); E.wait_smem()
        E(f"v_writelane_b32 v{vTS}, s{sTS}, {self.nst}\nv_writelane_b32 v{vTS2}, s{sTS+2}, {self.nst}")
        self.nst += 1; self.stnames.append(name)
    def dma4(self, sbase, goff, ldsoff, rec=None, fl="sc1"):
        g = [f"s_add_u32 m0, s{sLW}, {ldsoff}\ns_add_u32 s{sT0}, s{sbase}, {goff}\nbuffer_load_dwordx4 v{vL16}, {s(WS,4)}, s{sT0} offen {fl} lds"]
        for i in range(1, 4): g.append(f"buffer_load_dwordx4 v{vL16}, {s(WS,4)}, s{sT0} offen offset:{1024*i} {fl} lds")
        h = g[0].split("\n")
        def guarded(x, r):
            def fn():
                assert self.E.lastw["m0"] == h[0] and self.E.lastw[f"s{sT0}"] == h[1], "DMA group interleaved"
                t = self.E(x)
                if r is not None: r.append(t)
            return fn
        return [g[0], guarded(g[1], None), guarded(g[2], None), guarded(g[3], rec)]
    def wread(self, dst, ldsaddr):
        return f"ds_read_b128 {R(dst,4)}, v{vL16+(ldsaddr >> 16)} offset:{ldsaddr & 0xffff}"
    def signal(self, sreg, imm, tok, va=None):
        def fn():
            self.E.wait(vm=tok() if callable(tok) else tok)
            self.E(f"buffer_atomic_add v{vONE}, v{va or vSIG}, {s(WS,4)}, s{sreg} offen offset:{imm} sc1")
        return fn
    def poll_issue(self, sreg, imm):
        if self.o.get("spoll", 1): return f"s_load_dword s{sPV}, {s(WS,2)}, s{sreg} offset:{imm} glc"
        return f"buffer_load_dword v{vP}, v{vSIG}, {s(WS,4)}, s{sreg} offen offset:{imm} sc1"
    def poll_check(self, sreg, imm, thr, slp=None):
        def fn():
            E = self.E
            Ls, Lb = E.label("SP"), E.label("BK")
            sc = self.o.get("spoll", 1)
            assert E.lastw.get(f"s{sPV}") == self.poll_issue(sreg, imm), "poll checked without its load"
            E.lastw[f"s{sPV}"] = None
            if sc: E.wait_smem()
            else: E(f"v_readfirstlane_b32 s{sPV}, v{vP}")
            E(f"s_cmp_ge_u32 s{sPV}, {thr}\ns_cbranch_scc0 {Ls}")
            E.place(Lb)
            sl = self.o.get("slp", 0) if slp is None else slp
            cnt = ""
            if self.stamps and self.o.get("ends"):
                self.sites.append(f"{sreg}/{imm}")
                cnt = f"s_sub_u32 s{sPV}, 0x200001, s{sF}\nv_writelane_b32 v{vTS2}, s{sPV}, {12 + len(self.sites)}\n"
            self.tail.append(f"{Ls}:\ns_mov_b32 s{sF}, 0x200000\n{Ls}_l:\n" + cnt + (f"s_sleep {sl}\n" if sl else "") + self.poll_issue(sreg, imm) +
                             ("\ns_waitcnt lgkmcnt(0)\n" if sc else f"\ns_waitcnt vmcnt(0)\nv_readfirstlane_b32 s{sPV}, v{vP}\ns_nop 0\n") +
                             f"s_cmp_ge_u32 s{sPV}, {thr}\ns_cbranch_scc1 {Lb}\ns_sub_u32 s{sF}, s{sF}, 1\ns_cmp_lg_u32 s{sF}, 0\n"
                             f"s_cbranch_scc1 {Ls}_l\ns_branch {Lb}")
        return fn
    def validate(self, quads, reload, tmp):
        rs = [q + e for q in quads for e in range(4)]
        ops = [f"v_max3_u32 v{tmp}, v{rs[0]}, v{rs[1]}, v{rs[2]}"]
        rest = rs[3:]
        while rest:
            if len(rest) >= 2: ops.append(f"v_max3_u32 v{tmp}, v{rest[0]}, v{rest[1]}, v{tmp}"); rest = rest[2:]
            else: ops.append(f"v_max_u32 v{tmp}, v{rest[0]}, v{tmp}"); rest = []
        ops.append(f"v_cmp_eq_u32 vcc, -1, v{tmp}")
        def br():
            E = self.E
            Ls, Lb = E.label("RT"), E.label("RB")
            E(f"s_cbranch_vccnz {Ls}"); E.place(Lb)
            cnt = ""
            if self.stamps and self.o.get("ends"):
                self.sites.append("val")
                cnt = f"s_sub_u32 s{sTS}, 0x200001, s{sF}\nv_writelane_b32 v{vTS2}, s{sTS}, {12 + len(self.sites)}\n"
            self.tail.append(f"{Ls}:\ns_mov_b32 s{sF}, 0x200000\n{Ls}_l:\n" + cnt + "\n".join(reload) + "\ns_waitcnt vmcnt(0)\n" + "\n".join(ops) +
                             f"\ns_sub_u32 s{sF}, s{sF}, 1\ns_nop 0\ns_cbranch_vccz {Lb}\ns_cmp_lg_u32 s{sF}, 0\ns_cbranch_scc1 {Ls}_l\ns_branch {Lb}")
        g = ["\n".join(ops[k:k + 2]) for k in range(0, len(ops), 2)]
        n0 = len(self.E.out); g0 = g[0]
        def first():
            for q in quads:
                assert any(x.startswith(f"buffer_load_dwordx4 {v(q,4)},") for x in self.E.out[n0:]), q
            self.E(g0)
        return [first] + g[1:] + [br]
    def xpoison(self, idx, reg):
        if not self.o.get("early", 0): return []
        return [f"s_add_u32 s{sP}, s{sT16+3}, {self.xt(idx)}\ns_mul_i32 s{sF}, s{sNB}, {5*KB}\ns_add_u32 s{sP}, s{sP}, s{sF}\nbuffer_store_dwordx4 {v(reg,4)}, v{vXW}, {s(WS,4)}, s{sP} offen sc1",
                f"buffer_store_dwordx4 {v(reg,4)}, v{vXW}, {s(WS,4)}, s{sP} offen offset:512 sc1",
                f"s_add_u32 s{sP}, s{sP}, 4096\nbuffer_store_dwordx2 {v(reg,2)}, v{vXW5}, {s(WS,4)}, s{sP} offen sc1",
                f"s_lshl_b32 s{sP}, s{sR}, 4\ns_add_u32 s{sP}, s{sP}, s{sJ}\ns_lshl_b32 s{sP}, s{sP}, 2\ns_add_u32 s{sP}, s{sP}, s{sW}",
                f"s_lshl_b32 s{sP}, s{sP}, 7\ns_add_u32 s{sP}, s{sP}, {STAT + idx*128*KB}\nbuffer_store_dwordx2 {v(reg,2)}, v{vSW}, {s(WS,4)}, s{sP} offen sc1"]
    def nan_net(self, acc, xl, items, allw, ring, imm, stat):
        xr = self.xr
        def fn():
            E = self.E
            Ls, Lb = E.label("NN"), E.label("NB")
            E(f"v_cmp_{'o' if self.o.get('forcenan') else 'u'}_f32 vcc, v{acc}, v{acc}\ns_cbranch_vccnz {Ls}"); E.place(Lb)
            F = Emit(); F.raw(f"{Ls}:")
            if self.stamps and self.o.get("ends"):
                self.sites.append("nan"); F(f"s_mov_b32 s{sTS}, 1\nv_writelane_b32 v{vTS2}, s{sTS}, {12 + len(self.sites)}")
            F("s_waitcnt vmcnt(0) lgkmcnt(0)"); F.settle()
            F(f"s_mov_b32 s{sF}, 0x200000"); F.raw(f"{Ls}_p:")
            F(self.poll_issue(sWC, imm + 8)); F.wait_smem()
            F(f"s_cmp_ge_u32 s{sPV}, 16\ns_cbranch_scc1 {Ls}_q\ns_sub_u32 s{sF}, s{sF}, 1\ns_cmp_lg_u32 s{sF}, 0\ns_cbranch_scc1 {Ls}_p"); F.raw(f"{Ls}_q:")
            F(f"s_mov_b32 s{sF}, s{sE_}")
            for g in xl: F(g)
            F(f"s_mov_b32 s{sE_}, s{sF}\ns_mov_b32 s{sF}, s{sC}")
            for g in stat: F(g)
            F(f"s_mov_b32 s{sC}, s{sF}")
            f = 0
            for k in range(6): F(self.wread(ring + 4 * k, allw[k]))
            for it in items:
                if it[0] == "cs": F(f"v_mfma_f32_32x32x16_bf16 {v(it[1],16)}, {R(it[2],4)}, {v(vNM,4)}, {v(it[1],16)}")
                else:
                    F(f"v_mfma_f32_32x32x16_bf16 {v(it[0],16)}, {R(ring+4*(f%6),4)}, {a(xr(it[1]),4)}, {'0' if it[2] else v(it[0],16)}")
                    F(self.wread(ring + 4 * (f % 6), allw[f + 6])); f += 1
            F.drain(); F.settle()
            F(f"s_branch {Lb}")
            self.tail.append(F.text())
        return fn
    def window(self, k):
        if self.o.get("stub", 70) >> k & 1: self.E.raw(";@WIN")
    def poll_block(self, sreg, imm, thr):
        if not self.preissued: self.E(self.poll_issue(sreg, imm))
        self.window(4 if imm < 512 else 6)
        self.poll_check(sreg, imm, thr)()
    def T(self, kind, L): return 1024 * kind + 4 * L if kind < 4 else 8 + 4 * L
    def touch(self, sreg, sh, off):
        def fn():
            self.E(f"s_add_u32 s{sP}, s{sreg}, s{sh}\ns_add_u32 s{sP}, s{sP}, {off}\nbuffer_load_dword v{vDUM}, v{vTL}, {s(WS,4)}, s{sP} offen sc1")
            self.E.pend.pop(f"v{vDUM}", None)
        m = self.o.get("touch", 0)
        return fn if (m & (1 if sh == sHX else 2)) else (lambda: None)
    def prologue(self):
        E = self.E
        kernel_header(E, KNAME)
        Lgo = E.label("GO")
        E(f"s_cmp_lt_u32 s2, 256\ns_cbranch_scc1 {Lgo}\ns_endpgm")
        E.place(Lgo)
        if self.stamps: E(f"s_memrealtime {s(sTS,2)}\ns_memtime {s(sTS+2,2)}")
        if self.o.get("echo"): E(f"s_memrealtime {s(sTS,2)}")
        E(f"s_load_dwordx2 {s(WS,2)}, s[0:1], 72\ns_load_dwordx2 {s(OUT,2)}, s[0:1], 56\ns_load_dwordx2 {s(XIN,2)}, s[0:1], 0")
        E("s_load_dwordx4 s[80:83], s[0:1], 8\ns_load_dwordx4 s[84:87], s[0:1], 32\ns_load_dwordx2 s[88:89], s[0:1], 48")
        Lp = E.label("PC")
        E(f"s_getpc_b64 {s(sRET,2)}"); E.place(Lp)
        E(f"s_lshr_b32 s{sA}, s2, 3\nv_lshl_add_u32 v{vT}, v0, 5, s{sA}\nv_lshlrev_b32 v{vT}, 7, v{vT}\nv_min_u32 v{vT}, main_end-{Lp}-4, v{vT}")
        E(f"global_load_dword v247, v{vT}, {s(sRET,2)}")
        E(f"s_mov_b32 s{WS+2}, {WS_BYTES}\ns_mov_b32 s{WS+3}, 0x00020000")
        for b in (OUT, XIN): E(f"s_mov_b32 s{b+2}, {2048*640*2}\ns_mov_b32 s{b+3}, 0x00020000")
        E(f"v_lshrrev_b32 v{vT}, 6, v0\nv_and_b32 v0, 63, v0\nv_readfirstlane_b32 s{sW}, v{vT}")
        E(f"s_and_b32 s{sA}, s2, 7\ns_lshr_b32 s{sB}, s2, 3")
        if self.mapping == "mix":
            E(f"s_lshr_b32 s{sC}, s{sA}, 1\ns_lshl_b32 s{sC}, s{sC}, 2\ns_lshr_b32 s{sR}, s{sB}, 3\ns_add_u32 s{sR}, s{sR}, s{sC}")
            E(f"s_and_b32 s{sC}, s{sA}, 1\ns_lshl_b32 s{sC}, s{sC}, 3\ns_and_b32 s{sJ}, s{sB}, 7\ns_add_u32 s{sJ}, s{sJ}, s{sC}")
        else:
            E(f"s_lshr_b32 s{sR}, s{sB}, 4\ns_lshl_b32 s{sC}, s{sA}, 1\ns_add_u32 s{sR}, s{sR}, s{sC}\ns_and_b32 s{sJ}, s{sB}, 15")
        E(f"s_and_b32 s{sTH}, s{sJ}, 1\ns_lshr_b32 s{sNB}, s{sJ}, 1\ns_lshl_b32 s{sLW}, s{sW}, 12")
        E(f"v_lshlrev_b32 v{vL16}, 4, v0")
        if self.stamps: E(f"v_mov_b32 v{vTS}, 0\nv_mov_b32 v{vTS2}, 0")
        E.wait_smem()
        if self.stamps:
            E(f"v_writelane_b32 v{vTS2}, s2, 63")
            E(f"v_writelane_b32 v{vTS}, s{sTS}, 0\nv_writelane_b32 v{vTS2}, s{sTS+2}, 0")
            self.nst = 1; self.stnames.append("entry")
        if self.o.get("align", 1):
            E(f"s_sub_u32 s{sA}, 0, s{WS}\ns_and_b32 s{sA}, s{sA}, 0x1fffff\ns_add_u32 s{WS}, s{WS}, s{sA}\ns_addc_u32 s{WS+1}, s{WS+1}, 0\ns_mov_b32 s{WS+2}, {WS_BYTES - 2*MB}")
        wo_ = self.o.get("wsoff", 0) << 20
        if wo_: E(f"s_add_u32 s{WS}, s{WS}, {wo_}\ns_addc_u32 s{WS+1}, s{WS+1}, 0\ns_mov_b32 s{WS+2}, {WS_BYTES - wo_}")
        S = self.S = Startup(self, sys.modules[__name__])
        S.roles(80, 82, 84, 86, 88)
        S.s1_load(); S.x_touch(); S.leader_clear()
        E(f"v_mov_b32 v{vTK+1}, {EPOCH}\nbuffer_load_dword v{vTK}, v{vTK+1}, {s(WS,4)}, 0 offen sc1")
        self.stamp("st S1 issued")
        if self.o.get("alpos", 0): E.raw(";@ALIGN"); self.window(10)
        S.s2_addrs()
        self.s2q = [(lambda i=i: setattr(S, "tok2", E(S.s2_load(i)))) for i in range(8)]
        if self.o.get("s2when", 2) == 0:
            while self.s2q: self.s2q.pop(0)()
        E(f"s_lshl_b32 s{sA}, s{sR}, 2\ns_add_u32 s{sA}, s{sA}, s{sW}\ns_mul_i32 s{sTK}, s{sA}, {40*KB}")
    def masks(self):
        r = []
        for i in range(16):
            m = 0
            for l in range(64):
                if (i & 3) + 8 * (i >> 2) + 4 * (l >> 5) <= (l & 31): m |= 1 << l
            r.append(f"s_mov_b32 s{sMASK+2*i}, {hex(m & 0xffffffff)}\ns_mov_b32 s{sMASK+2*i+1}, {hex(m >> 32)}")
        return r
    def x_bounce(self, T, wdm):
        E = self.E; S = self.S
        XA = 96; XR = 100; TM = 104; PA, PD = 240, 242
        o = self.o; X0 = 64 * KB
        E(f"v_lshrrev_b32 v48, 3, v0\nv_mul_u32_u24 v48, 1280, v48\nv_and_b32 v49, 7, v0\nv_lshrrev_b32 v50, 4, v0\nv_xor_b32 v49, v49, v50\nv_lshl_add_u32 v{XA}, v49, 4, v48")
        E(f"v_xor_b32 v{XA+1}, 64, v{XA}\nv_add_u32 v{XA+2}, {2*9216}, v{XA}\nv_add_u32 v{XA+3}, {3*9216}, v{XA+1}\nv_add_u32 v{XA+1}, 9216, v{XA+1}")
        tok = []
        def dma(ch):
            E(f"s_add_u32 m0, s{sLW}, {X0 + 16*KB*(ch%4)}\ns_add_u32 s{sE_}, s{sTK}, {128*ch}")
            for i in range(4): t = E(f"buffer_load_dwordx4 v{XA+i}, {s(XIN,4)}, s{sE_} offen offset:{1024*i} lds")
            tok.append(t)
        E(f"s_mul_i32 s{sWQ}, s{sJ}, {160*KB}\ns_add_u32 s{sWQ}, s{sWQ}, s{sLW}\ns_add_u32 s{sWQ}, s{sWQ}, {WQ}")
        E(f"v_min_u32 v{vSIG}, 1, v0\nv_lshlrev_b32 v{vSIG}, 28, v{vSIG}\nv_mov_b32 v{vONE}, 1")
        E(f"v_and_b32 v48, 31, v0\nv_lshrrev_b32 v49, 5, v0\nv_bfe_u32 v50, v0, 1, 3\nv_xor_b32 v49, v49, v50\nv_lshlrev_b32 v49, 4, v49\nv_lshl_add_u32 v48, v48, 7, v49")
        E(f"s_add_u32 s{sA}, s{sLW}, {X0}\nv_add_u32 v{XR}, s{sA}, v48")
        for k in range(1, 4): E(f"v_xor_b32 v{XR+k}, {32*k}, v{XR}")
        E(f"v_mov_b32 v{T}, 0\nv_mov_b32 v{T+1}, 0")
        E(f"s_lshl_b32 s{sA}, s{sNB}, 12\ns_add_u32 s{sA}, s{sA}, {F1}\ns_sub_u32 s{sB}, 15, s{sR}\ns_mov_b32 s{sC}, {F1 + 15*128}")
        E(f"v_and_b32 v49, 3, v0\nv_min_u32 v49, 2, v49\nv_add_u32 v49, s{sB}, v49\nv_min_u32 v49, 15, v49\nv_lshl_add_u32 v49, v49, 11, s{sC}")
        E(f"s_lshr_b32 s{sB}, s{sW}, 1\ns_add_u32 s{sB}, s{sB}, s{sR}\ns_max_u32 s{sB}, s{sB}, 2\ns_sub_u32 s{sB}, s{sB}, 2\ns_lshl_b32 s{sB}, s{sB}, 7\ns_add_u32 s{sB}, s{sB}, {VOTE}")
        E(f"s_lshl_b32 s{sC}, s{sR}, 7\ns_add_u32 s{sC}, s{sC}, {VOTE}\nv_mov_b32 v174, {OOB}\nv_writelane_b32 v174, s{sC}, 0\nv_writelane_b32 v174, s{sB}, 32")
        E(f"v_lshl_add_u32 v48, v0, 7, s{sA}\nv_cmp_gt_u32 vcc, 32, v0\nv_cndmask_b32 v{PA}, v49, v48, vcc")
        E(f"s_lshl_b32 s{sA}, s{sNB}, 12\ns_add_u32 s{sA}, s{sA}, {F2}\nv_and_b32 v48, 31, v0\nv_lshl_add_u32 v{PA+1}, v48, 7, s{sA}")
        prep = S.s2_prep if not o.get("s2when", 2) else (lambda: None)
        if o.get("cfirst", 1): self.prologue2(); prep()
        if not o.get("alpos", 0): E.raw(";@ALIGN")
        self.window(0)
        S.s1_proc()
        self.stamp("st S1 stored")
        for ch in range(0, 2): dma(ch)
        if not o.get("cfirst", 1): self.prologue2(); prep()
        E(f"s_mov_b32 s{sA}, 0x9e3779b1\nv_mul_lo_u32 v{vTK}, v{vTK}, s{sA}\nv_add_u32 v{vTK}, 0x7f4a7c15, v{vTK}\nv_xor_b32 v{vTK+1}, 0x5bd1e995, v{vTK}")
        E(f"v_readfirstlane_b32 s0, v{vTK}")
        if o.get("racepos", 1) == 0: S.leader_race()
        dma(2)
        if o.get("racepos", 1) == 1: S.leader_race()
        self.window(1)
        E.wait(vm=tok[0] - 3); E("s_barrier"); S.flag1(); self.stamp("st F1")
        dma(3)
        self.s2r = None
        nx = o.get("s2x", 10) if not o.get("s2when", 2) else 0
        if nx: self.s2r = S.s2_read()
        pi, pc = o.get("f1poll", 5), o.get("f1chk", 8)
        def dots(ch):
            tm = TM + 16 * (ch & 1)
            for e in range(16): E(f"v_dot2c_f32_bf16 v{T}, s{sONE}, v{tm+e}\nv_dot2c_f32_bf16 v{T+1}, v{tm+e}, v{tm+e}")
        for ch in range(10):
            E.wait(vm=tok[ch])
            for k in range(4): E(f"ds_read_b128 {v(TM+16*(ch&1)+4*k,4)}, v{XR+k} offset:{16*KB*(ch%4)}")
            for k in range(4): E(f"ds_read_b128 {a(16*ch+4*k,4)}, v{XR+k} offset:{16*KB*(ch%4)}")
            if ch == pi:
                E(f"s_cmp_eq_u32 s{sW}, 0\ns_cselect_b32 s{sA}, 0, {OOB}\nv_add_u32 v{PA}, s{sA}, v{PA}")
                E(S.vpoll_issue(PA, PD))
            if ch: dots(ch - 1)
            E.drain(vm=False)
            if ch + 4 < 10: dma(ch + 4)
            if ch == o.get("s2ch", 0):
                while self.s2q: self.s2q.pop(0)()
                if o.get("s2when", 2): S.s2_prep()
            for _ in range(o.get("s2n", 2)):
                if ch < nx and ch >= o.get("s2f", 5) and self.s2r[1]: E(self.s2r[1].pop(0))
            if ch == pc:
                Lw = E.label("PW")
                E.need(regs(v(PD, 2)))
                E(f"s_cmp_lg_u32 s{sW}, 0\ns_cbranch_scc1 {Lw}")
                S.vpoll_check(PA, PD, 4)()
                E.place(Lw)
                E("s_barrier")
                self.stamp("WQ synced")
            if ch >= pc and wdm:
                for _ in range(o.get("wfirst", 1)):
                    for g in wdm.pop(0): self.do(g)
        dots(9)
        self.stamp("st x done")
    def sharers(self):
        return [f"s_and_b32 s{sA}, s{sR}, 3\ns_lshl_b32 s{sH8}, s{sA}, 1\ns_add_u32 s{sH8}, s{sH8}, s{sTH}\ns_lshl_b32 s{sH8}, s{sH8}, 11",
                f"s_and_b32 s{sA}, s{sR}, 3\ns_lshl_b32 s{sH16}, s{sA}, 2\ns_add_u32 s{sH16}, s{sH16}, s{sW}\ns_lshl_b32 s{sH16}, s{sH16}, 11\ns_sub_u32 s{sH16}, s{sH16}, s{sLW}",
                f"s_and_b32 s{sHX}, s{sJ}, 7\ns_lshl_b32 s{sHX}, s{sHX}, 11"]
    def prologue2(self):
        E = self.E; NREP = self.o.get("nrep", 4)
        E(f"s_mul_i32 s{sWGU}, s{sJ}, {240*KB}\ns_add_u32 s{sWGU}, s{sWGU}, s{sLW}\ns_add_u32 s{sWGU}, s{sWGU}, {WGU}")
        E(f"s_mul_i32 s{sWO}, s{sNB}, {100*KB}\ns_mul_i32 s{sA}, s{sW}, {25*KB}\ns_add_u32 s{sWO}, s{sWO}, s{sA}\ns_add_u32 s{sWO}, s{sWO}, {WO}")
        E(f"s_mul_i32 s{sWD}, s{sNB}, {240*KB}\ns_mul_i32 s{sA}, s{sW}, {60*KB}\ns_add_u32 s{sWD}, s{sWD}, s{sA}\ns_add_u32 s{sWD}, s{sWD}, {WD}")
        E(f"s_lshl_b32 s{sA}, s{sR}, 2\ns_add_u32 s{sA}, s{sA}, s{sW}")
        for i in range(9):
            E(f"s_cmp_lt_u32 s{sA}, {8-i}\ns_cselect_b32 s{sFL+i}, 0x3f803f80, 0x3f800000" if False else
              f"s_cmp_lt_u32 s{sA}, {8-i}\ns_cselect_b32 s{sFL+i}, 0x3f80, 0\ns_or_b32 s{sFL+i}, s{sFL+i}, 1.0")
        E(f"v_lshlrev_b32 v{vSR}, 10, v0\nv_mov_b32 v48, {OOB}\nv_cmp_gt_u32 vcc, {NREP}, v0\nv_cndmask_b32 v{vSR}, v48, v{vSR}, vcc")
        for i in range(3):
            E(f"s_add_u32 s{sA}, s{sW}, {1+i}\ns_and_b32 s{sA}, s{sA}, 3\ns_mul_i32 s{sA}, s{sA}, {15*KB}\ns_add_u32 s{sA}, s{sA}, {5*KB*i}\nv_add_u32 v{vRW+i}, s{sA}, v{vL16}")
        E(f"s_mul_i32 s{sA}, s{sW}, {15*KB}\nv_add_u32 v{vRW+3}, s{sA}, v{vL16}")
        t0, t1, t2 = 48, 49, 50
        E(f"v_add_u32 v{vL16b}, 0x10000, v{vL16}\nv_add_u32 v{vL16c}, 0x20000, v{vL16}")
        E(f"v_lshrrev_b32 v{t0}, 4, v0\nv_and_b32 v{t1}, 15, v0")
        E(f"v_lshlrev_b32 v{t2}, 9, v{t0}\nv_lshl_add_u32 v{vU}, v{t1}, 4, v{t2}")
        E(f"v_lshlrev_b32 v{t2}, 10, v{t0}\nv_lshl_add_u32 v{vXW}, v{t1}, 4, v{t2}")
        E(f"v_lshrrev_b32 v{t2}, 1, v{t0}\nv_lshlrev_b32 v{t2}, 9, v{t2}\nv_lshl_add_u32 v{vXW5}, v{t1}, 4, v{t2}")
        E(f"v_and_b32 v{t2}, 1, v{t0}\nv_lshl_add_u32 v{vXW5}, v{t2}, 3, v{vXW5}")
        E(f"s_mul_i32 s{sA}, s{sNB}, {5*KB}\nv_add_u32 v{vXW}, s{sA}, v{vXW}\ns_add_u32 s{sA}, s{sA}, 4096\nv_add_u32 v{vXW5}, s{sA}, v{vXW5}")
        for r_ in (vXW, vXW5): E(f"v_and_b32 v{t2}, 0xffffe000, v{r_}\nv_add_u32 v{r_}, v{t2}, v{r_}")
        E(f"v_lshlrev_b32 v{vTL}, 7, v{t1}\nv_lshl_add_u32 v{vTL}, v{t0}, 28, v{vTL}")
        E(f"v_lshlrev_b32 v{vSW}, 3, v{t1}\nv_lshl_add_u32 v{vSW}, v{t0}, 28, v{vSW}")
        E(f"v_mul_u32_u24 v{t2}, 1280, v{t1}\nv_lshl_add_u32 v{vRM}, v{t0}, 5, v{t2}\nv_lshl_add_u32 v{vRM5}, v{t0}, 3, v{t2}")
        E(f"s_lshl_b32 s{sA}, s{sR}, 1\ns_add_u32 s{sA}, s{sA}, s{sTH}\ns_lshl_b32 s{sA}, s{sA}, 2\ns_add_u32 s{sA}, s{sA}, s{sW}")
        E(f"s_mul_i32 s{sA}, s{sA}, {16*1280}\ns_mul_i32 s{sB}, s{sNB}, 160\ns_add_u32 s{sRM}, s{sA}, s{sB}")
        E(f"v_lshrrev_b32 v{t0}, 5, v0\nv_and_b32 v{t1}, 31, v0")
        E(f"v_lshlrev_b32 v{t2}, 2, v{t0}\nv_xor_b32 v{t2}, v{t2}, v{t1}\nv_lshlrev_b32 v{t2}, 4, v{t2}\nv_lshl_add_u32 v{vPOS}, v{t0}, 9, v{t2}")
        E(f"v_lshlrev_b32 v{t2}, 3, v{t1}")
        E(f"s_lshl_b32 s{sA}, s{sW}, 8\nv_lshl_add_u32 v{vST}, v{t0}, 12, v{t2}\nv_add_u32 v{vST}, s{sA}, v{vST}")
        E(f"v_lshlrev_b32 v{t2}, 4, v{t1}\nv_lshl_add_u32 v{vO4}, v{t0}, 3, v{t2}")
        E(f"s_mul_i32 s{sA}, s{sW}, {SLOT}\nv_add_u32 v{vKR}, s{sA}, v{vPOS}")
        for g in self.arena_consts(): E(g)
    def arena_fix(self, VV):
        n = self.o.get("numa", -1)
        ld = f"buffer_load_dwordx4 {v(VV,4)}, v174, {s(WS,4)}, 0 offen sc1"
        chk = [f"v_sub_u32 v{VV+k}, v{VV+k}, v{vTK}" for k in range(4)] + [f"v_max3_u32 v175, v{VV}, v{VV+1}, v{VV+2}", f"v_max_u32 v175, v175, v{VV+3}",
               f"v_cmp_lt_u32 vcc, 3, v175\ns_and_b32 vcc_lo, vcc_lo, 1\ns_and_b32 vcc_hi, vcc_hi, 1\ns_or_b32 vcc_lo, vcc_lo, vcc_hi"]
        Ls, Lb = self.E.label("VT"), self.E.label("VB")
        self.tail.append(f"{Ls}:\ns_mov_b32 s{sF}, 0x100000\n{Ls}_l:\ns_sleep 4\n{ld}\ns_waitcnt vmcnt(0)\n" + "\n".join(chk).replace("v175\ns_and", "v175\ns_nop 1\ns_and") +
                         f"\ns_cbranch_scc0 {Lb}\ns_sub_u32 s{sF}, s{sF}, 1\ns_cmp_lg_u32 s{sF}, 0\ns_cbranch_scc1 {Ls}_l\ns_branch {Lb}")
        chk[-1] += f"\ns_cbranch_scc1 {Ls}\n@{Lb}"
        va = chk + [f"v_add3_u32 v{VV}, v{VV}, v{VV+1}, v{VV+2}", f"v_add_u32 v{VV}, v{VV}, v{VV+3}",
              f"v_cmp_le_u32 vcc, {3*self.o.get('nrace', NRACE)}, v{VV}\nv_cndmask_b32 v{VV}, 0, 1, vcc", f"v_lshlrev_b32 v{VV}, 13, v{VV}",
              f"v_readlane_b32 s64, v{VV}, 0", f"v_readlane_b32 s65, v{VV}, 32"]
        r = []
        if self.stamps: r.append(f"v_writelane_b32 v{vTS}, s64, 62")
        if n >= 0:
            r += [f"s_lshr_b32 s64, s{sR}, 3\ns_xor_b32 s64, s64, {n}\ns_lshl_b32 s64, s64, 13",
                  f"s_lshr_b32 s65, s{sW}, 1\ns_add_u32 s65, s65, s{sR}\ns_sub_u32 s65, s65, 2", f"s_bfe_u32 s65, s65, 0x10003\ns_xor_b32 s65, s65, {n}\ns_lshl_b32 s65, s65, 13"]
        own = [sXB, sHme, sKP, sOme, sTP, sTC, sWP, sWC] + [sT16 + i for i in range(8)]
        r += ["\n".join(f"s_add_u32 s{x}, s{x}, s64" for x in own[k:k + 2]) for k in range(0, 16, 2)]
        r += [f"s_cmp_eq_u32 s{sKT}, 0\ns_cselect_b32 s64, s64, s65\ns_cselect_b32 s65, 0, s65",
              f"s_add_u32 s{sHAL}, s{sHAL}, s65\ns_add_u32 s{sKC}, s{sKC}, s64\ns_add_u32 s{sKVme}, s{sKVme}, s64"]
        return va + [r]
    def arena_consts(self):
        NREP = self.o.get("nrep", 4)
        r = [f"s_mul_i32 s{sAR}, s{sR}, {ASTR}\ns_add_u32 s{sAR}, s{sAR}, {ARENA}",
             f"s_lshr_b32 s{sB}, s{sW}, 1\ns_mul_i32 s{sA}, s{sB}, {ASTR}\ns_add_u32 s{sA}, s{sA}, s{sAR}",
             f"s_sub_u32 s{sA}, s{sA}, {2*ASTR}",
             f"s_mul_i32 s{sXB}, s{sW}, {80*KB}\ns_add_u32 s{sXB}, s{sXB}, s{sAR}",
             f"s_lshl_b32 s{sC}, s{sJ}, 14\ns_and_b32 s{sD}, s{sJ}, 3\ns_lshl_b32 s{sD}, s{sD}, 10\ns_add_u32 s{sC}, s{sC}, s{sD}\ns_lshl_b32 s{sHme}, s{sW}, 18\ns_add_u32 s{sHme}, s{sHme}, s{sC}",
             f"s_add_u32 s{sHme}, s{sHme}, s{sAR}\ns_and_b32 s{sD}, s{sW}, 1\ns_lshl_b32 s{sHAL}, s{sD}, 19",
             f"s_add_u32 s{sHAL}, s{sHAL}, s{sC}\ns_add_u32 s{sHAL}, s{sHAL}, s{sA}\ns_add_u32 s{sHAL}, s{sHAL}, {A_KV1}\ns_lshl_b32 s{sC}, s{sJ}, 1",
             f"s_add_u32 s{sKC}, s{sC}, s{sD}\ns_lshl_b32 s{sKC}, s{sKC}, 7\ns_add_u32 s{sKC}, s{sKC}, s{sA}",
             f"s_add_u32 s{sKC}, s{sKC}, {A_KVF}\ns_add_u32 s{sKP}, s{sC}, s{sB}\ns_lshl_b32 s{sKP}, s{sKP}, 7",
             f"s_add_u32 s{sKP}, s{sKP}, s{sAR}\ns_add_u32 s{sKP}, s{sKP}, {A_KVF}\ns_add_u32 s{sKVme}, s{sKP}, 32",
             f"s_add_u32 s{sC}, s{sR}, s{sB}\ns_mov_b32 s{sHAL+1}, {256*KB}\ns_cmp_lt_u32 s{sC}, 2\ns_cselect_b32 s{sHAL}, s{sWQ}, s{sHAL}\n"
             f"s_cselect_b32 s{sHAL+1}, {5*KB}, s{sHAL+1}\ns_cselect_b32 s{sKVme}, s{sKVme}, s{sKC}\ns_cselect_b32 s{sKC}, s{sKP}, s{sKC}\ns_cselect_b32 s{sKT}, 0, 2",
             f"s_lshr_b32 s{sD}, s{sJ}, 2\ns_lshl_b32 s{sOme}, s{sD}, 14\ns_add_u32 s{sOme}, s{sOme}, s{sXB}",
             f"s_add_u32 s{sA}, s{sAR}, {A_CNT}\ns_lshl_b32 s{sC}, s{sB}, 2\ns_add_u32 s{sC}, s{sC}, s{sD}",
             f"s_lshl_b32 s{sC}, s{sC}, 7\ns_add_u32 s{sTP}, s{sA}, s{sC}\ns_lshl_b32 s{sC}, s{sTH}, 2",
             f"s_add_u32 s{sC}, s{sC}, s{sW}\ns_lshl_b32 s{sC}, s{sC}, 7\ns_add_u32 s{sTC}, s{sA}, s{sC}",
             f"s_and_b32 s{sD}, s{sNB}, {NREP-1}\ns_lshl_b32 s{sD}, s{sD}, 10",
             f"s_add_u32 s{sA}, s{sA}, {32*128}\ns_lshl_b32 s{sC}, s{sTH}, 1\ns_add_u32 s{sC}, s{sC}, s{sB}",
             f"s_lshl_b32 s{sC}, s{sC}, 7\ns_add_u32 s{sWP}, s{sA}, s{sC}\ns_lshl_b32 s{sC}, s{sW}, 7",
             f"s_add_u32 s{sWC}, s{sA}, s{sC}\ns_add_u32 s{sWC}, s{sWC}, s{sD}"]
        for i in range(4):
            r += [f"s_add_u32 s{sA}, s{sW}, {1+i}\ns_bfe_u32 s{sB}, s{sA}, 0x10001\ns_and_b32 s{sC}, s{sA}, 1",
                  f"s_lshl_b32 s{sC}, s{sC}, 8\ns_add_u32 s{sC}, s{sC}, s{sAR}\ns_lshl_b32 s{sD}, s{sTH}, 1",
                  f"s_add_u32 s{sB}, s{sB}, s{sD}\ns_mul_i32 s{sT16+i}, s{sB}, {80*KB}\ns_add_u32 s{sT16+i}, s{sT16+i}, s{sC}",
                  f"s_lshl_b32 s{sB}, s{sB}, 2\ns_add_u32 s{sB}, s{sB}, s{sW}\ns_lshl_b32 s{sB}, s{sB}, 16\ns_add_u32 s{sT16H+i}, s{sB}, s{sC}"]
        return r
    def load_residual(self, t):
        ld = [f"buffer_load_dwordx4 {v(t,4)}, v{vRM}, {s(XIN,4)}, s{sRM} offen", f"buffer_load_dwordx4 {v(t+4,4)}, v{vRM}, {s(XIN,4)}, s{sRM} offen offset:16",
              f"buffer_load_dwordx2 {v(t+8,2)}, v{vRM5}, {s(XIN,4)}, s{sRM} offen offset:128"]
        return ld, sum([[f"v_lshlrev_b32 v{vRES+2*i}, 16, v{t+i}", f"v_and_b32 v{vRES+2*i+1}, 0xffff0000, v{t+i}"] for i in range(10)], [])
    def stat_loads(self, idx, t):
        return [(f"s_and_b32 s{sC}, s{sTC}, 0xffffe000\ns_add_u32 s{sC}, s{sC}, {(A_ST - A_CNT + idx*16*KB) & 0xffffffff}\n" if q == 0 else "") +
                f"buffer_load_dwordx2 {v(t+2*q,2)}, v{vST}, {s(WS,4)}, s{sC} offen offset:{1024*q} sc1" for q in range(4)]
    def stat_ops(self, t):
        return [f"v_add_f32 v{t}, v{t}, v{t+2}", f"v_add_f32 v{t+1}, v{t+1}, v{t+3}", f"v_add_f32 v{t+4}, v{t+4}, v{t+6}", f"v_add_f32 v{t+5}, v{t+5}, v{t+7}",
              f"v_add_f32 v{t}, v{t}, v{t+4}", f"v_add_f32 v{t+1}, v{t+1}, v{t+5}", f"v_mov_b32 v{t+2}, v{t}", f"v_mov_b32 v{t+3}, v{t+1}",
              f"v_permlane32_swap_b32 v{t+2}, v{t}", f"v_permlane32_swap_b32 v{t+3}, v{t+1}",
              f"v_add_f32 v{t}, v{t}, v{t+2}", f"v_add_f32 v{t+1}, v{t+1}, v{t+3}",
              f"v_fma_f32 v{t}, v{t+1}, 0, v{t}",
              f"v_mul_f32 v{t}, {f2u(-1/640)}, v{t}", f"v_mul_f32 v{t+1}, {f2u(1/640)}, v{t+1}",
              f"v_fma_f32 v{t+1}, -v{t}, v{t}, v{t+1}", f"v_cvt_pk_bf16_f32 v{vNM}, v{t}, v{t}", f"v_max_f32 v{t+1}, 0, v{t+1}",
              f"v_mov_b32 v{vNM+1}, v{vNM}", f"v_add_f32 v{vIV}, {f2u(EPS)}, v{t+1}", f"v_mov_b32 v{vNM+2}, v{vNM}",
              f"v_rsq_f32 v{vRSTD}, v{vIV}", f"v_mov_b32 v{vNM+3}, v{vNM}"]
    def cs_loads(self, base, stride, ntile, dst):
        g = []
        for t in range(ntile):
            p = ""
            if t == 0: p = f"s_mul_i32 s{sD}, s{sJ}, {stride}\ns_add_u32 s{sD}, s{sD}, {base}\n"
            if t == 4: p = f"s_add_u32 s{sD}, s{sD}, 4096\n"
            g.append(p + f"buffer_load_dwordx4 {R(dst+4*t,4)}, v{vL16}, {s(WS,4)}, s{sD} offen offset:{1024*(t%4)} sc1")
        return g
    def xloads(self, base):
        g = []
        for ks in range(40):
            t = f"s_add_u32 s{sE_}, s{sXB}, {base + 16*KB*(ks >> 3) + 1024*(ks & 4)}\n" if ks % 4 == 0 else ""
            g.append(t + f"buffer_load_dwordx4 {a(self.xr(ks),4)}, v{vL16}, {s(WS,4)}, s{sE_} offen offset:{1024*(ks%4)} sc1")
        return g
    def xstart(self, xl, base):
        n = self.o.get("xt", 2)
        for g in xl[:n]: self.E(g)
        for k in range(2): self.touch(sXB, sHX, base + 8 * KB + 16 * KB * k)()
        for g in xl[n:NX0]: self.E(g)
        self.window(7 if base == self.xt(2) else 8)
    def xt(self, i): return A_X[i] or 0
    def fine(self, tag, sl):
        st = self.o.get("fine_" + tag, 0)
        if st and sl and sl % st == 0: self.stamp(f"{tag}@{sl}")
    def wstream(self, items, pos0, allw, ring, ev=None, valu=None, pre=None, budget=32, tag=""):
        E = self.E; LA = 6
        ev = ev or {}; valu = list(valu or []); pre = pre or {}
        f = pos0; over = 0; defer = []
        for sl, it in enumerate(items):
            self.fine(tag, sl)
            for g in pre.get(sl, []): self.do(g)
            if it[0] == "cs":
                assert not any(isinstance(x, str) and f"v{vNM+3}," in x for _, x in valu), "stats not ready"
                E(f"v_mfma_f32_32x32x16_bf16 {v(it[1],16)}, {R(it[2],4)}, {v(vNM,4)}, {v(it[1],16)}")
                c0 = E.cost - 8
            else:
                acc, ks, first = it
                if f % 2 == 0: E.need(regs(R(ring + 4 * (f % LA), 4)) | regs(R(ring + 4 * ((f + 1) % LA), 4)) | regs(a(self.xr(ks), 4)))
                E(f"v_mfma_f32_32x32x16_bf16 {v(acc,16)}, {R(ring+4*(f%LA),4)}, {a(self.xr(ks),4)}, {'0' if first else v(acc,16)}")
                c0 = E.cost - 8
                if f + LA < len(allw): E(self.wread(ring + 4 * (f % LA), allw[f + LA]))
                f += 1
            for g in ev.get(sl, []): self.do(g)
            if defer and self.o.get("verbose") == 1: print("   ", tag, "deferred op at slot", sl)
            if defer: self.do(defer.pop(0))
            lim = budget - (4 if f % 2 == 0 else 0)
            while valu and valu[0][0] <= sl:
                x = valu[0][1]
                if isinstance(x, list): defer += x; valu.pop(0); continue
                c = sum(8 if y.startswith(TRANS) else 4 for y in x.split("\n"))
                if E.cost - c0 + c > lim and not (c > 16 and E.cost - c0 <= 12): break
                valu.pop(0); E(x)
            over += max(0, E.cost - c0 - lim)
        if self.o.get("verbose"): print(tag, "over budget", over, "left valu", len(valu))
        valu += [(0, defer)]
        assert max(list(ev) + list(pre) + [0]) < len(items), (max(list(ev) + list(pre)), len(items))
        for _, x in valu:
            for y in (x if isinstance(x, list) else [x]): self.do(y)
    @staticmethod
    def pair_items(acc, cs):
        return [(acc[sl & 1], sl >> 1, sl < 2) for sl in range(80)] + [("cs", acc[0], cs), ("cs", acc[1], cs + 4)]
    def p1(self, L):
        E = self.E; o = self.o
        ACC = [48, 64, 80, 96]; RING = 112; CS = 136
        KA, KB_, KV1, VA, VB = 152, 156, 160, 164, 168
        QA0, QB0, QA1, QB1 = 172, 176, 180, 184
        self.Q = (QA0, QB0, QA1, QB1)
        MK = self.MK = 188; VAD = self.VAD = [196, 205]; K1 = self.K1 = AG
        self.WOF = [AG + 160 + 4 * f for f in range(24)] + [244]
        self.xr = lambda ks: 4 * ks
        xl = self.xloads(self.xt(2 * L))
        allw = [1024 * f for f in range(80)] + [1024 * f for f in range(80, 160)]
        tok = []
        if L == 0:
            dm = [self.dma4(sWQ, 16 * KB * c, 16 * KB * c, tok) for c in range(10)]
            wdm = list(dm)
            self.x_bounce(152, wdm)
            c0 = 10 - len(wdm)
            self.window(9)
            if o.get("s2when", 2): E.wait(vm=self.S.tok2); E("s_barrier")
            s2cs, s2st, s2last = self.s2r or self.S.s2_read()
            self.stamp("st S2 read")
            late = sum(dm[2:], [])
        else:
            E.wait(vm=self.wq_tok[1]); E("s_barrier")
            for f in range(6): E(self.wread(RING + 4 * f, allw[f]))
            self.poll_block(sWC, 512 + 4 * (L - 1), 16)
            self.stamp("L1 P1 synced")
            self.xstart(xl, self.xt(2 * L))
            resops = []; late = self.wq_late; tok = self.wq_tok
        def ready(c): return lambda: (E.wait(vm=tok[c]), E("s_barrier"))
        if L == 0:
            ready(0)()
            for f in range(6): E(self.wread(RING + 4 * f, allw[f]))
        ev = {}; pre = {}
        so = self.stat_ops(152)
        if L == 0:
            for c in range(1, 5): pre[16 * c - 6] = [ready(c)]
            nA = o.get("lateA", 9)
            seq = []
            for c in range(c0, nA):
                seq += dm[c]
                if c == 4: seq += self.cs_loads(CSQ, 4 * KB, 4, CS)
            spread(ev, seq, 0, o.get("lateS", 26) / 10)
            spread(ev, s2st, o.get("s2s0", 0), o.get("s2sS", 10) / 10)
            spread(ev, self.masks(), 31, 3)
            lateB = sum(dm[nA:], [])
            rl, resops = self.load_residual(160)
            spread(ev, rl, o.get("res0", 21), 8)
            ev.setdefault(13, []).append(f"buffer_load_dwordx4 v[156:159], v174, {s(WS,4)}, 0 offen sc1")
            so = [(1, x) for x in so[6:] + s2cs] + [(1, [s2last])] + [(50, x) for x in self.arena_fix(156)] + [(60, x) for x in resops]
        else:
            pre[26] = [ready(len(tok) - 1)]
            assert len(tok) >= 7
            spread(ev, xl[NX0:] , 0, o.get('xS', 20) / 10)
            if o.get("early", 0): ev.setdefault(11, []).append(self.statsig)
            spread(ev, self.stat_loads(2, 152), 39, 2)
            spread(ev, late, o.get('lt0', 60), (81.9 - o.get('lt0', 60)) / max(len(late), 1))
            so = [(66, x) for x in so]
        if L: spread(ev, [self.touch(sWO, sH8, 16 * KB * k) for k in range(2)], 61, 14)
        if L == 0: pre[74] = [ready(5)]
        self.wstream(self.pair_items(ACC[:2], CS), 0, allw, RING, ev, so, pre, tag=f"A{L}")
        self.stamp(f"L{L} P1 passA")
        def epi(G0, G1, dst, sc, at):
            r = []
            for G in range(G0, G1):
                b = ACC[0] + 4 * G
                r += [(at, f"v_mul_f32 v{b+i}, v{sc[G-G0]}, v{b+i}") for i in range(4)]
                r += [(at, f"v_cvt_pk_bf16_f32 v{dst[G-G0]+i}, v{b+2*i}, v{b+2*i+1}") for i in range(2)]
            return r
        kvg = A_KV1
        sKVme = sHme
        st = {}
        vKW = 214; vQS = 215
        stA = [f"buffer_store_dwordx4 {v(reg,4)}, v{vPOS}, {s(WS,4)}, s{sA} offen offset:{off} sc1" for reg, off in ((KA, 0), (KB_, 1024), (VA, 2048))]
        stA[0] = f"s_add_u32 s{sA}, s{sKVme}, {kvg}\ns_add_u32 s{sB}, s{sA}, 4096\n" + stA[0]
        stA.append(lambda: st.__setitem__("A", E(f"buffer_store_dwordx4 {v(KV1,4)}, v{vPOS}, {s(WS,4)}, s{sB} offen sc1")))
        ldsA = [f"ds_write_b128 v{vKW}, {v(reg,4)} offset:{off}" for reg, off in ((KA, 0), (KB_, 1024), (VA, 2048), (KV1, 4096 + 128))]
        putB = [lambda: st.__setitem__("B", E(f"s_add_u32 s{sA}, s{sKVme}, {kvg}\nbuffer_store_dwordx4 {v(VB,4)}, v{vPOS}, {s(WS,4)}, s{sA} offen offset:3072 sc1")),
                f"ds_write_b128 v{vKW}, {v(VB,4)} offset:3072"]
        qs = 20 ** -0.5 * math.log2(math.e)
        va = epi(0, 8, [KA, KA + 2, KV1, KB_, KB_ + 2, VA, VA + 2, KV1 + 2], [vRSTD] * 8, 1)
        for k, G in reversed(list(enumerate((1, 4, 6, 7)))): va.insert(6 * (G + 1), (1, [stA[k]]))
        va += [(1, f"v_add_u32 v{vKW}, {8*SLOT}, v{vKR}"), (1, f"v_mul_f32 v{vQS}, {f2u(qs)}, v{vRSTD}")]
        t0, t1, t2 = 216, 217, 218
        cst = []
        for i in range(8):
            cst += [f"v_cndmask_b32 v{t0}, 0, -1, {s(sMASK+4*i,2)}", f"v_cndmask_b32 v{t1}, 0, -1, {s(sMASK+4*i+2,2)}",
                    f"v_and_b32 v{t0}, 0xffff, v{t0}", f"v_lshl_or_b32 v{MK+i}, v{t1}, 16, v{t0}"]
        cst += [f"v_lshrrev_b32 v{t0}, 5, v0", f"v_bfe_u32 v{t1}, v0, 2, 2", f"v_lshl_add_u32 v{t0}, v{t0}, 2, v{t1}",
                f"v_bfe_u32 v{t1}, v0, 4, 1", f"v_and_b32 v{t2}, 3, v0", f"v_lshl_add_u32 v{t1}, v{t1}, 2, v{t2}",
                f"v_and_b32 v{t2}, 1, v0", f"v_lshlrev_b32 v219, 2, v{t2}", f"v_xor_b32 v219, v219, v{t0}", f"v_lshlrev_b32 v219, 4, v219",
                f"v_lshl_add_u32 v219, v{t2}, 9, v219", f"v_bfe_u32 v220, v0, 1, 1", f"v_lshl_add_u32 v220, v220, 3, v219", f"v_add_u32 v221, {4096+128+8}, v219",
                f"v_mov_b32 v224, 128", f"v_mov_b32 v225, {SLOT}", f"v_subrev_u32 v226, v{vPOS}, v{vKR}"]
        cst += [f"s_lshl_b32 s{sC}, s{sW}, 7\ns_add_u32 s{sC}, s{sC}, {ONES+128}\nv_mov_b32 v227, s{sC}"]
        for hd in range(2):
            cst += [f"v_add_u32 v222, {2048+1024*hd}, v220", f"v_cmp_gt_u32 vcc, 4, v{t1}\nv_cndmask_b32 v222, v221, v222, vcc", f"v_add_u32 v222, v226, v222",
                    f"v_cmp_gt_u32 {s(sC,2)}, 4, v{t1}\nv_cmp_eq_u32 vcc, {4+hd}, v{t1}\ns_or_b64 vcc, vcc, {s(sC,2)}\nv_cndmask_b32 v{VAD[hd]}, v227, v222, vcc\nv_cndmask_b32 v223, v224, v225, vcc"]
            cst += [f"v_add_u32 v{VAD[hd]+i}, v{VAD[hd]+i-1}, v223" for i in range(1, 9)]
        cst = [f"v_mov_b32 v{228+i}, 0x3f803f80" for i in range(4)] + cst
        n1 = o.get("cst1", 50)
        va += [(1, x) for x in cst[:n1]]
        va += epi(8, 10, [VB, VB + 2], [vRSTD] * 2, 43) + [(43, putB)] + epi(10, 12, [QA0, QA0 + 2], [vQS] * 2, 43)
        va += [(43, x) for x in cst[n1:]]
        for i in range(9):
            va += [(52, f"v_accvgpr_write_b32 {R(K1+4*i+2)}, s{sFL+i}"), (52, f"v_accvgpr_write_b32 {R(K1+4*i+3)}, 0")]
        va += [(52, f"v_mov_b32 v{q+3}, 0") for q in (QA1, QB1)] + [(52, f"v_mov_b32 v{164+i}, -1") for i in range(4)]
        items = [(ACC[2], k, k == 0) for k in range(40)] + [("cs", ACC[2], CS + 8)] + [(ACC[3], k, k == 0) for k in range(40)] + [("cs", ACC[3], CS + 12)]
        ev = {}; pre = {}
        if L == 0:
            pre[10] = [ready(6)]
            endA = E.vm_n
            pre[26] = [lambda: E.wait(vm=endA), ready(7), self.S.flag2]
            pre[43] = [ready(9)]
            spread(ev, lateB, 0, 2.5)
        else:
            if o.get("early", 0):
                pre[2] = [self.nan_net(ACC[0], xl, self.pair_items(ACC[:2], CS) + items[:2], allw, RING, 512, self.stat_loads(2, 152) + self.stat_ops(152))]
                va = [(max(2, sl), x) for sl, x in va]
            pre[26] = [ready(9)]
        spread(ev, ldsA + [f"ds_write_b128 v{vL16}, v[228:231] offset:{ONES}", f"ds_write_b128 v{vL16}, v[228:231] offset:{ONES+1024}"], 26, 2)
        wo = []
        for f in range(25):
            t = f"s_add_u32 s{sT0+1}, s{sWO}, {1024*f}\n" if f % 4 == 0 else ""
            wo.append(t + f"buffer_load_dwordx4 {R(self.WOF[f],4)}, v{vL16}, {s(WS,4)}, s{sT0+1} offen offset:{1024*(f%4)} sc1")
        if L == 0:
            pass
        nwo = o.get("wob", 14)
        if L == 0:
            nwo = 0
        else:
            spread(ev, wo[:nwo], o.get('wo0', 13), (o.get('wo1', 57) - o.get('wo0', 13)) / nwo)
        self.wo_late = wo[nwo:]
        spread(ev, [self.touch(sWGU, sH16, 32 * KB * k) for k in range(2)], 40, 16)
        sa, pa, ca, sb = o.get("sa", 34), o.get("pa", 50), o.get("ca", 70), o.get("sb", 79)
        ev.setdefault(sa, []).append(self.signal(sKP, 8 * L, lambda: st["A"]))
        ev.setdefault(pa, []).append(self.poll_issue(sKC, 8 * L))
        pre.setdefault(ca, []).append(self.poll_check(sKC, 8 * L, f"s{sKT}"))
        hal = []; self.haltok = []
        for t in range(2):
            p = f"s_mul_i32 s{sB}, s{sW}, {2*SLOT}\n" if t == 0 else ""
            hal.append(p + f"s_add_u32 m0, s{sB}, {t*SLOT}\ns_add_u32 s{sE_}, s{sHAL}, {s(sHAL+1) if t else 0}\nbuffer_load_dwordx4 v{vL16}, {s(WS,4)}, s{sE_} offen sc1 lds")
            hal += [f"buffer_load_dwordx4 v{vL16}, {s(WS,4)}, s{sE_} offen offset:{1024*i} sc1 lds" for i in (1, 2)]
            hal.append(f"s_add_u32 m0, s{sB}, {t*SLOT+4096+128}\ns_add_u32 s{sE_}, s{sE_}, 4096\nbuffer_load_dwordx4 v{vL16}, {s(WS,4)}, s{sE_} offen sc1 lds")
        lasth = hal[-1]; hal[-1] = lambda: self.haltok.append(E(lasth))
        assert ca > 44
        spread(ev, hal, ca, o.get("halS", 10) / 10)
        ev.setdefault(sb, []).append(self.signal(sKP, 8 * L + 4, lambda: st["B"]))
        self.wstream(items, 80, allw, RING, ev, va, pre, budget=o.get("budB", 32), tag=f"B{L}")
        self.stamp(f"L{L} P1 passB")
        if L == 0: E(self.S.vpoll_issue(241, 242))
        for _, x in epi(12, 15, [QA1, QB0, QB0 + 2], [vQS] * 3, 0): E(x)
        E(f"s_mov_b32 vcc_lo, -1\ns_mov_b32 vcc_hi, 0")
        for i in range(2):
            E(f"v_cndmask_b32 v{QB1+i}, v{QA1+i}, v{QA1+3}, vcc")
            E(f"v_cndmask_b32 v{QA1+i}, 0, v{QA1+i}, vcc")
        for k in range(6):
            for hd, (q0, q1, k0) in enumerate(((QA0, QA1, KA), (QB0, QB1, KB_))):
                qa, ka = (q0 + k, k0 + k) if k < 4 else (q1 + k - 4, KV1 + k - 4)
                E(f"v_dot2_f32_bf16 v{216+hd}, v{qa}, v{ka}, {'0' if k == 0 else v(216+hd)}")
        E(f"s_mov_b32 s{sA}, {f2u(-1e38)}")
        for hd, q1 in enumerate((QA1, QB1)): E(f"v_cvt_pk_bf16_f32 v{q1+2}, s{sA}, -v{216+hd}")
    def att_defs(self):
        QA0, QB0, QA1, QB1 = self.Q
        d = self
        d.kread = lambda hd, i, dst: f"ds_read_b128 {R(dst,4)}, v{vKR} offset:{i*SLOT + 1024*hd}"
        d.k1read = lambda i: f"ds_read_b64 {R(self.K1+4*i,2)}, v{vKR} offset:{i*SLOT + 4096 + 128}"
        def smf(hd, i, dst, k0, C="0"):
            q0, q1 = (QA0, QA1) if hd == 0 else (QB0, QB1)
            return [f"v_mfma_f32_32x32x16_bf16 {v(dst,16)}, {R(k0,4)}, {v(q0,4)}, {C}",
                    f"v_mfma_f32_32x32x16_bf16 {v(dst,16)}, {R(self.K1+4*i,4)}, {v(q1,4)}, {v(dst,16)}"]
        d.smf = smf
        d.vreads = lambda hd, i, vf: [f"ds_read_b64_tr_b16 {R(vf+2*k,2)}, v{self.VAD[hd]+i} offset:{128*k}" for k in range(4)]
        def expops(src, p):
            r = []
            for k in range(8):
                r += [f"v_exp_f32 v{src+2*k}, v{src+2*k}", f"v_exp_f32 v{src+2*k+1}, v{src+2*k+1}"]
                if k: r.append(f"v_cvt_pk_bf16_f32 v{p+k-1}, v{src+2*k-2}, v{src+2*k-1}")
            r.append(f"v_cvt_pk_bf16_f32 v{p+7}, v{src+14}, v{src+15}")
            return r
        d.expops = expops
        d.mergeops = lambda dg, old: [f"v_cndmask_b32 v{dg+k}, v{old+k}, v{dg+k}, {s(sMASK+2*k,2)}" for k in range(16)]
        d.splitops = lambda p, pm: [f"v_bfi_b32 v{pm+k}, v{self.MK+k}, 0, v{p+k}" for k in range(8)] + [f"v_and_b32 v{p+k}, v{self.MK+k}, v{p+k}" for k in range(8)]
        d.pv = lambda O, vf, p, first: [f"v_mfma_f32_32x32x16_bf16 {v(O,16)}, {R(vf,4)}, {v(p,4)}, {'0' if first else v(O,16)}",
                                        f"v_mfma_f32_32x32x16_bf16 {v(O,16)}, {R(vf+4,4)}, {v(p+4,4)}, {v(O,16)}"]
    def fallback(self, hd):
        E = Emit(); O = self.O[hd]
        S, SD, NEG, P, PM, MX = 48, 64, 214, 230, 238 - 0, 246
        PM = 152 + 8
        K0 = AG + 136; VF = AG + 140; SP = AG + 104
        E.raw(f"FB{hd}:")
        E("s_waitcnt vmcnt(0) lgkmcnt(0)"); E.settle()
        for k in range(32): E(f"v_accvgpr_write_b32 {R(SP+k)}, v{48+k}")
        E(f"v_mov_b32 v{MX+2}, 0xff7fffff")
        for i in (8, 7, 6, 5, 4, 3, 2, 1, 0):
            E(self.kread(hd, i, K0))
            for x in self.smf(hd, i, SD if i == 8 else S, K0): E(x)
            if i == 8: continue
            src = S
            if i == 0:
                for x in self.mergeops(SD, S): E(x)
                src = SD
            for k in range(8): E(f"v_max3_f32 v{MX+2}, v{src+2*k}, v{src+2*k+1}, v{MX+2}")
        E(f"v_mov_b32 v{MX+3}, v{MX+2}\nv_permlane32_swap_b32 v{MX+3}, v{MX+2}\nv_max_f32 v{MX+2}, v{MX+2}, v{MX+3}")
        for k in range(16): E(f"v_sub_f32 v{NEG+k}, 0, v{MX+2}")
        for k in range(16): E(f"v_add_f32 v{SD+k}, v{NEG}, v{SD+k}")
        for x in self.expops(SD, P) + self.splitops(P, PM): E(x)
        for x in self.vreads(hd, 8, VF) + self.pv(O, VF, P, True): E(x)
        E.settle()
        for x in self.vreads(hd, 0, VF) + self.pv(O, VF, PM, False): E(x)
        for i in range(7, 0, -1):
            E.settle()
            E(self.kread(hd, i, K0))
            for x in self.vreads(hd, i, VF) + self.smf(hd, i, S, K0, v(NEG, 16)) + self.expops(S, P) + self.pv(O, VF, P, False): E(x)
        E.settle()
        for k in range(32): E(f"v_accvgpr_read_b32 v{48+k}, {R(SP+k)}")
        E.settle()
        for f, q in enumerate(EARLY):
            E(f"s_add_u32 s{sF}, s{sWD}, {1024*f}\nbuffer_load_dwordx4 {R(q,4)}, v{vL16}, {s(WS,4)}, s{sF} offen sc1")
        E.drain(); E.settle()
        E(f"s_setpc_b64 {s(sRET,2)}")
        return E.text()
    def p2(self, L):
        E = self.E; o = self.o
        self.att_defs()
        S = [48, 64]; SD = 80; P = [96, 104]; PM = 112; O = self.O = [120, 136]; D = 152; TT = 168
        K0 = [AG + 36, AG + 40, AG + 44]; VF = [AG + 48, AG + 56, AG + 64]
        self.OF = {}
        for st in range(2):
            for i in range(4): self.OF[(st, i)] = AG + 72 + 16 * st + 4 * i
        for st in range(2, 5):
            for i in range(4): self.OF[(st, i)] = (108 + 12 * i if i < 3 else 176) + 4 * (st - 2)
        if L == 0: self.tail += [self.fallback(0), self.fallback(1)]
        obase = self.obase = A_O
        E.wait(vm=self.haltok[0], ds=E.ds_n); E("s_barrier")
        self.stamp(f"L{L} halo in")
        ev = {}; pre = {}
        if L == 0: pre[o.get("f2c", 6)] = [self.S.vpoll_check(241, 242, 4)]
        dm = []
        for c in range(6): dm += self.dma4(sWGU, 16 * KB * c, 64 * KB + 16 * KB * c)
        hb = []
        for t in range(2):
            hb.append(f"s_mul_i32 s{sD}, s{sW}, {2*SLOT}\ns_add_u32 m0, s{sD}, {t*SLOT}\ns_add_u32 s{sE_}, s{sHAL}, {s(sHAL+1) if o.get('ovl', 3) and t else t*5*KB}\nbuffer_load_dwordx4 v{vL16}, {s(WS,4)}, s{sE_} offen offset:3072 sc1 lds")
        lasth = hb[-1]; hb[-1] = lambda: self.haltok.append(E(lasth))
        pb, cb = o.get("pb", 4), o.get("cb", 16)
        nl = len(self.wo_late)
        n1 = min(nl, int((cb - (0 if L else o.get('f2c', 6))) / 2.1))
        spread(ev, self.wo_late[:n1], 0 if L else o.get("f2c", 6), 2.1 if L else 1.8)
        ev.setdefault(pb, []).append(self.poll_issue(sKC, 8 * L + 4))
        pre.setdefault(cb, []).append(self.poll_check(sKC, 8 * L + 4, f"s{sKT}"))
        spread(ev, hb, cb, 1)
        self.pool = Pool(EARLY); self.mk_wdload()
        rest = self.wo_late[n1:] + dm + self.wd(o.get("wd2" if L else "wd20", 7 if L else 0))
        spread(ev, rest, cb + 2, (o.get("bgend", 68) - cb - 2) / len(rest))
        spread(ev, [self.touch(sWGU, sH16, 32 * KB * k) for k in range(2, 5)] + [self.touch(sWD, sH8, 0)], 10, 14)
        spread(ev, [f"s_and_b32 s{sA}, s{sJ}, 3\ns_lshl_b32 s{sB}, s{sA}, 10\ns_add_u32 s{sB}, s{sB}, s{sOme}\ns_add_u32 s{sB}, s{sB}, {obase}\n"
                    f"s_add_u32 s{sC}, s{sB}, 4096\nbuffer_store_dwordx4 v[164:167], v{vL16}, {s(WS,4)}, s{sC} offen sc1",
                    f"s_lshl_b32 s{sA}, s{sJ}, 9\ns_add_u32 s{sA}, s{sA}, s{sXB}\ns_add_u32 s{sA}, s{sA}, {obase + 64*KB}\n"
                    f"buffer_store_dwordx2 v[164:165], v{vO4}, {s(WS,4)}, s{sA} offen sc1"] + self.xpoison(2 * L + 1, 164), min(o.get("poi", 5), 20), 2)
        if o.get("senth", 0) and o.get("poiw", 1) == 0:
            assert o.get("ovl", 3) == 3
            spread(ev, [(f"s_add_u32 s{sP}, s{sHme}, {HB + L*HB_STRIDE + 2048}\n" if k == 0 else "") +
                        f"buffer_store_dwordx4 v[164:167], v{vL16}, {s(WS,4)}, s{sP} offen offset:{1024*k} sc1" for k in range(4)], o.get("poih", 20), 4)
        SO = self.SO = [sH8, sH16, sHX, sD]
        self.ol = ol = lambda st, i, va, off: f"buffer_load_dwordx4 {R(self.OF[(st,i)],4)}, v{va}, {s(WS,4)}, s{SO[i]} offen offset:{off} sc1"
        ev.setdefault(45, []).append(f"s_lshl_b32 s{sE_}, s{sW}, 14\ns_add_u32 s{sE_}, s{sE_}, {obase}\n" + "\n".join(f"s_add_u32 s{SO[i]}, s{sE_}, s{sT16+i}" for i in range(4)))
        self.aq = [self.poll_check(sTC, self.T(0, L), 8)] + sum([[ol(0, i, vU, 0), ol(1, i, vU, 2048)] for i in range(4)], [])
        oca = o.get("oca", 99)
        if oca < 70:
            pre.setdefault(oca, []).append(self.aq[0])
            spread(ev, self.aq[1:], oca, (70 - oca) / 8); self.aq = []
        st = {}
        def check(hd):
            def fn():
                Lo, Lb = E.label("FO"), E.label("FR")
                E(f"v_subrev_u32 v{TT}, {hex(63 << 23)}, v{O[hd]+12}\nv_cmp_le_u32 vcc, {hex(128 << 23)}, v{TT}\ns_cbranch_vccnz {Lo}")
                E.place(Lb)
                self.tail.append(f"{Lo}:\ns_call_b64 {s(sRET,2)}, FB{hd}\ns_branch {Lb}")
            return fn
        def norm(hd):
            r = [check(hd), f"v_rcp_f32 v{TT}, v{O[hd]+12}"]
            r += [f"v_mul_f32 v{O[hd]+k}, v{TT}, v{O[hd]+k}" for k in range(12)]
            r += [f"v_cvt_pk_bf16_f32 v{D+8*hd+k}, v{O[hd]+2*k}, v{O[hd]+2*k+1}" for k in range(6)]
            return r
        def putOA():
            st["a"] = E(f"buffer_store_dwordx4 {v(D,4)}, v{vL16}, {s(WS,4)}, s{sB} offen sc1")
        slot = [0]
        def weave(mf, mems, valu):
            n = len(mf); mems = list(mems); valu = list(valu)
            for k, m in enumerate(mf):
                self.fine(f"t{L}", slot[0])
                for g in pre.pop(slot[0], []): self.do(g)
                E(m)
                for _ in range(-(-len(mems) // (n - k))): E(mems.pop(0))
                for g in ev.pop(slot[0], []): self.do(g)
                for _ in range(-(-len(valu) // (n - k))): self.do(valu.pop(0))
                slot[0] += 1
        seq = [(hd, i) for hd in range(2) for i in (7, 6, 5, 4, 3, 2, 1, 8, 0)]
        kslot = {x: K0[n % 3] for n, x in enumerate(seq)}
        kq = list(seq)
        def knext():
            if not kq: return []
            hd, i = kq.pop(0)
            return [self.kread(hd, i, kslot[(hd, i)])] + ([self.k1read(i)] if hd == 0 else [])
        for x in knext() + knext() + knext(): E(x)
        for x in self.smf(0, 7, S[0], kslot[(0, 7)]): E(x)
        pend = []; vn = 0
        sa_, pa_ = o.get("osa", 56), o.get("opa", 69)
        ev.setdefault(pa_, []).append(self.poll_issue(sTC, self.T(0, L)))
        ev.setdefault(sa_, []).append(self.signal(sTP, self.T(0, L), lambda: st["a"]))
        for hd in range(2):
            for n in range(8):
                mf = []; mems = []; va = []
                if n < 6:
                    mf += self.smf(hd, 6 - n, S[(n + 1) % 2], kslot[(hd, 6 - n)]); mems += knext()
                    mf += pend
                elif n == 6:
                    mf += self.smf(hd, 8, SD, kslot[(hd, 8)]) + self.smf(hd, 0, S[1], kslot[(hd, 0)]); mems += knext()
                    mf += pend
                else:
                    mf += pend
                    if hd == 0: mf += self.smf(1, 7, S[0], kslot[(1, 7)])
                    mems += knext() + knext()
                    if hd == 0: pre.setdefault(slot[0] + len(mf), []).append(lambda: (E.wait(vm=self.haltok[1]), E("s_barrier")))
                    if hd == 0 and o.get("ovl", 3) and not (L and o.get("ovl", 3) >= 2): ev.setdefault(slot[0] + len(mf), []).append(self.signal(sKVme, 16 + 4 * L, lambda: self.haltok[1]))
                if n < 7:
                    vf = VF[vn % 3]; vn += 1
                    vr = self.vreads(hd, 7 - n, vf)
                    mems = mems + vr
                    va += self.expops(S[n % 2], P[n % 2])
                    pend = self.pv(O[hd], vf, P[n % 2], n == 0)
                    if hd == 1 and n == 1: va = norm(0) + [putOA] + va
                else:
                    v8, v0_ = VF[vn % 3], VF[(vn + 1) % 3]; vn += 2
                    mems = mems + self.vreads(hd, 8, v8) + self.vreads(hd, 0, v0_)
                    va += self.mergeops(SD, S[1]) + self.expops(SD, P[1]) + self.splitops(P[1], PM)
                    pend = self.pv(O[hd], v8, P[1], False) + self.pv(O[hd], v0_, PM, False)
                weave(mf, mems, va)
            if hd == 0: self.stamp(f"L{L} att a")
        weave(pend, [], [])
        assert not ev and not pre, (ev, pre, slot)
        for x in norm(1): self.do(x)
        E(f"s_mov_b32 vcc_lo, -1\ns_mov_b32 vcc_hi, 0")
        for k in range(2): E(f"v_cndmask_b32 v{D+4+k}, v{D+12+k}, v{D+4+k}, vcc")
        E(f"buffer_store_dwordx4 {v(D+8,4)}, v{vL16}, {s(WS,4)}, s{sC} offen sc1")
        self.otok = E(f"buffer_store_dwordx2 {v(D+4,2)}, v{vO4}, {s(WS,4)}, s{sA} offen sc1")
        self.stamp(f"L{L} att done")
    def reduce_and_publish(self, ACC, steps, red, PT, xidx, wimm, final, bg, post, bg0=1, bgstep=5, vals=None):
        E = self.E
        bg = list(bg); rd = []; self.nextbg = 0
        sal = []
        if not final:
            sal = [f"s_add_u32 s{sA}, s{sT16+3}, {self.xt(xidx)}",
                   f"s_lshl_b32 s{sC}, s{sJ}, 2\ns_add_u32 s{sC}, s{sC}, s{sW}", f"s_lshl_b32 s{sC}, s{sC}, 7\ns_and_b32 s{sP}, s{sTC}, 0xffffe000",
                   f"s_add_u32 s{sC}, s{sC}, s{sP}\ns_add_u32 s{sC}, s{sC}, {(A_ST - A_CNT + xidx*16*KB) & 0xffffffff}"]
        AW = [PT + 56 + i for i in range(3)]
        for i in range(3): E(f"v_add_u32 v{AW[i]}, {red}, v{vRW+i}")
        E(f"v_add_u32 v{vT}, {red}, v{vRW+3}")
        order = [(q, nt) for nt in range(5) for q in range(3)]
        ns = len(steps); nr = 5 * ns; lag = self.o.get("wlag", 5)
        wat = {nr * i + ns * (nt + 1) - 1 + lag: f"ds_write_b128 v{AW[i]}, {v(ACC[i]+4*nt,4)} offset:{1024*nt}" for i in range(3) for nt in range(5)}
        bar = min(max(wat) + self.o.get("rbar", 4), 4 * nr - 1)
        bgq = []
        for i in range(4):
            left = [x for x in range(nr * i, nr * (i + 1)) if x not in wat]
            for nt in range(5):
                for si, (W, act) in enumerate(steps):
                    k = nr * i + ns * nt + si; d = ACC[i] + 4 * nt
                    E(f"v_mfma_f32_16x16x32_bf16 {v(d,4)}, {R(W[nt],4)}, {R(act[i],4)}, {v(d,4)}")
                    if k in wat: E(wat[k])
                    elif vals and i < 3 and len([x for x in left if x >= k]) <= len(vals[i + 1]): self.do(vals[i + 1].pop(0))
                    elif k == bar:
                        E.drain(vm=False); E("s_barrier")
                        rd = [f"ds_read_b128 {v(PT+20*q+4*n_,4)}, v{vT} offset:{1024*(5*q+n_)}" for q, n_ in order]
                    elif rd:
                        E(rd.pop(0))
                        if rd: E(rd.pop(0))
                    elif i == 0 and sal: E(sal.pop(0))
                    else:
                        if not bgq and bg and i >= bg0 and k >= self.nextbg: bgq = self.flat(bg.pop(0)); self.nextbg = k + bgstep
                        if bgq: self.do(bgq.pop(0))
            assert not (vals and i < 3 and vals[i + 1])
        for x in bgq: self.do(x)
        for x in rd: E(x)
        assert not sal
        self.stamp("  mfma done")
        D = ACC[0]
        if final:
            stores = [f"buffer_store_dwordx4 {v(D,4)}, v{vRM}, {s(OUT,4)}, s{sRM} offen {FINAL}", f"buffer_store_dwordx4 {v(D+4,4)}, v{vRM}, {s(OUT,4)}, s{sRM} offen offset:16 {FINAL}",
                      f"buffer_store_dwordx2 {v(D+8,2)}, v{vRM5}, {s(OUT,4)}, s{sRM} offen offset:128 {FINAL}"]
        else:
            stores = [f"buffer_store_dwordx4 {v(D,4)}, v{vXW}, {s(WS,4)}, s{sA} offen sc1", f"buffer_store_dwordx4 {v(D+4,4)}, v{vXW}, {s(WS,4)}, s{sA} offen offset:512 sc1",
                      f"buffer_store_dwordx2 {v(D+8,2)}, v{vXW5}, {s(WS,4)}, s{sA} offen sc1"]
        for nts in ((0, 1), (2, 3), (4,)):
            ks = [4 * nt + e for nt in nts for e in (0, 2)]
            for k in ks: E(f"v_pk_add_f32 {v(PT+k,2)}, {v(PT+k,2)}, {v(PT+20+k,2)}")
            for k in ks: E(f"v_pk_add_f32 {v(vRES+k,2)}, {v(vRES+k,2)}, {v(PT+40+k,2)}")
            for k in ks: E(f"v_pk_add_f32 {v(vRES+k,2)}, {v(vRES+k,2)}, {v(PT+k,2)}")
            for k in ks: E(f"v_cvt_pk_bf16_f32 v{D+k//2}, v{vRES+k}, v{vRES+k+1}")
        for x in stores: data = E(x)
        if final: return
        early = self.o.get("early", 0)
        if early: E(f"buffer_atomic_add v{vONE}, v{vSR}, {s(WS,4)}, s{sWP} offen offset:{wimm} sc1")
        self.stamp("  stored")
        T = PT
        E(f"v_pk_add_f32 {v(T,2)}, {v(vRES,2)}, {v(vRES+2,2)}\nv_pk_mul_f32 {v(T+2,2)}, {v(vRES,2)}, {v(vRES,2)}")
        E(f"v_pk_fma_f32 {v(T+2,2)}, {v(vRES+2,2)}, {v(vRES+2,2)}, {v(T+2,2)}")
        for k in range(4, 20, 2):
            E(f"v_pk_add_f32 {v(T,2)}, {v(T,2)}, {v(vRES+k,2)}\nv_pk_fma_f32 {v(T+2,2)}, {v(vRES+k,2)}, {v(vRES+k,2)}, {v(T+2,2)}")
        E(f"v_add_f32 v{T}, v{T}, v{T+1}\nv_add_f32 v{T+1}, v{T+2}, v{T+3}")
        for sw in ("v_permlane32_swap_b32", "v_permlane16_swap_b32"):
            E(f"v_mov_b32 v{T+2}, v{T}\nv_mov_b32 v{T+3}, v{T+1}")
            E(f"{sw} v{T+2}, v{T}\n{sw} v{T+3}, v{T+1}")
            E(f"v_add_f32 v{T}, v{T}, v{T+2}\nv_add_f32 v{T+1}, v{T+1}, v{T+3}")
        last = E(f"buffer_store_dwordx2 {v(T,2)}, v{vSW}, {s(WS,4)}, s{sC} offen sc1")
        E("s_barrier")
        n0 = self.o.get("post0", 5); n1 = n0 + self.o.get("post1", 4)
        post = list(bg) + list(post)
        for g in post[:n0]: self.do(g)
        self.window(3 if wimm < 512 else 5)
        if not early: self.signal(sWP, wimm, last, vSR)()
        self.stamp("  signalled")
        self.preissued = False
        pp = self.o.get("pp", 99)
        for k, g in enumerate(post[n0:]):
            if early and n0 + k == pp: E(self.poll_issue(sWC, wimm)); self.preissued = True
            self.do(g)
        self.statsig = self.signal(sWP, wimm + 8, last, vSR)
    def mk_wdload(self):
        self.WDF = {}
        def wdload(f):
            def fn():
                q = self.pool.get(); self.WDF[f] = q
                t = f"s_add_u32 s{sT0+1}, s{sWD}, {1024*f}\n" if f % 4 == 0 else ""
                assert t or self.E.lastw[f"s{sT0+1}"] == f"s_add_u32 s{sT0+1}, s{sWD}, {1024*(f & ~3)}"
                return self.E(t + f"buffer_load_dwordx4 {R(q,4)}, v{vL16}, {s(WS,4)}, s{sT0+1} offen offset:{1024*(f%4)} sc1")
            return fn
        self.wdq = [wdload(f) for f in range(60)]
    def wd(self, n):
        r = self.wdq[:n]; self.wdq = self.wdq[n:]
        return r
    def p3(self, L):
        E = self.E; o = self.o
        ACC = [48, 68, 88, vRES]
        W = lambda st: [self.WOF[5 * st + nt] for nt in range(5)]
        self.pool.add([188 + 4 * i for i in range(7)])
        SO = self.SO; ol = self.ol; vU4 = 172
        for g in self.aq: self.do(g)
        E(f"s_mul_i32 s{sE_}, s{sW}, {14*KB}\ns_sub_u32 s{sE_}, {60*KB}, s{sE_}\nv_add_u32 v{vU4}, s{sE_}, v{vU}")
        for i in range(4): E(f"s_add_u32 s{SO[i]}, s{SO[i]}, 4096")
        E("s_barrier")
        bl = [[ol(2, i, vU, 0), ol(3, i, vU, 2048), ol(4, i, vU4, 0)] for i in range(4)]
        vals = [self.validate([self.OF[(st, i)] for st in range(2, 5)], bl[i], 168) for i in range(4)]
        q = sum(bl, [])
        self.window(2)
        if o.get("obw", 1): E.wait(vm=self.otok)
        for _ in range(o.get("obn", 3)): E(q.pop(0))
        k = 0
        for i in range(4):
            for st in range(2):
                for nt in range(5):
                    d = ACC[i] + 4 * nt
                    E(f"v_mfma_f32_16x16x32_bf16 {v(d,4)}, {R(W(st)[nt],4)}, {R(self.OF[(st,i)],4)}, {'0' if st == 0 and i < 3 else v(d,4)}")
                    if k % o.get("obs", 3) == 0 and q: E(q.pop(0))
                    elif k >= 40 - len(vals[0]) and k < 39: self.do(vals[0].pop(0))
                    k += 1
        assert not q
        for g in vals[0]: self.do(g)
        self.stamp(f"L{L} P3 synced")
        steps = [(W(st), [self.OF[(st, i)] for i in range(4)]) for st in range(2, 5)]
        self.CSG = 152
        bg = self.wd(o.get("wd3b", 6))
        self.vals = vals
        def freewo(): self.pool.add([176, 180, 184] + [AG + 104 + 4 * i for i in range(14)] + self.WOF[:10] + self.WOF[24:])
        self.gu_late = []
        self.gu_tok = []
        for c in range(6, 10): self.gu_late += self.dma4(sWGU, 16 * KB * c, 16 * KB * (c - 6), self.gu_tok)
        n = o.get("gu3", 16)
        post = [freewo] + self.gu_late[:n]
        self.gu_late = self.gu_late[n:]
        self.reduce_and_publish(ACC, steps, 0, 108 - 16 + 16, 2 * L + 1, 4 * L, False, bg, post, vals=vals)
        self.stamp(f"L{L} P3 done")
    def p4(self, L):
        E = self.E; o = self.o
        ACC = [[48, 64], [80, 96]]; RING = 112; HP = 136; T = 144
        allw = [1024 * ((64 + f) % 160) for f in range(240)]
        for f in range(6): E(self.wread(RING + 4 * f, allw[f]))
        self.poll_block(sWC, 4 * L, 16)
        self.stamp(f"L{L} P4 synced")
        self.xr = lambda ks: 4 * ks if ks < 26 else 200 + 4 * (ks - 26)
        xl = self.xloads(self.xt(2 * L + 1))
        self.xstart(xl, self.xt(2 * L + 1))
        c1 = -2 * 0.7978845608028654 * math.log2(math.e)
        so = self.stat_ops(T) + [f"v_mul_f32 v{vC1}, {f2u(c1)}, v{vRSTD}", f"v_mul_f32 v{T}, v{vRSTD}, v{vRSTD}", f"v_mul_f32 v{vC2}, {f2u(0.044715)}, v{vC1}",
                                 f"v_mul_f32 v{vC2}, v{T}, v{vC2}"]
        st = self.htok = {}
        def put(p, k):
            if k == 0: return f"buffer_store_dwordx4 {v(HP,4)}, v{vL16}, {s(WS,4)}, s{sA} offen sc1"
            return lambda: st.__setitem__(p, E(f"buffer_store_dwordx4 {v(HP+4,4)}, v{vL16}, {s(WS,4)}, s{sA} offen offset:1024 sc1"))
        haddr = lambda p: [f"s_add_u32 s{sA}, s{sJ}, {p}\ns_and_b32 s{sA}, s{sA}, 3\ns_lshl_b32 s{sA}, s{sA}, 11", f"s_and_b32 s{sB}, s{sHme}, 0xffffe000\ns_add_u32 s{sA}, s{sA}, s{sB}"]
        def epi(p):
            g, u = ACC[p % 2]; r = [haddr(p)]
            for k0 in range(0, 16, 4):
                ks = range(k0, k0 + 4)
                r += [f"v_mul_f32 v{T+k%4}, v{g+k}, v{g+k}" for k in ks]
                r += [f"v_fma_f32 v{T+k%4}, v{T+k%4}, v{vC2}, v{vC1}" for k in ks]
                r += [f"v_mul_f32 v{T+k%4}, v{T+k%4}, v{g+k}" for k in ks]
                r += [f"v_exp_f32 v{T+k%4}, v{T+k%4}" for k in ks]
                r += [f"v_mul_f32 v{g+k}, v{g+k}, v{u+k}" for k in ks]
                r += [f"v_fma_f32 v{T+k%4}, v{T+k%4}, v{vIV}, v{vIV}" for k in ks]
                r += [f"v_rcp_f32 v{T+k%4}, v{T+k%4}" for k in ks]
                r += [f"v_mul_f32 v{g+k}, v{g+k}, v{T+k%4}" for k in ks]
                r += [f"v_cvt_pk_bf16_f32 v{HP+k//2}, v{g+k}, v{g+k+1}" for k in ks if k % 2 == 0]
                if k0 in (4, 12): r.append([put(p, k0 // 8)])
            return [(2, x) for x in r]
        def epi_pk(p):
            g, u = ACC[p % 2]; r = []
            for k0 in range(0, 16, 8):
                ks = range(k0, k0 + 8, 2)
                r += [f"v_pk_mul_f32 {v(T+k%8,2)}, {v(g+k,2)}, {v(g+k,2)}" for k in ks]
                r += [f"v_pk_fma_f32 {v(T+k%8,2)}, {v(T+k%8,2)}, {v(vC1,2)}, {v(vC1,2)} op_sel:[0,1,0] op_sel_hi:[1,1,0]" for k in ks]
                r += [f"v_pk_mul_f32 {v(T+k%8,2)}, {v(T+k%8,2)}, {v(g+k,2)}" for k in ks]
                r += [f"v_exp_f32 v{T+k}, v{T+k}" for k in range(8)]
                r += [f"v_pk_mul_f32 {v(g+k,2)}, {v(g+k,2)}, {v(u+k,2)}" for k in ks]
                r += [f"v_pk_fma_f32 {v(T+k%8,2)}, {v(T+k%8,2)}, {v(vIV,2)}, {v(vIV,2)} op_sel_hi:[1,0,0]" for k in ks]
                r += [f"v_rcp_f32 v{T+k}, v{T+k}" for k in range(8)]
                r += [f"v_pk_mul_f32 {v(g+k,2)}, {v(g+k,2)}, {v(T+k%8,2)}" for k in ks]
                r += [f"v_cvt_pk_bf16_f32 v{HP+k//2}, v{g+k}, v{g+k+1}" for k in ks]
                r.append(put(p, k0 // 8))
            return r
        self.HF = {}
        def hload(stp, i, fixed=None):
            p, jj = divmod(stp, 4)
            if fixed is not None:
                self.HF[(stp, i)] = fixed
                return f"s_add_u32 s{sE_}, s{sT16H+i}, {A_H + 16*KB*jj + 2048*((p + jj) & 3)}\nbuffer_load_dwordx4 {R(fixed,4)}, v{vU}, {s(WS,4)}, s{sE_} offen sc1"
            def fn():
                q = self.pool.get(); self.HF[(stp, i)] = q
                E(f"buffer_load_dwordx4 {R(q,4)}, v{vU}, {s(WS,4)}, s{sE_} offen sc1")
            return (f"s_add_u32 s{sE_}, s{sT16H+i}, {A_H + 16*KB*jj + 2048*((p + jj) & 3)}", fn)
        self.hload = hload
        nv = o.get("bud4", 32)
        ev = {}; spread(ev, xl[NX0:], 0, o.get('xS', 20) / 10)
        if o.get("early", 0): ev.setdefault(11, []).append(self.statsig)
        spread(ev, self.stat_loads(2 * L + 1, T), 39, 2)
        csl = self.cs_loads(CSG, 6 * KB, 6, self.CSG)
        spread(ev, csl[:2], 47, 2)
        pre = {}
        if o.get("ovl", 3) and not (L and o.get("ovl", 3) >= 2):
            ev.setdefault(51, []).append(f"s_sub_u32 s{sH8}, 15, s{sR}\ns_min_u32 s{sH8}, s{sH8}, 2\n" + self.poll_issue(sKP, 16 + 4 * L))
            pre[76] = [self.poll_check(sKP, 16 + 4 * L, f"s{sH8}")]
        spread(ev, self.gu_late + self.wd(min(o.get("wd40", 10), 10 - len(self.gu_late))), 61, 2)
        spread(ev, [self.touch(sWGU, sH16, 32 * KB * 5), self.touch(sWD, sH8, 16 * KB), self.touch(sWGU, sH16, 32 * KB * 6)], 45, 15)
        pv = [(30, f"v_mov_b32 v{HP+i}, -1") for i in range(4)] + [(30, self.xpoison(2, HP))] if L == 0 and o.get("early", 0) else []
        sh = o.get("senth", 0)
        if sh and o.get("poiw", 1) == 1:
            assert o.get("ovl", 3) == 3
            pv += [(40, f"v_mov_b32 v{HP+4+i}, -1") for i in range(4)]
            spread(ev, [(f"s_add_u32 s{sB}, s{sHme}, {HB + L*HB_STRIDE + 2048}\n" if k == 0 else "") +
                        f"buffer_store_dwordx4 {v(HP+4,4)}, v{vL16}, {s(WS,4)}, s{sB} offen offset:{1024*k} sc1" for k in range(4)], o.get("poi0", 74), o.get("poiS", 2))
        self.wstream(self.pair_items(ACC[0], self.CSG), 0, allw, RING, ev, pv + [(65, x) for x in so], pre, tag=f"p0{L}")
        self.stamp(f"L{L} P4 p0")
        ev = {}; tok = []; fl = []
        for c in range(10, 15): fl += self.dma4(sWGU, 16 * KB * c, 64 * KB + 16 * KB * (c - 10), tok)
        spread(ev, fl, 2, 2.15)
        net = [self.nan_net(ACC[0][0], xl, self.pair_items(ACC[0], self.CSG) + self.pair_items(ACC[1], 0)[:2], allw, RING, 4 * L, self.stat_loads(2 * L + 1, T) + so)] if o.get("early", 0) else []
        n1 = min(o.get("wd41", 13), len(self.pool.free))
        spread(ev, csl[2:] + self.wd(n1), 46, 35 / max(n1 + 4, 16))
        spread(ev, [self.touch(sWGU, sH16, 32 * KB * 7), self.touch(sWD, sH8, 32 * KB), self.touch(sWD, sH8, 48 * KB)], 6, 24)
        self.wstream(self.pair_items(ACC[1], self.CSG + 8), 80, allw, RING, ev, epi(0),
                     {2: net + ["s_barrier"], 10: [lambda: (E.wait(vm=self.gu_tok[3]), E("s_barrier"))], 74: [lambda: (E.wait(vm=tok[4]), E("s_barrier"))]}, budget=nv, tag=f"p1{L}")
        self.stamp(f"L{L} P4 p1")
        ev = {}; pre = {}
        for ks in range(40): ev.setdefault(2 * ks + 1, []).append(lambda ks=ks: self.pool.put(AG + self.xr(ks)))
        n2 = min(len(self.wdq), o.get("wd42", 20))
        spread(ev, self.wd(n2), 3, 2.1)
        hp, hc = o.get("hp0", 22), o.get("hc0", 44)
        ev.setdefault(o.get("hs0", 2), []).append(self.signal(sTP, self.T(2, L), lambda: st[0]))
        if L == 0: spread(ev, [self.touch(sWQ, sH16, 32 * KB * k) for k in range(2)], 30, 30)
        ev.setdefault(hp, []).append(self.poll_issue(sTC, self.T(2, L)))
        pre.setdefault(hc, []).append(self.poll_check(sTC, self.T(2, L), 8))
        spread(ev, [hload(stp, i) for stp in range(4) for i in range(4)], max(hc + 1, 3 + 2.1 * n2), 2.2)
        if not sh: ev.setdefault(o.get("hs1", 81), []).append(self.signal(sTP, self.T(3, L), lambda: st[1]))
        self.wstream(self.pair_items(ACC[0], self.CSG + 16), 160, allw, RING, ev, epi(1), pre, budget=nv, tag=f"p2{L}")
        self.stamp(f"L{L} P4 p2")
        for x in haddr(2): E(x)
        ep = epi_pk(2)
        for k, x in enumerate(ep):
            self.do(x)
            if k == o.get("hp1", 70) and not sh: E(self.poll_issue(sTC, self.T(3, L)))
            elif k % 12 == 6 and k < 40 and self.wdq and self.pool.free: self.wd(1)[0]()
        self.stamp(f"L{L} P4 done")
    def p5(self, L):
        E = self.E; o = self.o
        ACC = [48, 68, 88, vRES]
        E("s_barrier")
        ev = {}; pre = {}; sh = o.get("senth", 0); vals = None; val1 = {}
        if sh:
            r1 = [108 + 4 * i for i in range(7)] + [144 + 4 * i for i in range(7)] + [136, 140]
            l1 = [[self.hload(stp, i, r1.pop(0)) for i in range(4)] for stp in range(4, 8)]
            l2 = [[self.hload(stp, i, 176 + 16 * i + 4 * (stp - 8)) for stp in range(8, 12)] for i in range(4)]
            rl = lambda x: [y.replace(f"s{sE_}", f"s{sP}") for y in x]
            for k in range(4): val1[4 + k] = self.validate([self.HF[(4 + k, i)] for i in range(4)], rl(l1[k]), 172)
            vals = [self.validate([self.HF[(stp, i)] for stp in range(8, 12)], rl(l2[i]), 172) for i in range(4)]
            val1[8] = vals[0]
            rest = sum(l1, []) + self.wd(60)
            nl = o.get("h2late", 4)
            l2f = sum(l2, []); late2 = l2f[16 - nl:]
            h2s = o.get("h2s", 104)
            spread(ev, rest, o.get("h1s", 2), (h2s - 4) / len(rest))
            spread(ev, l2f[:16 - nl], h2s, (150 - h2s) / (16 - nl))
        else:
            self.pool.add([108 + 4 * i for i in range(7)] + [144 + 4 * i for i in range(8)])
            hc1 = o.get("hc1", 30)
            pre.setdefault(hc1, []).append(self.poll_check(sTC, self.T(3, L), 8))
            spread(ev, [self.hload(stp, i) for stp in range(4, 8) for i in range(4)] + self.wd(60), hc1, o.get('h1S', 32) / 10)
            ev.setdefault(o.get("hs2", 44), []).append(self.signal(sTP, self.T(4, L), self.htok[2]))
            hp, hc = o.get("hp2", 76), o.get("hc2", 112)
            ev.setdefault(hp, []).append(self.poll_issue(sTC, self.T(4, L)))
            pre.setdefault(hc, []).append(self.poll_check(sTC, self.T(4, L), 8))
            spread(ev, [self.hload(stp, i) for i in range(4) for stp in range(8, 12)], hc, o.get('h2S', 29) / 10)
        self.wq_tok = []; dm = []
        if L == 0:
            for c in range(10): dm += self.dma4(sWQ, 16 * KB * c, 16 * KB * c, self.wq_tok)
            spread(ev, [self.touch(sWQ, sH16, 32 * KB * k) for k in range(2, 5)], 30, 36)
            if not sh: spread(ev, dm[:4], 96, 4); dm = dm[4:]
        sl = 0; q = []
        for stp in range(8):
            for i in range(4):
                for nt in range(5):
                    self.fine(f"d{L}", sl)
                    for g in pre.pop(sl, []): self.do(g)
                    d = ACC[i] + 4 * nt
                    E(f"v_mfma_f32_16x16x32_bf16 {v(d,4)}, {R(self.WDF[5*stp+nt],4)}, {R(self.HF[(stp,i)],4)}, {'0' if stp == 0 and i < 3 else v(d,4)}")
                    for g in ev.pop(sl, []): q += self.flat(g)
                    vv = val1.get(stp + 1)
                    if vv and 20 - sl % 20 <= len(vv): self.do(vv.pop(0))
                    elif q and (nt != 4 or len(q) > 3): self.do(q.pop(0))
                    sl += 1
                if self.HF[(stp, i)] >= AG or (self.HF[(stp, i)] < 176 and not sh): self.pool.put(self.HF[(stp, i)])
            for nt in range(5):
                qq = self.WDF[5 * stp + nt]
                assert not (sh and 176 <= qq < 244 and stp > 3)
                if qq >= AG or qq < 176: self.pool.put(qq)
        for k in sorted(ev):
            for g in ev[k]: q.append(g)
        for g in q: self.do(g)
        assert not pre
        self.stamp("  8 steps")
        PT = 108 if sh else 176
        live = [self.WDF[f] for f in range(40, 60)] + [self.HF[(stp, i)] for stp in range(8, 12) for i in range(4)]
        assert not [q for q in live if PT <= q < PT + 60], live
        steps = [([self.WDF[5 * stp + nt] for nt in range(5)], [self.HF[(stp, i)] for i in range(4)]) for stp in range(8, 12)]
        bg = (late2 if sh else []) + dm[:12]; dm = dm[12:]
        n = o.get("wq5", 16 if sh else 12)
        post = (self.cs_loads(CSQ, 4 * KB, 4, 136) if L == 0 else []) + dm[:n]
        self.wq_late = dm[n:]
        self.reduce_and_publish(ACC, steps, 100 * KB, PT, 2 * L + 2, 512 + 4 * L, L == 1, bg, post, bg0=0, bgstep=4, vals=vals)
        self.stamp(f"L{L} P5 done")
    def finish(self):
        E = self.E
        E(f"s_or_b32 s{sA}, s{sR}, s{sJ}\ns_or_b32 s{sA}, s{sA}, s{sW}\ns_cmp_eq_u32 s{sA}, 0\ns_cselect_b32 s{sA}, 0, {OOB}")
        E(f"v_add_u32 v48, s{sA}, v{vSIG}\nv_mov_b32 v49, s0\ns_mov_b32 s{sA}, {EPOCH}\nbuffer_store_dword v49, v48, {s(WS,4)}, s{sA} offen sc1")
        if self.o.get("echo"):
            E(f"s_sub_u32 s{sA}, s{sTS+2}, s{sTS}\ns_mul_i32 s{sA}, s{sA}, {self.o.get('emul', 1)}\ns_add_u32 s{sA}, s{sA}, {self.o.get('eadd', 0)}\ns_memrealtime {s(sTS,2)}"); E.wait_smem()
            E.place("ECHO")
            E(f"s_memrealtime {s(sTS+2,2)}"); E.wait_smem()
            E(f"s_sub_u32 s{sB}, s{sTS+2}, s{sTS}\ns_cmp_lt_u32 s{sB}, s{sA}\ns_cbranch_scc1 ECHO")
        if self.stamps:
            E(f"v_readlane_b32 s{sB}, v{vTS2}, 63\ns_lshl_b32 s{sA}, s{sB}, 2\ns_add_u32 s{sA}, s{sA}, s{sW}\ns_lshl_b32 s{sA}, s{sA}, 8\ns_add_u32 s{sA}, s{sA}, {DBG}")
            E(f"v_lshlrev_b32 v{vT}, 2, v0\nbuffer_store_dword v{vTS}, v{vT}, {s(WS,4)}, s{sA} offen")
            E(f"s_add_u32 s{sA}, s{sA}, 0x40000\nbuffer_store_dword v{vTS2}, v{vT}, {s(WS,4)}, s{sA} offen")
        E("s_endpgm"); E.raw(";@END")
        for t in self.tail: E.raw(t.rstrip("\n"))
        E.raw("main_end:")
    def build(self):
        E = self.E
        globals()["NX0"] = self.o.get("nx0", 10)
        globals()["FINAL"] = ("", "sc1", "nt", "sc0 sc1")[self.o.get("fin", 0)]
        g = globals(); ru = self.o.get("reuse", 7)
        if ru & 1: g["HB_STRIDE"] = 0
        if ru & 2: g["OB_STRIDE"] = 0
        if ru & 8: g["KV_STRIDE"] = 0
        E.raw("; @launch grid=(256,1,1) block=(256,1,1) lds=163840")
        E.raw('.amdgcn_target "amdgcn-amd-amdhsa--gfx950"')
        self.prologue()
        n = 0
        for L in range(2):
            for ph in (self.p1, self.p2, self.p3, self.p4, self.p5):
                if n < self.stop: ph(L)
                n += 1
        self.finish()
        kernel_desc(E, KNAME, 256, 256, 102)
        return stubs.apply(E.text(), sW, self.o.get("verbose") == 3)

if __name__ == "__main__":
    out = sys.argv[1]
    opts = dict((k, int(x)) for k, x in (a_.split("=") for a_ in sys.argv[3:]))
    g = Gen(stamps=len(sys.argv) > 2 and sys.argv[2] == "ts", opts=opts, mapping="grp" if opts.get("grp") else "mix")
    t = g.build()
    open(out, "w").write(t)
    print(len(t), "bytes", g.E.ninst, "insts", g.E.nnop, "nop states", g.E.stats)
    if g.stamps: open(out + ".names", "w").write("\n".join(g.stnames))
```

```python
from emit import *
from layout import *

SRC1 = 32; SRC2 = 36; sONE = 40
t = list(range(41, 58))
sRHO, sSIG = 58, 59
sU, sS2 = 60, 61
sTK = 62
LDS1 = 0 * KB
LDS2 = 128 * KB
vTK = 248
vA2 = 232
OOB = 0x10000000
NRACE = 1

def split_hi_lo(E, x, t0, t1, d):
    E(f"v_cvt_pk_bf16_f32 v{d+1}, v{x}, 0")
    E(f"v_lshlrev_b32 v{t0}, 16, v{d+1}")
    E(f"v_sub_f32 v{t1}, v{x}, v{t0}")
    E(f"v_cvt_pk_bf16_f32 v{d}, v{t0}, v{t1}")

class Startup:
    def __init__(self, G, M):
        self.G = G; self.E = G.E; self.M = M
    def roles(self, pQ, pO, pG, pU, pD):
        E, M = self.E, self.M
        E(f"s_add_u32 s{sRHO}, s{M.sR}, s{M.sJ}\ns_and_b32 s{sRHO}, s{sRHO}, 15\ns_add_u32 s{sSIG}, s{sRHO}, {self.G.o.get('sigo', 4)}\ns_and_b32 s{sSIG}, s{sSIG}, 15")
        E(f"s_mov_b32 s{SRC1}, s{pQ}\ns_mov_b32 s{SRC1+1}, s{pQ+1}\ns_mov_b32 s{SRC1+2}, {640*1920*2}\ns_mov_b32 s{SRC1+3}, 0x00020000")
        E(f"s_cmp_ge_u32 s{sSIG}, 4\ns_cselect_b64 {s(SRC2,2)}, {s(pU,2)}, {s(pG,2)}")
        E(f"s_cmp_ge_u32 s{sSIG}, 8\ns_cselect_b64 {s(SRC2,2)}, {s(pD,2)}, {s(SRC2,2)}")
        E(f"s_cmp_ge_u32 s{sSIG}, 14\ns_cselect_b64 {s(SRC2,2)}, {s(pO,2)}, {s(SRC2,2)}\ns_cselect_b32 s{SRC2+2}, {640*640*2}, 0")
        E(f"s_cselect_b32 s{t[0]}, 0, {640*1536*2}\ns_add_u32 s{SRC2+2}, s{SRC2+2}, s{t[0]}\ns_mov_b32 s{SRC2+3}, 0x00020000\ns_mov_b32 s{sONE}, 0x3f803f80")
    def s1_load(self):
        E, M = self.E, self.M
        E("v_mul_u32_u24 v48, 6554, v0\nv_lshrrev_b32 v48, 16, v48\nv_mul_u32_u24 v49, 10, v48\nv_sub_u32 v49, v0, v49")
        E("v_mul_u32_u24 v48, 3840, v48\nv_lshl_add_u32 v50, v49, 4, v48")
        E(f"s_lshr_b32 s{t[1]}, s{sRHO}, 2\ns_and_b32 s{t[2]}, s{sRHO}, 3\ns_lshl_b32 s{t[2]}, s{t[2]}, 1\ns_add_u32 s{t[2]}, s{t[2]}, s{M.sTH}")
        E(f"s_mul_i32 s{t[3]}, s{t[1]}, 1280\ns_mul_i32 s{t[4]}, s{M.sNB}, 160\ns_add_u32 s{t[3]}, s{t[3]}, s{t[4]}")
        E(f"s_lshl_b32 s{t[4]}, s{t[2]}, 2\ns_add_u32 s{t[4]}, s{t[4]}, s{M.sW}\ns_mul_i32 s{t[4]}, s{t[4]}, {20*3840}\ns_add_u32 s{t[3]}, s{t[3]}, s{t[4]}")
        E(f"s_cmp_ge_u32 s{sRHO}, 12\ns_cselect_b32 s{t[4]}, {OOB}, 0\nv_add_u32 v50, s{t[4]}, v50")
        E(f"s_mul_i32 s{t[4]}, s{M.sW}, 3200\ns_mov_b32 exec_hi, 0x3ffff")
        for i in range(4):
            E(f"s_add_u32 m0, s{t[4]}, {LDS1 + 800*i}")
            if i: E(f"s_add_u32 s{t[3]}, s{t[3]}, {5*3840}")
            self.tok1 = E(f"buffer_load_dwordx4 v50, {s(SRC1,4)}, s{t[3]} offen {'nt' if self.G.o.get('nt1', 1) else ''} lds")
        E("s_mov_b32 exec_hi, -1")
    def leader_clear(self):
        E, M = self.E, self.M
        L = E.label("LC")
        E(f"s_cmp_lg_u32 s{sRHO}, 15\ns_cbranch_scc1 {L}")
        E("v_mov_b32 v60, 0\nv_mov_b32 v61, 0\nv_mov_b32 v62, 0\nv_mov_b32 v63, 0")
        E(f"s_mul_i32 s{t[3]}, s{M.sR}, {ASTR}\ns_add_u32 s{t[3]}, s{t[3]}, {ARENA + A_CNT}\ns_lshl_b32 s{t[4]}, s{M.sW}, 13\ns_add_u32 s{t[4]}, s{t[4]}, s{t[3]}")
        E(f"s_lshr_b32 s{t[16]}, s{M.sW}, 1\nv_lshrrev_b32 v64, s{t[16]}, v0\nv_and_b32 v65, s{t[16]}, v0\nv_lshlrev_b32 v65, 4, v65\nv_lshl_add_u32 v64, v64, 7, v65")
        if self.G.o.get("ctouch", 0): E(f"buffer_load_dword v66, v64, {s(M.WS,4)}, s{t[4]} offen sc1", count=False)
        E(f"buffer_store_dwordx4 v[60:63], v64, {s(M.WS,4)}, s{t[4]} offen sc1", count=False)
        E(f"s_lshl_b32 s{t[4]}, s{M.sW}, 8\ns_add_u32 s{t[3]}, s{t[3]}, s{t[4]}\ns_add_u32 s{t[3]}, s{t[3]}, {20*KB}")
        for k in range(self.G.o.get("nrace", NRACE)):
            for h in range(2): E.raw(f"s_load_dword s{t[16]}, {s(M.WS,2)}, s{t[3]} offset:{1152*k + 8192*h} glc")
        E.place(L); E.hist = []
        E("s_nop 1")
    def leader_race(self):
        E, M = self.E, self.M
        L = E.label("LR")
        E(f"s_cmp_lg_u32 s{sRHO}, 15\ns_cbranch_scc1 {L}")
        E(f"s_getreg_b32 s{t[7]}, hwreg(HW_REG_XCC_ID)\ns_and_b32 s{t[7]}, s{t[7]}, 4\ns_waitcnt lgkmcnt(0)")
        E("s_memtime s[50:51]"); E.wait_smem()
        for k in range(self.G.o.get("nrace", NRACE)):
            E(f"s_load_dword s49, {s(M.WS,2)}, s{t[3]} offset:{1152*k} glc"); E.wait_smem()
            E("s_memtime s[52:53]"); E.wait_smem()
            E(f"s_sub_u32 s54, s52, s50\ns_load_dword s49, {s(M.WS,2)}, s{t[3]} offset:{1152*k + 8192} glc"); E.wait_smem()
            E("s_memtime s[50:51]"); E.wait_smem()
            E(f"s_sub_u32 s55, s50, s52\ns_cmp_lt_u32 s55, s54\ns_addc_u32 s{t[7]}, s{t[7]}, 0")
        E(f"s_lshl_b32 s{t[5]}, s{M.sR}, 2\ns_add_u32 s{t[5]}, s{t[5]}, s{M.sW}\ns_lshl_b32 s{t[5]}, s{t[5]}, {self.G.o.get('vsh', 7)}\ns_add_u32 s{t[5]}, s{t[5]}, {VOTE}\nv_add_u32 v60, s{t[7]}, v{vTK}\nv_mov_b32 v61, v60\nv_mov_b32 v62, v60\nv_mov_b32 v63, v60")
        E({7: f"buffer_store_dwordx2 v[60:61], v{M.vSW}", 2: f"buffer_store_dword v60, v{M.vSIG}", 4: f"buffer_store_dwordx4 v[60:63], v{M.vSIG}"}[self.G.o.get('vsh', 7)] + f", {s(M.WS,4)}, s{t[5]} offen sc1", count=False)
        E.place(L); E.hist = []
    def x_touch(self):
        E, M = self.E, self.M
        E(f"s_lshl_b32 s{t[4]}, s{M.sR}, 4\ns_add_u32 s{t[4]}, s{t[4]}, s{M.sJ}\ns_lshl_b32 s{t[4]}, s{t[4]}, 2\ns_add_u32 s{t[4]}, s{t[4]}, s{M.sW}\ns_mul_i32 s{t[4]}, s{t[4]}, 2560")
        E(f"v_min_u32 v51, 19, v0\nv_lshlrev_b32 v51, 7, v51\nbuffer_load_dword v246, v51, {s(M.XIN,4)}, s{t[4]} offen")
    def s2_addrs(self):
        E, M = self.E, self.M
        a_, b_, c_, d_, e_ = t[5], t[6], t[7], t[8], t[9]
        E(f"s_mov_b32 s{b_}, 6554\ns_cmp_lt_u32 s{sSIG}, 8\ns_cselect_b32 s{a_}, 24, 10\ns_cselect_b32 s{b_}, 2731, s{b_}\ns_cselect_b32 s{d_}, s{M.sW}, 0")
        E(f"v_mov_b32 v55, {OOB}")
        E(f"s_mov_b32 s{e_}, 1280\ns_cselect_b32 s{c_}, 3072, s{e_}\ns_lshl_b32 s{d_}, s{d_}, 9")
        E(f"s_cmp_ge_u32 s{sSIG}, 14\ns_cselect_b32 s{e_}, 50, {0 if self.G.o.get('hackL') else 40}\ns_lshl_b32 s{e_}, s{e_}, 3\ns_cmp_lt_u32 s{sSIG}, 8\ns_cselect_b32 s{e_}, 1920, s{e_}")
        for i in range(8):
            E(f"v_add_u32 v52, s{d_}, v0\nv_mul_u32_u24 v53, s{b_}, v52\nv_lshrrev_b32 v53, 16, v53\nv_mul_u32_u24 v54, s{a_}, v53\nv_sub_u32 v54, v52, v54")
            E(f"v_mul_u32_u24 v53, s{c_}, v53\nv_lshl_add_u32 v53, v54, 4, v53\nv_cmp_gt_u32 vcc, s{e_}, v52\nv_cndmask_b32 v{vA2+i}, v55, v53, vcc\ns_add_u32 s{d_}, s{d_}, 64")
        E(f"s_and_b32 s{a_}, s{sSIG}, 3\ns_lshl_b32 s{a_}, s{a_}, 1\ns_add_u32 s{a_}, s{a_}, s{M.sTH}\ns_mul_i32 s{a_}, s{a_}, {80*3072}\ns_mul_i32 s{b_}, s{M.sNB}, 384\ns_add_u32 s{a_}, s{a_}, s{b_}")
        E(f"s_cmp_ge_u32 s{sSIG}, 14\ns_cselect_b32 s{b_}, 2, 6\ns_cselect_b32 s{c_}, 14, 8\ns_cselect_b32 s{d_}, 40, 32")
        E(f"s_mul_i32 s{b_}, s{b_}, s{M.sTH}\ns_add_u32 s{b_}, s{b_}, s{sSIG}\ns_sub_u32 s{b_}, s{b_}, s{c_}\ns_lshl_b32 s{b_}, s{b_}, 2\ns_add_u32 s{sU}, s{b_}, s{M.sW}")
        E(f"s_mul_i32 s{b_}, s{sU}, s{d_}\ns_mul_i32 s{b_}, s{b_}, 1280\ns_mul_i32 s{c_}, s{M.sNB}, 160\ns_add_u32 s{b_}, s{b_}, s{c_}")
        E(f"s_cmp_lt_u32 s{sSIG}, 8\ns_cselect_b32 s{sS2}, s{a_}, s{b_}")
    def s2_load(self, i):
        M = self.M
        return f"s_lshl_b32 s{t[0]}, s{M.sLW}, 1\ns_add_u32 m0, s{t[0]}, {LDS2 + 1024*i}\nbuffer_load_dwordx4 v{vA2+i}, {s(SRC2,4)}, s{sS2} offen {'nt' if self.G.o.get('nt2', 1) else ''} lds"
    def s1_proc(self):
        E, M = self.E, self.M
        Lz, Lend = E.label("WZ"), E.label("WQ")
        E(f"s_cmp_ge_u32 s{sRHO}, 12\ns_cbranch_scc1 {Lz}")
        E("v_lshrrev_b32 v48, 4, v0\nv_bfe_u32 v49, v0, 2, 2\nv_lshl_add_u32 v48, v48, 3, v49\nv_mul_u32_u24 v48, 160, v48")
        E(f"v_bfe_u32 v49, v0, 1, 1\nv_mul_u32_u24 v49, 80, v49\nv_add3_u32 v48, v48, v49, {LDS1}\nv_and_b32 v49, 1, v0")
        E(f"v_bfe_u32 v52, v0, 3, 1\nv_mul_u32_u24 v59, {160*KB}, v52\nv_lshlrev_b32 v54, 12, v52\nv_bfe_u32 v52, v0, 4, 1\nv_lshl_add_u32 v59, v52, 9, v59")
        E("v_and_b32 v52, 7, v0\nv_lshl_add_u32 v59, v52, 4, v59\nv_lshl_add_u32 v54, v52, 4, v54\nv_lshrrev_b32 v52, 4, v0\nv_lshl_add_u32 v54, v52, 28, v54")
        E(f"s_cmp_eq_u32 s{t[1]}, 0\ns_cselect_b32 s{t[5]}, 10, 0\ns_cmp_eq_u32 s{t[1]}, 2\ns_cselect_b32 s{t[5]}, 5, s{t[5]}")
        E(f"s_mul_i32 s{t[6]}, s{M.sNB}, {320*KB}\ns_add_u32 s{t[6]}, s{t[6]}, {WQ}")
        E(f"s_lshl_b32 s{t[7]}, s{M.sNB}, 13\ns_mul_i32 s{t[8]}, s{t[2]}, 0x84\ns_and_b32 s{t[8]}, s{t[8]}, 0x20c\ns_add_u32 s{t[7]}, s{t[7]}, s{t[8]}\ns_add_u32 s{t[7]}, s{t[7]}, {CSQ}")
        done0 = E.vm_done
        for rnd in range(2):
            if rnd == 0:
                E(f"s_and_b32 s{t[8]}, s{M.sW}, 1\ns_lshl_b32 s{t[8]}, s{t[8]}, 3\ns_lshr_b32 s{t[9]}, s{M.sW}, 1\ns_lshl_b32 s{t[9]}, s{t[9]}, 5\ns_add_u32 s{t[8]}, s{t[8]}, s{t[9]}")
                E(f"s_cmp_eq_u32 s{M.sW}, 2\ns_cselect_b32 s{t[9]}, 40, 16\ns_add_u32 s{t[10]}, s{t[5]}, s{M.sW}")
            else:
                if self.G.o.get("zfill", 0):
                    Lq = E.label("WY")
                    E(f"s_cmp_lg_u32 s{t[10]}, 12\ns_cbranch_scc1 {Lq}")
                    E("v_mov_b32 v76, 0\nv_mov_b32 v77, 0\nv_mov_b32 v78, 0\nv_mov_b32 v79, 0")
                    for y in (2, 1, 0):
                        E(f"buffer_store_dwordx4 v[76:79], v{53 if y == 2 else 51}, {s(M.WS,4)}, s{t[11]} offen offset:384 sc1", count=False)
                        if y: E(f"s_sub_u32 s{t[11]}, s{t[11]}, s{t[14]}")
                    E(f"buffer_store_dword v76, v54, {s(M.WS,4)}, s{t[12]} offen offset:384 sc1", count=False)
                    E.place(Lq); E.hist = []
                E(f"s_cmp_lg_u32 s{M.sW}, 3\ns_cbranch_scc1 {Lend}")
                E(f"s_mov_b32 s{t[8]}, 48\ns_mov_b32 s{t[9]}, 16\ns_add_u32 s{t[10]}, s{t[5]}, 4")
            E(f"v_mul_u32_u24 v55, s{t[9]}, v49\nv_add3_u32 v55, v55, v48, s{t[8]}")
            E(f"s_cmp_ge_u32 s{t[10]}, 8\ns_cselect_b32 s{t[14]}, 1, 2\ns_cselect_b32 s{t[15]}, 40, 1\ns_cselect_b32 s{t[11]}, {80*KB}, 0\ns_lshl_b32 s{t[14]}, s{t[14]}, 10")
            E(f"s_mul_i32 s{t[12]}, s{t[2]}, 5\ns_mul_i32 s{t[12]}, s{t[12]}, s{t[14]}\ns_add_u32 s{t[11]}, s{t[11]}, s{t[12]}")
            E(f"v_lshrrev_b32 v53, 5, v0\nv_mad_u32_u24 v51, v53, s{t[14]}, v59\nv_lshl_add_u32 v53, v53, 28, v51\ns_lshl_b32 s{t[14]}, s{t[14]}, 1")
            E(f"s_bfe_u32 s{t[12]}, s{t[10]}, 0x10002\ns_mul_i32 s{t[12]}, s{t[12]}, s{t[15]}\ns_lshl_b32 s{t[12]}, s{t[12]}, 10")
            E(f"s_add_u32 s{t[11]}, s{t[11]}, s{t[12]}\ns_and_b32 s{t[12]}, s{t[10]}, 3\ns_lshl_b32 s{t[12]}, s{t[12]}, 7\ns_add_u32 s{t[11]}, s{t[11]}, s{t[12]}\ns_add_u32 s{t[11]}, s{t[11]}, s{t[6]}")
            E(f"s_lshr_b32 s{t[13]}, s{t[10]}, 2\ns_lshl_b32 s{t[13]}, s{t[13]}, 10\ns_add_u32 s{t[12]}, s{t[12]}, s{t[13]}\ns_add_u32 s{t[12]}, s{t[12]}, s{t[7]}")
            if rnd == 0:
                E.wait(vm=self.tok1); E("s_barrier")
            d0 = 60 + 16 * rnd
            for y in range(3):
                for rd in range(2): E(f"ds_read_b64_tr_b16 {v(d0+4*y+2*rd,2)}, v55 offset:{(32*y+4*rd)*160}")
            for y in range(3):
                E(f"buffer_store_dwordx4 {v(d0+4*y,4)}, v{53 if y == 2 else 51}, {s(M.WS,4)}, s{t[11]} offen sc1", count=False)
                if y < 2: E(f"s_add_u32 s{t[11]}, s{t[11]}, s{t[14]}")
            E("v_mov_b32 v56, 0")
            for y in range(3):
                if y == 2: E("s_mov_b32 exec_hi, 0")
                for e in range(4): E(f"v_dot2c_f32_bf16 v56, s{sONE}, v{d0+4*y+e}")
            E("s_mov_b32 exec_hi, -1")
            for sw in ("v_permlane32_swap_b32", "v_permlane16_swap_b32"):
                E(f"v_mov_b32 v57, v56\n{sw} v57, v56\nv_add_f32 v56, v57, v56")
            split_hi_lo(E, 56, 57, 58, d0 + 12)
            E(f"buffer_store_dword v{d0+12}, v54, {s(M.WS,4)}, s{t[12]} offen sc1", count=False)
        E.place(Lz)
        E.place(Lend); E.hist = []; E.vm_done = done0
        E("s_nop 1")
    def flag(self, code):
        E, M = self.E, self.M
        L = E.label("FG")
        E(f"s_cmp_lg_u32 s{M.sW}, 0\ns_cbranch_scc1 {L}")
        E(code)
        E(f"buffer_store_dwordx2 {v(vTK,2)}, v{M.vSW if self.G.o.get('fullf', 1) else M.vSIG}, {s(M.WS,4)}, s{M.sA} offen sc1", count=False)
        E.place(L)
    def flag1(self):
        M = self.M
        self.flag(f"s_lshl_b32 s{M.sA}, s{M.sJ}, 4\ns_add_u32 s{M.sA}, s{M.sA}, s{sRHO}\ns_lshl_b32 s{M.sA}, s{M.sA}, 7\ns_add_u32 s{M.sA}, s{M.sA}, {F1}")
    def flag2(self):
        M = self.M
        self.flag(f"s_lshl_b32 s{M.sA}, s{M.sJ}, 4\ns_add_u32 s{M.sA}, s{M.sA}, s{M.sR}\ns_lshl_b32 s{M.sA}, s{M.sA}, 7\ns_add_u32 s{M.sA}, s{M.sA}, {F2}")
    def vpoll_issue(self, addr, dst):
        return f"buffer_load_dwordx2 {v(dst,2)}, v{addr}, {s(self.M.WS,4)}, 0 offen sc1"
    def vpoll_check(self, addr, dst, slp):
        def fn():
            E, M = self.E, self.M
            Ls, Lb = E.label("VS"), E.label("VB")
            E(f"v_cmp_ne_u64 vcc, {v(dst,2)}, {v(vTK,2)}\ns_cbranch_vccnz {Ls}")
            E.place(Lb)
            self.G.tail.append(f"{Ls}:\ns_mov_b32 s{M.sF}, 0x100000\n{Ls}_l:\ns_sleep {slp}\n{self.vpoll_issue(addr, dst)}\ns_waitcnt vmcnt(0)\n"
                               f"v_cmp_ne_u64 vcc, {v(dst,2)}, {v(vTK,2)}\ns_nop 1\ns_cbranch_vccz {Lb}\ns_sub_u32 s{M.sF}, s{M.sF}, 1\ns_cmp_lg_u32 s{M.sF}, 0\n"
                               f"s_cbranch_scc1 {Ls}_l\ns_branch {Lb}")
        return fn
    def s2_prep(self):
        E, M = self.E, self.M
        Ld, Lo, Le = E.label("S2"), E.label("S2"), E.label("S2")
        AD = 224; B = 176; C = 168; u = [t[0]] + t[10:16]; u = {0: t[0], 1: t[10], 2: t[11], 3: t[12], 4: t[13], 5: t[14], 6: t[15]}
        for i in range(11): E(f"v_mov_b32 v{AD+i}, {OOB}")
        if self.G.o.get('hackS'): E(f"v_mov_b32 v{B}, 0")
        E(f"s_lshl_b32 s{u[0]}, s{M.sLW}, 1\ns_add_u32 s{u[0]}, s{u[0]}, {LDS2}")
        E(f"s_cmp_ge_u32 s{sSIG}, 14\ns_cbranch_scc1 {Lo}\ns_cmp_ge_u32 s{sSIG}, 8\ns_cbranch_scc1 {Ld}")
        E(f"s_cmp_ge_u32 s{M.sW}, {1 if self.G.o.get('hackS', 0) & 1 else 3}\ns_cbranch_scc1 {Le}")
        E(f"v_bfe_u32 v{B}, v0, 2, 2\nv_mul_u32_u24 v{B}, 384, v{B}\nv_lshrrev_b32 v{B+2}, 5, v0\nv_mul_u32_u24 v{B+1}, 192, v{B+2}\nv_add_u32 v{B}, v{B}, v{B+1}")
        E(f"v_bfe_u32 v{B+3}, v0, 4, 1\nv_lshl_add_u32 v{B}, v{B+3}, 3, v{B}\nv_and_b32 v{B+1}, 3, v0\nv_lshl_add_u32 v{B}, v{B+1}, 4, v{B}")
        E(f"s_lshl_b32 s{u[1]}, s{M.sW}, 6\ns_add_u32 s{u[1]}, s{u[1]}, {LDS2}\nv_add_u32 v{B}, s{u[1]}, v{B}")
        E(f"v_and_b32 v{B+4}, 15, v0\nv_lshlrev_b32 v{B+4}, 4, v{B+4}\nv_mul_u32_u24 v{B+1}, {6*KB}, v{B+2}\nv_lshl_add_u32 v{B+1}, v{B+3}, 3, v{B+1}\nv_add_u32 v{B+1}, v{B+1}, v{B+4}")
        E(f"v_mul_u32_u24 v{B+2}, {240*KB}, v{B+2}\nv_lshl_add_u32 v{B+2}, v{B+3}, 11, v{B+2}\nv_add_u32 v{B+2}, v{B+2}, v{B+4}")
        E(f"s_mul_i32 s{u[1]}, s{M.sNB}, 6\ns_add_u32 s{u[1]}, s{u[1]}, s{M.sW}\ns_lshr_b32 s{u[2]}, s{sSIG}, 2")
        E(f"s_and_b32 s{u[5]}, s{sSIG}, 3\ns_lshl_b32 s{u[4]}, s{u[1]}, 11\ns_lshl_b32 s{u[6]}, s{u[2]}, 10\ns_add_u32 s{u[4]}, s{u[4]}, s{u[6]}\ns_lshl_b32 s{u[6]}, s{u[5]}, 8")
        E(f"s_add_u32 s{u[4]}, s{u[4]}, s{u[6]}\ns_lshl_b32 s{u[6]}, s{M.sTH}, 2\ns_add_u32 s{u[4]}, s{u[4]}, s{u[6]}\ns_add_u32 s{u[4]}, s{u[4]}, {CSG}\nv_add_u32 v{AD+10}, s{u[4]}, v{B+1}")
        E(f"s_mul_i32 s{u[3]}, s{u[1]}, {80*KB}\ns_lshl_b32 s{u[2]}, s{u[2]}, 12\ns_add_u32 s{u[3]}, s{u[3]}, s{u[2]}\ns_add_u32 s{u[3]}, s{u[3]}, {WGU}\nv_add_u32 v{B+2}, s{u[3]}, v{B+2}")
        E(f"s_lshl_b32 s{u[5]}, s{u[5]}, 1\ns_add_u32 s{u[5]}, s{u[5]}, s{M.sTH}\ns_mul_i32 s{u[5]}, s{u[5]}, 10")
        for k in range(10):
            E(f"s_add_u32 s{u[1]}, s{u[5]}, {k}\ns_lshr_b32 s{u[2]}, s{u[1]}, 3\ns_mul_i32 s{u[2]}, s{u[2]}, 24\ns_add_u32 s{u[1]}, s{u[1]}, s{u[2]}\nv_lshl_add_u32 v{AD+k}, s{u[1]}, 8, v{B+2}")
        E(f"s_branch {Le}")
        E.place(Ld); E.hist = []
        E(f"v_bfe_u32 v{B}, v0, 2, 2\nv_lshrrev_b32 v{B+1}, 4, v0\nv_lshl_add_u32 v{B}, v{B+1}, 3, v{B}\nv_mul_u32_u24 v{B}, 160, v{B}")
        E(f"v_add_u32 v{B}, s{u[0]}, v{B}\nv_and_b32 v{B+2}, 3, v0\nv_lshl_add_u32 v{B+1}, v{B+2}, 3, v{B}\nv_lshl_add_u32 v{B}, v{B+2}, 5, v{B}")
        E(f"v_mov_b32 v{C}, s{u[0]}\nv_mov_b32 v{C+1}, s{u[0]}")
        E(f"s_mul_i32 s{u[1]}, s{sU}, 21846\ns_lshr_b32 s{u[1]}, s{u[1]}, 16\ns_mul_i32 s{u[3]}, s{u[1]}, 3\ns_sub_u32 s{u[3]}, s{sU}, s{u[3]}")
        E(f"s_lshl_b32 s{u[3]}, s{u[3]}, 2\ns_and_b32 s{u[4]}, s{u[1]}, 3\ns_add_u32 s{u[3]}, s{u[3]}, s{u[4]}\ns_mul_i32 s{u[3]}, s{u[3]}, {5*KB}")
        E(f"s_lshr_b32 s{u[4]}, s{u[1]}, 2\ns_mul_i32 s{u[4]}, s{u[4]}, {60*KB}\ns_add_u32 s{u[3]}, s{u[3]}, s{u[4]}")
        E(f"s_mul_i32 s{u[4]}, s{M.sNB}, {240*KB}\ns_add_u32 s{u[3]}, s{u[3]}, s{u[4]}\ns_add_u32 s{u[3]}, s{u[3]}, {WD}")
        if not self.G.o.get('hackS', 0) & 2:
            E(f"v_add_u32 v{AD}, s{u[3]}, v{M.vL16}")
            for nt in range(1, 5): E(f"v_add_u32 v{AD+nt}, {1024*nt}, v{AD}")
        E(f"s_branch {Le}")
        E.place(Lo); E.hist = []
        E(f"v_lshrrev_b32 v{B+2}, 4, v0\nv_and_b32 v{B+3}, 1, v{B+2}\nv_lshrrev_b32 v{B+4}, 5, v0\nv_mul_u32_u24 v{B+5}, 20, v{B+4}\nv_lshl_add_u32 v{B+5}, v{B+3}, 3, v{B+5}")
        E(f"v_bfe_u32 v{B}, v0, 2, 2\nv_add_u32 v{B+5}, v{B+5}, v{B}\nv_mul_u32_u24 v{B+5}, 160, v{B+5}\nv_add_u32 v{B+5}, s{u[0]}, v{B+5}")
        E(f"v_and_b32 v{B+6}, 3, v0\nv_mul_u32_u24 v{B}, 160, v{B}\nv_add_u32 v{B+7}, s{u[0]}, v{B}")
        E(f"v_lshl_add_u32 v{B}, v{B+6}, 5, v{B+5}\nv_lshl_add_u32 v{B+1}, v{B+6}, 3, v{B+5}")
        E(f"v_lshl_add_u32 v{C}, v{B+6}, 5, v{B+7}\nv_lshl_add_u32 v{C}, v{B+2}, 3, v{C}\nv_lshl_add_u32 v{C+1}, v{B+6}, 3, v{B+7}")
        E(f"v_and_b32 v{C+2}, 15, v0\nv_lshlrev_b32 v{C+2}, 4, v{C+2}\nv_mul_u32_u24 v{C+3}, {10*KB}, v{B+4}\nv_lshl_add_u32 v{C+3}, v{B+3}, 8, v{C+3}\nv_add_u32 v{C+3}, v{C+3}, v{C+2}")
        E(f"v_lshl_add_u32 v{C+4}, v{B+2}, 10, v{C+2}\nv_lshl_add_u32 v{C+5}, v{B+2}, 28, v{C+2}")
        E(f"s_lshr_b32 s{u[1]}, s{sU}, 2\ns_mul_i32 s{u[1]}, s{u[1]}, {25*KB}\ns_mul_i32 s{u[3]}, s{M.sNB}, {100*KB}\ns_add_u32 s{u[1]}, s{u[1]}, s{u[3]}\ns_add_u32 s{u[1]}, s{u[1]}, {WO}")
        E(f"s_lshr_b32 s{u[3]}, s{M.sW}, 1\ns_mul_i32 s{u[3]}, s{u[3]}, {5*KB}\ns_and_b32 s{u[4]}, s{M.sW}, 1\ns_lshl_b32 s{u[4]}, s{u[4]}, 9\ns_add_u32 s{u[3]}, s{u[3]}, s{u[4]}")
        E(f"s_add_u32 s{u[3]}, s{u[3]}, s{u[1]}")
        E(f"s_lshl_b32 s{u[5]}, s{M.sW}, 8\ns_add_u32 s{u[5]}, s{u[5]}, s{u[1]}\ns_add_u32 s{u[5]}, s{u[5]}, {20*KB}\ns_add_u32 s{u[6]}, s{u[5]}, 4096")
        E(f"v_add_u32 v{AD}, s{u[3]}, v{C+3}\nv_add_u32 v{AD+5}, s{u[5]}, v{C+4}\nv_add_u32 v{AD+6}, s{u[6]}, v{C+5}")
        for nt in range(1, 5): E(f"v_add_u32 v{AD+nt}, {1024*nt}, v{AD}")
        E.place(Le); E.hist = []
        E("s_nop 1")
    def s2_read(self):
        E, M = self.E, self.M
        Ld, Le = E.label("S2"), E.label("S2")
        AD = 224; B = 176; C = 168
        E.drain(vm=False)
        E(f"s_cmp_ge_u32 s{sSIG}, 8\ns_cbranch_scc1 {Ld}\ns_cmp_eq_u32 s{M.sW}, 3\ns_cbranch_scc1 {Le}")
        for ks in range(10):
            for rd in range(2): E(f"ds_read_b64_tr_b16 {v(B+8+4*ks+2*rd,2)}, v{B} offset:{(8*ks+4*rd)*384}")
        E(f"s_branch {Le}")
        E.place(Ld); E.hist = []; E.pend = {k: x for k, x in E.pend.items() if x[0] != "ds"}
        for nt in range(5):
            for rd in range(2): E(f"ds_read_b64_tr_b16 {v(B+8+4*nt+2*rd,2)}, v{B+1 if nt == 4 else B} offset:{4*rd*160 + (128 if nt == 4 else 8*nt)}")
        for rd in range(2): E(f"ds_read_b64_tr_b16 {v(B+28+2*rd,2)}, v{C} offset:{(16, 36)[rd]*160}")
        for rd in range(2): E(f"ds_read_b64_tr_b16 {v(B+32+2*rd,2)}, v{C+1} offset:{(16, 36)[rd]*160 + 128}")
        E.place(Le); E.hist = []
        E.drain(vm=False)
        cs = [f"v_mov_b32 v{B+2}, 0", f"v_mov_b32 v{B+3}, 0"]
        for k in range(20):
            cs += [f"v_lshlrev_b32 v{B+4}, 16, v{B+8+k}", f"v_lshlrev_b32 v{B+5}, 16, v{B+28+k}", f"v_add_f32 v{B+2}, v{B+2}, v{B+4}", f"v_add_f32 v{B+3}, v{B+3}, v{B+5}",
                   f"v_and_b32 v{B+4}, 0xffff0000, v{B+8+k}", f"v_and_b32 v{B+5}, 0xffff0000, v{B+28+k}", f"v_add_f32 v{B+2}, v{B+2}, v{B+4}", f"v_add_f32 v{B+3}, v{B+3}, v{B+5}"]
        cs += [f"v_add_f32 v{B+2}, v{B+3}, v{B+2}",
               f"v_cvt_pk_bf16_f32 v{B+7}, v{B+2}, 0", f"v_lshlrev_b32 v{B+3}, 16, v{B+7}", f"v_sub_f32 v{B+4}, v{B+2}, v{B+3}", f"v_cvt_pk_bf16_f32 v{B+6}, v{B+3}, v{B+4}"]
        r = [f"buffer_store_dwordx4 {v(B+8+4*i,4)}, v{AD+i}, {s(M.WS,4)}, 0 offen sc1" for i in range(10)]
        return cs, r, lambda: setattr(self, "tok3", E(f"buffer_store_dword v{B+6}, v{AD+10}, {s(M.WS,4)}, 0 offen sc1"))
```

```python
import sys, math, struct, stubs
from emit import *
from layout import *
from startup8 import Startup, NRACE, sTK, vTK, sONE, sRHO, OOB
KNAME = "interleave_layers__sliding_block__glu_gated_geglu__prompt_kernel"

def f2u(x): return hex(struct.unpack("<I", struct.pack("<f", x))[0])

WS = 4; OUT = 8; XIN = 12
sR, sJ, sW, sTH, sNB = 16, 17, 18, 19, 20
sWQ, sWGU, sWO, sWD, sLW = 21, 22, 23, 24, 25
sXB, sKVme, sOme, sHme = 26, 27, 28, 29
sT0 = 30
sMASK = 32
sRET = 64
sT16 = 66; sT16H = 70
sA, sB, sC, sD, sE_, sF = 74, 75, 76, 77, 78, 79
sFL = 80
sHAL = 89
sKP, sKC, sKT = 91, 92, 3
sRM = 93
sTS = 94
sTP, sTC, sWP, sWC = 98, 99, 100, 101
sP = 2
vL16, vL16b, vL16c = 1, 2, 3
vU = 4; vPOS = 5; vST = 6; vCS = 7; vSIG = 8; vONE = 9
vRW = 10
vXW = 14; vXW5 = 15; vO4 = 16; vSW = 17; vRSTD = 18; vT = 19
vRES = 20
vNM = 40
vC1, vC2, vIV = 44, 45, 46
vKR = 47
vRM, vRM5, vTS, vTS2 = 250, 251, 252, 253
vP = 255; vDUM = 254; vSR = 255
sAR = 1
vTL = 7
sPV = 15
sH8, sH16, sHX = 12, 13, 14
SLOT = 5248; ONES = 12 * SLOT; EPS = 1e-5
AG = 256
EARLY = [216 + 4 * i for i in range(7)]
FINAL = ""
NX0 = 10

class Pool:
    def __init__(self, quads=()): self.free = list(quads)
    def get(self): return self.free.pop(0)
    def put(self, q): self.free.append(q)
    def add(self, qs): self.free += list(qs)

def spread(ev, groups, start, step):
    for i, g in enumerate(groups): ev.setdefault(int(start + i * step), []).append(g)

class Gen:
    def __init__(self, stop=99, stamps=False, mapping="mix", opts=None):
        self.E = Emit(); self.stop = stop; self.stamps = stamps; self.mapping = mapping
        self.sites = []; self.nst = 0; self.stnames = []; self.tail = []; self.o = opts or {}
    def do(self, g):
        if isinstance(g, tuple):
            for x in g: r = self.do(x)
            return r
        if callable(g): return g()
        return self.E(g)
    @staticmethod
    def flat(g):
        if isinstance(g, tuple): return list(g)
        if callable(g): return [g]
        l = g.split("\n")
        return [x for x in ("\n".join(l[:-1]), l[-1]) if x]
    def stamp(self, name):
        if self.o.get("verbose") == 2:
            print(f"{name:18s} issue cost {self.E.cost - getattr(self, 'c0', 0):6d}  vmem {self.E.stats.get('vmem', 0) - getattr(self, 'v0', 0)}"); self.c0 = self.E.cost; self.v0 = self.E.stats.get('vmem', 0)
        ec = self.o.get("echo", 0)
        if ec and name == ("", "WQ synced", "L0 halo in", "L0 P4 synced", "L1 P1 synced", "L1 P5 done", "L1 P4 synced", "L1 halo in", "L1 P3 synced", "L1 P4 p2", "L0 P3 synced")[ec]:
            self.E(f"{'s_memtime' if self.o.get('ecyc') else 's_memrealtime'} {s(sTS+2,2)}"); self.E.wait_smem()
        if ec and self.o.get("e0") and name == ("", "WQ synced", "L0 halo in", "L0 P4 synced", "L1 P1 synced", "L1 P5 done", "L1 P4 synced", "L1 halo in", "L1 P3 synced", "L1 P4 p2", "L0 P3 synced")[self.o["e0"]]:
            self.E(f"{'s_memtime' if self.o.get('ecyc') else 's_memrealtime'} {s(sTS,2)}"); self.E.wait_smem()
        if not self.stamps or self.E.smem_out: return
        if self.o.get("ends") and name not in ("L1 P5 done", "L1 P1 synced", "WQ synced", "L0 P4 synced", "L1 P4 synced", "L0 P3 synced", "L1 P3 synced", "L0 halo in", "L1 halo in"): return
        E = self.E
        E(f"s_memrealtime {s(sTS,2)}\ns_memtime {s(sTS+2,2)}"); E.wait_smem()
        E(f"v_writelane_b32 v{vTS}, s{sTS}, {self.nst}\nv_writelane_b32 v{vTS2}, s{sTS+2}, {self.nst}")
        self.nst += 1; self.stnames.append(name)
    def dma4(self, sbase, goff, ldsoff, rec=None, fl="sc1"):
        g = [f"s_add_u32 m0, s{sLW}, {ldsoff}\ns_add_u32 s{sT0}, s{sbase}, {goff}\nbuffer_load_dwordx4 v{vL16}, {s(WS,4)}, s{sT0} offen {fl} lds"]
        for i in range(1, 4): g.append(f"buffer_load_dwordx4 v{vL16}, {s(WS,4)}, s{sT0} offen offset:{1024*i} {fl} lds")
        h = g[0].split("\n")
        def guarded(x, r):
            def fn():
                assert self.E.lastw["m0"] == h[0] and self.E.lastw[f"s{sT0}"] == h[1], "DMA group interleaved"
                t = self.E(x)
                if r is not None: r.append(t)
            return fn
        return [g[0], guarded(g[1], None), guarded(g[2], None), guarded(g[3], rec)]
    def wread(self, dst, ldsaddr):
        return f"ds_read_b128 {R(dst,4)}, v{vL16+(ldsaddr >> 16)} offset:{ldsaddr & 0xffff}"
    def signal(self, sreg, imm, tok, va=None):
        def fn():
            self.E.wait(vm=tok() if callable(tok) else tok)
            self.E(f"buffer_atomic_add v{vONE}, v{va or vSIG}, {s(WS,4)}, s{sreg} offen offset:{imm} sc1")
        return fn
    def poll_issue(self, sreg, imm):
        if self.o.get("spoll", 1): return f"s_load_dword s{sPV}, {s(WS,2)}, s{sreg} offset:{imm} glc"
        return f"buffer_load_dword v{vP}, v{vSIG}, {s(WS,4)}, s{sreg} offen offset:{imm} sc1"
    def poll_check(self, sreg, imm, thr, slp=None):
        def fn():
            E = self.E
            Ls, Lb = E.label("SP"), E.label("BK")
            sc = self.o.get("spoll", 1)
            assert E.lastw.get(f"s{sPV}") == self.poll_issue(sreg, imm), "poll checked without its load"
            E.lastw[f"s{sPV}"] = None
            if sc: E.wait_smem()
            else: E(f"v_readfirstlane_b32 s{sPV}, v{vP}")
            E(f"s_cmp_ge_u32 s{sPV}, {thr}\ns_cbranch_scc0 {Ls}")
            E.place(Lb)
            sl = self.o.get("slp", 0) if slp is None else slp
            cnt = ""
            if self.stamps and self.o.get("ends"):
                self.sites.append(f"{sreg}/{imm}")
                cnt = f"s_sub_u32 s{sPV}, 0x200001, s{sF}\nv_writelane_b32 v{vTS2}, s{sPV}, {12 + len(self.sites)}\n"
            self.tail.append(f"{Ls}:\ns_mov_b32 s{sF}, 0x200000\n{Ls}_l:\n" + cnt + (f"s_sleep {sl}\n" if sl else "") + self.poll_issue(sreg, imm) +
                             ("\ns_waitcnt lgkmcnt(0)\n" if sc else f"\ns_waitcnt vmcnt(0)\nv_readfirstlane_b32 s{sPV}, v{vP}\ns_nop 0\n") +
                             f"s_cmp_ge_u32 s{sPV}, {thr}\ns_cbranch_scc1 {Lb}\ns_sub_u32 s{sF}, s{sF}, 1\ns_cmp_lg_u32 s{sF}, 0\n"
                             f"s_cbranch_scc1 {Ls}_l\ns_branch {Lb}")
        return fn
    def validate(self, quads, reload, tmp):
        rs = [q + e for q in quads for e in range(4)]
        ops = [f"v_max3_u32 v{tmp}, v{rs[0]}, v{rs[1]}, v{rs[2]}"]
        rest = rs[3:]
        while rest:
            if len(rest) >= 2: ops.append(f"v_max3_u32 v{tmp}, v{rest[0]}, v{rest[1]}, v{tmp}"); rest = rest[2:]
            else: ops.append(f"v_max_u32 v{tmp}, v{rest[0]}, v{tmp}"); rest = []
        ops.append(f"v_cmp_eq_u32 vcc, -1, v{tmp}")
        def br():
            E = self.E
            Ls, Lb = E.label("RT"), E.label("RB")
            E(f"s_cbranch_vccnz {Ls}"); E.place(Lb)
            cnt = ""
            if self.stamps and self.o.get("ends"):
                self.sites.append("val")
                cnt = f"s_sub_u32 s{sTS}, 0x200001, s{sF}\nv_writelane_b32 v{vTS2}, s{sTS}, {12 + len(self.sites)}\n"
            self.tail.append(f"{Ls}:\ns_mov_b32 s{sF}, 0x200000\n{Ls}_l:\n" + cnt + "\n".join(reload) + "\ns_waitcnt vmcnt(0)\n" + "\n".join(ops) +
                             f"\ns_sub_u32 s{sF}, s{sF}, 1\ns_nop 0\ns_cbranch_vccz {Lb}\ns_cmp_lg_u32 s{sF}, 0\ns_cbranch_scc1 {Ls}_l\ns_branch {Lb}")
        g = ["\n".join(ops[k:k + 2]) for k in range(0, len(ops), 2)]
        n0 = len(self.E.out); g0 = g[0]
        def first():
            for q in quads:
                assert any(x.startswith(f"buffer_load_dwordx4 {v(q,4)},") for x in self.E.out[n0:]), q
            self.E(g0)
        return [first] + g[1:] + [br]
    def xpoison(self, idx, reg):
        if not self.o.get("early", 0): return []
        return [f"s_add_u32 s{sP}, s{sT16+3}, {self.xt(idx)}\ns_mul_i32 s{sF}, s{sNB}, {5*KB}\ns_add_u32 s{sP}, s{sP}, s{sF}\nbuffer_store_dwordx4 {v(reg,4)}, v{vXW}, {s(WS,4)}, s{sP} offen sc1",
                f"buffer_store_dwordx4 {v(reg,4)}, v{vXW}, {s(WS,4)}, s{sP} offen offset:512 sc1",
                f"s_add_u32 s{sP}, s{sP}, 4096\nbuffer_store_dwordx2 {v(reg,2)}, v{vXW5}, {s(WS,4)}, s{sP} offen sc1",
                f"s_lshl_b32 s{sP}, s{sR}, 4\ns_add_u32 s{sP}, s{sP}, s{sJ}\ns_lshl_b32 s{sP}, s{sP}, 2\ns_add_u32 s{sP}, s{sP}, s{sW}",
                f"s_lshl_b32 s{sP}, s{sP}, 7\ns_add_u32 s{sP}, s{sP}, {STAT + idx*128*KB}\nbuffer_store_dwordx2 {v(reg,2)}, v{vSW}, {s(WS,4)}, s{sP} offen sc1"]
    def nan_net(self, acc, xl, items, allw, ring, imm, stat):
        xr = self.xr
        def fn():
            E = self.E
            Ls, Lb = E.label("NN"), E.label("NB")
            E(f"v_cmp_{'o' if self.o.get('forcenan') else 'u'}_f32 vcc, v{acc}, v{acc}\ns_cbranch_vccnz {Ls}"); E.place(Lb)
            F = Emit(); F.raw(f"{Ls}:")
            if self.stamps and self.o.get("ends"):
                self.sites.append("nan"); F(f"s_mov_b32 s{sTS}, 1\nv_writelane_b32 v{vTS2}, s{sTS}, {12 + len(self.sites)}")
            F("s_waitcnt vmcnt(0) lgkmcnt(0)"); F.settle()
            F(f"s_mov_b32 s{sF}, 0x200000"); F.raw(f"{Ls}_p:")
            F(self.poll_issue(sWC, imm + 8)); F.wait_smem()
            F(f"s_cmp_ge_u32 s{sPV}, 16\ns_cbranch_scc1 {Ls}_q\ns_sub_u32 s{sF}, s{sF}, 1\ns_cmp_lg_u32 s{sF}, 0\ns_cbranch_scc1 {Ls}_p"); F.raw(f"{Ls}_q:")
            F(f"s_mov_b32 s{sF}, s{sE_}")
            for g in xl: F(g)
            F(f"s_mov_b32 s{sE_}, s{sF}\ns_mov_b32 s{sF}, s{sC}")
            for g in stat: F(g)
            F(f"s_mov_b32 s{sC}, s{sF}")
            f = 0
            for k in range(6): F(self.wread(ring + 4 * k, allw[k]))
            for it in items:
                if it[0] == "cs": F(f"v_mfma_f32_32x32x16_bf16 {v(it[1],16)}, {R(it[2],4)}, {v(vNM,4)}, {v(it[1],16)}")
                else:
                    F(f"v_mfma_f32_32x32x16_bf16 {v(it[0],16)}, {R(ring+4*(f%6),4)}, {a(xr(it[1]),4)}, {'0' if it[2] else v(it[0],16)}")
                    F(self.wread(ring + 4 * (f % 6), allw[f + 6])); f += 1
            F.drain(); F.settle()
            F(f"s_branch {Lb}")
            self.tail.append(F.text())
        return fn
    def window(self, k):
        if self.o.get("stub", 70) >> k & 1: self.E.raw(";@WIN")
    def poll_block(self, sreg, imm, thr):
        if not self.preissued: self.E(self.poll_issue(sreg, imm))
        self.window(4 if imm < 512 else 6)
        self.poll_check(sreg, imm, thr)()
    def T(self, kind, L): return 1024 * kind + 4 * L if kind < 4 else 8 + 4 * L
    def touch(self, sreg, sh, off):
        def fn():
            self.E(f"s_add_u32 s{sP}, s{sreg}, s{sh}\ns_add_u32 s{sP}, s{sP}, {off}\nbuffer_load_dword v{vDUM}, v{vTL}, {s(WS,4)}, s{sP} offen sc1")
            self.E.pend.pop(f"v{vDUM}", None)
        m = self.o.get("touch", 0)
        return fn if (m & (1 if sh == sHX else 2)) else (lambda: None)
    def prologue(self):
        E = self.E
        kernel_header(E, KNAME)
        Lgo = E.label("GO")
        E(f"s_cmp_lt_u32 s2, 256\ns_cbranch_scc1 {Lgo}\ns_endpgm")
        E.place(Lgo)
        if self.stamps: E(f"s_memrealtime {s(sTS,2)}\ns_memtime {s(sTS+2,2)}")
        if self.o.get("echo"): E(f"s_memrealtime {s(sTS,2)}")
        E(f"s_load_dwordx2 {s(WS,2)}, s[0:1], 72\ns_load_dwordx2 {s(OUT,2)}, s[0:1], 56\ns_load_dwordx2 {s(XIN,2)}, s[0:1], 0")
        E("s_load_dwordx4 s[80:83], s[0:1], 8\ns_load_dwordx4 s[84:87], s[0:1], 32\ns_load_dwordx2 s[88:89], s[0:1], 48")
        Lp = E.label("PC")
        E(f"s_getpc_b64 {s(sRET,2)}"); E.place(Lp)
        E(f"s_lshr_b32 s{sA}, s2, 3\nv_lshl_add_u32 v{vT}, v0, 5, s{sA}\nv_lshlrev_b32 v{vT}, 7, v{vT}\nv_min_u32 v{vT}, main_end-{Lp}-4, v{vT}")
        E(f"global_load_dword v247, v{vT}, {s(sRET,2)}")
        E(f"s_mov_b32 s{WS+2}, {WS_BYTES}\ns_mov_b32 s{WS+3}, 0x00020000")
        for b in (OUT, XIN): E(f"s_mov_b32 s{b+2}, {2048*640*2}\ns_mov_b32 s{b+3}, 0x00020000")
        E(f"v_lshrrev_b32 v{vT}, 6, v0\nv_and_b32 v0, 63, v0\nv_readfirstlane_b32 s{sW}, v{vT}")
        E(f"s_and_b32 s{sA}, s2, 7\ns_lshr_b32 s{sB}, s2, 3")
        if self.mapping == "mix":
            E(f"s_lshr_b32 s{sC}, s{sA}, 1\ns_lshl_b32 s{sC}, s{sC}, 2\ns_lshr_b32 s{sR}, s{sB}, 3\ns_add_u32 s{sR}, s{sR}, s{sC}")
            E(f"s_and_b32 s{sC}, s{sA}, 1\ns_lshl_b32 s{sC}, s{sC}, 3\ns_and_b32 s{sJ}, s{sB}, 7\ns_add_u32 s{sJ}, s{sJ}, s{sC}")
        else:
            E(f"s_lshr_b32 s{sR}, s{sB}, 4\ns_lshl_b32 s{sC}, s{sA}, 1\ns_add_u32 s{sR}, s{sR}, s{sC}\ns_and_b32 s{sJ}, s{sB}, 15")
        E(f"s_and_b32 s{sTH}, s{sJ}, 1\ns_lshr_b32 s{sNB}, s{sJ}, 1\ns_lshl_b32 s{sLW}, s{sW}, 12")
        E(f"v_lshlrev_b32 v{vL16}, 4, v0")
        if self.stamps: E(f"v_mov_b32 v{vTS}, 0\nv_mov_b32 v{vTS2}, 0")
        E.wait_smem()
        if self.stamps:
            E(f"v_writelane_b32 v{vTS2}, s2, 63")
            E(f"v_writelane_b32 v{vTS}, s{sTS}, 0\nv_writelane_b32 v{vTS2}, s{sTS+2}, 0")
            self.nst = 1; self.stnames.append("entry")
        if self.o.get("align", 1):
            E(f"s_sub_u32 s{sA}, 0, s{WS}\ns_and_b32 s{sA}, s{sA}, 0x1fffff\ns_add_u32 s{WS}, s{WS}, s{sA}\ns_addc_u32 s{WS+1}, s{WS+1}, 0\ns_mov_b32 s{WS+2}, {WS_BYTES - 2*MB}")
        wo_ = self.o.get("wsoff", 0) << 20
        if wo_: E(f"s_add_u32 s{WS}, s{WS}, {wo_}\ns_addc_u32 s{WS+1}, s{WS+1}, 0\ns_mov_b32 s{WS+2}, {WS_BYTES - wo_}")
        S = self.S = Startup(self, sys.modules[__name__])
        S.roles(80, 82, 84, 86, 88)
        S.s1_load(); S.x_touch(); S.leader_clear()
        E(f"v_mov_b32 v{vTK+1}, {EPOCH}\nbuffer_load_dword v{vTK}, v{vTK+1}, {s(WS,4)}, 0 offen sc1")
        self.stamp("st S1 issued")
        if self.o.get("alpos", 0): E.raw(";@ALIGN"); self.window(10)
        S.s2_addrs()
        self.s2q = [(lambda i=i: setattr(S, "tok2", E(S.s2_load(i)))) for i in range(8)]
        if self.o.get("s2when", 2) == 0:
            while self.s2q: self.s2q.pop(0)()
        E(f"s_lshl_b32 s{sA}, s{sR}, 2\ns_add_u32 s{sA}, s{sA}, s{sW}\ns_mul_i32 s{sTK}, s{sA}, {40*KB}")
    def masks(self):
        r = []
        for i in range(16):
            m = 0
            for l in range(64):
                if (i & 3) + 8 * (i >> 2) + 4 * (l >> 5) <= (l & 31): m |= 1 << l
            r.append(f"s_mov_b32 s{sMASK+2*i}, {hex(m & 0xffffffff)}\ns_mov_b32 s{sMASK+2*i+1}, {hex(m >> 32)}")
        return r
    def x_bounce(self, T, wdm):
        E = self.E; S = self.S
        XA = 96; XR = 100; TM = 104; PA, PD = 240, 242
        o = self.o; X0 = 64 * KB
        E(f"v_lshrrev_b32 v48, 3, v0\nv_mul_u32_u24 v48, 1280, v48\nv_and_b32 v49, 7, v0\nv_lshrrev_b32 v50, 4, v0\nv_xor_b32 v49, v49, v50\nv_lshl_add_u32 v{XA}, v49, 4, v48")
        E(f"v_xor_b32 v{XA+1}, 64, v{XA}\nv_add_u32 v{XA+2}, {2*9216}, v{XA}\nv_add_u32 v{XA+3}, {3*9216}, v{XA+1}\nv_add_u32 v{XA+1}, 9216, v{XA+1}")
        tok = []
        def dma(ch):
            E(f"s_add_u32 m0, s{sLW}, {X0 + 16*KB*(ch%4)}\ns_add_u32 s{sE_}, s{sTK}, {128*ch}")
            for i in range(4): t = E(f"buffer_load_dwordx4 v{XA+i}, {s(XIN,4)}, s{sE_} offen offset:{1024*i} lds")
            tok.append(t)
        E(f"s_mul_i32 s{sWQ}, s{sJ}, {160*KB}\ns_add_u32 s{sWQ}, s{sWQ}, s{sLW}\ns_add_u32 s{sWQ}, s{sWQ}, {WQ}")
        E(f"v_min_u32 v{vSIG}, 1, v0\nv_lshlrev_b32 v{vSIG}, 28, v{vSIG}\nv_mov_b32 v{vONE}, 1")
        E(f"v_and_b32 v48, 31, v0\nv_lshrrev_b32 v49, 5, v0\nv_bfe_u32 v50, v0, 1, 3\nv_xor_b32 v49, v49, v50\nv_lshlrev_b32 v49, 4, v49\nv_lshl_add_u32 v48, v48, 7, v49")
        E(f"s_add_u32 s{sA}, s{sLW}, {X0}\nv_add_u32 v{XR}, s{sA}, v48")
        for k in range(1, 4): E(f"v_xor_b32 v{XR+k}, {32*k}, v{XR}")
        E(f"v_mov_b32 v{T}, 0\nv_mov_b32 v{T+1}, 0")
        E(f"s_lshl_b32 s{sA}, s{sNB}, 12\ns_add_u32 s{sA}, s{sA}, {F1}\ns_sub_u32 s{sB}, 15, s{sR}\ns_mov_b32 s{sC}, {F1 + 15*128}")
        E(f"v_and_b32 v49, 3, v0\nv_min_u32 v49, 2, v49\nv_add_u32 v49, s{sB}, v49\nv_min_u32 v49, 15, v49\nv_lshl_add_u32 v49, v49, 11, s{sC}")
        E(f"v_lshlrev_b32 v174, {o.get('vsh', 7)}, v0\nv_add_u32 v174, {VOTE}, v174")
        E(f"v_lshl_add_u32 v48, v0, 7, s{sA}\nv_cmp_gt_u32 vcc, 32, v0\nv_cndmask_b32 v{PA}, v49, v48, vcc")
        E(f"s_lshl_b32 s{sA}, s{sNB}, 12\ns_add_u32 s{sA}, s{sA}, {F2}\nv_and_b32 v48, 31, v0\nv_lshl_add_u32 v{PA+1}, v48, 7, s{sA}")
        prep = S.s2_prep if not o.get("s2when", 2) else (lambda: None)
        if o.get("cfirst", 1): self.prologue2(); prep()
        if not o.get("alpos", 0): E.raw(";@ALIGN")
        self.window(0)
        S.s1_proc()
        self.stamp("st S1 stored")
        for ch in range(0, 2): dma(ch)
        if not o.get("cfirst", 1): self.prologue2(); prep()
        E(f"s_mov_b32 s{sA}, 0x9e3779b1\nv_mul_lo_u32 v{vTK}, v{vTK}, s{sA}\nv_add_u32 v{vTK}, 0x7f4a7c15, v{vTK}\nv_xor_b32 v{vTK+1}, 0x5bd1e995, v{vTK}")
        E(f"v_readfirstlane_b32 s0, v{vTK}")
        if o.get("racepos", 1) == 0: S.leader_race()
        dma(2)
        if o.get("racepos", 1) == 1: S.leader_race()
        self.window(1)
        E.wait(vm=tok[0] - 3); E("s_barrier"); S.flag1(); self.stamp("st F1")
        dma(3)
        self.s2r = None
        nx = o.get("s2x", 10) if not o.get("s2when", 2) else 0
        if nx: self.s2r = S.s2_read()
        pi, pc = o.get("f1poll", 5), o.get("f1chk", 8)
        def dots(ch):
            tm = TM + 16 * (ch & 1)
            for e in range(16): E(f"v_dot2c_f32_bf16 v{T}, s{sONE}, v{tm+e}\nv_dot2c_f32_bf16 v{T+1}, v{tm+e}, v{tm+e}")
        for ch in range(10):
            E.wait(vm=tok[ch])
            for k in range(4): E(f"ds_read_b128 {v(TM+16*(ch&1)+4*k,4)}, v{XR+k} offset:{16*KB*(ch%4)}")
            for k in range(4): E(f"ds_read_b128 {a(16*ch+4*k,4)}, v{XR+k} offset:{16*KB*(ch%4)}")
            if ch == pi:
                E(f"s_cmp_eq_u32 s{sW}, 0\ns_cselect_b32 s{sA}, 0, {OOB}\nv_add_u32 v{PA}, s{sA}, v{PA}")
                E(S.vpoll_issue(PA, PD))
            if ch == o.get("vpos", 13) - 100: E(f"buffer_load_dword v156, v174, {s(WS,4)}, 0 offen sc1")
            if ch == o.get("resch", 1):
                for x in self.tile_addrs(140, 143): E(x)
                for i in range(3): rtok = E(f"s_add_u32 m0, s{sLW}, {16*KB + 1024*i}\nbuffer_load_dwordx4 v{140+i}, {s(XIN,4)}, s{sRM} offen lds")
            if ch == 7:
                E.wait(vm=rtok)
                E(f"ds_read_b128 v[136:139], v{vRM} offset:{16*KB}\nds_read_b128 v[140:143], v{vRM} offset:{16*KB+16}\nds_read_b64 v[144:145], v{vRM5} offset:{16*KB+128}")
            if ch == 8:
                for i in range(10): E(f"v_lshlrev_b32 v{vRES+2*i}, 16, v{136+i}\nv_and_b32 v{vRES+2*i+1}, 0xffff0000, v{136+i}")
            if ch: dots(ch - 1)
            E.drain(vm=False)
            if ch + 4 < 10: dma(ch + 4)
            if ch == o.get("s2ch", 0):
                while self.s2q: self.s2q.pop(0)()
                if o.get("s2when", 2): S.s2_prep()
            for _ in range(o.get("s2n", 2)):
                if ch < nx and ch >= o.get("s2f", 5) and self.s2r[1]: E(self.s2r[1].pop(0))
            if ch == pc:
                Lw = E.label("PW")
                E.need(regs(v(PD, 2)))
                E(f"s_cmp_lg_u32 s{sW}, 0\ns_cbranch_scc1 {Lw}")
                S.vpoll_check(PA, PD, 4)()
                E.place(Lw)
                E("s_barrier")
                self.stamp("WQ synced")
            if ch >= pc and wdm:
                for _ in range(o.get("wfirst", 1)):
                    for g in wdm.pop(0): self.do(g)
        dots(9)
        self.stamp("st x done")
    def sharers(self):
        return [f"s_and_b32 s{sA}, s{sR}, 3\ns_lshl_b32 s{sH8}, s{sA}, 1\ns_add_u32 s{sH8}, s{sH8}, s{sTH}\ns_lshl_b32 s{sH8}, s{sH8}, 11",
                f"s_and_b32 s{sA}, s{sR}, 3\ns_lshl_b32 s{sH16}, s{sA}, 2\ns_add_u32 s{sH16}, s{sH16}, s{sW}\ns_lshl_b32 s{sH16}, s{sH16}, 11\ns_sub_u32 s{sH16}, s{sH16}, s{sLW}",
                f"s_and_b32 s{sHX}, s{sJ}, 7\ns_lshl_b32 s{sHX}, s{sHX}, 11"]
    def prologue2(self):
        E = self.E; NREP = self.o.get("nrep", 4)
        E(f"s_mul_i32 s{sWGU}, s{sJ}, {240*KB}\ns_add_u32 s{sWGU}, s{sWGU}, s{sLW}\ns_add_u32 s{sWGU}, s{sWGU}, {WGU}")
        E(f"s_mul_i32 s{sWO}, s{sNB}, {100*KB}\ns_mul_i32 s{sA}, s{sW}, {25*KB}\ns_add_u32 s{sWO}, s{sWO}, s{sA}\ns_add_u32 s{sWO}, s{sWO}, {WO}")
        E(f"s_mul_i32 s{sWD}, s{sNB}, {240*KB}\ns_mul_i32 s{sA}, s{sW}, {60*KB}\ns_add_u32 s{sWD}, s{sWD}, s{sA}\ns_add_u32 s{sWD}, s{sWD}, {WD}")
        E(f"s_lshl_b32 s{sA}, s{sR}, 2\ns_add_u32 s{sA}, s{sA}, s{sW}")
        for i in range(9):
            E(f"s_cmp_lt_u32 s{sA}, {8-i}\ns_cselect_b32 s{sFL+i}, 0x3f803f80, 0x3f800000" if False else
              f"s_cmp_lt_u32 s{sA}, {8-i}\ns_cselect_b32 s{sFL+i}, 0x3f80, 0\ns_or_b32 s{sFL+i}, s{sFL+i}, 1.0")
        E(f"v_lshlrev_b32 v{vSR}, 10, v0\nv_mov_b32 v48, {OOB}\nv_cmp_gt_u32 vcc, {NREP}, v0\nv_cndmask_b32 v{vSR}, v48, v{vSR}, vcc")
        for i in range(3):
            E(f"s_add_u32 s{sA}, s{sW}, {1+i}\ns_and_b32 s{sA}, s{sA}, 3\ns_mul_i32 s{sA}, s{sA}, {15*KB}\ns_add_u32 s{sA}, s{sA}, {5*KB*i}\nv_add_u32 v{vRW+i}, s{sA}, v{vL16}")
        E(f"s_mul_i32 s{sA}, s{sW}, {15*KB}\nv_add_u32 v{vRW+3}, s{sA}, v{vL16}")
        t0, t1, t2 = 48, 49, 50
        E(f"v_add_u32 v{vL16b}, 0x10000, v{vL16}\nv_add_u32 v{vL16c}, 0x20000, v{vL16}")
        E(f"v_lshrrev_b32 v{t0}, 4, v0\nv_and_b32 v{t1}, 15, v0")
        E(f"v_lshlrev_b32 v{t2}, 9, v{t0}\nv_lshl_add_u32 v{vU}, v{t1}, 4, v{t2}")
        E(f"v_lshlrev_b32 v{t2}, 10, v{t0}\nv_lshl_add_u32 v{vXW}, v{t1}, 4, v{t2}")
        E(f"v_lshrrev_b32 v{t2}, 1, v{t0}\nv_lshlrev_b32 v{t2}, 9, v{t2}\nv_lshl_add_u32 v{vXW5}, v{t1}, 4, v{t2}")
        E(f"v_and_b32 v{t2}, 1, v{t0}\nv_lshl_add_u32 v{vXW5}, v{t2}, 3, v{vXW5}")
        E(f"s_mul_i32 s{sA}, s{sNB}, {5*KB}\nv_add_u32 v{vXW}, s{sA}, v{vXW}\ns_add_u32 s{sA}, s{sA}, 4096\nv_add_u32 v{vXW5}, s{sA}, v{vXW5}")
        for r_ in (vXW, vXW5): E(f"v_and_b32 v{t2}, 0xffffe000, v{r_}\nv_add_u32 v{r_}, v{t2}, v{r_}")
        E(f"v_lshlrev_b32 v{vTL}, 7, v{t1}\nv_lshl_add_u32 v{vTL}, v{t0}, 28, v{vTL}")
        E(f"v_lshlrev_b32 v{vSW}, 3, v{t1}\nv_lshl_add_u32 v{vSW}, v{t0}, 28, v{vSW}")
        E(f"v_mul_u32_u24 v{t2}, 160, v{t1}\nv_add_u32 v{t2}, s{sLW}, v{t2}\nv_lshl_add_u32 v{vRM}, v{t0}, 5, v{t2}\nv_lshl_add_u32 v{vRM5}, v{t0}, 3, v{t2}")
        E(f"s_lshl_b32 s{sA}, s{sR}, 1\ns_add_u32 s{sA}, s{sA}, s{sTH}\ns_lshl_b32 s{sA}, s{sA}, 2\ns_add_u32 s{sA}, s{sA}, s{sW}")
        E(f"s_mul_i32 s{sA}, s{sA}, {16*1280}\ns_mul_i32 s{sB}, s{sNB}, 160\ns_add_u32 s{sRM}, s{sA}, s{sB}")
        E(f"v_lshrrev_b32 v{t0}, 5, v0\nv_and_b32 v{t1}, 31, v0")
        E(f"v_lshlrev_b32 v{t2}, 2, v{t0}\nv_xor_b32 v{t2}, v{t2}, v{t1}\nv_lshlrev_b32 v{t2}, 4, v{t2}\nv_lshl_add_u32 v{vPOS}, v{t0}, 9, v{t2}")
        E(f"v_lshlrev_b32 v{t2}, 3, v{t1}")
        E(f"s_lshl_b32 s{sA}, s{sW}, 8\nv_lshl_add_u32 v{vST}, v{t0}, 12, v{t2}\nv_add_u32 v{vST}, s{sA}, v{vST}")
        E(f"v_lshlrev_b32 v{t2}, 4, v{t1}\nv_lshl_add_u32 v{vO4}, v{t0}, 3, v{t2}")
        E(f"s_mul_i32 s{sA}, s{sW}, {SLOT}\nv_add_u32 v{vKR}, s{sA}, v{vPOS}")
        for g in self.arena_consts(): E(g)
    def arena_fix(self, VV):
        n = self.o.get("numa", -1)
        assert self.o.get("nrace", NRACE) == 1
        ld = f"buffer_load_dword v{VV}, v174, {s(WS,4)}, 0 offen sc1"
        chk = f"v_sub_u32 v{VV}, v{VV}, v{vTK}\nv_cmp_lt_u32 vcc, 7, v{VV}"
        Ls, Lb = self.E.label("VT"), self.E.label("VB")
        self.tail.append(f"{Ls}:\ns_mov_b32 s{sF}, 0x100000\n{Ls}_l:\ns_sleep 4\n{ld}\ns_waitcnt vmcnt(0)\n{chk}\ns_nop 1"
                         f"\ns_cbranch_vccz {Lb}\ns_sub_u32 s{sF}, s{sF}, 1\ns_cmp_lg_u32 s{sF}, 0\ns_cbranch_scc1 {Ls}_l\ns_branch {Lb}")
        va = [chk + f"\ns_cbranch_vccnz {Ls}\n@{Lb}", f"v_lshrrev_b32 v{VV+1}, 2, v{VV}", f"v_and_b32 v{VV}, 1, v{VV}",
              f"v_cmp_ne_u32 vcc, v{VV}, v{VV+1}\ns_bcnt1_i32_b64 s64, vcc\ns_cmp_ge_u32 s64, 32\ns_cselect_b32 s64, 1, 0",
              f"v_xor_b32 v{VV}, s64, v{VV+1}", f"v_lshlrev_b32 v{VV}, 13, v{VV}",
              f"s_lshr_b32 s65, s{sW}, 1\ns_add_u32 s65, s65, s{sR}\ns_max_u32 s65, s65, 2\ns_sub_u32 s65, s65, 2",
              f"s_lshl_b32 s65, s65, 2\ns_lshl_b32 s64, s{sR}, 2", f"v_readlane_b32 s64, v{VV}, s64", f"v_readlane_b32 s65, v{VV}, s65"]
        r = []
        if self.stamps: r.append(f"v_writelane_b32 v{vTS}, s64, 62")
        if n >= 0:
            r += [f"s_lshr_b32 s64, s{sR}, 3\ns_xor_b32 s64, s64, {n}\ns_lshl_b32 s64, s64, 13",
                  f"s_lshr_b32 s65, s{sW}, 1\ns_add_u32 s65, s65, s{sR}\ns_sub_u32 s65, s65, 2", f"s_bfe_u32 s65, s65, 0x10003\ns_xor_b32 s65, s65, {n}\ns_lshl_b32 s65, s65, 13"]
        own = [sXB, sHme, sKP, sOme, sTP, sTC, sWP, sWC] + [sT16 + i for i in range(8)]
        r += ["\n".join(f"s_add_u32 s{x}, s{x}, s64" for x in own[k:k + 2]) for k in range(0, 16, 2)]
        r += [f"s_cmp_eq_u32 s{sKT}, 0\ns_cselect_b32 s64, s64, s65\ns_cselect_b32 s65, 0, s65",
              f"s_add_u32 s{sHAL}, s{sHAL}, s65\ns_add_u32 s{sKC}, s{sKC}, s64\ns_add_u32 s{sKVme}, s{sKVme}, s64"]
        return va + [r]
    def arena_consts(self):
        NREP = self.o.get("nrep", 4)
        r = [f"s_mul_i32 s{sAR}, s{sR}, {ASTR}\ns_add_u32 s{sAR}, s{sAR}, {ARENA}",
             f"s_lshr_b32 s{sB}, s{sW}, 1\ns_mul_i32 s{sA}, s{sB}, {ASTR}\ns_add_u32 s{sA}, s{sA}, s{sAR}",
             f"s_sub_u32 s{sA}, s{sA}, {2*ASTR}",
             f"s_mul_i32 s{sXB}, s{sW}, {80*KB}\ns_add_u32 s{sXB}, s{sXB}, s{sAR}",
             f"s_lshl_b32 s{sC}, s{sJ}, 14\ns_and_b32 s{sD}, s{sJ}, 3\ns_lshl_b32 s{sD}, s{sD}, 10\ns_add_u32 s{sC}, s{sC}, s{sD}\ns_lshl_b32 s{sHme}, s{sW}, 18\ns_add_u32 s{sHme}, s{sHme}, s{sC}",
             f"s_add_u32 s{sHme}, s{sHme}, s{sAR}\ns_and_b32 s{sD}, s{sW}, 1\ns_lshl_b32 s{sHAL}, s{sD}, 19",
             f"s_add_u32 s{sHAL}, s{sHAL}, s{sC}\ns_add_u32 s{sHAL}, s{sHAL}, s{sA}\ns_add_u32 s{sHAL}, s{sHAL}, {A_KV1}\ns_lshl_b32 s{sC}, s{sJ}, 1",
             f"s_add_u32 s{sKC}, s{sC}, s{sD}\ns_lshl_b32 s{sKC}, s{sKC}, 7\ns_add_u32 s{sKC}, s{sKC}, s{sA}",
             f"s_add_u32 s{sKC}, s{sKC}, {A_KVF}\ns_add_u32 s{sKP}, s{sC}, s{sB}\ns_lshl_b32 s{sKP}, s{sKP}, 7",
             f"s_add_u32 s{sKP}, s{sKP}, s{sAR}\ns_add_u32 s{sKP}, s{sKP}, {A_KVF}\ns_add_u32 s{sKVme}, s{sKP}, 32",
             f"s_add_u32 s{sC}, s{sR}, s{sB}\ns_mov_b32 s{sHAL+1}, {256*KB}\ns_cmp_lt_u32 s{sC}, 2\ns_cselect_b32 s{sHAL}, s{sWQ}, s{sHAL}\n"
             f"s_cselect_b32 s{sHAL+1}, {5*KB}, s{sHAL+1}\ns_cselect_b32 s{sKVme}, s{sKVme}, s{sKC}\ns_cselect_b32 s{sKC}, s{sKP}, s{sKC}\ns_cselect_b32 s{sKT}, 0, 2",
             f"s_lshr_b32 s{sD}, s{sJ}, 2\ns_lshl_b32 s{sOme}, s{sD}, 14\ns_add_u32 s{sOme}, s{sOme}, s{sXB}",
             f"s_add_u32 s{sA}, s{sAR}, {A_CNT}\ns_lshl_b32 s{sC}, s{sB}, 2\ns_add_u32 s{sC}, s{sC}, s{sD}",
             f"s_lshl_b32 s{sC}, s{sC}, 7\ns_add_u32 s{sTP}, s{sA}, s{sC}\ns_lshl_b32 s{sC}, s{sTH}, 2",
             f"s_add_u32 s{sC}, s{sC}, s{sW}\ns_lshl_b32 s{sC}, s{sC}, 7\ns_add_u32 s{sTC}, s{sA}, s{sC}",
             f"s_and_b32 s{sD}, s{sNB}, {NREP-1}\ns_lshl_b32 s{sD}, s{sD}, 10",
             f"s_add_u32 s{sA}, s{sA}, {32*128}\ns_lshl_b32 s{sC}, s{sTH}, 1\ns_add_u32 s{sC}, s{sC}, s{sB}",
             f"s_lshl_b32 s{sC}, s{sC}, 7\ns_add_u32 s{sWP}, s{sA}, s{sC}\ns_lshl_b32 s{sC}, s{sW}, 7",
             f"s_add_u32 s{sWC}, s{sA}, s{sC}\ns_add_u32 s{sWC}, s{sWC}, s{sD}"]
        for i in range(4):
            r += [f"s_add_u32 s{sA}, s{sW}, {1+i}\ns_bfe_u32 s{sB}, s{sA}, 0x10001\ns_and_b32 s{sC}, s{sA}, 1",
                  f"s_lshl_b32 s{sC}, s{sC}, 8\ns_add_u32 s{sC}, s{sC}, s{sAR}\ns_lshl_b32 s{sD}, s{sTH}, 1",
                  f"s_add_u32 s{sB}, s{sB}, s{sD}\ns_mul_i32 s{sT16+i}, s{sB}, {80*KB}\ns_add_u32 s{sT16+i}, s{sT16+i}, s{sC}",
                  f"s_lshl_b32 s{sB}, s{sB}, 2\ns_add_u32 s{sB}, s{sB}, s{sW}\ns_lshl_b32 s{sB}, s{sB}, 16\ns_add_u32 s{sT16H+i}, s{sB}, s{sC}"]
        return r
    def tile_addrs(self, d, t):
        r = []
        for i in range(3):
            r += [f"v_add_u32 v{t}, {64*i}, v0", f"v_mul_u32_u24 v{t+1}, 6554, v{t}", f"v_lshrrev_b32 v{t+1}, 16, v{t+1}",
                  f"v_mul_u32_u24 v{t+1}, {1280 - 160}, v{t+1}", f"v_lshl_add_u32 v{d+i}, v{t}, 4, v{t+1}"]
        return r + [f"v_lshrrev_b32 v{t}, 5, v0", f"v_lshl_add_u32 v{d+2}, v{t}, 28, v{d+2}"]
    def stat_loads(self, idx, t):
        return [(f"s_and_b32 s{sC}, s{sTC}, 0xffffe000\ns_add_u32 s{sC}, s{sC}, {(A_ST - A_CNT + idx*16*KB) & 0xffffffff}\n" if q == 0 else "") +
                f"buffer_load_dwordx2 {v(t+2*q,2)}, v{vST}, {s(WS,4)}, s{sC} offen offset:{1024*q} sc1" for q in range(4)]
    def stat_ops(self, t):
        return [f"v_add_f32 v{t}, v{t}, v{t+2}", f"v_add_f32 v{t+1}, v{t+1}, v{t+3}", f"v_add_f32 v{t+4}, v{t+4}, v{t+6}", f"v_add_f32 v{t+5}, v{t+5}, v{t+7}",
              f"v_add_f32 v{t}, v{t}, v{t+4}", f"v_add_f32 v{t+1}, v{t+1}, v{t+5}", f"v_mov_b32 v{t+2}, v{t}", f"v_mov_b32 v{t+3}, v{t+1}",
              f"v_permlane32_swap_b32 v{t+2}, v{t}", f"v_permlane32_swap_b32 v{t+3}, v{t+1}",
              f"v_add_f32 v{t}, v{t}, v{t+2}", f"v_add_f32 v{t+1}, v{t+1}, v{t+3}",
              f"v_fma_f32 v{t}, v{t+1}, 0, v{t}",
              f"v_mul_f32 v{t}, {f2u(-1/640)}, v{t}", f"v_mul_f32 v{t+1}, {f2u(1/640)}, v{t+1}",
              f"v_fma_f32 v{t+1}, -v{t}, v{t}, v{t+1}", f"v_cvt_pk_bf16_f32 v{vNM}, v{t}, v{t}", f"v_max_f32 v{t+1}, 0, v{t+1}",
              f"v_mov_b32 v{vNM+1}, v{vNM}", f"v_add_f32 v{vIV}, {f2u(EPS)}, v{t+1}", f"v_mov_b32 v{vNM+2}, v{vNM}",
              f"v_rsq_f32 v{vRSTD}, v{vIV}", f"v_mov_b32 v{vNM+3}, v{vNM}"]
    def cs_loads(self, base, stride, ntile, dst):
        g = []
        for t in range(ntile):
            p = ""
            if t == 0: p = f"s_mul_i32 s{sD}, s{sJ}, {stride}\ns_add_u32 s{sD}, s{sD}, {base}\n"
            if t == 4: p = f"s_add_u32 s{sD}, s{sD}, 4096\n"
            g.append(p + f"buffer_load_dwordx4 {R(dst+4*t,4)}, v{vL16}, {s(WS,4)}, s{sD} offen offset:{1024*(t%4)} sc1")
        return g
    def xloads(self, base):
        g = []
        for ks in range(40):
            t = f"s_add_u32 s{sE_}, s{sXB}, {base + 16*KB*(ks >> 3) + 1024*(ks & 4)}\n" if ks % 4 == 0 else ""
            g.append(t + f"buffer_load_dwordx4 {a(self.xr(ks),4)}, v{vL16}, {s(WS,4)}, s{sE_} offen offset:{1024*(ks%4)} sc1")
        return g
    def xstart(self, xl, base):
        n = self.o.get("xt", 2)
        for g in xl[:n]: self.E(g)
        for k in range(2): self.touch(sXB, sHX, base + 8 * KB + 16 * KB * k)()
        for g in xl[n:NX0]: self.E(g)
        self.window(7 if base == self.xt(2) else 8)
    def xt(self, i): return A_X[i] or 0
    def fine(self, tag, sl):
        st = self.o.get("fine_" + tag, 0)
        if st and sl and sl % st == 0: self.stamp(f"{tag}@{sl}")
    def wstream(self, items, pos0, allw, ring, ev=None, valu=None, pre=None, budget=32, tag=""):
        E = self.E; LA = 6
        ev = ev or {}; valu = list(valu or []); pre = pre or {}
        f = pos0; over = 0; defer = []
        for sl, it in enumerate(items):
            self.fine(tag, sl)
            for g in pre.get(sl, []): self.do(g)
            if it[0] == "cs":
                assert not any(isinstance(x, str) and f"v{vNM+3}," in x for _, x in valu), "stats not ready"
                E(f"v_mfma_f32_32x32x16_bf16 {v(it[1],16)}, {R(it[2],4)}, {v(vNM,4)}, {v(it[1],16)}")
                c0 = E.cost - 8
            else:
                acc, ks, first = it
                if f % 2 == 0: E.need(regs(R(ring + 4 * (f % LA), 4)) | regs(R(ring + 4 * ((f + 1) % LA), 4)) | regs(a(self.xr(ks), 4)))
                E(f"v_mfma_f32_32x32x16_bf16 {v(acc,16)}, {R(ring+4*(f%LA),4)}, {a(self.xr(ks),4)}, {'0' if first else v(acc,16)}")
                c0 = E.cost - 8
                if f + LA < len(allw): E(self.wread(ring + 4 * (f % LA), allw[f + LA]))
                f += 1
            for g in ev.get(sl, []): self.do(g)
            if defer and self.o.get("verbose") == 1: print("   ", tag, "deferred op at slot", sl)
            if defer: self.do(defer.pop(0))
            lim = budget - (4 if f % 2 == 0 else 0)
            while valu and valu[0][0] <= sl:
                x = valu[0][1]
                if isinstance(x, list): defer += x; valu.pop(0); continue
                c = sum(8 if y.startswith(TRANS) else 4 for y in x.split("\n"))
                if E.cost - c0 + c > lim and not (c > 16 and E.cost - c0 <= 12): break
                valu.pop(0); E(x)
            over += max(0, E.cost - c0 - lim)
        if self.o.get("verbose"): print(tag, "over budget", over, "left valu", len(valu))
        valu += [(0, defer)]
        assert max(list(ev) + list(pre) + [0]) < len(items), (max(list(ev) + list(pre)), len(items))
        for _, x in valu:
            for y in (x if isinstance(x, list) else [x]): self.do(y)
    def wstream16(self, acc, cs, pos0, allw, ring, ev=None, valu=None, pre=None, budget=16, vend=84, tag=""):
        E = self.E
        ev = ev or {}; valu = list(valu or []); pre = pre or {}
        cost = lambda x: sum(8 if y.startswith(TRANS) else 4 for y in x.split("\n"))
        q = []; over = 0
        for sl in range(84):
            self.fine(tag, sl)
            for g in pre.get(sl, []): self.do(g)
            for g in ev.get(sl, []): q += self.flat(g)
            for hf in range(2):
                rd = None
                if sl < 80:
                    sp, n, t = sl >> 3, (sl >> 1) & 3, sl & 1
                    f = pos0 + (sl & ~1) + hf; w = ring + 4 * (f % 6); d = acc[n >> 1] + 8 * t + 4 * (n & 1)
                    xr = self.xr(4 * sp + 2 * t + hf)
                    if hf == 0:
                        nd = regs(a(xr, 4)) | regs(a(self.xr(4 * sp + 2 * t + 1), 4))
                        if t == 0: nd |= regs(v(w, 4)) | regs(v(ring + 4 * ((f + 1) % 6), 4))
                        E.need(nd)
                    assert n or t or hf or any(x.startswith(f"buffer_load_dwordx4 {a(self.xr(4 * sp + 3), 4)},") for x in E.out[self.x0:])
                    E(f"v_mfma_f32_16x16x32_bf16 {v(d,4)}, {v(w,4)}, {a(xr,4)}, {'0' if sp == 0 and hf == 0 else v(d,4)}")
                    if t == 1 and f + 6 < len(allw): rd = self.wread(w, allw[f + 6])
                else:
                    assert not any(isinstance(x, str) and f"v{vNM+3}," in x for _, x in valu), "stats not ready"
                    n, t = sl - 80, hf; d = acc[n >> 1] + 8 * t + 4 * (n & 1)
                    E(f"v_mfma_f32_16x16x16_bf16 {v(d,4)}, {v(cs+2*n,2)}, {v(vNM+2*t,2)}, {v(d,4)}")
                c0 = E.cost - 8
                if rd: E(rd)
                while q and (E.cost - c0 <= 8 or (len(q) > 4 and E.cost - c0 <= 12)):
                    self.do(q.pop(0))
                lim = budget - (4 if sl % 2 == 1 and hf == 1 else 0)
                left = sum(cost(x) for _, x in valu if isinstance(x, str)); gaps = max(1, 2 * (vend - sl) - hf)
                mind = left - (gaps - 1) * self.vrate if valu and valu[0][0] <= sl else 0
                done = 0
                while valu and valu[0][0] <= sl:
                    x = valu[0][1]
                    if isinstance(x, list):
                        for y in x: q += self.flat(y)
                        valu.pop(0); continue
                    c = cost(x)
                    if E.cost - c0 + c > lim and done >= mind: break
                    valu.pop(0); E(x); done += c
                over += max(0, E.cost - c0 - lim)
        if self.o.get("verbose"): print(tag, "over budget", over, "left valu", len(valu), "left q", len(q))
        assert max(list(ev) + list(pre) + [0]) < 84
        for _, x in valu:
            for y in (x if isinstance(x, list) else [x]): self.do(y)
        for y in q: self.do(y)
    @staticmethod
    def pair_items(acc, cs):
        return [(acc[sl & 1], sl >> 1, sl < 2) for sl in range(80)] + [("cs", acc[0], cs), ("cs", acc[1], cs + 4)]
    def p1(self, L):
        E = self.E; o = self.o
        ACC = [48, 64, 80, 96]; RING = 112; CS = 136
        KA, KB_, KV1, VA, VB = 152, 156, 160, 164, 168
        QA0, QB0, QA1, QB1 = 172, 176, 180, 184
        self.Q = (QA0, QB0, QA1, QB1)
        MK = self.MK = 188; VAD = self.VAD = [196, 205]; K1 = self.K1 = AG
        self.WOF = [AG + 160 + 4 * f for f in range(24)] + [244]
        self.xr = lambda ks: 4 * ks
        xl = self.xloads(self.xt(2 * L))
        allw = [1024 * f for f in range(80)] + [1024 * f for f in range(80, 160)]
        tok = []
        if L == 0:
            dm = [self.dma4(sWQ, 16 * KB * c, 16 * KB * c, tok) for c in range(10)]
            wdm = list(dm)
            self.x_bounce(152, wdm)
            c0 = 10 - len(wdm)
            assert o.get("f1chk", 8) >= 7
            assert c0 <= 4
            self.window(9)
            if o.get("s2when", 2): E.wait(vm=self.S.tok2); E("s_barrier")
            s2cs, s2st, s2last = self.s2r or self.S.s2_read()
            self.stamp("st S2 read")
            late = sum(dm[2:], [])
        else:
            E.wait(vm=self.wq_tok[1]); E("s_barrier")
            for f in range(6): E(self.wread(RING + 4 * f, allw[f]))
            self.poll_block(sWC, 512 + 4 * (L - 1), 16)
            self.stamp("L1 P1 synced")
            self.xstart(xl, self.xt(2 * L))
            resops = []; late = self.wq_late; tok = self.wq_tok
        def ready(c): return lambda: (E.wait(vm=tok[c]), E("s_barrier"))
        if L == 0:
            ready(0)()
            for f in range(6): E(self.wread(RING + 4 * f, allw[f]))
        ev = {}; pre = {}
        so = self.stat_ops(152)
        if L == 0:
            for c in range(1, 5): pre[16 * c - 6] = [ready(c)]
            nA = o.get("lateA", 9)
            seq = []
            for c in range(c0, nA):
                seq += dm[c]
                if c == 4: seq += self.cs_loads(CSQ, 4 * KB, 4, CS)
            spread(ev, seq, 0, o.get("lateS", 26) / 10)
            spread(ev, s2st, o.get("s2s0", 0), o.get("s2sS", 10) / 10)
            spread(ev, self.masks(), 31, 3)
            lateB = sum(dm[nA:], [])
            if o.get("vpos", 13) < 100: ev.setdefault(o.get("vpos", 13), []).append(f"buffer_load_dword v156, v174, {s(WS,4)}, 0 offen sc1")
            so = [(1, x) for x in so[6:] + s2cs] + [(1, [s2last])] + [(50, x) for x in self.arena_fix(156)]
        else:
            pre[26] = [ready(len(tok) - 1)]
            assert len(tok) >= 7
            spread(ev, xl[NX0:] , 0, o.get('xS', 20) / 10)
            if o.get("early", 0): ev.setdefault(11, []).append(self.statsig)
            spread(ev, self.stat_loads(2, 152), 39, 2)
            spread(ev, late, o.get('lt0', 60), (81.9 - o.get('lt0', 60)) / max(len(late), 1))
            so = [(66, x) for x in so]
        if L: spread(ev, [self.touch(sWO, sH8, 16 * KB * k) for k in range(2)], 61, 14)
        if L == 0: pre[74] = [ready(5)]
        self.wstream(self.pair_items(ACC[:2], CS), 0, allw, RING, ev, so, pre, tag=f"A{L}")
        self.stamp(f"L{L} P1 passA")
        def epi(G0, G1, dst, sc, at):
            r = []
            for G in range(G0, G1):
                b = ACC[0] + 4 * G
                r += [(at, f"v_mul_f32 v{b+i}, v{sc[G-G0]}, v{b+i}") for i in range(4)]
                r += [(at, f"v_cvt_pk_bf16_f32 v{dst[G-G0]+i}, v{b+2*i}, v{b+2*i+1}") for i in range(2)]
            return r
        kvg = A_KV1
        sKVme = sHme
        st = {}
        vKW = 214; vQS = 215
        stA = [f"buffer_store_dwordx4 {v(reg,4)}, v{vPOS}, {s(WS,4)}, s{sA} offen offset:{off} sc1" for reg, off in ((KA, 0), (KB_, 1024), (VA, 2048))]
        stA[0] = f"s_add_u32 s{sA}, s{sKVme}, {kvg}\ns_add_u32 s{sB}, s{sA}, 4096\n" + stA[0]
        stA.append(lambda: st.__setitem__("A", E(f"buffer_store_dwordx4 {v(KV1,4)}, v{vPOS}, {s(WS,4)}, s{sB} offen sc1")))
        ldsA = [f"ds_write_b128 v{vKW}, {v(reg,4)} offset:{off}" for reg, off in ((KA, 0), (KB_, 1024), (VA, 2048), (KV1, 4096 + 128))]
        putB = [lambda: st.__setitem__("B", E(f"s_add_u32 s{sA}, s{sKVme}, {kvg}\nbuffer_store_dwordx4 {v(VB,4)}, v{vPOS}, {s(WS,4)}, s{sA} offen offset:3072 sc1")),
                f"ds_write_b128 v{vKW}, {v(VB,4)} offset:3072"]
        qs = 20 ** -0.5 * math.log2(math.e)
        va = epi(0, 8, [KA, KA + 2, KV1, KB_, KB_ + 2, VA, VA + 2, KV1 + 2], [vRSTD] * 8, 1)
        for k, G in reversed(list(enumerate((1, 4, 6, 7)))): va.insert(6 * (G + 1), (1, [stA[k]]))
        va += [(1, f"v_add_u32 v{vKW}, {8*SLOT}, v{vKR}"), (1, f"v_mul_f32 v{vQS}, {f2u(qs)}, v{vRSTD}")]
        t0, t1, t2 = 216, 217, 218
        cst = []
        for i in range(8):
            cst += [f"v_cndmask_b32 v{t0}, 0, -1, {s(sMASK+4*i,2)}", f"v_cndmask_b32 v{t1}, 0, -1, {s(sMASK+4*i+2,2)}",
                    f"v_and_b32 v{t0}, 0xffff, v{t0}", f"v_lshl_or_b32 v{MK+i}, v{t1}, 16, v{t0}"]
        cst += [f"v_lshrrev_b32 v{t0}, 5, v0", f"v_bfe_u32 v{t1}, v0, 2, 2", f"v_lshl_add_u32 v{t0}, v{t0}, 2, v{t1}",
                f"v_bfe_u32 v{t1}, v0, 4, 1", f"v_and_b32 v{t2}, 3, v0", f"v_lshl_add_u32 v{t1}, v{t1}, 2, v{t2}",
                f"v_and_b32 v{t2}, 1, v0", f"v_lshlrev_b32 v219, 2, v{t2}", f"v_xor_b32 v219, v219, v{t0}", f"v_lshlrev_b32 v219, 4, v219",
                f"v_lshl_add_u32 v219, v{t2}, 9, v219", f"v_bfe_u32 v220, v0, 1, 1", f"v_lshl_add_u32 v220, v220, 3, v219", f"v_add_u32 v221, {4096+128+8}, v219",
                f"v_mov_b32 v224, 128", f"v_mov_b32 v225, {SLOT}", f"v_subrev_u32 v226, v{vPOS}, v{vKR}"]
        cst += [f"s_lshl_b32 s{sC}, s{sW}, 7\ns_add_u32 s{sC}, s{sC}, {ONES+128}\nv_mov_b32 v227, s{sC}"]
        for hd in range(2):
            cst += [f"v_add_u32 v222, {2048+1024*hd}, v220", f"v_cmp_gt_u32 vcc, 4, v{t1}\nv_cndmask_b32 v222, v221, v222, vcc", f"v_add_u32 v222, v226, v222",
                    f"v_cmp_gt_u32 {s(sC,2)}, 4, v{t1}\nv_cmp_eq_u32 vcc, {4+hd}, v{t1}\ns_or_b64 vcc, vcc, {s(sC,2)}\nv_cndmask_b32 v{VAD[hd]}, v227, v222, vcc\nv_cndmask_b32 v223, v224, v225, vcc"]
            cst += [f"v_add_u32 v{VAD[hd]+i}, v{VAD[hd]+i-1}, v223" for i in range(1, 9)]
        cst = [f"v_mov_b32 v{228+i}, 0x3f803f80" for i in range(4)] + cst
        n1 = o.get("cst1", 50)
        va += [(1, x) for x in cst[:n1]]
        va += epi(8, 10, [VB, VB + 2], [vRSTD] * 2, 43) + [(43, putB)] + epi(10, 12, [QA0, QA0 + 2], [vQS] * 2, 43)
        va += [(43, x) for x in cst[n1:]]
        for i in range(9):
            va += [(52, f"v_accvgpr_write_b32 {R(K1+4*i+2)}, s{sFL+i}"), (52, f"v_accvgpr_write_b32 {R(K1+4*i+3)}, 0")]
        va += [(52, f"v_mov_b32 v{q+3}, 0") for q in (QA1, QB1)] + [(52, f"v_mov_b32 v{164+i}, -1") for i in range(4)]
        items = [(ACC[2], k, k == 0) for k in range(40)] + [("cs", ACC[2], CS + 8)] + [(ACC[3], k, k == 0) for k in range(40)] + [("cs", ACC[3], CS + 12)]
        ev = {}; pre = {}
        if L == 0:
            pre[10] = [ready(6)]
            endA = E.vm_n
            pre[26] = [lambda: E.wait(vm=endA), ready(7), self.S.flag2]
            pre[43] = [ready(9)]
            spread(ev, lateB, 0, 2.5)
        else:
            if o.get("early", 0):
                pre[2] = [self.nan_net(ACC[0], xl, self.pair_items(ACC[:2], CS) + items[:2], allw, RING, 512, self.stat_loads(2, 152) + self.stat_ops(152))]
                va = [(max(2, sl), x) for sl, x in va]
            pre[26] = [ready(9)]
        spread(ev, ldsA + [f"ds_write_b128 v{vL16}, v[228:231] offset:{ONES}", f"ds_write_b128 v{vL16}, v[228:231] offset:{ONES+1024}"], 26, 2)
        wo = []
        for f in range(25):
            t = f"s_add_u32 s{sT0+1}, s{sWO}, {1024*f}\n" if f % 4 == 0 else ""
            wo.append(t + f"buffer_load_dwordx4 {R(self.WOF[f],4)}, v{vL16}, {s(WS,4)}, s{sT0+1} offen offset:{1024*(f%4)} sc1")
        if L == 0:
            pass
        nwo = o.get("wob", 14)
        if L == 0:
            nwo = 0
        else:
            spread(ev, wo[:nwo], o.get('wo0', 13), (o.get('wo1', 57) - o.get('wo0', 13)) / nwo)
        self.wo_late = wo[nwo:]
        spread(ev, [self.touch(sWGU, sH16, 32 * KB * k) for k in range(2)], 40, 16)
        sa, pa, ca, sb = o.get("sa", 34), o.get("pa", 50), o.get("ca", 70), o.get("sb", 79)
        if L == 0: sa, pa, ca = o.get("sa0", sa), o.get("pa0", pa), o.get("ca0", ca)
        ev.setdefault(sa, []).append(self.signal(sKP, 8 * L, lambda: st["A"]))
        ev.setdefault(pa, []).append(self.poll_issue(sKC, 8 * L))
        pre.setdefault(ca, []).append(self.poll_check(sKC, 8 * L, f"s{sKT}"))
        hal = []; self.haltok = []
        for t in range(2):
            p = f"s_mul_i32 s{sB}, s{sW}, {2*SLOT}\n" if t == 0 else ""
            hal.append(p + f"s_add_u32 m0, s{sB}, {t*SLOT}\ns_add_u32 s{sE_}, s{sHAL}, {s(sHAL+1) if t else 0}\nbuffer_load_dwordx4 v{vL16}, {s(WS,4)}, s{sE_} offen sc1 lds")
            hal += [f"buffer_load_dwordx4 v{vL16}, {s(WS,4)}, s{sE_} offen offset:{1024*i} sc1 lds" for i in (1, 2)]
            hal.append(f"s_add_u32 m0, s{sB}, {t*SLOT+4096+128}\ns_add_u32 s{sE_}, s{sE_}, 4096\nbuffer_load_dwordx4 v{vL16}, {s(WS,4)}, s{sE_} offen sc1 lds")
        lasth = hal[-1]; hal[-1] = lambda: self.haltok.append(E(lasth))
        assert ca > 44
        spread(ev, hal, ca, o.get("halS", 10) / 10)
        ev.setdefault(sb, []).append(self.signal(sKP, 8 * L + 4, lambda: st["B"]))
        self.wstream(items, 80, allw, RING, ev, va, pre, budget=o.get("budB", 32), tag=f"B{L}")
        self.stamp(f"L{L} P1 passB")
        if L == 0: E(self.S.vpoll_issue(241, 242))
        for _, x in epi(12, 15, [QA1, QB0, QB0 + 2], [vQS] * 3, 0): E(x)
        E(f"s_mov_b32 vcc_lo, -1\ns_mov_b32 vcc_hi, 0")
        for i in range(2):
            E(f"v_cndmask_b32 v{QB1+i}, v{QA1+i}, v{QA1+3}, vcc")
            E(f"v_cndmask_b32 v{QA1+i}, 0, v{QA1+i}, vcc")
        for k in range(6):
            for hd, (q0, q1, k0) in enumerate(((QA0, QA1, KA), (QB0, QB1, KB_))):
                qa, ka = (q0 + k, k0 + k) if k < 4 else (q1 + k - 4, KV1 + k - 4)
                E(f"v_dot2_f32_bf16 v{216+hd}, v{qa}, v{ka}, {'0' if k == 0 else v(216+hd)}")
        E(f"s_mov_b32 s{sA}, {f2u(-1e38)}")
        for hd, q1 in enumerate((QA1, QB1)): E(f"v_cvt_pk_bf16_f32 v{q1+2}, s{sA}, -v{216+hd}")
    def att_defs(self):
        QA0, QB0, QA1, QB1 = self.Q
        d = self
        d.kread = lambda hd, i, dst: f"ds_read_b128 {R(dst,4)}, v{vKR} offset:{i*SLOT + 1024*hd}"
        d.k1read = lambda i: f"ds_read_b64 {R(self.K1+4*i,2)}, v{vKR} offset:{i*SLOT + 4096 + 128}"
        def smf(hd, i, dst, k0, C="0"):
            q0, q1 = (QA0, QA1) if hd == 0 else (QB0, QB1)
            return [f"v_mfma_f32_32x32x16_bf16 {v(dst,16)}, {R(k0,4)}, {v(q0,4)}, {C}",
                    f"v_mfma_f32_32x32x16_bf16 {v(dst,16)}, {R(self.K1+4*i,4)}, {v(q1,4)}, {v(dst,16)}"]
        d.smf = smf
        d.vreads = lambda hd, i, vf: [f"ds_read_b64_tr_b16 {R(vf+2*k,2)}, v{self.VAD[hd]+i} offset:{128*k}" for k in range(4)]
        def expops(src, p):
            r = []
            for k in range(8):
                r += [f"v_exp_f32 v{src+2*k}, v{src+2*k}", f"v_exp_f32 v{src+2*k+1}, v{src+2*k+1}"]
                if k: r.append(f"v_cvt_pk_bf16_f32 v{p+k-1}, v{src+2*k-2}, v{src+2*k-1}")
            r.append(f"v_cvt_pk_bf16_f32 v{p+7}, v{src+14}, v{src+15}")
            return r
        d.expops = expops
        d.mergeops = lambda dg, old: [f"v_cndmask_b32 v{dg+k}, v{old+k}, v{dg+k}, {s(sMASK+2*k,2)}" for k in range(16)]
        d.splitops = lambda p, pm: [f"v_bfi_b32 v{pm+k}, v{self.MK+k}, 0, v{p+k}" for k in range(8)] + [f"v_and_b32 v{p+k}, v{self.MK+k}, v{p+k}" for k in range(8)]
        d.pv = lambda O, vf, p, first: [f"v_mfma_f32_32x32x16_bf16 {v(O,16)}, {R(vf,4)}, {v(p,4)}, {'0' if first else v(O,16)}",
                                        f"v_mfma_f32_32x32x16_bf16 {v(O,16)}, {R(vf+4,4)}, {v(p+4,4)}, {v(O,16)}"]
    def fallback(self, hd):
        E = Emit(); O = self.O[hd]
        S, SD, NEG, P, PM, MX = 48, 64, 214, 230, 238 - 0, 246
        PM = 152 + 8
        K0 = AG + 136; VF = AG + 140; SP = AG + 104
        E.raw(f"FB{hd}:")
        E("s_waitcnt vmcnt(0) lgkmcnt(0)"); E.settle()
        for k in range(32): E(f"v_accvgpr_write_b32 {R(SP+k)}, v{48+k}")
        E(f"v_mov_b32 v{MX+2}, 0xff7fffff")
        for i in (8, 7, 6, 5, 4, 3, 2, 1, 0):
            E(self.kread(hd, i, K0))
            for x in self.smf(hd, i, SD if i == 8 else S, K0): E(x)
            if i == 8: continue
            src = S
            if i == 0:
                for x in self.mergeops(SD, S): E(x)
                src = SD
            for k in range(8): E(f"v_max3_f32 v{MX+2}, v{src+2*k}, v{src+2*k+1}, v{MX+2}")
        E(f"v_mov_b32 v{MX+3}, v{MX+2}\nv_permlane32_swap_b32 v{MX+3}, v{MX+2}\nv_max_f32 v{MX+2}, v{MX+2}, v{MX+3}")
        for k in range(16): E(f"v_sub_f32 v{NEG+k}, 0, v{MX+2}")
        for k in range(16): E(f"v_add_f32 v{SD+k}, v{NEG}, v{SD+k}")
        for x in self.expops(SD, P) + self.splitops(P, PM): E(x)
        for x in self.vreads(hd, 8, VF) + self.pv(O, VF, P, True): E(x)
        E.settle()
        for x in self.vreads(hd, 0, VF) + self.pv(O, VF, PM, False): E(x)
        for i in range(7, 0, -1):
            E.settle()
            E(self.kread(hd, i, K0))
            for x in self.vreads(hd, i, VF) + self.smf(hd, i, S, K0, v(NEG, 16)) + self.expops(S, P) + self.pv(O, VF, P, False): E(x)
        E.settle()
        for k in range(32): E(f"v_accvgpr_read_b32 v{48+k}, {R(SP+k)}")
        E.settle()
        for f, q in enumerate(EARLY):
            E(f"s_add_u32 s{sF}, s{sWD}, {1024*f}\nbuffer_load_dwordx4 {R(q,4)}, v{vL16}, {s(WS,4)}, s{sF} offen sc1")
        E.drain(); E.settle()
        E(f"s_setpc_b64 {s(sRET,2)}")
        return E.text()
    def p2(self, L):
        E = self.E; o = self.o
        self.att_defs()
        S = [48, 64]; SD = 80; P = [96, 104]; PM = 112; O = self.O = [120, 136]; D = 152; TT = 168
        K0 = [AG + 36, AG + 40, AG + 44]; VF = [AG + 48, AG + 56, AG + 64]
        self.OF = {}
        for st in range(2):
            for i in range(4): self.OF[(st, i)] = AG + 72 + 16 * st + 4 * i
        for st in range(2, 5):
            for i in range(4): self.OF[(st, i)] = (108 + 12 * i if i < 3 else 176) + 4 * (st - 2)
        if L == 0: self.tail += [self.fallback(0), self.fallback(1)]
        obase = self.obase = A_O
        E.wait(vm=self.haltok[0], ds=E.ds_n); E("s_barrier")
        self.stamp(f"L{L} halo in")
        ev = {}; pre = {}
        if L == 0: pre[o.get("f2c", 6)] = [self.S.vpoll_check(241, 242, 4)]
        dm = []
        for c in range(6): dm += self.dma4(sWGU, 16 * KB * c, 64 * KB + 16 * KB * c)
        hb = []
        for t in range(2):
            hb.append(f"s_mul_i32 s{sD}, s{sW}, {2*SLOT}\ns_add_u32 m0, s{sD}, {t*SLOT}\ns_add_u32 s{sE_}, s{sHAL}, {s(sHAL+1) if o.get('ovl', 3) and t else t*5*KB}\nbuffer_load_dwordx4 v{vL16}, {s(WS,4)}, s{sE_} offen offset:3072 sc1 lds")
        lasth = hb[-1]; hb[-1] = lambda: self.haltok.append(E(lasth))
        pb, cb = o.get("pb", 4), o.get("cb", 16)
        nl = len(self.wo_late)
        n1 = min(nl, int((cb - (0 if L else o.get('f2c', 6))) / 2.1))
        spread(ev, self.wo_late[:n1], 0 if L else o.get("f2c", 6), 2.1 if L else 1.8)
        ev.setdefault(pb, []).append(self.poll_issue(sKC, 8 * L + 4))
        pre.setdefault(cb, []).append(self.poll_check(sKC, 8 * L + 4, f"s{sKT}"))
        spread(ev, hb, cb, 1)
        self.pool = Pool(EARLY); self.mk_wdload()
        rest = self.wo_late[n1:] + dm + self.wd(o.get("wd2" if L else "wd20", 7 if L else 0))
        spread(ev, rest, cb + 2, (o.get("bgend", 68) - cb - 2) / len(rest))
        spread(ev, [self.touch(sWGU, sH16, 32 * KB * k) for k in range(2, 5)] + [self.touch(sWD, sH8, 0)], 10, 14)
        spread(ev, [f"s_and_b32 s{sA}, s{sJ}, 3\ns_lshl_b32 s{sB}, s{sA}, 10\ns_add_u32 s{sB}, s{sB}, s{sOme}\ns_add_u32 s{sB}, s{sB}, {obase}\n"
                    f"s_add_u32 s{sC}, s{sB}, 4096\nbuffer_store_dwordx4 v[164:167], v{vL16}, {s(WS,4)}, s{sC} offen sc1",
                    f"s_lshl_b32 s{sA}, s{sJ}, 9\ns_add_u32 s{sA}, s{sA}, s{sXB}\ns_add_u32 s{sA}, s{sA}, {obase + 64*KB}\n"
                    f"buffer_store_dwordx2 v[164:165], v{vO4}, {s(WS,4)}, s{sA} offen sc1"] + self.xpoison(2 * L + 1, 164), min(o.get("poi", 5), 20), 2)
        if o.get("senth", 0) and o.get("poiw", 1) == 0:
            assert o.get("ovl", 3) == 3
            spread(ev, [(f"s_add_u32 s{sP}, s{sHme}, {HB + L*HB_STRIDE + 2048}\n" if k == 0 else "") +
                        f"buffer_store_dwordx4 v[164:167], v{vL16}, {s(WS,4)}, s{sP} offen offset:{1024*k} sc1" for k in range(4)], o.get("poih", 20), 4)
        SO = self.SO = [sH8, sH16, sHX, sD]
        self.ol = ol = lambda st, i, va, off: f"buffer_load_dwordx4 {R(self.OF[(st,i)],4)}, v{va}, {s(WS,4)}, s{SO[i]} offen offset:{off} sc1"
        ev.setdefault(45, []).append(f"s_lshl_b32 s{sE_}, s{sW}, 14\ns_add_u32 s{sE_}, s{sE_}, {obase}\n" + "\n".join(f"s_add_u32 s{SO[i]}, s{sE_}, s{sT16+i}" for i in range(4)))
        self.aq = [self.poll_check(sTC, self.T(0, L), 8)] + sum([[ol(0, i, vU, 0), ol(1, i, vU, 2048)] for i in range(4)], [])
        oca = o.get("oca", 99)
        if oca < 70:
            pre.setdefault(oca, []).append(self.aq[0])
            spread(ev, self.aq[1:], oca, (70 - oca) / 8); self.aq = []
        st = {}
        def check(hd):
            def fn():
                Lo, Lb = E.label("FO"), E.label("FR")
                E(f"v_subrev_u32 v{TT}, {hex(63 << 23)}, v{O[hd]+12}\nv_cmp_le_u32 vcc, {hex(128 << 23)}, v{TT}\ns_cbranch_vccnz {Lo}")
                E.place(Lb)
                self.tail.append(f"{Lo}:\ns_call_b64 {s(sRET,2)}, FB{hd}\ns_branch {Lb}")
            return fn
        def norm(hd):
            r = [check(hd), f"v_rcp_f32 v{TT}, v{O[hd]+12}"]
            r += [f"v_mul_f32 v{O[hd]+k}, v{TT}, v{O[hd]+k}" for k in range(12)]
            r += [f"v_cvt_pk_bf16_f32 v{D+8*hd+k}, v{O[hd]+2*k}, v{O[hd]+2*k+1}" for k in range(6)]
            return r
        def putOA():
            st["a"] = E(f"buffer_store_dwordx4 {v(D,4)}, v{vL16}, {s(WS,4)}, s{sB} offen sc1")
        slot = [0]
        def weave(mf, mems, valu):
            n = len(mf); mems = list(mems); valu = list(valu)
            for k, m in enumerate(mf):
                self.fine(f"t{L}", slot[0])
                for g in pre.pop(slot[0], []): self.do(g)
                E(m)
                for _ in range(-(-len(mems) // (n - k))): E(mems.pop(0))
                for g in ev.pop(slot[0], []): self.do(g)
                for _ in range(-(-len(valu) // (n - k))): self.do(valu.pop(0))
                slot[0] += 1
        seq = [(hd, i) for hd in range(2) for i in (7, 6, 5, 4, 3, 2, 1, 8, 0)]
        kslot = {x: K0[n % 3] for n, x in enumerate(seq)}
        kq = list(seq)
        def knext():
            if not kq: return []
            hd, i = kq.pop(0)
            return [self.kread(hd, i, kslot[(hd, i)])] + ([self.k1read(i)] if hd == 0 else [])
        for x in knext() + knext() + knext(): E(x)
        for x in self.smf(0, 7, S[0], kslot[(0, 7)]): E(x)
        pend = []; vn = 0
        sa_, pa_ = o.get("osa", 56), o.get("opa", 69)
        ev.setdefault(pa_, []).append(self.poll_issue(sTC, self.T(0, L)))
        ev.setdefault(sa_, []).append(self.signal(sTP, self.T(0, L), lambda: st["a"]))
        for hd in range(2):
            for n in range(8):
                mf = []; mems = []; va = []
                if n < 6:
                    mf += self.smf(hd, 6 - n, S[(n + 1) % 2], kslot[(hd, 6 - n)]); mems += knext()
                    mf += pend
                elif n == 6:
                    mf += self.smf(hd, 8, SD, kslot[(hd, 8)]) + self.smf(hd, 0, S[1], kslot[(hd, 0)]); mems += knext()
                    mf += pend
                else:
                    mf += pend
                    if hd == 0: mf += self.smf(1, 7, S[0], kslot[(1, 7)])
                    mems += knext() + knext()
                    if hd == 0: pre.setdefault(slot[0] + len(mf), []).append(lambda: (E.wait(vm=self.haltok[1]), E("s_barrier")))
                    if hd == 0 and o.get("ovl", 3) and not (L and o.get("ovl", 3) >= 2): ev.setdefault(slot[0] + len(mf), []).append(self.signal(sKVme, 16 + 4 * L, lambda: self.haltok[1]))
                if n < 7:
                    vf = VF[vn % 3]; vn += 1
                    vr = self.vreads(hd, 7 - n, vf)
                    mems = mems + vr
                    va += self.expops(S[n % 2], P[n % 2])
                    pend = self.pv(O[hd], vf, P[n % 2], n == 0)
                    if hd == 1 and n == 1: va = norm(0) + [putOA] + va
                else:
                    v8, v0_ = VF[vn % 3], VF[(vn + 1) % 3]; vn += 2
                    mems = mems + self.vreads(hd, 8, v8) + self.vreads(hd, 0, v0_)
                    va += self.mergeops(SD, S[1]) + self.expops(SD, P[1]) + self.splitops(P[1], PM)
                    pend = self.pv(O[hd], v8, P[1], False) + self.pv(O[hd], v0_, PM, False)
                weave(mf, mems, va)
            if hd == 0: self.stamp(f"L{L} att a")
        weave(pend, [], [])
        assert not ev and not pre, (ev, pre, slot)
        for x in norm(1): self.do(x)
        E(f"s_mov_b32 vcc_lo, -1\ns_mov_b32 vcc_hi, 0")
        for k in range(2): E(f"v_cndmask_b32 v{D+4+k}, v{D+12+k}, v{D+4+k}, vcc")
        E(f"buffer_store_dwordx4 {v(D+8,4)}, v{vL16}, {s(WS,4)}, s{sC} offen sc1")
        self.otok = E(f"buffer_store_dwordx2 {v(D+4,2)}, v{vO4}, {s(WS,4)}, s{sA} offen sc1")
        self.stamp(f"L{L} att done")
    def reduce_and_publish(self, ACC, steps, red, PT, xidx, wimm, final, bg, post, bg0=1, bgstep=5, vals=None):
        E = self.E
        bg = list(bg); rd = []; self.nextbg = 0
        sal = []
        if not final:
            sal = [f"s_add_u32 s{sA}, s{sT16+3}, {self.xt(xidx)}",
                   f"s_lshl_b32 s{sC}, s{sJ}, 2\ns_add_u32 s{sC}, s{sC}, s{sW}", f"s_lshl_b32 s{sC}, s{sC}, 7\ns_and_b32 s{sP}, s{sTC}, 0xffffe000",
                   f"s_add_u32 s{sC}, s{sC}, s{sP}\ns_add_u32 s{sC}, s{sC}, {(A_ST - A_CNT + xidx*16*KB) & 0xffffffff}"]
        AW = [PT + 56 + i for i in range(3)]
        for i in range(3): E(f"v_add_u32 v{AW[i]}, {red}, v{vRW+i}")
        E(f"v_add_u32 v{vT}, {red}, v{vRW+3}")
        order = [(q, nt) for nt in range(5) for q in range(3)]
        ns = len(steps); nr = 5 * ns; lag = self.o.get("wlag", 5)
        wat = {nr * i + ns * (nt + 1) - 1 + lag: f"ds_write_b128 v{AW[i]}, {v(ACC[i]+4*nt,4)} offset:{1024*nt}" for i in range(3) for nt in range(5)}
        bar = min(max(wat) + self.o.get("rbar", 4), 4 * nr - 1)
        bgq = []
        for i in range(4):
            left = [x for x in range(nr * i, nr * (i + 1)) if x not in wat]
            for nt in range(5):
                for si, (W, act) in enumerate(steps):
                    k = nr * i + ns * nt + si; d = ACC[i] + 4 * nt
                    E(f"v_mfma_f32_16x16x32_bf16 {v(d,4)}, {R(W[nt],4)}, {R(act[i],4)}, {v(d,4)}")
                    if k in wat: E(wat[k])
                    elif vals and i < 3 and len([x for x in left if x >= k]) <= len(vals[i + 1]): self.do(vals[i + 1].pop(0))
                    elif k == bar:
                        E.drain(vm=False); E("s_barrier")
                        rd = [f"ds_read_b128 {v(PT+20*q+4*n_,4)}, v{vT} offset:{1024*(5*q+n_)}" for q, n_ in order]
                    elif rd:
                        E(rd.pop(0))
                        if rd: E(rd.pop(0))
                    elif i == 0 and sal: E(sal.pop(0))
                    else:
                        if not bgq and bg and i >= bg0 and k >= self.nextbg: bgq = self.flat(bg.pop(0)); self.nextbg = k + bgstep
                        if bgq: self.do(bgq.pop(0))
            assert not (vals and i < 3 and vals[i + 1])
        for x in bgq: self.do(x)
        for x in rd: E(x)
        assert not sal
        self.stamp("  mfma done")
        D = ACC[0]
        if final:
            stores = [f"ds_write_b128 v{vRM}, {v(D,4)}", f"ds_write_b128 v{vRM}, {v(D+4,4)} offset:16", f"ds_write_b64 v{vRM5}, {v(D+8,2)} offset:128"]
        else:
            stores = [f"buffer_store_dwordx4 {v(D,4)}, v{vXW}, {s(WS,4)}, s{sA} offen sc1", f"buffer_store_dwordx4 {v(D+4,4)}, v{vXW}, {s(WS,4)}, s{sA} offen offset:512 sc1",
                      f"buffer_store_dwordx2 {v(D+8,2)}, v{vXW5}, {s(WS,4)}, s{sA} offen sc1"]
        for nts in ((0, 1), (2, 3), (4,)):
            ks = [4 * nt + e for nt in nts for e in (0, 2)]
            for k in ks: E(f"v_pk_add_f32 {v(PT+k,2)}, {v(PT+k,2)}, {v(PT+20+k,2)}")
            for k in ks: E(f"v_pk_add_f32 {v(vRES+k,2)}, {v(vRES+k,2)}, {v(PT+40+k,2)}")
            for k in ks: E(f"v_pk_add_f32 {v(vRES+k,2)}, {v(vRES+k,2)}, {v(PT+k,2)}")
            for k in ks: E(f"v_cvt_pk_bf16_f32 v{D+k//2}, v{vRES+k}, v{vRES+k+1}")
            if final: E(stores.pop(0))
        if final:
            for i in range(3): E(f"ds_read_b128 {v(D+12+4*i,4)}, v{vNM+3} offset:{1024*i}")
            for i in range(3): E(f"buffer_store_dwordx4 {v(D+12+4*i,4)}, v{vNM+i}, {s(OUT,4)}, s{sRM} offen {FINAL}")
            return
        for x in stores: data = E(x)
        early = self.o.get("early", 0)
        if early: E(f"buffer_atomic_add v{vONE}, v{vSR}, {s(WS,4)}, s{sWP} offen offset:{wimm} sc1")
        self.stamp("  stored")
        T = PT
        E(f"v_pk_add_f32 {v(T,2)}, {v(vRES,2)}, {v(vRES+2,2)}\nv_pk_mul_f32 {v(T+2,2)}, {v(vRES,2)}, {v(vRES,2)}")
        E(f"v_pk_fma_f32 {v(T+2,2)}, {v(vRES+2,2)}, {v(vRES+2,2)}, {v(T+2,2)}")
        for k in range(4, 20, 2):
            E(f"v_pk_add_f32 {v(T,2)}, {v(T,2)}, {v(vRES+k,2)}\nv_pk_fma_f32 {v(T+2,2)}, {v(vRES+k,2)}, {v(vRES+k,2)}, {v(T+2,2)}")
        E(f"v_add_f32 v{T}, v{T}, v{T+1}\nv_add_f32 v{T+1}, v{T+2}, v{T+3}")
        for sw in ("v_permlane32_swap_b32", "v_permlane16_swap_b32"):
            E(f"v_mov_b32 v{T+2}, v{T}\nv_mov_b32 v{T+3}, v{T+1}")
            E(f"{sw} v{T+2}, v{T}\n{sw} v{T+3}, v{T+1}")
            E(f"v_add_f32 v{T}, v{T}, v{T+2}\nv_add_f32 v{T+1}, v{T+1}, v{T+3}")
        last = E(f"buffer_store_dwordx2 {v(T,2)}, v{vSW}, {s(WS,4)}, s{sC} offen sc1")
        E("s_barrier")
        n0 = self.o.get("post0", 5); n1 = n0 + self.o.get("post1", 4)
        post = list(bg) + list(post)
        for g in post[:n0]: self.do(g)
        self.window(3 if wimm < 512 else 5)
        if not early: self.signal(sWP, wimm, last, vSR)()
        self.stamp("  signalled")
        self.preissued = False
        pp = self.o.get("pp", 99)
        for k, g in enumerate(post[n0:]):
            if early and n0 + k == pp: E(self.poll_issue(sWC, wimm)); self.preissued = True
            self.do(g)
        self.statsig = self.signal(sWP, wimm + 8, last, vSR)
    def mk_wdload(self):
        self.WDF = {}
        def wdload(f):
            def fn():
                q = self.pool.get(); self.WDF[f] = q
                t = f"s_add_u32 s{sT0+1}, s{sWD}, {1024*f}\n" if f % 4 == 0 else ""
                assert t or self.E.lastw[f"s{sT0+1}"] == f"s_add_u32 s{sT0+1}, s{sWD}, {1024*(f & ~3)}"
                return self.E(t + f"buffer_load_dwordx4 {R(q,4)}, v{vL16}, {s(WS,4)}, s{sT0+1} offen offset:{1024*(f%4)} sc1")
            return fn
        self.wdq = [wdload(f) for f in range(60)]
    def wd(self, n):
        r = self.wdq[:n]; self.wdq = self.wdq[n:]
        return r
    def p3(self, L):
        E = self.E; o = self.o
        ACC = [48, 68, 88, vRES]
        W = lambda st: [self.WOF[5 * st + nt] for nt in range(5)]
        self.pool.add([188 + 4 * i for i in range(7)])
        SO = self.SO; ol = self.ol; vU4 = 172
        for g in self.aq: self.do(g)
        E(f"s_mul_i32 s{sE_}, s{sW}, {14*KB}\ns_sub_u32 s{sE_}, {60*KB}, s{sE_}\nv_add_u32 v{vU4}, s{sE_}, v{vU}")
        for i in range(4): E(f"s_add_u32 s{SO[i]}, s{SO[i]}, 4096")
        E("s_barrier")
        bl = [[ol(2, i, vU, 0), ol(3, i, vU, 2048), ol(4, i, vU4, 0)] for i in range(4)]
        vals = [self.validate([self.OF[(st, i)] for st in range(2, 5)], bl[i], 168) for i in range(4)]
        q = sum(bl, [])
        self.window(2)
        if o.get("obw", 1): E.wait(vm=self.otok)
        for _ in range(o.get("obn", 3)): E(q.pop(0))
        k = 0
        for i in range(4):
            for st in range(2):
                for nt in range(5):
                    d = ACC[i] + 4 * nt
                    E(f"v_mfma_f32_16x16x32_bf16 {v(d,4)}, {R(W(st)[nt],4)}, {R(self.OF[(st,i)],4)}, {'0' if st == 0 and i < 3 else v(d,4)}")
                    if k % o.get("obs", 3) == 0 and q: E(q.pop(0))
                    elif k >= 40 - len(vals[0]) and k < 39: self.do(vals[0].pop(0))
                    k += 1
        assert not q
        for g in vals[0]: self.do(g)
        self.stamp(f"L{L} P3 synced")
        steps = [(W(st), [self.OF[(st, i)] for i in range(4)]) for st in range(2, 5)]
        self.CSG = 152
        bg = self.wd(o.get("wd3b", 6))
        self.vals = vals
        def freewo(): self.pool.add([176, 180, 184] + [AG + 104 + 4 * i for i in range(14)] + self.WOF[:10] + self.WOF[24:])
        self.gu_late = []
        self.gu_tok = []
        for c in range(6, 10): self.gu_late += self.dma4(sWGU, 16 * KB * c, 16 * KB * (c - 6), self.gu_tok)
        n = o.get("gu3", 16)
        post = [freewo] + self.gu_late[:n]
        self.gu_late = self.gu_late[n:]
        self.reduce_and_publish(ACC, steps, 0, 108 - 16 + 16, 2 * L + 1, 4 * L, False, bg, post, vals=vals)
        self.stamp(f"L{L} P3 done")
    def p4(self, L):
        E = self.E; o = self.o
        ACC = [[48, 64], [80, 96]]; RING = 112; HP = 136; T = 144
        allw = [1024 * ((64 + f) % 160) for f in range(240)]
        for f in range(6): E(self.wread(RING + 4 * f, allw[f]))
        self.poll_block(sWC, 4 * L, 16)
        self.stamp(f"L{L} P4 synced")
        self.xr = lambda ks: 4 * ks if ks < 26 else 200 + 4 * (ks - 26)
        base = self.xt(2 * L + 1); xl = []
        for k in range(40):
            t = f"s_add_u32 s{sE_}, s{sXB}, {base + 16*KB*(k >> 3) + 1024*(k & 4)}\n" if k % 4 == 0 else ""
            xl.append(t + f"buffer_load_dwordx4 {a(self.xr(k),4)}, v{vU}, {s(WS,4)}, s{sE_} offen offset:{2048*(k & 1) + 128*(k & 2)} sc1")
        self.x0 = len(E.out); self.vrate = o.get("vrate", 6)
        self.xstart(xl, base)
        c1 = -2 * 0.7978845608028654 * math.log2(math.e)
        CC = [(vC1, vIV), (248, 254)]
        stl = [(f"s_and_b32 s{sC}, s{sTC}, 0xffffe000\ns_add_u32 s{sC}, s{sC}, {(A_ST - A_CNT + (2*L+1)*16*KB) & 0xffffffff}\n" if q == 0 else "") +
               f"buffer_load_dwordx2 {v(T+2*q,2)}, v{HP}, {s(WS,4)}, s{sC} offen offset:{1024*(q & 1) + 64*(q & 2)} sc1" for q in range(4)]
        sta = [f"v_lshrrev_b32 v{HP}, 4, v0", f"v_lshlrev_b32 v{HP}, 11, v{HP}", f"v_and_b32 v{HP+1}, 15, v0", f"v_lshl_add_u32 v{HP}, v{HP+1}, 3, v{HP}",
               f"v_lshl_add_u32 v{HP}, s{sW}, 8, v{HP}"]
        so = [f"v_add_f32 v{T+e}, v{T+e}, v{T+e+2}" for e in (0, 1, 4, 5)]
        for sw in ("v_permlane32_swap_b32", "v_permlane16_swap_b32"):
            so += [f"v_mov_b32 v{T+e+2}, v{T+e}" for e in (0, 1, 4, 5)] + [f"{sw} v{T+e+2}, v{T+e}" for e in (0, 1, 4, 5)]
            so += [f"v_add_f32 v{T+e}, v{T+e}, v{T+e+2}" for e in (0, 1, 4, 5)]
        so2 = []
        for t in range(2):
            b_ = T + 4 * t; C, IV = CC[t]
            so += [f"v_mul_f32 v{b_}, {f2u(-1/640)}, v{b_}", f"v_cvt_pk_bf16_f32 v{vNM+2*t}, v{b_}, v{b_}", f"v_cvt_pk_bf16_f32 v{vNM+2*t+1}, v{b_}, v{b_}"]
            so2 += [f"v_mul_f32 v{b_+1}, {f2u(1/640)}, v{b_+1}", f"v_fma_f32 v{b_+1}, -v{b_}, v{b_}, v{b_+1}", f"v_max_f32 v{b_+1}, 0, v{b_+1}",
                    f"v_add_f32 v{IV}, {f2u(EPS)}, v{b_+1}", f"v_rsq_f32 v{b_+2}, v{IV}", f"v_rcp_f32 v{b_+3}, v{IV}", f"v_mul_f32 v{C}, {f2u(c1)}, v{b_+2}",
                    f"v_mul_f32 v{C+1}, {f2u(0.044715)}, v{C}", f"v_mul_f32 v{C+1}, v{b_+3}, v{C+1}"]
        so += so2
        st = self.htok = {}
        def put(p, k):
            if k == 0: return f"buffer_store_dwordx4 {v(HP,4)}, v{vU}, {s(WS,4)}, s{sA} offen sc1"
            return lambda: st.__setitem__(p, E(f"buffer_store_dwordx4 {v(HP+4,4)}, v{vU}, {s(WS,4)}, s{sA} offen offset:256 sc1"))
        haddr = lambda p: [f"s_add_u32 s{sA}, s{sJ}, {p}\ns_and_b32 s{sA}, s{sA}, 3\ns_lshl_b32 s{sA}, s{sA}, 11", f"s_and_b32 s{sB}, s{sHme}, 0xffffe000\ns_add_u32 s{sA}, s{sA}, s{sB}"]
        def epi(p):
            g, u = ACC[p % 2]; r = [haddr(p)]
            for k0 in range(0, 16, 4):
                ks = range(k0, k0 + 4); vC1, vIV = CC[k0 >> 3]; vC2 = vC1 + 1
                r += [f"v_mul_f32 v{T+k%4}, v{g+k}, v{g+k}" for k in ks]
                r += [f"v_fma_f32 v{T+k%4}, v{T+k%4}, v{vC2}, v{vC1}" for k in ks]
                r += [f"v_mul_f32 v{T+k%4}, v{T+k%4}, v{g+k}" for k in ks]
                r += [f"v_exp_f32 v{T+k%4}, v{T+k%4}" for k in ks]
                r += [f"v_mul_f32 v{g+k}, v{g+k}, v{u+k}" for k in ks]
                r += [f"v_fma_f32 v{T+k%4}, v{T+k%4}, v{vIV}, v{vIV}" for k in ks]
                r += [f"v_rcp_f32 v{T+k%4}, v{T+k%4}" for k in ks]
                r += [f"v_mul_f32 v{g+k}, v{g+k}, v{T+k%4}" for k in ks]
                r += [f"v_cvt_pk_bf16_f32 v{HP+k//2}, v{g+k}, v{g+k+1}" for k in ks if k % 2 == 0]
                if k0 in (4, 12): r.append([put(p, k0 // 8)])
            return [(2, x) for x in r]
        def epi_pk(p):
            g, u = ACC[p % 2]; r = []
            for k0 in range(0, 16, 8):
                ks = range(k0, k0 + 8, 2); vC1, vIV = CC[k0 >> 3]
                r += [f"v_pk_mul_f32 {v(T+k%8,2)}, {v(g+k,2)}, {v(g+k,2)}" for k in ks]
                r += [f"v_pk_fma_f32 {v(T+k%8,2)}, {v(T+k%8,2)}, {v(vC1,2)}, {v(vC1,2)} op_sel:[0,1,0] op_sel_hi:[1,1,0]" for k in ks]
                r += [f"v_pk_mul_f32 {v(T+k%8,2)}, {v(T+k%8,2)}, {v(g+k,2)}" for k in ks]
                r += [f"v_exp_f32 v{T+k}, v{T+k}" for k in range(8)]
                r += [f"v_pk_mul_f32 {v(g+k,2)}, {v(g+k,2)}, {v(u+k,2)}" for k in ks]
                r += [f"v_pk_fma_f32 {v(T+k%8,2)}, {v(T+k%8,2)}, {v(vIV,2)}, {v(vIV,2)} op_sel_hi:[1,0,0]" for k in ks]
                r += [f"v_rcp_f32 v{T+k}, v{T+k}" for k in range(8)]
                r += [f"v_pk_mul_f32 {v(g+k,2)}, {v(g+k,2)}, {v(T+k%8,2)}" for k in ks]
                r += [f"v_cvt_pk_bf16_f32 v{HP+k//2}, v{g+k}, v{g+k+1}" for k in ks]
                r.append(put(p, k0 // 8))
            return r
        self.HF = {}
        def hload(stp, i, fixed=None):
            p, jj = divmod(stp, 4)
            if fixed is not None:
                self.HF[(stp, i)] = fixed
                return f"s_add_u32 s{sE_}, s{sT16H+i}, {A_H + 16*KB*jj + 2048*((p + jj) & 3)}\nbuffer_load_dwordx4 {R(fixed,4)}, v{vU}, {s(WS,4)}, s{sE_} offen sc1"
            def fn():
                q = self.pool.get(); self.HF[(stp, i)] = q
                E(f"buffer_load_dwordx4 {R(q,4)}, v{vU}, {s(WS,4)}, s{sE_} offen sc1")
            return (f"s_add_u32 s{sE_}, s{sT16H+i}, {A_H + 16*KB*jj + 2048*((p + jj) & 3)}", fn)
        self.hload = hload
        nv = o.get("bud4", 32) // 2
        ev = {}; spread(ev, xl[NX0:], 0, o.get('xS', 20) / 10)
        if o.get("early", 0): ev.setdefault(11, []).append(self.statsig)
        spread(ev, stl, 27, 2)
        csl = self.cs_loads(CSG, 6 * KB, 6, self.CSG)
        spread(ev, csl[:2], 47, 2)
        pre = {}
        if o.get("ovl", 3) and not (L and o.get("ovl", 3) >= 2):
            ev.setdefault(51, []).append(f"s_sub_u32 s{sH8}, 15, s{sR}\ns_min_u32 s{sH8}, s{sH8}, 2\n" + self.poll_issue(sKP, 16 + 4 * L))
            pre[76] = [self.poll_check(sKP, 16 + 4 * L, f"s{sH8}")]
        spread(ev, self.gu_late + self.wd(min(o.get("wd40", 10), 10 - len(self.gu_late))), 61, 2)
        spread(ev, [self.touch(sWGU, sH16, 32 * KB * 5), self.touch(sWD, sH8, 16 * KB), self.touch(sWGU, sH16, 32 * KB * 6)], 45, 15)
        pv = [(30, f"v_mov_b32 v{HP+i}, -1") for i in range(4)] + [(30, self.xpoison(2, HP))] if L == 0 and o.get("early", 0) else []
        sh = o.get("senth", 0)
        if sh and o.get("poiw", 1) == 1:
            assert o.get("ovl", 3) == 3
            pv += [(40, f"v_mov_b32 v{HP+4+i}, -1") for i in range(4)]
            spread(ev, [(f"s_add_u32 s{sB}, s{sHme}, {HB + L*HB_STRIDE + 2048}\n" if k == 0 else "") +
                        f"buffer_store_dwordx4 {v(HP+4,4)}, v{vL16}, {s(WS,4)}, s{sB} offen offset:{1024*k} sc1" for k in range(4)], o.get("poi0", 74), o.get("poiS", 2))
        self.wstream16(ACC[0], self.CSG, 0, allw, RING, ev, [(4, x) for x in sta] + [(54, x) for x in so], pre, tag=f"p0{L}")
        self.stamp(f"L{L} P4 p0")
        ev = {}; tok = []; fl = []
        for c in range(10, 15): fl += self.dma4(sWGU, 16 * KB * c, 64 * KB + 16 * KB * (c - 10), tok)
        spread(ev, fl, 2, 2.15)
        net = [self.nan_net(ACC[0][0], xl, self.pair_items(ACC[0], self.CSG) + self.pair_items(ACC[1], 0)[:2], allw, RING, 4 * L, self.stat_loads(2 * L + 1, T) + so)] if o.get("early", 0) else []
        n1 = min(o.get("wd41", 13), len(self.pool.free))
        spread(ev, csl[2:] + self.wd(n1), 46, 35 / max(n1 + 4, 16))
        spread(ev, [self.touch(sWGU, sH16, 32 * KB * 7), self.touch(sWD, sH8, 32 * KB), self.touch(sWD, sH8, 48 * KB)], 6, 24)
        self.wstream16(ACC[1], self.CSG + 8, 80, allw, RING, ev, epi(0),
                     {2: net + ["s_barrier"], 10: [lambda: (E.wait(vm=self.gu_tok[3]), E("s_barrier"))], 74: [lambda: (E.wait(vm=tok[4]), E("s_barrier"))]}, budget=nv, vend=o.get("ve1", 70), tag=f"p1{L}")
        self.stamp(f"L{L} P4 p1")
        ev = {}; pre = {}
        for ks in range(40): pre.setdefault(8 * (ks >> 2) + 7 + ((ks >> 1) & 1), []).append(lambda ks=ks: self.pool.put(AG + self.xr(ks)))
        n2 = min(len(self.wdq), o.get("wd42", 20))
        spread(ev, self.wd(n2), 3, 2.1)
        hp, hc = o.get("hp0", 22), o.get("hc0", 44)
        ev.setdefault(o.get("hs0", 2), []).append(self.signal(sTP, self.T(2, L), lambda: st[0]))
        if L == 0: spread(ev, [self.touch(sWQ, sH16, 32 * KB * k) for k in range(2)], 30, 30)
        ev.setdefault(hp, []).append(self.poll_issue(sTC, self.T(2, L)))
        pre.setdefault(hc, []).append(self.poll_check(sTC, self.T(2, L), 8))
        spread(ev, [hload(stp, i) for stp in range(4) for i in range(4)], max(hc + 1, 3 + 2.1 * n2), 2.2)
        if not sh: ev.setdefault(o.get("hs1", 81), []).append(self.signal(sTP, self.T(3, L), lambda: st[1]))
        self.wstream16(ACC[0], self.CSG + 16, 160, allw, RING, ev, epi(1), pre, budget=nv, vend=o.get("ve2", 60), tag=f"p2{L}")
        self.stamp(f"L{L} P4 p2")
        for x in haddr(2): E(x)
        ep = epi_pk(2)
        for k, x in enumerate(ep):
            self.do(x)
            if k == o.get("hp1", 70) and not sh: E(self.poll_issue(sTC, self.T(3, L)))
            elif k % 12 == 6 and k < 40 and self.wdq and self.pool.free: self.wd(1)[0]()
        self.stamp(f"L{L} P4 done")
    def p5(self, L):
        E = self.E; o = self.o
        ACC = [48, 68, 88, vRES]
        E("s_barrier")
        ev = {}; pre = {}; sh = o.get("senth", 0); vals = None; val1 = {}
        if sh:
            r1 = [108 + 4 * i for i in range(7)] + [144 + 4 * i for i in range(7)] + [136, 140]
            l1 = [[self.hload(stp, i, r1.pop(0)) for i in range(4)] for stp in range(4, 8)]
            l2 = [[self.hload(stp, i, 176 + 16 * i + 4 * (stp - 8)) for stp in range(8, 12)] for i in range(4)]
            rl = lambda x: [y.replace(f"s{sE_}", f"s{sP}") for y in x]
            for k in range(4): val1[4 + k] = self.validate([self.HF[(4 + k, i)] for i in range(4)], rl(l1[k]), 172)
            vals = [self.validate([self.HF[(stp, i)] for stp in range(8, 12)], rl(l2[i]), 172) for i in range(4)]
            val1[8] = vals[0]
            rest = sum(l1, []) + self.wd(60)
            nl = o.get("h2late", 4)
            l2f = sum(l2, []); late2 = l2f[16 - nl:]
            h2s = o.get("h2s", 104)
            spread(ev, rest, o.get("h1s", 2), (h2s - 4) / len(rest))
            spread(ev, l2f[:16 - nl], h2s, (150 - h2s) / (16 - nl))
        else:
            self.pool.add([108 + 4 * i for i in range(7)] + [144 + 4 * i for i in range(8)])
            hc1 = o.get("hc1", 30)
            pre.setdefault(hc1, []).append(self.poll_check(sTC, self.T(3, L), 8))
            spread(ev, [self.hload(stp, i) for stp in range(4, 8) for i in range(4)] + self.wd(60), hc1, o.get('h1S', 32) / 10)
            ev.setdefault(o.get("hs2", 44), []).append(self.signal(sTP, self.T(4, L), self.htok[2]))
            hp, hc = o.get("hp2", 76), o.get("hc2", 112)
            ev.setdefault(hp, []).append(self.poll_issue(sTC, self.T(4, L)))
            pre.setdefault(hc, []).append(self.poll_check(sTC, self.T(4, L), 8))
            spread(ev, [self.hload(stp, i) for i in range(4) for stp in range(8, 12)], hc, o.get('h2S', 29) / 10)
        if L == 1:
            ta = self.tile_addrs(vNM, vC1) + [f"v_add_u32 v{vNM+3}, s{sLW}, v{vL16}"]
            spread(ev, [(lambda x="\n".join(ta[k:k + 2]): E(x)) for k in range(0, len(ta), 2)], 2, 2)
            spread(ev, [(lambda x=x: E(x)) for x in (f"s_or_b32 s{sA}, s{sR}, s{sJ}\ns_or_b32 s{sA}, s{sA}, s{sW}", f"s_cmp_eq_u32 s{sA}, 0\ns_cselect_b32 s{sA}, 0, {OOB}",
                        f"v_add_u32 v{vIV}, s{sA}, v{vSIG}\nv_mov_b32 v{vRSTD}, s0", f"s_mov_b32 s{sA}, {EPOCH}", f"buffer_store_dword v{vRSTD}, v{vIV}, {s(WS,4)}, s{sA} offen sc1")], 21, 1)
        self.wq_tok = []; dm = []
        if L == 0:
            for c in range(10): dm += self.dma4(sWQ, 16 * KB * c, 16 * KB * c, self.wq_tok)
            spread(ev, [self.touch(sWQ, sH16, 32 * KB * k) for k in range(2, 5)], 30, 36)
            if not sh: spread(ev, dm[:4], 96, 4); dm = dm[4:]
        sl = 0; q = []
        for stp in range(8):
            for i in range(4):
                for nt in range(5):
                    self.fine(f"d{L}", sl)
                    for g in pre.pop(sl, []): self.do(g)
                    d = ACC[i] + 4 * nt
                    E(f"v_mfma_f32_16x16x32_bf16 {v(d,4)}, {R(self.WDF[5*stp+nt],4)}, {R(self.HF[(stp,i)],4)}, {'0' if stp == 0 and i < 3 else v(d,4)}")
                    for g in ev.pop(sl, []): q += self.flat(g)
                    vv = val1.get(stp + 1)
                    if vv and 20 - sl % 20 <= len(vv): self.do(vv.pop(0))
                    elif q and (nt != 4 or len(q) > 3): self.do(q.pop(0))
                    sl += 1
                if self.HF[(stp, i)] >= AG or (self.HF[(stp, i)] < 176 and not sh): self.pool.put(self.HF[(stp, i)])
            for nt in range(5):
                qq = self.WDF[5 * stp + nt]
                assert not (sh and 176 <= qq < 244 and stp > 3)
                if qq >= AG or qq < 176: self.pool.put(qq)
        for k in sorted(ev):
            for g in ev[k]: q.append(g)
        for g in q: self.do(g)
        assert not pre
        self.stamp("  8 steps")
        PT = 108 if sh else 176
        live = [self.WDF[f] for f in range(40, 60)] + [self.HF[(stp, i)] for stp in range(8, 12) for i in range(4)]
        assert not [q for q in live if PT <= q < PT + 60], live
        steps = [([self.WDF[5 * stp + nt] for nt in range(5)], [self.HF[(stp, i)] for i in range(4)]) for stp in range(8, 12)]
        bg = (late2 if sh else []) + dm[:12]; dm = dm[12:]
        n = o.get("wq5", 16 if sh else 12)
        post = (self.cs_loads(CSQ, 4 * KB, 4, 136) if L == 0 else []) + dm[:n]
        self.wq_late = dm[n:]
        self.reduce_and_publish(ACC, steps, 100 * KB, PT, 2 * L + 2, 512 + 4 * L, L == 1, bg, post, bg0=0, bgstep=4, vals=vals)
        self.stamp(f"L{L} P5 done")
    def finish(self):
        E = self.E
        if self.o.get("echo"):
            E(f"s_sub_u32 s{sA}, s{sTS+2}, s{sTS}\ns_mul_i32 s{sA}, s{sA}, {self.o.get('emul', 1)}\ns_lshr_b32 s{sA}, s{sA}, {2 if self.o.get('ecyc') else 0}\ns_memrealtime {s(sTS,2)}"); E.wait_smem()
            E.place("ECHO")
            E(f"s_memrealtime {s(sTS+2,2)}"); E.wait_smem()
            E(f"s_sub_u32 s{sB}, s{sTS+2}, s{sTS}\ns_cmp_lt_u32 s{sB}, s{sA}\ns_cbranch_scc1 ECHO")
        if self.stamps:
            E(f"v_readlane_b32 s{sB}, v{vTS2}, 63\ns_lshl_b32 s{sA}, s{sB}, 2\ns_add_u32 s{sA}, s{sA}, s{sW}\ns_lshl_b32 s{sA}, s{sA}, 8\ns_add_u32 s{sA}, s{sA}, {DBG}")
            E(f"v_lshlrev_b32 v{vT}, 2, v0\nbuffer_store_dword v{vTS}, v{vT}, {s(WS,4)}, s{sA} offen")
            E(f"s_add_u32 s{sA}, s{sA}, 0x40000\nbuffer_store_dword v{vTS2}, v{vT}, {s(WS,4)}, s{sA} offen")
        E("s_endpgm"); E.raw(";@END")
        for t in self.tail: E.raw(t.rstrip("\n"))
        E.raw("main_end:")
    def build(self):
        E = self.E
        globals()["NX0"] = self.o.get("nx0", 10)
        globals()["FINAL"] = ("", "sc1", "nt", "sc0 sc1")[self.o.get("fin", 0)]
        g = globals(); ru = self.o.get("reuse", 7)
        if ru & 1: g["HB_STRIDE"] = 0
        if ru & 2: g["OB_STRIDE"] = 0
        if ru & 8: g["KV_STRIDE"] = 0
        E.raw("; @launch grid=(256,1,1) block=(256,1,1) lds=163840")
        E.raw('.amdgcn_target "amdgcn-amd-amdhsa--gfx950"')
        self.prologue()
        n = 0
        for L in range(2):
            for ph in (self.p1, self.p2, self.p3, self.p4, self.p5):
                if n < self.stop: ph(L)
                n += 1
        self.finish()
        kernel_desc(E, KNAME, 256, 256, 102)
        return stubs.apply(E.text(), sW, self.o.get("verbose") == 3)

if __name__ == "__main__":
    out = sys.argv[1]
    opts = dict((k, int(x)) for k, x in (a_.split("=") for a_ in sys.argv[3:]))
    g = Gen(stamps=len(sys.argv) > 2 and sys.argv[2] == "ts", opts=opts, mapping="grp" if opts.get("grp") else "mix")
    t = g.build()
    open(out, "w").write(t)
    print(len(t), "bytes", g.E.ninst, "insts", g.E.nnop, "nop states", g.E.stats)
    if g.stamps: open(out + ".names", "w").write("\n".join(g.stnames))
```

```python
from emit import *
from layout import *

SRC1 = 32; SRC2 = 36; sONE = 40
t = list(range(41, 58))
sRHO, sSIG = 58, 59
sU, sS2 = 60, 61
sTK = 62
LDS1 = 0 * KB
LDS2 = 128 * KB
vTK = 248
vA2 = 232
OOB = 0x10000000
NRACE = 1

def split_hi_lo(E, x, t0, t1, d):
    E(f"v_cvt_pk_bf16_f32 v{d+1}, v{x}, 0")
    E(f"v_lshlrev_b32 v{t0}, 16, v{d+1}")
    E(f"v_sub_f32 v{t1}, v{x}, v{t0}")
    E(f"v_cvt_pk_bf16_f32 v{d}, v{t0}, v{t1}")

class Startup:
    def __init__(self, G, M):
        self.G = G; self.E = G.E; self.M = M
    def roles(self, pQ, pO, pG, pU, pD):
        E, M = self.E, self.M
        E(f"s_add_u32 s{sRHO}, s{M.sR}, s{M.sJ}\ns_and_b32 s{sRHO}, s{sRHO}, 15\ns_add_u32 s{sSIG}, s{sRHO}, {self.G.o.get('sigo', 4)}\ns_and_b32 s{sSIG}, s{sSIG}, 15")
        E(f"s_mov_b32 s{SRC1}, s{pQ}\ns_mov_b32 s{SRC1+1}, s{pQ+1}\ns_mov_b32 s{SRC1+2}, {640*1920*2}\ns_mov_b32 s{SRC1+3}, 0x00020000")
        E(f"s_cmp_ge_u32 s{sSIG}, 4\ns_cselect_b64 {s(SRC2,2)}, {s(pU,2)}, {s(pG,2)}")
        E(f"s_cmp_ge_u32 s{sSIG}, 8\ns_cselect_b64 {s(SRC2,2)}, {s(pD,2)}, {s(SRC2,2)}")
        E(f"s_cmp_ge_u32 s{sSIG}, 14\ns_cselect_b64 {s(SRC2,2)}, {s(pO,2)}, {s(SRC2,2)}\ns_cselect_b32 s{SRC2+2}, {640*640*2}, 0")
        E(f"s_cselect_b32 s{t[0]}, 0, {640*1536*2}\ns_add_u32 s{SRC2+2}, s{SRC2+2}, s{t[0]}\ns_mov_b32 s{SRC2+3}, 0x00020000\ns_mov_b32 s{sONE}, 0x3f803f80")
    def s1_load(self):
        E, M = self.E, self.M
        E("v_mul_u32_u24 v48, 6554, v0\nv_lshrrev_b32 v48, 16, v48\nv_mul_u32_u24 v49, 10, v48\nv_sub_u32 v49, v0, v49")
        E("v_mul_u32_u24 v48, 3840, v48\nv_lshl_add_u32 v50, v49, 4, v48")
        E(f"s_lshr_b32 s{t[1]}, s{sRHO}, 2\ns_and_b32 s{t[2]}, s{sRHO}, 3\ns_lshl_b32 s{t[2]}, s{t[2]}, 1\ns_add_u32 s{t[2]}, s{t[2]}, s{M.sTH}")
        E(f"s_mul_i32 s{t[3]}, s{t[1]}, 1280\ns_mul_i32 s{t[4]}, s{M.sNB}, 160\ns_add_u32 s{t[3]}, s{t[3]}, s{t[4]}")
        E(f"s_lshl_b32 s{t[4]}, s{t[2]}, 2\ns_add_u32 s{t[4]}, s{t[4]}, s{M.sW}\ns_mul_i32 s{t[4]}, s{t[4]}, {20*3840}\ns_add_u32 s{t[3]}, s{t[3]}, s{t[4]}")
        E(f"s_cmp_ge_u32 s{sRHO}, 12\ns_cselect_b32 s{t[4]}, {OOB}, 0\nv_add_u32 v50, s{t[4]}, v50")
        E(f"s_mul_i32 s{t[4]}, s{M.sW}, 3200\ns_mov_b32 exec_hi, 0x3ffff")
        for i in range(4):
            E(f"s_add_u32 m0, s{t[4]}, {LDS1 + 800*i}")
            if i: E(f"s_add_u32 s{t[3]}, s{t[3]}, {5*3840}")
            self.tok1 = E(f"buffer_load_dwordx4 v50, {s(SRC1,4)}, s{t[3]} offen {'nt' if self.G.o.get('nt1', 1) else ''} lds")
        E("s_mov_b32 exec_hi, -1")
    def leader_clear(self):
        E, M = self.E, self.M
        L = E.label("LC")
        E(f"s_cmp_lg_u32 s{sRHO}, 15\ns_cbranch_scc1 {L}")
        E("v_mov_b32 v60, 0\nv_mov_b32 v61, 0\nv_mov_b32 v62, 0\nv_mov_b32 v63, 0")
        E(f"s_mul_i32 s{t[3]}, s{M.sR}, {ASTR}\ns_add_u32 s{t[3]}, s{t[3]}, {ARENA + A_CNT}\ns_lshl_b32 s{t[4]}, s{M.sW}, 13\ns_add_u32 s{t[4]}, s{t[4]}, s{t[3]}")
        E(f"s_lshr_b32 s{t[16]}, s{M.sW}, 1\nv_lshrrev_b32 v64, s{t[16]}, v0\nv_and_b32 v65, s{t[16]}, v0\nv_lshlrev_b32 v65, 4, v65\nv_lshl_add_u32 v64, v64, 7, v65")
        if self.G.o.get("ctouch", 0): E(f"buffer_load_dword v66, v64, {s(M.WS,4)}, s{t[4]} offen sc1", count=False)
        E(f"buffer_store_dwordx4 v[60:63], v64, {s(M.WS,4)}, s{t[4]} offen sc1", count=False)
        E(f"s_lshl_b32 s{t[4]}, s{M.sW}, 8\ns_add_u32 s{t[3]}, s{t[3]}, s{t[4]}\ns_add_u32 s{t[3]}, s{t[3]}, {20*KB}")
        for k in range(self.G.o.get("nrace", NRACE)):
            for h in range(2): E.raw(f"s_load_dword s{t[16]}, {s(M.WS,2)}, s{t[3]} offset:{1152*k + 8192*h} glc")
        E.place(L); E.hist = []
        E("s_nop 1")
    def leader_race(self):
        E, M = self.E, self.M
        L = E.label("LR")
        E(f"s_cmp_lg_u32 s{sRHO}, 15\ns_cbranch_scc1 {L}")
        E(f"s_getreg_b32 s{t[7]}, hwreg(HW_REG_XCC_ID)\ns_and_b32 s{t[7]}, s{t[7]}, 4\ns_waitcnt lgkmcnt(0)")
        E("s_memtime s[50:51]"); E.wait_smem()
        for k in range(self.G.o.get("nrace", NRACE)):
            E(f"s_load_dword s49, {s(M.WS,2)}, s{t[3]} offset:{1152*k} glc"); E.wait_smem()
            E("s_memtime s[52:53]"); E.wait_smem()
            E(f"s_sub_u32 s54, s52, s50\ns_load_dword s49, {s(M.WS,2)}, s{t[3]} offset:{1152*k + 8192} glc"); E.wait_smem()
            E("s_memtime s[50:51]"); E.wait_smem()
            E(f"s_sub_u32 s55, s50, s52\ns_cmp_lt_u32 s55, s54\ns_addc_u32 s{t[7]}, s{t[7]}, 0")
        E(f"s_lshl_b32 s{t[5]}, s{M.sR}, 2\ns_add_u32 s{t[5]}, s{t[5]}, s{M.sW}\ns_lshl_b32 s{t[5]}, s{t[5]}, {self.G.o.get('vsh', 7)}\ns_add_u32 s{t[5]}, s{t[5]}, {VOTE}\nv_add_u32 v60, s{t[7]}, v{vTK}\nv_mov_b32 v61, v60\nv_mov_b32 v62, v60\nv_mov_b32 v63, v60")
        E({7: f"buffer_store_dwordx2 v[60:61], v{M.vSW}", 2: f"buffer_store_dword v60, v{M.vSIG}", 4: f"buffer_store_dwordx4 v[60:63], v{M.vSIG}"}[self.G.o.get('vsh', 7)] + f", {s(M.WS,4)}, s{t[5]} offen sc1", count=False)
        E.place(L); E.hist = []
    def x_touch(self):
        E, M = self.E, self.M
        E(f"s_lshl_b32 s{t[4]}, s{M.sR}, 4\ns_add_u32 s{t[4]}, s{t[4]}, s{M.sJ}\ns_lshl_b32 s{t[4]}, s{t[4]}, 2\ns_add_u32 s{t[4]}, s{t[4]}, s{M.sW}\ns_mul_i32 s{t[4]}, s{t[4]}, 2560")
        E(f"v_min_u32 v51, 19, v0\nv_lshlrev_b32 v51, 7, v51\nbuffer_load_dword v246, v51, {s(M.XIN,4)}, s{t[4]} offen")
    def s2_addrs(self):
        E, M = self.E, self.M
        a_, b_, c_, d_, e_ = t[5], t[6], t[7], t[8], t[9]
        E(f"s_mov_b32 s{b_}, 6554\ns_cmp_lt_u32 s{sSIG}, 8\ns_cselect_b32 s{a_}, 24, 10\ns_cselect_b32 s{b_}, 2731, s{b_}\ns_cselect_b32 s{d_}, s{M.sW}, 0")
        E(f"v_mov_b32 v55, {OOB}")
        E(f"s_mov_b32 s{e_}, 1280\ns_cselect_b32 s{c_}, 3072, s{e_}\ns_lshl_b32 s{d_}, s{d_}, 9")
        E(f"s_cmp_ge_u32 s{sSIG}, 14\ns_cselect_b32 s{e_}, 50, {0 if self.G.o.get('hackL') else 40}\ns_lshl_b32 s{e_}, s{e_}, 3\ns_cmp_lt_u32 s{sSIG}, 8\ns_cselect_b32 s{e_}, 1920, s{e_}")
        for i in range(8):
            E(f"v_add_u32 v52, s{d_}, v0\nv_mul_u32_u24 v53, s{b_}, v52\nv_lshrrev_b32 v53, 16, v53\nv_mul_u32_u24 v54, s{a_}, v53\nv_sub_u32 v54, v52, v54")
            E(f"v_mul_u32_u24 v53, s{c_}, v53\nv_lshl_add_u32 v53, v54, 4, v53\nv_cmp_gt_u32 vcc, s{e_}, v52\nv_cndmask_b32 v{vA2+i}, v55, v53, vcc\ns_add_u32 s{d_}, s{d_}, 64")
        E(f"s_and_b32 s{a_}, s{sSIG}, 3\ns_lshl_b32 s{a_}, s{a_}, 1\ns_add_u32 s{a_}, s{a_}, s{M.sTH}\ns_mul_i32 s{a_}, s{a_}, {80*3072}\ns_mul_i32 s{b_}, s{M.sNB}, 384\ns_add_u32 s{a_}, s{a_}, s{b_}")
        E(f"s_cmp_ge_u32 s{sSIG}, 14\ns_cselect_b32 s{b_}, 2, 6\ns_cselect_b32 s{c_}, 14, 8\ns_cselect_b32 s{d_}, 40, 32")
        E(f"s_mul_i32 s{b_}, s{b_}, s{M.sTH}\ns_add_u32 s{b_}, s{b_}, s{sSIG}\ns_sub_u32 s{b_}, s{b_}, s{c_}\ns_lshl_b32 s{b_}, s{b_}, 2\ns_add_u32 s{sU}, s{b_}, s{M.sW}")
        E(f"s_mul_i32 s{b_}, s{sU}, s{d_}\ns_mul_i32 s{b_}, s{b_}, 1280\ns_mul_i32 s{c_}, s{M.sNB}, 160\ns_add_u32 s{b_}, s{b_}, s{c_}")
        E(f"s_cmp_lt_u32 s{sSIG}, 8\ns_cselect_b32 s{sS2}, s{a_}, s{b_}")
    def s2_load(self, i):
        M = self.M
        return f"s_lshl_b32 s{t[0]}, s{M.sLW}, 1\ns_add_u32 m0, s{t[0]}, {LDS2 + 1024*i}\nbuffer_load_dwordx4 v{vA2+i}, {s(SRC2,4)}, s{sS2} offen {'nt' if self.G.o.get('nt2', 1) else ''} lds"
    def s1_proc(self):
        E, M = self.E, self.M
        Lz, Lend = E.label("WZ"), E.label("WQ")
        E(f"s_cmp_ge_u32 s{sRHO}, 12\ns_cbranch_scc1 {Lz}")
        E("v_lshrrev_b32 v48, 4, v0\nv_bfe_u32 v49, v0, 2, 2\nv_lshl_add_u32 v48, v48, 3, v49\nv_mul_u32_u24 v48, 160, v48")
        E(f"v_bfe_u32 v49, v0, 1, 1\nv_mul_u32_u24 v49, 80, v49\nv_add3_u32 v48, v48, v49, {LDS1}\nv_and_b32 v49, 1, v0")
        E(f"v_bfe_u32 v52, v0, 3, 1\nv_mul_u32_u24 v59, {160*KB}, v52\nv_lshlrev_b32 v54, 12, v52\nv_bfe_u32 v52, v0, 4, 1\nv_lshl_add_u32 v59, v52, 9, v59")
        E("v_and_b32 v52, 7, v0\nv_lshl_add_u32 v59, v52, 4, v59\nv_lshl_add_u32 v54, v52, 4, v54\nv_lshrrev_b32 v52, 4, v0\nv_lshl_add_u32 v54, v52, 28, v54")
        E(f"s_cmp_eq_u32 s{t[1]}, 0\ns_cselect_b32 s{t[5]}, 10, 0\ns_cmp_eq_u32 s{t[1]}, 2\ns_cselect_b32 s{t[5]}, 5, s{t[5]}")
        E(f"s_mul_i32 s{t[6]}, s{M.sNB}, {320*KB}\ns_add_u32 s{t[6]}, s{t[6]}, {WQ}")
        E(f"s_lshl_b32 s{t[7]}, s{M.sNB}, 13\ns_mul_i32 s{t[8]}, s{t[2]}, 0x84\ns_and_b32 s{t[8]}, s{t[8]}, 0x20c\ns_add_u32 s{t[7]}, s{t[7]}, s{t[8]}\ns_add_u32 s{t[7]}, s{t[7]}, {CSQ}")
        done0 = E.vm_done
        for rnd in range(2):
            if rnd == 0:
                E(f"s_and_b32 s{t[8]}, s{M.sW}, 1\ns_lshl_b32 s{t[8]}, s{t[8]}, 3\ns_lshr_b32 s{t[9]}, s{M.sW}, 1\ns_lshl_b32 s{t[9]}, s{t[9]}, 5\ns_add_u32 s{t[8]}, s{t[8]}, s{t[9]}")
                E(f"s_cmp_eq_u32 s{M.sW}, 2\ns_cselect_b32 s{t[9]}, 40, 16\ns_add_u32 s{t[10]}, s{t[5]}, s{M.sW}")
            else:
                if self.G.o.get("zfill", 0):
                    Lq = E.label("WY")
                    E(f"s_cmp_lg_u32 s{t[10]}, 12\ns_cbranch_scc1 {Lq}")
                    E("v_mov_b32 v76, 0\nv_mov_b32 v77, 0\nv_mov_b32 v78, 0\nv_mov_b32 v79, 0")
                    for y in (2, 1, 0):
                        E(f"buffer_store_dwordx4 v[76:79], v{53 if y == 2 else 51}, {s(M.WS,4)}, s{t[11]} offen offset:384 sc1", count=False)
                        if y: E(f"s_sub_u32 s{t[11]}, s{t[11]}, s{t[14]}")
                    E(f"buffer_store_dword v76, v54, {s(M.WS,4)}, s{t[12]} offen offset:384 sc1", count=False)
                    E.place(Lq); E.hist = []
                E(f"s_cmp_lg_u32 s{M.sW}, 3\ns_cbranch_scc1 {Lend}")
                E(f"s_mov_b32 s{t[8]}, 48\ns_mov_b32 s{t[9]}, 16\ns_add_u32 s{t[10]}, s{t[5]}, 4")
            E(f"v_mul_u32_u24 v55, s{t[9]}, v49\nv_add3_u32 v55, v55, v48, s{t[8]}")
            E(f"s_cmp_ge_u32 s{t[10]}, 8\ns_cselect_b32 s{t[14]}, 1, 2\ns_cselect_b32 s{t[15]}, 40, 1\ns_cselect_b32 s{t[11]}, {80*KB}, 0\ns_lshl_b32 s{t[14]}, s{t[14]}, 10")
            E(f"s_mul_i32 s{t[12]}, s{t[2]}, 5\ns_mul_i32 s{t[12]}, s{t[12]}, s{t[14]}\ns_add_u32 s{t[11]}, s{t[11]}, s{t[12]}")
            E(f"v_lshrrev_b32 v53, 5, v0\nv_mad_u32_u24 v51, v53, s{t[14]}, v59\nv_lshl_add_u32 v53, v53, 28, v51\ns_lshl_b32 s{t[14]}, s{t[14]}, 1")
            E(f"s_bfe_u32 s{t[12]}, s{t[10]}, 0x10002\ns_mul_i32 s{t[12]}, s{t[12]}, s{t[15]}\ns_lshl_b32 s{t[12]}, s{t[12]}, 10")
            E(f"s_add_u32 s{t[11]}, s{t[11]}, s{t[12]}\ns_and_b32 s{t[12]}, s{t[10]}, 3\ns_lshl_b32 s{t[12]}, s{t[12]}, 7\ns_add_u32 s{t[11]}, s{t[11]}, s{t[12]}\ns_add_u32 s{t[11]}, s{t[11]}, s{t[6]}")
            E(f"s_lshr_b32 s{t[13]}, s{t[10]}, 2\ns_lshl_b32 s{t[13]}, s{t[13]}, 10\ns_add_u32 s{t[12]}, s{t[12]}, s{t[13]}\ns_add_u32 s{t[12]}, s{t[12]}, s{t[7]}")
            if rnd == 0:
                E.wait(vm=self.tok1); E("s_barrier")
            d0 = 60 + 16 * rnd
            for y in range(3):
                for rd in range(2): E(f"ds_read_b64_tr_b16 {v(d0+4*y+2*rd,2)}, v55 offset:{(32*y+4*rd)*160}")
            for y in range(3):
                E(f"buffer_store_dwordx4 {v(d0+4*y,4)}, v{53 if y == 2 else 51}, {s(M.WS,4)}, s{t[11]} offen sc1", count=False)
                if y < 2: E(f"s_add_u32 s{t[11]}, s{t[11]}, s{t[14]}")
            E("v_mov_b32 v56, 0")
            for y in range(3):
                if y == 2: E("s_mov_b32 exec_hi, 0")
                for e in range(4): E(f"v_dot2c_f32_bf16 v56, s{sONE}, v{d0+4*y+e}")
            E("s_mov_b32 exec_hi, -1")
            for sw in ("v_permlane32_swap_b32", "v_permlane16_swap_b32"):
                E(f"v_mov_b32 v57, v56\n{sw} v57, v56\nv_add_f32 v56, v57, v56")
            split_hi_lo(E, 56, 57, 58, d0 + 12)
            E(f"buffer_store_dword v{d0+12}, v54, {s(M.WS,4)}, s{t[12]} offen sc1", count=False)
        E.place(Lz)
        E.place(Lend); E.hist = []; E.vm_done = done0
        E("s_nop 1")
    def flag(self, code):
        E, M = self.E, self.M
        L = E.label("FG")
        E(f"s_cmp_lg_u32 s{M.sW}, 0\ns_cbranch_scc1 {L}")
        E(code)
        E(f"buffer_store_dwordx2 {v(vTK,2)}, v{M.vSW if self.G.o.get('fullf', 1) else M.vSIG}, {s(M.WS,4)}, s{M.sA} offen sc1", count=False)
        E.place(L)
    def flag1(self):
        M = self.M
        self.flag(f"s_lshl_b32 s{M.sA}, s{M.sJ}, 4\ns_add_u32 s{M.sA}, s{M.sA}, s{sRHO}\ns_lshl_b32 s{M.sA}, s{M.sA}, 7\ns_add_u32 s{M.sA}, s{M.sA}, {F1}")
    def flag2(self):
        M = self.M
        self.flag(f"s_lshl_b32 s{M.sA}, s{M.sJ}, 4\ns_add_u32 s{M.sA}, s{M.sA}, s{M.sR}\ns_lshl_b32 s{M.sA}, s{M.sA}, 7\ns_add_u32 s{M.sA}, s{M.sA}, {F2}")
    def vpoll_issue(self, addr, dst):
        return f"buffer_load_dwordx2 {v(dst,2)}, v{addr}, {s(self.M.WS,4)}, 0 offen sc1"
    def vpoll_check(self, addr, dst, slp):
        def fn():
            E, M = self.E, self.M
            Ls, Lb = E.label("VS"), E.label("VB")
            E(f"v_cmp_ne_u64 vcc, {v(dst,2)}, {v(vTK,2)}\ns_cbranch_vccnz {Ls}")
            E.place(Lb)
            self.G.tail.append(f"{Ls}:\ns_mov_b32 s{M.sF}, 0x100000\n{Ls}_l:\ns_sleep {slp}\n{self.vpoll_issue(addr, dst)}\ns_waitcnt vmcnt(0)\n"
                               f"v_cmp_ne_u64 vcc, {v(dst,2)}, {v(vTK,2)}\ns_nop 1\ns_cbranch_vccz {Lb}\ns_sub_u32 s{M.sF}, s{M.sF}, 1\ns_cmp_lg_u32 s{M.sF}, 0\n"
                               f"s_cbranch_scc1 {Ls}_l\ns_branch {Lb}")
        return fn
    def s2_prep(self):
        E, M = self.E, self.M
        Ld, Lo, Le = E.label("S2"), E.label("S2"), E.label("S2")
        AD = 224; B = 176; C = 168; u = [t[0]] + t[10:16]; u = {0: t[0], 1: t[10], 2: t[11], 3: t[12], 4: t[13], 5: t[14], 6: t[15]}
        for i in range(11): E(f"v_mov_b32 v{AD+i}, {OOB}")
        if self.G.o.get('hackS'): E(f"v_mov_b32 v{B}, 0")
        E(f"s_lshl_b32 s{u[0]}, s{M.sLW}, 1\ns_add_u32 s{u[0]}, s{u[0]}, {LDS2}")
        E(f"s_cmp_ge_u32 s{sSIG}, 14\ns_cbranch_scc1 {Lo}\ns_cmp_ge_u32 s{sSIG}, 8\ns_cbranch_scc1 {Ld}")
        E(f"s_cmp_ge_u32 s{M.sW}, {1 if self.G.o.get('hackS', 0) & 1 else 3}\ns_cbranch_scc1 {Le}")
        if self.G.o.get('m16', 1):
            E(f"v_bfe_u32 v{B}, v0, 2, 2\nv_mul_u32_u24 v{B}, 384, v{B}\nv_lshrrev_b32 v{B+2}, 5, v0\nv_mul_u32_u24 v{B+1}, 192, v{B+2}\nv_add_u32 v{B}, v{B}, v{B+1}")
            E(f"v_bfe_u32 v{B+3}, v0, 4, 1\nv_lshl_add_u32 v{B}, v{B+3}, 3, v{B}\nv_and_b32 v{B+1}, 3, v0\nv_lshl_add_u32 v{B}, v{B+1}, 4, v{B}")
            E(f"s_lshl_b32 s{u[1]}, s{M.sW}, 6\ns_add_u32 s{u[1]}, s{u[1]}, {LDS2}\nv_add_u32 v{B}, s{u[1]}, v{B}")
            E(f"v_and_b32 v{B+4}, 15, v0\nv_lshlrev_b32 v{B+4}, 4, v{B+4}\nv_mul_u32_u24 v{B+1}, {6*KB}, v{B+2}\nv_lshl_add_u32 v{B+1}, v{B+3}, 3, v{B+1}\nv_add_u32 v{B+1}, v{B+1}, v{B+4}")
            E(f"v_mul_u32_u24 v{B+2}, {240*KB}, v{B+2}\nv_lshl_add_u32 v{B+2}, v{B+3}, 11, v{B+2}\nv_add_u32 v{B+2}, v{B+2}, v{B+4}")
            E(f"s_mul_i32 s{u[1]}, s{M.sNB}, 6\ns_add_u32 s{u[1]}, s{u[1]}, s{M.sW}\ns_lshr_b32 s{u[2]}, s{sSIG}, 2")
            E(f"s_and_b32 s{u[5]}, s{sSIG}, 3\ns_lshl_b32 s{u[4]}, s{u[1]}, 11\ns_lshl_b32 s{u[6]}, s{u[2]}, 10\ns_add_u32 s{u[4]}, s{u[4]}, s{u[6]}\ns_lshl_b32 s{u[6]}, s{u[5]}, 8")
            E(f"s_add_u32 s{u[4]}, s{u[4]}, s{u[6]}\ns_lshl_b32 s{u[6]}, s{M.sTH}, 2\ns_add_u32 s{u[4]}, s{u[4]}, s{u[6]}\ns_add_u32 s{u[4]}, s{u[4]}, {CSG}\nv_add_u32 v{AD+10}, s{u[4]}, v{B+1}")
            E(f"s_mul_i32 s{u[3]}, s{u[1]}, {80*KB}\ns_lshl_b32 s{u[2]}, s{u[2]}, 12\ns_add_u32 s{u[3]}, s{u[3]}, s{u[2]}\ns_add_u32 s{u[3]}, s{u[3]}, {WGU}\nv_add_u32 v{B+2}, s{u[3]}, v{B+2}")
            E(f"s_lshl_b32 s{u[5]}, s{u[5]}, 1\ns_add_u32 s{u[5]}, s{u[5]}, s{M.sTH}\ns_mul_i32 s{u[5]}, s{u[5]}, 10")
            for k in range(10):
                E(f"s_add_u32 s{u[1]}, s{u[5]}, {k}\ns_lshr_b32 s{u[2]}, s{u[1]}, 3\ns_mul_i32 s{u[2]}, s{u[2]}, 24\ns_add_u32 s{u[1]}, s{u[1]}, s{u[2]}\nv_lshl_add_u32 v{AD+k}, s{u[1]}, 8, v{B+2}")
        else:
            E(f"v_bfe_u32 v{B}, v0, 2, 2\nv_lshrrev_b32 v{B+1}, 5, v0\nv_lshl_add_u32 v{B}, v{B+1}, 3, v{B}\nv_mul_u32_u24 v{B}, 384, v{B}")
            E(f"v_bfe_u32 v{B+1}, v0, 4, 1\nv_lshl_add_u32 v{B}, v{B+1}, 5, v{B}\nv_and_b32 v{B+1}, 1, v0\nv_lshl_add_u32 v{B}, v{B+1}, 4, v{B}")
            E(f"v_bfe_u32 v{B+1}, v0, 1, 1\nv_lshl_add_u32 v{B}, v{B+1}, 3, v{B}\ns_lshl_b32 s{u[1]}, s{M.sW}, 6\ns_add_u32 s{u[1]}, s{u[1]}, {LDS2}\nv_add_u32 v{B}, s{u[1]}, v{B}")
            E(f"v_lshrrev_b32 v{B+1}, 5, v0\nv_mul_u32_u24 v{B+1}, {6*KB - 512}, v{B+1}\nv_add_u32 v{B+1}, v{B+1}, v{M.vL16}")
            E(f"s_mul_i32 s{u[1]}, s{M.sNB}, 6\ns_add_u32 s{u[1]}, s{u[1]}, s{M.sW}\ns_lshr_b32 s{u[2]}, s{sSIG}, 2\ns_lshl_b32 s{u[2]}, s{u[2]}, 10")
            E(f"s_and_b32 s{u[5]}, s{sSIG}, 3\ns_lshl_b32 s{u[5]}, s{u[5]}, 1\ns_add_u32 s{u[5]}, s{u[5]}, s{M.sTH}")
            E(f"s_mul_i32 s{u[3]}, s{u[1]}, {80*KB}\ns_mul_i32 s{u[4]}, s{u[5]}, {10*KB}\ns_add_u32 s{u[3]}, s{u[3]}, s{u[4]}\ns_add_u32 s{u[3]}, s{u[3]}, s{u[2]}\ns_add_u32 s{u[3]}, s{u[3]}, {WGU}")
            E(f"s_lshl_b32 s{u[4]}, s{u[1]}, 11\ns_add_u32 s{u[4]}, s{u[4]}, s{u[2]}\ns_mul_i32 s{u[2]}, s{u[5]}, 0x84\ns_and_b32 s{u[2]}, s{u[2]}, 0x20c\ns_add_u32 s{u[4]}, s{u[4]}, s{u[2]}\ns_add_u32 s{u[4]}, s{u[4]}, {CSG}")
            E(f"v_add_u32 v{AD}, s{u[3]}, v{M.vL16}\nv_add_u32 v{AD+10}, s{u[4]}, v{B+1}")
            for k in range(1, 10): E(f"v_add_u32 v{AD+k}, {240*KB*(k // 5) + 2048*(k % 5)}, v{AD}")
        E(f"s_branch {Le}")
        E.place(Ld); E.hist = []
        E(f"v_bfe_u32 v{B}, v0, 2, 2\nv_lshrrev_b32 v{B+1}, 4, v0\nv_lshl_add_u32 v{B}, v{B+1}, 3, v{B}\nv_mul_u32_u24 v{B}, 160, v{B}")
        E(f"v_add_u32 v{B}, s{u[0]}, v{B}\nv_and_b32 v{B+2}, 3, v0\nv_lshl_add_u32 v{B+1}, v{B+2}, 3, v{B}\nv_lshl_add_u32 v{B}, v{B+2}, 5, v{B}")
        E(f"v_mov_b32 v{C}, s{u[0]}\nv_mov_b32 v{C+1}, s{u[0]}")
        E(f"s_mul_i32 s{u[1]}, s{sU}, 21846\ns_lshr_b32 s{u[1]}, s{u[1]}, 16\ns_mul_i32 s{u[3]}, s{u[1]}, 3\ns_sub_u32 s{u[3]}, s{sU}, s{u[3]}")
        E(f"s_lshl_b32 s{u[3]}, s{u[3]}, 2\ns_and_b32 s{u[4]}, s{u[1]}, 3\ns_add_u32 s{u[3]}, s{u[3]}, s{u[4]}\ns_mul_i32 s{u[3]}, s{u[3]}, {5*KB}")
        E(f"s_lshr_b32 s{u[4]}, s{u[1]}, 2\ns_mul_i32 s{u[4]}, s{u[4]}, {60*KB}\ns_add_u32 s{u[3]}, s{u[3]}, s{u[4]}")
        E(f"s_mul_i32 s{u[4]}, s{M.sNB}, {240*KB}\ns_add_u32 s{u[3]}, s{u[3]}, s{u[4]}\ns_add_u32 s{u[3]}, s{u[3]}, {WD}")
        if not self.G.o.get('hackS', 0) & 2:
            E(f"v_add_u32 v{AD}, s{u[3]}, v{M.vL16}")
            for nt in range(1, 5): E(f"v_add_u32 v{AD+nt}, {1024*nt}, v{AD}")
        E(f"s_branch {Le}")
        E.place(Lo); E.hist = []
        E(f"v_lshrrev_b32 v{B+2}, 4, v0\nv_and_b32 v{B+3}, 1, v{B+2}\nv_lshrrev_b32 v{B+4}, 5, v0\nv_mul_u32_u24 v{B+5}, 20, v{B+4}\nv_lshl_add_u32 v{B+5}, v{B+3}, 3, v{B+5}")
        E(f"v_bfe_u32 v{B}, v0, 2, 2\nv_add_u32 v{B+5}, v{B+5}, v{B}\nv_mul_u32_u24 v{B+5}, 160, v{B+5}\nv_add_u32 v{B+5}, s{u[0]}, v{B+5}")
        E(f"v_and_b32 v{B+6}, 3, v0\nv_mul_u32_u24 v{B}, 160, v{B}\nv_add_u32 v{B+7}, s{u[0]}, v{B}")
        E(f"v_lshl_add_u32 v{B}, v{B+6}, 5, v{B+5}\nv_lshl_add_u32 v{B+1}, v{B+6}, 3, v{B+5}")
        E(f"v_lshl_add_u32 v{C}, v{B+6}, 5, v{B+7}\nv_lshl_add_u32 v{C}, v{B+2}, 3, v{C}\nv_lshl_add_u32 v{C+1}, v{B+6}, 3, v{B+7}")
        E(f"v_and_b32 v{C+2}, 15, v0\nv_lshlrev_b32 v{C+2}, 4, v{C+2}\nv_mul_u32_u24 v{C+3}, {10*KB}, v{B+4}\nv_lshl_add_u32 v{C+3}, v{B+3}, 8, v{C+3}\nv_add_u32 v{C+3}, v{C+3}, v{C+2}")
        E(f"v_lshl_add_u32 v{C+4}, v{B+2}, 10, v{C+2}\nv_lshl_add_u32 v{C+5}, v{B+2}, 28, v{C+2}")
        E(f"s_lshr_b32 s{u[1]}, s{sU}, 2\ns_mul_i32 s{u[1]}, s{u[1]}, {25*KB}\ns_mul_i32 s{u[3]}, s{M.sNB}, {100*KB}\ns_add_u32 s{u[1]}, s{u[1]}, s{u[3]}\ns_add_u32 s{u[1]}, s{u[1]}, {WO}")
        E(f"s_lshr_b32 s{u[3]}, s{M.sW}, 1\ns_mul_i32 s{u[3]}, s{u[3]}, {5*KB}\ns_and_b32 s{u[4]}, s{M.sW}, 1\ns_lshl_b32 s{u[4]}, s{u[4]}, 9\ns_add_u32 s{u[3]}, s{u[3]}, s{u[4]}")
        E(f"s_add_u32 s{u[3]}, s{u[3]}, s{u[1]}")
        E(f"s_lshl_b32 s{u[5]}, s{M.sW}, 8\ns_add_u32 s{u[5]}, s{u[5]}, s{u[1]}\ns_add_u32 s{u[5]}, s{u[5]}, {20*KB}\ns_add_u32 s{u[6]}, s{u[5]}, 4096")
        E(f"v_add_u32 v{AD}, s{u[3]}, v{C+3}\nv_add_u32 v{AD+5}, s{u[5]}, v{C+4}\nv_add_u32 v{AD+6}, s{u[6]}, v{C+5}")
        for nt in range(1, 5): E(f"v_add_u32 v{AD+nt}, {1024*nt}, v{AD}")
        E.place(Le); E.hist = []
        E("s_nop 1")
    def s2_read(self):
        E, M = self.E, self.M
        Ld, Le = E.label("S2"), E.label("S2")
        AD = 224; B = 176; C = 168
        E.drain(vm=False)
        E(f"s_cmp_ge_u32 s{sSIG}, 8\ns_cbranch_scc1 {Ld}\ns_cmp_eq_u32 s{M.sW}, 3\ns_cbranch_scc1 {Le}")
        for ks in range(10):
            for rd in range(2): E(f"ds_read_b64_tr_b16 {v(B+8+4*ks+2*rd,2)}, v{B} offset:{(8*ks+4*rd)*384 if self.G.o.get('m16', 1) else (16*(ks%5)+4*rd)*384 + 192*(ks//5)}")
        E(f"s_branch {Le}")
        E.place(Ld); E.hist = []; E.pend = {k: x for k, x in E.pend.items() if x[0] != "ds"}
        for nt in range(5):
            for rd in range(2): E(f"ds_read_b64_tr_b16 {v(B+8+4*nt+2*rd,2)}, v{B+1 if nt == 4 else B} offset:{4*rd*160 + (128 if nt == 4 else 8*nt)}")
        for rd in range(2): E(f"ds_read_b64_tr_b16 {v(B+28+2*rd,2)}, v{C} offset:{(16, 36)[rd]*160}")
        for rd in range(2): E(f"ds_read_b64_tr_b16 {v(B+32+2*rd,2)}, v{C+1} offset:{(16, 36)[rd]*160 + 128}")
        E.place(Le); E.hist = []
        E.drain(vm=False)
        cs = [f"v_mov_b32 v{B+2}, 0", f"v_mov_b32 v{B+3}, 0"]
        for k in range(20):
            cs += [f"v_lshlrev_b32 v{B+4}, 16, v{B+8+k}", f"v_lshlrev_b32 v{B+5}, 16, v{B+28+k}", f"v_add_f32 v{B+2}, v{B+2}, v{B+4}", f"v_add_f32 v{B+3}, v{B+3}, v{B+5}",
                   f"v_and_b32 v{B+4}, 0xffff0000, v{B+8+k}", f"v_and_b32 v{B+5}, 0xffff0000, v{B+28+k}", f"v_add_f32 v{B+2}, v{B+2}, v{B+4}", f"v_add_f32 v{B+3}, v{B+3}, v{B+5}"]
        if not self.G.o.get('m16', 1): cs += [f"v_permlane32_swap_b32 v{B+2}, v{B+3}"]
        cs += [f"v_add_f32 v{B+2}, v{B+3}, v{B+2}",
               f"v_cvt_pk_bf16_f32 v{B+7}, v{B+2}, 0", f"v_lshlrev_b32 v{B+3}, 16, v{B+7}", f"v_sub_f32 v{B+4}, v{B+2}, v{B+3}", f"v_cvt_pk_bf16_f32 v{B+6}, v{B+3}, v{B+4}"]
        r = [f"buffer_store_dwordx4 {v(B+8+4*i,4)}, v{AD+i}, {s(M.WS,4)}, 0 offen sc1" for i in range(10)]
        return cs, r, lambda: setattr(self, "tok3", E(f"buffer_store_dword v{B+6}, v{AD+10}, {s(M.WS,4)}, 0 offen sc1"))
```

```python
import sys, math, struct, stubs
from emit import *
from layout import *
from startup8 import Startup, NRACE, sTK, vTK, sONE, sRHO, OOB
KNAME = "interleave_layers__sliding_block__glu_gated_geglu__prompt_kernel"

def f2u(x): return hex(struct.unpack("<I", struct.pack("<f", x))[0])

WS = 4; OUT = 8; XIN = 12
sR, sJ, sW, sTH, sNB = 16, 17, 18, 19, 20
sWQ, sWGU, sWO, sWD, sLW = 21, 22, 23, 24, 25
sXB, sKVme, sOme, sHme = 26, 27, 28, 29
sT0 = 30
sMASK = 32
sRET = 64
sT16 = 66; sT16H = 70
sA, sB, sC, sD, sE_, sF = 74, 75, 76, 77, 78, 79
sFL = 80
sHAL = 89
sKP, sKC, sKT = 91, 92, 3
sRM = 93
sTS = 94
sTP, sTC, sWP, sWC = 98, 99, 100, 101
sP = 2
vL16, vL16b, vL16c = 1, 2, 3
vU = 4; vPOS = 5; vST = 6; vCS = 7; vSIG = 8; vONE = 9
vRW = 10
vXW = 14; vXW5 = 15; vO4 = 16; vSW = 17; vRSTD = 18; vT = 19
vRES = 20
vNM = 40
vC1, vC2, vIV = 44, 45, 46
vKR = 47
vRM, vRM5, vTS, vTS2 = 250, 251, 252, 253
vP = 255; vDUM = 254; vSR = 255
sAR = 1
vTL = 7
sPV = 15
sH8, sH16, sHX = 12, 13, 14
SLOT = 5248; ONES = 12 * SLOT; EPS = 1e-5
AG = 256
EARLY = [216 + 4 * i for i in range(7)]
FINAL = ""
NX0 = 10

class Pool:
    def __init__(self, quads=()): self.free = list(quads)
    def get(self): return self.free.pop(0)
    def put(self, q): self.free.append(q)
    def add(self, qs): self.free += list(qs)

def spread(ev, groups, start, step):
    for i, g in enumerate(groups): ev.setdefault(int(start + i * step), []).append(g)

class Gen:
    def __init__(self, stop=99, stamps=False, mapping="mix", opts=None):
        self.E = Emit(); self.stop = stop; self.stamps = stamps; self.mapping = mapping
        self.sites = []; self.nst = 0; self.stnames = []; self.tail = []; self.o = opts or {}
    def do(self, g):
        if isinstance(g, tuple):
            for x in g: r = self.do(x)
            return r
        if callable(g): return g()
        return self.E(g)
    @staticmethod
    def flat(g):
        if isinstance(g, tuple): return list(g)
        if callable(g): return [g]
        l = g.split("\n")
        return [x for x in ("\n".join(l[:-1]), l[-1]) if x]
    def stamp(self, name):
        if self.o.get("verbose") == 2:
            print(f"{name:18s} issue cost {self.E.cost - getattr(self, 'c0', 0):6d}  vmem {self.E.stats.get('vmem', 0) - getattr(self, 'v0', 0)}"); self.c0 = self.E.cost; self.v0 = self.E.stats.get('vmem', 0)
        ec = self.o.get("echo", 0)
        if ec and name == ("", "WQ synced", "L0 halo in", "L0 P4 synced", "L1 P1 synced", "L1 P5 done", "L1 P4 synced", "L1 halo in", "L1 P3 synced", "L1 P4 p2", "L0 P3 synced")[ec]:
            self.E(f"{'s_memtime' if self.o.get('ecyc') else 's_memrealtime'} {s(sTS+2,2)}"); self.E.wait_smem()
        if ec and self.o.get("e0") and name == ("", "WQ synced", "L0 halo in", "L0 P4 synced", "L1 P1 synced", "L1 P5 done", "L1 P4 synced", "L1 halo in", "L1 P3 synced", "L1 P4 p2", "L0 P3 synced")[self.o["e0"]]:
            self.E(f"{'s_memtime' if self.o.get('ecyc') else 's_memrealtime'} {s(sTS,2)}"); self.E.wait_smem()
        if not self.stamps or self.E.smem_out: return
        if self.o.get("ends") and name not in ("L1 P5 done", "L1 P1 synced", "WQ synced", "L0 P4 synced", "L1 P4 synced", "L0 P3 synced", "L1 P3 synced", "L0 halo in", "L1 halo in"): return
        E = self.E
        E(f"s_memrealtime {s(sTS,2)}\ns_memtime {s(sTS+2,2)}"); E.wait_smem()
        E(f"v_writelane_b32 v{vTS}, s{sTS}, {self.nst}\nv_writelane_b32 v{vTS2}, s{sTS+2}, {self.nst}")
        self.nst += 1; self.stnames.append(name)
    def dma4(self, sbase, goff, ldsoff, rec=None, fl="sc1"):
        g = [f"s_add_u32 m0, s{sLW}, {ldsoff}\ns_add_u32 s{sT0}, s{sbase}, {goff}\nbuffer_load_dwordx4 v{vL16}, {s(WS,4)}, s{sT0} offen {fl} lds"]
        for i in range(1, 4): g.append(f"buffer_load_dwordx4 v{vL16}, {s(WS,4)}, s{sT0} offen offset:{1024*i} {fl} lds")
        h = g[0].split("\n")
        def guarded(x, r):
            def fn():
                assert self.E.lastw["m0"] == h[0] and self.E.lastw[f"s{sT0}"] == h[1], "DMA group interleaved"
                t = self.E(x)
                if r is not None: r.append(t)
            return fn
        return [g[0], guarded(g[1], None), guarded(g[2], None), guarded(g[3], rec)]
    def wread(self, dst, ldsaddr):
        return f"ds_read_b128 {R(dst,4)}, v{vL16+(ldsaddr >> 16)} offset:{ldsaddr & 0xffff}"
    def signal(self, sreg, imm, tok, va=None):
        def fn():
            self.E.wait(vm=tok() if callable(tok) else tok)
            self.E(f"buffer_atomic_add v{vONE}, v{va or vSIG}, {s(WS,4)}, s{sreg} offen offset:{imm} sc1")
        return fn
    def poll_issue(self, sreg, imm):
        if self.o.get("spoll", 1): return f"s_load_dword s{sPV}, {s(WS,2)}, s{sreg} offset:{imm} glc"
        return f"buffer_load_dword v{vP}, v{vSIG}, {s(WS,4)}, s{sreg} offen offset:{imm} sc1"
    def poll_check(self, sreg, imm, thr, slp=None):
        def fn():
            E = self.E
            Ls, Lb = E.label("SP"), E.label("BK")
            sc = self.o.get("spoll", 1)
            assert E.lastw.get(f"s{sPV}") == self.poll_issue(sreg, imm), "poll checked without its load"
            E.lastw[f"s{sPV}"] = None
            if sc: E.wait_smem()
            else: E(f"v_readfirstlane_b32 s{sPV}, v{vP}")
            E(f"s_cmp_ge_u32 s{sPV}, {thr}\ns_cbranch_scc0 {Ls}")
            E.place(Lb)
            sl = self.o.get("slp", 0) if slp is None else slp
            cnt = ""
            if self.stamps and self.o.get("ends"):
                self.sites.append(f"{sreg}/{imm}")
                cnt = f"s_sub_u32 s{sPV}, 0x200001, s{sF}\nv_writelane_b32 v{vTS2}, s{sPV}, {12 + len(self.sites)}\n"
            self.tail.append(f"{Ls}:\ns_mov_b32 s{sF}, 0x200000\n{Ls}_l:\n" + cnt + (f"s_sleep {sl}\n" if sl else "") + self.poll_issue(sreg, imm) +
                             ("\ns_waitcnt lgkmcnt(0)\n" if sc else f"\ns_waitcnt vmcnt(0)\nv_readfirstlane_b32 s{sPV}, v{vP}\ns_nop 0\n") +
                             f"s_cmp_ge_u32 s{sPV}, {thr}\ns_cbranch_scc1 {Lb}\ns_sub_u32 s{sF}, s{sF}, 1\ns_cmp_lg_u32 s{sF}, 0\n"
                             f"s_cbranch_scc1 {Ls}_l\ns_branch {Lb}")
        return fn
    def validate(self, quads, reload, tmp):
        rs = [q + e for q in quads for e in range(4)]
        ops = [f"v_max3_u32 v{tmp}, v{rs[0]}, v{rs[1]}, v{rs[2]}"]
        rest = rs[3:]
        while rest:
            if len(rest) >= 2: ops.append(f"v_max3_u32 v{tmp}, v{rest[0]}, v{rest[1]}, v{tmp}"); rest = rest[2:]
            else: ops.append(f"v_max_u32 v{tmp}, v{rest[0]}, v{tmp}"); rest = []
        ops.append(f"v_cmp_eq_u32 vcc, -1, v{tmp}")
        def br():
            E = self.E
            Ls, Lb = E.label("RT"), E.label("RB")
            E(f"s_cbranch_vccnz {Ls}"); E.place(Lb)
            cnt = ""
            if self.stamps and self.o.get("ends"):
                self.sites.append("val")
                cnt = f"s_sub_u32 s{sTS}, 0x200001, s{sF}\nv_writelane_b32 v{vTS2}, s{sTS}, {12 + len(self.sites)}\n"
            self.tail.append(f"{Ls}:\ns_mov_b32 s{sF}, 0x200000\n{Ls}_l:\n" + cnt + "\n".join(reload) + "\ns_waitcnt vmcnt(0)\n" + "\n".join(ops) +
                             f"\ns_sub_u32 s{sF}, s{sF}, 1\ns_nop 0\ns_cbranch_vccz {Lb}\ns_cmp_lg_u32 s{sF}, 0\ns_cbranch_scc1 {Ls}_l\ns_branch {Lb}")
        g = ["\n".join(ops[k:k + 2]) for k in range(0, len(ops), 2)]
        n0 = len(self.E.out); g0 = g[0]
        def first():
            for q in quads:
                assert any(x.startswith(f"buffer_load_dwordx4 {v(q,4)},") for x in self.E.out[n0:]), q
            self.E(g0)
        return [first] + g[1:] + [br]
    def xpoison(self, idx, reg):
        if not self.o.get("early", 0): return []
        return [f"s_add_u32 s{sP}, s{sT16+3}, {self.xt(idx)}\ns_mul_i32 s{sF}, s{sNB}, {5*KB}\ns_add_u32 s{sP}, s{sP}, s{sF}\nbuffer_store_dwordx4 {v(reg,4)}, v{vXW}, {s(WS,4)}, s{sP} offen sc1",
                f"buffer_store_dwordx4 {v(reg,4)}, v{vXW}, {s(WS,4)}, s{sP} offen offset:512 sc1",
                f"s_add_u32 s{sP}, s{sP}, 4096\nbuffer_store_dwordx2 {v(reg,2)}, v{vXW5}, {s(WS,4)}, s{sP} offen sc1",
                f"s_lshl_b32 s{sP}, s{sR}, 4\ns_add_u32 s{sP}, s{sP}, s{sJ}\ns_lshl_b32 s{sP}, s{sP}, 2\ns_add_u32 s{sP}, s{sP}, s{sW}",
                f"s_lshl_b32 s{sP}, s{sP}, 7\ns_add_u32 s{sP}, s{sP}, {STAT + idx*128*KB}\nbuffer_store_dwordx2 {v(reg,2)}, v{vSW}, {s(WS,4)}, s{sP} offen sc1"]
    def nan_net(self, acc, xl, items, allw, ring, imm, stat):
        xr = self.xr
        def fn():
            E = self.E
            Ls, Lb = E.label("NN"), E.label("NB")
            E(f"v_cmp_{'o' if self.o.get('forcenan') else 'u'}_f32 vcc, v{acc}, v{acc}\ns_cbranch_vccnz {Ls}"); E.place(Lb)
            F = Emit(); F.raw(f"{Ls}:")
            if self.stamps and self.o.get("ends"):
                self.sites.append("nan"); F(f"s_mov_b32 s{sTS}, 1\nv_writelane_b32 v{vTS2}, s{sTS}, {12 + len(self.sites)}")
            F("s_waitcnt vmcnt(0) lgkmcnt(0)"); F.settle()
            F(f"s_mov_b32 s{sF}, 0x200000"); F.raw(f"{Ls}_p:")
            F(self.poll_issue(sWC, imm + 8)); F.wait_smem()
            F(f"s_cmp_ge_u32 s{sPV}, 16\ns_cbranch_scc1 {Ls}_q\ns_sub_u32 s{sF}, s{sF}, 1\ns_cmp_lg_u32 s{sF}, 0\ns_cbranch_scc1 {Ls}_p"); F.raw(f"{Ls}_q:")
            F(f"s_mov_b32 s{sF}, s{sE_}")
            for g in xl: F(g)
            F(f"s_mov_b32 s{sE_}, s{sF}\ns_mov_b32 s{sF}, s{sC}")
            for g in stat: F(g)
            F(f"s_mov_b32 s{sC}, s{sF}")
            f = 0
            for k in range(6): F(self.wread(ring + 4 * k, allw[k]))
            for it in items:
                if it[0] == "cs": F(f"v_mfma_f32_32x32x16_bf16 {v(it[1],16)}, {R(it[2],4)}, {v(vNM,4)}, {v(it[1],16)}")
                else:
                    F(f"v_mfma_f32_32x32x16_bf16 {v(it[0],16)}, {R(ring+4*(f%6),4)}, {a(xr(it[1]),4)}, {'0' if it[2] else v(it[0],16)}")
                    F(self.wread(ring + 4 * (f % 6), allw[f + 6])); f += 1
            F.drain(); F.settle()
            F(f"s_branch {Lb}")
            self.tail.append(F.text())
        return fn
    def window(self, k):
        if self.o.get("stub", 70) >> k & 1: self.E.raw(";@WIN")
    def poll_block(self, sreg, imm, thr):
        if not self.preissued: self.E(self.poll_issue(sreg, imm))
        self.window(4 if imm < 512 else 6)
        self.poll_check(sreg, imm, thr)()
    def T(self, kind, L): return 1024 * kind + 4 * L if kind < 4 else 8 + 4 * L
    def touch(self, sreg, sh, off):
        def fn():
            self.E(f"s_add_u32 s{sP}, s{sreg}, s{sh}\ns_add_u32 s{sP}, s{sP}, {off}\nbuffer_load_dword v{vDUM}, v{vTL}, {s(WS,4)}, s{sP} offen sc1")
            self.E.pend.pop(f"v{vDUM}", None)
        m = self.o.get("touch", 0)
        return fn if (m & (1 if sh == sHX else 2)) else (lambda: None)
    def prologue(self):
        E = self.E
        kernel_header(E, KNAME)
        Lgo = E.label("GO")
        E(f"s_cmp_lt_u32 s2, 256\ns_cbranch_scc1 {Lgo}\ns_endpgm")
        E.place(Lgo)
        if self.stamps: E(f"s_memrealtime {s(sTS,2)}\ns_memtime {s(sTS+2,2)}")
        if self.o.get("echo"): E(f"s_memrealtime {s(sTS,2)}")
        E(f"s_load_dwordx2 {s(WS,2)}, s[0:1], 72\ns_load_dwordx2 {s(OUT,2)}, s[0:1], 56\ns_load_dwordx2 {s(XIN,2)}, s[0:1], 0")
        E("s_load_dwordx4 s[80:83], s[0:1], 8\ns_load_dwordx4 s[84:87], s[0:1], 32\ns_load_dwordx2 s[88:89], s[0:1], 48")
        Lp = E.label("PC")
        E(f"s_getpc_b64 {s(sRET,2)}"); E.place(Lp)
        E(f"s_lshr_b32 s{sA}, s2, 3\nv_lshl_add_u32 v{vT}, v0, 5, s{sA}\nv_lshlrev_b32 v{vT}, 7, v{vT}\nv_min_u32 v{vT}, main_end-{Lp}-4, v{vT}")
        E(f"global_load_dword v247, v{vT}, {s(sRET,2)}")
        E(f"s_mov_b32 s{WS+2}, {WS_BYTES}\ns_mov_b32 s{WS+3}, 0x00020000")
        for b in (OUT, XIN): E(f"s_mov_b32 s{b+2}, {2048*640*2}\ns_mov_b32 s{b+3}, 0x00020000")
        E(f"v_lshrrev_b32 v{vT}, 6, v0\nv_and_b32 v0, 63, v0\nv_readfirstlane_b32 s{sW}, v{vT}")
        E(f"s_and_b32 s{sA}, s2, 7\ns_lshr_b32 s{sB}, s2, 3")
        if self.mapping == "mix":
            E(f"s_lshr_b32 s{sC}, s{sA}, 1\ns_lshl_b32 s{sC}, s{sC}, 2\ns_lshr_b32 s{sR}, s{sB}, 3\ns_add_u32 s{sR}, s{sR}, s{sC}")
            E(f"s_and_b32 s{sC}, s{sA}, 1\ns_lshl_b32 s{sC}, s{sC}, 3\ns_and_b32 s{sJ}, s{sB}, 7\ns_add_u32 s{sJ}, s{sJ}, s{sC}")
        else:
            E(f"s_lshr_b32 s{sR}, s{sB}, 4\ns_lshl_b32 s{sC}, s{sA}, 1\ns_add_u32 s{sR}, s{sR}, s{sC}\ns_and_b32 s{sJ}, s{sB}, 15")
        E(f"s_and_b32 s{sTH}, s{sJ}, 1\ns_lshr_b32 s{sNB}, s{sJ}, 1\ns_lshl_b32 s{sLW}, s{sW}, 12")
        E(f"v_lshlrev_b32 v{vL16}, 4, v0")
        if self.stamps: E(f"v_mov_b32 v{vTS}, 0\nv_mov_b32 v{vTS2}, 0")
        E.wait_smem()
        if self.stamps:
            E(f"v_writelane_b32 v{vTS2}, s2, 63")
            E(f"v_writelane_b32 v{vTS}, s{sTS}, 0\nv_writelane_b32 v{vTS2}, s{sTS+2}, 0")
            self.nst = 1; self.stnames.append("entry")
        if self.o.get("align", 1):
            E(f"s_sub_u32 s{sA}, 0, s{WS}\ns_and_b32 s{sA}, s{sA}, 0x1fffff\ns_add_u32 s{WS}, s{WS}, s{sA}\ns_addc_u32 s{WS+1}, s{WS+1}, 0\ns_mov_b32 s{WS+2}, {WS_BYTES - 2*MB}")
        wo_ = self.o.get("wsoff", 0) << 20
        if wo_: E(f"s_add_u32 s{WS}, s{WS}, {wo_}\ns_addc_u32 s{WS+1}, s{WS+1}, 0\ns_mov_b32 s{WS+2}, {WS_BYTES - wo_}")
        S = self.S = Startup(self, sys.modules[__name__])
        S.roles(80, 82, 84, 86, 88)
        S.s1_load(); S.x_touch(); S.leader_clear()
        E(f"v_mov_b32 v{vTK+1}, {EPOCH}\nbuffer_load_dword v{vTK}, v{vTK+1}, {s(WS,4)}, 0 offen sc1")
        self.stamp("st S1 issued")
        if self.o.get("alpos", 0): E.raw(";@ALIGN"); self.window(10)
        S.s2_addrs()
        self.s2q = [(lambda i=i: setattr(S, "tok2", E(S.s2_load(i)))) for i in range(8)]
        if self.o.get("s2when", 2) == 0:
            while self.s2q: self.s2q.pop(0)()
        E(f"s_lshl_b32 s{sA}, s{sR}, 2\ns_add_u32 s{sA}, s{sA}, s{sW}\ns_mul_i32 s{sTK}, s{sA}, {40*KB}")
    def masks(self):
        r = []
        for i in range(16):
            m = 0
            for l in range(64):
                if (i & 3) + 8 * (i >> 2) + 4 * (l >> 5) <= (l & 31): m |= 1 << l
            r.append(f"s_mov_b32 s{sMASK+2*i}, {hex(m & 0xffffffff)}\ns_mov_b32 s{sMASK+2*i+1}, {hex(m >> 32)}")
        return r
    def x_bounce(self, T, wdm):
        E = self.E; S = self.S
        XA = 96; XR = 100; TM = 104; PA, PD = 240, 242
        o = self.o; X0 = 64 * KB
        E(f"v_lshrrev_b32 v48, 3, v0\nv_mul_u32_u24 v48, 1280, v48\nv_and_b32 v49, 7, v0\nv_lshrrev_b32 v50, 4, v0\nv_xor_b32 v49, v49, v50\nv_lshl_add_u32 v{XA}, v49, 4, v48")
        E(f"v_xor_b32 v{XA+1}, 64, v{XA}\nv_add_u32 v{XA+2}, {2*9216}, v{XA}\nv_add_u32 v{XA+3}, {3*9216}, v{XA+1}\nv_add_u32 v{XA+1}, 9216, v{XA+1}")
        tok = []
        def dma(ch):
            E(f"s_add_u32 m0, s{sLW}, {X0 + 16*KB*(ch%4)}\ns_add_u32 s{sE_}, s{sTK}, {128*ch}")
            for i in range(4): t = E(f"buffer_load_dwordx4 v{XA+i}, {s(XIN,4)}, s{sE_} offen offset:{1024*i} lds")
            tok.append(t)
        E(f"s_mul_i32 s{sWQ}, s{sJ}, {160*KB}\ns_add_u32 s{sWQ}, s{sWQ}, s{sLW}\ns_add_u32 s{sWQ}, s{sWQ}, {WQ}")
        E(f"v_min_u32 v{vSIG}, 1, v0\nv_lshlrev_b32 v{vSIG}, 28, v{vSIG}\nv_mov_b32 v{vONE}, 1")
        E(f"v_and_b32 v48, 31, v0\nv_lshrrev_b32 v49, 5, v0\nv_bfe_u32 v50, v0, 1, 3\nv_xor_b32 v49, v49, v50\nv_lshlrev_b32 v49, 4, v49\nv_lshl_add_u32 v48, v48, 7, v49")
        E(f"s_add_u32 s{sA}, s{sLW}, {X0}\nv_add_u32 v{XR}, s{sA}, v48")
        for k in range(1, 4): E(f"v_xor_b32 v{XR+k}, {32*k}, v{XR}")
        E(f"v_mov_b32 v{T}, 0\nv_mov_b32 v{T+1}, 0")
        E(f"s_lshl_b32 s{sA}, s{sNB}, 12\ns_add_u32 s{sA}, s{sA}, {F1}\ns_sub_u32 s{sB}, 15, s{sR}\ns_mov_b32 s{sC}, {F1 + 15*128}")
        E(f"v_and_b32 v49, 3, v0\nv_min_u32 v49, 2, v49\nv_add_u32 v49, s{sB}, v49\nv_min_u32 v49, 15, v49\nv_lshl_add_u32 v49, v49, 11, s{sC}")
        E(f"v_lshlrev_b32 v174, {o.get('vsh', 7)}, v0\nv_add_u32 v174, {VOTE}, v174")
        E(f"v_lshl_add_u32 v48, v0, 7, s{sA}\nv_cmp_gt_u32 vcc, 32, v0\nv_cndmask_b32 v{PA}, v49, v48, vcc")
        E(f"s_lshl_b32 s{sA}, s{sNB}, 12\ns_add_u32 s{sA}, s{sA}, {F2}\nv_and_b32 v48, 31, v0\nv_lshl_add_u32 v{PA+1}, v48, 7, s{sA}")
        prep = S.s2_prep if not o.get("s2when", 2) else (lambda: None)
        if o.get("cfirst", 1): self.prologue2(); prep()
        if not o.get("alpos", 0): E.raw(";@ALIGN")
        self.window(0)
        S.s1_proc()
        self.stamp("st S1 stored")
        for ch in range(0, 2): dma(ch)
        if not o.get("cfirst", 1): self.prologue2(); prep()
        E(f"s_mov_b32 s{sA}, 0x9e3779b1\nv_mul_lo_u32 v{vTK}, v{vTK}, s{sA}\nv_add_u32 v{vTK}, 0x7f4a7c15, v{vTK}\nv_xor_b32 v{vTK+1}, 0x5bd1e995, v{vTK}")
        E(f"v_readfirstlane_b32 s0, v{vTK}")
        if o.get("racepos", 1) == 0: S.leader_race()
        dma(2)
        if o.get("racepos", 1) == 1: S.leader_race()
        self.window(1)
        E.wait(vm=tok[0] - 3); E("s_barrier"); S.flag1(); self.stamp("st F1")
        dma(3)
        self.s2r = None
        nx = o.get("s2x", 10) if not o.get("s2when", 2) else 0
        if nx: self.s2r = S.s2_read()
        pi, pc = o.get("f1poll", 5), o.get("f1chk", 8)
        def dots(ch):
            tm = TM + 16 * (ch & 1)
            for e in range(16): E(f"v_dot2c_f32_bf16 v{T}, s{sONE}, v{tm+e}\nv_dot2c_f32_bf16 v{T+1}, v{tm+e}, v{tm+e}")
        for ch in range(10):
            E.wait(vm=tok[ch])
            for k in range(4): E(f"ds_read_b128 {v(TM+16*(ch&1)+4*k,4)}, v{XR+k} offset:{16*KB*(ch%4)}")
            for k in range(4): E(f"ds_read_b128 {a(16*ch+4*k,4)}, v{XR+k} offset:{16*KB*(ch%4)}")
            if ch == pi:
                E(f"s_cmp_eq_u32 s{sW}, 0\ns_cselect_b32 s{sA}, 0, {OOB}\nv_add_u32 v{PA}, s{sA}, v{PA}")
                E(S.vpoll_issue(PA, PD))
            if ch == o.get("vpos", 13) - 100: E(f"buffer_load_dword v156, v174, {s(WS,4)}, 0 offen sc1")
            if ch == o.get("resch", 1):
                for x in self.tile_addrs(140, 143): E(x)
                for i in range(3): rtok = E(f"s_add_u32 m0, s{sLW}, {16*KB + 1024*i}\nbuffer_load_dwordx4 v{140+i}, {s(XIN,4)}, s{sRM} offen lds")
            if ch == 7:
                E.wait(vm=rtok)
                E(f"ds_read_b128 v[136:139], v{vRM} offset:{16*KB}\nds_read_b128 v[140:143], v{vRM} offset:{16*KB+16}\nds_read_b64 v[144:145], v{vRM5} offset:{16*KB+128}")
            if ch == 8:
                for i in range(10): E(f"v_lshlrev_b32 v{vRES+2*i}, 16, v{136+i}\nv_and_b32 v{vRES+2*i+1}, 0xffff0000, v{136+i}")
            if ch: dots(ch - 1)
            E.drain(vm=False)
            if ch + 4 < 10: dma(ch + 4)
            if ch == o.get("s2ch", 0):
                while self.s2q: self.s2q.pop(0)()
                if o.get("s2when", 2): S.s2_prep()
            for _ in range(o.get("s2n", 2)):
                if ch < nx and ch >= o.get("s2f", 5) and self.s2r[1]: E(self.s2r[1].pop(0))
            if ch == pc:
                Lw = E.label("PW")
                E.need(regs(v(PD, 2)))
                E(f"s_cmp_lg_u32 s{sW}, 0\ns_cbranch_scc1 {Lw}")
                S.vpoll_check(PA, PD, 4)()
                E.place(Lw)
                E("s_barrier")
                self.stamp("WQ synced")
            if ch >= pc and wdm:
                for _ in range(o.get("wfirst", 1)):
                    for g in wdm.pop(0): self.do(g)
        dots(9)
        self.stamp("st x done")
    def sharers(self):
        return [f"s_and_b32 s{sA}, s{sR}, 3\ns_lshl_b32 s{sH8}, s{sA}, 1\ns_add_u32 s{sH8}, s{sH8}, s{sTH}\ns_lshl_b32 s{sH8}, s{sH8}, 11",
                f"s_and_b32 s{sA}, s{sR}, 3\ns_lshl_b32 s{sH16}, s{sA}, 2\ns_add_u32 s{sH16}, s{sH16}, s{sW}\ns_lshl_b32 s{sH16}, s{sH16}, 11\ns_sub_u32 s{sH16}, s{sH16}, s{sLW}",
                f"s_and_b32 s{sHX}, s{sJ}, 7\ns_lshl_b32 s{sHX}, s{sHX}, 11"]
    def prologue2(self):
        E = self.E; NREP = self.o.get("nrep", 4)
        E(f"s_mul_i32 s{sWGU}, s{sJ}, {240*KB}\ns_add_u32 s{sWGU}, s{sWGU}, s{sLW}\ns_add_u32 s{sWGU}, s{sWGU}, {WGU}")
        E(f"s_mul_i32 s{sWO}, s{sNB}, {100*KB}\ns_mul_i32 s{sA}, s{sW}, {25*KB}\ns_add_u32 s{sWO}, s{sWO}, s{sA}\ns_add_u32 s{sWO}, s{sWO}, {WO}")
        E(f"s_mul_i32 s{sWD}, s{sNB}, {240*KB}\ns_mul_i32 s{sA}, s{sW}, {60*KB}\ns_add_u32 s{sWD}, s{sWD}, s{sA}\ns_add_u32 s{sWD}, s{sWD}, {WD}")
        E(f"s_lshl_b32 s{sA}, s{sR}, 2\ns_add_u32 s{sA}, s{sA}, s{sW}")
        for i in range(9):
            E(f"s_cmp_lt_u32 s{sA}, {8-i}\ns_cselect_b32 s{sFL+i}, 0x3f803f80, 0x3f800000" if False else
              f"s_cmp_lt_u32 s{sA}, {8-i}\ns_cselect_b32 s{sFL+i}, 0x3f80, 0\ns_or_b32 s{sFL+i}, s{sFL+i}, 1.0")
        E(f"v_lshlrev_b32 v{vSR}, 10, v0\nv_mov_b32 v48, {OOB}\nv_cmp_gt_u32 vcc, {NREP}, v0\nv_cndmask_b32 v{vSR}, v48, v{vSR}, vcc")
        for i in range(3):
            E(f"s_add_u32 s{sA}, s{sW}, {1+i}\ns_and_b32 s{sA}, s{sA}, 3\ns_mul_i32 s{sA}, s{sA}, {15*KB}\ns_add_u32 s{sA}, s{sA}, {5*KB*i}\nv_add_u32 v{vRW+i}, s{sA}, v{vL16}")
        E(f"s_mul_i32 s{sA}, s{sW}, {15*KB}\nv_add_u32 v{vRW+3}, s{sA}, v{vL16}")
        t0, t1, t2 = 48, 49, 50
        E(f"v_add_u32 v{vL16b}, 0x10000, v{vL16}\nv_add_u32 v{vL16c}, 0x20000, v{vL16}")
        E(f"v_lshrrev_b32 v{t0}, 4, v0\nv_and_b32 v{t1}, 15, v0")
        E(f"v_lshlrev_b32 v{t2}, 9, v{t0}\nv_lshl_add_u32 v{vU}, v{t1}, 4, v{t2}")
        E(f"v_lshlrev_b32 v{t2}, 10, v{t0}\nv_lshl_add_u32 v{vXW}, v{t1}, 4, v{t2}")
        E(f"v_lshrrev_b32 v{t2}, 1, v{t0}\nv_lshlrev_b32 v{t2}, 9, v{t2}\nv_lshl_add_u32 v{vXW5}, v{t1}, 4, v{t2}")
        E(f"v_and_b32 v{t2}, 1, v{t0}\nv_lshl_add_u32 v{vXW5}, v{t2}, 3, v{vXW5}")
        E(f"s_mul_i32 s{sA}, s{sNB}, {5*KB}\nv_add_u32 v{vXW}, s{sA}, v{vXW}\ns_add_u32 s{sA}, s{sA}, 4096\nv_add_u32 v{vXW5}, s{sA}, v{vXW5}")
        for r_ in (vXW, vXW5): E(f"v_and_b32 v{t2}, 0xffffe000, v{r_}\nv_add_u32 v{r_}, v{t2}, v{r_}")
        E(f"v_lshlrev_b32 v{vTL}, 7, v{t1}\nv_lshl_add_u32 v{vTL}, v{t0}, 28, v{vTL}")
        E(f"v_lshlrev_b32 v{vSW}, 3, v{t1}\nv_lshl_add_u32 v{vSW}, v{t0}, 28, v{vSW}")
        E(f"v_mul_u32_u24 v{t2}, 160, v{t1}\nv_add_u32 v{t2}, s{sLW}, v{t2}\nv_lshl_add_u32 v{vRM}, v{t0}, 5, v{t2}\nv_lshl_add_u32 v{vRM5}, v{t0}, 3, v{t2}")
        E(f"s_lshl_b32 s{sA}, s{sR}, 1\ns_add_u32 s{sA}, s{sA}, s{sTH}\ns_lshl_b32 s{sA}, s{sA}, 2\ns_add_u32 s{sA}, s{sA}, s{sW}")
        E(f"s_mul_i32 s{sA}, s{sA}, {16*1280}\ns_mul_i32 s{sB}, s{sNB}, 160\ns_add_u32 s{sRM}, s{sA}, s{sB}")
        E(f"v_lshrrev_b32 v{t0}, 5, v0\nv_and_b32 v{t1}, 31, v0")
        E(f"v_lshlrev_b32 v{t2}, 2, v{t0}\nv_xor_b32 v{t2}, v{t2}, v{t1}\nv_lshlrev_b32 v{t2}, 4, v{t2}\nv_lshl_add_u32 v{vPOS}, v{t0}, 9, v{t2}")
        E(f"v_lshlrev_b32 v{t2}, 3, v{t1}")
        E(f"s_lshl_b32 s{sA}, s{sW}, 8\nv_lshl_add_u32 v{vST}, v{t0}, 12, v{t2}\nv_add_u32 v{vST}, s{sA}, v{vST}")
        E(f"v_lshlrev_b32 v{t2}, 4, v{t1}\nv_lshl_add_u32 v{vO4}, v{t0}, 3, v{t2}")
        E(f"s_mul_i32 s{sA}, s{sW}, {SLOT}\nv_add_u32 v{vKR}, s{sA}, v{vPOS}")
        for g in self.arena_consts(): E(g)
    def arena_fix(self, VV):
        n = self.o.get("numa", -1)
        assert self.o.get("nrace", NRACE) == 1
        ld = f"buffer_load_dword v{VV}, v174, {s(WS,4)}, 0 offen sc1"
        chk = f"v_sub_u32 v{VV}, v{VV}, v{vTK}\nv_cmp_lt_u32 vcc, 7, v{VV}"
        Ls, Lb = self.E.label("VT"), self.E.label("VB")
        self.tail.append(f"{Ls}:\ns_mov_b32 s{sF}, 0x100000\n{Ls}_l:\ns_sleep 4\n{ld}\ns_waitcnt vmcnt(0)\n{chk}\ns_nop 1"
                         f"\ns_cbranch_vccz {Lb}\ns_sub_u32 s{sF}, s{sF}, 1\ns_cmp_lg_u32 s{sF}, 0\ns_cbranch_scc1 {Ls}_l\ns_branch {Lb}")
        va = [chk + f"\ns_cbranch_vccnz {Ls}\n@{Lb}", f"v_lshrrev_b32 v{VV+1}, 2, v{VV}", f"v_and_b32 v{VV}, 1, v{VV}",
              f"v_cmp_ne_u32 vcc, v{VV}, v{VV+1}\ns_bcnt1_i32_b64 s64, vcc\ns_cmp_ge_u32 s64, 32\ns_cselect_b32 s64, 1, 0",
              f"v_xor_b32 v{VV}, s64, v{VV+1}", f"v_lshlrev_b32 v{VV}, 13, v{VV}",
              f"s_lshr_b32 s65, s{sW}, 1\ns_add_u32 s65, s65, s{sR}\ns_max_u32 s65, s65, 2\ns_sub_u32 s65, s65, 2",
              f"s_lshl_b32 s65, s65, 2\ns_lshl_b32 s64, s{sR}, 2", f"v_readlane_b32 s64, v{VV}, s64", f"v_readlane_b32 s65, v{VV}, s65"]
        r = []
        if self.stamps: r.append(f"v_writelane_b32 v{vTS}, s64, 62")
        if n >= 0:
            r += [f"s_lshr_b32 s64, s{sR}, 3\ns_xor_b32 s64, s64, {n}\ns_lshl_b32 s64, s64, 13",
                  f"s_lshr_b32 s65, s{sW}, 1\ns_add_u32 s65, s65, s{sR}\ns_sub_u32 s65, s65, 2", f"s_bfe_u32 s65, s65, 0x10003\ns_xor_b32 s65, s65, {n}\ns_lshl_b32 s65, s65, 13"]
        own = [sXB, sHme, sKP, sOme, sTP, sTC, sWP, sWC] + [sT16 + i for i in range(8)]
        r += ["\n".join(f"s_add_u32 s{x}, s{x}, s64" for x in own[k:k + 2]) for k in range(0, 16, 2)]
        r += [f"s_cmp_eq_u32 s{sKT}, 0\ns_cselect_b32 s64, s64, s65\ns_cselect_b32 s65, 0, s65",
              f"s_add_u32 s{sHAL}, s{sHAL}, s65\ns_add_u32 s{sKC}, s{sKC}, s64\ns_add_u32 s{sKVme}, s{sKVme}, s64"]
        return va + [r]
    def arena_consts(self):
        NREP = self.o.get("nrep", 4)
        r = [f"s_mul_i32 s{sAR}, s{sR}, {ASTR}\ns_add_u32 s{sAR}, s{sAR}, {ARENA}",
             f"s_lshr_b32 s{sB}, s{sW}, 1\ns_mul_i32 s{sA}, s{sB}, {ASTR}\ns_add_u32 s{sA}, s{sA}, s{sAR}",
             f"s_sub_u32 s{sA}, s{sA}, {2*ASTR}",
             f"s_mul_i32 s{sXB}, s{sW}, {80*KB}\ns_add_u32 s{sXB}, s{sXB}, s{sAR}",
             f"s_lshl_b32 s{sC}, s{sJ}, 14\ns_and_b32 s{sD}, s{sJ}, 3\ns_lshl_b32 s{sD}, s{sD}, 10\ns_add_u32 s{sC}, s{sC}, s{sD}\ns_lshl_b32 s{sHme}, s{sW}, 18\ns_add_u32 s{sHme}, s{sHme}, s{sC}",
             f"s_add_u32 s{sHme}, s{sHme}, s{sAR}\ns_and_b32 s{sD}, s{sW}, 1\ns_lshl_b32 s{sHAL}, s{sD}, 19",
             f"s_add_u32 s{sHAL}, s{sHAL}, s{sC}\ns_add_u32 s{sHAL}, s{sHAL}, s{sA}\ns_add_u32 s{sHAL}, s{sHAL}, {A_KV1}\ns_lshl_b32 s{sC}, s{sJ}, 1",
             f"s_add_u32 s{sKC}, s{sC}, s{sD}\ns_lshl_b32 s{sKC}, s{sKC}, 7\ns_add_u32 s{sKC}, s{sKC}, s{sA}",
             f"s_add_u32 s{sKC}, s{sKC}, {A_KVF}\ns_add_u32 s{sKP}, s{sC}, s{sB}\ns_lshl_b32 s{sKP}, s{sKP}, 7",
             f"s_add_u32 s{sKP}, s{sKP}, s{sAR}\ns_add_u32 s{sKP}, s{sKP}, {A_KVF}\ns_add_u32 s{sKVme}, s{sKP}, 32",
             f"s_add_u32 s{sC}, s{sR}, s{sB}\ns_mov_b32 s{sHAL+1}, {256*KB}\ns_cmp_lt_u32 s{sC}, 2\ns_cselect_b32 s{sHAL}, s{sWQ}, s{sHAL}\n"
             f"s_cselect_b32 s{sHAL+1}, {5*KB}, s{sHAL+1}\ns_cselect_b32 s{sKVme}, s{sKVme}, s{sKC}\ns_cselect_b32 s{sKC}, s{sKP}, s{sKC}\ns_cselect_b32 s{sKT}, 0, 2",
             f"s_lshr_b32 s{sD}, s{sJ}, 2\ns_lshl_b32 s{sOme}, s{sD}, 14\ns_add_u32 s{sOme}, s{sOme}, s{sXB}",
             f"s_add_u32 s{sA}, s{sAR}, {A_CNT}\ns_lshl_b32 s{sC}, s{sB}, 2\ns_add_u32 s{sC}, s{sC}, s{sD}",
             f"s_lshl_b32 s{sC}, s{sC}, 7\ns_add_u32 s{sTP}, s{sA}, s{sC}\ns_lshl_b32 s{sC}, s{sTH}, 2",
             f"s_add_u32 s{sC}, s{sC}, s{sW}\ns_lshl_b32 s{sC}, s{sC}, 7\ns_add_u32 s{sTC}, s{sA}, s{sC}",
             f"s_and_b32 s{sD}, s{sNB}, {NREP-1}\ns_lshl_b32 s{sD}, s{sD}, 10",
             f"s_add_u32 s{sA}, s{sA}, {32*128}\ns_lshl_b32 s{sC}, s{sTH}, 1\ns_add_u32 s{sC}, s{sC}, s{sB}",
             f"s_lshl_b32 s{sC}, s{sC}, 7\ns_add_u32 s{sWP}, s{sA}, s{sC}\ns_lshl_b32 s{sC}, s{sW}, 7",
             f"s_add_u32 s{sWC}, s{sA}, s{sC}\ns_add_u32 s{sWC}, s{sWC}, s{sD}"]
        for i in range(4):
            r += [f"s_add_u32 s{sA}, s{sW}, {1+i}\ns_bfe_u32 s{sB}, s{sA}, 0x10001\ns_and_b32 s{sC}, s{sA}, 1",
                  f"s_lshl_b32 s{sC}, s{sC}, 8\ns_add_u32 s{sC}, s{sC}, s{sAR}\ns_lshl_b32 s{sD}, s{sTH}, 1",
                  f"s_add_u32 s{sB}, s{sB}, s{sD}\ns_mul_i32 s{sT16+i}, s{sB}, {80*KB}\ns_add_u32 s{sT16+i}, s{sT16+i}, s{sC}",
                  f"s_lshl_b32 s{sB}, s{sB}, 2\ns_add_u32 s{sB}, s{sB}, s{sW}\ns_lshl_b32 s{sB}, s{sB}, 16\ns_add_u32 s{sT16H+i}, s{sB}, s{sC}"]
        return r
    def tile_addrs(self, d, t):
        r = []
        for i in range(3):
            r += [f"v_add_u32 v{t}, {64*i}, v0", f"v_mul_u32_u24 v{t+1}, 6554, v{t}", f"v_lshrrev_b32 v{t+1}, 16, v{t+1}",
                  f"v_mul_u32_u24 v{t+1}, {1280 - 160}, v{t+1}", f"v_lshl_add_u32 v{d+i}, v{t}, 4, v{t+1}"]
        return r + [f"v_lshrrev_b32 v{t}, 5, v0", f"v_lshl_add_u32 v{d+2}, v{t}, 28, v{d+2}"]
    def stat_loads(self, idx, t):
        return [(f"s_and_b32 s{sC}, s{sTC}, 0xffffe000\ns_add_u32 s{sC}, s{sC}, {(A_ST - A_CNT + idx*16*KB) & 0xffffffff}\n" if q == 0 else "") +
                f"buffer_load_dwordx2 {v(t+2*q,2)}, v{vST}, {s(WS,4)}, s{sC} offen offset:{1024*q} sc1" for q in range(4)]
    def stat_ops(self, t):
        return [f"v_add_f32 v{t}, v{t}, v{t+2}", f"v_add_f32 v{t+1}, v{t+1}, v{t+3}", f"v_add_f32 v{t+4}, v{t+4}, v{t+6}", f"v_add_f32 v{t+5}, v{t+5}, v{t+7}",
              f"v_add_f32 v{t}, v{t}, v{t+4}", f"v_add_f32 v{t+1}, v{t+1}, v{t+5}", f"v_mov_b32 v{t+2}, v{t}", f"v_mov_b32 v{t+3}, v{t+1}",
              f"v_permlane32_swap_b32 v{t+2}, v{t}", f"v_permlane32_swap_b32 v{t+3}, v{t+1}",
              f"v_add_f32 v{t}, v{t}, v{t+2}", f"v_add_f32 v{t+1}, v{t+1}, v{t+3}",
              f"v_fma_f32 v{t}, v{t+1}, 0, v{t}",
              f"v_mul_f32 v{t}, {f2u(-1/640)}, v{t}", f"v_mul_f32 v{t+1}, {f2u(1/640)}, v{t+1}",
              f"v_fma_f32 v{t+1}, -v{t}, v{t}, v{t+1}", f"v_cvt_pk_bf16_f32 v{vNM}, v{t}, v{t}", f"v_max_f32 v{t+1}, 0, v{t+1}",
              f"v_mov_b32 v{vNM+1}, v{vNM}", f"v_add_f32 v{vIV}, {f2u(EPS)}, v{t+1}", f"v_mov_b32 v{vNM+2}, v{vNM}",
              f"v_rsq_f32 v{vRSTD}, v{vIV}", f"v_mov_b32 v{vNM+3}, v{vNM}"]
    def cs_loads(self, base, stride, ntile, dst):
        g = []
        for t in range(ntile):
            p = ""
            if t == 0: p = f"s_mul_i32 s{sD}, s{sJ}, {stride}\ns_add_u32 s{sD}, s{sD}, {base}\n"
            if t == 4: p = f"s_add_u32 s{sD}, s{sD}, 4096\n"
            g.append(p + f"buffer_load_dwordx4 {R(dst+4*t,4)}, v{vL16}, {s(WS,4)}, s{sD} offen offset:{1024*(t%4)} sc1")
        return g
    def xloads(self, base):
        g = []
        for ks in range(40):
            t = f"s_add_u32 s{sE_}, s{sXB}, {base + 16*KB*(ks >> 3) + 1024*(ks & 4)}\n" if ks % 4 == 0 else ""
            g.append(t + f"buffer_load_dwordx4 {a(self.xr(ks),4)}, v{vL16}, {s(WS,4)}, s{sE_} offen offset:{1024*(ks%4)} sc1")
        return g
    def xstart(self, xl, base):
        n = self.o.get("xt", 2)
        for g in xl[:n]: self.E(g)
        for k in range(2): self.touch(sXB, sHX, base + 8 * KB + 16 * KB * k)()
        for g in xl[n:NX0]: self.E(g)
        self.window(7 if base == self.xt(2) else 8)
    def xt(self, i): return A_X[i] or 0
    def fine(self, tag, sl):
        st = self.o.get("fine_" + tag, 0)
        if st and sl and sl % st == 0: self.stamp(f"{tag}@{sl}")
    def wstream(self, items, pos0, allw, ring, ev=None, valu=None, pre=None, budget=32, tag=""):
        E = self.E; LA = 6
        ev = ev or {}; valu = list(valu or []); pre = pre or {}
        f = pos0; over = 0; defer = []
        for sl, it in enumerate(items):
            self.fine(tag, sl)
            for g in pre.get(sl, []): self.do(g)
            if it[0] == "cs":
                assert not any(isinstance(x, str) and f"v{vNM+3}," in x for _, x in valu), "stats not ready"
                E(f"v_mfma_f32_32x32x16_bf16 {v(it[1],16)}, {R(it[2],4)}, {v(vNM,4)}, {v(it[1],16)}")
                c0 = E.cost - 8
            else:
                acc, ks, first = it
                if f % 2 == 0: E.need(regs(R(ring + 4 * (f % LA), 4)) | regs(R(ring + 4 * ((f + 1) % LA), 4)) | regs(a(self.xr(ks), 4)))
                E(f"v_mfma_f32_32x32x16_bf16 {v(acc,16)}, {R(ring+4*(f%LA),4)}, {a(self.xr(ks),4)}, {'0' if first else v(acc,16)}")
                c0 = E.cost - 8
                if f + LA < len(allw): E(self.wread(ring + 4 * (f % LA), allw[f + LA]))
                f += 1
            for g in ev.get(sl, []): self.do(g)
            if defer and self.o.get("verbose") == 1: print("   ", tag, "deferred op at slot", sl)
            if defer: self.do(defer.pop(0))
            lim = budget - (4 if f % 2 == 0 else 0)
            while valu and valu[0][0] <= sl:
                x = valu[0][1]
                if isinstance(x, list): defer += x; valu.pop(0); continue
                c = sum(8 if y.startswith(TRANS) else 4 for y in x.split("\n"))
                if E.cost - c0 + c > lim and not (c > 16 and E.cost - c0 <= 12): break
                valu.pop(0); E(x)
            over += max(0, E.cost - c0 - lim)
        if self.o.get("verbose"): print(tag, "over budget", over, "left valu", len(valu))
        valu += [(0, defer)]
        assert max(list(ev) + list(pre) + [0]) < len(items), (max(list(ev) + list(pre)), len(items))
        for _, x in valu:
            for y in (x if isinstance(x, list) else [x]): self.do(y)
    def wstream16(self, acc, cs, pos0, allw, ring, ev=None, valu=None, pre=None, budget=16, vend=84, tag=""):
        E = self.E
        ev = ev or {}; valu = list(valu or []); pre = pre or {}
        cost = lambda x: sum(8 if y.startswith(TRANS) else 4 for y in x.split("\n"))
        q = []; over = 0
        for sl in range(84):
            self.fine(tag, sl)
            for g in pre.get(sl, []): self.do(g)
            for g in ev.get(sl, []): q += self.flat(g)
            for hf in range(2):
                rd = None
                if sl < 80:
                    sp, n, t = sl >> 3, (sl >> 1) & 3, sl & 1
                    f = pos0 + (sl & ~1) + hf; w = ring + 4 * (f % 6); d = acc[n >> 1] + 8 * t + 4 * (n & 1)
                    xr = self.xr(4 * sp + 2 * t + hf)
                    if hf == 0:
                        nd = regs(a(xr, 4)) | regs(a(self.xr(4 * sp + 2 * t + 1), 4))
                        if t == 0: nd |= regs(v(w, 4)) | regs(v(ring + 4 * ((f + 1) % 6), 4))
                        E.need(nd)
                    assert n or t or hf or any(x.startswith(f"buffer_load_dwordx4 {a(self.xr(4 * sp + 3), 4)},") for x in E.out[self.x0:])
                    E(f"v_mfma_f32_16x16x32_bf16 {v(d,4)}, {v(w,4)}, {a(xr,4)}, {'0' if sp == 0 and hf == 0 else v(d,4)}")
                    if t == 1 and f + 6 < len(allw): rd = self.wread(w, allw[f + 6])
                else:
                    assert not any(isinstance(x, str) and f"v{vNM+3}," in x for _, x in valu), "stats not ready"
                    n, t = sl - 80, hf; d = acc[n >> 1] + 8 * t + 4 * (n & 1)
                    E(f"v_mfma_f32_16x16x16_bf16 {v(d,4)}, {v(cs+2*n,2)}, {v(vNM+2*t,2)}, {v(d,4)}")
                c0 = E.cost - 8
                if rd: E(rd)
                while q and (E.cost - c0 <= 8 or (len(q) > 4 and E.cost - c0 <= 12)):
                    self.do(q.pop(0))
                lim = budget - (4 if sl % 2 == 1 and hf == 1 else 0)
                left = sum(cost(x) for _, x in valu if isinstance(x, str)); gaps = max(1, 2 * (vend - sl) - hf)
                mind = left - (gaps - 1) * self.vrate if valu and valu[0][0] <= sl else 0
                done = 0
                while valu and valu[0][0] <= sl:
                    x = valu[0][1]
                    if isinstance(x, list):
                        for y in x: q += self.flat(y)
                        valu.pop(0); continue
                    c = cost(x)
                    if E.cost - c0 + c > lim and done >= mind: break
                    valu.pop(0); E(x); done += c
                over += max(0, E.cost - c0 - lim)
        if self.o.get("verbose"): print(tag, "over budget", over, "left valu", len(valu), "left q", len(q))
        assert max(list(ev) + list(pre) + [0]) < 84
        for _, x in valu:
            for y in (x if isinstance(x, list) else [x]): self.do(y)
        for y in q: self.do(y)
    @staticmethod
    def pair_items(acc, cs):
        return [(acc[sl & 1], sl >> 1, sl < 2) for sl in range(80)] + [("cs", acc[0], cs), ("cs", acc[1], cs + 4)]
    def p1(self, L):
        E = self.E; o = self.o
        ACC = [48, 64, 80, 96]; RING = 112; CS = 136
        KA, KB_, KV1, VA, VB = 152, 156, 160, 164, 168
        QA0, QB0, QA1, QB1 = 172, 176, 180, 184
        self.Q = (QA0, QB0, QA1, QB1)
        MK = self.MK = 188; VAD = self.VAD = [196, 205]; K1 = self.K1 = AG
        self.WOF = [AG + 160 + 4 * f for f in range(24)] + [244]
        self.xr = lambda ks: 4 * ks
        xl = self.xloads(self.xt(2 * L))
        allw = [1024 * f for f in range(80)] + [1024 * f for f in range(80, 160)]
        tok = []
        if L == 0:
            dm = [self.dma4(sWQ, 16 * KB * c, 16 * KB * c, tok) for c in range(10)]
            wdm = list(dm)
            self.x_bounce(152, wdm)
            c0 = 10 - len(wdm)
            assert o.get("f1chk", 8) >= 7
            assert c0 <= 4
            self.window(9)
            if o.get("s2when", 2): E.wait(vm=self.S.tok2); E("s_barrier")
            s2cs, s2st, s2last = self.s2r or self.S.s2_read()
            self.stamp("st S2 read")
            late = sum(dm[2:], [])
        else:
            E.wait(vm=self.wq_tok[1]); E("s_barrier")
            for f in range(6): E(self.wread(RING + 4 * f, allw[f]))
            self.poll_block(sWC, 512 + 4 * (L - 1), 16)
            self.stamp("L1 P1 synced")
            self.xstart(xl, self.xt(2 * L))
            resops = []; late = self.wq_late; tok = self.wq_tok
        def ready(c): return lambda: (E.wait(vm=tok[c]), E("s_barrier"))
        if L == 0:
            ready(0)()
            for f in range(6): E(self.wread(RING + 4 * f, allw[f]))
        ev = {}; pre = {}
        so = self.stat_ops(152)
        if L == 0:
            for c in range(1, 5): pre[16 * c - 6] = [ready(c)]
            nA = o.get("lateA", 9)
            seq = []
            for c in range(c0, nA):
                seq += dm[c]
                if c == 4: seq += self.cs_loads(CSQ, 4 * KB, 4, CS)
            spread(ev, seq, 0, o.get("lateS", 26) / 10)
            spread(ev, s2st, o.get("s2s0", 0), o.get("s2sS", 10) / 10)
            spread(ev, self.masks(), 31, 3)
            lateB = sum(dm[nA:], [])
            if o.get("vpos", 13) < 100: ev.setdefault(o.get("vpos", 13), []).append(f"buffer_load_dword v156, v174, {s(WS,4)}, 0 offen sc1")
            so = [(1, x) for x in so[6:] + s2cs] + [(1, [s2last])] + [(50, x) for x in self.arena_fix(156)]
        else:
            pre[26] = [ready(len(tok) - 1)]
            assert len(tok) >= 7
            spread(ev, xl[NX0:] , 0, o.get('xS', 20) / 10)
            if o.get("early", 0): ev.setdefault(11, []).append(self.statsig)
            spread(ev, self.stat_loads(2, 152), 39, 2)
            spread(ev, late, o.get('lt0', 60), (81.9 - o.get('lt0', 60)) / max(len(late), 1))
            so = [(66, x) for x in so]
        if L: spread(ev, [self.touch(sWO, sH8, 16 * KB * k) for k in range(2)], 61, 14)
        if L == 0: pre[74] = [ready(5)]
        self.wstream(self.pair_items(ACC[:2], CS), 0, allw, RING, ev, so, pre, tag=f"A{L}")
        self.stamp(f"L{L} P1 passA")
        def epi(G0, G1, dst, sc, at):
            r = []
            for G in range(G0, G1):
                b = ACC[0] + 4 * G
                r += [(at, f"v_mul_f32 v{b+i}, v{sc[G-G0]}, v{b+i}") for i in range(4)]
                r += [(at, f"v_cvt_pk_bf16_f32 v{dst[G-G0]+i}, v{b+2*i}, v{b+2*i+1}") for i in range(2)]
            return r
        kvg = A_KV1
        sKVme = sHme
        st = {}
        vKW = 214; vQS = 215
        stA = [f"buffer_store_dwordx4 {v(reg,4)}, v{vPOS}, {s(WS,4)}, s{sA} offen offset:{off} sc1" for reg, off in ((KA, 0), (KB_, 1024), (VA, 2048))]
        stA[0] = f"s_add_u32 s{sA}, s{sKVme}, {kvg}\ns_add_u32 s{sB}, s{sA}, 4096\n" + stA[0]
        stA.append(lambda: st.__setitem__("A", E(f"buffer_store_dwordx4 {v(KV1,4)}, v{vPOS}, {s(WS,4)}, s{sB} offen sc1")))
        ldsA = [f"ds_write_b128 v{vKW}, {v(reg,4)} offset:{off}" for reg, off in ((KA, 0), (KB_, 1024), (VA, 2048), (KV1, 4096 + 128))]
        putB = [lambda: st.__setitem__("B", E(f"s_add_u32 s{sA}, s{sKVme}, {kvg}\nbuffer_store_dwordx4 {v(VB,4)}, v{vPOS}, {s(WS,4)}, s{sA} offen offset:3072 sc1")),
                f"ds_write_b128 v{vKW}, {v(VB,4)} offset:3072"]
        qs = 20 ** -0.5 * math.log2(math.e)
        va = epi(0, 8, [KA, KA + 2, KV1, KB_, KB_ + 2, VA, VA + 2, KV1 + 2], [vRSTD] * 8, 1)
        for k, G in reversed(list(enumerate((1, 4, 6, 7)))): va.insert(6 * (G + 1), (1, [stA[k]]))
        va += [(1, f"v_add_u32 v{vKW}, {8*SLOT}, v{vKR}"), (1, f"v_mul_f32 v{vQS}, {f2u(qs)}, v{vRSTD}")]
        t0, t1, t2 = 216, 217, 218
        cst = []
        for i in range(8):
            cst += [f"v_cndmask_b32 v{t0}, 0, -1, {s(sMASK+4*i,2)}", f"v_cndmask_b32 v{t1}, 0, -1, {s(sMASK+4*i+2,2)}",
                    f"v_and_b32 v{t0}, 0xffff, v{t0}", f"v_lshl_or_b32 v{MK+i}, v{t1}, 16, v{t0}"]
        cst += [f"v_lshrrev_b32 v{t0}, 5, v0", f"v_bfe_u32 v{t1}, v0, 2, 2", f"v_lshl_add_u32 v{t0}, v{t0}, 2, v{t1}",
                f"v_bfe_u32 v{t1}, v0, 4, 1", f"v_and_b32 v{t2}, 3, v0", f"v_lshl_add_u32 v{t1}, v{t1}, 2, v{t2}",
                f"v_and_b32 v{t2}, 1, v0", f"v_lshlrev_b32 v219, 2, v{t2}", f"v_xor_b32 v219, v219, v{t0}", f"v_lshlrev_b32 v219, 4, v219",
                f"v_lshl_add_u32 v219, v{t2}, 9, v219", f"v_bfe_u32 v220, v0, 1, 1", f"v_lshl_add_u32 v220, v220, 3, v219", f"v_add_u32 v221, {4096+128+8}, v219",
                f"v_mov_b32 v224, 128", f"v_mov_b32 v225, {SLOT}", f"v_subrev_u32 v226, v{vPOS}, v{vKR}"]
        cst += [f"s_lshl_b32 s{sC}, s{sW}, 7\ns_add_u32 s{sC}, s{sC}, {ONES+128}\nv_mov_b32 v227, s{sC}"]
        for hd in range(2):
            cst += [f"v_add_u32 v222, {2048+1024*hd}, v220", f"v_cmp_gt_u32 vcc, 4, v{t1}\nv_cndmask_b32 v222, v221, v222, vcc", f"v_add_u32 v222, v226, v222",
                    f"v_cmp_gt_u32 {s(sC,2)}, 4, v{t1}\nv_cmp_eq_u32 vcc, {4+hd}, v{t1}\ns_or_b64 vcc, vcc, {s(sC,2)}\nv_cndmask_b32 v{VAD[hd]}, v227, v222, vcc\nv_cndmask_b32 v223, v224, v225, vcc"]
            cst += [f"v_add_u32 v{VAD[hd]+i}, v{VAD[hd]+i-1}, v223" for i in range(1, 9)]
        cst = [f"v_mov_b32 v{228+i}, 0x3f803f80" for i in range(4)] + cst
        n1 = o.get("cst1", 50)
        va += [(1, x) for x in cst[:n1]]
        va += epi(8, 10, [VB, VB + 2], [vRSTD] * 2, 43) + [(43, putB)] + epi(10, 12, [QA0, QA0 + 2], [vQS] * 2, 43)
        va += [(43, x) for x in cst[n1:]]
        for i in range(9):
            va += [(52, f"v_accvgpr_write_b32 {R(K1+4*i+2)}, s{sFL+i}"), (52, f"v_accvgpr_write_b32 {R(K1+4*i+3)}, 0")]
        va += [(52, f"v_mov_b32 v{q+3}, 0") for q in (QA1, QB1)] + [(52, f"v_mov_b32 v{164+i}, -1") for i in range(4)]
        items = [(ACC[2], k, k == 0) for k in range(40)] + [("cs", ACC[2], CS + 8)] + [(ACC[3], k, k == 0) for k in range(40)] + [("cs", ACC[3], CS + 12)]
        ev = {}; pre = {}
        if L == 0:
            pre[10] = [ready(6)]
            endA = E.vm_n
            pre[26] = [lambda: E.wait(vm=endA), ready(7), self.S.flag2]
            pre[43] = [ready(9)]
            spread(ev, lateB, 0, 2.5)
        else:
            if o.get("early", 0):
                pre[2] = [self.nan_net(ACC[0], xl, self.pair_items(ACC[:2], CS) + items[:2], allw, RING, 512, self.stat_loads(2, 152) + self.stat_ops(152))]
                va = [(max(2, sl), x) for sl, x in va]
            pre[26] = [ready(9)]
        spread(ev, ldsA + [f"ds_write_b128 v{vL16}, v[228:231] offset:{ONES}", f"ds_write_b128 v{vL16}, v[228:231] offset:{ONES+1024}"], 26, 2)
        wo = []
        for f in range(25):
            t = f"s_add_u32 s{sT0+1}, s{sWO}, {1024*f}\n" if f % 4 == 0 else ""
            wo.append(t + f"buffer_load_dwordx4 {R(self.WOF[f],4)}, v{vL16}, {s(WS,4)}, s{sT0+1} offen offset:{1024*(f%4)} sc1")
        if L == 0:
            pass
        nwo = o.get("wob", 14)
        if L == 0:
            nwo = 0
        else:
            spread(ev, wo[:nwo], o.get('wo0', 13), (o.get('wo1', 57) - o.get('wo0', 13)) / nwo)
        self.wo_late = wo[nwo:]
        spread(ev, [self.touch(sWGU, sH16, 32 * KB * k) for k in range(2)], 40, 16)
        sa, pa, ca, sb = o.get("sa", 34), o.get("pa", 50), o.get("ca", 70), o.get("sb", 79)
        if L == 0: sa, pa, ca = o.get("sa0", sa), o.get("pa0", pa), o.get("ca0", ca)
        ev.setdefault(sa, []).append(self.signal(sKP, 8 * L, lambda: st["A"]))
        ev.setdefault(pa, []).append(self.poll_issue(sKC, 8 * L))
        pre.setdefault(ca, []).append(self.poll_check(sKC, 8 * L, f"s{sKT}"))
        hal = []; self.haltok = []
        for t in range(2):
            p = f"s_mul_i32 s{sB}, s{sW}, {2*SLOT}\n" if t == 0 else ""
            hal.append(p + f"s_add_u32 m0, s{sB}, {t*SLOT}\ns_add_u32 s{sE_}, s{sHAL}, {s(sHAL+1) if t else 0}\nbuffer_load_dwordx4 v{vL16}, {s(WS,4)}, s{sE_} offen sc1 lds")
            hal += [f"buffer_load_dwordx4 v{vL16}, {s(WS,4)}, s{sE_} offen offset:{1024*i} sc1 lds" for i in (1, 2)]
            hal.append(f"s_add_u32 m0, s{sB}, {t*SLOT+4096+128}\ns_add_u32 s{sE_}, s{sE_}, 4096\nbuffer_load_dwordx4 v{vL16}, {s(WS,4)}, s{sE_} offen sc1 lds")
        lasth = hal[-1]; hal[-1] = lambda: self.haltok.append(E(lasth))
        assert ca > 44
        spread(ev, hal, ca, o.get("halS", 10) / 10)
        ev.setdefault(sb, []).append(self.signal(sKP, 8 * L + 4, lambda: st["B"]))
        self.wstream(items, 80, allw, RING, ev, va, pre, budget=o.get("budB", 32), tag=f"B{L}")
        self.stamp(f"L{L} P1 passB")
        if L == 0: E(self.S.vpoll_issue(241, 242))
        for _, x in epi(12, 15, [QA1, QB0, QB0 + 2], [vQS] * 3, 0): E(x)
        E(f"s_mov_b32 vcc_lo, -1\ns_mov_b32 vcc_hi, 0")
        for i in range(2):
            E(f"v_cndmask_b32 v{QB1+i}, v{QA1+i}, v{QA1+3}, vcc")
            E(f"v_cndmask_b32 v{QA1+i}, 0, v{QA1+i}, vcc")
        for k in range(6):
            for hd, (q0, q1, k0) in enumerate(((QA0, QA1, KA), (QB0, QB1, KB_))):
                qa, ka = (q0 + k, k0 + k) if k < 4 else (q1 + k - 4, KV1 + k - 4)
                E(f"v_dot2_f32_bf16 v{216+hd}, v{qa}, v{ka}, {'0' if k == 0 else v(216+hd)}")
        E(f"s_mov_b32 s{sA}, {f2u(-1e38)}")
        for hd, q1 in enumerate((QA1, QB1)): E(f"v_cvt_pk_bf16_f32 v{q1+2}, s{sA}, -v{216+hd}")
    def att_defs(self):
        QA0, QB0, QA1, QB1 = self.Q
        d = self
        d.kread = lambda hd, i, dst: f"ds_read_b128 {R(dst,4)}, v{vKR} offset:{i*SLOT + 1024*hd}"
        d.k1read = lambda i: f"ds_read_b64 {R(self.K1+4*i,2)}, v{vKR} offset:{i*SLOT + 4096 + 128}"
        def smf(hd, i, dst, k0, C="0"):
            q0, q1 = (QA0, QA1) if hd == 0 else (QB0, QB1)
            return [f"v_mfma_f32_32x32x16_bf16 {v(dst,16)}, {R(k0,4)}, {v(q0,4)}, {C}",
                    f"v_mfma_f32_32x32x16_bf16 {v(dst,16)}, {R(self.K1+4*i,4)}, {v(q1,4)}, {v(dst,16)}"]
        d.smf = smf
        d.vreads = lambda hd, i, vf: [f"ds_read_b64_tr_b16 {R(vf+2*k,2)}, v{self.VAD[hd]+i} offset:{128*k}" for k in range(4)]
        def expops(src, p):
            r = []
            for k in range(8):
                r += [f"v_exp_f32 v{src+2*k}, v{src+2*k}", f"v_exp_f32 v{src+2*k+1}, v{src+2*k+1}"]
                if k: r.append(f"v_cvt_pk_bf16_f32 v{p+k-1}, v{src+2*k-2}, v{src+2*k-1}")
            r.append(f"v_cvt_pk_bf16_f32 v{p+7}, v{src+14}, v{src+15}")
            return r
        d.expops = expops
        d.mergeops = lambda dg, old: [f"v_cndmask_b32 v{dg+k}, v{old+k}, v{dg+k}, {s(sMASK+2*k,2)}" for k in range(16)]
        d.splitops = lambda p, pm: [f"v_bfi_b32 v{pm+k}, v{self.MK+k}, 0, v{p+k}" for k in range(8)] + [f"v_and_b32 v{p+k}, v{self.MK+k}, v{p+k}" for k in range(8)]
        d.pv = lambda O, vf, p, first: [f"v_mfma_f32_32x32x16_bf16 {v(O,16)}, {R(vf,4)}, {v(p,4)}, {'0' if first else v(O,16)}",
                                        f"v_mfma_f32_32x32x16_bf16 {v(O,16)}, {R(vf+4,4)}, {v(p+4,4)}, {v(O,16)}"]
    def fallback(self, hd):
        E = Emit(); O = self.O[hd]
        S, SD, NEG, P, PM, MX = 48, 64, 214, 230, 238 - 0, 246
        PM = 152 + 8
        K0 = AG + 136; VF = AG + 140; SP = AG + 104
        E.raw(f"FB{hd}:")
        E("s_waitcnt vmcnt(0) lgkmcnt(0)"); E.settle()
        for k in range(32): E(f"v_accvgpr_write_b32 {R(SP+k)}, v{48+k}")
        E(f"v_mov_b32 v{MX+2}, 0xff7fffff")
        for i in (8, 7, 6, 5, 4, 3, 2, 1, 0):
            E(self.kread(hd, i, K0))
            for x in self.smf(hd, i, SD if i == 8 else S, K0): E(x)
            if i == 8: continue
            src = S
            if i == 0:
                for x in self.mergeops(SD, S): E(x)
                src = SD
            for k in range(8): E(f"v_max3_f32 v{MX+2}, v{src+2*k}, v{src+2*k+1}, v{MX+2}")
        E(f"v_mov_b32 v{MX+3}, v{MX+2}\nv_permlane32_swap_b32 v{MX+3}, v{MX+2}\nv_max_f32 v{MX+2}, v{MX+2}, v{MX+3}")
        for k in range(16): E(f"v_sub_f32 v{NEG+k}, 0, v{MX+2}")
        for k in range(16): E(f"v_add_f32 v{SD+k}, v{NEG}, v{SD+k}")
        for x in self.expops(SD, P) + self.splitops(P, PM): E(x)
        for x in self.vreads(hd, 8, VF) + self.pv(O, VF, P, True): E(x)
        E.settle()
        for x in self.vreads(hd, 0, VF) + self.pv(O, VF, PM, False): E(x)
        for i in range(7, 0, -1):
            E.settle()
            E(self.kread(hd, i, K0))
            for x in self.vreads(hd, i, VF) + self.smf(hd, i, S, K0, v(NEG, 16)) + self.expops(S, P) + self.pv(O, VF, P, False): E(x)
        E.settle()
        for k in range(32): E(f"v_accvgpr_read_b32 v{48+k}, {R(SP+k)}")
        E.settle()
        for f, q in enumerate(EARLY):
            E(f"s_add_u32 s{sF}, s{sWD}, {1024*f}\nbuffer_load_dwordx4 {R(q,4)}, v{vL16}, {s(WS,4)}, s{sF} offen sc1")
        E.drain(); E.settle()
        E(f"s_setpc_b64 {s(sRET,2)}")
        return E.text()
    def p2(self, L):
        E = self.E; o = self.o
        self.att_defs()
        S = [48, 64]; SD = 80; P = [96, 104]; PM = 112; O = self.O = [120, 136]; D = 152; TT = 168
        K0 = [AG + 36, AG + 40, AG + 44]; VF = [AG + 48, AG + 56, AG + 64]
        self.OF = {}
        for st in range(2):
            for i in range(4): self.OF[(st, i)] = AG + 72 + 16 * st + 4 * i
        for st in range(2, 5):
            for i in range(4): self.OF[(st, i)] = (108 + 12 * i if i < 3 else 176) + 4 * (st - 2)
        if L == 0: self.tail += [self.fallback(0), self.fallback(1)]
        obase = self.obase = A_O
        E.wait(vm=self.haltok[0], ds=E.ds_n); E("s_barrier")
        self.stamp(f"L{L} halo in")
        ev = {}; pre = {}
        if L == 0: pre[o.get("f2c", 6)] = [self.S.vpoll_check(241, 242, 4)]
        dm = []
        for c in range(6): dm += self.dma4(sWGU, 16 * KB * c, 64 * KB + 16 * KB * c)
        hb = []
        for t in range(2):
            hb.append(f"s_mul_i32 s{sD}, s{sW}, {2*SLOT}\ns_add_u32 m0, s{sD}, {t*SLOT}\ns_add_u32 s{sE_}, s{sHAL}, {s(sHAL+1) if o.get('ovl', 3) and t else t*5*KB}\nbuffer_load_dwordx4 v{vL16}, {s(WS,4)}, s{sE_} offen offset:3072 sc1 lds")
        lasth = hb[-1]; hb[-1] = lambda: self.haltok.append(E(lasth))
        pb, cb = o.get("pb", 4), o.get("cb", 16)
        nl = len(self.wo_late)
        n1 = min(nl, int((cb - (0 if L else o.get('f2c', 6))) / 2.1))
        spread(ev, self.wo_late[:n1], 0 if L else o.get("f2c", 6), 2.1 if L else 1.8)
        ev.setdefault(pb, []).append(self.poll_issue(sKC, 8 * L + 4))
        pre.setdefault(cb, []).append(self.poll_check(sKC, 8 * L + 4, f"s{sKT}"))
        spread(ev, hb, cb, 1)
        self.pool = Pool(EARLY); self.mk_wdload()
        rest = self.wo_late[n1:] + dm + self.wd(o.get("wd2" if L else "wd20", 7 if L else 0))
        spread(ev, rest, cb + 2, (o.get("bgend", 68) - cb - 2) / len(rest))
        spread(ev, [self.touch(sWGU, sH16, 32 * KB * k) for k in range(2, 5)] + [self.touch(sWD, sH8, 0)], 10, 14)
        spread(ev, [f"s_and_b32 s{sA}, s{sJ}, 3\ns_lshl_b32 s{sB}, s{sA}, 10\ns_add_u32 s{sB}, s{sB}, s{sOme}\ns_add_u32 s{sB}, s{sB}, {obase}\n"
                    f"s_add_u32 s{sC}, s{sB}, 4096\nbuffer_store_dwordx4 v[164:167], v{vL16}, {s(WS,4)}, s{sC} offen sc1",
                    f"s_lshl_b32 s{sA}, s{sJ}, 9\ns_add_u32 s{sA}, s{sA}, s{sXB}\ns_add_u32 s{sA}, s{sA}, {obase + 64*KB}\n"
                    f"buffer_store_dwordx2 v[164:165], v{vO4}, {s(WS,4)}, s{sA} offen sc1"] + self.xpoison(2 * L + 1, 164), min(o.get("poi", 5), 20), 2)
        if o.get("senth", 0) and o.get("poiw", 1) == 0:
            assert o.get("ovl", 3) == 3
            spread(ev, [(f"s_add_u32 s{sP}, s{sHme}, {HB + L*HB_STRIDE + 2048}\n" if k == 0 else "") +
                        f"buffer_store_dwordx4 v[164:167], v{vL16}, {s(WS,4)}, s{sP} offen offset:{1024*k} sc1" for k in range(4)], o.get("poih", 20), 4)
        SO = self.SO = [sH8, sH16, sHX, sD]
        self.ol = ol = lambda st, i, va, off: f"buffer_load_dwordx4 {R(self.OF[(st,i)],4)}, v{va}, {s(WS,4)}, s{SO[i]} offen offset:{off} sc1"
        ev.setdefault(45, []).append(f"s_lshl_b32 s{sE_}, s{sW}, 14\ns_add_u32 s{sE_}, s{sE_}, {obase}\n" + "\n".join(f"s_add_u32 s{SO[i]}, s{sE_}, s{sT16+i}" for i in range(4)))
        self.aq = [self.poll_check(sTC, self.T(0, L), 8)] + sum([[ol(0, i, vU, 0), ol(1, i, vU, 2048)] for i in range(4)], [])
        oca = o.get("oca", 99)
        if oca < 70:
            pre.setdefault(oca, []).append(self.aq[0])
            spread(ev, self.aq[1:], oca, (70 - oca) / 8); self.aq = []
        st = {}
        def check(hd):
            def fn():
                Lo, Lb = E.label("FO"), E.label("FR")
                E(f"v_subrev_u32 v{TT}, {hex(63 << 23)}, v{O[hd]+12}\nv_cmp_le_u32 vcc, {hex(128 << 23)}, v{TT}\ns_cbranch_vccnz {Lo}")
                E.place(Lb)
                self.tail.append(f"{Lo}:\ns_call_b64 {s(sRET,2)}, FB{hd}\ns_branch {Lb}")
            return fn
        def norm(hd):
            r = [check(hd), f"v_rcp_f32 v{TT}, v{O[hd]+12}"]
            r += [f"v_mul_f32 v{O[hd]+k}, v{TT}, v{O[hd]+k}" for k in range(12)]
            r += [f"v_cvt_pk_bf16_f32 v{D+8*hd+k}, v{O[hd]+2*k}, v{O[hd]+2*k+1}" for k in range(6)]
            return r
        def putOA():
            st["a"] = E(f"buffer_store_dwordx4 {v(D,4)}, v{vL16}, {s(WS,4)}, s{sB} offen sc1")
        slot = [0]
        def weave(mf, mems, valu):
            n = len(mf); mems = list(mems); valu = list(valu)
            for k, m in enumerate(mf):
                self.fine(f"t{L}", slot[0])
                for g in pre.pop(slot[0], []): self.do(g)
                E(m)
                for _ in range(-(-len(mems) // (n - k))): E(mems.pop(0))
                for g in ev.pop(slot[0], []): self.do(g)
                for _ in range(-(-len(valu) // (n - k))): self.do(valu.pop(0))
                slot[0] += 1
        seq = [(hd, i) for hd in range(2) for i in (7, 6, 5, 4, 3, 2, 1, 8, 0)]
        kslot = {x: K0[n % 3] for n, x in enumerate(seq)}
        kq = list(seq)
        def knext():
            if not kq: return []
            hd, i = kq.pop(0)
            return [self.kread(hd, i, kslot[(hd, i)])] + ([self.k1read(i)] if hd == 0 else [])
        for x in knext() + knext() + knext(): E(x)
        for x in self.smf(0, 7, S[0], kslot[(0, 7)]): E(x)
        pend = []; vn = 0
        sa_, pa_ = o.get("osa", 56), o.get("opa", 69)
        ev.setdefault(pa_, []).append(self.poll_issue(sTC, self.T(0, L)))
        ev.setdefault(sa_, []).append(self.signal(sTP, self.T(0, L), lambda: st["a"]))
        for hd in range(2):
            for n in range(8):
                mf = []; mems = []; va = []
                if n < 6:
                    mf += self.smf(hd, 6 - n, S[(n + 1) % 2], kslot[(hd, 6 - n)]); mems += knext()
                    mf += pend
                elif n == 6:
                    mf += self.smf(hd, 8, SD, kslot[(hd, 8)]) + self.smf(hd, 0, S[1], kslot[(hd, 0)]); mems += knext()
                    mf += pend
                else:
                    mf += pend
                    if hd == 0: mf += self.smf(1, 7, S[0], kslot[(1, 7)])
                    mems += knext() + knext()
                    if hd == 0: pre.setdefault(slot[0] + len(mf), []).append(lambda: (E.wait(vm=self.haltok[1]), E("s_barrier")))
                    if hd == 0 and o.get("ovl", 3) and not (L and o.get("ovl", 3) >= 2): ev.setdefault(slot[0] + len(mf), []).append(self.signal(sKVme, 16 + 4 * L, lambda: self.haltok[1]))
                if n < 7:
                    vf = VF[vn % 3]; vn += 1
                    vr = self.vreads(hd, 7 - n, vf)
                    mems = mems + vr
                    va += self.expops(S[n % 2], P[n % 2])
                    pend = self.pv(O[hd], vf, P[n % 2], n == 0)
                    if hd == 1 and n == 1: va = norm(0) + [putOA] + va
                else:
                    v8, v0_ = VF[vn % 3], VF[(vn + 1) % 3]; vn += 2
                    mems = mems + self.vreads(hd, 8, v8) + self.vreads(hd, 0, v0_)
                    va += self.mergeops(SD, S[1]) + self.expops(SD, P[1]) + self.splitops(P[1], PM)
                    pend = self.pv(O[hd], v8, P[1], False) + self.pv(O[hd], v0_, PM, False)
                weave(mf, mems, va)
            if hd == 0: self.stamp(f"L{L} att a")
        weave(pend, [], [])
        assert not ev and not pre, (ev, pre, slot)
        for x in norm(1): self.do(x)
        E(f"s_mov_b32 vcc_lo, -1\ns_mov_b32 vcc_hi, 0")
        for k in range(2): E(f"v_cndmask_b32 v{D+4+k}, v{D+12+k}, v{D+4+k}, vcc")
        E(f"buffer_store_dwordx4 {v(D+8,4)}, v{vL16}, {s(WS,4)}, s{sC} offen sc1")
        self.otok = E(f"buffer_store_dwordx2 {v(D+4,2)}, v{vO4}, {s(WS,4)}, s{sA} offen sc1")
        self.stamp(f"L{L} att done")
    def reduce_and_publish(self, ACC, steps, red, PT, xidx, wimm, final, bg, post, bg0=1, bgstep=5, vals=None):
        E = self.E
        bg = list(bg); rd = []; self.nextbg = 0
        sal = []
        if not final:
            sal = [f"s_add_u32 s{sA}, s{sT16+3}, {self.xt(xidx)}",
                   f"s_lshl_b32 s{sC}, s{sJ}, 2\ns_add_u32 s{sC}, s{sC}, s{sW}", f"s_lshl_b32 s{sC}, s{sC}, 7\ns_and_b32 s{sP}, s{sTC}, 0xffffe000",
                   f"s_add_u32 s{sC}, s{sC}, s{sP}\ns_add_u32 s{sC}, s{sC}, {(A_ST - A_CNT + xidx*16*KB) & 0xffffffff}"]
        AW = [PT + 56 + i for i in range(3)]
        for i in range(3): E(f"v_add_u32 v{AW[i]}, {red}, v{vRW+i}")
        E(f"v_add_u32 v{vT}, {red}, v{vRW+3}")
        order = [(q, nt) for nt in range(5) for q in range(3)]
        ns = len(steps); nr = 5 * ns; lag = self.o.get("wlag", 5)
        wat = {nr * i + ns * (nt + 1) - 1 + lag: f"ds_write_b128 v{AW[i]}, {v(ACC[i]+4*nt,4)} offset:{1024*nt}" for i in range(3) for nt in range(5)}
        bar = min(max(wat) + self.o.get("rbar", 4), 4 * nr - 1)
        bgq = []
        for i in range(4):
            left = [x for x in range(nr * i, nr * (i + 1)) if x not in wat]
            for nt in range(5):
                for si, (W, act) in enumerate(steps):
                    k = nr * i + ns * nt + si; d = ACC[i] + 4 * nt
                    E(f"v_mfma_f32_16x16x32_bf16 {v(d,4)}, {R(W[nt],4)}, {R(act[i],4)}, {v(d,4)}")
                    if k in wat: E(wat[k])
                    elif vals and i < 3 and len([x for x in left if x >= k]) <= len(vals[i + 1]): self.do(vals[i + 1].pop(0))
                    elif k == bar:
                        E.drain(vm=False); E("s_barrier")
                        rd = [f"ds_read_b128 {v(PT+20*q+4*n_,4)}, v{vT} offset:{1024*(5*q+n_)}" for q, n_ in order]
                    elif rd:
                        E(rd.pop(0))
                        if rd: E(rd.pop(0))
                    elif i == 0 and sal: E(sal.pop(0))
                    else:
                        if not bgq and bg and i >= bg0 and k >= self.nextbg: bgq = self.flat(bg.pop(0)); self.nextbg = k + bgstep
                        if bgq: self.do(bgq.pop(0))
            assert not (vals and i < 3 and vals[i + 1])
        for x in bgq: self.do(x)
        for x in rd: E(x)
        assert not sal
        self.stamp("  mfma done")
        D = ACC[0]
        if final:
            stores = [f"ds_write_b128 v{vRM}, {v(D,4)}", f"ds_write_b128 v{vRM}, {v(D+4,4)} offset:16", f"ds_write_b64 v{vRM5}, {v(D+8,2)} offset:128"]
        else:
            stores = [f"buffer_store_dwordx4 {v(D,4)}, v{vXW}, {s(WS,4)}, s{sA} offen sc1", f"buffer_store_dwordx4 {v(D+4,4)}, v{vXW}, {s(WS,4)}, s{sA} offen offset:512 sc1",
                      f"buffer_store_dwordx2 {v(D+8,2)}, v{vXW5}, {s(WS,4)}, s{sA} offen sc1"]
        for nts in ((0, 1), (2, 3), (4,)):
            ks = [4 * nt + e for nt in nts for e in (0, 2)]
            for k in ks: E(f"v_pk_add_f32 {v(PT+k,2)}, {v(PT+k,2)}, {v(PT+20+k,2)}")
            for k in ks: E(f"v_pk_add_f32 {v(vRES+k,2)}, {v(vRES+k,2)}, {v(PT+40+k,2)}")
            for k in ks: E(f"v_pk_add_f32 {v(vRES+k,2)}, {v(vRES+k,2)}, {v(PT+k,2)}")
            for k in ks: E(f"v_cvt_pk_bf16_f32 v{D+k//2}, v{vRES+k}, v{vRES+k+1}")
            if final: E(stores.pop(0))
        if final:
            for i in range(3): E(f"ds_read_b128 {v(D+12+4*i,4)}, v{vNM+3} offset:{1024*i}")
            for i in range(3): E(f"buffer_store_dwordx4 {v(D+12+4*i,4)}, v{vNM+i}, {s(OUT,4)}, s{sRM} offen {FINAL}")
            return
        for x in stores: data = E(x)
        early = self.o.get("early", 0)
        if early: E(f"buffer_atomic_add v{vONE}, v{vSR}, {s(WS,4)}, s{sWP} offen offset:{wimm} sc1")
        self.stamp("  stored")
        T = PT
        E(f"v_pk_add_f32 {v(T,2)}, {v(vRES,2)}, {v(vRES+2,2)}\nv_pk_mul_f32 {v(T+2,2)}, {v(vRES,2)}, {v(vRES,2)}")
        E(f"v_pk_fma_f32 {v(T+2,2)}, {v(vRES+2,2)}, {v(vRES+2,2)}, {v(T+2,2)}")
        for k in range(4, 20, 2):
            E(f"v_pk_add_f32 {v(T,2)}, {v(T,2)}, {v(vRES+k,2)}\nv_pk_fma_f32 {v(T+2,2)}, {v(vRES+k,2)}, {v(vRES+k,2)}, {v(T+2,2)}")
        E(f"v_add_f32 v{T}, v{T}, v{T+1}\nv_add_f32 v{T+1}, v{T+2}, v{T+3}")
        for sw in ("v_permlane32_swap_b32", "v_permlane16_swap_b32"):
            E(f"v_mov_b32 v{T+2}, v{T}\nv_mov_b32 v{T+3}, v{T+1}")
            E(f"{sw} v{T+2}, v{T}\n{sw} v{T+3}, v{T+1}")
            E(f"v_add_f32 v{T}, v{T}, v{T+2}\nv_add_f32 v{T+1}, v{T+1}, v{T+3}")
        last = E(f"buffer_store_dwordx2 {v(T,2)}, v{vSW}, {s(WS,4)}, s{sC} offen sc1")
        E("s_barrier")
        n0 = self.o.get("post0", 5); n1 = n0 + self.o.get("post1", 4)
        post = list(bg) + list(post)
        for g in post[:n0]: self.do(g)
        self.window(3 if wimm < 512 else 5)
        if not early: self.signal(sWP, wimm, last, vSR)()
        self.stamp("  signalled")
        self.preissued = False
        pp = self.o.get("pp", 99)
        for k, g in enumerate(post[n0:]):
            if early and n0 + k == pp: E(self.poll_issue(sWC, wimm)); self.preissued = True
            self.do(g)
        self.statsig = self.signal(sWP, wimm + 8, last, vSR)
    def mk_wdload(self):
        self.WDF = {}
        def wdload(f):
            def fn():
                q = self.pool.get(); self.WDF[f] = q
                t = f"s_add_u32 s{sT0+1}, s{sWD}, {1024*f}\n" if f % 4 == 0 else ""
                assert t or self.E.lastw[f"s{sT0+1}"] == f"s_add_u32 s{sT0+1}, s{sWD}, {1024*(f & ~3)}"
                return self.E(t + f"buffer_load_dwordx4 {R(q,4)}, v{vL16}, {s(WS,4)}, s{sT0+1} offen offset:{1024*(f%4)} sc1")
            return fn
        self.wdq = [wdload(f) for f in range(60)]
    def wd(self, n):
        r = self.wdq[:n]; self.wdq = self.wdq[n:]
        return r
    def p3(self, L):
        E = self.E; o = self.o
        ACC = [48, 68, 88, vRES]
        W = lambda st: [self.WOF[5 * st + nt] for nt in range(5)]
        self.pool.add([188 + 4 * i for i in range(7)])
        SO = self.SO; ol = self.ol; vU4 = 172
        for g in self.aq: self.do(g)
        E(f"s_mul_i32 s{sE_}, s{sW}, {14*KB}\ns_sub_u32 s{sE_}, {60*KB}, s{sE_}\nv_add_u32 v{vU4}, s{sE_}, v{vU}")
        for i in range(4): E(f"s_add_u32 s{SO[i]}, s{SO[i]}, 4096")
        E("s_barrier")
        bl = [[ol(2, i, vU, 0), ol(3, i, vU, 2048), ol(4, i, vU4, 0)] for i in range(4)]
        vals = [self.validate([self.OF[(st, i)] for st in range(2, 5)], bl[i], 168) for i in range(4)]
        q = sum(bl, [])
        self.window(2)
        if o.get("obw", 1): E.wait(vm=self.otok)
        for _ in range(o.get("obn", 3)): E(q.pop(0))
        k = 0
        for i in range(4):
            for st in range(2):
                for nt in range(5):
                    d = ACC[i] + 4 * nt
                    E(f"v_mfma_f32_16x16x32_bf16 {v(d,4)}, {R(W(st)[nt],4)}, {R(self.OF[(st,i)],4)}, {'0' if st == 0 and i < 3 else v(d,4)}")
                    if k % o.get("obs", 3) == 0 and q: E(q.pop(0))
                    elif k >= 40 - len(vals[0]) and k < 39: self.do(vals[0].pop(0))
                    k += 1
        assert not q
        for g in vals[0]: self.do(g)
        self.stamp(f"L{L} P3 synced")
        steps = [(W(st), [self.OF[(st, i)] for i in range(4)]) for st in range(2, 5)]
        self.CSG = 152
        bg = self.wd(o.get("wd3b", 6))
        self.vals = vals
        def freewo(): self.pool.add([176, 180, 184] + [AG + 104 + 4 * i for i in range(14)] + self.WOF[:10] + self.WOF[24:])
        self.gu_late = []
        self.gu_tok = []
        for c in range(6, 10): self.gu_late += self.dma4(sWGU, 16 * KB * c, 16 * KB * (c - 6), self.gu_tok)
        n = o.get("gu3", 16)
        post = [freewo] + self.gu_late[:n]
        self.gu_late = self.gu_late[n:]
        self.reduce_and_publish(ACC, steps, 0, 108 - 16 + 16, 2 * L + 1, 4 * L, False, bg, post, vals=vals)
        self.stamp(f"L{L} P3 done")
    def p4_32(self, L):
        E = self.E; o = self.o
        ACC = [[48, 64], [80, 96]]; RING = 112; HP = 136; T = 144
        allw = [1024 * ((64 + f) % 160) for f in range(240)]
        for f in range(6): E(self.wread(RING + 4 * f, allw[f]))
        self.poll_block(sWC, 4 * L, 16)
        self.stamp(f"L{L} P4 synced")
        self.xr = lambda ks: 4 * ks if ks < 26 else 200 + 4 * (ks - 26)
        xl = self.xloads(self.xt(2 * L + 1))
        self.xstart(xl, self.xt(2 * L + 1))
        c1 = -2 * 0.7978845608028654 * math.log2(math.e)
        so = self.stat_ops(T) + [f"v_mul_f32 v{vC1}, {f2u(c1)}, v{vRSTD}", f"v_mul_f32 v{T}, v{vRSTD}, v{vRSTD}", f"v_mul_f32 v{vC2}, {f2u(0.044715)}, v{vC1}",
                                 f"v_mul_f32 v{vC2}, v{T}, v{vC2}"]
        st = self.htok = {}
        def put(p, k):
            if k == 0: return f"buffer_store_dwordx4 {v(HP,4)}, v{vL16}, {s(WS,4)}, s{sA} offen sc1"
            return lambda: st.__setitem__(p, E(f"buffer_store_dwordx4 {v(HP+4,4)}, v{vL16}, {s(WS,4)}, s{sA} offen offset:1024 sc1"))
        haddr = lambda p: [f"s_add_u32 s{sA}, s{sJ}, {p}\ns_and_b32 s{sA}, s{sA}, 3\ns_lshl_b32 s{sA}, s{sA}, 11", f"s_and_b32 s{sB}, s{sHme}, 0xffffe000\ns_add_u32 s{sA}, s{sA}, s{sB}"]
        def epi(p):
            g, u = ACC[p % 2]; r = [haddr(p)]
            for k0 in range(0, 16, 4):
                ks = range(k0, k0 + 4)
                r += [f"v_mul_f32 v{T+k%4}, v{g+k}, v{g+k}" for k in ks]
                r += [f"v_fma_f32 v{T+k%4}, v{T+k%4}, v{vC2}, v{vC1}" for k in ks]
                r += [f"v_mul_f32 v{T+k%4}, v{T+k%4}, v{g+k}" for k in ks]
                r += [f"v_exp_f32 v{T+k%4}, v{T+k%4}" for k in ks]
                r += [f"v_mul_f32 v{g+k}, v{g+k}, v{u+k}" for k in ks]
                r += [f"v_fma_f32 v{T+k%4}, v{T+k%4}, v{vIV}, v{vIV}" for k in ks]
                r += [f"v_rcp_f32 v{T+k%4}, v{T+k%4}" for k in ks]
                r += [f"v_mul_f32 v{g+k}, v{g+k}, v{T+k%4}" for k in ks]
                r += [f"v_cvt_pk_bf16_f32 v{HP+k//2}, v{g+k}, v{g+k+1}" for k in ks if k % 2 == 0]
                if k0 in (4, 12): r.append([put(p, k0 // 8)])
            return [(2, x) for x in r]
        def epi_pk(p):
            g, u = ACC[p % 2]; r = []
            for k0 in range(0, 16, 8):
                ks = range(k0, k0 + 8, 2)
                r += [f"v_pk_mul_f32 {v(T+k%8,2)}, {v(g+k,2)}, {v(g+k,2)}" for k in ks]
                r += [f"v_pk_fma_f32 {v(T+k%8,2)}, {v(T+k%8,2)}, {v(vC1,2)}, {v(vC1,2)} op_sel:[0,1,0] op_sel_hi:[1,1,0]" for k in ks]
                r += [f"v_pk_mul_f32 {v(T+k%8,2)}, {v(T+k%8,2)}, {v(g+k,2)}" for k in ks]
                r += [f"v_exp_f32 v{T+k}, v{T+k}" for k in range(8)]
                r += [f"v_pk_mul_f32 {v(g+k,2)}, {v(g+k,2)}, {v(u+k,2)}" for k in ks]
                r += [f"v_pk_fma_f32 {v(T+k%8,2)}, {v(T+k%8,2)}, {v(vIV,2)}, {v(vIV,2)} op_sel_hi:[1,0,0]" for k in ks]
                r += [f"v_rcp_f32 v{T+k}, v{T+k}" for k in range(8)]
                r += [f"v_pk_mul_f32 {v(g+k,2)}, {v(g+k,2)}, {v(T+k%8,2)}" for k in ks]
                r += [f"v_cvt_pk_bf16_f32 v{HP+k//2}, v{g+k}, v{g+k+1}" for k in ks]
                r.append(put(p, k0 // 8))
            return r
        self.HF = {}
        def hload(stp, i, fixed=None):
            p, jj = divmod(stp, 4)
            if fixed is not None:
                self.HF[(stp, i)] = fixed
                return f"s_add_u32 s{sE_}, s{sT16H+i}, {A_H + 16*KB*jj + 2048*((p + jj) & 3)}\nbuffer_load_dwordx4 {R(fixed,4)}, v{vU}, {s(WS,4)}, s{sE_} offen sc1"
            def fn():
                q = self.pool.get(); self.HF[(stp, i)] = q
                E(f"buffer_load_dwordx4 {R(q,4)}, v{vU}, {s(WS,4)}, s{sE_} offen sc1")
            return (f"s_add_u32 s{sE_}, s{sT16H+i}, {A_H + 16*KB*jj + 2048*((p + jj) & 3)}", fn)
        self.hload = hload
        nv = o.get("bud4", 32)
        ev = {}; spread(ev, xl[NX0:], 0, o.get('xS', 20) / 10)
        if o.get("early", 0): ev.setdefault(11, []).append(self.statsig)
        spread(ev, self.stat_loads(2 * L + 1, T), 39, 2)
        csl = self.cs_loads(CSG, 6 * KB, 6, self.CSG)
        spread(ev, csl[:2], 47, 2)
        pre = {}
        if o.get("ovl", 3) and not (L and o.get("ovl", 3) >= 2):
            ev.setdefault(51, []).append(f"s_sub_u32 s{sH8}, 15, s{sR}\ns_min_u32 s{sH8}, s{sH8}, 2\n" + self.poll_issue(sKP, 16 + 4 * L))
            pre[76] = [self.poll_check(sKP, 16 + 4 * L, f"s{sH8}")]
        spread(ev, self.gu_late + self.wd(min(o.get("wd40", 10), 10 - len(self.gu_late))), 61, 2)
        spread(ev, [self.touch(sWGU, sH16, 32 * KB * 5), self.touch(sWD, sH8, 16 * KB), self.touch(sWGU, sH16, 32 * KB * 6)], 45, 15)
        pv = [(30, f"v_mov_b32 v{HP+i}, -1") for i in range(4)] + [(30, self.xpoison(2, HP))] if L == 0 and o.get("early", 0) else []
        sh = o.get("senth", 0)
        if sh and o.get("poiw", 1) == 1:
            assert o.get("ovl", 3) == 3
            pv += [(40, f"v_mov_b32 v{HP+4+i}, -1") for i in range(4)]
            spread(ev, [(f"s_add_u32 s{sB}, s{sHme}, {HB + L*HB_STRIDE + 2048}\n" if k == 0 else "") +
                        f"buffer_store_dwordx4 {v(HP+4,4)}, v{vL16}, {s(WS,4)}, s{sB} offen offset:{1024*k} sc1" for k in range(4)], o.get("poi0", 74), o.get("poiS", 2))
        self.wstream(self.pair_items(ACC[0], self.CSG), 0, allw, RING, ev, pv + [(65, x) for x in so], pre, tag=f"p0{L}")
        self.stamp(f"L{L} P4 p0")
        ev = {}; tok = []; fl = []
        for c in range(10, 15): fl += self.dma4(sWGU, 16 * KB * c, 64 * KB + 16 * KB * (c - 10), tok)
        spread(ev, fl, 2, 2.15)
        net = [self.nan_net(ACC[0][0], xl, self.pair_items(ACC[0], self.CSG) + self.pair_items(ACC[1], 0)[:2], allw, RING, 4 * L, self.stat_loads(2 * L + 1, T) + so)] if o.get("early", 0) else []
        n1 = min(o.get("wd41", 13), len(self.pool.free))
        spread(ev, csl[2:] + self.wd(n1), 46, 35 / max(n1 + 4, 16))
        spread(ev, [self.touch(sWGU, sH16, 32 * KB * 7), self.touch(sWD, sH8, 32 * KB), self.touch(sWD, sH8, 48 * KB)], 6, 24)
        self.wstream(self.pair_items(ACC[1], self.CSG + 8), 80, allw, RING, ev, epi(0),
                     {2: net + ["s_barrier"], 10: [lambda: (E.wait(vm=self.gu_tok[3]), E("s_barrier"))], 74: [lambda: (E.wait(vm=tok[4]), E("s_barrier"))]}, budget=nv, tag=f"p1{L}")
        self.stamp(f"L{L} P4 p1")
        ev = {}; pre = {}
        for ks in range(40): ev.setdefault(2 * ks + 1, []).append(lambda ks=ks: self.pool.put(AG + self.xr(ks)))
        n2 = min(len(self.wdq), o.get("wd42", 20))
        spread(ev, self.wd(n2), 3, 2.1)
        hp, hc = o.get("hp0", 22), o.get("hc0", 44)
        ev.setdefault(o.get("hs0", 2), []).append(self.signal(sTP, self.T(2, L), lambda: st[0]))
        if L == 0: spread(ev, [self.touch(sWQ, sH16, 32 * KB * k) for k in range(2)], 30, 30)
        ev.setdefault(hp, []).append(self.poll_issue(sTC, self.T(2, L)))
        pre.setdefault(hc, []).append(self.poll_check(sTC, self.T(2, L), 8))
        spread(ev, [hload(stp, i) for stp in range(4) for i in range(4)], max(hc + 1, 3 + 2.1 * n2), 2.2)
        if not sh: ev.setdefault(o.get("hs1", 81), []).append(self.signal(sTP, self.T(3, L), lambda: st[1]))
        self.wstream(self.pair_items(ACC[0], self.CSG + 16), 160, allw, RING, ev, epi(1), pre, budget=nv, tag=f"p2{L}")
        self.stamp(f"L{L} P4 p2")
        for x in haddr(2): E(x)
        ep = epi_pk(2)
        for k, x in enumerate(ep):
            self.do(x)
            if k == o.get("hp1", 70) and not sh: E(self.poll_issue(sTC, self.T(3, L)))
            elif k % 12 == 6 and k < 40 and self.wdq and self.pool.free: self.wd(1)[0]()
        self.stamp(f"L{L} P4 done")
    def p4(self, L):
        E = self.E; o = self.o
        if not o.get('m16', 1): return self.p4_32(L)
        ACC = [[48, 64], [80, 96]]; RING = 112; HP = 136; T = 144
        allw = [1024 * ((64 + f) % 160) for f in range(240)]
        for f in range(6): E(self.wread(RING + 4 * f, allw[f]))
        self.poll_block(sWC, 4 * L, 16)
        self.stamp(f"L{L} P4 synced")
        self.xr = lambda ks: 4 * ks if ks < 26 else 200 + 4 * (ks - 26)
        base = self.xt(2 * L + 1); xl = []
        for k in range(40):
            t = f"s_add_u32 s{sE_}, s{sXB}, {base + 16*KB*(k >> 3) + 1024*(k & 4)}\n" if k % 4 == 0 else ""
            xl.append(t + f"buffer_load_dwordx4 {a(self.xr(k),4)}, v{vU}, {s(WS,4)}, s{sE_} offen offset:{2048*(k & 1) + 128*(k & 2)} sc1")
        self.x0 = len(E.out); self.vrate = o.get("vrate", 6)
        self.xstart(xl, base)
        c1 = -2 * 0.7978845608028654 * math.log2(math.e)
        CC = [(vC1, vIV), (248, 254)]
        stl = [(f"s_and_b32 s{sC}, s{sTC}, 0xffffe000\ns_add_u32 s{sC}, s{sC}, {(A_ST - A_CNT + (2*L+1)*16*KB) & 0xffffffff}\n" if q == 0 else "") +
               f"buffer_load_dwordx2 {v(T+2*q,2)}, v{HP}, {s(WS,4)}, s{sC} offen offset:{1024*(q & 1) + 64*(q & 2)} sc1" for q in range(4)]
        sta = [f"v_lshrrev_b32 v{HP}, 4, v0", f"v_lshlrev_b32 v{HP}, 11, v{HP}", f"v_and_b32 v{HP+1}, 15, v0", f"v_lshl_add_u32 v{HP}, v{HP+1}, 3, v{HP}",
               f"v_lshl_add_u32 v{HP}, s{sW}, 8, v{HP}"]
        so = [f"v_add_f32 v{T+e}, v{T+e}, v{T+e+2}" for e in (0, 1, 4, 5)]
        for sw in ("v_permlane32_swap_b32", "v_permlane16_swap_b32"):
            so += [f"v_mov_b32 v{T+e+2}, v{T+e}" for e in (0, 1, 4, 5)] + [f"{sw} v{T+e+2}, v{T+e}" for e in (0, 1, 4, 5)]
            so += [f"v_add_f32 v{T+e}, v{T+e}, v{T+e+2}" for e in (0, 1, 4, 5)]
        so2 = []
        for t in range(2):
            b_ = T + 4 * t; C, IV = CC[t]
            so += [f"v_mul_f32 v{b_}, {f2u(-1/640)}, v{b_}", f"v_cvt_pk_bf16_f32 v{vNM+2*t}, v{b_}, v{b_}", f"v_cvt_pk_bf16_f32 v{vNM+2*t+1}, v{b_}, v{b_}"]
            so2 += [f"v_mul_f32 v{b_+1}, {f2u(1/640)}, v{b_+1}", f"v_fma_f32 v{b_+1}, -v{b_}, v{b_}, v{b_+1}", f"v_max_f32 v{b_+1}, 0, v{b_+1}",
                    f"v_add_f32 v{IV}, {f2u(EPS)}, v{b_+1}", f"v_rsq_f32 v{b_+2}, v{IV}", f"v_rcp_f32 v{b_+3}, v{IV}", f"v_mul_f32 v{C}, {f2u(c1)}, v{b_+2}",
                    f"v_mul_f32 v{C+1}, {f2u(0.044715)}, v{C}", f"v_mul_f32 v{C+1}, v{b_+3}, v{C+1}"]
        so += so2
        st = self.htok = {}
        def put(p, k):
            if k == 0: return f"buffer_store_dwordx4 {v(HP,4)}, v{vU}, {s(WS,4)}, s{sA} offen sc1"
            return lambda: st.__setitem__(p, E(f"buffer_store_dwordx4 {v(HP+4,4)}, v{vU}, {s(WS,4)}, s{sA} offen offset:256 sc1"))
        haddr = lambda p: [f"s_add_u32 s{sA}, s{sJ}, {p}\ns_and_b32 s{sA}, s{sA}, 3\ns_lshl_b32 s{sA}, s{sA}, 11", f"s_and_b32 s{sB}, s{sHme}, 0xffffe000\ns_add_u32 s{sA}, s{sA}, s{sB}"]
        def epi(p):
            g, u = ACC[p % 2]; r = [haddr(p)]
            for k0 in range(0, 16, 4):
                ks = range(k0, k0 + 4); vC1, vIV = CC[k0 >> 3]; vC2 = vC1 + 1
                r += [f"v_mul_f32 v{T+k%4}, v{g+k}, v{g+k}" for k in ks]
                r += [f"v_fma_f32 v{T+k%4}, v{T+k%4}, v{vC2}, v{vC1}" for k in ks]
                r += [f"v_mul_f32 v{T+k%4}, v{T+k%4}, v{g+k}" for k in ks]
                r += [f"v_exp_f32 v{T+k%4}, v{T+k%4}" for k in ks]
                r += [f"v_mul_f32 v{g+k}, v{g+k}, v{u+k}" for k in ks]
                r += [f"v_fma_f32 v{T+k%4}, v{T+k%4}, v{vIV}, v{vIV}" for k in ks]
                r += [f"v_rcp_f32 v{T+k%4}, v{T+k%4}" for k in ks]
                r += [f"v_mul_f32 v{g+k}, v{g+k}, v{T+k%4}" for k in ks]
                r += [f"v_cvt_pk_bf16_f32 v{HP+k//2}, v{g+k}, v{g+k+1}" for k in ks if k % 2 == 0]
                if k0 in (4, 12): r.append([put(p, k0 // 8)])
            return [(2, x) for x in r]
        def epi_pk(p):
            g, u = ACC[p % 2]; r = []
            for k0 in range(0, 16, 8):
                ks = range(k0, k0 + 8, 2); vC1, vIV = CC[k0 >> 3]
                r += [f"v_pk_mul_f32 {v(T+k%8,2)}, {v(g+k,2)}, {v(g+k,2)}" for k in ks]
                r += [f"v_pk_fma_f32 {v(T+k%8,2)}, {v(T+k%8,2)}, {v(vC1,2)}, {v(vC1,2)} op_sel:[0,1,0] op_sel_hi:[1,1,0]" for k in ks]
                r += [f"v_pk_mul_f32 {v(T+k%8,2)}, {v(T+k%8,2)}, {v(g+k,2)}" for k in ks]
                r += [f"v_exp_f32 v{T+k}, v{T+k}" for k in range(8)]
                r += [f"v_pk_mul_f32 {v(g+k,2)}, {v(g+k,2)}, {v(u+k,2)}" for k in ks]
                r += [f"v_pk_fma_f32 {v(T+k%8,2)}, {v(T+k%8,2)}, {v(vIV,2)}, {v(vIV,2)} op_sel_hi:[1,0,0]" for k in ks]
                r += [f"v_rcp_f32 v{T+k}, v{T+k}" for k in range(8)]
                r += [f"v_pk_mul_f32 {v(g+k,2)}, {v(g+k,2)}, {v(T+k%8,2)}" for k in ks]
                r += [f"v_cvt_pk_bf16_f32 v{HP+k//2}, v{g+k}, v{g+k+1}" for k in ks]
                r.append(put(p, k0 // 8))
            return r
        self.HF = {}
        def hload(stp, i, fixed=None):
            p, jj = divmod(stp, 4)
            if fixed is not None:
                self.HF[(stp, i)] = fixed
                return f"s_add_u32 s{sE_}, s{sT16H+i}, {A_H + 16*KB*jj + 2048*((p + jj) & 3)}\nbuffer_load_dwordx4 {R(fixed,4)}, v{vU}, {s(WS,4)}, s{sE_} offen sc1"
            def fn():
                q = self.pool.get(); self.HF[(stp, i)] = q
                E(f"buffer_load_dwordx4 {R(q,4)}, v{vU}, {s(WS,4)}, s{sE_} offen sc1")
            return (f"s_add_u32 s{sE_}, s{sT16H+i}, {A_H + 16*KB*jj + 2048*((p + jj) & 3)}", fn)
        self.hload = hload
        nv = o.get("bud4", 32) // 2
        ev = {}; spread(ev, xl[NX0:], 0, o.get('xS', 20) / 10)
        if o.get("early", 0): ev.setdefault(11, []).append(self.statsig)
        spread(ev, stl, 27, 2)
        csl = self.cs_loads(CSG, 6 * KB, 6, self.CSG)
        spread(ev, csl[:2], 47, 2)
        pre = {}
        if o.get("ovl", 3) and not (L and o.get("ovl", 3) >= 2):
            ev.setdefault(51, []).append(f"s_sub_u32 s{sH8}, 15, s{sR}\ns_min_u32 s{sH8}, s{sH8}, 2\n" + self.poll_issue(sKP, 16 + 4 * L))
            pre[76] = [self.poll_check(sKP, 16 + 4 * L, f"s{sH8}")]
        spread(ev, self.gu_late + self.wd(min(o.get("wd40", 10), 10 - len(self.gu_late))), 61, 2)
        spread(ev, [self.touch(sWGU, sH16, 32 * KB * 5), self.touch(sWD, sH8, 16 * KB), self.touch(sWGU, sH16, 32 * KB * 6)], 45, 15)
        pv = [(30, f"v_mov_b32 v{HP+i}, -1") for i in range(4)] + [(30, self.xpoison(2, HP))] if L == 0 and o.get("early", 0) else []
        sh = o.get("senth", 0)
        if sh and o.get("poiw", 1) == 1:
            assert o.get("ovl", 3) == 3
            pv += [(40, f"v_mov_b32 v{HP+4+i}, -1") for i in range(4)]
            spread(ev, [(f"s_add_u32 s{sB}, s{sHme}, {HB + L*HB_STRIDE + 2048}\n" if k == 0 else "") +
                        f"buffer_store_dwordx4 {v(HP+4,4)}, v{vL16}, {s(WS,4)}, s{sB} offen offset:{1024*k} sc1" for k in range(4)], o.get("poi0", 74), o.get("poiS", 2))
        self.wstream16(ACC[0], self.CSG, 0, allw, RING, ev, [(4, x) for x in sta] + [(54, x) for x in so], pre, tag=f"p0{L}")
        self.stamp(f"L{L} P4 p0")
        ev = {}; tok = []; fl = []
        for c in range(10, 15): fl += self.dma4(sWGU, 16 * KB * c, 64 * KB + 16 * KB * (c - 10), tok)
        spread(ev, fl, 2, 2.15)
        net = [self.nan_net(ACC[0][0], xl, self.pair_items(ACC[0], self.CSG) + self.pair_items(ACC[1], 0)[:2], allw, RING, 4 * L, self.stat_loads(2 * L + 1, T) + so)] if o.get("early", 0) else []
        n1 = min(o.get("wd41", 13), len(self.pool.free))
        spread(ev, csl[2:] + self.wd(n1), 46, 35 / max(n1 + 4, 16))
        spread(ev, [self.touch(sWGU, sH16, 32 * KB * 7), self.touch(sWD, sH8, 32 * KB), self.touch(sWD, sH8, 48 * KB)], 6, 24)
        self.wstream16(ACC[1], self.CSG + 8, 80, allw, RING, ev, epi(0),
                     {2: net + ["s_barrier"], 10: [lambda: (E.wait(vm=self.gu_tok[3]), E("s_barrier"))], 74: [lambda: (E.wait(vm=tok[4]), E("s_barrier"))]}, budget=nv, vend=o.get("ve1", 70), tag=f"p1{L}")
        self.stamp(f"L{L} P4 p1")
        ev = {}; pre = {}
        for ks in range(40): pre.setdefault(8 * (ks >> 2) + 7 + ((ks >> 1) & 1), []).append(lambda ks=ks: self.pool.put(AG + self.xr(ks)))
        n2 = min(len(self.wdq), o.get("wd42", 20))
        spread(ev, self.wd(n2), 3, 2.1)
        hp, hc = o.get("hp0", 22), o.get("hc0", 44)
        ev.setdefault(o.get("hs0", 2), []).append(self.signal(sTP, self.T(2, L), lambda: st[0]))
        if L == 0: spread(ev, [self.touch(sWQ, sH16, 32 * KB * k) for k in range(2)], 30, 30)
        ev.setdefault(hp, []).append(self.poll_issue(sTC, self.T(2, L)))
        pre.setdefault(hc, []).append(self.poll_check(sTC, self.T(2, L), 8))
        spread(ev, [hload(stp, i) for stp in range(4) for i in range(4)], max(hc + 1, 3 + 2.1 * n2), 2.2)
        if not sh: ev.setdefault(o.get("hs1", 81), []).append(self.signal(sTP, self.T(3, L), lambda: st[1]))
        self.wstream16(ACC[0], self.CSG + 16, 160, allw, RING, ev, epi(1), pre, budget=nv, vend=o.get("ve2", 60), tag=f"p2{L}")
        self.stamp(f"L{L} P4 p2")
        for x in haddr(2): E(x)
        ep = epi_pk(2)
        for k, x in enumerate(ep):
            self.do(x)
            if k == o.get("hp1", 70) and not sh: E(self.poll_issue(sTC, self.T(3, L)))
            elif k % 12 == 6 and k < 40 and self.wdq and self.pool.free: self.wd(1)[0]()
        self.stamp(f"L{L} P4 done")
    def p5(self, L):
        E = self.E; o = self.o
        ACC = [48, 68, 88, vRES]
        E("s_barrier")
        ev = {}; pre = {}; sh = o.get("senth", 0); vals = None; val1 = {}
        if sh:
            r1 = [108 + 4 * i for i in range(7)] + [144 + 4 * i for i in range(7)] + [136, 140]
            l1 = [[self.hload(stp, i, r1.pop(0)) for i in range(4)] for stp in range(4, 8)]
            l2 = [[self.hload(stp, i, 176 + 16 * i + 4 * (stp - 8)) for stp in range(8, 12)] for i in range(4)]
            rl = lambda x: [y.replace(f"s{sE_}", f"s{sP}") for y in x]
            for k in range(4): val1[4 + k] = self.validate([self.HF[(4 + k, i)] for i in range(4)], rl(l1[k]), 172)
            vals = [self.validate([self.HF[(stp, i)] for stp in range(8, 12)], rl(l2[i]), 172) for i in range(4)]
            val1[8] = vals[0]
            rest = sum(l1, []) + self.wd(60)
            nl = o.get("h2late", 4)
            l2f = sum(l2, []); late2 = l2f[16 - nl:]
            h2s = o.get("h2s", 104)
            spread(ev, rest, o.get("h1s", 2), (h2s - 4) / len(rest))
            spread(ev, l2f[:16 - nl], h2s, (150 - h2s) / (16 - nl))
        else:
            self.pool.add([108 + 4 * i for i in range(7)] + [144 + 4 * i for i in range(8)])
            hc1 = o.get("hc1", 30)
            pre.setdefault(hc1, []).append(self.poll_check(sTC, self.T(3, L), 8))
            spread(ev, [self.hload(stp, i) for stp in range(4, 8) for i in range(4)] + self.wd(60), hc1, o.get('h1S', 32) / 10)
            ev.setdefault(o.get("hs2", 44), []).append(self.signal(sTP, self.T(4, L), self.htok[2]))
            hp, hc = o.get("hp2", 76), o.get("hc2", 112)
            ev.setdefault(hp, []).append(self.poll_issue(sTC, self.T(4, L)))
            pre.setdefault(hc, []).append(self.poll_check(sTC, self.T(4, L), 8))
            spread(ev, [self.hload(stp, i) for i in range(4) for stp in range(8, 12)], hc, o.get('h2S', 29) / 10)
        if L == 1:
            ta = self.tile_addrs(vNM, vC1) + [f"v_add_u32 v{vNM+3}, s{sLW}, v{vL16}"]
            spread(ev, [(lambda x="\n".join(ta[k:k + 2]): E(x)) for k in range(0, len(ta), 2)], 2, 2)
            spread(ev, [(lambda x=x: E(x)) for x in (f"s_or_b32 s{sA}, s{sR}, s{sJ}\ns_or_b32 s{sA}, s{sA}, s{sW}", f"s_cmp_eq_u32 s{sA}, 0\ns_cselect_b32 s{sA}, 0, {OOB}",
                        f"v_add_u32 v{vIV}, s{sA}, v{vSIG}\nv_mov_b32 v{vRSTD}, s0", f"s_mov_b32 s{sA}, {EPOCH}", f"buffer_store_dword v{vRSTD}, v{vIV}, {s(WS,4)}, s{sA} offen sc1")], 21, 1)
        self.wq_tok = []; dm = []
        if L == 0:
            for c in range(10): dm += self.dma4(sWQ, 16 * KB * c, 16 * KB * c, self.wq_tok)
            spread(ev, [self.touch(sWQ, sH16, 32 * KB * k) for k in range(2, 5)], 30, 36)
            if not sh: spread(ev, dm[:4], 96, 4); dm = dm[4:]
        sl = 0; q = []
        for stp in range(8):
            for i in range(4):
                for nt in range(5):
                    self.fine(f"d{L}", sl)
                    for g in pre.pop(sl, []): self.do(g)
                    d = ACC[i] + 4 * nt
                    E(f"v_mfma_f32_16x16x32_bf16 {v(d,4)}, {R(self.WDF[5*stp+nt],4)}, {R(self.HF[(stp,i)],4)}, {'0' if stp == 0 and i < 3 else v(d,4)}")
                    for g in ev.pop(sl, []): q += self.flat(g)
                    vv = val1.get(stp + 1)
                    if vv and 20 - sl % 20 <= len(vv): self.do(vv.pop(0))
                    elif q and (nt != 4 or len(q) > 3): self.do(q.pop(0))
                    sl += 1
                if self.HF[(stp, i)] >= AG or (self.HF[(stp, i)] < 176 and not sh): self.pool.put(self.HF[(stp, i)])
            for nt in range(5):
                qq = self.WDF[5 * stp + nt]
                assert not (sh and 176 <= qq < 244 and stp > 3)
                if qq >= AG or qq < 176: self.pool.put(qq)
        for k in sorted(ev):
            for g in ev[k]: q.append(g)
        for g in q: self.do(g)
        assert not pre
        self.stamp("  8 steps")
        PT = 108 if sh else 176
        live = [self.WDF[f] for f in range(40, 60)] + [self.HF[(stp, i)] for stp in range(8, 12) for i in range(4)]
        assert not [q for q in live if PT <= q < PT + 60], live
        steps = [([self.WDF[5 * stp + nt] for nt in range(5)], [self.HF[(stp, i)] for i in range(4)]) for stp in range(8, 12)]
        bg = (late2 if sh else []) + dm[:12]; dm = dm[12:]
        n = o.get("wq5", 16 if sh else 12)
        post = (self.cs_loads(CSQ, 4 * KB, 4, 136) if L == 0 else []) + dm[:n]
        self.wq_late = dm[n:]
        self.reduce_and_publish(ACC, steps, 100 * KB, PT, 2 * L + 2, 512 + 4 * L, L == 1, bg, post, bg0=0, bgstep=4, vals=vals)
        self.stamp(f"L{L} P5 done")
    def finish(self):
        E = self.E
        if self.o.get("echo"):
            E(f"s_sub_u32 s{sA}, s{sTS+2}, s{sTS}\ns_mul_i32 s{sA}, s{sA}, {self.o.get('emul', 1)}\ns_lshr_b32 s{sA}, s{sA}, {2 if self.o.get('ecyc') else 0}\ns_memrealtime {s(sTS,2)}"); E.wait_smem()
            E.place("ECHO")
            E(f"s_memrealtime {s(sTS+2,2)}"); E.wait_smem()
            E(f"s_sub_u32 s{sB}, s{sTS+2}, s{sTS}\ns_cmp_lt_u32 s{sB}, s{sA}\ns_cbranch_scc1 ECHO")
        if self.stamps:
            E(f"v_readlane_b32 s{sB}, v{vTS2}, 63\ns_lshl_b32 s{sA}, s{sB}, 2\ns_add_u32 s{sA}, s{sA}, s{sW}\ns_lshl_b32 s{sA}, s{sA}, 8\ns_add_u32 s{sA}, s{sA}, {DBG}")
            E(f"v_lshlrev_b32 v{vT}, 2, v0\nbuffer_store_dword v{vTS}, v{vT}, {s(WS,4)}, s{sA} offen")
            E(f"s_add_u32 s{sA}, s{sA}, 0x40000\nbuffer_store_dword v{vTS2}, v{vT}, {s(WS,4)}, s{sA} offen")
        E("s_endpgm"); E.raw(";@END")
        for t in self.tail: E.raw(t.rstrip("\n"))
        E.raw("main_end:")
    def build(self):
        E = self.E
        globals()["NX0"] = self.o.get("nx0", 10)
        globals()["FINAL"] = ("", "sc1", "nt", "sc0 sc1")[self.o.get("fin", 0)]
        g = globals(); ru = self.o.get("reuse", 7)
        if ru & 1: g["HB_STRIDE"] = 0
        if ru & 2: g["OB_STRIDE"] = 0
        if ru & 8: g["KV_STRIDE"] = 0
        E.raw("; @launch grid=(256,1,1) block=(256,1,1) lds=163840")
        E.raw('.amdgcn_target "amdgcn-amd-amdhsa--gfx950"')
        self.prologue()
        n = 0
        for L in range(2):
            for ph in (self.p1, self.p2, self.p3, self.p4, self.p5):
                if n < self.stop: ph(L)
                n += 1
        self.finish()
        kernel_desc(E, KNAME, 256, 256, 102)
        return stubs.apply(E.text(), sW, self.o.get("verbose") == 3)

if __name__ == "__main__":
    out = sys.argv[1]
    opts = dict((k, int(x)) for k, x in (a_.split("=") for a_ in sys.argv[3:]))
    g = Gen(stamps=len(sys.argv) > 2 and sys.argv[2] == "ts", opts=opts, mapping="grp" if opts.get("grp") else "mix")
    t = g.build()
    open(out, "w").write(t)
    print(len(t), "bytes", g.E.ninst, "insts", g.E.nnop, "nop states", g.E.stats)
    if g.stamps: open(out + ".names", "w").write("\n".join(g.stnames))
```

```python
from emit import *
from layout import *

SRC1 = 32; SRC2 = 36; sONE = 40
t = list(range(41, 58))
sRHO, sSIG = 58, 59
sU, sS2 = 60, 61
sTK = 62
LDS1 = 0 * KB
LDS2 = 128 * KB
vTK = 248
vA2 = 232
OOB = 0x10000000
NRACE = 1

def split_hi_lo(E, x, t0, t1, d):
    E(f"v_cvt_pk_bf16_f32 v{d+1}, v{x}, 0")
    E(f"v_lshlrev_b32 v{t0}, 16, v{d+1}")
    E(f"v_sub_f32 v{t1}, v{x}, v{t0}")
    E(f"v_cvt_pk_bf16_f32 v{d}, v{t0}, v{t1}")

class Startup:
    def __init__(self, G, M):
        self.G = G; self.E = G.E; self.M = M
    def roles(self, pQ, pO, pG, pU, pD):
        E, M = self.E, self.M
        E(f"s_add_u32 s{sRHO}, s{M.sR}, s{M.sJ}\ns_and_b32 s{sRHO}, s{sRHO}, 15\ns_add_u32 s{sSIG}, s{sRHO}, {self.G.o.get('sigo', 4)}\ns_and_b32 s{sSIG}, s{sSIG}, 15")
        E(f"s_mov_b32 s{SRC1}, s{pQ}\ns_mov_b32 s{SRC1+1}, s{pQ+1}\ns_mov_b32 s{SRC1+2}, {640*1920*2}\ns_mov_b32 s{SRC1+3}, 0x00020000")
        E(f"s_cmp_ge_u32 s{sSIG}, 4\ns_cselect_b64 {s(SRC2,2)}, {s(pU,2)}, {s(pG,2)}")
        E(f"s_cmp_ge_u32 s{sSIG}, 8\ns_cselect_b64 {s(SRC2,2)}, {s(pD,2)}, {s(SRC2,2)}")
        E(f"s_cmp_ge_u32 s{sSIG}, 14\ns_cselect_b64 {s(SRC2,2)}, {s(pO,2)}, {s(SRC2,2)}\ns_cselect_b32 s{SRC2+2}, {640*640*2}, 0")
        E(f"s_cselect_b32 s{t[0]}, 0, {640*1536*2}\ns_add_u32 s{SRC2+2}, s{SRC2+2}, s{t[0]}\ns_mov_b32 s{SRC2+3}, 0x00020000\ns_mov_b32 s{sONE}, 0x3f803f80")
    def s1_load(self):
        E, M = self.E, self.M
        E("v_mul_u32_u24 v48, 6554, v0\nv_lshrrev_b32 v48, 16, v48\nv_mul_u32_u24 v49, 10, v48\nv_sub_u32 v49, v0, v49")
        E("v_mul_u32_u24 v48, 3840, v48\nv_lshl_add_u32 v50, v49, 4, v48")
        E(f"s_lshr_b32 s{t[1]}, s{sRHO}, 2\ns_and_b32 s{t[2]}, s{sRHO}, 3\ns_lshl_b32 s{t[2]}, s{t[2]}, 1\ns_add_u32 s{t[2]}, s{t[2]}, s{M.sTH}")
        E(f"s_mul_i32 s{t[3]}, s{t[1]}, 1280\ns_mul_i32 s{t[4]}, s{M.sNB}, 160\ns_add_u32 s{t[3]}, s{t[3]}, s{t[4]}")
        E(f"s_lshl_b32 s{t[4]}, s{t[2]}, 2\ns_add_u32 s{t[4]}, s{t[4]}, s{M.sW}\ns_mul_i32 s{t[4]}, s{t[4]}, {20*3840}\ns_add_u32 s{t[3]}, s{t[3]}, s{t[4]}")
        E(f"s_cmp_ge_u32 s{sRHO}, 12\ns_cselect_b32 s{t[4]}, {OOB}, 0\nv_add_u32 v50, s{t[4]}, v50")
        E(f"s_mul_i32 s{t[4]}, s{M.sW}, 3200\ns_mov_b32 exec_hi, 0x3ffff")
        for i in range(4):
            E(f"s_add_u32 m0, s{t[4]}, {LDS1 + 800*i}")
            if i: E(f"s_add_u32 s{t[3]}, s{t[3]}, {5*3840}")
            self.tok1 = E(f"buffer_load_dwordx4 v50, {s(SRC1,4)}, s{t[3]} offen {'nt' if self.G.o.get('nt1', 1) else ''} lds")
        E("s_mov_b32 exec_hi, -1")
    def leader_clear(self):
        E, M = self.E, self.M
        L = E.label("LC")
        E(f"s_cmp_lg_u32 s{sRHO}, 15\ns_cbranch_scc1 {L}")
        E("v_mov_b32 v60, 0\nv_mov_b32 v61, 0\nv_mov_b32 v62, 0\nv_mov_b32 v63, 0")
        E(f"s_mul_i32 s{t[3]}, s{M.sR}, {ASTR}\ns_add_u32 s{t[3]}, s{t[3]}, {ARENA + A_CNT}\ns_lshl_b32 s{t[4]}, s{M.sW}, 13\ns_add_u32 s{t[4]}, s{t[4]}, s{t[3]}")
        E(f"s_lshr_b32 s{t[16]}, s{M.sW}, 1\nv_lshrrev_b32 v64, s{t[16]}, v0\nv_and_b32 v65, s{t[16]}, v0\nv_lshlrev_b32 v65, 4, v65\nv_lshl_add_u32 v64, v64, 7, v65")
        if self.G.o.get("ctouch", 0): E(f"buffer_load_dword v66, v64, {s(M.WS,4)}, s{t[4]} offen sc1", count=False)
        E(f"buffer_store_dwordx4 v[60:63], v64, {s(M.WS,4)}, s{t[4]} offen sc1", count=False)
        E(f"s_lshl_b32 s{t[4]}, s{M.sW}, 8\ns_add_u32 s{t[3]}, s{t[3]}, s{t[4]}\ns_add_u32 s{t[3]}, s{t[3]}, {20*KB}")
        for k in range(self.G.o.get("nrace", NRACE)):
            for h in range(2): E.raw(f"s_load_dword s{t[16]}, {s(M.WS,2)}, s{t[3]} offset:{1152*k + 8192*h} glc")
        E.place(L); E.hist = []
        E("s_nop 1")
    def leader_race(self):
        E, M = self.E, self.M
        L = E.label("LR")
        E(f"s_cmp_lg_u32 s{sRHO}, 15\ns_cbranch_scc1 {L}")
        E(f"s_getreg_b32 s{t[7]}, hwreg(HW_REG_XCC_ID)\ns_and_b32 s{t[7]}, s{t[7]}, 4\ns_waitcnt lgkmcnt(0)")
        E("s_memtime s[50:51]"); E.wait_smem()
        for k in range(self.G.o.get("nrace", NRACE)):
            E(f"s_load_dword s49, {s(M.WS,2)}, s{t[3]} offset:{1152*k} glc"); E.wait_smem()
            E("s_memtime s[52:53]"); E.wait_smem()
            E(f"s_sub_u32 s54, s52, s50\ns_load_dword s49, {s(M.WS,2)}, s{t[3]} offset:{1152*k + 8192} glc"); E.wait_smem()
            E("s_memtime s[50:51]"); E.wait_smem()
            E(f"s_sub_u32 s55, s50, s52\ns_cmp_lt_u32 s55, s54\ns_addc_u32 s{t[7]}, s{t[7]}, 0")
        E(f"s_lshl_b32 s{t[5]}, s{M.sR}, 2\ns_add_u32 s{t[5]}, s{t[5]}, s{M.sW}\ns_lshl_b32 s{t[5]}, s{t[5]}, {self.G.o.get('vsh', 7)}\ns_add_u32 s{t[5]}, s{t[5]}, {VOTE}\nv_add_u32 v60, s{t[7]}, v{vTK}\nv_mov_b32 v61, v60\nv_mov_b32 v62, v60\nv_mov_b32 v63, v60")
        E({7: f"buffer_store_dwordx2 v[60:61], v{M.vSW}", 2: f"buffer_store_dword v60, v{M.vSIG}", 4: f"buffer_store_dwordx4 v[60:63], v{M.vSIG}"}[self.G.o.get('vsh', 7)] + f", {s(M.WS,4)}, s{t[5]} offen sc1", count=False)
        E.place(L); E.hist = []
    def x_touch(self):
        E, M = self.E, self.M
        E(f"s_lshl_b32 s{t[4]}, s{M.sR}, 4\ns_add_u32 s{t[4]}, s{t[4]}, s{M.sJ}\ns_lshl_b32 s{t[4]}, s{t[4]}, 2\ns_add_u32 s{t[4]}, s{t[4]}, s{M.sW}\ns_mul_i32 s{t[4]}, s{t[4]}, 2560")
        E(f"v_min_u32 v51, 19, v0\nv_lshlrev_b32 v51, 7, v51\nbuffer_load_dword v246, v51, {s(M.XIN,4)}, s{t[4]} offen")
    def s2_addrs(self):
        E, M = self.E, self.M
        a_, b_, c_, d_, e_ = t[5], t[6], t[7], t[8], t[9]
        E(f"s_mov_b32 s{b_}, 6554\ns_cmp_lt_u32 s{sSIG}, 8\ns_cselect_b32 s{a_}, 24, 10\ns_cselect_b32 s{b_}, 2731, s{b_}\ns_cselect_b32 s{d_}, s{M.sW}, 0")
        E(f"v_mov_b32 v55, {OOB}")
        E(f"s_mov_b32 s{e_}, 1280\ns_cselect_b32 s{c_}, 3072, s{e_}\ns_lshl_b32 s{d_}, s{d_}, 9")
        E(f"s_cmp_ge_u32 s{sSIG}, 14\ns_cselect_b32 s{e_}, 50, {0 if self.G.o.get('hackL') else 40}\ns_lshl_b32 s{e_}, s{e_}, 3\ns_cmp_lt_u32 s{sSIG}, 8\ns_cselect_b32 s{e_}, 1920, s{e_}")
        for i in range(8):
            E(f"v_add_u32 v52, s{d_}, v0\nv_mul_u32_u24 v53, s{b_}, v52\nv_lshrrev_b32 v53, 16, v53\nv_mul_u32_u24 v54, s{a_}, v53\nv_sub_u32 v54, v52, v54")
            E(f"v_mul_u32_u24 v53, s{c_}, v53\nv_lshl_add_u32 v53, v54, 4, v53\nv_cmp_gt_u32 vcc, s{e_}, v52\nv_cndmask_b32 v{vA2+i}, v55, v53, vcc\ns_add_u32 s{d_}, s{d_}, 64")
        E(f"s_and_b32 s{a_}, s{sSIG}, 3\ns_lshl_b32 s{a_}, s{a_}, 1\ns_add_u32 s{a_}, s{a_}, s{M.sTH}\ns_mul_i32 s{a_}, s{a_}, {80*3072}\ns_mul_i32 s{b_}, s{M.sNB}, 384\ns_add_u32 s{a_}, s{a_}, s{b_}")
        E(f"s_cmp_ge_u32 s{sSIG}, 14\ns_cselect_b32 s{b_}, 2, 6\ns_cselect_b32 s{c_}, 14, 8\ns_cselect_b32 s{d_}, 40, 32")
        E(f"s_mul_i32 s{b_}, s{b_}, s{M.sTH}\ns_add_u32 s{b_}, s{b_}, s{sSIG}\ns_sub_u32 s{b_}, s{b_}, s{c_}\ns_lshl_b32 s{b_}, s{b_}, 2\ns_add_u32 s{sU}, s{b_}, s{M.sW}")
        E(f"s_mul_i32 s{b_}, s{sU}, s{d_}\ns_mul_i32 s{b_}, s{b_}, 1280\ns_mul_i32 s{c_}, s{M.sNB}, 160\ns_add_u32 s{b_}, s{b_}, s{c_}")
        E(f"s_cmp_lt_u32 s{sSIG}, 8\ns_cselect_b32 s{sS2}, s{a_}, s{b_}")
    def s2_load(self, i):
        M = self.M
        return f"s_lshl_b32 s{t[0]}, s{M.sLW}, 1\ns_add_u32 m0, s{t[0]}, {LDS2 + 1024*i}\nbuffer_load_dwordx4 v{vA2+i}, {s(SRC2,4)}, s{sS2} offen {'nt' if self.G.o.get('nt2', 1) else ''} lds"
    def s1_proc(self):
        E, M = self.E, self.M
        Lz, Lend = E.label("WZ"), E.label("WQ")
        E(f"s_cmp_ge_u32 s{sRHO}, 12\ns_cbranch_scc1 {Lz}")
        E("v_lshrrev_b32 v48, 4, v0\nv_bfe_u32 v49, v0, 2, 2\nv_lshl_add_u32 v48, v48, 3, v49\nv_mul_u32_u24 v48, 160, v48")
        E(f"v_bfe_u32 v49, v0, 1, 1\nv_mul_u32_u24 v49, 80, v49\nv_add3_u32 v48, v48, v49, {LDS1}\nv_and_b32 v49, 1, v0")
        E(f"v_bfe_u32 v52, v0, 3, 1\nv_mul_u32_u24 v59, {160*KB}, v52\nv_lshlrev_b32 v54, 12, v52\nv_bfe_u32 v52, v0, 4, 1\nv_lshl_add_u32 v59, v52, 9, v59")
        E("v_and_b32 v52, 7, v0\nv_lshl_add_u32 v59, v52, 4, v59\nv_lshl_add_u32 v54, v52, 4, v54\nv_lshrrev_b32 v52, 4, v0\nv_lshl_add_u32 v54, v52, 28, v54")
        E(f"s_cmp_eq_u32 s{t[1]}, 0\ns_cselect_b32 s{t[5]}, 10, 0\ns_cmp_eq_u32 s{t[1]}, 2\ns_cselect_b32 s{t[5]}, 5, s{t[5]}")
        E(f"s_mul_i32 s{t[6]}, s{M.sNB}, {320*KB}\ns_add_u32 s{t[6]}, s{t[6]}, {WQ}")
        E(f"s_lshl_b32 s{t[7]}, s{M.sNB}, 13\ns_mul_i32 s{t[8]}, s{t[2]}, 0x84\ns_and_b32 s{t[8]}, s{t[8]}, 0x20c\ns_add_u32 s{t[7]}, s{t[7]}, s{t[8]}\ns_add_u32 s{t[7]}, s{t[7]}, {CSQ}")
        done0 = E.vm_done
        for rnd in range(2):
            if rnd == 0:
                E(f"s_and_b32 s{t[8]}, s{M.sW}, 1\ns_lshl_b32 s{t[8]}, s{t[8]}, 3\ns_lshr_b32 s{t[9]}, s{M.sW}, 1\ns_lshl_b32 s{t[9]}, s{t[9]}, 5\ns_add_u32 s{t[8]}, s{t[8]}, s{t[9]}")
                E(f"s_cmp_eq_u32 s{M.sW}, 2\ns_cselect_b32 s{t[9]}, 40, 16\ns_add_u32 s{t[10]}, s{t[5]}, s{M.sW}")
            else:
                if self.G.o.get("zfill", 0):
                    Lq = E.label("WY")
                    E(f"s_cmp_lg_u32 s{t[10]}, 12\ns_cbranch_scc1 {Lq}")
                    E("v_mov_b32 v76, 0\nv_mov_b32 v77, 0\nv_mov_b32 v78, 0\nv_mov_b32 v79, 0")
                    for y in (2, 1, 0):
                        E(f"buffer_store_dwordx4 v[76:79], v{53 if y == 2 else 51}, {s(M.WS,4)}, s{t[11]} offen offset:384 sc1", count=False)
                        if y: E(f"s_sub_u32 s{t[11]}, s{t[11]}, s{t[14]}")
                    E(f"buffer_store_dword v76, v54, {s(M.WS,4)}, s{t[12]} offen offset:384 sc1", count=False)
                    E.place(Lq); E.hist = []
                E(f"s_cmp_lg_u32 s{M.sW}, 3\ns_cbranch_scc1 {Lend}")
                E(f"s_mov_b32 s{t[8]}, 48\ns_mov_b32 s{t[9]}, 16\ns_add_u32 s{t[10]}, s{t[5]}, 4")
            E(f"v_mul_u32_u24 v55, s{t[9]}, v49\nv_add3_u32 v55, v55, v48, s{t[8]}")
            E(f"s_cmp_ge_u32 s{t[10]}, 8\ns_cselect_b32 s{t[14]}, 1, 2\ns_cselect_b32 s{t[15]}, 40, 1\ns_cselect_b32 s{t[11]}, {80*KB}, 0\ns_lshl_b32 s{t[14]}, s{t[14]}, 10")
            E(f"s_mul_i32 s{t[12]}, s{t[2]}, 5\ns_mul_i32 s{t[12]}, s{t[12]}, s{t[14]}\ns_add_u32 s{t[11]}, s{t[11]}, s{t[12]}")
            E(f"v_lshrrev_b32 v53, 5, v0\nv_mad_u32_u24 v51, v53, s{t[14]}, v59\nv_lshl_add_u32 v53, v53, 28, v51\ns_lshl_b32 s{t[14]}, s{t[14]}, 1")
            E(f"s_bfe_u32 s{t[12]}, s{t[10]}, 0x10002\ns_mul_i32 s{t[12]}, s{t[12]}, s{t[15]}\ns_lshl_b32 s{t[12]}, s{t[12]}, 10")
            E(f"s_add_u32 s{t[11]}, s{t[11]}, s{t[12]}\ns_and_b32 s{t[12]}, s{t[10]}, 3\ns_lshl_b32 s{t[12]}, s{t[12]}, 7\ns_add_u32 s{t[11]}, s{t[11]}, s{t[12]}\ns_add_u32 s{t[11]}, s{t[11]}, s{t[6]}")
            E(f"s_lshr_b32 s{t[13]}, s{t[10]}, 2\ns_lshl_b32 s{t[13]}, s{t[13]}, 10\ns_add_u32 s{t[12]}, s{t[12]}, s{t[13]}\ns_add_u32 s{t[12]}, s{t[12]}, s{t[7]}")
            if rnd == 0:
                E.wait(vm=self.tok1); E("s_barrier")
            d0 = 60 + 16 * rnd
            for y in range(3):
                for rd in range(2): E(f"ds_read_b64_tr_b16 {v(d0+4*y+2*rd,2)}, v55 offset:{(32*y+4*rd)*160}")
            for y in range(3):
                E(f"buffer_store_dwordx4 {v(d0+4*y,4)}, v{53 if y == 2 else 51}, {s(M.WS,4)}, s{t[11]} offen sc1", count=False)
                if y < 2: E(f"s_add_u32 s{t[11]}, s{t[11]}, s{t[14]}")
            E("v_mov_b32 v56, 0")
            for y in range(3):
                if y == 2: E("s_mov_b32 exec_hi, 0")
                for e in range(4): E(f"v_dot2c_f32_bf16 v56, s{sONE}, v{d0+4*y+e}")
            E("s_mov_b32 exec_hi, -1")
            for sw in ("v_permlane32_swap_b32", "v_permlane16_swap_b32"):
                E(f"v_mov_b32 v57, v56\n{sw} v57, v56\nv_add_f32 v56, v57, v56")
            split_hi_lo(E, 56, 57, 58, d0 + 12)
            E(f"buffer_store_dword v{d0+12}, v54, {s(M.WS,4)}, s{t[12]} offen sc1", count=False)
        E.place(Lz)
        E.place(Lend); E.hist = []; E.vm_done = done0
        E("s_nop 1")
    def flag(self, code):
        E, M = self.E, self.M
        L = E.label("FG")
        E(f"s_cmp_lg_u32 s{M.sW}, 0\ns_cbranch_scc1 {L}")
        E(code)
        E(f"buffer_store_dwordx2 {v(vTK,2)}, v{M.vSW if self.G.o.get('fullf', 1) else M.vSIG}, {s(M.WS,4)}, s{M.sA} offen sc1", count=False)
        E.place(L)
    def flag1(self):
        M = self.M
        self.flag(f"s_lshl_b32 s{M.sA}, s{M.sJ}, 4\ns_add_u32 s{M.sA}, s{M.sA}, s{sRHO}\ns_lshl_b32 s{M.sA}, s{M.sA}, 7\ns_add_u32 s{M.sA}, s{M.sA}, {F1}")
    def flag2(self):
        M = self.M
        self.flag(f"s_lshl_b32 s{M.sA}, s{M.sJ}, 4\ns_add_u32 s{M.sA}, s{M.sA}, s{M.sR}\ns_lshl_b32 s{M.sA}, s{M.sA}, 7\ns_add_u32 s{M.sA}, s{M.sA}, {F2}")
    def vpoll_issue(self, addr, dst):
        return f"buffer_load_dwordx2 {v(dst,2)}, v{addr}, {s(self.M.WS,4)}, 0 offen sc1"
    def vpoll_check(self, addr, dst, slp):
        def fn():
            E, M = self.E, self.M
            Ls, Lb = E.label("VS"), E.label("VB")
            E(f"v_cmp_ne_u64 vcc, {v(dst,2)}, {v(vTK,2)}\ns_cbranch_vccnz {Ls}")
            E.place(Lb)
            self.G.tail.append(f"{Ls}:\ns_mov_b32 s{M.sF}, 0x100000\n{Ls}_l:\ns_sleep {slp}\n{self.vpoll_issue(addr, dst)}\ns_waitcnt vmcnt(0)\n"
                               f"v_cmp_ne_u64 vcc, {v(dst,2)}, {v(vTK,2)}\ns_nop 1\ns_cbranch_vccz {Lb}\ns_sub_u32 s{M.sF}, s{M.sF}, 1\ns_cmp_lg_u32 s{M.sF}, 0\n"
                               f"s_cbranch_scc1 {Ls}_l\ns_branch {Lb}")
        return fn
    def s2_prep(self):
        E, M = self.E, self.M
        Ld, Lo, Le = E.label("S2"), E.label("S2"), E.label("S2")
        AD = 224; B = 176; C = 168; u = [t[0]] + t[10:16]; u = {0: t[0], 1: t[10], 2: t[11], 3: t[12], 4: t[13], 5: t[14], 6: t[15]}
        for i in range(11): E(f"v_mov_b32 v{AD+i}, {OOB}")
        if self.G.o.get('hackS'): E(f"v_mov_b32 v{B}, 0")
        E(f"s_lshl_b32 s{u[0]}, s{M.sLW}, 1\ns_add_u32 s{u[0]}, s{u[0]}, {LDS2}")
        E(f"s_cmp_ge_u32 s{sSIG}, 14\ns_cbranch_scc1 {Lo}\ns_cmp_ge_u32 s{sSIG}, 8\ns_cbranch_scc1 {Ld}")
        E(f"s_cmp_ge_u32 s{M.sW}, {1 if self.G.o.get('hackS', 0) & 1 else 3}\ns_cbranch_scc1 {Le}")
        if self.G.o.get('m16', 1):
            E(f"v_bfe_u32 v{B}, v0, 2, 2\nv_mul_u32_u24 v{B}, 384, v{B}\nv_lshrrev_b32 v{B+2}, 5, v0\nv_mul_u32_u24 v{B+1}, 192, v{B+2}\nv_add_u32 v{B}, v{B}, v{B+1}")
            E(f"v_bfe_u32 v{B+3}, v0, 4, 1\nv_lshl_add_u32 v{B}, v{B+3}, 3, v{B}\nv_and_b32 v{B+1}, 3, v0\nv_lshl_add_u32 v{B}, v{B+1}, 4, v{B}")
            E(f"s_lshl_b32 s{u[1]}, s{M.sW}, 6\ns_add_u32 s{u[1]}, s{u[1]}, {LDS2}\nv_add_u32 v{B}, s{u[1]}, v{B}")
            E(f"v_and_b32 v{B+4}, 15, v0\nv_lshlrev_b32 v{B+4}, 4, v{B+4}\nv_mul_u32_u24 v{B+1}, {6*KB}, v{B+2}\nv_lshl_add_u32 v{B+1}, v{B+3}, 3, v{B+1}\nv_add_u32 v{B+1}, v{B+1}, v{B+4}")
            E(f"v_mul_u32_u24 v{B+2}, {240*KB}, v{B+2}\nv_lshl_add_u32 v{B+2}, v{B+3}, 11, v{B+2}\nv_add_u32 v{B+2}, v{B+2}, v{B+4}")
            E(f"s_mul_i32 s{u[1]}, s{M.sNB}, 6\ns_add_u32 s{u[1]}, s{u[1]}, s{M.sW}\ns_lshr_b32 s{u[2]}, s{sSIG}, 2")
            E(f"s_and_b32 s{u[5]}, s{sSIG}, 3\ns_lshl_b32 s{u[4]}, s{u[1]}, 11\ns_lshl_b32 s{u[6]}, s{u[2]}, 10\ns_add_u32 s{u[4]}, s{u[4]}, s{u[6]}\ns_lshl_b32 s{u[6]}, s{u[5]}, 8")
            E(f"s_add_u32 s{u[4]}, s{u[4]}, s{u[6]}\ns_lshl_b32 s{u[6]}, s{M.sTH}, 2\ns_add_u32 s{u[4]}, s{u[4]}, s{u[6]}\ns_add_u32 s{u[4]}, s{u[4]}, {CSG}\nv_add_u32 v{AD+10}, s{u[4]}, v{B+1}")
            E(f"s_mul_i32 s{u[3]}, s{u[1]}, {80*KB}\ns_lshl_b32 s{u[2]}, s{u[2]}, 12\ns_add_u32 s{u[3]}, s{u[3]}, s{u[2]}\ns_add_u32 s{u[3]}, s{u[3]}, {WGU}\nv_add_u32 v{B+2}, s{u[3]}, v{B+2}")
            E(f"s_lshl_b32 s{u[5]}, s{u[5]}, 1\ns_add_u32 s{u[5]}, s{u[5]}, s{M.sTH}\ns_mul_i32 s{u[5]}, s{u[5]}, 10")
            for k in range(10):
                E(f"s_add_u32 s{u[1]}, s{u[5]}, {k}\ns_lshr_b32 s{u[2]}, s{u[1]}, 3\ns_mul_i32 s{u[2]}, s{u[2]}, 24\ns_add_u32 s{u[1]}, s{u[1]}, s{u[2]}\nv_lshl_add_u32 v{AD+k}, s{u[1]}, 8, v{B+2}")
        else:
            E(f"v_bfe_u32 v{B}, v0, 2, 2\nv_lshrrev_b32 v{B+1}, 5, v0\nv_lshl_add_u32 v{B}, v{B+1}, 3, v{B}\nv_mul_u32_u24 v{B}, 384, v{B}")
            E(f"v_bfe_u32 v{B+1}, v0, 4, 1\nv_lshl_add_u32 v{B}, v{B+1}, 5, v{B}\nv_and_b32 v{B+1}, 1, v0\nv_lshl_add_u32 v{B}, v{B+1}, 4, v{B}")
            E(f"v_bfe_u32 v{B+1}, v0, 1, 1\nv_lshl_add_u32 v{B}, v{B+1}, 3, v{B}\ns_lshl_b32 s{u[1]}, s{M.sW}, 6\ns_add_u32 s{u[1]}, s{u[1]}, {LDS2}\nv_add_u32 v{B}, s{u[1]}, v{B}")
            E(f"v_lshrrev_b32 v{B+1}, 5, v0\nv_mul_u32_u24 v{B+1}, {6*KB - 512}, v{B+1}\nv_add_u32 v{B+1}, v{B+1}, v{M.vL16}")
            E(f"s_mul_i32 s{u[1]}, s{M.sNB}, 6\ns_add_u32 s{u[1]}, s{u[1]}, s{M.sW}\ns_lshr_b32 s{u[2]}, s{sSIG}, 2\ns_lshl_b32 s{u[2]}, s{u[2]}, 10")
            E(f"s_and_b32 s{u[5]}, s{sSIG}, 3\ns_lshl_b32 s{u[5]}, s{u[5]}, 1\ns_add_u32 s{u[5]}, s{u[5]}, s{M.sTH}")
            E(f"s_mul_i32 s{u[3]}, s{u[1]}, {80*KB}\ns_mul_i32 s{u[4]}, s{u[5]}, {10*KB}\ns_add_u32 s{u[3]}, s{u[3]}, s{u[4]}\ns_add_u32 s{u[3]}, s{u[3]}, s{u[2]}\ns_add_u32 s{u[3]}, s{u[3]}, {WGU}")
            E(f"s_lshl_b32 s{u[4]}, s{u[1]}, 11\ns_add_u32 s{u[4]}, s{u[4]}, s{u[2]}\ns_mul_i32 s{u[2]}, s{u[5]}, 0x84\ns_and_b32 s{u[2]}, s{u[2]}, 0x20c\ns_add_u32 s{u[4]}, s{u[4]}, s{u[2]}\ns_add_u32 s{u[4]}, s{u[4]}, {CSG}")
            E(f"v_add_u32 v{AD}, s{u[3]}, v{M.vL16}\nv_add_u32 v{AD+10}, s{u[4]}, v{B+1}")
            for k in range(1, 10): E(f"v_add_u32 v{AD+k}, {240*KB*(k // 5) + 2048*(k % 5)}, v{AD}")
        E(f"s_branch {Le}")
        E.place(Ld); E.hist = []
        E(f"v_bfe_u32 v{B}, v0, 2, 2\nv_lshrrev_b32 v{B+1}, 4, v0\nv_lshl_add_u32 v{B}, v{B+1}, 3, v{B}\nv_mul_u32_u24 v{B}, 160, v{B}")
        E(f"v_add_u32 v{B}, s{u[0]}, v{B}\nv_and_b32 v{B+2}, 3, v0\nv_lshl_add_u32 v{B+1}, v{B+2}, 3, v{B}\nv_lshl_add_u32 v{B}, v{B+2}, 5, v{B}")
        E(f"v_mov_b32 v{C}, s{u[0]}\nv_mov_b32 v{C+1}, s{u[0]}")
        E(f"s_mul_i32 s{u[1]}, s{sU}, 21846\ns_lshr_b32 s{u[1]}, s{u[1]}, 16\ns_mul_i32 s{u[3]}, s{u[1]}, 3\ns_sub_u32 s{u[3]}, s{sU}, s{u[3]}")
        E(f"s_lshl_b32 s{u[3]}, s{u[3]}, 2\ns_and_b32 s{u[4]}, s{u[1]}, 3\ns_add_u32 s{u[3]}, s{u[3]}, s{u[4]}\ns_mul_i32 s{u[3]}, s{u[3]}, {5*KB}")
        E(f"s_lshr_b32 s{u[4]}, s{u[1]}, 2\ns_mul_i32 s{u[4]}, s{u[4]}, {60*KB}\ns_add_u32 s{u[3]}, s{u[3]}, s{u[4]}")
        E(f"s_mul_i32 s{u[4]}, s{M.sNB}, {240*KB}\ns_add_u32 s{u[3]}, s{u[3]}, s{u[4]}\ns_add_u32 s{u[3]}, s{u[3]}, {WD}")
        if not self.G.o.get('hackS', 0) & 2:
            E(f"v_add_u32 v{AD}, s{u[3]}, v{M.vL16}")
            for nt in range(1, 5): E(f"v_add_u32 v{AD+nt}, {1024*nt}, v{AD}")
        E(f"s_branch {Le}")
        E.place(Lo); E.hist = []
        E(f"v_lshrrev_b32 v{B+2}, 4, v0\nv_and_b32 v{B+3}, 1, v{B+2}\nv_lshrrev_b32 v{B+4}, 5, v0\nv_mul_u32_u24 v{B+5}, 20, v{B+4}\nv_lshl_add_u32 v{B+5}, v{B+3}, 3, v{B+5}")
        E(f"v_bfe_u32 v{B}, v0, 2, 2\nv_add_u32 v{B+5}, v{B+5}, v{B}\nv_mul_u32_u24 v{B+5}, 160, v{B+5}\nv_add_u32 v{B+5}, s{u[0]}, v{B+5}")
        E(f"v_and_b32 v{B+6}, 3, v0\nv_mul_u32_u24 v{B}, 160, v{B}\nv_add_u32 v{B+7}, s{u[0]}, v{B}")
        E(f"v_lshl_add_u32 v{B}, v{B+6}, 5, v{B+5}\nv_lshl_add_u32 v{B+1}, v{B+6}, 3, v{B+5}")
        E(f"v_lshl_add_u32 v{C}, v{B+6}, 5, v{B+7}\nv_lshl_add_u32 v{C}, v{B+2}, 3, v{C}\nv_lshl_add_u32 v{C+1}, v{B+6}, 3, v{B+7}")
        E(f"v_and_b32 v{C+2}, 15, v0\nv_lshlrev_b32 v{C+2}, 4, v{C+2}\nv_mul_u32_u24 v{C+3}, {10*KB}, v{B+4}\nv_lshl_add_u32 v{C+3}, v{B+3}, 8, v{C+3}\nv_add_u32 v{C+3}, v{C+3}, v{C+2}")
        E(f"v_lshl_add_u32 v{C+4}, v{B+2}, 10, v{C+2}\nv_lshl_add_u32 v{C+5}, v{B+2}, 28, v{C+2}")
        E(f"s_lshr_b32 s{u[1]}, s{sU}, 2\ns_mul_i32 s{u[1]}, s{u[1]}, {25*KB}\ns_mul_i32 s{u[3]}, s{M.sNB}, {100*KB}\ns_add_u32 s{u[1]}, s{u[1]}, s{u[3]}\ns_add_u32 s{u[1]}, s{u[1]}, {WO}")
        E(f"s_lshr_b32 s{u[3]}, s{M.sW}, 1\ns_mul_i32 s{u[3]}, s{u[3]}, {5*KB}\ns_and_b32 s{u[4]}, s{M.sW}, 1\ns_lshl_b32 s{u[4]}, s{u[4]}, 9\ns_add_u32 s{u[3]}, s{u[3]}, s{u[4]}")
        E(f"s_add_u32 s{u[3]}, s{u[3]}, s{u[1]}")
        E(f"s_lshl_b32 s{u[5]}, s{M.sW}, 8\ns_add_u32 s{u[5]}, s{u[5]}, s{u[1]}\ns_add_u32 s{u[5]}, s{u[5]}, {20*KB}\ns_add_u32 s{u[6]}, s{u[5]}, 4096")
        E(f"v_add_u32 v{AD}, s{u[3]}, v{C+3}\nv_add_u32 v{AD+5}, s{u[5]}, v{C+4}\nv_add_u32 v{AD+6}, s{u[6]}, v{C+5}")
        for nt in range(1, 5): E(f"v_add_u32 v{AD+nt}, {1024*nt}, v{AD}")
        E.place(Le); E.hist = []
        E("s_nop 1")
    def s2_read(self):
        E, M = self.E, self.M
        Ld, Le = E.label("S2"), E.label("S2")
        AD = 224; B = 176; C = 168
        E.drain(vm=False)
        E(f"s_cmp_ge_u32 s{sSIG}, 8\ns_cbranch_scc1 {Ld}\ns_cmp_eq_u32 s{M.sW}, 3\ns_cbranch_scc1 {Le}")
        for ks in range(10):
            for rd in range(2): E(f"ds_read_b64_tr_b16 {v(B+8+4*ks+2*rd,2)}, v{B} offset:{(8*ks+4*rd)*384 if self.G.o.get('m16', 1) else (16*(ks%5)+4*rd)*384 + 192*(ks//5)}")
        cd = self.G.o.get("csdot", 0)
        if cd:
            E(f"v_mov_b32 v{B+2}, 0\nv_mov_b32 v{B+3}, 0")
            for k in range(20): E(f"v_dot2c_f32_bf16 v{B+2}, s{sONE}, v{B+8+k}")
            for k in range(20): E(f"v_dot2c_f32_bf16 v{B+3}, s{sONE}, v{B+28+k}")
            E("s_nop 2")
        E(f"s_branch {Le}")
        E.place(Ld); E.hist = []; E.pend = {k: x for k, x in E.pend.items() if x[0] != "ds"}
        for nt in range(5):
            for rd in range(2): E(f"ds_read_b64_tr_b16 {v(B+8+4*nt+2*rd,2)}, v{B+1 if nt == 4 else B} offset:{4*rd*160 + (128 if nt == 4 else 8*nt)}")
        for rd in range(2): E(f"ds_read_b64_tr_b16 {v(B+28+2*rd,2)}, v{C} offset:{(16, 36)[rd]*160}")
        for rd in range(2): E(f"ds_read_b64_tr_b16 {v(B+32+2*rd,2)}, v{C+1} offset:{(16, 36)[rd]*160 + 128}")
        E.place(Le); E.hist = []
        E.drain(vm=False)
        cs = [f"v_mov_b32 v{B+2}, 0", f"v_mov_b32 v{B+3}, 0"]
        for k in range(20):
            cs += [f"v_lshlrev_b32 v{B+4}, 16, v{B+8+k}", f"v_lshlrev_b32 v{B+5}, 16, v{B+28+k}", f"v_add_f32 v{B+2}, v{B+2}, v{B+4}", f"v_add_f32 v{B+3}, v{B+3}, v{B+5}",
                   f"v_and_b32 v{B+4}, 0xffff0000, v{B+8+k}", f"v_and_b32 v{B+5}, 0xffff0000, v{B+28+k}", f"v_add_f32 v{B+2}, v{B+2}, v{B+4}", f"v_add_f32 v{B+3}, v{B+3}, v{B+5}"]
        if cd: cs = []
        if not self.G.o.get('m16', 1): cs += [f"v_permlane32_swap_b32 v{B+2}, v{B+3}"]
        cs += [f"v_add_f32 v{B+2}, v{B+3}, v{B+2}",
               f"v_cvt_pk_bf16_f32 v{B+7}, v{B+2}, 0", f"v_lshlrev_b32 v{B+3}, 16, v{B+7}", f"v_sub_f32 v{B+4}, v{B+2}, v{B+3}", f"v_cvt_pk_bf16_f32 v{B+6}, v{B+3}, v{B+4}"]
        r = [f"buffer_store_dwordx4 {v(B+8+4*i,4)}, v{AD+i}, {s(M.WS,4)}, 0 offen sc1" for i in range(10)]
        return cs, r, lambda: setattr(self, "tok3", E(f"buffer_store_dword v{B+6}, v{AD+10}, {s(M.WS,4)}, 0 offen sc1"))
```

```python
import sys, math, struct, stubs
from emit import *
from layout import *
from startup8 import Startup, NRACE, sTK, vTK, sONE, sRHO, OOB
KNAME = "interleave_layers__sliding_block__glu_gated_geglu__prompt_kernel"

def f2u(x): return hex(struct.unpack("<I", struct.pack("<f", x))[0])

WS = 4; OUT = 8; XIN = 12
sR, sJ, sW, sTH, sNB = 16, 17, 18, 19, 20
sWQ, sWGU, sWO, sWD, sLW = 21, 22, 23, 24, 25
sXB, sKVme, sOme, sHme = 26, 27, 28, 29
sT0 = 30
sMASK = 32
sRET = 64
sT16 = 66; sT16H = 70
sA, sB, sC, sD, sE_, sF = 74, 75, 76, 77, 78, 79
sFL = 80
sHAL = 89
sKP, sKC, sKT = 91, 92, 3
sRM = 93
sTS = 94
sTP, sTC, sWP, sWC = 98, 99, 100, 101
sP = 2
vL16, vL16b, vL16c = 1, 2, 3
vU = 4; vPOS = 5; vST = 6; vCS = 7; vSIG = 8; vONE = 9
vRW = 10
vXW = 14; vXW5 = 15; vO4 = 16; vSW = 17; vRSTD = 18; vT = 19
vRES = 20
vNM = 40
vC1, vC2, vIV = 44, 45, 46
vKR = 47
vRM, vRM5, vTS, vTS2 = 250, 251, 252, 253
vP = 255; vDUM = 254; vSR = 255
sAR = 1
vTL = 7
sPV = 15
sH8, sH16, sHX = 12, 13, 14
SLOT = 5248; ONES = 12 * SLOT; EPS = 1e-5
AG = 256
EARLY = [216 + 4 * i for i in range(7)]
FINAL = ""
NX0 = 10

class Pool:
    def __init__(self, quads=()): self.free = list(quads)
    def get(self): return self.free.pop(0)
    def put(self, q): self.free.append(q)
    def add(self, qs): self.free += list(qs)

def spread(ev, groups, start, step):
    for i, g in enumerate(groups): ev.setdefault(int(start + i * step), []).append(g)

class Gen:
    def __init__(self, stop=99, stamps=False, mapping="mix", opts=None):
        self.E = Emit(); self.stop = stop; self.stamps = stamps; self.mapping = mapping
        self.sites = []; self.nst = 0; self.stnames = []; self.tail = []; self.o = opts or {}
    def do(self, g):
        if isinstance(g, tuple):
            for x in g: r = self.do(x)
            return r
        if callable(g): return g()
        return self.E(g)
    @staticmethod
    def flat(g):
        if isinstance(g, tuple): return list(g)
        if callable(g): return [g]
        l = g.split("\n")
        return [x for x in ("\n".join(l[:-1]), l[-1]) if x]
    def stamp(self, name):
        if self.o.get("verbose") == 2:
            print(f"{name:18s} issue cost {self.E.cost - getattr(self, 'c0', 0):6d}  vmem {self.E.stats.get('vmem', 0) - getattr(self, 'v0', 0)}"); self.c0 = self.E.cost; self.v0 = self.E.stats.get('vmem', 0)
        ec = self.o.get("echo", 0)
        if ec and name == ("", "WQ synced", "L0 halo in", "L0 P4 synced", "L1 P1 synced", "L1 P5 done", "L1 P4 synced", "L1 halo in", "L1 P3 synced", "L1 P4 p2", "L0 P3 synced")[ec]:
            self.E(f"{'s_memtime' if self.o.get('ecyc') else 's_memrealtime'} {s(sTS+2,2)}"); self.E.wait_smem()
        if ec and self.o.get("e0") and name == ("", "WQ synced", "L0 halo in", "L0 P4 synced", "L1 P1 synced", "L1 P5 done", "L1 P4 synced", "L1 halo in", "L1 P3 synced", "L1 P4 p2", "L0 P3 synced")[self.o["e0"]]:
            self.E(f"{'s_memtime' if self.o.get('ecyc') else 's_memrealtime'} {s(sTS,2)}"); self.E.wait_smem()
        if not self.stamps or self.E.smem_out: return
        if self.o.get("ends") and name not in ("L1 P5 done", "L1 P1 synced", "WQ synced", "L0 P4 synced", "L1 P4 synced", "L0 P3 synced", "L1 P3 synced", "L0 halo in", "L1 halo in") + (("L0 P1 passA", "L0 att a", "L0 P4 p0", "L0 P4 p1", "L0 P4 p2", "st S2 read") if self.o["ends"] == 2 else ()): return
        E = self.E
        E(f"s_memrealtime {s(sTS,2)}\ns_memtime {s(sTS+2,2)}"); E.wait_smem()
        E(f"v_writelane_b32 v{vTS}, s{sTS}, {self.nst}\nv_writelane_b32 v{vTS2}, s{sTS+2}, {self.nst}")
        self.nst += 1; self.stnames.append(name)
    def dma4(self, sbase, goff, ldsoff, rec=None, fl="sc1"):
        g = [f"s_add_u32 m0, s{sLW}, {ldsoff}\ns_add_u32 s{sT0}, s{sbase}, {goff}\nbuffer_load_dwordx4 v{vL16}, {s(WS,4)}, s{sT0} offen {fl} lds"]
        for i in range(1, 4): g.append(f"buffer_load_dwordx4 v{vL16}, {s(WS,4)}, s{sT0} offen offset:{1024*i} {fl} lds")
        h = g[0].split("\n")
        def guarded(x, r):
            def fn():
                assert self.E.lastw["m0"] == h[0] and self.E.lastw[f"s{sT0}"] == h[1], "DMA group interleaved"
                t = self.E(x)
                if r is not None: r.append(t)
            return fn
        return [g[0], guarded(g[1], None), guarded(g[2], None), guarded(g[3], rec)]
    def wread(self, dst, ldsaddr):
        return f"ds_read_b128 {R(dst,4)}, v{vL16+(ldsaddr >> 16)} offset:{ldsaddr & 0xffff}"
    def signal(self, sreg, imm, tok, va=None):
        def fn():
            self.E.wait(vm=tok() if callable(tok) else tok)
            self.E(f"buffer_atomic_add v{vONE}, v{va or vSIG}, {s(WS,4)}, s{sreg} offen offset:{imm} sc1")
        return fn
    def poll_issue(self, sreg, imm):
        if self.o.get("spoll", 1): return f"s_load_dword s{sPV}, {s(WS,2)}, s{sreg} offset:{imm} glc"
        return f"buffer_load_dword v{vP}, v{vSIG}, {s(WS,4)}, s{sreg} offen offset:{imm} sc1"
    def poll_check(self, sreg, imm, thr, slp=None):
        def fn():
            E = self.E
            Ls, Lb = E.label("SP"), E.label("BK")
            sc = self.o.get("spoll", 1)
            assert E.lastw.get(f"s{sPV}") == self.poll_issue(sreg, imm), "poll checked without its load"
            E.lastw[f"s{sPV}"] = None
            if sc: E.wait_smem()
            else: E(f"v_readfirstlane_b32 s{sPV}, v{vP}")
            E(f"s_cmp_ge_u32 s{sPV}, {thr}\ns_cbranch_scc0 {Ls}")
            E.place(Lb)
            sl = self.o.get("slp", 0) if slp is None else slp
            cnt = ""
            if self.stamps and self.o.get("ends"):
                self.sites.append(f"{sreg}/{imm}")
                cnt = f"s_sub_u32 s{sPV}, 0x200001, s{sF}\nv_writelane_b32 v{vTS2}, s{sPV}, {18 + len(self.sites)}\n"
            self.tail.append(f"{Ls}:\ns_mov_b32 s{sF}, 0x200000\n{Ls}_l:\n" + cnt + (f"s_sleep {sl}\n" if sl else "") + self.poll_issue(sreg, imm) +
                             ("\ns_waitcnt lgkmcnt(0)\n" if sc else f"\ns_waitcnt vmcnt(0)\nv_readfirstlane_b32 s{sPV}, v{vP}\ns_nop 0\n") +
                             f"s_cmp_ge_u32 s{sPV}, {thr}\ns_cbranch_scc1 {Lb}\ns_sub_u32 s{sF}, s{sF}, 1\ns_cmp_lg_u32 s{sF}, 0\n"
                             f"s_cbranch_scc1 {Ls}_l\ns_branch {Lb}")
        return fn
    def validate(self, quads, reload, tmp):
        rs = [q + e for q in quads for e in range(4)]
        ops = [f"v_max3_u32 v{tmp}, v{rs[0]}, v{rs[1]}, v{rs[2]}"]
        rest = rs[3:]
        while rest:
            if len(rest) >= 2: ops.append(f"v_max3_u32 v{tmp}, v{rest[0]}, v{rest[1]}, v{tmp}"); rest = rest[2:]
            else: ops.append(f"v_max_u32 v{tmp}, v{rest[0]}, v{tmp}"); rest = []
        ops.append(f"v_cmp_eq_u32 vcc, -1, v{tmp}")
        def br():
            E = self.E
            Ls, Lb = E.label("RT"), E.label("RB")
            E(f"s_cbranch_vccnz {Ls}"); E.place(Lb)
            cnt = ""
            if self.stamps and self.o.get("ends"):
                self.sites.append("val")
                cnt = f"s_sub_u32 s{sTS}, 0x200001, s{sF}\nv_writelane_b32 v{vTS2}, s{sTS}, {18 + len(self.sites)}\n"
            self.tail.append(f"{Ls}:\ns_mov_b32 s{sF}, 0x200000\n{Ls}_l:\n" + cnt + "\n".join(reload) + "\ns_waitcnt vmcnt(0)\n" + "\n".join(ops) +
                             f"\ns_sub_u32 s{sF}, s{sF}, 1\ns_nop 0\ns_cbranch_vccz {Lb}\ns_cmp_lg_u32 s{sF}, 0\ns_cbranch_scc1 {Ls}_l\ns_branch {Lb}")
        g = ["\n".join(ops[k:k + 2]) for k in range(0, len(ops), 2)]
        n0 = len(self.E.out); g0 = g[0]
        def first():
            for q in quads:
                assert any(x.startswith(f"buffer_load_dwordx4 {v(q,4)},") for x in self.E.out[n0:]), q
            self.E(g0)
        return [first] + g[1:] + [br]
    def hpoison(self, reg, sr):
        r = []
        for p in (1, 2):
            r += [f"s_add_u32 s{sr}, s{sJ}, {p}\ns_and_b32 s{sr}, s{sr}, 3", f"s_lshl_b32 s{sr}, s{sr}, 11\ns_and_b32 s{sF}, s{sHme}, 0xffffe000\ns_add_u32 s{sr}, s{sr}, s{sF}\n"
                  f"buffer_store_dwordx4 {v(reg,4)}, v{vL16}, {s(WS,4)}, s{sr} offen sc1", f"buffer_store_dwordx4 {v(reg,4)}, v{vL16}, {s(WS,4)}, s{sr} offen offset:1024 sc1"]
        return r
    def xpoison(self, idx, reg):
        if not self.o.get("early", 0): return []
        return [f"s_add_u32 s{sP}, s{sT16+3}, {self.xt(idx)}\ns_mul_i32 s{sF}, s{sNB}, {5*KB}\ns_add_u32 s{sP}, s{sP}, s{sF}\nbuffer_store_dwordx4 {v(reg,4)}, v{vXW}, {s(WS,4)}, s{sP} offen sc1",
                f"buffer_store_dwordx4 {v(reg,4)}, v{vXW}, {s(WS,4)}, s{sP} offen offset:512 sc1",
                f"s_add_u32 s{sP}, s{sP}, 4096\nbuffer_store_dwordx2 {v(reg,2)}, v{vXW5}, {s(WS,4)}, s{sP} offen sc1",
                f"s_lshl_b32 s{sP}, s{sR}, 4\ns_add_u32 s{sP}, s{sP}, s{sJ}\ns_lshl_b32 s{sP}, s{sP}, 2\ns_add_u32 s{sP}, s{sP}, s{sW}",
                f"s_lshl_b32 s{sP}, s{sP}, 7\ns_add_u32 s{sP}, s{sP}, {STAT + idx*128*KB}\nbuffer_store_dwordx2 {v(reg,2)}, v{vSW}, {s(WS,4)}, s{sP} offen sc1"]
    def nan_net(self, acc, xl, items, allw, ring, imm, stat):
        xr = self.xr
        def fn():
            E = self.E
            Ls, Lb = E.label("NN"), E.label("NB")
            E(f"v_cmp_{'o' if self.o.get('forcenan') else 'u'}_f32 vcc, v{acc}, v{acc}\ns_cbranch_vccnz {Ls}"); E.place(Lb)
            F = Emit(); F.raw(f"{Ls}:")
            if self.stamps and self.o.get("ends"):
                self.sites.append("nan"); F(f"s_mov_b32 s{sTS}, 1\nv_writelane_b32 v{vTS2}, s{sTS}, {18 + len(self.sites)}")
            F("s_waitcnt vmcnt(0) lgkmcnt(0)"); F.settle()
            F(f"s_mov_b32 s{sF}, 0x200000"); F.raw(f"{Ls}_p:")
            F(self.poll_issue(sWC, imm + 8)); F.wait_smem()
            F(f"s_cmp_ge_u32 s{sPV}, 16\ns_cbranch_scc1 {Ls}_q\ns_sub_u32 s{sF}, s{sF}, 1\ns_cmp_lg_u32 s{sF}, 0\ns_cbranch_scc1 {Ls}_p"); F.raw(f"{Ls}_q:")
            F(f"s_mov_b32 s{sF}, s{sE_}")
            for g in xl: F(g)
            F(f"s_mov_b32 s{sE_}, s{sF}\ns_mov_b32 s{sF}, s{sC}")
            for g in stat: F(g)
            F(f"s_mov_b32 s{sC}, s{sF}")
            f = 0
            for k in range(6): F(self.wread(ring + 4 * k, allw[k]))
            for it in items:
                if it[0] == "cs": F(f"v_mfma_f32_32x32x16_bf16 {v(it[1],16)}, {R(it[2],4)}, {v(vNM,4)}, {v(it[1],16)}")
                else:
                    F(f"v_mfma_f32_32x32x16_bf16 {v(it[0],16)}, {R(ring+4*(f%6),4)}, {a(xr(it[1]),4)}, {'0' if it[2] else v(it[0],16)}")
                    F(self.wread(ring + 4 * (f % 6), allw[f + 6])); f += 1
            F.drain(); F.settle()
            F(f"s_branch {Lb}")
            self.tail.append(F.text())
        return fn
    def window(self, k):
        if self.o.get("stub", 70) >> k & 1: self.E.raw(";@WIN")
    def poll_block(self, sreg, imm, thr):
        if not self.preissued: self.E(self.poll_issue(sreg, imm))
        self.window(4 if imm < 512 else 6)
        self.poll_check(sreg, imm, thr)()
    def T(self, kind, L): return 1024 * kind + 4 * L if kind < 4 else 8 + 4 * L
    def touch(self, sreg, sh, off):
        def fn():
            self.E(f"s_add_u32 s{sP}, s{sreg}, s{sh}\ns_add_u32 s{sP}, s{sP}, {off}\nbuffer_load_dword v{vDUM}, v{vTL}, {s(WS,4)}, s{sP} offen sc1")
            self.E.pend.pop(f"v{vDUM}", None)
        m = self.o.get("touch", 0)
        return fn if (m & (1 if sh == sHX else 2)) else (lambda: None)
    def prologue(self):
        E = self.E
        kernel_header(E, KNAME)
        Lgo = E.label("GO")
        E(f"s_cmp_lt_u32 s2, 256\ns_cbranch_scc1 {Lgo}\ns_endpgm")
        E.place(Lgo)
        if self.stamps: E(f"s_memrealtime {s(sTS,2)}\ns_memtime {s(sTS+2,2)}")
        if self.o.get("echo"): E(f"s_memrealtime {s(sTS,2)}")
        E(f"s_load_dwordx2 {s(WS,2)}, s[0:1], 72\ns_load_dwordx2 {s(OUT,2)}, s[0:1], 56\ns_load_dwordx2 {s(XIN,2)}, s[0:1], 0")
        E("s_load_dwordx4 s[80:83], s[0:1], 8\ns_load_dwordx4 s[84:87], s[0:1], 32\ns_load_dwordx2 s[88:89], s[0:1], 48")
        Lp = E.label("PC")
        E(f"s_getpc_b64 {s(sRET,2)}"); E.place(Lp)
        E(f"s_lshr_b32 s{sA}, s2, 3\nv_lshl_add_u32 v{vT}, v0, 5, s{sA}\nv_lshlrev_b32 v{vT}, 7, v{vT}\nv_min_u32 v{vT}, main_end-{Lp}-4, v{vT}")
        E(f"global_load_dword v247, v{vT}, {s(sRET,2)}")
        E(f"s_mov_b32 s{WS+2}, {WS_BYTES}\ns_mov_b32 s{WS+3}, 0x00020000")
        for b in (OUT, XIN): E(f"s_mov_b32 s{b+2}, {2048*640*2}\ns_mov_b32 s{b+3}, 0x00020000")
        E(f"v_lshrrev_b32 v{vT}, 6, v0\nv_and_b32 v0, 63, v0\nv_readfirstlane_b32 s{sW}, v{vT}")
        E(f"s_and_b32 s{sA}, s2, 7\ns_lshr_b32 s{sB}, s2, 3")
        if self.mapping == "mix":
            E(f"s_lshr_b32 s{sC}, s{sA}, 1\ns_lshl_b32 s{sC}, s{sC}, 2\ns_lshr_b32 s{sR}, s{sB}, 3\ns_add_u32 s{sR}, s{sR}, s{sC}")
            E(f"s_and_b32 s{sC}, s{sA}, 1\ns_lshl_b32 s{sC}, s{sC}, 3\ns_and_b32 s{sJ}, s{sB}, 7\ns_add_u32 s{sJ}, s{sJ}, s{sC}")
        else:
            E(f"s_lshr_b32 s{sR}, s{sB}, 4\ns_lshl_b32 s{sC}, s{sA}, 1\ns_add_u32 s{sR}, s{sR}, s{sC}\ns_and_b32 s{sJ}, s{sB}, 15")
        E(f"s_and_b32 s{sTH}, s{sJ}, 1\ns_lshr_b32 s{sNB}, s{sJ}, 1\ns_lshl_b32 s{sLW}, s{sW}, 12")
        E(f"v_lshlrev_b32 v{vL16}, 4, v0")
        if self.stamps: E(f"v_mov_b32 v{vTS}, 0\nv_mov_b32 v{vTS2}, 0")
        E.wait_smem()
        if self.stamps:
            E(f"v_writelane_b32 v{vTS2}, s2, 63")
            E(f"v_writelane_b32 v{vTS}, s{sTS}, 0\nv_writelane_b32 v{vTS2}, s{sTS+2}, 0")
            self.nst = 1; self.stnames.append("entry")
        if self.o.get("align", 1):
            E(f"s_sub_u32 s{sA}, 0, s{WS}\ns_and_b32 s{sA}, s{sA}, 0x1fffff\ns_add_u32 s{WS}, s{WS}, s{sA}\ns_addc_u32 s{WS+1}, s{WS+1}, 0\ns_mov_b32 s{WS+2}, {WS_BYTES - 2*MB}")
        wo_ = self.o.get("wsoff", 0) << 20
        if wo_: E(f"s_add_u32 s{WS}, s{WS}, {wo_}\ns_addc_u32 s{WS+1}, s{WS+1}, 0\ns_mov_b32 s{WS+2}, {WS_BYTES - wo_}")
        S = self.S = Startup(self, sys.modules[__name__])
        S.roles(80, 82, 84, 86, 88)
        S.s1_load(); S.x_touch(); S.leader_clear()
        E(f"v_mov_b32 v{vTK+1}, {EPOCH}\nbuffer_load_dword v{vTK}, v{vTK+1}, {s(WS,4)}, 0 offen sc1")
        self.stamp("st S1 issued")
        if self.o.get("alpos", 0): E.raw(";@ALIGN"); self.window(10)
        S.s2_addrs()
        self.s2q = [(lambda i=i: setattr(S, "tok2", E(S.s2_load(i)))) for i in range(8)]
        if self.o.get("s2when", 2) == 0:
            while self.s2q: self.s2q.pop(0)()
        E(f"s_lshl_b32 s{sA}, s{sR}, 2\ns_add_u32 s{sA}, s{sA}, s{sW}\ns_mul_i32 s{sTK}, s{sA}, {40*KB}")
    def masks(self):
        r = []
        for i in range(16):
            m = 0
            for l in range(64):
                if (i & 3) + 8 * (i >> 2) + 4 * (l >> 5) <= (l & 31): m |= 1 << l
            r.append(f"s_mov_b32 s{sMASK+2*i}, {hex(m & 0xffffffff)}\ns_mov_b32 s{sMASK+2*i+1}, {hex(m >> 32)}")
        return r
    def x_bounce(self, T, wdm):
        E = self.E; S = self.S
        XA = 96; XR = 100; TM = 104; PA, PD = 240, 242
        o = self.o; X0 = 64 * KB
        E(f"v_lshrrev_b32 v48, 3, v0\nv_mul_u32_u24 v48, 1280, v48\nv_and_b32 v49, 7, v0\nv_lshrrev_b32 v50, 4, v0\nv_xor_b32 v49, v49, v50\nv_lshl_add_u32 v{XA}, v49, 4, v48")
        E(f"v_xor_b32 v{XA+1}, 64, v{XA}\nv_add_u32 v{XA+2}, {2*9216}, v{XA}\nv_add_u32 v{XA+3}, {3*9216}, v{XA+1}\nv_add_u32 v{XA+1}, 9216, v{XA+1}")
        tok = []
        def dma(ch):
            E(f"s_add_u32 m0, s{sLW}, {X0 + 16*KB*(ch%4)}\ns_add_u32 s{sE_}, s{sTK}, {128*ch}")
            for i in range(4): t = E(f"buffer_load_dwordx4 v{XA+i}, {s(XIN,4)}, s{sE_} offen offset:{1024*i} lds")
            tok.append(t)
        E(f"s_mul_i32 s{sWQ}, s{sJ}, {160*KB}\ns_add_u32 s{sWQ}, s{sWQ}, s{sLW}\ns_add_u32 s{sWQ}, s{sWQ}, {WQ}")
        E(f"v_min_u32 v{vSIG}, 1, v0\nv_lshlrev_b32 v{vSIG}, 28, v{vSIG}\nv_mov_b32 v{vONE}, 1")
        E(f"v_and_b32 v48, 31, v0\nv_lshrrev_b32 v49, 5, v0\nv_bfe_u32 v50, v0, 1, 3\nv_xor_b32 v49, v49, v50\nv_lshlrev_b32 v49, 4, v49\nv_lshl_add_u32 v48, v48, 7, v49")
        E(f"s_add_u32 s{sA}, s{sLW}, {X0}\nv_add_u32 v{XR}, s{sA}, v48")
        for k in range(1, 4): E(f"v_xor_b32 v{XR+k}, {32*k}, v{XR}")
        E(f"v_mov_b32 v{T}, 0\nv_mov_b32 v{T+1}, 0")
        E(f"s_lshl_b32 s{sA}, s{sNB}, 12\ns_add_u32 s{sA}, s{sA}, {F1}\ns_sub_u32 s{sB}, 15, s{sR}\ns_mov_b32 s{sC}, {F1 + 15*128}")
        E(f"v_and_b32 v49, 3, v0\nv_min_u32 v49, 2, v49\nv_add_u32 v49, s{sB}, v49\nv_min_u32 v49, 15, v49\nv_lshl_add_u32 v49, v49, 11, s{sC}")
        E(f"v_lshlrev_b32 v174, {o.get('vsh', 7)}, v0\nv_add_u32 v174, {VOTE}, v174")
        E(f"v_lshl_add_u32 v48, v0, 7, s{sA}\nv_cmp_gt_u32 vcc, 32, v0\nv_cndmask_b32 v{PA}, v49, v48, vcc")
        E(f"s_lshl_b32 s{sA}, s{sNB}, 12\ns_add_u32 s{sA}, s{sA}, {F2}\nv_and_b32 v48, 31, v0\nv_lshl_add_u32 v{PA+1}, v48, 7, s{sA}")
        prep = S.s2_prep if not o.get("s2when", 2) else (lambda: None)
        if o.get("cfirst", 1): self.prologue2(); prep()
        if not o.get("alpos", 0): E.raw(";@ALIGN")
        self.window(0)
        S.s1_proc()
        self.stamp("st S1 stored")
        for ch in range(0, 2): dma(ch)
        if not o.get("cfirst", 1): self.prologue2(); prep()
        E(f"s_mov_b32 s{sA}, 0x9e3779b1\nv_mul_lo_u32 v{vTK}, v{vTK}, s{sA}\nv_add_u32 v{vTK}, 0x7f4a7c15, v{vTK}\nv_xor_b32 v{vTK+1}, 0x5bd1e995, v{vTK}")
        E(f"v_readfirstlane_b32 s0, v{vTK}")
        if o.get("racepos", 1) == 0: S.leader_race()
        dma(2)
        if o.get("racepos", 1) == 1: S.leader_race()
        self.window(1)
        E.wait(vm=tok[0] - 3); E("s_barrier"); S.flag1(); self.stamp("st F1")
        dma(3)
        self.s2r = None
        nx = o.get("s2x", 10) if not o.get("s2when", 2) else 0
        if nx: self.s2r = S.s2_read()
        pi, pc = o.get("f1poll", 5), o.get("f1chk", 8)
        def dots(ch):
            tm = TM + 16 * (ch & 1)
            for e in range(16): E(f"v_dot2c_f32_bf16 v{T}, s{sONE}, v{tm+e}\nv_dot2c_f32_bf16 v{T+1}, v{tm+e}, v{tm+e}")
        for ch in range(10):
            E.wait(vm=tok[ch])
            for k in range(4): E(f"ds_read_b128 {v(TM+16*(ch&1)+4*k,4)}, v{XR+k} offset:{16*KB*(ch%4)}")
            for k in range(4): E(f"ds_read_b128 {a(16*ch+4*k,4)}, v{XR+k} offset:{16*KB*(ch%4)}")
            if ch == pi:
                E(f"s_cmp_eq_u32 s{sW}, 0\ns_cselect_b32 s{sA}, 0, {OOB}\nv_add_u32 v{PA}, s{sA}, v{PA}")
                E(S.vpoll_issue(PA, PD))
            if ch == o.get("vpos", 13) - 100: E(f"buffer_load_dword v156, v174, {s(WS,4)}, 0 offen sc1")
            if ch == o.get("resch", 1):
                for x in self.tile_addrs(140, 143): E(x)
                for i in range(3): rtok = E(f"s_add_u32 m0, s{sLW}, {16*KB + 1024*i}\nbuffer_load_dwordx4 v{140+i}, {s(XIN,4)}, s{sRM} offen lds")
            if ch == 7:
                E.wait(vm=rtok)
                E(f"ds_read_b128 v[136:139], v{vRM} offset:{16*KB}\nds_read_b128 v[140:143], v{vRM} offset:{16*KB+16}\nds_read_b64 v[144:145], v{vRM5} offset:{16*KB+128}")
            if ch == 8:
                for i in range(10): E(f"v_lshlrev_b32 v{vRES+2*i}, 16, v{136+i}\nv_and_b32 v{vRES+2*i+1}, 0xffff0000, v{136+i}")
            if ch: dots(ch - 1)
            E.drain(vm=False)
            if ch + 4 < 10: dma(ch + 4)
            if ch == o.get("s2ch", 0):
                while self.s2q: self.s2q.pop(0)()
                if o.get("s2when", 2): S.s2_prep()
            for _ in range(o.get("s2n", 2)):
                if ch < nx and ch >= o.get("s2f", 5) and self.s2r[1]: E(self.s2r[1].pop(0))
            if ch == pc:
                Lw = E.label("PW")
                E.need(regs(v(PD, 2)))
                E(f"s_cmp_lg_u32 s{sW}, 0\ns_cbranch_scc1 {Lw}")
                S.vpoll_check(PA, PD, 4)()
                E.place(Lw)
                E("s_barrier")
                self.stamp("WQ synced")
            if ch >= pc and wdm:
                for _ in range(o.get("wfirst", 1)):
                    for g in wdm.pop(0): self.do(g)
        dots(9)
        self.stamp("st x done")
    def sharers(self):
        return [f"s_and_b32 s{sA}, s{sR}, 3\ns_lshl_b32 s{sH8}, s{sA}, 1\ns_add_u32 s{sH8}, s{sH8}, s{sTH}\ns_lshl_b32 s{sH8}, s{sH8}, 11",
                f"s_and_b32 s{sA}, s{sR}, 3\ns_lshl_b32 s{sH16}, s{sA}, 2\ns_add_u32 s{sH16}, s{sH16}, s{sW}\ns_lshl_b32 s{sH16}, s{sH16}, 11\ns_sub_u32 s{sH16}, s{sH16}, s{sLW}",
                f"s_and_b32 s{sHX}, s{sJ}, 7\ns_lshl_b32 s{sHX}, s{sHX}, 11"]
    def prologue2(self):
        E = self.E; NREP = self.o.get("nrep", 4)
        E(f"s_mul_i32 s{sWGU}, s{sJ}, {240*KB}\ns_add_u32 s{sWGU}, s{sWGU}, s{sLW}\ns_add_u32 s{sWGU}, s{sWGU}, {WGU}")
        E(f"s_mul_i32 s{sWO}, s{sNB}, {100*KB}\ns_mul_i32 s{sA}, s{sW}, {25*KB}\ns_add_u32 s{sWO}, s{sWO}, s{sA}\ns_add_u32 s{sWO}, s{sWO}, {WO}")
        E(f"s_mul_i32 s{sWD}, s{sNB}, {240*KB}\ns_mul_i32 s{sA}, s{sW}, {60*KB}\ns_add_u32 s{sWD}, s{sWD}, s{sA}\ns_add_u32 s{sWD}, s{sWD}, {WD}")
        E(f"s_lshl_b32 s{sA}, s{sR}, 2\ns_add_u32 s{sA}, s{sA}, s{sW}")
        for i in range(9):
            E(f"s_cmp_lt_u32 s{sA}, {8-i}\ns_cselect_b32 s{sFL+i}, 0x3f803f80, 0x3f800000" if False else
              f"s_cmp_lt_u32 s{sA}, {8-i}\ns_cselect_b32 s{sFL+i}, 0x3f80, 0\ns_or_b32 s{sFL+i}, s{sFL+i}, 1.0")
        E(f"v_lshlrev_b32 v{vSR}, 10, v0\nv_mov_b32 v48, {OOB}\nv_cmp_gt_u32 vcc, {NREP}, v0\nv_cndmask_b32 v{vSR}, v48, v{vSR}, vcc")
        for i in range(3):
            E(f"s_add_u32 s{sA}, s{sW}, {1+i}\ns_and_b32 s{sA}, s{sA}, 3\ns_mul_i32 s{sA}, s{sA}, {15*KB}\ns_add_u32 s{sA}, s{sA}, {5*KB*i}\nv_add_u32 v{vRW+i}, s{sA}, v{vL16}")
        E(f"s_mul_i32 s{sA}, s{sW}, {15*KB}\nv_add_u32 v{vRW+3}, s{sA}, v{vL16}")
        t0, t1, t2 = 48, 49, 50
        E(f"v_add_u32 v{vL16b}, 0x10000, v{vL16}\nv_add_u32 v{vL16c}, 0x20000, v{vL16}")
        E(f"v_lshrrev_b32 v{t0}, 4, v0\nv_and_b32 v{t1}, 15, v0")
        E(f"v_lshlrev_b32 v{t2}, 9, v{t0}\nv_lshl_add_u32 v{vU}, v{t1}, 4, v{t2}")
        E(f"v_lshlrev_b32 v{t2}, 10, v{t0}\nv_lshl_add_u32 v{vXW}, v{t1}, 4, v{t2}")
        E(f"v_lshrrev_b32 v{t2}, 1, v{t0}\nv_lshlrev_b32 v{t2}, 9, v{t2}\nv_lshl_add_u32 v{vXW5}, v{t1}, 4, v{t2}")
        E(f"v_and_b32 v{t2}, 1, v{t0}\nv_lshl_add_u32 v{vXW5}, v{t2}, 3, v{vXW5}")
        E(f"s_mul_i32 s{sA}, s{sNB}, {5*KB}\nv_add_u32 v{vXW}, s{sA}, v{vXW}\ns_add_u32 s{sA}, s{sA}, 4096\nv_add_u32 v{vXW5}, s{sA}, v{vXW5}")
        for r_ in (vXW, vXW5): E(f"v_and_b32 v{t2}, 0xffffe000, v{r_}\nv_add_u32 v{r_}, v{t2}, v{r_}")
        E(f"v_lshlrev_b32 v{vTL}, 7, v{t1}\nv_lshl_add_u32 v{vTL}, v{t0}, 28, v{vTL}")
        E(f"v_lshlrev_b32 v{vSW}, 3, v{t1}\nv_lshl_add_u32 v{vSW}, v{t0}, 28, v{vSW}")
        E(f"v_mul_u32_u24 v{t2}, 160, v{t1}\nv_add_u32 v{t2}, s{sLW}, v{t2}\nv_lshl_add_u32 v{vRM}, v{t0}, 5, v{t2}\nv_lshl_add_u32 v{vRM5}, v{t0}, 3, v{t2}")
        E(f"s_lshl_b32 s{sA}, s{sR}, 1\ns_add_u32 s{sA}, s{sA}, s{sTH}\ns_lshl_b32 s{sA}, s{sA}, 2\ns_add_u32 s{sA}, s{sA}, s{sW}")
        E(f"s_mul_i32 s{sA}, s{sA}, {16*1280}\ns_mul_i32 s{sB}, s{sNB}, 160\ns_add_u32 s{sRM}, s{sA}, s{sB}")
        E(f"v_lshrrev_b32 v{t0}, 5, v0\nv_and_b32 v{t1}, 31, v0")
        E(f"v_lshlrev_b32 v{t2}, 2, v{t0}\nv_xor_b32 v{t2}, v{t2}, v{t1}\nv_lshlrev_b32 v{t2}, 4, v{t2}\nv_lshl_add_u32 v{vPOS}, v{t0}, 9, v{t2}")
        E(f"v_lshlrev_b32 v{t2}, 3, v{t1}")
        E(f"s_lshl_b32 s{sA}, s{sW}, 8\nv_lshl_add_u32 v{vST}, v{t0}, 12, v{t2}\nv_add_u32 v{vST}, s{sA}, v{vST}")
        E(f"v_lshlrev_b32 v{t2}, 4, v{t1}\nv_lshl_add_u32 v{vO4}, v{t0}, 3, v{t2}")
        E(f"s_mul_i32 s{sA}, s{sW}, {SLOT}\nv_add_u32 v{vKR}, s{sA}, v{vPOS}")
        for g in self.arena_consts(): E(g)
    def arena_fix(self, VV):
        n = self.o.get("numa", -1)
        assert self.o.get("nrace", NRACE) == 1
        ld = f"buffer_load_dword v{VV}, v174, {s(WS,4)}, 0 offen sc1"
        chk = f"v_sub_u32 v{VV}, v{VV}, v{vTK}\nv_cmp_lt_u32 vcc, 7, v{VV}"
        Ls, Lb = self.E.label("VT"), self.E.label("VB")
        self.tail.append(f"{Ls}:\ns_mov_b32 s{sF}, 0x100000\n{Ls}_l:\ns_sleep 4\n{ld}\ns_waitcnt vmcnt(0)\n{chk}\ns_nop 1"
                         f"\ns_cbranch_vccz {Lb}\ns_sub_u32 s{sF}, s{sF}, 1\ns_cmp_lg_u32 s{sF}, 0\ns_cbranch_scc1 {Ls}_l\ns_branch {Lb}")
        va = [chk + f"\ns_cbranch_vccnz {Ls}\n@{Lb}", f"v_lshrrev_b32 v{VV+1}, 2, v{VV}", f"v_and_b32 v{VV}, 1, v{VV}",
              f"v_cmp_ne_u32 vcc, v{VV}, v{VV+1}\ns_bcnt1_i32_b64 s64, vcc\ns_cmp_ge_u32 s64, 32\ns_cselect_b32 s64, 1, 0",
              f"v_xor_b32 v{VV}, s64, v{VV+1}", f"v_lshlrev_b32 v{VV}, 13, v{VV}",
              f"s_lshr_b32 s65, s{sW}, 1\ns_add_u32 s65, s65, s{sR}\ns_max_u32 s65, s65, 2\ns_sub_u32 s65, s65, 2",
              f"s_lshl_b32 s65, s65, 2\ns_lshl_b32 s64, s{sR}, 2", f"v_readlane_b32 s64, v{VV}, s64", f"v_readlane_b32 s65, v{VV}, s65"]
        r = []
        if self.stamps: r.append(f"v_writelane_b32 v{vTS}, s64, 62")
        if n >= 0:
            r += [f"s_lshr_b32 s64, s{sR}, 3\ns_xor_b32 s64, s64, {n}\ns_lshl_b32 s64, s64, 13",
                  f"s_lshr_b32 s65, s{sW}, 1\ns_add_u32 s65, s65, s{sR}\ns_sub_u32 s65, s65, 2", f"s_bfe_u32 s65, s65, 0x10003\ns_xor_b32 s65, s65, {n}\ns_lshl_b32 s65, s65, 13"]
        own = [sXB, sHme, sKP, sOme, sTP, sTC, sWP, sWC] + [sT16 + i for i in range(8)]
        r += ["\n".join(f"s_add_u32 s{x}, s{x}, s64" for x in own[k:k + 2]) for k in range(0, 16, 2)]
        r += [f"s_cmp_eq_u32 s{sKT}, 0\ns_cselect_b32 s64, s64, s65\ns_cselect_b32 s65, 0, s65",
              f"s_add_u32 s{sHAL}, s{sHAL}, s65\ns_add_u32 s{sKC}, s{sKC}, s64\ns_add_u32 s{sKVme}, s{sKVme}, s64"]
        return va + [r]
    def arena_consts(self):
        NREP = self.o.get("nrep", 4)
        r = [f"s_mul_i32 s{sAR}, s{sR}, {ASTR}\ns_add_u32 s{sAR}, s{sAR}, {ARENA}",
             f"s_lshr_b32 s{sB}, s{sW}, 1\ns_mul_i32 s{sA}, s{sB}, {ASTR}\ns_add_u32 s{sA}, s{sA}, s{sAR}",
             f"s_sub_u32 s{sA}, s{sA}, {2*ASTR}",
             f"s_mul_i32 s{sXB}, s{sW}, {80*KB}\ns_add_u32 s{sXB}, s{sXB}, s{sAR}",
             f"s_lshl_b32 s{sC}, s{sJ}, 14\ns_and_b32 s{sD}, s{sJ}, 3\ns_lshl_b32 s{sD}, s{sD}, 10\ns_add_u32 s{sC}, s{sC}, s{sD}\ns_lshl_b32 s{sHme}, s{sW}, 18\ns_add_u32 s{sHme}, s{sHme}, s{sC}",
             f"s_add_u32 s{sHme}, s{sHme}, s{sAR}\ns_and_b32 s{sD}, s{sW}, 1\ns_lshl_b32 s{sHAL}, s{sD}, 19",
             f"s_add_u32 s{sHAL}, s{sHAL}, s{sC}\ns_add_u32 s{sHAL}, s{sHAL}, s{sA}\ns_add_u32 s{sHAL}, s{sHAL}, {A_KV1}\ns_lshl_b32 s{sC}, s{sJ}, 1",
             f"s_add_u32 s{sKC}, s{sC}, s{sD}\ns_lshl_b32 s{sKC}, s{sKC}, 7\ns_add_u32 s{sKC}, s{sKC}, s{sA}",
             f"s_add_u32 s{sKC}, s{sKC}, {A_KVF}\ns_add_u32 s{sKP}, s{sC}, s{sB}\ns_lshl_b32 s{sKP}, s{sKP}, 7",
             f"s_add_u32 s{sKP}, s{sKP}, s{sAR}\ns_add_u32 s{sKP}, s{sKP}, {A_KVF}\ns_add_u32 s{sKVme}, s{sKP}, 32",
             f"s_add_u32 s{sC}, s{sR}, s{sB}\ns_mov_b32 s{sHAL+1}, {256*KB}\ns_cmp_lt_u32 s{sC}, 2\ns_cselect_b32 s{sHAL}, s{sWQ}, s{sHAL}\n"
             f"s_cselect_b32 s{sHAL+1}, {5*KB}, s{sHAL+1}\ns_cselect_b32 s{sKVme}, s{sKVme}, s{sKC}\ns_cselect_b32 s{sKC}, s{sKP}, s{sKC}\ns_cselect_b32 s{sKT}, 0, 2",
             f"s_lshr_b32 s{sD}, s{sJ}, 2\ns_lshl_b32 s{sOme}, s{sD}, 14\ns_add_u32 s{sOme}, s{sOme}, s{sXB}",
             f"s_add_u32 s{sA}, s{sAR}, {A_CNT}\ns_lshl_b32 s{sC}, s{sB}, 2\ns_add_u32 s{sC}, s{sC}, s{sD}",
             f"s_lshl_b32 s{sC}, s{sC}, 7\ns_add_u32 s{sTP}, s{sA}, s{sC}\ns_lshl_b32 s{sC}, s{sTH}, 2",
             f"s_add_u32 s{sC}, s{sC}, s{sW}\ns_lshl_b32 s{sC}, s{sC}, 7\ns_add_u32 s{sTC}, s{sA}, s{sC}",
             f"s_and_b32 s{sD}, s{sNB}, {NREP-1}\ns_lshl_b32 s{sD}, s{sD}, 10",
             f"s_add_u32 s{sA}, s{sA}, {32*128}\ns_lshl_b32 s{sC}, s{sTH}, 1\ns_add_u32 s{sC}, s{sC}, s{sB}",
             f"s_lshl_b32 s{sC}, s{sC}, 7\ns_add_u32 s{sWP}, s{sA}, s{sC}\ns_lshl_b32 s{sC}, s{sW}, 7",
             f"s_add_u32 s{sWC}, s{sA}, s{sC}\ns_add_u32 s{sWC}, s{sWC}, s{sD}"]
        for i in range(4):
            r += [f"s_add_u32 s{sA}, s{sW}, {1+i}\ns_bfe_u32 s{sB}, s{sA}, 0x10001\ns_and_b32 s{sC}, s{sA}, 1",
                  f"s_lshl_b32 s{sC}, s{sC}, 8\ns_add_u32 s{sC}, s{sC}, s{sAR}\ns_lshl_b32 s{sD}, s{sTH}, 1",
                  f"s_add_u32 s{sB}, s{sB}, s{sD}\ns_mul_i32 s{sT16+i}, s{sB}, {80*KB}\ns_add_u32 s{sT16+i}, s{sT16+i}, s{sC}",
                  f"s_lshl_b32 s{sB}, s{sB}, 2\ns_add_u32 s{sB}, s{sB}, s{sW}\ns_lshl_b32 s{sB}, s{sB}, 16\ns_add_u32 s{sT16H+i}, s{sB}, s{sC}"]
        return r
    def tile_addrs(self, d, t):
        r = []
        for i in range(3):
            r += [f"v_add_u32 v{t}, {64*i}, v0", f"v_mul_u32_u24 v{t+1}, 6554, v{t}", f"v_lshrrev_b32 v{t+1}, 16, v{t+1}",
                  f"v_mul_u32_u24 v{t+1}, {1280 - 160}, v{t+1}", f"v_lshl_add_u32 v{d+i}, v{t}, 4, v{t+1}"]
        return r + [f"v_lshrrev_b32 v{t}, 5, v0", f"v_lshl_add_u32 v{d+2}, v{t}, 28, v{d+2}"]
    def stat_loads(self, idx, t):
        return [(f"s_and_b32 s{sC}, s{sTC}, 0xffffe000\ns_add_u32 s{sC}, s{sC}, {(A_ST - A_CNT + idx*16*KB) & 0xffffffff}\n" if q == 0 else "") +
                f"buffer_load_dwordx2 {v(t+2*q,2)}, v{vST}, {s(WS,4)}, s{sC} offen offset:{1024*q} sc1" for q in range(4)]
    def stat_ops(self, t):
        return [f"v_add_f32 v{t}, v{t}, v{t+2}", f"v_add_f32 v{t+1}, v{t+1}, v{t+3}", f"v_add_f32 v{t+4}, v{t+4}, v{t+6}", f"v_add_f32 v{t+5}, v{t+5}, v{t+7}",
              f"v_add_f32 v{t}, v{t}, v{t+4}", f"v_add_f32 v{t+1}, v{t+1}, v{t+5}", f"v_mov_b32 v{t+2}, v{t}", f"v_mov_b32 v{t+3}, v{t+1}",
              f"v_permlane32_swap_b32 v{t+2}, v{t}", f"v_permlane32_swap_b32 v{t+3}, v{t+1}",
              f"v_add_f32 v{t}, v{t}, v{t+2}", f"v_add_f32 v{t+1}, v{t+1}, v{t+3}",
              f"v_fma_f32 v{t}, v{t+1}, 0, v{t}",
              f"v_mul_f32 v{t}, {f2u(-1/640)}, v{t}", f"v_mul_f32 v{t+1}, {f2u(1/640)}, v{t+1}",
              f"v_fma_f32 v{t+1}, -v{t}, v{t}, v{t+1}", f"v_cvt_pk_bf16_f32 v{vNM}, v{t}, v{t}", f"v_max_f32 v{t+1}, 0, v{t+1}",
              f"v_mov_b32 v{vNM+1}, v{vNM}", f"v_add_f32 v{vIV}, {f2u(EPS)}, v{t+1}", f"v_mov_b32 v{vNM+2}, v{vNM}",
              f"v_rsq_f32 v{vRSTD}, v{vIV}", f"v_mov_b32 v{vNM+3}, v{vNM}"]
    def cs_loads(self, base, stride, ntile, dst):
        g = []
        for t in range(ntile):
            p = ""
            if t == 0: p = f"s_mul_i32 s{sD}, s{sJ}, {stride}\ns_add_u32 s{sD}, s{sD}, {base}\n"
            if t == 4: p = f"s_add_u32 s{sD}, s{sD}, 4096\n"
            g.append(p + f"buffer_load_dwordx4 {R(dst+4*t,4)}, v{vL16}, {s(WS,4)}, s{sD} offen offset:{1024*(t%4)} sc1")
        return g
    def xloads(self, base):
        g = []
        for ks in range(40):
            t = f"s_add_u32 s{sE_}, s{sXB}, {base + 16*KB*(ks >> 3) + 1024*(ks & 4)}\n" if ks % 4 == 0 else ""
            g.append(t + f"buffer_load_dwordx4 {a(self.xr(ks),4)}, v{vL16}, {s(WS,4)}, s{sE_} offen offset:{1024*(ks%4)} sc1")
        return g
    def xstart(self, xl, base):
        n = self.o.get("xt", 2)
        for g in xl[:n]: self.E(g)
        for k in range(2): self.touch(sXB, sHX, base + 8 * KB + 16 * KB * k)()
        for g in xl[n:NX0]: self.E(g)
        self.window(7 if base == self.xt(2) else 8)
    def horder(self, b):
        ch = self.o.get('ch5', 2)
        return [(s0 + k, i) for s0 in range(b, b + 4, ch) for i in range(4) for k in range(ch)]
    def xt(self, i): return A_X[i] or 0
    def fine(self, tag, sl):
        st = self.o.get("fine_" + tag, 0)
        if st and sl and sl % st == 0: self.stamp(f"{tag}@{sl}")
    def wstream(self, items, pos0, allw, ring, ev=None, valu=None, pre=None, budget=32, tag=""):
        E = self.E; LA = 6
        ev = ev or {}; valu = list(valu or []); pre = pre or {}
        f = pos0; over = 0; defer = []
        for sl, it in enumerate(items):
            self.fine(tag, sl)
            for g in pre.get(sl, []): self.do(g)
            if it[0] == "cs":
                assert not any(isinstance(x, str) and f"v{vNM+3}," in x for _, x in valu), "stats not ready"
                E(f"v_mfma_f32_32x32x16_bf16 {v(it[1],16)}, {R(it[2],4)}, {v(vNM,4)}, {v(it[1],16)}")
                c0 = E.cost - 8
            else:
                acc, ks, first = it
                if f % 2 == 0: E.need(regs(R(ring + 4 * (f % LA), 4)) | regs(R(ring + 4 * ((f + 1) % LA), 4)) | regs(a(self.xr(ks), 4)))
                E(f"v_mfma_f32_32x32x16_bf16 {v(acc,16)}, {R(ring+4*(f%LA),4)}, {a(self.xr(ks),4)}, {'0' if first else v(acc,16)}")
                c0 = E.cost - 8
                if f + LA < len(allw): E(self.wread(ring + 4 * (f % LA), allw[f + LA]))
                f += 1
            for g in ev.get(sl, []): self.do(g)
            if defer and self.o.get("verbose") == 1: print("   ", tag, "deferred op at slot", sl)
            if defer: self.do(defer.pop(0))
            lim = budget - (4 if f % 2 == 0 else 0)
            while valu and valu[0][0] <= sl:
                x = valu[0][1]
                if isinstance(x, list): defer += x; valu.pop(0); continue
                c = sum(8 if y.startswith(TRANS) else 4 for y in x.split("\n"))
                if E.cost - c0 + c > lim and not (c > 16 and E.cost - c0 <= 12): break
                valu.pop(0); E(x)
            over += max(0, E.cost - c0 - lim)
        if self.o.get("verbose"): print(tag, "over budget", over, "left valu", len(valu))
        valu += [(0, defer)]
        assert max(list(ev) + list(pre) + [0]) < len(items), (max(list(ev) + list(pre)), len(items))
        for _, x in valu:
            for y in (x if isinstance(x, list) else [x]): self.do(y)
    def wstream16(self, acc, cs, pos0, allw, ring, ev=None, valu=None, pre=None, budget=16, vend=84, tag=""):
        E = self.E
        ev = ev or {}; valu = list(valu or []); pre = pre or {}
        cost = lambda x: sum(8 if y.startswith(TRANS) else 4 for y in x.split("\n"))
        q = []; over = 0
        for sl in range(84):
            self.fine(tag, sl)
            for g in pre.get(sl, []): self.do(g)
            for g in ev.get(sl, []): q += self.flat(g)
            for hf in range(2):
                rd = None
                if sl < 80:
                    sp, n, t = sl >> 3, (sl >> 1) & 3, sl & 1
                    f = pos0 + (sl & ~1) + hf; w = ring + 4 * (f % 6); d = acc[n >> 1] + 8 * t + 4 * (n & 1)
                    xr = self.xr(4 * sp + 2 * t + hf)
                    if hf == 0:
                        nd = regs(a(xr, 4)) | regs(a(self.xr(4 * sp + 2 * t + 1), 4))
                        if t == 0: nd |= regs(v(w, 4)) | regs(v(ring + 4 * ((f + 1) % 6), 4))
                        E.need(nd)
                    assert n or t or hf or any(x.startswith(f"buffer_load_dwordx4 {a(self.xr(4 * sp + 3), 4)},") for x in E.out[self.x0:])
                    E(f"v_mfma_f32_16x16x32_bf16 {v(d,4)}, {v(w,4)}, {a(xr,4)}, {'0' if sp == 0 and hf == 0 else v(d,4)}")
                    if t == 1 and f + 6 < len(allw): rd = self.wread(w, allw[f + 6])
                else:
                    assert not any(isinstance(x, str) and f"v{vNM+3}," in x for _, x in valu), "stats not ready"
                    n, t = sl - 80, hf; d = acc[n >> 1] + 8 * t + 4 * (n & 1)
                    E(f"v_mfma_f32_16x16x16_bf16 {v(d,4)}, {v(cs+2*n,2)}, {v(vNM+2*t,2)}, {v(d,4)}")
                c0 = E.cost - 8
                if rd: E(rd)
                while q and (E.cost - c0 <= 8 or (len(q) > 4 and E.cost - c0 <= 12)):
                    self.do(q.pop(0))
                lim = budget - (4 if sl % 2 == 1 and hf == 1 else 0)
                left = sum(cost(x) for _, x in valu if isinstance(x, str)); gaps = max(1, 2 * (vend - sl) - hf)
                mind = left - (gaps - 1) * self.vrate if valu and valu[0][0] <= sl else 0
                done = 0
                while valu and valu[0][0] <= sl:
                    x = valu[0][1]
                    if isinstance(x, list):
                        for y in x: q += self.flat(y)
                        valu.pop(0); continue
                    c = cost(x)
                    if E.cost - c0 + c > lim and done >= mind: break
                    valu.pop(0); E(x); done += c
                over += max(0, E.cost - c0 - lim)
        if self.o.get("verbose"): print(tag, "over budget", over, "left valu", len(valu), "left q", len(q))
        assert max(list(ev) + list(pre) + [0]) < 84
        for _, x in valu:
            for y in (x if isinstance(x, list) else [x]): self.do(y)
        for y in q: self.do(y)
    @staticmethod
    def pair_items(acc, cs):
        return [(acc[sl & 1], sl >> 1, sl < 2) for sl in range(80)] + [("cs", acc[0], cs), ("cs", acc[1], cs + 4)]
    def p1(self, L):
        E = self.E; o = self.o
        ACC = [48, 64, 80, 96]; RING = 112; CS = 136
        KA, KB_, KV1, VA, VB = 152, 156, 160, 164, 168
        QA0, QB0, QA1, QB1 = 172, 176, 180, 184
        self.Q = (QA0, QB0, QA1, QB1)
        MK = self.MK = 188; VAD = self.VAD = [196, 205]; K1 = self.K1 = AG
        self.WOF = [AG + 160 + 4 * f for f in range(24)] + [244]
        self.xr = lambda ks: 4 * ks
        xl = self.xloads(self.xt(2 * L))
        allw = [1024 * f for f in range(80)] + [1024 * f for f in range(80, 160)]
        tok = []
        if L == 0:
            dm = [self.dma4(sWQ, 16 * KB * c, 16 * KB * c, tok) for c in range(10)]
            wdm = list(dm)
            self.x_bounce(152, wdm)
            c0 = 10 - len(wdm)
            assert o.get("f1chk", 8) >= 7
            assert c0 <= 4
            self.window(9)
            if o.get("s2when", 2): E.wait(vm=self.S.tok2); E("s_barrier")
            s2cs, s2st, s2last = self.s2r or self.S.s2_read()
            self.stamp("st S2 read")
            late = sum(dm[2:], [])
        else:
            E.wait(vm=self.wq_tok[1]); E("s_barrier")
            for f in range(6): E(self.wread(RING + 4 * f, allw[f]))
            self.poll_block(sWC, 512 + 4 * (L - 1), 16)
            self.stamp("L1 P1 synced")
            self.xstart(xl, self.xt(2 * L))
            resops = []; late = self.wq_late; tok = self.wq_tok
        def ready(c): return lambda: (E.wait(vm=tok[c]), E("s_barrier"))
        if L == 0:
            ready(0)()
            for f in range(6): E(self.wread(RING + 4 * f, allw[f]))
        t0, t1, t2 = 216, 217, 218
        cst = []
        for i in range(8):
            cst += [f"v_cndmask_b32 v{t0}, 0, -1, {s(sMASK+4*i,2)}", f"v_cndmask_b32 v{t1}, 0, -1, {s(sMASK+4*i+2,2)}",
                    f"v_and_b32 v{t0}, 0xffff, v{t0}", f"v_lshl_or_b32 v{MK+i}, v{t1}, 16, v{t0}"]
        cst += [f"v_lshrrev_b32 v{t0}, 5, v0", f"v_bfe_u32 v{t1}, v0, 2, 2", f"v_lshl_add_u32 v{t0}, v{t0}, 2, v{t1}",
                f"v_bfe_u32 v{t1}, v0, 4, 1", f"v_and_b32 v{t2}, 3, v0", f"v_lshl_add_u32 v{t1}, v{t1}, 2, v{t2}",
                f"v_and_b32 v{t2}, 1, v0", f"v_lshlrev_b32 v219, 2, v{t2}", f"v_xor_b32 v219, v219, v{t0}", f"v_lshlrev_b32 v219, 4, v219",
                f"v_lshl_add_u32 v219, v{t2}, 9, v219", f"v_bfe_u32 v220, v0, 1, 1", f"v_lshl_add_u32 v220, v220, 3, v219", f"v_add_u32 v221, {4096+128+8}, v219",
                f"v_mov_b32 v224, 128", f"v_mov_b32 v225, {SLOT}", f"v_subrev_u32 v226, v{vPOS}, v{vKR}"]
        cst += [f"s_lshl_b32 s{sC}, s{sW}, 7\ns_add_u32 s{sC}, s{sC}, {ONES+128}\nv_mov_b32 v227, s{sC}"]
        for hd in range(2):
            cst += [f"v_add_u32 v222, {2048+1024*hd}, v220", f"v_cmp_gt_u32 vcc, 4, v{t1}\nv_cndmask_b32 v222, v221, v222, vcc", f"v_add_u32 v222, v226, v222",
                    f"v_cmp_gt_u32 {s(sC,2)}, 4, v{t1}\nv_cmp_eq_u32 vcc, {4+hd}, v{t1}\ns_or_b64 vcc, vcc, {s(sC,2)}\nv_cndmask_b32 v{VAD[hd]}, v227, v222, vcc\nv_cndmask_b32 v223, v224, v225, vcc"]
            cst += [f"v_add_u32 v{VAD[hd]+i}, v{VAD[hd]+i-1}, v223" for i in range(1, 9)]
        cst = [f"v_mov_b32 v{228+i}, 0x3f803f80" for i in range(4)] + cst
        ev = {}; pre = {}
        so = self.stat_ops(152)
        if L == 0:
            for c in range(1, 5): pre[16 * c - 6] = [ready(c)]
            nA = o.get("lateA", 9)
            seq = []
            for c in range(c0, nA):
                seq += dm[c]
                if c == 4: seq += self.cs_loads(CSQ, 4 * KB, 4, CS)
            spread(ev, seq, 0, o.get("lateS", 26) / 10)
            spread(ev, s2st, o.get("s2s0", 0), o.get("s2sS", 10) / 10)
            cA = o.get("cstA", 0)
            spread(ev, self.masks(), *((1, 0.5) if cA else (31, 3)))
            lateB = sum(dm[nA:], [])
            if o.get("vpos", 13) < 100: ev.setdefault(o.get("vpos", 13), []).append(f"buffer_load_dword v156, v174, {s(WS,4)}, 0 offen sc1")
            so = [(1, x) for x in so[6:] + s2cs] + [(1, [s2last])]
            if cA:
                assert o.get("csdot") and cA > o.get("s2s0", 0) + o.get("s2sS", 10) + 8
                cst = [x.replace(s(sC, 2), "s[64:65]") for x in cst]
                so += [(cA, x) for x in cst]; cst = []
            so += [(50, x) for x in self.arena_fix(156)]
        else:
            pre[26] = [ready(len(tok) - 1)]
            assert len(tok) >= 7
            spread(ev, xl[NX0:] , 0, o.get('xS', 20) / 10)
            if o.get("early", 0): ev.setdefault(11, []).append(self.statsig)
            spread(ev, self.stat_loads(2, 152), 39, 2)
            spread(ev, late, o.get('lt0', 60), (81.9 - o.get('lt0', 60)) / max(len(late), 1))
            so = [(66, x) for x in so]
        if L: spread(ev, [self.touch(sWO, sH8, 16 * KB * k) for k in range(2)], 61, 14)
        if L == 0: pre[74] = [ready(5)]
        self.nA0 = len(E.out)
        self.wstream(self.pair_items(ACC[:2], CS), 0, allw, RING, ev, so, pre, tag=f"A{L}")
        self.stamp(f"L{L} P1 passA")
        def epi(G0, G1, dst, sc, at):
            r = []
            for G in range(G0, G1):
                b = ACC[0] + 4 * G
                r += [(at, f"v_mul_f32 v{b+i}, v{sc[G-G0]}, v{b+i}") for i in range(4)]
                r += [(at, f"v_cvt_pk_bf16_f32 v{dst[G-G0]+i}, v{b+2*i}, v{b+2*i+1}") for i in range(2)]
            return r
        kvg = A_KV1
        sKVme = sHme
        st = {}
        vKW = 214; vQS = 215
        stA = [f"buffer_store_dwordx4 {v(reg,4)}, v{vPOS}, {s(WS,4)}, s{sA} offen offset:{off} sc1" for reg, off in ((KA, 0), (KB_, 1024), (VA, 2048))]
        stA[0] = f"s_add_u32 s{sA}, s{sKVme}, {kvg}\ns_add_u32 s{sB}, s{sA}, 4096\n" + stA[0]
        stA.append(lambda: st.__setitem__("A", E(f"buffer_store_dwordx4 {v(KV1,4)}, v{vPOS}, {s(WS,4)}, s{sB} offen sc1")))
        ldsA = [f"ds_write_b128 v{vKW}, {v(reg,4)} offset:{off}" for reg, off in ((KA, 0), (KB_, 1024), (VA, 2048), (KV1, 4096 + 128))]
        putB = [lambda: st.__setitem__("B", E(f"s_add_u32 s{sA}, s{sKVme}, {kvg}\nbuffer_store_dwordx4 {v(VB,4)}, v{vPOS}, {s(WS,4)}, s{sA} offen offset:3072 sc1")),
                f"ds_write_b128 v{vKW}, {v(VB,4)} offset:3072"]
        qs = 20 ** -0.5 * math.log2(math.e)
        va = epi(0, 8, [KA, KA + 2, KV1, KB_, KB_ + 2, VA, VA + 2, KV1 + 2], [vRSTD] * 8, 1)
        for k, G in reversed(list(enumerate((1, 4, 6, 7)))): va.insert(6 * (G + 1), (1, [stA[k]]))
        va = [(0, f"v_add_u32 v{vKW}, {8*SLOT}, v{vKR}"), (0, f"v_mul_f32 v{vQS}, {f2u(qs)}, v{vRSTD}")] + va
        nB0 = len(E.out)
        def after(x, need):
            def fn():
                assert any(y.startswith(need) for y in E.out[self.nA0:]), need
                E(x)
            return fn
        ldsA = [after(x, f"v_cvt_pk_bf16_f32 v{r_+3},") for x, r_ in zip(ldsA, (KA, KB_, VA, KV1))]
        n1 = o.get("cst1", 50)
        va += [(1, x) for x in cst[:n1]]
        va += epi(8, 10, [VB, VB + 2], [vRSTD] * 2, 43) + [(43, putB)] + epi(10, 12, [QA0, QA0 + 2], [vQS] * 2, 43)
        va += [(43, x) for x in cst[n1:]]
        for i in range(9):
            va += [(52, f"v_accvgpr_write_b32 {R(K1+4*i+2)}, s{sFL+i}"), (52, f"v_accvgpr_write_b32 {R(K1+4*i+3)}, 0")]
        va += [(52, f"v_mov_b32 v{q+3}, 0") for q in (QA1, QB1)] + [(52, f"v_mov_b32 v{164+i}, -1") for i in range(4)]
        items = [(ACC[2], k, k == 0) for k in range(40)] + [("cs", ACC[2], CS + 8)] + [(ACC[3], k, k == 0) for k in range(40)] + [("cs", ACC[3], CS + 12)]
        ev = {}; pre = {}
        if L == 0:
            pre[10] = [ready(6)]
            endA = E.vm_n
            pre[26] = [lambda: E.wait(vm=endA), ready(7), self.S.flag2]
            pre[43] = [ready(9)]
            spread(ev, lateB, 0, 2.5)
        else:
            if o.get("early", 0):
                pre[2] = [self.nan_net(ACC[0], xl, self.pair_items(ACC[:2], CS) + items[:2], allw, RING, 512, self.stat_loads(2, 152) + self.stat_ops(152))]
                va = [(max(2, sl), x) for sl, x in va]
            pre[26] = [ready(9)]
        spread(ev, ldsA + [after(f"ds_write_b128 v{vL16}, v[228:231] offset:{ONES + k}", "v_mov_b32 v231, 0x3f80") for k in (0, 1024)], 26, 2)
        wo = []
        for f in range(25):
            t = f"s_add_u32 s{sT0+1}, s{sWO}, {1024*f}\n" if f % 4 == 0 else ""
            wo.append(t + f"buffer_load_dwordx4 {R(self.WOF[f],4)}, v{vL16}, {s(WS,4)}, s{sT0+1} offen offset:{1024*(f%4)} sc1")
        if L == 0:
            pass
        nwo = o.get("wob", 14)
        if L == 0:
            nwo = 0
        else:
            spread(ev, wo[:nwo], o.get('wo0', 13), (o.get('wo1', 57) - o.get('wo0', 13)) / nwo)
        self.wo_late = wo[nwo:]
        spread(ev, [self.touch(sWGU, sH16, 32 * KB * k) for k in range(2)], 40, 16)
        sa, pa, ca, sb = o.get("sa", 34), o.get("pa", 50), o.get("ca", 70), o.get("sb", 79)
        if L == 0: sa, pa, ca = o.get("sa0", sa), o.get("pa0", pa), o.get("ca0", ca)
        ev.setdefault(sa, []).append(self.signal(sKP, 8 * L, lambda: st["A"]))
        ev.setdefault(pa, []).append(self.poll_issue(sKC, 8 * L))
        pre.setdefault(ca, []).append(self.poll_check(sKC, 8 * L, f"s{sKT}"))
        hal = []; self.haltok = []
        for t in range(2):
            p = f"s_mul_i32 s{sB}, s{sW}, {2*SLOT}\n" if t == 0 else ""
            hal.append(p + f"s_add_u32 m0, s{sB}, {t*SLOT}\ns_add_u32 s{sE_}, s{sHAL}, {s(sHAL+1) if t else 0}\nbuffer_load_dwordx4 v{vL16}, {s(WS,4)}, s{sE_} offen sc1 lds")
            hal += [f"buffer_load_dwordx4 v{vL16}, {s(WS,4)}, s{sE_} offen offset:{1024*i} sc1 lds" for i in (1, 2)]
            hal.append(f"s_add_u32 m0, s{sB}, {t*SLOT+4096+128}\ns_add_u32 s{sE_}, s{sE_}, 4096\nbuffer_load_dwordx4 v{vL16}, {s(WS,4)}, s{sE_} offen sc1 lds")
        lasth = hal[-1]; hal[-1] = lambda: self.haltok.append(E(lasth))
        assert ca > 44
        spread(ev, hal, ca, o.get("halS", 10) / 10)
        ev.setdefault(sb, []).append(self.signal(sKP, 8 * L + 4, lambda: st["B"]))
        self.wstream(items, 80, allw, RING, ev, va, pre, budget=o.get("budB", 32) if L else o.get("budB0", o.get("budB", 32)), tag=f"B{L}")
        self.stamp(f"L{L} P1 passB")
        if L == 0: E(self.S.vpoll_issue(241, 242))
        for _, x in epi(12, 15, [QA1, QB0, QB0 + 2], [vQS] * 3, 0): E(x)
        E(f"s_mov_b32 vcc_lo, -1\ns_mov_b32 vcc_hi, 0")
        for i in range(2):
            E(f"v_cndmask_b32 v{QB1+i}, v{QA1+i}, v{QA1+3}, vcc")
            E(f"v_cndmask_b32 v{QA1+i}, 0, v{QA1+i}, vcc")
        for k in range(6):
            for hd, (q0, q1, k0) in enumerate(((QA0, QA1, KA), (QB0, QB1, KB_))):
                qa, ka = (q0 + k, k0 + k) if k < 4 else (q1 + k - 4, KV1 + k - 4)
                E(f"v_dot2_f32_bf16 v{216+hd}, v{qa}, v{ka}, {'0' if k == 0 else v(216+hd)}")
        E(f"s_mov_b32 s{sA}, {f2u(-1e38)}")
        for hd, q1 in enumerate((QA1, QB1)): E(f"v_cvt_pk_bf16_f32 v{q1+2}, s{sA}, -v{216+hd}")
    def att_defs(self):
        QA0, QB0, QA1, QB1 = self.Q
        d = self
        d.kread = lambda hd, i, dst: f"ds_read_b128 {R(dst,4)}, v{vKR} offset:{i*SLOT + 1024*hd}"
        d.k1read = lambda i: f"ds_read_b64 {R(self.K1+4*i,2)}, v{vKR} offset:{i*SLOT + 4096 + 128}"
        def smf(hd, i, dst, k0, C="0"):
            q0, q1 = (QA0, QA1) if hd == 0 else (QB0, QB1)
            return [f"v_mfma_f32_32x32x16_bf16 {v(dst,16)}, {R(k0,4)}, {v(q0,4)}, {C}",
                    f"v_mfma_f32_32x32x16_bf16 {v(dst,16)}, {R(self.K1+4*i,4)}, {v(q1,4)}, {v(dst,16)}"]
        d.smf = smf
        d.vreads = lambda hd, i, vf: [f"ds_read_b64_tr_b16 {R(vf+2*k,2)}, v{self.VAD[hd]+i} offset:{128*k}" for k in range(4)]
        def expops(src, p):
            r = []
            for k in range(8):
                r += [f"v_exp_f32 v{src+2*k}, v{src+2*k}", f"v_exp_f32 v{src+2*k+1}, v{src+2*k+1}"]
                if k: r.append(f"v_cvt_pk_bf16_f32 v{p+k-1}, v{src+2*k-2}, v{src+2*k-1}")
            r.append(f"v_cvt_pk_bf16_f32 v{p+7}, v{src+14}, v{src+15}")
            return r
        d.expops = expops
        d.mergeops = lambda dg, old: [f"v_cndmask_b32 v{dg+k}, v{old+k}, v{dg+k}, {s(sMASK+2*k,2)}" for k in range(16)]
        d.splitops = lambda p, pm: [f"v_bfi_b32 v{pm+k}, v{self.MK+k}, 0, v{p+k}" for k in range(8)] + [f"v_and_b32 v{p+k}, v{self.MK+k}, v{p+k}" for k in range(8)]
        d.pv = lambda O, vf, p, first: [f"v_mfma_f32_32x32x16_bf16 {v(O,16)}, {R(vf,4)}, {v(p,4)}, {'0' if first else v(O,16)}",
                                        f"v_mfma_f32_32x32x16_bf16 {v(O,16)}, {R(vf+4,4)}, {v(p+4,4)}, {v(O,16)}"]
    def fallback(self, hd):
        E = Emit(); O = self.O[hd]
        S, SD, NEG, P, PM, MX = 48, 64, 214, 230, 238 - 0, 246
        PM = 152 + 8
        K0 = AG + 136; VF = AG + 140; SP = AG + 104
        E.raw(f"FB{hd}:")
        E("s_waitcnt vmcnt(0) lgkmcnt(0)"); E.settle()
        for k in range(32): E(f"v_accvgpr_write_b32 {R(SP+k)}, v{48+k}")
        E(f"v_mov_b32 v{MX+2}, 0xff7fffff")
        for i in (8, 7, 6, 5, 4, 3, 2, 1, 0):
            E(self.kread(hd, i, K0))
            for x in self.smf(hd, i, SD if i == 8 else S, K0): E(x)
            if i == 8: continue
            src = S
            if i == 0:
                for x in self.mergeops(SD, S): E(x)
                src = SD
            for k in range(8): E(f"v_max3_f32 v{MX+2}, v{src+2*k}, v{src+2*k+1}, v{MX+2}")
        E(f"v_mov_b32 v{MX+3}, v{MX+2}\nv_permlane32_swap_b32 v{MX+3}, v{MX+2}\nv_max_f32 v{MX+2}, v{MX+2}, v{MX+3}")
        for k in range(16): E(f"v_sub_f32 v{NEG+k}, 0, v{MX+2}")
        for k in range(16): E(f"v_add_f32 v{SD+k}, v{NEG}, v{SD+k}")
        for x in self.expops(SD, P) + self.splitops(P, PM): E(x)
        for x in self.vreads(hd, 8, VF) + self.pv(O, VF, P, True): E(x)
        E.settle()
        for x in self.vreads(hd, 0, VF) + self.pv(O, VF, PM, False): E(x)
        for i in range(7, 0, -1):
            E.settle()
            E(self.kread(hd, i, K0))
            for x in self.vreads(hd, i, VF) + self.smf(hd, i, S, K0, v(NEG, 16)) + self.expops(S, P) + self.pv(O, VF, P, False): E(x)
        E.settle()
        for k in range(32): E(f"v_accvgpr_read_b32 v{48+k}, {R(SP+k)}")
        E.settle()
        for f, q in enumerate(EARLY):
            E(f"s_add_u32 s{sF}, s{sWD}, {1024*f}\nbuffer_load_dwordx4 {R(q,4)}, v{vL16}, {s(WS,4)}, s{sF} offen sc1")
        E.drain(); E.settle()
        E(f"s_setpc_b64 {s(sRET,2)}")
        return E.text()
    def p2(self, L):
        E = self.E; o = self.o
        self.att_defs()
        S = [48, 64]; SD = 80; P = [96, 104]; PM = 112; O = self.O = [120, 136]; D = 152; TT = 168
        K0 = [AG + 36, AG + 40, AG + 44]; VF = [AG + 48, AG + 56, AG + 64]
        self.OF = {}
        for st in range(2):
            for i in range(4): self.OF[(st, i)] = AG + 72 + 16 * st + 4 * i
        for st in range(2, 5):
            for i in range(4): self.OF[(st, i)] = (108 + 12 * i if i < 3 else 176) + 4 * (st - 2)
        if L == 0: self.tail += [self.fallback(0), self.fallback(1)]
        obase = self.obase = A_O
        E.wait(vm=self.haltok[0], ds=E.ds_n); E("s_barrier")
        self.stamp(f"L{L} halo in")
        ev = {}; pre = {}
        if L == 0: pre[o.get("f2c", 6)] = [self.S.vpoll_check(241, 242, 4)]
        dm = []
        for c in range(6): dm += self.dma4(sWGU, 16 * KB * c, 64 * KB + 16 * KB * c)
        hb = []
        for t in range(2):
            hb.append(f"s_mul_i32 s{sD}, s{sW}, {2*SLOT}\ns_add_u32 m0, s{sD}, {t*SLOT}\ns_add_u32 s{sE_}, s{sHAL}, {s(sHAL+1) if o.get('ovl', 3) and t else t*5*KB}\nbuffer_load_dwordx4 v{vL16}, {s(WS,4)}, s{sE_} offen offset:3072 sc1 lds")
        lasth = hb[-1]; hb[-1] = lambda: self.haltok.append(E(lasth))
        pb, cb = o.get("pb", 4), o.get("cb", 16)
        nl = len(self.wo_late)
        n1 = min(nl, int((cb - (0 if L else o.get('f2c', 6))) / 2.1))
        spread(ev, self.wo_late[:n1], 0 if L else o.get("f2c", 6), 2.1 if L else 1.8)
        ev.setdefault(pb, []).append(self.poll_issue(sKC, 8 * L + 4))
        pre.setdefault(cb, []).append(self.poll_check(sKC, 8 * L + 4, f"s{sKT}"))
        spread(ev, hb, cb, 1)
        self.pool = Pool(EARLY); self.mk_wdload()
        rest = self.wo_late[n1:] + dm + self.wd(o.get("wd2" if L else "wd20", 7 if L else 0))
        spread(ev, rest, cb + 2, (o.get("bgend", 68) - cb - 2) / len(rest))
        spread(ev, [self.touch(sWGU, sH16, 32 * KB * k) for k in range(2, 5)] + [self.touch(sWD, sH8, 0)], 10, 14)
        spread(ev, [f"s_and_b32 s{sA}, s{sJ}, 3\ns_lshl_b32 s{sB}, s{sA}, 10\ns_add_u32 s{sB}, s{sB}, s{sOme}\ns_add_u32 s{sB}, s{sB}, {obase}\n"
                    f"s_add_u32 s{sC}, s{sB}, 4096\nbuffer_store_dwordx4 v[164:167], v{vL16}, {s(WS,4)}, s{sC} offen sc1",
                    f"s_lshl_b32 s{sA}, s{sJ}, 9\ns_add_u32 s{sA}, s{sA}, s{sXB}\ns_add_u32 s{sA}, s{sA}, {obase + 64*KB}\n"
                    f"buffer_store_dwordx2 v[164:165], v{vO4}, {s(WS,4)}, s{sA} offen sc1"] + self.xpoison(2 * L + 1, 164), min(o.get("poi", 5), 20), 2)
        if o.get("senth", 0) and o.get("poiw", 1) == 0:
            assert o.get("ovl", 3) == 3
            spread(ev, self.hpoison(164, sP), o.get("poih", 20), 2)
        SO = self.SO = [sH8, sH16, sHX, sD]
        self.ol = ol = lambda st, i, va, off: f"buffer_load_dwordx4 {R(self.OF[(st,i)],4)}, v{va}, {s(WS,4)}, s{SO[i]} offen offset:{off} sc1"
        ev.setdefault(45, []).append(f"s_lshl_b32 s{sE_}, s{sW}, 14\ns_add_u32 s{sE_}, s{sE_}, {obase}\n" + "\n".join(f"s_add_u32 s{SO[i]}, s{sE_}, s{sT16+i}" for i in range(4)))
        self.aq = [self.poll_check(sTC, self.T(0, L), 8)] + sum([[ol(0, i, vU, 0), ol(1, i, vU, 2048)] for i in range(4)], [])
        oca = o.get("oca", 99)
        if oca < 70:
            pre.setdefault(oca, []).append(self.aq[0])
            spread(ev, self.aq[1:], oca, (70 - oca) / 8); self.aq = []
        st = {}
        def check(hd):
            def fn():
                Lo, Lb = E.label("FO"), E.label("FR")
                E(f"v_subrev_u32 v{TT}, {hex(63 << 23)}, v{O[hd]+12}\nv_cmp_le_u32 vcc, {hex(128 << 23)}, v{TT}\ns_cbranch_vccnz {Lo}")
                E.place(Lb)
                self.tail.append(f"{Lo}:\ns_call_b64 {s(sRET,2)}, FB{hd}\ns_branch {Lb}")
            return fn
        def norm(hd):
            r = [check(hd), f"v_rcp_f32 v{TT}, v{O[hd]+12}"]
            if hd: r += [f"v_pk_mul_f32 {v(O[hd]+k,2)}, {v(O[hd]+k,2)}, {v(TT,2)} op_sel_hi:[1,0]" for k in range(0, 12, 2)]
            else: r += [f"v_mul_f32 v{O[hd]+k}, v{TT}, v{O[hd]+k}" for k in range(12)]
            r += [f"v_cvt_pk_bf16_f32 v{D+8*hd+k}, v{O[hd]+2*k}, v{O[hd]+2*k+1}" for k in range(6)]
            return r
        def putOA():
            st["a"] = E(f"buffer_store_dwordx4 {v(D,4)}, v{vL16}, {s(WS,4)}, s{sB} offen sc1")
        slot = [0]
        def weave(mf, mems, valu):
            n = len(mf); mems = list(mems); valu = list(valu)
            for k, m in enumerate(mf):
                if o.get("w1", 2) == 2 and k >= 2 and k % 2 == 0 and k + 1 < n: E.need(Ins(m).src | Ins(mf[k + 1]).src)
                self.fine(f"t{L}", slot[0])
                for g in pre.pop(slot[0], []): self.do(g)
                E(m)
                for _ in range(-(-len(mems) // (n - k))): E(mems.pop(0))
                for g in ev.pop(slot[0], []): self.do(g)
                for _ in range(-(-len(valu) // (n - k))): self.do(valu.pop(0))
                slot[0] += 1
        seq = [(hd, i) for hd in range(2) for i in (7, 6, 5, 4, 3, 2, 1, 8, 0)]
        kslot = {x: K0[n % 3] for n, x in enumerate(seq)}
        kq = list(seq)
        def knext():
            if not kq: return []
            hd, i = kq.pop(0)
            return [self.kread(hd, i, kslot[(hd, i)])] + ([self.k1read(i)] if hd == 0 else [])
        for x in knext() + knext() + knext(): E(x)
        for x in self.smf(0, 7, S[0], kslot[(0, 7)]): E(x)
        pend = []; vn = 0
        sa_, pa_ = o.get("osa", 56), o.get("opa", 69)
        ev.setdefault(pa_, []).append(self.poll_issue(sTC, self.T(0, L)))
        ev.setdefault(sa_, []).append(self.signal(sTP, self.T(0, L), lambda: st["a"]))
        for hd in range(2):
            for n in range(8):
                mf = []; mems = []; va = []
                if n < 6:
                    mf += self.smf(hd, 6 - n, S[(n + 1) % 2], kslot[(hd, 6 - n)]); mems += knext()
                    mf += pend
                elif n == 6:
                    mf += self.smf(hd, 8, SD, kslot[(hd, 8)]) + self.smf(hd, 0, S[1], kslot[(hd, 0)]); mems += knext()
                    mf += pend
                else:
                    mf += pend
                    if hd == 0: mf += self.smf(1, 7, S[0], kslot[(1, 7)])
                    mems += knext() + knext()
                    if hd == 0: pre.setdefault(slot[0] + len(mf), []).append(lambda: (E.wait(vm=self.haltok[1]), E("s_barrier")))
                    if hd == 0 and o.get("ovl", 3) and not (L and o.get("ovl", 3) >= 2): ev.setdefault(slot[0] + len(mf), []).append(self.signal(sKVme, 16 + 4 * L, lambda: self.haltok[1]))
                if n < 7:
                    vf = VF[vn % 3]; vn += 1
                    vr = self.vreads(hd, 7 - n, vf)
                    mems = mems + vr
                    va += self.expops(S[n % 2], P[n % 2])
                    pend = self.pv(O[hd], vf, P[n % 2], n == 0)
                    if hd == 1 and n == 1: va = norm(0) + [putOA] + va
                else:
                    v8, v0_ = VF[vn % 3], VF[(vn + 1) % 3]; vn += 2
                    mems = mems + self.vreads(hd, 8, v8) + self.vreads(hd, 0, v0_)
                    va += self.mergeops(SD, S[1]) + self.expops(SD, P[1]) + self.splitops(P[1], PM)
                    pend = self.pv(O[hd], v8, P[1], False) + self.pv(O[hd], v0_, PM, False)
                weave(mf, mems, va)
            if hd == 0: self.stamp(f"L{L} att a")
        weave(pend, [], [])
        assert not ev and not pre, (ev, pre, slot)
        for x in norm(1): self.do(x)
        E(f"s_mov_b32 vcc_lo, -1\ns_mov_b32 vcc_hi, 0")
        for k in range(2): E(f"v_cndmask_b32 v{D+4+k}, v{D+12+k}, v{D+4+k}, vcc")
        E(f"buffer_store_dwordx4 {v(D+8,4)}, v{vL16}, {s(WS,4)}, s{sC} offen sc1")
        self.otok = E(f"buffer_store_dwordx2 {v(D+4,2)}, v{vO4}, {s(WS,4)}, s{sA} offen sc1")
        if o.get("obf", 0): E(f"buffer_atomic_add v{vONE}, v{vSIG}, {s(WS,4)}, s{sTP} offen offset:{self.T(1, L)} sc1")
        self.stamp(f"L{L} att done")
    def reduce_and_publish(self, ACC, steps, red, PT, xidx, wimm, final, bg, post, bg0=1, bgstep=5, vals=None):
        E = self.E
        bg = list(bg); rd = []; self.nextbg = 0
        sal = []
        if not final:
            sal = [f"s_add_u32 s{sA}, s{sT16+3}, {self.xt(xidx)}",
                   f"s_lshl_b32 s{sC}, s{sJ}, 2\ns_add_u32 s{sC}, s{sC}, s{sW}", f"s_lshl_b32 s{sC}, s{sC}, 7\ns_and_b32 s{sP}, s{sTC}, 0xffffe000",
                   f"s_add_u32 s{sC}, s{sC}, s{sP}\ns_add_u32 s{sC}, s{sC}, {(A_ST - A_CNT + xidx*16*KB) & 0xffffffff}"]
        AW = [PT + 56 + i for i in range(3)]
        for i in range(3): E(f"v_add_u32 v{AW[i]}, {red}, v{vRW+i}")
        E(f"v_add_u32 v{vT}, {red}, v{vRW+3}")
        order = [(q, nt) for nt in range(5) for q in range(3)]
        ns = len(steps); nr = 5 * ns; lag = self.o.get("wlag", 5)
        wat = {nr * i + ns * (nt + 1) - 1 + lag: f"ds_write_b128 v{AW[i]}, {v(ACC[i]+4*nt,4)} offset:{1024*nt}" for i in range(3) for nt in range(5)}
        bar = min(max(wat) + self.o.get("rbar", 4), 4 * nr - 1)
        bgq = []
        for i in range(4):
            left = [x for x in range(nr * i, nr * (i + 1)) if x not in wat]
            for nt in range(5):
                for si, (W, act) in enumerate(steps):
                    k = nr * i + ns * nt + si; d = ACC[i] + 4 * nt
                    E(f"v_mfma_f32_16x16x32_bf16 {v(d,4)}, {R(W[nt],4)}, {R(act[i],4)}, {v(d,4)}")
                    if k in wat: E(wat[k])
                    elif vals and i < 3 and len([x for x in left if x >= k]) <= len(vals[i + 1]): self.do(vals[i + 1].pop(0))
                    elif k == bar:
                        E.drain(vm=False); E("s_barrier")
                        rd = [f"ds_read_b128 {v(PT+20*q+4*n_,4)}, v{vT} offset:{1024*(5*q+n_)}" for q, n_ in order]
                    elif rd:
                        E(rd.pop(0))
                        if rd: E(rd.pop(0))
                    elif i == 0 and sal: E(sal.pop(0))
                    else:
                        if not bgq and bg and i >= bg0 and k >= self.nextbg: bgq = self.flat(bg.pop(0)); self.nextbg = k + bgstep
                        if bgq: self.do(bgq.pop(0))
            assert not (vals and i < 3 and vals[i + 1])
        for x in bgq: self.do(x)
        for x in rd: E(x)
        assert not sal
        self.stamp("  mfma done")
        D = ACC[0]
        if final:
            stores = [f"ds_write_b128 v{vRM}, {v(D,4)}", f"ds_write_b128 v{vRM}, {v(D+4,4)} offset:16", f"ds_write_b64 v{vRM5}, {v(D+8,2)} offset:128"]
        else:
            stores = [f"buffer_store_dwordx4 {v(D,4)}, v{vXW}, {s(WS,4)}, s{sA} offen sc1", f"buffer_store_dwordx4 {v(D+4,4)}, v{vXW}, {s(WS,4)}, s{sA} offen offset:512 sc1",
                      f"buffer_store_dwordx2 {v(D+8,2)}, v{vXW5}, {s(WS,4)}, s{sA} offen sc1"]
        for nts in ((0, 1), (2, 3), (4,)):
            ks = [4 * nt + e for nt in nts for e in (0, 2)]
            for k in ks: E(f"v_pk_add_f32 {v(PT+k,2)}, {v(PT+k,2)}, {v(PT+20+k,2)}")
            for k in ks: E(f"v_pk_add_f32 {v(vRES+k,2)}, {v(vRES+k,2)}, {v(PT+40+k,2)}")
            for k in ks: E(f"v_pk_add_f32 {v(vRES+k,2)}, {v(vRES+k,2)}, {v(PT+k,2)}")
            for k in ks: E(f"v_cvt_pk_bf16_f32 v{D+k//2}, v{vRES+k}, v{vRES+k+1}")
            if final: E(stores.pop(0))
        if final:
            for i in range(3): E(f"ds_read_b128 {v(D+12+4*i,4)}, v{vNM+3} offset:{1024*i}")
            for i in range(3): E(f"buffer_store_dwordx4 {v(D+12+4*i,4)}, v{vNM+i}, {s(OUT,4)}, s{sRM} offen {FINAL}")
            return
        for x in stores: data = E(x)
        early = self.o.get("early", 0)
        if early: E(f"buffer_atomic_add v{vONE}, v{vSR}, {s(WS,4)}, s{sWP} offen offset:{wimm} sc1")
        self.stamp("  stored")
        T = PT
        E(f"v_pk_add_f32 {v(T,2)}, {v(vRES,2)}, {v(vRES+2,2)}\nv_pk_mul_f32 {v(T+2,2)}, {v(vRES,2)}, {v(vRES,2)}")
        E(f"v_pk_fma_f32 {v(T+2,2)}, {v(vRES+2,2)}, {v(vRES+2,2)}, {v(T+2,2)}")
        for k in range(4, 20, 2):
            E(f"v_pk_add_f32 {v(T,2)}, {v(T,2)}, {v(vRES+k,2)}\nv_pk_fma_f32 {v(T+2,2)}, {v(vRES+k,2)}, {v(vRES+k,2)}, {v(T+2,2)}")
        E(f"v_add_f32 v{T}, v{T}, v{T+1}\nv_add_f32 v{T+1}, v{T+2}, v{T+3}")
        for sw in ("v_permlane32_swap_b32", "v_permlane16_swap_b32"):
            E(f"v_mov_b32 v{T+2}, v{T}\nv_mov_b32 v{T+3}, v{T+1}")
            E(f"{sw} v{T+2}, v{T}\n{sw} v{T+3}, v{T+1}")
            E(f"v_add_f32 v{T}, v{T}, v{T+2}\nv_add_f32 v{T+1}, v{T+1}, v{T+3}")
        last = E(f"buffer_store_dwordx2 {v(T,2)}, v{vSW}, {s(WS,4)}, s{sC} offen sc1")
        E("s_barrier")
        n0 = self.o.get("post0", 5); n1 = n0 + self.o.get("post1", 4)
        post = list(bg) + list(post)
        for g in post[:n0]: self.do(g)
        self.window(3 if wimm < 512 else 5)
        if not early: self.signal(sWP, wimm, last, vSR)()
        self.stamp("  signalled")
        self.preissued = False
        pp = self.o.get("pp", 99)
        for k, g in enumerate(post[n0:]):
            if early and n0 + k == pp: E(self.poll_issue(sWC, wimm)); self.preissued = True
            self.do(g)
        self.statsig = self.signal(sWP, wimm + 8, last, vSR)
    def mk_wdload(self):
        self.WDF = {}
        def wdload(f):
            def fn():
                q = self.pool.get(); self.WDF[f] = q
                t = f"s_add_u32 s{sT0+1}, s{sWD}, {1024*f}\n" if f % 4 == 0 else ""
                assert t or self.E.lastw[f"s{sT0+1}"] == f"s_add_u32 s{sT0+1}, s{sWD}, {1024*(f & ~3)}"
                return self.E(t + f"buffer_load_dwordx4 {R(q,4)}, v{vL16}, {s(WS,4)}, s{sT0+1} offen offset:{1024*(f%4)} sc1")
            return fn
        self.wdq = [wdload(f) for f in range(60)]
    def wd(self, n):
        r = self.wdq[:n]; self.wdq = self.wdq[n:]
        return r
    def p3(self, L):
        E = self.E; o = self.o
        ACC = [48, 68, 88, vRES]
        W = lambda st: [self.WOF[5 * st + nt] for nt in range(5)]
        self.pool.add([188 + 4 * i for i in range(7)])
        SO = self.SO; ol = self.ol; vU4 = 172
        for g in self.aq: self.do(g)
        E(f"s_mul_i32 s{sE_}, s{sW}, {14*KB}\ns_sub_u32 s{sE_}, {60*KB}, s{sE_}\nv_add_u32 v{vU4}, s{sE_}, v{vU}")
        for i in range(4): E(f"s_add_u32 s{SO[i]}, s{SO[i]}, 4096")
        E("s_barrier")
        bl = [[ol(2, i, vU, 0), ol(3, i, vU, 2048), ol(4, i, vU4, 0)] for i in range(4)]
        vals = [self.validate([self.OF[(st, i)] for st in range(2, 5)], bl[i], 168) for i in range(4)]
        q = sum(bl, [])
        self.window(2)
        obf = o.get("obf", 0); k0 = 0
        if obf:
            k0 = o.get("obc", 30)
            if o.get("obp", 4) < 0: E(self.poll_issue(sTC, self.T(1, L)))
        else:
            if o.get("obw", 1): E.wait(vm=self.otok)
            for _ in range(o.get("obn", 3)): E(q.pop(0))
        k = 0
        for i in range(4):
            for nt in range(5):
                for st in range(2):
                    d = ACC[i] + 4 * nt
                    E(f"v_mfma_f32_16x16x32_bf16 {v(d,4)}, {R(W(st)[nt],4)}, {R(self.OF[(st,i)],4)}, {'0' if st == 0 and i < 3 else v(d,4)}")
                    if obf:
                        if k == o.get("obp", 4): E(self.poll_issue(sTC, self.T(1, L)))
                        if k == k0: self.poll_check(sTC, self.T(1, L), 8)()
                        if k >= k0 and q: E(q.pop(0))
                    elif k % o.get("obs", 3) == 0 and q: E(q.pop(0))
                    elif k >= 40 - len(vals[0]) and k < 39: self.do(vals[0].pop(0))
                    k += 1
        for g in q: E(g)
        for g in vals[0]: self.do(g)
        self.stamp(f"L{L} P3 synced")
        steps = [(W(st), [self.OF[(st, i)] for i in range(4)]) for st in range(2, 5)]
        self.CSG = 152
        bg = self.wd(o.get("wd3b", 6))
        self.vals = vals
        def freewo(): self.pool.add([176, 180, 184] + [AG + 104 + 4 * i for i in range(14)] + self.WOF[:10] + self.WOF[24:])
        self.gu_late = []
        self.gu_tok = []
        for c in range(6, 10): self.gu_late += self.dma4(sWGU, 16 * KB * c, 16 * KB * (c - 6), self.gu_tok)
        n = o.get("gu3", 16)
        post = [freewo] + self.gu_late[:n]
        self.gu_late = self.gu_late[n:]
        self.reduce_and_publish(ACC, steps, 0, 108 - 16 + 16, 2 * L + 1, 4 * L, False, bg, post, vals=vals)
        self.stamp(f"L{L} P3 done")
    def p4_32(self, L):
        E = self.E; o = self.o
        ACC = [[48, 64], [80, 96]]; RING = 112; HP = 136; T = 144
        allw = [1024 * ((64 + f) % 160) for f in range(240)]
        for f in range(6): E(self.wread(RING + 4 * f, allw[f]))
        self.poll_block(sWC, 4 * L, 16)
        self.stamp(f"L{L} P4 synced")
        self.xr = lambda ks: 4 * ks if ks < 26 else 200 + 4 * (ks - 26)
        xl = self.xloads(self.xt(2 * L + 1))
        self.xstart(xl, self.xt(2 * L + 1))
        c1 = -2 * 0.7978845608028654 * math.log2(math.e)
        so = self.stat_ops(T) + [f"v_mul_f32 v{vC1}, {f2u(c1)}, v{vRSTD}", f"v_mul_f32 v{T}, v{vRSTD}, v{vRSTD}", f"v_mul_f32 v{vC2}, {f2u(0.044715)}, v{vC1}",
                                 f"v_mul_f32 v{vC2}, v{T}, v{vC2}"]
        st = self.htok = {}
        def put(p, k):
            if k == 0: return f"buffer_store_dwordx4 {v(HP,4)}, v{vL16}, {s(WS,4)}, s{sA} offen sc1"
            return lambda: st.__setitem__(p, E(f"buffer_store_dwordx4 {v(HP+4,4)}, v{vL16}, {s(WS,4)}, s{sA} offen offset:1024 sc1"))
        haddr = lambda p: [f"s_add_u32 s{sA}, s{sJ}, {p}\ns_and_b32 s{sA}, s{sA}, 3\ns_lshl_b32 s{sA}, s{sA}, 11", f"s_and_b32 s{sB}, s{sHme}, 0xffffe000\ns_add_u32 s{sA}, s{sA}, s{sB}"]
        def epi(p):
            g, u = ACC[p % 2]; r = [haddr(p)]
            for k0 in range(0, 16, 4):
                ks = range(k0, k0 + 4)
                r += [f"v_mul_f32 v{T+k%4}, v{g+k}, v{g+k}" for k in ks]
                r += [f"v_fma_f32 v{T+k%4}, v{T+k%4}, v{vC2}, v{vC1}" for k in ks]
                r += [f"v_mul_f32 v{T+k%4}, v{T+k%4}, v{g+k}" for k in ks]
                r += [f"v_exp_f32 v{T+k%4}, v{T+k%4}" for k in ks]
                r += [f"v_mul_f32 v{g+k}, v{g+k}, v{u+k}" for k in ks]
                r += [f"v_fma_f32 v{T+k%4}, v{T+k%4}, v{vIV}, v{vIV}" for k in ks]
                r += [f"v_rcp_f32 v{T+k%4}, v{T+k%4}" for k in ks]
                r += [f"v_mul_f32 v{g+k}, v{g+k}, v{T+k%4}" for k in ks]
                r += [f"v_cvt_pk_bf16_f32 v{HP+k//2}, v{g+k}, v{g+k+1}" for k in ks if k % 2 == 0]
                if k0 in (4, 12): r.append([put(p, k0 // 8)])
            return [(2, x) for x in r]
        def epi_pk(p):
            g, u = ACC[p % 2]; r = []
            for k0 in range(0, 16, 8):
                ks = range(k0, k0 + 8, 2)
                r += [f"v_pk_mul_f32 {v(T+k%8,2)}, {v(g+k,2)}, {v(g+k,2)}" for k in ks]
                r += [f"v_pk_fma_f32 {v(T+k%8,2)}, {v(T+k%8,2)}, {v(vC1,2)}, {v(vC1,2)} op_sel:[0,1,0] op_sel_hi:[1,1,0]" for k in ks]
                r += [f"v_pk_mul_f32 {v(T+k%8,2)}, {v(T+k%8,2)}, {v(g+k,2)}" for k in ks]
                r += [f"v_exp_f32 v{T+k}, v{T+k}" for k in range(8)]
                r += [f"v_pk_mul_f32 {v(g+k,2)}, {v(g+k,2)}, {v(u+k,2)}" for k in ks]
                r += [f"v_pk_fma_f32 {v(T+k%8,2)}, {v(T+k%8,2)}, {v(vIV,2)}, {v(vIV,2)} op_sel_hi:[1,0,0]" for k in ks]
                r += [f"v_rcp_f32 v{T+k}, v{T+k}" for k in range(8)]
                r += [f"v_pk_mul_f32 {v(g+k,2)}, {v(g+k,2)}, {v(T+k%8,2)}" for k in ks]
                r += [f"v_cvt_pk_bf16_f32 v{HP+k//2}, v{g+k}, v{g+k+1}" for k in ks]
                r.append(put(p, k0 // 8))
            return r
        self.HF = {}
        def hload(stp, i, fixed=None):
            p, jj = divmod(stp, 4)
            if fixed is not None:
                self.HF[(stp, i)] = fixed
                return f"s_add_u32 s{sE_}, s{sT16H+i}, {A_H + 16*KB*jj + 2048*((p + jj) & 3)}\nbuffer_load_dwordx4 {R(fixed,4)}, v{vU}, {s(WS,4)}, s{sE_} offen sc1"
            def fn():
                q = self.pool.get(); self.HF[(stp, i)] = q
                E(f"buffer_load_dwordx4 {R(q,4)}, v{vU}, {s(WS,4)}, s{sE_} offen sc1")
            return (f"s_add_u32 s{sE_}, s{sT16H+i}, {A_H + 16*KB*jj + 2048*((p + jj) & 3)}", fn)
        self.hload = hload
        nv = o.get("bud4", 32)
        ev = {}; spread(ev, xl[NX0:], 0, o.get('xS', 20) / 10)
        if o.get("early", 0): ev.setdefault(11, []).append(self.statsig)
        spread(ev, self.stat_loads(2 * L + 1, T), 39, 2)
        csl = self.cs_loads(CSG, 6 * KB, 6, self.CSG)
        spread(ev, csl[:2], 47, 2)
        pre = {}
        if o.get("ovl", 3) and not (L and o.get("ovl", 3) >= 2):
            ev.setdefault(51, []).append(f"s_sub_u32 s{sH8}, 15, s{sR}\ns_min_u32 s{sH8}, s{sH8}, 2\n" + self.poll_issue(sKP, 16 + 4 * L))
            pre[76] = [self.poll_check(sKP, 16 + 4 * L, f"s{sH8}")]
        spread(ev, self.gu_late + self.wd(min(o.get("wd40", 10), 10 - len(self.gu_late))), 61, 2)
        spread(ev, [self.touch(sWGU, sH16, 32 * KB * 5), self.touch(sWD, sH8, 16 * KB), self.touch(sWGU, sH16, 32 * KB * 6)], 45, 15)
        pv = [(30, f"v_mov_b32 v{HP+i}, -1") for i in range(4)] + [(30, self.xpoison(2, HP))] if L == 0 and o.get("early", 0) else []
        sh = o.get("senth", 0)
        if sh and o.get("poiw", 1) == 1:
            assert o.get("ovl", 3) == 3
            pv += [(40, f"v_mov_b32 v{HP+4+i}, -1") for i in range(4)]
            spread(ev, [(f"s_add_u32 s{sB}, s{sHme}, {HB + L*HB_STRIDE + 2048}\n" if k == 0 else "") +
                        f"buffer_store_dwordx4 {v(HP+4,4)}, v{vL16}, {s(WS,4)}, s{sB} offen offset:{1024*k} sc1" for k in range(4)], o.get("poi0", 74), o.get("poiS", 2))
        self.wstream(self.pair_items(ACC[0], self.CSG), 0, allw, RING, ev, pv + [(65, x) for x in so], pre, tag=f"p0{L}")
        self.stamp(f"L{L} P4 p0")
        ev = {}; tok = []; fl = []
        for c in range(10, 15): fl += self.dma4(sWGU, 16 * KB * c, 64 * KB + 16 * KB * (c - 10), tok)
        spread(ev, fl, 2, 2.15)
        net = [self.nan_net(ACC[0][0], xl, self.pair_items(ACC[0], self.CSG) + self.pair_items(ACC[1], 0)[:2], allw, RING, 4 * L, self.stat_loads(2 * L + 1, T) + so)] if o.get("early", 0) else []
        n1 = min(o.get("wd41", 13), len(self.pool.free))
        spread(ev, csl[2:] + self.wd(n1), 46, 35 / max(n1 + 4, 16))
        spread(ev, [self.touch(sWGU, sH16, 32 * KB * 7), self.touch(sWD, sH8, 32 * KB), self.touch(sWD, sH8, 48 * KB)], 6, 24)
        self.wstream(self.pair_items(ACC[1], self.CSG + 8), 80, allw, RING, ev, epi(0),
                     {2: net + ["s_barrier"], 10: [lambda: (E.wait(vm=self.gu_tok[3]), E("s_barrier"))], 74: [lambda: (E.wait(vm=tok[4]), E("s_barrier"))]}, budget=nv, tag=f"p1{L}")
        self.stamp(f"L{L} P4 p1")
        ev = {}; pre = {}
        for ks in range(40): ev.setdefault(2 * ks + 1, []).append(lambda ks=ks: self.pool.put(AG + self.xr(ks)))
        n2 = min(len(self.wdq), o.get("wd42", 20))
        spread(ev, self.wd(n2), 3, 2.1)
        hp, hc = o.get("hp0", 22), o.get("hc0", 44)
        ev.setdefault(o.get("hs0", 2), []).append(self.signal(sTP, self.T(2, L), lambda: st[0]))
        if L == 0: spread(ev, [self.touch(sWQ, sH16, 32 * KB * k) for k in range(2)], 30, 30)
        ev.setdefault(hp, []).append(self.poll_issue(sTC, self.T(2, L)))
        pre.setdefault(hc, []).append(self.poll_check(sTC, self.T(2, L), 8))
        spread(ev, [hload(stp, i) for stp, i in self.horder(0)], max(hc + 1, 3 + 2.1 * n2), 2.2)
        if not sh: ev.setdefault(o.get("hs1", 81), []).append(self.signal(sTP, self.T(3, L), lambda: st[1]))
        self.wstream(self.pair_items(ACC[0], self.CSG + 16), 160, allw, RING, ev, epi(1), pre, budget=nv, tag=f"p2{L}")
        self.stamp(f"L{L} P4 p2")
        for x in haddr(2): E(x)
        ep = epi_pk(2)
        for k, x in enumerate(ep):
            self.do(x)
            if k == o.get("hp1", 70) and not sh: E(self.poll_issue(sTC, self.T(3, L)))
            elif k % 12 == 6 and k < 40 and self.wdq and self.pool.free: self.wd(1)[0]()
        self.stamp(f"L{L} P4 done")
    def p4(self, L):
        E = self.E; o = self.o
        if not o.get('m16', 1): return self.p4_32(L)
        ACC = [[48, 64], [80, 96]]; RING = 112; HP = 136; T = 144
        allw = [1024 * ((64 + f) % 160) for f in range(240)]
        for f in range(6): E(self.wread(RING + 4 * f, allw[f]))
        self.poll_block(sWC, 4 * L, 16)
        self.stamp(f"L{L} P4 synced")
        self.xr = lambda ks: 4 * ks if ks < 26 else 200 + 4 * (ks - 26)
        base = self.xt(2 * L + 1); xl = []
        for k in range(40):
            t = f"s_add_u32 s{sE_}, s{sXB}, {base + 16*KB*(k >> 3) + 1024*(k & 4)}\n" if k % 4 == 0 else ""
            xl.append(t + f"buffer_load_dwordx4 {a(self.xr(k),4)}, v{vU}, {s(WS,4)}, s{sE_} offen offset:{2048*(k & 1) + 128*(k & 2)} sc1")
        self.x0 = len(E.out); self.vrate = o.get("vrate", 6)
        self.xstart(xl, base)
        c1 = -2 * 0.7978845608028654 * math.log2(math.e)
        CC = [(vC1, vIV), (248, 254)]
        stl = [(f"s_and_b32 s{sC}, s{sTC}, 0xffffe000\ns_add_u32 s{sC}, s{sC}, {(A_ST - A_CNT + (2*L+1)*16*KB) & 0xffffffff}\n" if q == 0 else "") +
               f"buffer_load_dwordx2 {v(T+2*q,2)}, v{HP}, {s(WS,4)}, s{sC} offen offset:{1024*(q & 1) + 64*(q & 2)} sc1" for q in range(4)]
        sta = [f"v_lshrrev_b32 v{HP}, 4, v0", f"v_lshlrev_b32 v{HP}, 11, v{HP}", f"v_and_b32 v{HP+1}, 15, v0", f"v_lshl_add_u32 v{HP}, v{HP+1}, 3, v{HP}",
               f"v_lshl_add_u32 v{HP}, s{sW}, 8, v{HP}"]
        so = [f"v_add_f32 v{T+e}, v{T+e}, v{T+e+2}" for e in (0, 1, 4, 5)]
        for sw in ("v_permlane32_swap_b32", "v_permlane16_swap_b32"):
            so += [f"v_mov_b32 v{T+e+2}, v{T+e}" for e in (0, 1, 4, 5)] + [f"{sw} v{T+e+2}, v{T+e}" for e in (0, 1, 4, 5)]
            so += [f"v_add_f32 v{T+e}, v{T+e}, v{T+e+2}" for e in (0, 1, 4, 5)]
        so2 = []
        for t in range(2):
            b_ = T + 4 * t; C, IV = CC[t]
            so += [f"v_mul_f32 v{b_}, {f2u(-1/640)}, v{b_}", f"v_cvt_pk_bf16_f32 v{vNM+2*t}, v{b_}, v{b_}", f"v_cvt_pk_bf16_f32 v{vNM+2*t+1}, v{b_}, v{b_}"]
            so2 += [f"v_mul_f32 v{b_+1}, {f2u(1/640)}, v{b_+1}", f"v_fma_f32 v{b_+1}, -v{b_}, v{b_}, v{b_+1}", f"v_max_f32 v{b_+1}, 0, v{b_+1}",
                    f"v_add_f32 v{IV}, {f2u(EPS)}, v{b_+1}", f"v_rsq_f32 v{b_+2}, v{IV}", f"v_rcp_f32 v{b_+3}, v{IV}", f"v_mul_f32 v{C}, {f2u(c1)}, v{b_+2}",
                    f"v_mul_f32 v{C+1}, {f2u(0.044715)}, v{C}", f"v_mul_f32 v{C+1}, v{b_+3}, v{C+1}"]
        so += so2
        st = self.htok = {}
        def put(p, k):
            if k == 0: return f"buffer_store_dwordx4 {v(HP,4)}, v{vU}, {s(WS,4)}, s{sA} offen sc1"
            return lambda: st.__setitem__(p, E(f"buffer_store_dwordx4 {v(HP+4,4)}, v{vU}, {s(WS,4)}, s{sA} offen offset:256 sc1"))
        haddr = lambda p: [f"s_add_u32 s{sA}, s{sJ}, {p}\ns_and_b32 s{sA}, s{sA}, 3\ns_lshl_b32 s{sA}, s{sA}, 11", f"s_and_b32 s{sB}, s{sHme}, 0xffffe000\ns_add_u32 s{sA}, s{sA}, s{sB}"]
        def epi(p):
            g, u = ACC[p % 2]; r = [haddr(p)]
            for k0 in range(0, 16, 4):
                ks = range(k0, k0 + 4); vC1, vIV = CC[k0 >> 3]; vC2 = vC1 + 1
                r += [f"v_mul_f32 v{T+k%4}, v{g+k}, v{g+k}" for k in ks]
                r += [f"v_fma_f32 v{T+k%4}, v{T+k%4}, v{vC2}, v{vC1}" for k in ks]
                r += [f"v_mul_f32 v{T+k%4}, v{T+k%4}, v{g+k}" for k in ks]
                r += [f"v_exp_f32 v{T+k%4}, v{T+k%4}" for k in ks]
                r += [f"v_mul_f32 v{g+k}, v{g+k}, v{u+k}" for k in ks]
                r += [f"v_fma_f32 v{T+k%4}, v{T+k%4}, v{vIV}, v{vIV}" for k in ks]
                r += [f"v_rcp_f32 v{T+k%4}, v{T+k%4}" for k in ks]
                r += [f"v_mul_f32 v{g+k}, v{g+k}, v{T+k%4}" for k in ks]
                r += [f"v_cvt_pk_bf16_f32 v{HP+k//2}, v{g+k}, v{g+k+1}" for k in ks if k % 2 == 0]
                if k0 in (4, 12): r.append([put(p, k0 // 8)])
            return [(2, x) for x in r]
        def epi_pk(p):
            g, u = ACC[p % 2]; r = []
            for k0 in range(0, 16, 8):
                ks = range(k0, k0 + 8, 2); vC1, vIV = CC[k0 >> 3]
                r += [f"v_pk_mul_f32 {v(T+k%8,2)}, {v(g+k,2)}, {v(g+k,2)}" for k in ks]
                r += [f"v_pk_fma_f32 {v(T+k%8,2)}, {v(T+k%8,2)}, {v(vC1,2)}, {v(vC1,2)} op_sel:[0,1,0] op_sel_hi:[1,1,0]" for k in ks]
                r += [f"v_pk_mul_f32 {v(T+k%8,2)}, {v(T+k%8,2)}, {v(g+k,2)}" for k in ks]
                r += [f"v_exp_f32 v{T+k}, v{T+k}" for k in range(8)]
                r += [f"v_pk_mul_f32 {v(g+k,2)}, {v(g+k,2)}, {v(u+k,2)}" for k in ks]
                r += [f"v_pk_fma_f32 {v(T+k%8,2)}, {v(T+k%8,2)}, {v(vIV,2)}, {v(vIV,2)} op_sel_hi:[1,0,0]" for k in ks]
                r += [f"v_rcp_f32 v{T+k}, v{T+k}" for k in range(8)]
                r += [f"v_pk_mul_f32 {v(g+k,2)}, {v(g+k,2)}, {v(T+k%8,2)}" for k in ks]
                r += [f"v_cvt_pk_bf16_f32 v{HP+k//2}, v{g+k}, v{g+k+1}" for k in ks]
                r.append(put(p, k0 // 8))
            return r
        self.HF = {}
        def hload(stp, i, fixed=None):
            p, jj = divmod(stp, 4)
            if fixed is not None:
                self.HF[(stp, i)] = fixed
                return f"s_add_u32 s{sE_}, s{sT16H+i}, {A_H + 16*KB*jj + 2048*((p + jj) & 3)}\nbuffer_load_dwordx4 {R(fixed,4)}, v{vU}, {s(WS,4)}, s{sE_} offen sc1"
            def fn():
                q = self.pool.get(); self.HF[(stp, i)] = q
                E(f"buffer_load_dwordx4 {R(q,4)}, v{vU}, {s(WS,4)}, s{sE_} offen sc1")
            return (f"s_add_u32 s{sE_}, s{sT16H+i}, {A_H + 16*KB*jj + 2048*((p + jj) & 3)}", fn)
        self.hload = hload
        nv = o.get("bud4", 32) // 2
        ev = {}; spread(ev, xl[NX0:], 0, o.get('xS', 20) / 10)
        if o.get("early", 0): ev.setdefault(11, []).append(self.statsig)
        spread(ev, stl, 27, 2)
        csl = self.cs_loads(CSG, 6 * KB, 6, self.CSG)
        spread(ev, csl[:2], 47, 2)
        pre = {}
        if o.get("ovl", 3) and not (L and o.get("ovl", 3) >= 2):
            ev.setdefault(51, []).append(f"s_sub_u32 s{sH8}, 15, s{sR}\ns_min_u32 s{sH8}, s{sH8}, 2\n" + self.poll_issue(sKP, 16 + 4 * L))
            pre[76] = [self.poll_check(sKP, 16 + 4 * L, f"s{sH8}")]
        spread(ev, self.gu_late + self.wd(min(o.get("wd40", 10), 10 - len(self.gu_late))), 61, 2)
        spread(ev, [self.touch(sWGU, sH16, 32 * KB * 5), self.touch(sWD, sH8, 16 * KB), self.touch(sWGU, sH16, 32 * KB * 6)], 45, 15)
        pv = [(30, f"v_mov_b32 v{HP+i}, -1") for i in range(4)] + [(30, self.xpoison(2, HP))] if L == 0 and o.get("early", 0) else []
        sh = o.get("senth", 0)
        if sh and o.get("poiw", 1) == 1:
            assert o.get("ovl", 3) == 3
            pv += [(40, f"v_mov_b32 v{HP+4+i}, -1") for i in range(4)]
            spread(ev, self.hpoison(HP + 4, sB), o.get("poi0", 72), o.get("poiS", 2))
        self.wstream16(ACC[0], self.CSG, 0, allw, RING, ev, [(4, x) for x in sta] + pv + [(54, x) for x in so], pre, tag=f"p0{L}")
        self.stamp(f"L{L} P4 p0")
        ev = {}; tok = []; fl = []
        for c in range(10, 15): fl += self.dma4(sWGU, 16 * KB * c, 64 * KB + 16 * KB * (c - 10), tok)
        spread(ev, fl, 2, 2.15)
        net = [self.nan_net(ACC[0][0], xl, self.pair_items(ACC[0], self.CSG) + self.pair_items(ACC[1], 0)[:2], allw, RING, 4 * L, self.stat_loads(2 * L + 1, T) + so)] if o.get("early", 0) else []
        n1 = min(o.get("wd41", 13), len(self.pool.free))
        spread(ev, csl[2:] + self.wd(n1), 46, 35 / max(n1 + 4, 16))
        spread(ev, [self.touch(sWGU, sH16, 32 * KB * 7), self.touch(sWD, sH8, 32 * KB), self.touch(sWD, sH8, 48 * KB)], 6, 24)
        self.wstream16(ACC[1], self.CSG + 8, 80, allw, RING, ev, epi(0),
                     {2: net + ["s_barrier"], 10: [lambda: (E.wait(vm=self.gu_tok[3]), E("s_barrier"))], 74: [lambda: (E.wait(vm=tok[4]), E("s_barrier"))]}, budget=nv, vend=o.get("ve1", 70), tag=f"p1{L}")
        self.stamp(f"L{L} P4 p1")
        ev = {}; pre = {}
        for ks in range(40): pre.setdefault(8 * (ks >> 2) + 7 + ((ks >> 1) & 1), []).append(lambda ks=ks: self.pool.put(AG + self.xr(ks)))
        n2 = min(len(self.wdq), o.get("wd42", 20))
        spread(ev, self.wd(n2), 3, 2.1)
        hp, hc = o.get("hp0", 22), o.get("hc0", 44)
        ev.setdefault(o.get("hs0", 2), []).append(self.signal(sTP, self.T(2, L), lambda: st[0]))
        if L == 0: spread(ev, [self.touch(sWQ, sH16, 32 * KB * k) for k in range(2)], 30, 30)
        ev.setdefault(hp, []).append(self.poll_issue(sTC, self.T(2, L)))
        pre.setdefault(hc, []).append(self.poll_check(sTC, self.T(2, L), 8))
        spread(ev, [hload(stp, i) for stp, i in self.horder(0)], max(hc + 1, 3 + 2.1 * n2), 2.2)
        if not sh: ev.setdefault(o.get("hs1", 81), []).append(self.signal(sTP, self.T(3, L), lambda: st[1]))
        self.wstream16(ACC[0], self.CSG + 16, 160, allw, RING, ev, epi(1), pre, budget=nv, vend=o.get("ve2", 60), tag=f"p2{L}")
        self.stamp(f"L{L} P4 p2")
        for x in haddr(2): E(x)
        ep = epi_pk(2)
        for k, x in enumerate(ep):
            self.do(x)
            if k == o.get("hp1", 70) and not sh: E(self.poll_issue(sTC, self.T(3, L)))
            elif k % 12 == 6 and k < 40 and self.wdq and self.pool.free: self.wd(1)[0]()
        self.stamp(f"L{L} P4 done")
    def p5(self, L):
        E = self.E; o = self.o
        ACC = [48, 68, 88, vRES]
        E("s_barrier")
        ev = {}; pre = {}; sh = o.get("senth", 0); vals = None; val1 = {}
        if sh:
            r1 = [108 + 4 * i for i in range(7)] + [144 + 4 * i for i in range(7)] + [136, 140]
            l1 = [[self.hload(stp, i, r1.pop(0)) for i in range(4)] for stp in range(4, 8)]
            l2 = [[self.hload(stp, i, 176 + 16 * i + 4 * (stp - 8)) for stp in range(8, 12)] for i in range(4)]
            rl = lambda x: [y.replace(f"s{sE_}", f"s{sP}") for y in x]
            for k in range(4): val1[4 + k] = self.validate([self.HF[(4 + k, i)] for i in range(4)], rl(l1[k]), 172)
            vals = [self.validate([self.HF[(stp, i)] for stp in range(8, 12)], rl(l2[i]), 172) for i in range(4)]
            val1[8] = vals[0]
            rest = sum(l1, []) + self.wd(60)
            nl = o.get("h2late", 4)
            l2f = sum(l2, []); late2 = l2f[16 - nl:]
            h2s = o.get("h2s", 104)
            spread(ev, rest, o.get("h1s", 2), (h2s - 4) / len(rest))
            spread(ev, l2f[:16 - nl], h2s, (150 - h2s) / (16 - nl))
        else:
            self.pool.add([108 + 4 * i for i in range(7)] + [144 + 4 * i for i in range(8)])
            hc1 = o.get("hc1", 30)
            pre.setdefault(hc1, []).append(self.poll_check(sTC, self.T(3, L), 8))
            spread(ev, [self.hload(stp, i) for stp, i in self.horder(4)] + self.wd(60), hc1, o.get('h1S', 32) / 10)
            ev.setdefault(o.get("hs2", 44), []).append(self.signal(sTP, self.T(4, L), self.htok[2]))
            hp, hc = o.get("hp2", 76), o.get("hc2", 112)
            ev.setdefault(hp, []).append(self.poll_issue(sTC, self.T(4, L)))
            pre.setdefault(hc, []).append(self.poll_check(sTC, self.T(4, L), 8))
            spread(ev, [self.hload(stp, i) for i in range(4) for stp in range(8, 12)], hc, o.get('h2S', 29) / 10)
        if L == 1:
            ta = self.tile_addrs(vNM, vC1) + [f"v_add_u32 v{vNM+3}, s{sLW}, v{vL16}"]
            spread(ev, [(lambda x="\n".join(ta[k:k + 2]): E(x)) for k in range(0, len(ta), 2)], 2, 2)
            spread(ev, [(lambda x=x: E(x)) for x in (f"s_or_b32 s{sA}, s{sR}, s{sJ}\ns_or_b32 s{sA}, s{sA}, s{sW}", f"s_cmp_eq_u32 s{sA}, 0\ns_cselect_b32 s{sA}, 0, {OOB}",
                        f"v_add_u32 v{vIV}, s{sA}, v{vSIG}\nv_mov_b32 v{vRSTD}, s0", f"s_mov_b32 s{sA}, {EPOCH}", f"buffer_store_dword v{vRSTD}, v{vIV}, {s(WS,4)}, s{sA} offen sc1")], 21, 1)
        self.wq_tok = []; dm = []
        if L == 0:
            for c in range(10): dm += self.dma4(sWQ, 16 * KB * c, 16 * KB * c, self.wq_tok)
            spread(ev, [self.touch(sWQ, sH16, 32 * KB * k) for k in range(2, 5)], 30, 36)
            if not sh: spread(ev, dm[:4], 96, 4); dm = dm[4:]
        sl = 0; q = []; ch = o.get("ch5", 2); assert not (sh and ch > 1)
        for s0 in range(0, 8, ch):
            for i in range(4):
                for nt in range(5):
                    for stp in range(s0, s0 + ch):
                        self.fine(f"d{L}", sl)
                        for g in pre.pop(sl, []): self.do(g)
                        d = ACC[i] + 4 * nt
                        E(f"v_mfma_f32_16x16x32_bf16 {v(d,4)}, {R(self.WDF[5*stp+nt],4)}, {R(self.HF[(stp,i)],4)}, {'0' if stp == 0 and i < 3 else v(d,4)}")
                        for g in ev.pop(sl, []): q += self.flat(g)
                        vv = val1.get(stp + 1)
                        if vv and 20 - sl % 20 <= len(vv): self.do(vv.pop(0))
                        elif q and (sl % 5 != 4 or len(q) > 3): self.do(q.pop(0))
                        sl += 1
                for stp in range(s0, s0 + ch):
                    if self.HF[(stp, i)] >= AG or (self.HF[(stp, i)] < 176 and not sh): self.pool.put(self.HF[(stp, i)])
            for f in range(5 * s0, 5 * (s0 + ch)):
                qq = self.WDF[f]
                assert not (sh and 176 <= qq < 244 and s0 > 3)
                if qq >= AG or qq < 176: self.pool.put(qq)
        for k in sorted(ev):
            for g in ev[k]: q.append(g)
        for g in q: self.do(g)
        assert not pre
        self.stamp("  8 steps")
        PT = 108 if sh else 176
        live = [self.WDF[f] for f in range(40, 60)] + [self.HF[(stp, i)] for stp in range(8, 12) for i in range(4)]
        assert not [q for q in live if PT <= q < PT + 60], live
        steps = [([self.WDF[5 * stp + nt] for nt in range(5)], [self.HF[(stp, i)] for i in range(4)]) for stp in range(8, 12)]
        bg = (late2 if sh else []) + dm[:12]; dm = dm[12:]
        n = o.get("wq5", 16 if sh else 12)
        post = (self.cs_loads(CSQ, 4 * KB, 4, 136) if L == 0 else []) + dm[:n]
        self.wq_late = dm[n:]
        self.reduce_and_publish(ACC, steps, 100 * KB, PT, 2 * L + 2, 512 + 4 * L, L == 1, bg, post, bg0=0, bgstep=4, vals=vals)
        self.stamp(f"L{L} P5 done")
    def finish(self):
        E = self.E
        if self.o.get("echo"):
            E(f"s_sub_u32 s{sA}, s{sTS+2}, s{sTS}\ns_mul_i32 s{sA}, s{sA}, {self.o.get('emul', 1)}\ns_lshr_b32 s{sA}, s{sA}, {2 if self.o.get('ecyc') else 0}\ns_memrealtime {s(sTS,2)}"); E.wait_smem()
            E.place("ECHO")
            E(f"s_memrealtime {s(sTS+2,2)}"); E.wait_smem()
            E(f"s_sub_u32 s{sB}, s{sTS+2}, s{sTS}\ns_cmp_lt_u32 s{sB}, s{sA}\ns_cbranch_scc1 ECHO")
        if self.stamps:
            E(f"v_readlane_b32 s{sB}, v{vTS2}, 63\ns_lshl_b32 s{sA}, s{sB}, 2\ns_add_u32 s{sA}, s{sA}, s{sW}\ns_lshl_b32 s{sA}, s{sA}, 8\ns_add_u32 s{sA}, s{sA}, {DBG}")
            E(f"v_lshlrev_b32 v{vT}, 2, v0\nbuffer_store_dword v{vTS}, v{vT}, {s(WS,4)}, s{sA} offen")
            E(f"s_add_u32 s{sA}, s{sA}, 0x40000\nbuffer_store_dword v{vTS2}, v{vT}, {s(WS,4)}, s{sA} offen")
        E("s_endpgm"); E.raw(";@END")
        for t in self.tail: E.raw(t.rstrip("\n"))
        E.raw("main_end:")
    def build(self):
        E = self.E
        globals()["NX0"] = self.o.get("nx0", 10)
        globals()["FINAL"] = ("", "sc1", "nt", "sc0 sc1")[self.o.get("fin", 0)]
        g = globals(); ru = self.o.get("reuse", 7)
        if ru & 1: g["HB_STRIDE"] = 0
        if ru & 2: g["OB_STRIDE"] = 0
        if ru & 8: g["KV_STRIDE"] = 0
        E.raw("; @launch grid=(256,1,1) block=(256,1,1) lds=163840")
        E.raw('.amdgcn_target "amdgcn-amd-amdhsa--gfx950"')
        self.prologue()
        n = 0
        for L in range(2):
            for ph in (self.p1, self.p2, self.p3, self.p4, self.p5):
                if n < self.stop: ph(L)
                n += 1
        self.finish()
        kernel_desc(E, KNAME, 256, 256, 102)
        return stubs.apply(E.text(), sW, self.o.get("verbose") == 3)

if __name__ == "__main__":
    out = sys.argv[1]
    opts = dict((k, int(x)) for k, x in (a_.split("=") for a_ in sys.argv[3:]))
    g = Gen(stamps=len(sys.argv) > 2 and sys.argv[2] == "ts", opts=opts, mapping="grp" if opts.get("grp") else "mix")
    t = g.build()
    open(out, "w").write(t)
    print(len(t), "bytes", g.E.ninst, "insts", g.E.nnop, "nop states", g.E.stats)
    if g.stamps: open(out + ".names", "w").write("\n".join(g.stnames))
```

```python
from emit import *
from layout import *

SRC1 = 32; SRC2 = 36; sONE = 40
t = list(range(41, 58))
sRHO, sSIG = 58, 59
sU, sS2 = 60, 61
sTK = 62
LDS1 = 0 * KB
LDS2 = 128 * KB
vTK = 248
vA2 = 232
OOB = 0x10000000
NRACE = 1

def split_hi_lo(E, x, t0, t1, d):
    E(f"v_cvt_pk_bf16_f32 v{d+1}, v{x}, 0")
    E(f"v_lshlrev_b32 v{t0}, 16, v{d+1}")
    E(f"v_sub_f32 v{t1}, v{x}, v{t0}")
    E(f"v_cvt_pk_bf16_f32 v{d}, v{t0}, v{t1}")

class Startup:
    def __init__(self, G, M):
        self.G = G; self.E = G.E; self.M = M
    def roles0(self):
        E, M = self.E, self.M
        E(f"s_add_u32 s{sRHO}, s{M.sR}, s{M.sJ}\ns_and_b32 s{sRHO}, s{sRHO}, 15\ns_add_u32 s{sSIG}, s{sRHO}, {self.G.o.get('sigo', 4)}\ns_and_b32 s{sSIG}, s{sSIG}, 15")
        E(f"s_mov_b32 s{SRC1+2}, {640*1920*2}\ns_mov_b32 s{SRC1+3}, 0x00020000")
    def roles(self, pO, pG, pU, pD):
        E, M = self.E, self.M
        E(f"s_cmp_ge_u32 s{sSIG}, 4\ns_cselect_b64 {s(SRC2,2)}, {s(pU,2)}, {s(pG,2)}")
        E(f"s_cmp_ge_u32 s{sSIG}, 8\ns_cselect_b64 {s(SRC2,2)}, {s(pD,2)}, {s(SRC2,2)}")
        E(f"s_cmp_ge_u32 s{sSIG}, 14\ns_cselect_b64 {s(SRC2,2)}, {s(pO,2)}, {s(SRC2,2)}\ns_cselect_b32 s{SRC2+2}, {640*640*2}, 0")
        E(f"s_cselect_b32 s{t[0]}, 0, {640*1536*2}\ns_add_u32 s{SRC2+2}, s{SRC2+2}, s{t[0]}\ns_mov_b32 s{SRC2+3}, 0x00020000\ns_mov_b32 s{sONE}, 0x3f803f80")
    def s1_load(self):
        E, M = self.E, self.M
        E("v_mul_u32_u24 v48, 6554, v0\nv_lshrrev_b32 v48, 16, v48\nv_mul_u32_u24 v49, 10, v48\nv_sub_u32 v49, v0, v49")
        E("v_mul_u32_u24 v48, 3840, v48\nv_lshl_add_u32 v50, v49, 4, v48")
        E(f"s_lshr_b32 s{t[1]}, s{sRHO}, 2\ns_and_b32 s{t[2]}, s{sRHO}, 3\ns_lshl_b32 s{t[2]}, s{t[2]}, 1\ns_add_u32 s{t[2]}, s{t[2]}, s{M.sTH}")
        E(f"s_mul_i32 s{t[3]}, s{t[1]}, 1280\ns_mul_i32 s{t[4]}, s{M.sNB}, 160\ns_add_u32 s{t[3]}, s{t[3]}, s{t[4]}")
        E(f"s_lshl_b32 s{t[4]}, s{t[2]}, 2\ns_add_u32 s{t[4]}, s{t[4]}, s{M.sW}\ns_mul_i32 s{t[4]}, s{t[4]}, {20*3840}\ns_add_u32 s{t[3]}, s{t[3]}, s{t[4]}")
        E(f"s_cmp_ge_u32 s{sRHO}, 12\ns_cselect_b32 s{t[4]}, {OOB}, 0\nv_add_u32 v50, s{t[4]}, v50")
        E(f"s_mul_i32 s{t[4]}, s{M.sW}, 3200\ns_mov_b32 exec_hi, 0x3ffff")
        for i in range(4):
            E(f"s_add_u32 m0, s{t[4]}, {LDS1 + 800*i}")
            if i: E(f"s_add_u32 s{t[3]}, s{t[3]}, {5*3840}")
            self.tok1 = E(f"buffer_load_dwordx4 v50, {s(SRC1,4)}, s{t[3]} offen {'nt' if self.G.o.get('nt1', 1) else ''} lds")
        E("s_mov_b32 exec_hi, -1")
    def leader_clear(self):
        E, M = self.E, self.M
        L = E.label("LC")
        E(f"s_cmp_lg_u32 s{sRHO}, 15\ns_cbranch_scc1 {L}")
        E("v_mov_b32 v60, 0\nv_mov_b32 v61, 0\nv_mov_b32 v62, 0\nv_mov_b32 v63, 0")
        E(f"s_mul_i32 s{t[3]}, s{M.sR}, {ASTR}\ns_add_u32 s{t[3]}, s{t[3]}, {ARENA + A_CNT}\ns_lshl_b32 s{t[4]}, s{M.sW}, 13\ns_add_u32 s{t[4]}, s{t[4]}, s{t[3]}")
        E(f"s_lshr_b32 s{t[16]}, s{M.sW}, 1\nv_lshrrev_b32 v64, s{t[16]}, v0\nv_and_b32 v65, s{t[16]}, v0\nv_lshlrev_b32 v65, 4, v65\nv_lshl_add_u32 v64, v64, 7, v65")
        if self.G.o.get("ctouch", 0): E(f"buffer_load_dword v66, v64, {s(M.WS,4)}, s{t[4]} offen sc1", count=False)
        E(f"buffer_store_dwordx4 v[60:63], v64, {s(M.WS,4)}, s{t[4]} offen sc1", count=False)
        E(f"s_lshl_b32 s{t[4]}, s{M.sW}, 8\ns_add_u32 s{t[3]}, s{t[3]}, s{t[4]}\ns_add_u32 s{t[3]}, s{t[3]}, {20*KB}")
        for k in range(self.G.o.get("nrace", NRACE)):
            for h in range(2): E.raw(f"s_load_dword s{t[16]}, {s(M.WS,2)}, s{t[3]} offset:{1152*k + 8192*h} glc")
        E.place(L); E.hist = []
        E("s_nop 1")
    def leader_race(self):
        E, M = self.E, self.M
        L = E.label("LR")
        E(f"s_cmp_lg_u32 s{sRHO}, 15\ns_cbranch_scc1 {L}")
        E(f"s_getreg_b32 s{t[7]}, hwreg(HW_REG_XCC_ID)\ns_and_b32 s{t[7]}, s{t[7]}, 4\ns_waitcnt lgkmcnt(0)")
        E("s_memtime s[50:51]"); E.wait_smem()
        for k in range(self.G.o.get("nrace", NRACE)):
            E(f"s_load_dword s49, {s(M.WS,2)}, s{t[3]} offset:{1152*k} glc"); E.wait_smem()
            E("s_memtime s[52:53]"); E.wait_smem()
            E(f"s_sub_u32 s54, s52, s50\ns_load_dword s49, {s(M.WS,2)}, s{t[3]} offset:{1152*k + 8192} glc"); E.wait_smem()
            E("s_memtime s[50:51]"); E.wait_smem()
            E(f"s_sub_u32 s55, s50, s52\ns_cmp_lt_u32 s55, s54\ns_addc_u32 s{t[7]}, s{t[7]}, 0")
        E(f"s_lshl_b32 s{t[5]}, s{M.sR}, 2\ns_add_u32 s{t[5]}, s{t[5]}, s{M.sW}\ns_lshl_b32 s{t[5]}, s{t[5]}, {self.G.o.get('vsh', 7)}\ns_add_u32 s{t[5]}, s{t[5]}, {VOTE}\nv_add_u32 v60, s{t[7]}, v{vTK}\nv_mov_b32 v61, v60\nv_mov_b32 v62, v60\nv_mov_b32 v63, v60")
        E({7: f"buffer_store_dwordx2 v[60:61], v{M.vSW}", 2: f"buffer_store_dword v60, v{M.vSIG}", 4: f"buffer_store_dwordx4 v[60:63], v{M.vSIG}"}[self.G.o.get('vsh', 7)] + f", {s(M.WS,4)}, s{t[5]} offen sc1", count=False)
        E.place(L); E.hist = []
    def x_touch(self):
        E, M = self.E, self.M
        E(f"s_lshl_b32 s{t[4]}, s{M.sR}, 4\ns_add_u32 s{t[4]}, s{t[4]}, s{M.sJ}\ns_lshl_b32 s{t[4]}, s{t[4]}, 2\ns_add_u32 s{t[4]}, s{t[4]}, s{M.sW}\ns_mul_i32 s{t[4]}, s{t[4]}, 2560")
        E(f"v_min_u32 v51, 19, v0\nv_lshlrev_b32 v51, 7, v51\nbuffer_load_dword v246, v51, {s(M.XIN,4)}, s{t[4]} offen")
    def s2_addrs(self):
        E, M = self.E, self.M
        a_, b_, c_, d_, e_ = t[5], t[6], t[7], t[8], t[9]
        E(f"s_mov_b32 s{b_}, 6554\ns_cmp_lt_u32 s{sSIG}, 8\ns_cselect_b32 s{a_}, 24, 10\ns_cselect_b32 s{b_}, 2731, s{b_}\ns_cselect_b32 s{d_}, s{M.sW}, 0")
        E(f"v_mov_b32 v55, {OOB}")
        E(f"s_mov_b32 s{e_}, 1280\ns_cselect_b32 s{c_}, 3072, s{e_}\ns_lshl_b32 s{d_}, s{d_}, 9")
        E(f"s_cmp_ge_u32 s{sSIG}, 14\ns_cselect_b32 s{e_}, 50, {0 if self.G.o.get('hackL') else 40}\ns_lshl_b32 s{e_}, s{e_}, 3\ns_cmp_lt_u32 s{sSIG}, 8\ns_cselect_b32 s{e_}, 1920, s{e_}")
        for i in range(8):
            E(f"v_add_u32 v52, s{d_}, v0\nv_mul_u32_u24 v53, s{b_}, v52\nv_lshrrev_b32 v53, 16, v53\nv_mul_u32_u24 v54, s{a_}, v53\nv_sub_u32 v54, v52, v54")
            E(f"v_mul_u32_u24 v53, s{c_}, v53\nv_lshl_add_u32 v53, v54, 4, v53\nv_cmp_gt_u32 vcc, s{e_}, v52\nv_cndmask_b32 v{vA2+i}, v55, v53, vcc\ns_add_u32 s{d_}, s{d_}, 64")
        E(f"s_and_b32 s{a_}, s{sSIG}, 3\ns_lshl_b32 s{a_}, s{a_}, 1\ns_add_u32 s{a_}, s{a_}, s{M.sTH}\ns_mul_i32 s{a_}, s{a_}, {80*3072}\ns_mul_i32 s{b_}, s{M.sNB}, 384\ns_add_u32 s{a_}, s{a_}, s{b_}")
        E(f"s_cmp_ge_u32 s{sSIG}, 14\ns_cselect_b32 s{b_}, 2, 6\ns_cselect_b32 s{c_}, 14, 8\ns_cselect_b32 s{d_}, 40, 32")
        E(f"s_mul_i32 s{b_}, s{b_}, s{M.sTH}\ns_add_u32 s{b_}, s{b_}, s{sSIG}\ns_sub_u32 s{b_}, s{b_}, s{c_}\ns_lshl_b32 s{b_}, s{b_}, 2\ns_add_u32 s{sU}, s{b_}, s{M.sW}")
        E(f"s_mul_i32 s{b_}, s{sU}, s{d_}\ns_mul_i32 s{b_}, s{b_}, 1280\ns_mul_i32 s{c_}, s{M.sNB}, 160\ns_add_u32 s{b_}, s{b_}, s{c_}")
        E(f"s_cmp_lt_u32 s{sSIG}, 8\ns_cselect_b32 s{sS2}, s{a_}, s{b_}")
    def s2_load(self, i):
        M = self.M
        return f"s_lshl_b32 s{t[0]}, s{M.sLW}, 1\ns_add_u32 m0, s{t[0]}, {LDS2 + 1024*i}\nbuffer_load_dwordx4 v{vA2+i}, {s(SRC2,4)}, s{sS2} offen {'nt' if self.G.o.get('nt2', 1) else ''} lds"
    def s1_proc(self):
        E, M = self.E, self.M
        Lz, Lend = E.label("WZ"), E.label("WQ"); q16 = self.G.o.get("q16", 1)
        E(f"s_cmp_ge_u32 s{sRHO}, 12\ns_cbranch_scc1 {Lz}")
        E("v_lshrrev_b32 v48, 4, v0\nv_bfe_u32 v49, v0, 2, 2\nv_lshl_add_u32 v48, v48, 3, v49\nv_mul_u32_u24 v48, 160, v48")
        E(f"v_bfe_u32 v49, v0, 1, 1\nv_mul_u32_u24 v49, 80, v49\nv_add3_u32 v48, v48, v49, {LDS1}\nv_and_b32 v49, 1, v0")
        E(f"v_bfe_u32 v52, v0, 3, 1\nv_mul_u32_u24 v59, {160*KB}, v52\nv_lshlrev_b32 v54, 12, v52" + ("" if q16 else "\nv_bfe_u32 v52, v0, 4, 1\nv_lshl_add_u32 v59, v52, 9, v59"))
        E("v_and_b32 v52, 7, v0\nv_lshl_add_u32 v59, v52, 4, v59\nv_lshl_add_u32 v54, v52, 4, v54\nv_lshrrev_b32 v52, 4, v0\nv_lshl_add_u32 v54, v52, 28, v54")
        E(f"s_cmp_eq_u32 s{t[1]}, 0\ns_cselect_b32 s{t[5]}, 10, 0\ns_cmp_eq_u32 s{t[1]}, 2\ns_cselect_b32 s{t[5]}, 5, s{t[5]}")
        E(f"s_mul_i32 s{t[6]}, s{M.sNB}, {320*KB}\ns_add_u32 s{t[6]}, s{t[6]}, {WQ}")
        E(f"s_lshl_b32 s{t[7]}, s{M.sNB}, 13\ns_mul_i32 s{t[8]}, s{t[2]}, 0x84\ns_and_b32 s{t[8]}, s{t[8]}, {0x304 if q16 else 0x20c}\ns_add_u32 s{t[7]}, s{t[7]}, s{t[8]}\ns_add_u32 s{t[7]}, s{t[7]}, {CSQ}")
        done0 = E.vm_done
        for rnd in range(2):
            if rnd == 0:
                E(f"s_and_b32 s{t[8]}, s{M.sW}, 1\ns_lshl_b32 s{t[8]}, s{t[8]}, 3\ns_lshr_b32 s{t[9]}, s{M.sW}, 1\ns_lshl_b32 s{t[9]}, s{t[9]}, 5\ns_add_u32 s{t[8]}, s{t[8]}, s{t[9]}")
                E(f"s_cmp_eq_u32 s{M.sW}, 2\ns_cselect_b32 s{t[9]}, 40, 16\ns_add_u32 s{t[10]}, s{t[5]}, s{M.sW}")
            else:
                if self.G.o.get("zfill", 0):
                    Lq = E.label("WY")
                    E(f"s_cmp_lg_u32 s{t[10]}, 12\ns_cbranch_scc1 {Lq}")
                    E("v_mov_b32 v76, 0\nv_mov_b32 v77, 0\nv_mov_b32 v78, 0\nv_mov_b32 v79, 0")
                    for y in (2, 1, 0):
                        E(f"buffer_store_dwordx4 v[76:79], v{53 if y == 2 else 51}, {s(M.WS,4)}, s{t[11]} offen offset:384 sc1", count=False)
                        if y: E(f"s_sub_u32 s{t[11]}, s{t[11]}, s{t[14]}")
                    E(f"buffer_store_dword v76, v54, {s(M.WS,4)}, s{t[12]} offen offset:384 sc1", count=False)
                    E.place(Lq); E.hist = []
                E(f"s_cmp_lg_u32 s{M.sW}, 3\ns_cbranch_scc1 {Lend}")
                E(f"s_mov_b32 s{t[8]}, 48\ns_mov_b32 s{t[9]}, 16\ns_add_u32 s{t[10]}, s{t[5]}, 4")
            E(f"v_mul_u32_u24 v55, s{t[9]}, v49\nv_add3_u32 v55, v55, v48, s{t[8]}")
            if q16:
                E(f"s_mov_b32 s{t[13]}, 0x76431520\ns_mov_b32 s{t[14]}, 0xecdb9a8\ns_lshl_b32 s{t[12]}, s{t[10]}, 2\ns_lshr_b64 s[{t[13]}:{t[14]}], s[{t[13]}:{t[14]}], s{t[12]}")
                E(f"s_bfe_u32 s{t[14]}, s{t[13]}, 0x20002\ns_and_b32 s{t[15]}, s{t[13]}, 1\ns_lshl_b32 s{t[15]}, s{t[15]}, 7\ns_bfe_u32 s{t[13]}, s{t[13]}, 0x10001")
                E(f"s_lshl_b32 s{t[12]}, s{t[14]}, 10\ns_add_u32 s{t[12]}, s{t[12]}, s{t[15]}\ns_lshl_b32 s{t[11]}, s{t[13]}, 3\ns_add_u32 s{t[12]}, s{t[12]}, s{t[11]}\ns_add_u32 s{t[12]}, s{t[12]}, s{t[7]}")
                E(f"s_lshl_b32 s{t[11]}, s{t[13]}, 11\ns_add_u32 s{t[11]}, s{t[11]}, s{t[15]}\ns_add_u32 s{t[11]}, s{t[11]}, s{t[6]}")
                E(f"s_cmp_ge_u32 s{t[14]}, 2\ns_cselect_b32 s{t[13]}, 40, 4\ns_cselect_b32 s{t[15]}, 8, 24\ns_mul_i32 s{t[13]}, s{t[13]}, s{t[14]}\ns_lshl_b32 s{t[13]}, s{t[13]}, 10\ns_add_u32 s{t[11]}, s{t[11]}, s{t[13]}")
                E(f"s_mul_i32 s{t[13]}, s{t[2]}, 10\nv_lshrrev_b32 v56, 4, v0\nv_add_u32 v56, s{t[13]}, v56")
                for y in range(3):
                    E(f"v_lshrrev_b32 v57, 3, v56\nv_mad_u32_u24 v57, v57, s{t[15]}, v56\nv_lshl_add_u32 v{51+y}, v57, 8, v59\nv_add_u32 v56, 4, v56")
                E("v_lshrrev_b32 v57, 5, v0\nv_lshl_add_u32 v53, v57, 28, v53")
            else:
                E(f"s_cmp_ge_u32 s{t[10]}, 8\ns_cselect_b32 s{t[14]}, 1, 2\ns_cselect_b32 s{t[15]}, 40, 1\ns_cselect_b32 s{t[11]}, {80*KB}, 0\ns_lshl_b32 s{t[14]}, s{t[14]}, 10")
                E(f"s_mul_i32 s{t[12]}, s{t[2]}, 5\ns_mul_i32 s{t[12]}, s{t[12]}, s{t[14]}\ns_add_u32 s{t[11]}, s{t[11]}, s{t[12]}")
                E(f"v_lshrrev_b32 v53, 5, v0\nv_mad_u32_u24 v51, v53, s{t[14]}, v59\nv_lshl_add_u32 v53, v53, 28, v51\ns_lshl_b32 s{t[14]}, s{t[14]}, 1")
                E(f"s_bfe_u32 s{t[12]}, s{t[10]}, 0x10002\ns_mul_i32 s{t[12]}, s{t[12]}, s{t[15]}\ns_lshl_b32 s{t[12]}, s{t[12]}, 10")
                E(f"s_add_u32 s{t[11]}, s{t[11]}, s{t[12]}\ns_and_b32 s{t[12]}, s{t[10]}, 3\ns_lshl_b32 s{t[12]}, s{t[12]}, 7\ns_add_u32 s{t[11]}, s{t[11]}, s{t[12]}\ns_add_u32 s{t[11]}, s{t[11]}, s{t[6]}")
                E(f"s_lshr_b32 s{t[13]}, s{t[10]}, 2\ns_lshl_b32 s{t[13]}, s{t[13]}, 10\ns_add_u32 s{t[12]}, s{t[12]}, s{t[13]}\ns_add_u32 s{t[12]}, s{t[12]}, s{t[7]}")
            if rnd == 0:
                E.wait(vm=self.tok1); E("s_barrier")
            d0 = 60 + 16 * rnd
            for y in range(3):
                for rd in range(2): E(f"ds_read_b64_tr_b16 {v(d0+4*y+2*rd,2)}, v55 offset:{(32*y+4*rd)*160}")
            for y in range(3):
                E(f"buffer_store_dwordx4 {v(d0+4*y,4)}, v{51 + y if q16 else 53 if y == 2 else 51}, {s(M.WS,4)}, s{t[11]} offen sc1", count=False)
                if y < 2 and not q16: E(f"s_add_u32 s{t[11]}, s{t[11]}, s{t[14]}")
            E("v_mov_b32 v56, 0")
            for y in range(3):
                if y == 2: E("s_mov_b32 exec_hi, 0")
                for e in range(4): E(f"v_dot2c_f32_bf16 v56, s{sONE}, v{d0+4*y+e}")
            E("s_mov_b32 exec_hi, -1")
            for sw in ("v_permlane32_swap_b32", "v_permlane16_swap_b32"):
                E(f"v_mov_b32 v57, v56\n{sw} v57, v56\nv_add_f32 v56, v57, v56")
            split_hi_lo(E, 56, 57, 58, d0 + 12)
            E(f"buffer_store_dword v{d0+12}, v54, {s(M.WS,4)}, s{t[12]} offen sc1", count=False)
        E.place(Lz)
        E.place(Lend); E.hist = []; E.vm_done = done0
        E("s_nop 1")
    def flag(self, code):
        E, M = self.E, self.M
        L = E.label("FG")
        E(f"s_cmp_lg_u32 s{M.sW}, 0\ns_cbranch_scc1 {L}")
        E(code)
        E(f"buffer_store_dwordx2 {v(vTK,2)}, v{M.vSW if self.G.o.get('fullf', 1) else M.vSIG}, {s(M.WS,4)}, s{M.sA} offen sc1", count=False)
        E.place(L)
    def flag1(self):
        M = self.M
        self.flag(f"s_lshl_b32 s{M.sA}, s{M.sJ}, 4\ns_add_u32 s{M.sA}, s{M.sA}, s{sRHO}\ns_lshl_b32 s{M.sA}, s{M.sA}, 7\ns_add_u32 s{M.sA}, s{M.sA}, {F1}")
    def flag2(self):
        M = self.M
        self.flag(f"s_lshl_b32 s{M.sA}, s{M.sJ}, 4\ns_add_u32 s{M.sA}, s{M.sA}, s{M.sR}\ns_lshl_b32 s{M.sA}, s{M.sA}, 7\ns_add_u32 s{M.sA}, s{M.sA}, {F2}")
    def vpoll_issue(self, addr, dst):
        return f"buffer_load_dwordx2 {v(dst,2)}, v{addr}, {s(self.M.WS,4)}, 0 offen sc1"
    def vpoll_check(self, addr, dst, slp):
        def fn():
            E, M = self.E, self.M
            Ls, Lb = E.label("VS"), E.label("VB")
            E(f"v_cmp_ne_u64 vcc, {v(dst,2)}, {v(vTK,2)}\ns_cbranch_vccnz {Ls}")
            E.place(Lb)
            self.G.tail.append(f"{Ls}:\ns_mov_b32 s{M.sF}, 0x100000\n{Ls}_l:\ns_sleep {slp}\n{self.vpoll_issue(addr, dst)}\ns_waitcnt vmcnt(0)\n"
                               f"v_cmp_ne_u64 vcc, {v(dst,2)}, {v(vTK,2)}\ns_nop 1\ns_cbranch_vccz {Lb}\ns_sub_u32 s{M.sF}, s{M.sF}, 1\ns_cmp_lg_u32 s{M.sF}, 0\n"
                               f"s_cbranch_scc1 {Ls}_l\ns_branch {Lb}")
        return fn
    def s2_prep(self):
        E, M = self.E, self.M
        Ld, Lo, Le = E.label("S2"), E.label("S2"), E.label("S2")
        AD = 224; B = 176; C = 168; u = [t[0]] + t[10:16]; u = {0: t[0], 1: t[10], 2: t[11], 3: t[12], 4: t[13], 5: t[14], 6: t[15]}
        for i in range(11): E(f"v_mov_b32 v{AD+i}, {OOB}")
        if self.G.o.get('hackS'): E(f"v_mov_b32 v{B}, 0")
        E(f"s_lshl_b32 s{u[0]}, s{M.sLW}, 1\ns_add_u32 s{u[0]}, s{u[0]}, {LDS2}")
        E(f"s_cmp_ge_u32 s{sSIG}, 14\ns_cbranch_scc1 {Lo}\ns_cmp_ge_u32 s{sSIG}, 8\ns_cbranch_scc1 {Ld}")
        E(f"s_cmp_ge_u32 s{M.sW}, {1 if self.G.o.get('hackS', 0) & 1 else 3}\ns_cbranch_scc1 {Le}")
        if self.G.o.get('m16', 1):
            E(f"v_bfe_u32 v{B}, v0, 2, 2\nv_mul_u32_u24 v{B}, 384, v{B}\nv_lshrrev_b32 v{B+2}, 5, v0\nv_mul_u32_u24 v{B+1}, 192, v{B+2}\nv_add_u32 v{B}, v{B}, v{B+1}")
            E(f"v_bfe_u32 v{B+3}, v0, 4, 1\nv_lshl_add_u32 v{B}, v{B+3}, 3, v{B}\nv_and_b32 v{B+1}, 3, v0\nv_lshl_add_u32 v{B}, v{B+1}, 4, v{B}")
            E(f"s_lshl_b32 s{u[1]}, s{M.sW}, 6\ns_add_u32 s{u[1]}, s{u[1]}, {LDS2}\nv_add_u32 v{B}, s{u[1]}, v{B}")
            E(f"v_and_b32 v{B+4}, 15, v0\nv_lshlrev_b32 v{B+4}, 4, v{B+4}\nv_mul_u32_u24 v{B+1}, {6*KB}, v{B+2}\nv_lshl_add_u32 v{B+1}, v{B+3}, 3, v{B+1}\nv_add_u32 v{B+1}, v{B+1}, v{B+4}")
            E(f"v_mul_u32_u24 v{B+2}, {240*KB}, v{B+2}\nv_lshl_add_u32 v{B+2}, v{B+3}, 11, v{B+2}\nv_add_u32 v{B+2}, v{B+2}, v{B+4}")
            E(f"s_mul_i32 s{u[1]}, s{M.sNB}, 6\ns_add_u32 s{u[1]}, s{u[1]}, s{M.sW}\ns_lshr_b32 s{u[2]}, s{sSIG}, 2")
            E(f"s_and_b32 s{u[5]}, s{sSIG}, 3\ns_lshl_b32 s{u[4]}, s{u[1]}, 11\ns_lshl_b32 s{u[6]}, s{u[2]}, 10\ns_add_u32 s{u[4]}, s{u[4]}, s{u[6]}\ns_lshl_b32 s{u[6]}, s{u[5]}, 8")
            E(f"s_add_u32 s{u[4]}, s{u[4]}, s{u[6]}\ns_lshl_b32 s{u[6]}, s{M.sTH}, 2\ns_add_u32 s{u[4]}, s{u[4]}, s{u[6]}\ns_add_u32 s{u[4]}, s{u[4]}, {CSG}\nv_add_u32 v{AD+10}, s{u[4]}, v{B+1}")
            E(f"s_mul_i32 s{u[3]}, s{u[1]}, {80*KB}\ns_lshl_b32 s{u[2]}, s{u[2]}, 12\ns_add_u32 s{u[3]}, s{u[3]}, s{u[2]}\ns_add_u32 s{u[3]}, s{u[3]}, {WGU}\nv_add_u32 v{B+2}, s{u[3]}, v{B+2}")
            E(f"s_lshl_b32 s{u[5]}, s{u[5]}, 1\ns_add_u32 s{u[5]}, s{u[5]}, s{M.sTH}\ns_mul_i32 s{u[5]}, s{u[5]}, 10")
            for k in range(10):
                E(f"s_add_u32 s{u[1]}, s{u[5]}, {k}\ns_lshr_b32 s{u[2]}, s{u[1]}, 3\ns_mul_i32 s{u[2]}, s{u[2]}, 24\ns_add_u32 s{u[1]}, s{u[1]}, s{u[2]}\nv_lshl_add_u32 v{AD+k}, s{u[1]}, 8, v{B+2}")
        else:
            E(f"v_bfe_u32 v{B}, v0, 2, 2\nv_lshrrev_b32 v{B+1}, 5, v0\nv_lshl_add_u32 v{B}, v{B+1}, 3, v{B}\nv_mul_u32_u24 v{B}, 384, v{B}")
            E(f"v_bfe_u32 v{B+1}, v0, 4, 1\nv_lshl_add_u32 v{B}, v{B+1}, 5, v{B}\nv_and_b32 v{B+1}, 1, v0\nv_lshl_add_u32 v{B}, v{B+1}, 4, v{B}")
            E(f"v_bfe_u32 v{B+1}, v0, 1, 1\nv_lshl_add_u32 v{B}, v{B+1}, 3, v{B}\ns_lshl_b32 s{u[1]}, s{M.sW}, 6\ns_add_u32 s{u[1]}, s{u[1]}, {LDS2}\nv_add_u32 v{B}, s{u[1]}, v{B}")
            E(f"v_lshrrev_b32 v{B+1}, 5, v0\nv_mul_u32_u24 v{B+1}, {6*KB - 512}, v{B+1}\nv_add_u32 v{B+1}, v{B+1}, v{M.vL16}")
            E(f"s_mul_i32 s{u[1]}, s{M.sNB}, 6\ns_add_u32 s{u[1]}, s{u[1]}, s{M.sW}\ns_lshr_b32 s{u[2]}, s{sSIG}, 2\ns_lshl_b32 s{u[2]}, s{u[2]}, 10")
            E(f"s_and_b32 s{u[5]}, s{sSIG}, 3\ns_lshl_b32 s{u[5]}, s{u[5]}, 1\ns_add_u32 s{u[5]}, s{u[5]}, s{M.sTH}")
            E(f"s_mul_i32 s{u[3]}, s{u[1]}, {80*KB}\ns_mul_i32 s{u[4]}, s{u[5]}, {10*KB}\ns_add_u32 s{u[3]}, s{u[3]}, s{u[4]}\ns_add_u32 s{u[3]}, s{u[3]}, s{u[2]}\ns_add_u32 s{u[3]}, s{u[3]}, {WGU}")
            E(f"s_lshl_b32 s{u[4]}, s{u[1]}, 11\ns_add_u32 s{u[4]}, s{u[4]}, s{u[2]}\ns_mul_i32 s{u[2]}, s{u[5]}, 0x84\ns_and_b32 s{u[2]}, s{u[2]}, 0x20c\ns_add_u32 s{u[4]}, s{u[4]}, s{u[2]}\ns_add_u32 s{u[4]}, s{u[4]}, {CSG}")
            E(f"v_add_u32 v{AD}, s{u[3]}, v{M.vL16}\nv_add_u32 v{AD+10}, s{u[4]}, v{B+1}")
            for k in range(1, 10): E(f"v_add_u32 v{AD+k}, {240*KB*(k // 5) + 2048*(k % 5)}, v{AD}")
        E(f"s_branch {Le}")
        E.place(Ld); E.hist = []
        E(f"v_bfe_u32 v{B}, v0, 2, 2\nv_lshrrev_b32 v{B+1}, 4, v0\nv_lshl_add_u32 v{B}, v{B+1}, 3, v{B}\nv_mul_u32_u24 v{B}, 160, v{B}")
        E(f"v_add_u32 v{B}, s{u[0]}, v{B}\nv_and_b32 v{B+2}, 3, v0\nv_lshl_add_u32 v{B+1}, v{B+2}, 3, v{B}\nv_lshl_add_u32 v{B}, v{B+2}, 5, v{B}")
        E(f"v_mov_b32 v{C}, s{u[0]}\nv_mov_b32 v{C+1}, s{u[0]}")
        E(f"s_mul_i32 s{u[1]}, s{sU}, 21846\ns_lshr_b32 s{u[1]}, s{u[1]}, 16\ns_mul_i32 s{u[3]}, s{u[1]}, 3\ns_sub_u32 s{u[3]}, s{sU}, s{u[3]}")
        E(f"s_lshl_b32 s{u[3]}, s{u[3]}, 2\ns_and_b32 s{u[4]}, s{u[1]}, 3\ns_add_u32 s{u[3]}, s{u[3]}, s{u[4]}\ns_mul_i32 s{u[3]}, s{u[3]}, {5*KB}")
        E(f"s_lshr_b32 s{u[4]}, s{u[1]}, 2\ns_mul_i32 s{u[4]}, s{u[4]}, {60*KB}\ns_add_u32 s{u[3]}, s{u[3]}, s{u[4]}")
        E(f"s_mul_i32 s{u[4]}, s{M.sNB}, {240*KB}\ns_add_u32 s{u[3]}, s{u[3]}, s{u[4]}\ns_add_u32 s{u[3]}, s{u[3]}, {WD}")
        if not self.G.o.get('hackS', 0) & 2:
            E(f"v_add_u32 v{AD}, s{u[3]}, v{M.vL16}")
            for nt in range(1, 5): E(f"v_add_u32 v{AD+nt}, {1024*nt}, v{AD}")
        E(f"s_branch {Le}")
        E.place(Lo); E.hist = []
        E(f"v_lshrrev_b32 v{B+2}, 4, v0\nv_and_b32 v{B+3}, 1, v{B+2}\nv_lshrrev_b32 v{B+4}, 5, v0\nv_mul_u32_u24 v{B+5}, 20, v{B+4}\nv_lshl_add_u32 v{B+5}, v{B+3}, 3, v{B+5}")
        E(f"v_bfe_u32 v{B}, v0, 2, 2\nv_add_u32 v{B+5}, v{B+5}, v{B}\nv_mul_u32_u24 v{B+5}, 160, v{B+5}\nv_add_u32 v{B+5}, s{u[0]}, v{B+5}")
        E(f"v_and_b32 v{B+6}, 3, v0\nv_mul_u32_u24 v{B}, 160, v{B}\nv_add_u32 v{B+7}, s{u[0]}, v{B}")
        E(f"v_lshl_add_u32 v{B}, v{B+6}, 5, v{B+5}\nv_lshl_add_u32 v{B+1}, v{B+6}, 3, v{B+5}")
        E(f"v_lshl_add_u32 v{C}, v{B+6}, 5, v{B+7}\nv_lshl_add_u32 v{C}, v{B+2}, 3, v{C}\nv_lshl_add_u32 v{C+1}, v{B+6}, 3, v{B+7}")
        E(f"v_and_b32 v{C+2}, 15, v0\nv_lshlrev_b32 v{C+2}, 4, v{C+2}\nv_mul_u32_u24 v{C+3}, {10*KB}, v{B+4}\nv_lshl_add_u32 v{C+3}, v{B+3}, 8, v{C+3}\nv_add_u32 v{C+3}, v{C+3}, v{C+2}")
        E(f"v_lshl_add_u32 v{C+4}, v{B+2}, 10, v{C+2}\nv_lshl_add_u32 v{C+5}, v{B+2}, 28, v{C+2}")
        E(f"s_lshr_b32 s{u[1]}, s{sU}, 2\ns_mul_i32 s{u[1]}, s{u[1]}, {25*KB}\ns_mul_i32 s{u[3]}, s{M.sNB}, {100*KB}\ns_add_u32 s{u[1]}, s{u[1]}, s{u[3]}\ns_add_u32 s{u[1]}, s{u[1]}, {WO}")
        E(f"s_lshr_b32 s{u[3]}, s{M.sW}, 1\ns_mul_i32 s{u[3]}, s{u[3]}, {5*KB}\ns_and_b32 s{u[4]}, s{M.sW}, 1\ns_lshl_b32 s{u[4]}, s{u[4]}, 9\ns_add_u32 s{u[3]}, s{u[3]}, s{u[4]}")
        E(f"s_add_u32 s{u[3]}, s{u[3]}, s{u[1]}")
        E(f"s_lshl_b32 s{u[5]}, s{M.sW}, 8\ns_add_u32 s{u[5]}, s{u[5]}, s{u[1]}\ns_add_u32 s{u[5]}, s{u[5]}, {20*KB}\ns_add_u32 s{u[6]}, s{u[5]}, 4096")
        E(f"v_add_u32 v{AD}, s{u[3]}, v{C+3}\nv_add_u32 v{AD+5}, s{u[5]}, v{C+4}\nv_add_u32 v{AD+6}, s{u[6]}, v{C+5}")
        for nt in range(1, 5): E(f"v_add_u32 v{AD+nt}, {1024*nt}, v{AD}")
        E.place(Le); E.hist = []
        E("s_nop 1")
    def s2_read(self):
        E, M = self.E, self.M
        Ld, Le = E.label("S2"), E.label("S2")
        AD = 224; B = 176; C = 168
        E.drain(vm=False)
        E(f"s_cmp_ge_u32 s{sSIG}, 8\ns_cbranch_scc1 {Ld}\ns_cmp_eq_u32 s{M.sW}, 3\ns_cbranch_scc1 {Le}")
        for ks in range(10):
            for rd in range(2): E(f"ds_read_b64_tr_b16 {v(B+8+4*ks+2*rd,2)}, v{B} offset:{(8*ks+4*rd)*384 if self.G.o.get('m16', 1) else (16*(ks%5)+4*rd)*384 + 192*(ks//5)}")
        cd = self.G.o.get("csdot", 0)
        if cd:
            E(f"v_mov_b32 v{B+2}, 0\nv_mov_b32 v{B+3}, 0")
            for k in range(20): E(f"v_dot2c_f32_bf16 v{B+2}, s{sONE}, v{B+8+k}")
            for k in range(20): E(f"v_dot2c_f32_bf16 v{B+3}, s{sONE}, v{B+28+k}")
            E("s_nop 2")
        E(f"s_branch {Le}")
        E.place(Ld); E.hist = []; E.pend = {k: x for k, x in E.pend.items() if x[0] != "ds"}
        for nt in range(5):
            for rd in range(2): E(f"ds_read_b64_tr_b16 {v(B+8+4*nt+2*rd,2)}, v{B+1 if nt == 4 else B} offset:{4*rd*160 + (128 if nt == 4 else 8*nt)}")
        for rd in range(2): E(f"ds_read_b64_tr_b16 {v(B+28+2*rd,2)}, v{C} offset:{(16, 36)[rd]*160}")
        for rd in range(2): E(f"ds_read_b64_tr_b16 {v(B+32+2*rd,2)}, v{C+1} offset:{(16, 36)[rd]*160 + 128}")
        E.place(Le); E.hist = []
        E.drain(vm=False)
        cs = [f"v_mov_b32 v{B+2}, 0", f"v_mov_b32 v{B+3}, 0"]
        for k in range(20):
            cs += [f"v_lshlrev_b32 v{B+4}, 16, v{B+8+k}", f"v_lshlrev_b32 v{B+5}, 16, v{B+28+k}", f"v_add_f32 v{B+2}, v{B+2}, v{B+4}", f"v_add_f32 v{B+3}, v{B+3}, v{B+5}",
                   f"v_and_b32 v{B+4}, 0xffff0000, v{B+8+k}", f"v_and_b32 v{B+5}, 0xffff0000, v{B+28+k}", f"v_add_f32 v{B+2}, v{B+2}, v{B+4}", f"v_add_f32 v{B+3}, v{B+3}, v{B+5}"]
        if cd: cs = []
        if not self.G.o.get('m16', 1): cs += [f"v_permlane32_swap_b32 v{B+2}, v{B+3}"]
        cs += [f"v_add_f32 v{B+2}, v{B+3}, v{B+2}",
               f"v_cvt_pk_bf16_f32 v{B+7}, v{B+2}, 0", f"v_lshlrev_b32 v{B+3}, 16, v{B+7}", f"v_sub_f32 v{B+4}, v{B+2}, v{B+3}", f"v_cvt_pk_bf16_f32 v{B+6}, v{B+3}, v{B+4}"]
        r = [f"buffer_store_dwordx4 {v(B+8+4*i,4)}, v{AD+i}, {s(M.WS,4)}, 0 offen sc1" for i in range(10)]
        return cs, r, lambda: setattr(self, "tok3", E(f"buffer_store_dword v{B+6}, v{AD+10}, {s(M.WS,4)}, 0 offen sc1"))
```

```python
import sys, math, struct, stubs
from emit import *
from layout import *
from startup9 import Startup, NRACE, sTK, vTK, sONE, sRHO, OOB
KNAME = "interleave_layers__sliding_block__glu_gated_geglu__prompt_kernel"

def f2u(x): return hex(struct.unpack("<I", struct.pack("<f", x))[0])

WS = 4; OUT = 8; XIN = 12
sR, sJ, sW, sTH, sNB = 16, 17, 18, 19, 20
sWQ, sWGU, sWO, sWD, sLW = 21, 22, 23, 24, 25
sXB, sKVme, sOme, sHme = 26, 27, 28, 29
sT0 = 30
sMASK = 32
sRET = 64
sT16 = 66; sT16H = 70
sA, sB, sC, sD, sE_, sF = 74, 75, 76, 77, 78, 79
sFL = 80
sHAL = 89
sKP, sKC, sKT = 91, 92, 3
sRM = 93
sTS = 94
sTP, sTC, sWP, sWC = 98, 99, 100, 101
sP = 2
vL16, vL16b, vL16c = 1, 2, 3
vU = 4; vPOS = 5; vST = 6; vCS = 7; vSIG = 8; vONE = 9
vRW = 10
vXW = 14; vXW5 = 15; vO4 = 16; vSW = 17; vRSTD = 18; vT = 19
vRES = 20
vNM = 40
vC1, vC2, vIV = 44, 45, 46
vKR = 47
vRM, vRM5, vTS, vTS2 = 250, 251, 252, 253
vP = 255; vDUM = 254; vSR = 255
sAR = 1
vTL = 7
sPV = 15
sH8, sH16, sHX = 12, 13, 14
SLOT = 5248; ONES = 12 * SLOT; EPS = 1e-5
AG = 256
EARLY = [216 + 4 * i for i in range(7)]
FINAL = ""
NX0 = 10

class Pool:
    def __init__(self, quads=()): self.free = list(quads)
    def get(self): return self.free.pop(0)
    def put(self, q): self.free.append(q)
    def add(self, qs): self.free += list(qs)

def spread(ev, groups, start, step):
    for i, g in enumerate(groups): ev.setdefault(int(start + i * step), []).append(g)

class Gen:
    def __init__(self, stop=99, stamps=False, mapping="mix", opts=None):
        self.E = Emit(); self.stop = stop; self.stamps = stamps; self.mapping = mapping
        self.sites = []; self.nst = 0; self.stnames = []; self.tail = []; self.o = opts or {}
    def do(self, g):
        if isinstance(g, tuple):
            for x in g: r = self.do(x)
            return r
        if callable(g): return g()
        return self.E(g)
    @staticmethod
    def flat(g):
        if isinstance(g, tuple): return list(g)
        if callable(g): return [g]
        l = g.split("\n")
        if not l[-1].startswith(("buffer_", "ds_", "s_load")): return [g]
        return [x for x in ("\n".join(l[:-1]), l[-1]) if x]
    def stamp(self, name):
        if self.o.get("verbose") == 2:
            print(f"{name:18s} issue cost {self.E.cost - getattr(self, 'c0', 0):6d}  vmem {self.E.stats.get('vmem', 0) - getattr(self, 'v0', 0)}"); self.c0 = self.E.cost; self.v0 = self.E.stats.get('vmem', 0)
        ec = self.o.get("echo", 0)
        if ec and name == ("", "WQ synced", "L0 halo in", "L0 P4 synced", "L1 P1 synced", "L1 P5 done", "L1 P4 synced", "L1 halo in", "L1 P3 synced", "L1 P4 p2", "L0 P3 synced")[ec]:
            self.E(f"{'s_memtime' if self.o.get('ecyc') else 's_memrealtime'} {s(sTS+2,2)}"); self.E.wait_smem()
        if ec and self.o.get("e0") and name == ("", "WQ synced", "L0 halo in", "L0 P4 synced", "L1 P1 synced", "L1 P5 done", "L1 P4 synced", "L1 halo in", "L1 P3 synced", "L1 P4 p2", "L0 P3 synced")[self.o["e0"]]:
            self.E(f"{'s_memtime' if self.o.get('ecyc') else 's_memrealtime'} {s(sTS,2)}"); self.E.wait_smem()
        if not self.stamps or self.E.smem_out: return
        if self.o.get("ends") and name not in ("L1 P5 done", "L1 P1 synced", "WQ synced", "L0 P4 synced", "L1 P4 synced", "L0 P3 synced", "L1 P3 synced", "L0 halo in", "L1 halo in") + (("L0 P1 passA", "L0 att a", "L0 P4 p0", "L0 P4 p1", "L0 P4 p2", "st S2 read") if self.o["ends"] == 2 else ()): return
        E = self.E
        E(f"s_memrealtime {s(sTS,2)}\ns_memtime {s(sTS+2,2)}"); E.wait_smem()
        E(f"v_writelane_b32 v{vTS}, s{sTS}, {self.nst}\nv_writelane_b32 v{vTS2}, s{sTS+2}, {self.nst}")
        self.nst += 1; self.stnames.append(name)
    def dma4(self, sbase, goff, ldsoff, rec=None, fl="sc1"):
        g = [f"s_add_u32 m0, s{sLW}, {ldsoff}\ns_add_u32 s{sT0}, s{sbase}, {goff}\nbuffer_load_dwordx4 v{vL16}, {s(WS,4)}, s{sT0} offen {fl} lds"]
        for i in range(1, 4): g.append(f"buffer_load_dwordx4 v{vL16}, {s(WS,4)}, s{sT0} offen offset:{1024*i} {fl} lds")
        h = g[0].split("\n")
        def guarded(x, r):
            def fn():
                assert self.E.lastw["m0"] == h[0] and self.E.lastw[f"s{sT0}"] == h[1], "DMA group interleaved"
                t = self.E(x)
                if r is not None: r.append(t)
            return fn
        return [g[0], guarded(g[1], None), guarded(g[2], None), guarded(g[3], rec)]
    def wread(self, dst, ldsaddr):
        return f"ds_read_b128 {R(dst,4)}, v{vL16+(ldsaddr >> 16)} offset:{ldsaddr & 0xffff}"
    def signal(self, sreg, imm, tok, va=None):
        def fn():
            self.E.wait(vm=tok() if callable(tok) else tok)
            self.E(f"buffer_atomic_add v{vONE}, v{va or vSIG}, {s(WS,4)}, s{sreg} offen offset:{imm} sc1")
        return fn
    def poll_issue(self, sreg, imm):
        if self.o.get("spoll", 1): return f"s_load_dword s{sPV}, {s(WS,2)}, s{sreg} offset:{imm} glc"
        return f"buffer_load_dword v{vP}, v{vSIG}, {s(WS,4)}, s{sreg} offen offset:{imm} sc1"
    def poll_check(self, sreg, imm, thr, slp=None):
        def fn():
            E = self.E
            Ls, Lb = E.label("SP"), E.label("BK")
            sc = self.o.get("spoll", 1)
            assert E.lastw.get(f"s{sPV}") == self.poll_issue(sreg, imm), "poll checked without its load"
            E.lastw[f"s{sPV}"] = None
            if sc: E.wait_smem()
            else: E(f"v_readfirstlane_b32 s{sPV}, v{vP}")
            E(f"s_cmp_ge_u32 s{sPV}, {thr}\ns_cbranch_scc0 {Ls}")
            E.place(Lb)
            sl = self.o.get("slp", 0) if slp is None else slp
            cnt = ""
            if self.stamps and self.o.get("ends"):
                self.sites.append(f"{sreg}/{imm}")
                cnt = f"s_sub_u32 s{sPV}, 0x200001, s{sF}\nv_writelane_b32 v{vTS2}, s{sPV}, {18 + len(self.sites)}\n"
            self.tail.append(f"{Ls}:\ns_mov_b32 s{sF}, 0x200000\n{Ls}_l:\n" + cnt + (f"s_sleep {sl}\n" if sl else "") + self.poll_issue(sreg, imm) +
                             ("\ns_waitcnt lgkmcnt(0)\n" if sc else f"\ns_waitcnt vmcnt(0)\nv_readfirstlane_b32 s{sPV}, v{vP}\ns_nop 0\n") +
                             f"s_cmp_ge_u32 s{sPV}, {thr}\ns_cbranch_scc1 {Lb}\ns_sub_u32 s{sF}, s{sF}, 1\ns_cmp_lg_u32 s{sF}, 0\n"
                             f"s_cbranch_scc1 {Ls}_l\ns_branch {Lb}")
        return fn
    def validate(self, quads, reload, tmp):
        rs = [q + e for q in quads for e in range(4)]
        ops = [f"v_max3_u32 v{tmp}, v{rs[0]}, v{rs[1]}, v{rs[2]}"]
        rest = rs[3:]
        while rest:
            if len(rest) >= 2: ops.append(f"v_max3_u32 v{tmp}, v{rest[0]}, v{rest[1]}, v{tmp}"); rest = rest[2:]
            else: ops.append(f"v_max_u32 v{tmp}, v{rest[0]}, v{tmp}"); rest = []
        ops.append(f"v_cmp_eq_u32 vcc, -1, v{tmp}")
        def br():
            E = self.E
            Ls, Lb = E.label("RT"), E.label("RB")
            E(f"s_cbranch_vccnz {Ls}"); E.place(Lb)
            cnt = ""
            if self.stamps and self.o.get("ends"):
                self.sites.append("val")
                cnt = f"s_sub_u32 s{sTS}, 0x200001, s{sF}\nv_writelane_b32 v{vTS2}, s{sTS}, {18 + len(self.sites)}\n"
            self.tail.append(f"{Ls}:\ns_mov_b32 s{sF}, 0x200000\n{Ls}_l:\n" + cnt + "\n".join(reload) + "\ns_waitcnt vmcnt(0)\n" + "\n".join(ops) +
                             f"\ns_sub_u32 s{sF}, s{sF}, 1\ns_nop 0\ns_cbranch_vccz {Lb}\ns_cmp_lg_u32 s{sF}, 0\ns_cbranch_scc1 {Ls}_l\ns_branch {Lb}")
        g = ["\n".join(ops[k:k + 2]) for k in range(0, len(ops), 2)]
        n0 = len(self.E.out); g0 = g[0]
        def first():
            for q in quads:
                assert any(x.startswith(f"buffer_load_dwordx4 {v(q,4)},") for x in self.E.out[n0:]), q
            self.E(g0)
        return [first] + g[1:] + [br]
    def hpoison(self, reg, sr):
        r = []
        for p in (1, 2):
            r += [f"s_add_u32 s{sr}, s{sJ}, {p}\ns_and_b32 s{sr}, s{sr}, 3", f"s_lshl_b32 s{sr}, s{sr}, 11\ns_and_b32 s{sF}, s{sHme}, 0xffffe000\ns_add_u32 s{sr}, s{sr}, s{sF}\n"
                  f"buffer_store_dwordx4 {v(reg,4)}, v{vL16}, {s(WS,4)}, s{sr} offen sc1", f"buffer_store_dwordx4 {v(reg,4)}, v{vL16}, {s(WS,4)}, s{sr} offen offset:1024 sc1"]
        return r
    def xpoison(self, idx, reg):
        if not self.o.get("early", 0): return []
        return [f"s_add_u32 s{sP}, s{sT16+3}, {self.xt(idx)}\ns_mul_i32 s{sF}, s{sNB}, {5*KB}\ns_add_u32 s{sP}, s{sP}, s{sF}\nbuffer_store_dwordx4 {v(reg,4)}, v{vXW}, {s(WS,4)}, s{sP} offen sc1",
                f"buffer_store_dwordx4 {v(reg,4)}, v{vXW}, {s(WS,4)}, s{sP} offen offset:512 sc1",
                f"s_add_u32 s{sP}, s{sP}, 4096\nbuffer_store_dwordx2 {v(reg,2)}, v{vXW5}, {s(WS,4)}, s{sP} offen sc1",
                f"s_lshl_b32 s{sP}, s{sR}, 4\ns_add_u32 s{sP}, s{sP}, s{sJ}\ns_lshl_b32 s{sP}, s{sP}, 2\ns_add_u32 s{sP}, s{sP}, s{sW}",
                f"s_lshl_b32 s{sP}, s{sP}, 7\ns_add_u32 s{sP}, s{sP}, {STAT + idx*128*KB}\nbuffer_store_dwordx2 {v(reg,2)}, v{vSW}, {s(WS,4)}, s{sP} offen sc1"]
    def nan_net(self, acc, xl, items, allw, ring, imm, stat):
        xr = self.xr
        def fn():
            E = self.E
            Ls, Lb = E.label("NN"), E.label("NB")
            E(f"v_cmp_{'o' if self.o.get('forcenan') else 'u'}_f32 vcc, v{acc}, v{acc}\ns_cbranch_vccnz {Ls}"); E.place(Lb)
            F = Emit(); F.raw(f"{Ls}:")
            if self.stamps and self.o.get("ends"):
                self.sites.append("nan"); F(f"s_mov_b32 s{sTS}, 1\nv_writelane_b32 v{vTS2}, s{sTS}, {18 + len(self.sites)}")
            F("s_waitcnt vmcnt(0) lgkmcnt(0)"); F.settle()
            F(f"s_mov_b32 s{sF}, 0x200000"); F.raw(f"{Ls}_p:")
            F(self.poll_issue(sWC, imm + 8)); F.wait_smem()
            F(f"s_cmp_ge_u32 s{sPV}, 16\ns_cbranch_scc1 {Ls}_q\ns_sub_u32 s{sF}, s{sF}, 1\ns_cmp_lg_u32 s{sF}, 0\ns_cbranch_scc1 {Ls}_p"); F.raw(f"{Ls}_q:")
            F(f"s_mov_b32 s{sF}, s{sE_}")
            for g in xl: F(g)
            F(f"s_mov_b32 s{sE_}, s{sF}\ns_mov_b32 s{sF}, s{sC}")
            for g in stat: F(g)
            F(f"s_mov_b32 s{sC}, s{sF}")
            f = 0
            for k in range(6): F(self.wread(ring + 4 * k, allw[k]))
            for it in items:
                if it[0] == "cs": F(f"v_mfma_f32_32x32x16_bf16 {v(it[1],16)}, {R(it[2],4)}, {v(vNM,4)}, {v(it[1],16)}")
                else:
                    F(f"v_mfma_f32_32x32x16_bf16 {v(it[0],16)}, {R(ring+4*(f%6),4)}, {a(xr(it[1]),4)}, {'0' if it[2] else v(it[0],16)}")
                    F(self.wread(ring + 4 * (f % 6), allw[f + 6])); f += 1
            F.drain(); F.settle()
            F(f"s_branch {Lb}")
            self.tail.append(F.text())
        return fn
    def idle_consts(self):
        self.nC0 = len(self.E.out)
        for x in self.att_consts(): self.E(x.replace(s(sC, 2), "s[64:65]"))
    def window(self, k):
        if self.o.get("stub", 70) >> k & 1: self.E.raw(";@WIN")
    def poll_block(self, sreg, imm, thr):
        if not self.preissued: self.E(self.poll_issue(sreg, imm))
        if imm >= 512 and self.o.get("cstW", 3) == 2: self.idle_consts()
        self.window(4 if imm < 512 else 6)
        self.poll_check(sreg, imm, thr)()
    def T(self, kind, L): return 1024 * kind + 4 * L if kind < 4 else 8 + 4 * L
    def touch(self, sreg, sh, off):
        def fn():
            self.E(f"s_add_u32 s{sP}, s{sreg}, s{sh}\ns_add_u32 s{sP}, s{sP}, {off}\nbuffer_load_dword v{vDUM}, v{vTL}, {s(WS,4)}, s{sP} offen sc1")
            self.E.pend.pop(f"v{vDUM}", None)
        m = self.o.get("touch", 0)
        return fn if (m & (1 if sh == sHX else 2)) else (lambda: None)
    def prologue(self):
        E = self.E
        kernel_header(E, KNAME)
        if self.stamps: E(f"s_memrealtime {s(sTS,2)}\ns_memtime {s(sTS+2,2)}")
        if self.o.get("echo"): E(f"s_memrealtime {s(sTS,2)}")
        E(f"s_load_dwordx2 {s(WS,2)}, s[0:1], 72\ns_load_dwordx2 {s(OUT,2)}, s[0:1], 56\ns_load_dwordx2 {s(XIN,2)}, s[0:1], 0")
        E("s_load_dwordx2 s[32:33], s[0:1], 8\ns_load_dwordx2 s[82:83], s[0:1], 16\ns_load_dwordx4 s[84:87], s[0:1], 32\ns_load_dwordx2 s[88:89], s[0:1], 48")
        E("s_cmp_ge_u32 s2, 256\ns_cbranch_scc1 EXIT")
        self.tail.append("EXIT:\ns_endpgm")
        Lp = E.label("PC")
        E(f"s_getpc_b64 {s(sRET,2)}"); E.place(Lp)
        E(f"s_lshr_b32 s{sA}, s2, 3\nv_lshl_add_u32 v{vT}, v0, 5, s{sA}\nv_lshlrev_b32 v{vT}, 7, v{vT}\nv_min_u32 v{vT}, main_end-{Lp}-4, v{vT}")
        E(f"global_load_dword v247, v{vT}, {s(sRET,2)}")
        E(f"s_mov_b32 s{WS+2}, {WS_BYTES - 2*MB}\ns_mov_b32 s{WS+3}, 0x00020000")
        for b in (OUT, XIN): E(f"s_mov_b32 s{b+2}, {2048*640*2}\ns_mov_b32 s{b+3}, 0x00020000")
        E(f"v_lshrrev_b32 v{vT}, 6, v0\nv_and_b32 v0, 63, v0\nv_readfirstlane_b32 s{sW}, v{vT}")
        E(f"s_and_b32 s{sA}, s2, 7\ns_lshr_b32 s{sB}, s2, 3")
        if self.mapping == "mix":
            E(f"s_lshr_b32 s{sC}, s{sA}, 1\ns_lshl_b32 s{sC}, s{sC}, 2\ns_lshr_b32 s{sR}, s{sB}, 3\ns_add_u32 s{sR}, s{sR}, s{sC}")
            E(f"s_and_b32 s{sC}, s{sA}, 1\ns_lshl_b32 s{sC}, s{sC}, 3\ns_and_b32 s{sJ}, s{sB}, 7\ns_add_u32 s{sJ}, s{sJ}, s{sC}")
        else:
            E(f"s_lshr_b32 s{sR}, s{sB}, 4\ns_lshl_b32 s{sC}, s{sA}, 1\ns_add_u32 s{sR}, s{sR}, s{sC}\ns_and_b32 s{sJ}, s{sB}, 15")
        E(f"s_and_b32 s{sTH}, s{sJ}, 1\ns_lshr_b32 s{sNB}, s{sJ}, 1\ns_lshl_b32 s{sLW}, s{sW}, 12")
        E(f"v_lshlrev_b32 v{vL16}, 4, v0")
        if self.stamps: E(f"v_mov_b32 v{vTS}, 0\nv_mov_b32 v{vTS2}, 0")
        S = self.S = Startup(self, sys.modules[__name__])
        S.roles0(); S.s1_load(); S.x_touch()
        if self.stamps:
            E(f"v_writelane_b32 v{vTS2}, s2, 63")
            E(f"v_writelane_b32 v{vTS}, s{sTS}, 0\nv_writelane_b32 v{vTS2}, s{sTS+2}, 0")
            self.nst = 1; self.stnames.append("entry")
        E(f"s_sub_u32 s{sA}, 0, s{WS}\ns_and_b32 s{sA}, s{sA}, 0x1fffff\ns_add_u32 s{WS}, s{WS}, s{sA}\ns_addc_u32 s{WS+1}, s{WS+1}, 0")
        S.leader_clear()
        E(f"v_mov_b32 v{vTK+1}, {EPOCH}\nbuffer_load_dword v{vTK}, v{vTK+1}, {s(WS,4)}, 0 offen sc1")
        self.stamp("st S1 issued")
        if self.o.get("alpos", 0): E.raw(";@ALIGN"); self.window(10)
        S.roles(82, 84, 86, 88)
        S.s2_addrs()
        self.s2q = [(lambda i=i: setattr(S, "tok2", E(S.s2_load(i)))) for i in range(8)]
        if self.o.get("s2when", 2) == 0:
            while self.s2q: self.s2q.pop(0)()
        E(f"s_lshl_b32 s{sA}, s{sR}, 2\ns_add_u32 s{sA}, s{sA}, s{sW}\ns_mul_i32 s{sTK}, s{sA}, {40*KB}")
    def masks(self):
        r = []
        for i in range(16):
            m = 0
            for l in range(64):
                if (i & 3) + 8 * (i >> 2) + 4 * (l >> 5) <= (l & 31): m |= 1 << l
            r.append(f"s_mov_b32 s{sMASK+2*i}, {hex(m & 0xffffffff)}\ns_mov_b32 s{sMASK+2*i+1}, {hex(m >> 32)}")
        return r
    def x_bounce(self, T, wdm):
        E = self.E; S = self.S
        XA = 96; XR = 100; TM = 104; PA, PD = 240, 242
        o = self.o; X0 = 64 * KB
        E(f"v_lshrrev_b32 v48, 3, v0\nv_mul_u32_u24 v48, 1280, v48\nv_and_b32 v49, 7, v0\nv_lshrrev_b32 v50, 4, v0\nv_xor_b32 v49, v49, v50\nv_lshl_add_u32 v{XA}, v49, 4, v48")
        E(f"v_xor_b32 v{XA+1}, 64, v{XA}\nv_add_u32 v{XA+2}, {2*9216}, v{XA}\nv_add_u32 v{XA+3}, {3*9216}, v{XA+1}\nv_add_u32 v{XA+1}, 9216, v{XA+1}")
        tok = []
        def dma(ch):
            E(f"s_add_u32 m0, s{sLW}, {X0 + 16*KB*(ch%4)}\ns_add_u32 s{sE_}, s{sTK}, {128*ch}")
            for i in range(4): t = E(f"buffer_load_dwordx4 v{XA+i}, {s(XIN,4)}, s{sE_} offen offset:{1024*i} lds")
            tok.append(t)
        E(f"s_mul_i32 s{sWQ}, s{sJ}, {160*KB}\ns_add_u32 s{sWQ}, s{sWQ}, s{sLW}\ns_add_u32 s{sWQ}, s{sWQ}, {WQ}")
        E(f"v_min_u32 v{vSIG}, 1, v0\nv_lshlrev_b32 v{vSIG}, 28, v{vSIG}\nv_mov_b32 v{vONE}, 1")
        E(f"v_and_b32 v48, 31, v0\nv_lshrrev_b32 v49, 5, v0\nv_bfe_u32 v50, v0, 1, 3\nv_xor_b32 v49, v49, v50\nv_lshlrev_b32 v49, 4, v49\nv_lshl_add_u32 v48, v48, 7, v49")
        q16 = o.get("q16", 1)
        if q16: E(f"v_and_b32 v48, 15, v0\nv_lshrrev_b32 v49, 4, v0\nv_xor_b32 v49, v49, v50\nv_lshlrev_b32 v49, 4, v49\nv_lshl_add_u32 v48, v48, 7, v49")
        E(f"s_add_u32 s{sA}, s{sLW}, {X0}\nv_add_u32 v{XR}, s{sA}, v48")
        for k in range(1, 4): E(f"v_xor_b32 v{XR+k}, {64*(k & 1) + 1024*(k & 2) if q16 else 32*k}, v{XR}")
        E(f"v_mov_b32 v{T}, 0\nv_mov_b32 v{T+1}, 0\nv_mov_b32 v{T+4}, 0\nv_mov_b32 v{T+5}, 0")
        E(f"s_lshl_b32 s{sA}, s{sNB}, 12\ns_add_u32 s{sA}, s{sA}, {F1}\ns_sub_u32 s{sB}, 15, s{sR}\ns_mov_b32 s{sC}, {F1 + 15*128}")
        E(f"v_and_b32 v49, 3, v0\nv_min_u32 v49, 2, v49\nv_add_u32 v49, s{sB}, v49\nv_min_u32 v49, 15, v49\nv_lshl_add_u32 v49, v49, 11, s{sC}")
        E(f"v_lshlrev_b32 v174, {o.get('vsh', 7)}, v0\nv_add_u32 v174, {VOTE}, v174")
        E(f"v_lshl_add_u32 v48, v0, 7, s{sA}\nv_cmp_gt_u32 vcc, 32, v0\nv_cndmask_b32 v{PA}, v49, v48, vcc")
        E(f"s_lshl_b32 s{sA}, s{sNB}, 12\ns_add_u32 s{sA}, s{sA}, {F2}\nv_and_b32 v48, 31, v0\nv_lshl_add_u32 v{PA+1}, v48, 7, s{sA}")
        prep = S.s2_prep if not o.get("s2when", 2) else (lambda: None)
        if o.get("cfirst", 1): self.prologue2(); prep()
        if not o.get("alpos", 0): E.raw(";@ALIGN")
        self.window(0)
        S.s1_proc()
        self.stamp("st S1 stored")
        for ch in range(0, 2): dma(ch)
        if not o.get("cfirst", 1): self.prologue2(); prep()
        E(f"s_mov_b32 s{sA}, 0x9e3779b1\nv_mul_lo_u32 v{vTK}, v{vTK}, s{sA}\nv_add_u32 v{vTK}, 0x7f4a7c15, v{vTK}\nv_xor_b32 v{vTK+1}, 0x5bd1e995, v{vTK}")
        E(f"v_readfirstlane_b32 s0, v{vTK}")
        if o.get("racepos", 1) == 0: S.leader_race()
        dma(2)
        if o.get("racepos", 1) == 1: S.leader_race()
        self.window(1)
        E.wait(vm=tok[0] - 3); E("s_barrier"); S.flag1(); self.stamp("st F1")
        dma(3)
        self.s2r = None
        nx = o.get("s2x", 10) if not o.get("s2when", 2) else 0
        if nx: self.s2r = S.s2_read()
        pi, pc = o.get("f1poll", 5), o.get("f1chk", 8)
        def dots(ch):
            tm = TM + 16 * (ch & 1)
            for e in range(16):
                T_ = T + (4 if q16 and e >= 8 else 0)
                E(f"v_dot2c_f32_bf16 v{T_}, s{sONE}, v{tm+e}\nv_dot2c_f32_bf16 v{T_+1}, v{tm+e}, v{tm+e}")
        for ch in range(10):
            E.wait(vm=tok[ch])
            for k in range(4): E(f"ds_read_b128 {v(TM+16*(ch&1)+4*k,4)}, v{XR+k} offset:{16*KB*(ch%4)}")
            for k in range(4): E(f"ds_read_b128 {a(16*ch+4*k,4)}, v{XR+k} offset:{16*KB*(ch%4)}")
            if ch == pi:
                E(f"s_cmp_eq_u32 s{sW}, 0\ns_cselect_b32 s{sA}, 0, {OOB}\nv_add_u32 v{PA}, s{sA}, v{PA}")
                E(S.vpoll_issue(PA, PD))
            if ch == o.get("vpos", 13) - 100: E(f"buffer_load_dword v175, v174, {s(WS,4)}, 0 offen sc1")
            if ch == o.get("resch", 1):
                for x in self.tile_addrs(140, 143): E(x)
                for i in range(3): rtok = E(f"s_add_u32 m0, s{sLW}, {16*KB + 1024*i}\nbuffer_load_dwordx4 v{140+i}, {s(XIN,4)}, s{sRM} offen lds")
            if ch == 7:
                E.wait(vm=rtok)
                E(f"ds_read_b128 v[136:139], v{vRM} offset:{16*KB}\nds_read_b128 v[140:143], v{vRM} offset:{16*KB+16}\nds_read_b64 v[144:145], v{vRM5} offset:{16*KB+128}")
            if ch == 8:
                for i in range(10): E(f"v_lshlrev_b32 v{vRES+2*i}, 16, v{136+i}\nv_and_b32 v{vRES+2*i+1}, 0xffff0000, v{136+i}")
            if ch: dots(ch - 1)
            E.drain(vm=False)
            if ch + 4 < 10: dma(ch + 4)
            if ch == o.get("s2ch", 0):
                while self.s2q: self.s2q.pop(0)()
                if o.get("s2when", 2): S.s2_prep()
            for _ in range(o.get("s2n", 2)):
                if ch < nx and ch >= o.get("s2f", 5) and self.s2r[1]: E(self.s2r[1].pop(0))
            if ch == pc:
                Lw = E.label("PW")
                E.need(regs(v(PD, 2)))
                E(f"s_cmp_lg_u32 s{sW}, 0\ns_cbranch_scc1 {Lw}")
                S.vpoll_check(PA, PD, 4)()
                E.place(Lw)
                E("s_barrier")
                self.stamp("WQ synced")
            if ch >= pc and wdm:
                for _ in range(o.get("wfirst", 1)):
                    for g in wdm.pop(0): self.do(g)
        dots(9)
        self.stamp("st x done")
    def sharers(self):
        return [f"s_and_b32 s{sA}, s{sR}, 3\ns_lshl_b32 s{sH8}, s{sA}, 1\ns_add_u32 s{sH8}, s{sH8}, s{sTH}\ns_lshl_b32 s{sH8}, s{sH8}, 11",
                f"s_and_b32 s{sA}, s{sR}, 3\ns_lshl_b32 s{sH16}, s{sA}, 2\ns_add_u32 s{sH16}, s{sH16}, s{sW}\ns_lshl_b32 s{sH16}, s{sH16}, 11\ns_sub_u32 s{sH16}, s{sH16}, s{sLW}",
                f"s_and_b32 s{sHX}, s{sJ}, 7\ns_lshl_b32 s{sHX}, s{sHX}, 11"]
    def prologue2(self):
        E = self.E; NREP = self.o.get("nrep", 4)
        E(f"s_mul_i32 s{sWGU}, s{sJ}, {240*KB}\ns_add_u32 s{sWGU}, s{sWGU}, s{sLW}\ns_add_u32 s{sWGU}, s{sWGU}, {WGU}")
        E(f"s_mul_i32 s{sWO}, s{sNB}, {100*KB}\ns_mul_i32 s{sA}, s{sW}, {25*KB}\ns_add_u32 s{sWO}, s{sWO}, s{sA}\ns_add_u32 s{sWO}, s{sWO}, {WO}")
        E(f"s_mul_i32 s{sWD}, s{sNB}, {240*KB}\ns_mul_i32 s{sA}, s{sW}, {60*KB}\ns_add_u32 s{sWD}, s{sWD}, s{sA}\ns_add_u32 s{sWD}, s{sWD}, {WD}")
        E(f"s_lshl_b32 s{sA}, s{sR}, 2\ns_add_u32 s{sA}, s{sA}, s{sW}")
        for i in range(9):
            E(f"s_cmp_lt_u32 s{sA}, {8-i}\ns_cselect_b32 s{sFL+i}, 0x3f803f80, 0x3f800000" if False else
              f"s_cmp_lt_u32 s{sA}, {8-i}\ns_cselect_b32 s{sFL+i}, 0x3f80, 0\ns_or_b32 s{sFL+i}, s{sFL+i}, 1.0")
        E(f"v_lshlrev_b32 v{vSR}, 10, v0\nv_mov_b32 v48, {OOB}\nv_cmp_gt_u32 vcc, {NREP}, v0\nv_cndmask_b32 v{vSR}, v48, v{vSR}, vcc")
        for i in range(3):
            E(f"s_add_u32 s{sA}, s{sW}, {1+i}\ns_and_b32 s{sA}, s{sA}, 3\ns_mul_i32 s{sA}, s{sA}, {15*KB}\ns_add_u32 s{sA}, s{sA}, {5*KB*i}\nv_add_u32 v{vRW+i}, s{sA}, v{vL16}")
        E(f"s_mul_i32 s{sA}, s{sW}, {15*KB}\nv_add_u32 v{vRW+3}, s{sA}, v{vL16}")
        t0, t1, t2 = 48, 49, 50
        E(f"v_add_u32 v{vL16b}, 0x10000, v{vL16}\nv_add_u32 v{vL16c}, 0x20000, v{vL16}")
        E(f"v_lshrrev_b32 v{t0}, 4, v0\nv_and_b32 v{t1}, 15, v0")
        E(f"v_lshlrev_b32 v{t2}, 9, v{t0}\nv_lshl_add_u32 v{vU}, v{t1}, 4, v{t2}")
        E(f"v_lshlrev_b32 v{t2}, 10, v{t0}\nv_lshl_add_u32 v{vXW}, v{t1}, 4, v{t2}")
        E(f"v_lshrrev_b32 v{t2}, 1, v{t0}\nv_lshlrev_b32 v{t2}, 9, v{t2}\nv_lshl_add_u32 v{vXW5}, v{t1}, 4, v{t2}")
        E(f"v_and_b32 v{t2}, 1, v{t0}\nv_lshl_add_u32 v{vXW5}, v{t2}, 3, v{vXW5}")
        E(f"s_mul_i32 s{sA}, s{sNB}, {5*KB}\nv_add_u32 v{vXW}, s{sA}, v{vXW}\ns_add_u32 s{sA}, s{sA}, 4096\nv_add_u32 v{vXW5}, s{sA}, v{vXW5}")
        for r_ in (vXW, vXW5): E(f"v_and_b32 v{t2}, 0xffffe000, v{r_}\nv_add_u32 v{r_}, v{t2}, v{r_}")
        E(f"v_lshlrev_b32 v{vTL}, 7, v{t1}\nv_lshl_add_u32 v{vTL}, v{t0}, 28, v{vTL}")
        E(f"v_lshlrev_b32 v{vSW}, 3, v{t1}\nv_lshl_add_u32 v{vSW}, v{t0}, 28, v{vSW}")
        E(f"v_mul_u32_u24 v{t2}, 160, v{t1}\nv_add_u32 v{t2}, s{sLW}, v{t2}\nv_lshl_add_u32 v{vRM}, v{t0}, 5, v{t2}\nv_lshl_add_u32 v{vRM5}, v{t0}, 3, v{t2}")
        E(f"s_lshl_b32 s{sA}, s{sR}, 1\ns_add_u32 s{sA}, s{sA}, s{sTH}\ns_lshl_b32 s{sA}, s{sA}, 2\ns_add_u32 s{sA}, s{sA}, s{sW}")
        E(f"s_mul_i32 s{sA}, s{sA}, {16*1280}\ns_mul_i32 s{sB}, s{sNB}, 160\ns_add_u32 s{sRM}, s{sA}, s{sB}")
        E(f"v_lshrrev_b32 v{t0}, 5, v0\nv_and_b32 v{t1}, 31, v0")
        E(f"v_lshlrev_b32 v{t2}, 2, v{t0}\nv_xor_b32 v{t2}, v{t2}, v{t1}\nv_lshlrev_b32 v{t2}, 4, v{t2}\nv_lshl_add_u32 v{vPOS}, v{t0}, 9, v{t2}")
        E(f"v_lshlrev_b32 v{t2}, 3, v{t1}")
        E(f"s_lshl_b32 s{sA}, s{sW}, 8\nv_lshl_add_u32 v{vST}, v{t0}, 12, v{t2}\nv_add_u32 v{vST}, s{sA}, v{vST}")
        E(f"v_lshlrev_b32 v{t2}, 4, v{t1}\nv_lshl_add_u32 v{vO4}, v{t0}, 3, v{t2}")
        E(f"s_mul_i32 s{sA}, s{sW}, {SLOT}\nv_add_u32 v{vKR}, s{sA}, v{vPOS}")
        for g in self.arena_consts(): E(g)
    def arena_fix(self, VV):
        n = self.o.get("numa", -1)
        assert self.o.get("nrace", NRACE) == 1
        ld = f"buffer_load_dword v{VV}, v174, {s(WS,4)}, 0 offen sc1"
        chk = f"v_sub_u32 v{VV}, v{VV}, v{vTK}\nv_cmp_lt_u32 vcc, 7, v{VV}"
        Ls, Lb = self.E.label("VT"), self.E.label("VB")
        self.tail.append(f"{Ls}:\ns_mov_b32 s{sF}, 0x100000\n{Ls}_l:\ns_sleep 4\n{ld}\ns_waitcnt vmcnt(0)\n{chk}\ns_nop 1"
                         f"\ns_cbranch_vccz {Lb}\ns_sub_u32 s{sF}, s{sF}, 1\ns_cmp_lg_u32 s{sF}, 0\ns_cbranch_scc1 {Ls}_l\ns_branch {Lb}")
        va = [chk + f"\ns_cbranch_vccnz {Ls}\n@{Lb}", f"v_lshrrev_b32 v{VV-1}, 2, v{VV}", f"v_and_b32 v{VV}, 1, v{VV}",
              f"v_cmp_ne_u32 vcc, v{VV}, v{VV-1}\ns_bcnt1_i32_b64 s64, vcc\ns_cmp_ge_u32 s64, 32\ns_cselect_b32 s64, 1, 0",
              f"v_xor_b32 v{VV}, s64, v{VV-1}", f"v_lshlrev_b32 v{VV}, 13, v{VV}",
              f"s_lshr_b32 s65, s{sW}, 1\ns_add_u32 s65, s65, s{sR}\ns_max_u32 s65, s65, 2\ns_sub_u32 s65, s65, 2",
              f"s_lshl_b32 s65, s65, 2\ns_lshl_b32 s64, s{sR}, 2", f"v_readlane_b32 s64, v{VV}, s64", f"v_readlane_b32 s65, v{VV}, s65"]
        r = []
        if self.stamps: r.append(f"v_writelane_b32 v{vTS}, s64, 62")
        if n >= 0:
            r += [f"s_lshr_b32 s64, s{sR}, 3\ns_xor_b32 s64, s64, {n}\ns_lshl_b32 s64, s64, 13",
                  f"s_lshr_b32 s65, s{sW}, 1\ns_add_u32 s65, s65, s{sR}\ns_sub_u32 s65, s65, 2", f"s_bfe_u32 s65, s65, 0x10003\ns_xor_b32 s65, s65, {n}\ns_lshl_b32 s65, s65, 13"]
        own = [sXB, sHme, sKP, sOme, sTP, sTC, sWP, sWC] + [sT16 + i for i in range(8)]
        r += ["\n".join(f"s_add_u32 s{x}, s{x}, s64" for x in own[k:k + 2]) for k in range(0, 16, 2)]
        r += [f"s_cmp_eq_u32 s{sKT}, 0\ns_cselect_b32 s64, s64, s65\ns_cselect_b32 s65, 0, s65",
              f"s_add_u32 s{sHAL}, s{sHAL}, s65\ns_add_u32 s{sKC}, s{sKC}, s64\ns_add_u32 s{sKVme}, s{sKVme}, s64"]
        return va + [r]
    def arena_consts(self):
        NREP = self.o.get("nrep", 4)
        r = [f"s_mul_i32 s{sAR}, s{sR}, {ASTR}\ns_add_u32 s{sAR}, s{sAR}, {ARENA}",
             f"s_lshr_b32 s{sB}, s{sW}, 1\ns_mul_i32 s{sA}, s{sB}, {ASTR}\ns_add_u32 s{sA}, s{sA}, s{sAR}",
             f"s_sub_u32 s{sA}, s{sA}, {2*ASTR}",
             f"s_mul_i32 s{sXB}, s{sW}, {80*KB}\ns_add_u32 s{sXB}, s{sXB}, s{sAR}",
             f"s_lshl_b32 s{sC}, s{sJ}, 14\ns_and_b32 s{sD}, s{sJ}, 3\ns_lshl_b32 s{sD}, s{sD}, 10\ns_add_u32 s{sC}, s{sC}, s{sD}\ns_lshl_b32 s{sHme}, s{sW}, 18\ns_add_u32 s{sHme}, s{sHme}, s{sC}",
             f"s_add_u32 s{sHme}, s{sHme}, s{sAR}\ns_and_b32 s{sD}, s{sW}, 1\ns_lshl_b32 s{sHAL}, s{sD}, 19",
             f"s_add_u32 s{sHAL}, s{sHAL}, s{sC}\ns_add_u32 s{sHAL}, s{sHAL}, s{sA}\ns_add_u32 s{sHAL}, s{sHAL}, {A_KV1}\ns_lshl_b32 s{sC}, s{sJ}, 1",
             f"s_add_u32 s{sKC}, s{sC}, s{sD}\ns_lshl_b32 s{sKC}, s{sKC}, 7\ns_add_u32 s{sKC}, s{sKC}, s{sA}",
             f"s_add_u32 s{sKC}, s{sKC}, {A_KVF}\ns_add_u32 s{sKP}, s{sC}, s{sB}\ns_lshl_b32 s{sKP}, s{sKP}, 7",
             f"s_add_u32 s{sKP}, s{sKP}, s{sAR}\ns_add_u32 s{sKP}, s{sKP}, {A_KVF}\ns_add_u32 s{sKVme}, s{sKP}, 32",
             f"s_add_u32 s{sC}, s{sR}, s{sB}\ns_mov_b32 s{sHAL+1}, {256*KB}\ns_cmp_lt_u32 s{sC}, 2\ns_cselect_b32 s{sHAL}, s{sWQ}, s{sHAL}\n"
             f"s_cselect_b32 s{sHAL+1}, {5*KB}, s{sHAL+1}\ns_cselect_b32 s{sKVme}, s{sKVme}, s{sKC}\ns_cselect_b32 s{sKC}, s{sKP}, s{sKC}\ns_cselect_b32 s{sKT}, 0, 2",
             f"s_lshr_b32 s{sD}, s{sJ}, 2\ns_lshl_b32 s{sOme}, s{sD}, 14\ns_add_u32 s{sOme}, s{sOme}, s{sXB}",
             f"s_add_u32 s{sA}, s{sAR}, {A_CNT}\ns_lshl_b32 s{sC}, s{sB}, 2\ns_add_u32 s{sC}, s{sC}, s{sD}",
             f"s_lshl_b32 s{sC}, s{sC}, 7\ns_add_u32 s{sTP}, s{sA}, s{sC}\ns_lshl_b32 s{sC}, s{sTH}, 2",
             f"s_add_u32 s{sC}, s{sC}, s{sW}\ns_lshl_b32 s{sC}, s{sC}, 7\ns_add_u32 s{sTC}, s{sA}, s{sC}",
             f"s_and_b32 s{sD}, s{sNB}, {NREP-1}\ns_lshl_b32 s{sD}, s{sD}, 10",
             f"s_add_u32 s{sA}, s{sA}, {32*128}\ns_lshl_b32 s{sC}, s{sTH}, 1\ns_add_u32 s{sC}, s{sC}, s{sB}",
             f"s_lshl_b32 s{sC}, s{sC}, 7\ns_add_u32 s{sWP}, s{sA}, s{sC}\ns_lshl_b32 s{sC}, s{sW}, 7",
             f"s_add_u32 s{sWC}, s{sA}, s{sC}\ns_add_u32 s{sWC}, s{sWC}, s{sD}"]
        for i in range(4):
            r += [f"s_add_u32 s{sA}, s{sW}, {1+i}\ns_bfe_u32 s{sB}, s{sA}, 0x10001\ns_and_b32 s{sC}, s{sA}, 1",
                  f"s_lshl_b32 s{sC}, s{sC}, 8\ns_add_u32 s{sC}, s{sC}, s{sAR}\ns_lshl_b32 s{sD}, s{sTH}, 1",
                  f"s_add_u32 s{sB}, s{sB}, s{sD}\ns_mul_i32 s{sT16+i}, s{sB}, {80*KB}\ns_add_u32 s{sT16+i}, s{sT16+i}, s{sC}",
                  f"s_lshl_b32 s{sB}, s{sB}, 2\ns_add_u32 s{sB}, s{sB}, s{sW}\ns_lshl_b32 s{sB}, s{sB}, 16\ns_add_u32 s{sT16H+i}, s{sB}, s{sC}"]
        return r
    def tile_addrs(self, d, t):
        r = []
        for i in range(3):
            r += [f"v_add_u32 v{t}, {64*i}, v0", f"v_mul_u32_u24 v{t+1}, 6554, v{t}", f"v_lshrrev_b32 v{t+1}, 16, v{t+1}",
                  f"v_mul_u32_u24 v{t+1}, {1280 - 160}, v{t+1}", f"v_lshl_add_u32 v{d+i}, v{t}, 4, v{t+1}"]
        return r + [f"v_lshrrev_b32 v{t}, 5, v0", f"v_lshl_add_u32 v{d+2}, v{t}, 28, v{d+2}"]
    def stat_loads(self, idx, t):
        return [(f"s_and_b32 s{sC}, s{sTC}, 0xffffe000\ns_add_u32 s{sC}, s{sC}, {(A_ST - A_CNT + idx*16*KB) & 0xffffffff}\n" if q == 0 else "") +
                f"buffer_load_dwordx2 {v(t+2*q,2)}, v{vST}, {s(WS,4)}, s{sC} offen offset:{1024*q} sc1" for q in range(4)]
    def stat_ops(self, t):
        return [f"v_add_f32 v{t}, v{t}, v{t+2}", f"v_add_f32 v{t+1}, v{t+1}, v{t+3}", f"v_add_f32 v{t+4}, v{t+4}, v{t+6}", f"v_add_f32 v{t+5}, v{t+5}, v{t+7}",
              f"v_add_f32 v{t}, v{t}, v{t+4}", f"v_add_f32 v{t+1}, v{t+1}, v{t+5}", f"v_mov_b32 v{t+2}, v{t}", f"v_mov_b32 v{t+3}, v{t+1}",
              f"v_permlane32_swap_b32 v{t+2}, v{t}", f"v_permlane32_swap_b32 v{t+3}, v{t+1}",
              f"v_add_f32 v{t}, v{t}, v{t+2}", f"v_add_f32 v{t+1}, v{t+1}, v{t+3}",
              f"v_fma_f32 v{t}, v{t+1}, 0, v{t}",
              f"v_mul_f32 v{t}, {f2u(-1/640)}, v{t}", f"v_mul_f32 v{t+1}, {f2u(1/640)}, v{t+1}",
              f"v_fma_f32 v{t+1}, -v{t}, v{t}, v{t+1}", f"v_cvt_pk_bf16_f32 v{vNM}, v{t}, v{t}", f"v_max_f32 v{t+1}, 0, v{t+1}",
              f"v_mov_b32 v{vNM+1}, v{vNM}", f"v_add_f32 v{vIV}, {f2u(EPS)}, v{t+1}", f"v_mov_b32 v{vNM+2}, v{vNM}",
              f"v_rsq_f32 v{vRSTD}, v{vIV}", f"v_mov_b32 v{vNM+3}, v{vNM}"]
    def cs_loads(self, base, stride, ntile, dst):
        g = []
        for t in range(ntile):
            p = ""
            if t == 0: p = f"s_mul_i32 s{sD}, s{sJ}, {stride}\ns_add_u32 s{sD}, s{sD}, {base}\n"
            if t == 4: p = f"s_add_u32 s{sD}, s{sD}, 4096\n"
            g.append(p + f"buffer_load_dwordx4 {R(dst+4*t,4)}, v{vL16}, {s(WS,4)}, s{sD} offen offset:{1024*(t%4)} sc1")
        return g
    def xloads(self, base):
        g = []
        for ks in range(40):
            t = f"s_add_u32 s{sE_}, s{sXB}, {base + 16*KB*(ks >> 3) + 1024*(ks & 4)}\n" if ks % 4 == 0 else ""
            g.append(t + f"buffer_load_dwordx4 {a(self.xr(ks),4)}, v{vL16}, {s(WS,4)}, s{sE_} offen offset:{1024*(ks%4)} sc1")
        return g
    def xloads16(self, base):
        xl = []
        for k in range(40):
            t = f"s_add_u32 s{sE_}, s{sXB}, {base + 16*KB*(k >> 3) + 1024*(k & 4)}\n" if k % 4 == 0 else ""
            xl.append(t + f"buffer_load_dwordx4 {a(self.xr(k),4)}, v{vU}, {s(WS,4)}, s{sE_} offen offset:{2048*(k & 1) + 128*(k & 2)} sc1")
        return xl
    def stat16(self, idx, T, AD):
        stl = [(f"s_and_b32 s{sC}, s{sTC}, 0xffffe000\ns_add_u32 s{sC}, s{sC}, {(A_ST - A_CNT + idx*16*KB) & 0xffffffff}\n" if q == 0 else "") +
               f"buffer_load_dwordx2 {v(T+2*q,2)}, v{AD}, {s(WS,4)}, s{sC} offen offset:{1024*(q & 1) + 64*(q & 2)} sc1" for q in range(4)]
        sta = [f"v_lshrrev_b32 v{AD}, 4, v0", f"v_lshlrev_b32 v{AD}, 11, v{AD}", f"v_and_b32 v{AD+1}, 15, v0", f"v_lshl_add_u32 v{AD}, v{AD+1}, 3, v{AD}",
               f"v_lshl_add_u32 v{AD}, s{sW}, 8, v{AD}"]
        so = [f"v_add_f32 v{T+e}, v{T+e}, v{T+e+2}" for e in (0, 1, 4, 5)]
        for sw in ("v_permlane32_swap_b32", "v_permlane16_swap_b32"):
            so += [f"v_mov_b32 v{T+e+2}, v{T+e}" for e in (0, 1, 4, 5)] + [f"{sw} v{T+e+2}, v{T+e}" for e in (0, 1, 4, 5)]
            so += [f"v_add_f32 v{T+e}, v{T+e}, v{T+e+2}" for e in (0, 1, 4, 5)]
        return sta, stl, so
    def xstart(self, xl, base):
        n = self.o.get("xt", 2)
        for g in xl[:n]: self.E(g)
        for k in range(2): self.touch(sXB, sHX, base + 8 * KB + 16 * KB * k)()
        for g in xl[n:NX0]: self.E(g)
        if base == self.xt(2) and self.o.get("cstW", 3) == 3: self.idle_consts()
        self.window(7 if base == self.xt(2) else 8)
    def horder(self, b):
        ch = self.o.get('ch5', 2)
        return [(s0 + k, i) for s0 in range(b, b + 4, ch) for i in range(4) for k in range(ch)]
    def xt(self, i): return A_X[i] or 0
    def fine(self, tag, sl):
        st = self.o.get("fine_" + tag, 0)
        if st and sl and sl % st == 0: self.stamp(f"{tag}@{sl}")
    def wstream(self, items, pos0, allw, ring, ev=None, valu=None, pre=None, budget=32, tag=""):
        E = self.E; LA = 6
        ev = ev or {}; valu = list(valu or []); pre = pre or {}
        f = pos0; over = 0; defer = []
        for sl, it in enumerate(items):
            self.fine(tag, sl)
            for g in pre.get(sl, []): self.do(g)
            if it[0] == "cs":
                assert not any(isinstance(x, str) and f"v{vNM+3}," in x for _, x in valu), "stats not ready"
                E(f"v_mfma_f32_32x32x16_bf16 {v(it[1],16)}, {R(it[2],4)}, {v(vNM,4)}, {v(it[1],16)}")
                c0 = E.cost - 8
            else:
                acc, ks, first = it
                if f % 2 == 0: E.need(regs(R(ring + 4 * (f % LA), 4)) | regs(R(ring + 4 * ((f + 1) % LA), 4)) | regs(a(self.xr(ks), 4)))
                E(f"v_mfma_f32_32x32x16_bf16 {v(acc,16)}, {R(ring+4*(f%LA),4)}, {a(self.xr(ks),4)}, {'0' if first else v(acc,16)}")
                c0 = E.cost - 8
                if f + LA < len(allw): E(self.wread(ring + 4 * (f % LA), allw[f + LA]))
                f += 1
            for g in ev.get(sl, []): self.do(g)
            if defer and self.o.get("verbose") == 1: print("   ", tag, "deferred op at slot", sl)
            if defer: self.do(defer.pop(0))
            lim = budget - (4 if f % 2 == 0 else 0)
            while valu and valu[0][0] <= sl:
                x = valu[0][1]
                if isinstance(x, list): defer += x; valu.pop(0); continue
                c = sum(8 if y.startswith(TRANS) else 4 for y in x.split("\n"))
                if E.cost - c0 + c > lim and not (c > 16 and E.cost - c0 <= 12): break
                valu.pop(0); E(x)
            over += max(0, E.cost - c0 - lim)
        if self.o.get("verbose"): print(tag, "over budget", over, "left valu", len(valu))
        valu += [(0, defer)]
        assert max(list(ev) + list(pre) + [0]) < len(items), (max(list(ev) + list(pre)), len(items))
        for _, x in valu:
            for y in (x if isinstance(x, list) else [x]): self.do(y)
    def wstream16(self, segs, pos0, allw, ring, ev=None, valu=None, pre=None, budget=16, vend=84, tag="", xchk=True):
        E = self.E
        ev = ev or {}; valu = list(valu or []); pre = pre or {}
        cost = lambda x: sum(8 if y.startswith(TRANS) else 4 for y in x.split("\n") if y[0] != "@")
        q = []; over = 0; items = []; f0 = pos0
        for acc, cs in segs:
            for sp in range(10):
                for n in range(2 * len(acc)):
                    items += [(acc, f0, sp, n, 0), (acc, f0, sp, n, 1)]; f0 += 2
            items += [(acc, None, cs, n, 0) for n in range(2 * len(acc))]
        assert len(items) == 84
        for sl, (acc, fb, sp, n, t) in enumerate(items):
            self.fine(tag, sl)
            for g in pre.get(sl, []): self.do(g)
            for g in ev.get(sl, []): q += self.flat(g)
            for hf in range(2):
                rd = None
                if fb is not None:
                    f = fb + hf; w = ring + 4 * (f % 6); d = acc[n >> 1] + 8 * t + 4 * (n & 1)
                    xr = self.xr(4 * sp + 2 * t + hf)
                    if hf == 0:
                        nd = regs(a(xr, 4)) | regs(a(self.xr(4 * sp + 2 * t + 1), 4))
                        if t == 0: nd |= regs(v(w, 4)) | regs(v(ring + 4 * ((f + 1) % 6), 4))
                        E.need(nd)
                    assert not xchk or n or t or hf or any(x.startswith(f"buffer_load_dwordx4 {a(self.xr(4 * sp + 3), 4)},") for x in E.out[self.x0:])
                    E(f"v_mfma_f32_16x16x32_bf16 {v(d,4)}, {v(w,4)}, {a(xr,4)}, {'0' if sp == 0 and hf == 0 else v(d,4)}")
                    if t == 1 and f + 6 < len(allw): rd = self.wread(w, allw[f + 6])
                else:
                    assert not any(isinstance(x, str) and f"v{vNM+3}," in x for _, x in valu), "stats not ready"
                    d = acc[n >> 1] + 8 * hf + 4 * (n & 1)
                    E(f"v_mfma_f32_16x16x16_bf16 {v(d,4)}, {v(sp+2*n,2)}, {v(vNM+2*hf,2)}, {v(d,4)}")
                c0 = E.cost - 8
                if rd: E(rd)
                while q and (E.cost - c0 <= 8 or (len(q) > 4 and E.cost - c0 <= 12)):
                    self.do(q.pop(0))
                lim = (budget(sl) if callable(budget) else budget) - (4 if sl % 2 == 1 and hf == 1 else 0)
                left = sum(cost(x) for _, x in valu if isinstance(x, str)); gaps = max(1, 2 * (vend - sl) - hf)
                mind = left - (gaps - 1) * self.vrate if valu and valu[0][0] <= sl else 0
                done = 0
                while valu and valu[0][0] <= sl:
                    x = valu[0][1]
                    if isinstance(x, list):
                        for y in x: q += self.flat(y)
                        valu.pop(0); continue
                    c = cost(x)
                    if E.cost - c0 + c > lim and done >= mind and not (c > 8 and E.cost - c0 <= 8): break
                    valu.pop(0); E(x); done += c
                over += max(0, E.cost - c0 - lim)
        if self.o.get("verbose"): print(tag, "over budget", over, "left valu", len(valu), "left q", len(q))
        assert max(list(ev) + list(pre) + [0]) < 84
        for _, x in valu:
            for y in (x if isinstance(x, list) else [x]): self.do(y)
        for y in q: self.do(y)
    @staticmethod
    def pair_items(acc, cs):
        return [(acc[sl & 1], sl >> 1, sl < 2) for sl in range(80)] + [("cs", acc[0], cs), ("cs", acc[1], cs + 4)]
    def att_consts(self):
        MK, VAD = 188, [196, 205]
        t0, t1, t2 = 216, 217, 218
        cst = []
        for i in range(8):
            cst += [f"v_cndmask_b32 v{t0}, 0, -1, {s(sMASK+4*i,2)}", f"v_cndmask_b32 v{t1}, 0, -1, {s(sMASK+4*i+2,2)}",
                    f"v_and_b32 v{t0}, 0xffff, v{t0}", f"v_lshl_or_b32 v{MK+i}, v{t1}, 16, v{t0}"]
        cst += [f"v_lshrrev_b32 v{t0}, 5, v0", f"v_bfe_u32 v{t1}, v0, 2, 2", f"v_lshl_add_u32 v{t0}, v{t0}, 2, v{t1}",
                f"v_bfe_u32 v{t1}, v0, 4, 1", f"v_and_b32 v{t2}, 3, v0", f"v_lshl_add_u32 v{t1}, v{t1}, 2, v{t2}",
                f"v_and_b32 v{t2}, 1, v0", f"v_lshlrev_b32 v219, 2, v{t2}", f"v_xor_b32 v219, v219, v{t0}", f"v_lshlrev_b32 v219, 4, v219",
                f"v_lshl_add_u32 v219, v{t2}, 9, v219", f"v_bfe_u32 v220, v0, 1, 1", f"v_lshl_add_u32 v220, v220, 3, v219", f"v_add_u32 v221, {4096+128+8}, v219",
                f"v_mov_b32 v224, 128", f"v_mov_b32 v225, {SLOT}", f"v_subrev_u32 v226, v{vPOS}, v{vKR}"]
        cst += [f"s_lshl_b32 s{sC}, s{sW}, 7\ns_add_u32 s{sC}, s{sC}, {ONES+128}\nv_mov_b32 v227, s{sC}"]
        for hd in range(2):
            cst += [f"v_add_u32 v222, {2048+1024*hd}, v220", f"v_cmp_gt_u32 vcc, 4, v{t1}\nv_cndmask_b32 v222, v221, v222, vcc", f"v_add_u32 v222, v226, v222",
                    f"v_cmp_gt_u32 {s(sC,2)}, 4, v{t1}\nv_cmp_eq_u32 vcc, {4+hd}, v{t1}\ns_or_b64 vcc, vcc, {s(sC,2)}\nv_cndmask_b32 v{VAD[hd]}, v227, v222, vcc\nv_cndmask_b32 v223, v224, v225, vcc"]
            cst += [f"v_add_u32 v{VAD[hd]+i}, v{VAD[hd]+i-1}, v223" for i in range(1, 9)]
        cst = [f"v_mov_b32 v{228+i}, 0x3f803f80" for i in range(4)] + cst
        return cst
    def p1(self, L):
        E = self.E; o = self.o
        ACC = [48, 64, 80, 96]; RING = 112; CS = 136
        KA, KB_, KV1, VA, VB = 152, 156, 160, 164, 168
        QA0, QB0, QA1, QB1 = 172, 176, 180, 184
        self.Q = (QA0, QB0, QA1, QB1)
        MK = self.MK = 188; VAD = self.VAD = [196, 205]; K1 = self.K1 = AG
        self.WOF = [AG + 160 + 4 * f for f in range(24)] + [244]
        self.xr = lambda ks: 4 * ks
        q16 = o.get("q16", 1); qs = 20 ** -0.5 * math.log2(math.e)
        xl = self.xloads16(self.xt(2 * L)) if q16 else self.xloads(self.xt(2 * L))
        self.x0 = len(E.out); self.vrate = o.get("vrate", 6)
        allw = [1024 * f for f in range(80)] + [1024 * f for f in range(80, 160)]
        tok = []
        if L == 0:
            dm = [self.dma4(sWQ, 16 * KB * c, 16 * KB * c, tok) for c in range(10)]
            wdm = list(dm)
            self.x_bounce(152, wdm)
            c0 = 10 - len(wdm)
            assert o.get("f1chk", 8) >= 7
            assert c0 <= 4
            self.window(9)
            if o.get("s2when", 2): E.wait(vm=self.S.tok2); E("s_barrier")
            s2cs, s2st, s2last = self.s2r or self.S.s2_read()
            self.stamp("st S2 read")
            late = sum(dm[2:], [])
        else:
            E.wait(vm=self.wq_tok[1]); E("s_barrier")
            for f in range(6): E(self.wread(RING + 4 * f, allw[f]))
            self.poll_block(sWC, 512 + 4 * (L - 1), 16)
            self.stamp("L1 P1 synced")
            self.xstart(xl, self.xt(2 * L))
            resops = []; late = self.wq_late; tok = self.wq_tok
        def ready(c): return lambda: (E.wait(vm=tok[c]), E("s_barrier"))
        if L == 0:
            ready(0)()
            for f in range(6): E(self.wread(RING + 4 * f, allw[f]))
        cst = self.att_consts() if not (L and o.get("cstW", 3)) else []
        ev = {}; pre = {}
        so = self.stat_ops(152); stl = self.stat_loads(2, 152); sta = []; adr = []; skip = 6
        if q16:
            T = 152; RS = [vRSTD, vC1]; S2 = [vC2, vIV]; S3 = [214, 215]; skip = 4
            sta, stl, so = self.stat16(2, T, 160); so2 = []
            for t in range(2):
                b_ = T + 4 * t
                so += [f"v_mul_f32 v{b_}, {f2u(-1/640)}, v{b_}", f"v_cvt_pk_bf16_f32 v{vNM+2*t}, v{b_}, v{b_}", f"v_cvt_pk_bf16_f32 v{vNM+2*t+1}, v{b_}, v{b_}"]
                so2 += [f"v_mul_f32 v{b_+1}, {f2u(1/640)}, v{b_+1}", f"v_fma_f32 v{b_+1}, -v{b_}, v{b_}, v{b_+1}", f"v_max_f32 v{b_+1}, 0, v{b_+1}",
                        f"v_add_f32 v{b_+1}, {f2u(EPS)}, v{b_+1}", f"v_rsq_f32 v{RS[t]}, v{b_+1}"]
            so += so2
            gA0, gA1, gB, lA0, lA1, lB, lQ, vQR = range(232, 240)
            adr = [f"v_bfe_u32 v{lQ}, v0, 4, 1", f"v_and_b32 v{gB}, 15, v0", f"v_lshlrev_b32 v{lB}, 2, v{lQ}", f"v_xor_b32 v{gB}, v{gB}, v{lB}", f"v_lshlrev_b32 v{gB}, 4, v{gB}",
                   f"v_lshl_add_u32 v{gB}, v{lQ}, 9, v{gB}", f"v_lshrrev_b32 v{vQR}, 5, v0", f"v_lshl_add_u32 v{gA0}, v{vQR}, 10, v{gB}", f"v_lshl_add_u32 v{gA1}, v{vQR}, 11, v{gB}",
                   f"v_sub_u32 v{lB}, v{vKR}, v{vPOS}", f"v_add_u32 v{lB}, {8*SLOT}, v{lB}", f"v_add_u32 v{lA0}, v{lB}, v{gA0}", f"v_add_u32 v{lA1}, v{lB}, v{gA1}",
                   f"v_lshl_add_u32 v{lA1}, v{vQR}, 7, v{lA1}", f"v_add_u32 v{lQ}, s{sLW}, v{gA0}", f"v_add_u32 v{lQ}, {65*KB}, v{lQ}",
                   f"v_add_u32 v{lB}, 3072, v{lA0}", f"v_lshl_add_u32 v{gB}, v{vQR}, 28, v{gB}", f"v_subrev_u32 v{vQR}, 2048, v{lQ}",
                   f"s_mov_b32 vcc_lo, -1\ns_mov_b32 vcc_hi, 0\nv_cndmask_b32 v{lB}, v{vQR}, v{lB}, vcc", f"v_add_u32 v{vQR}, s{sLW}, v{vPOS}", f"v_add_u32 v{vQR}, {64*KB}, v{vQR}"]
        if L == 0:
            for c in range(1, 5): pre[16 * c - 6] = [ready(c)]
            nA = o.get("lateA", 9)
            seq = []
            for c in range(c0, nA):
                seq += dm[c]
                if c == 4: seq += self.cs_loads(CSQ, 4 * KB, 4, CS)
            spread(ev, seq, 0, o.get("lateS", 26) / 10)
            spread(ev, s2st, o.get("s2s0", 0), o.get("s2sS", 10) / 10)
            cA = o.get("cstA", 0)
            spread(ev, self.masks(), *((1, 0.5) if cA else (31, 3)))
            lateB = sum(dm[nA:], [])
            if o.get("vpos", 13) < 100: ev.setdefault(o.get("vpos", 13), []).append(f"buffer_load_dword v175, v174, {s(WS,4)}, 0 offen sc1")
            so = [(1, x) for x in so[skip:] + s2cs] + [(1, [s2last])]
            if cA:
                assert o.get("csdot") and cA > o.get("s2s0", 0) + o.get("s2sS", 10) + 8
                cst = [x.replace(s(sC, 2), "s[64:65]") for x in cst]
                so += [(cA, x) for x in cst]; cst = []
            so += [(50, x) for x in self.arena_fix(175)]
            assert o.get("s2s0", 0) + o.get("s2sS", 10) < 58
            so += [(62, x) for x in adr]
        else:
            pre[26] = [ready(len(tok) - 1)]
            assert len(tok) >= 7
            spread(ev, xl[NX0:] , 0, o.get('xS', 20) / 10)
            if o.get("early", 0): ev.setdefault(11, []).append(self.statsig)
            spread(ev, stl, 27 if q16 else 39, 2)
            spread(ev, late, o.get('lt0', 60), (81.9 - o.get('lt0', 60)) / max(len(late), 1))
            so = [(4, x) for x in sta + adr] + [(54 if q16 else 66, x) for x in so]
        if L: spread(ev, [self.touch(sWO, sH8, 16 * KB * k) for k in range(2)], 61, 14)
        if L == 0: pre[74] = [ready(5)]
        self.nA0 = min(len(E.out), getattr(self, "nC0", 1 << 30))
        if q16: self.wstream16([(ACC[:2], CS)], 0, allw, RING, ev, so, pre, tag=f"A{L}", xchk=L > 0)
        else: self.wstream(self.pair_items(ACC[:2], CS), 0, allw, RING, ev, so, pre, tag=f"A{L}")
        self.stamp(f"L{L} P1 passA")
        def epi(G0, G1, dst, sc, at):
            r = []
            for G in range(G0, G1):
                b = ACC[0] + 4 * G
                r += [(at, f"v_mul_f32 v{b+i}, v{sc[G-G0]}, v{b+i}") for i in range(4)]
                r += [(at, f"v_cvt_pk_bf16_f32 v{dst[G-G0]+i}, v{b+2*i}, v{b+2*i+1}") for i in range(2)]
            return r
        kvg = A_KV1
        sKVme = sHme
        st = {}
        vKW = 214; vQS = 215
        stA = [f"buffer_store_dwordx4 {v(reg,4)}, v{vPOS}, {s(WS,4)}, s{sA} offen offset:{off} sc1" for reg, off in ((KA, 0), (KB_, 1024), (VA, 2048))]
        stA[0] = f"s_add_u32 s{sA}, s{sKVme}, {kvg}\ns_add_u32 s{sB}, s{sA}, 4096\n" + stA[0]
        stA.append(lambda: st.__setitem__("A", E(f"buffer_store_dwordx4 {v(KV1,4)}, v{vPOS}, {s(WS,4)}, s{sB} offen sc1")))
        ldsA = [f"ds_write_b128 v{vKW}, {v(reg,4)} offset:{off}" for reg, off in ((KA, 0), (KB_, 1024), (VA, 2048), (KV1, 4096 + 128))]
        putB = [lambda: st.__setitem__("B", E(f"s_add_u32 s{sA}, s{sKVme}, {kvg}\nbuffer_store_dwordx4 {v(VB,4)}, v{vPOS}, {s(WS,4)}, s{sA} offen offset:3072 sc1")),
                f"ds_write_b128 v{vKW}, {v(VB,4)} offset:3072"]
        qs = 20 ** -0.5 * math.log2(math.e)
        va = epi(0, 8, [KA, KA + 2, KV1, KB_, KB_ + 2, VA, VA + 2, KV1 + 2], [vRSTD] * 8, 1)
        for k, G in reversed(list(enumerate((1, 4, 6, 7)))): va.insert(6 * (G + 1), (1, [stA[k]]))
        va = [(0, f"v_add_u32 v{vKW}, {8*SLOT}, v{vKR}"), (0, f"v_mul_f32 v{vQS}, {f2u(qs)}, v{vRSTD}")] + va
        nB0 = len(E.out)
        def after(x, need):
            def fn():
                assert any(y.startswith(need) for y in E.out[self.nA0:]), need
                E(x)
            return fn
        ldsA = [after(x, f"v_cvt_pk_bf16_f32 v{r_+3},") for x, r_ in zip(ldsA, (KA, KB_, VA, KV1))]
        n1 = o.get("cst1", 50); dead = 52
        if q16:
            dead = 55; KA, KB_, KV1 = 64, 68, 72
            U = [[152, 156], [160, 164], [48, 52], [56, 60]]
            def epi16(P, t, sc, at):
                b = ACC[P] + 8 * t
                return [(at, f"v_mul_f32 v{b+i}, v{sc}, v{b+i}") for i in range(8)] + [(at, f"v_cvt_pk_bf16_f32 v{U[P][t]+i}, v{b+2*i}, v{b+2*i+1}") for i in range(4)]
            gst = lambda P, t: f"buffer_store_dwordx4 {v(U[P][t],4)}, v{(gA0, gA1, gB)[P]}, {s(WS,4)}, s{sA} offen offset:{(0, 2048, 3072)[P] + 256*t} sc1"
            va = [(0, [f"s_add_u32 s{sA}, s{sKVme}, {kvg}"])]
            for P in range(2):
                for t in range(2):
                    va += epi16(P, t, RS[t], 1) + [(1, [gst(P, t) if (P, t) != (1, 1) else (lambda: st.__setitem__("A", E(gst(1, 1))))])]
            va += [(1, f"v_mul_f32 v{S3[t]}, {f2u(qs)}, v{RS[t]}") for t in range(2)]
            va += [(1, f"s_mov_b32 vcc_lo, -1\ns_mov_b32 vcc_hi, 0\nv_cndmask_b32 v{S2[0]}, v{S3[0]}, v{RS[0]}, vcc\nv_cndmask_b32 v{S2[1]}, v{S3[1]}, v{RS[1]}, vcc")]
            ldsA = [after(f"ds_write_b128 v{(lA0, lA1)[P]}, {v(U[P][t],4)} offset:{2048*P + 256*t}", f"v_cvt_pk_bf16_f32 v{U[P][t]+3},") for P in range(2) for t in range(2)]
        va += [(1, x) for x in cst[:n1]]
        if q16:
            va += epi16(2, 0, S2[0], 44) + [(44, [f"s_add_u32 s{sA}, s{sKVme}, {kvg}\n" + gst(2, 0), f"ds_write_b128 v{lB}, {v(U[2][0],4)}"])]
            va += epi16(2, 1, S2[1], 44) + [(44, [lambda: st.__setitem__("B", E(gst(2, 1))), f"ds_write_b128 v{lB}, {v(U[2][1],4)} offset:256",
                   f"ds_read_b128 {v(QA0,4)}, v{vQR}", f"ds_read_b128 {v(KA,4)}, v{vKR} offset:{8*SLOT}", f"ds_read_b128 {v(KB_,4)}, v{vKR} offset:{8*SLOT+1024}",
                   f"ds_read_b64 {v(KV1,2)}, v{vKR} offset:{8*SLOT+4096+128}"])]
        else: va += epi(8, 10, [VB, VB + 2], [vRSTD] * 2, 43) + [(43, putB)] + epi(10, 12, [QA0, QA0 + 2], [vQS] * 2, 43)
        va += [(43, x) for x in cst[n1:]]
        for i in range(9):
            va += [(dead, f"v_accvgpr_write_b32 {R(K1+4*i+2)}, s{sFL+i}"), (dead, f"v_accvgpr_write_b32 {R(K1+4*i+3)}, 0")]
        va += [(52, f"v_mov_b32 v{q+3}, 0") for q in (QA1, QB1)] + [(52, f"v_mov_b32 v{164+i}, -1") for i in range(4)]
        items = [(ACC[2], k, k == 0) for k in range(40)] + [("cs", ACC[2], CS + 8)] + [(ACC[3], k, k == 0) for k in range(40)] + [("cs", ACC[3], CS + 12)]
        ev = {}; pre = {}
        if L == 0:
            pre[10] = [ready(6)]
            endA = E.vm_n
            pre[26] = [lambda: E.wait(vm=endA), ready(7), lambda: st["A"], self.S.flag2]
            pre[43] = [ready(9)]
            spread(ev, lateB, 0, 2.5)
        else:
            if o.get("early", 0):
                pre[2] = [self.nan_net(ACC[0], xl, self.pair_items(ACC[:2], CS) + items[:2], allw, RING, 512, self.stat_loads(2, 152) + self.stat_ops(152))]
                va = [(max(2, sl), x) for sl, x in va]
            pre[26] = [ready(9)]
        spread(ev, ldsA + [after(f"ds_write_b128 v{vL16}, v[228:231] offset:{ONES + k}", "v_mov_b32 v231, 0x3f80") for k in (0, 1024)], 26, 2)
        wo = []
        for f in range(25):
            t = f"s_add_u32 s{sT0+1}, s{sWO}, {1024*f}\n" if f % 4 == 0 else ""
            wo.append(t + f"buffer_load_dwordx4 {R(self.WOF[f],4)}, v{vL16}, {s(WS,4)}, s{sT0+1} offen offset:{1024*(f%4)} sc1")
        if L == 0:
            pass
        nwo = o.get("wob", 14)
        if L == 0:
            nwo = 0
        else:
            spread(ev, wo[:nwo], o.get('wo0', 13), (o.get('wo1', 57) - o.get('wo0', 13)) / nwo)
        self.wo_late = wo[nwo:]
        spread(ev, [self.touch(sWGU, sH16, 32 * KB * k) for k in range(2)], 40, 16)
        sa, pa, ca, sb = o.get("sa", 34), o.get("pa", 50), o.get("ca", 70), o.get("sb", 79)
        if L == 0: sa, pa, ca = o.get("sa0", sa), o.get("pa0", pa), o.get("ca0", ca)
        ev.setdefault(sa, []).append(self.signal(sKP, 8 * L, lambda: st["A"]))
        ev.setdefault(pa, []).append(self.poll_issue(sKC, 8 * L))
        pre.setdefault(ca, []).append(self.poll_check(sKC, 8 * L, f"s{sKT}"))
        hal = []; self.haltok = []
        for t in range(2):
            p = f"s_mul_i32 s{sB}, s{sW}, {2*SLOT}\n" if t == 0 else ""
            hal.append(p + f"s_add_u32 m0, s{sB}, {t*SLOT}\ns_add_u32 s{sE_}, s{sHAL}, {s(sHAL+1) if t else 0}\nbuffer_load_dwordx4 v{vL16}, {s(WS,4)}, s{sE_} offen sc1 lds")
            hal += [f"buffer_load_dwordx4 v{vL16}, {s(WS,4)}, s{sE_} offen offset:{1024*i} sc1 lds" for i in (1, 2)]
            hal.append(f"s_add_u32 m0, s{sB}, {t*SLOT+4096+128}\ns_add_u32 s{sE_}, s{sE_}, 4096\nbuffer_load_dwordx4 v{vL16}, {s(WS,4)}, s{sE_} offen sc1 lds")
        lasth = hal[-1]; hal[-1] = lambda: self.haltok.append(E(lasth))
        assert ca > 44
        spread(ev, hal, ca, o.get("halS", 10) / 10)
        ev.setdefault(sb, []).append(self.signal(sKP, 8 * L + 4, lambda: st["B"]))
        if q16: self.wstream16([([ACC[2]], CS + 8), ([ACC[3]], CS + 12)], 80, allw, RING, ev, va, pre, budget=lambda sl: o.get("bq", 20) if sl < 20 else 16, tag=f"B{L}", xchk=False)
        else: self.wstream(items, 80, allw, RING, ev, va, pre, budget=o.get("budB", 32) if L else o.get("budB0", o.get("budB", 32)), tag=f"B{L}")
        self.stamp(f"L{L} P1 passB")
        if L == 0: E(self.S.vpoll_issue(241, 242))
        if q16:
            for t in range(2):
                b = ACC[3] + 8 * t
                for i in range(0, 8, 2): E(f"v_pk_mul_f32 {v(b+i,2)}, {v(b+i,2)}, {v(S3[0],2)} op_sel:[0,{t}] op_sel_hi:[1,{t}]")
                for i in range(4): E(f"v_cvt_pk_bf16_f32 v{U[3][t]+i}, v{b+2*i}, v{b+2*i+1}")
                E(f"ds_write_b128 v{lQ}, {v(U[3][t],4)} offset:{256*t}")
            E(f"ds_read_b64 {v(QA1,2)}, v{vQR} offset:2048\nds_read_b128 {v(QB0,4)}, v{vQR} offset:1024")
        else:
            for _, x in epi(12, 15, [QA1, QB0, QB0 + 2], [vQS] * 3, 0): E(x)
        E(f"s_mov_b32 vcc_lo, -1\ns_mov_b32 vcc_hi, 0")
        for i in range(2):
            E(f"v_cndmask_b32 v{QB1+i}, v{QA1+i}, v{QA1+3}, vcc")
            E(f"v_cndmask_b32 v{QA1+i}, 0, v{QA1+i}, vcc")
        for k in range(6):
            for hd, (q0, q1, k0) in enumerate(((QA0, QA1, KA), (QB0, QB1, KB_))):
                qa, ka = (q0 + k, k0 + k) if k < 4 else (q1 + k - 4, KV1 + k - 4)
                E(f"v_dot2_f32_bf16 v{216+hd}, v{qa}, v{ka}, {'0' if k == 0 else v(216+hd)}")
        E(f"s_mov_b32 s{sA}, {f2u(-1e38)}")
        for hd, q1 in enumerate((QA1, QB1)): E(f"v_cvt_pk_bf16_f32 v{q1+2}, s{sA}, -v{216+hd}")
    def att_defs(self):
        QA0, QB0, QA1, QB1 = self.Q
        d = self
        d.kread = lambda hd, i, dst: f"ds_read_b128 {R(dst,4)}, v{vKR} offset:{i*SLOT + 1024*hd}"
        d.k1read = lambda i: f"ds_read_b64 {R(self.K1+4*i,2)}, v{vKR} offset:{i*SLOT + 4096 + 128}"
        def smf(hd, i, dst, k0, C="0"):
            q0, q1 = (QA0, QA1) if hd == 0 else (QB0, QB1)
            return [f"v_mfma_f32_32x32x16_bf16 {v(dst,16)}, {R(k0,4)}, {v(q0,4)}, {C}",
                    f"v_mfma_f32_32x32x16_bf16 {v(dst,16)}, {R(self.K1+4*i,4)}, {v(q1,4)}, {v(dst,16)}"]
        d.smf = smf
        d.vreads = lambda hd, i, vf: [f"ds_read_b64_tr_b16 {R(vf+2*k,2)}, v{self.VAD[hd]+i} offset:{128*k}" for k in range(4)]
        def expops(src, p):
            r = []
            for k in range(8):
                r += [f"v_exp_f32 v{src+2*k}, v{src+2*k}", f"v_exp_f32 v{src+2*k+1}, v{src+2*k+1}"]
                if k: r.append(f"v_cvt_pk_bf16_f32 v{p+k-1}, v{src+2*k-2}, v{src+2*k-1}")
            r.append(f"v_cvt_pk_bf16_f32 v{p+7}, v{src+14}, v{src+15}")
            return r
        d.expops = expops
        d.mergeops = lambda dg, old: [f"v_cndmask_b32 v{dg+k}, v{old+k}, v{dg+k}, {s(sMASK+2*k,2)}" for k in range(16)]
        d.splitops = lambda p, pm: [f"v_bfi_b32 v{pm+k}, v{self.MK+k}, 0, v{p+k}" for k in range(8)] + [f"v_and_b32 v{p+k}, v{self.MK+k}, v{p+k}" for k in range(8)]
        d.pv = lambda O, vf, p, first: [f"v_mfma_f32_32x32x16_bf16 {v(O,16)}, {R(vf,4)}, {v(p,4)}, {'0' if first else v(O,16)}",
                                        f"v_mfma_f32_32x32x16_bf16 {v(O,16)}, {R(vf+4,4)}, {v(p+4,4)}, {v(O,16)}"]
    def fallback(self, hd):
        E = Emit(); O = self.O[hd]
        S, SD, NEG, P, PM, MX = 48, 64, 214, 230, 238 - 0, 246
        PM = 152 + 8
        K0 = AG + 136; VF = AG + 140; SP = AG + 104
        E.raw(f"FB{hd}:")
        E("s_waitcnt vmcnt(0) lgkmcnt(0)"); E.settle()
        for k in range(32): E(f"v_accvgpr_write_b32 {R(SP+k)}, v{48+k}")
        E(f"v_mov_b32 v{MX+2}, 0xff7fffff")
        for i in (8, 7, 6, 5, 4, 3, 2, 1, 0):
            E(self.kread(hd, i, K0))
            for x in self.smf(hd, i, SD if i == 8 else S, K0): E(x)
            if i == 8: continue
            src = S
            if i == 0:
                for x in self.mergeops(SD, S): E(x)
                src = SD
            for k in range(8): E(f"v_max3_f32 v{MX+2}, v{src+2*k}, v{src+2*k+1}, v{MX+2}")
        E(f"v_mov_b32 v{MX+3}, v{MX+2}\nv_permlane32_swap_b32 v{MX+3}, v{MX+2}\nv_max_f32 v{MX+2}, v{MX+2}, v{MX+3}")
        for k in range(16): E(f"v_sub_f32 v{NEG+k}, 0, v{MX+2}")
        for k in range(16): E(f"v_add_f32 v{SD+k}, v{NEG}, v{SD+k}")
        for x in self.expops(SD, P) + self.splitops(P, PM): E(x)
        for x in self.vreads(hd, 8, VF) + self.pv(O, VF, P, True): E(x)
        E.settle()
        for x in self.vreads(hd, 0, VF) + self.pv(O, VF, PM, False): E(x)
        for i in range(7, 0, -1):
            E.settle()
            E(self.kread(hd, i, K0))
            for x in self.vreads(hd, i, VF) + self.smf(hd, i, S, K0, v(NEG, 16)) + self.expops(S, P) + self.pv(O, VF, P, False): E(x)
        E.settle()
        for k in range(32): E(f"v_accvgpr_read_b32 v{48+k}, {R(SP+k)}")
        E.settle()
        for f, q in enumerate(EARLY):
            E(f"s_add_u32 s{sF}, s{sWD}, {1024*f}\nbuffer_load_dwordx4 {R(q,4)}, v{vL16}, {s(WS,4)}, s{sF} offen sc1")
        E.drain(); E.settle()
        E(f"s_setpc_b64 {s(sRET,2)}")
        return E.text()
    def p2(self, L):
        E = self.E; o = self.o
        self.att_defs()
        S = [48, 64]; SD = 80; P = [96, 104]; PM = 112; O = self.O = [120, 136]; D = 152; TT = 168
        K0 = [AG + 36, AG + 40, AG + 44]; VF = [AG + 48, AG + 56, AG + 64]
        self.OF = {}
        for st in range(2):
            for i in range(4): self.OF[(st, i)] = AG + 72 + 16 * st + 4 * i
        for st in range(2, 5):
            for i in range(4): self.OF[(st, i)] = (108 + 12 * i if i < 3 else 176) + 4 * (st - 2)
        if L == 0: self.tail += [self.fallback(0), self.fallback(1)]
        obase = self.obase = A_O
        E.wait(vm=self.haltok[0], ds=E.ds_n); E("s_barrier")
        self.stamp(f"L{L} halo in")
        ev = {}; pre = {}
        if L == 0: pre[o.get("f2c", 6)] = [self.S.vpoll_check(241, 242, 4)]
        dm = []
        for c in range(6): dm += self.dma4(sWGU, 16 * KB * c, 64 * KB + 16 * KB * c)
        hb = []
        for t in range(2):
            hb.append(f"s_mul_i32 s{sD}, s{sW}, {2*SLOT}\ns_add_u32 m0, s{sD}, {t*SLOT}\ns_add_u32 s{sE_}, s{sHAL}, {s(sHAL+1) if o.get('ovl', 3) and t else t*5*KB}\nbuffer_load_dwordx4 v{vL16}, {s(WS,4)}, s{sE_} offen offset:3072 sc1 lds")
        lasth = hb[-1]; hb[-1] = lambda: self.haltok.append(E(lasth))
        pb, cb = o.get("pb", 4), o.get("cb", 16)
        nl = len(self.wo_late)
        n1 = min(nl, int((cb - (0 if L else o.get('f2c', 6))) / 2.1))
        spread(ev, self.wo_late[:n1], 0 if L else o.get("f2c", 6), 2.1 if L else 1.8)
        ev.setdefault(pb, []).append(self.poll_issue(sKC, 8 * L + 4))
        pre.setdefault(cb, []).append(self.poll_check(sKC, 8 * L + 4, f"s{sKT}"))
        spread(ev, hb, cb, 1)
        self.pool = Pool(EARLY); self.mk_wdload()
        rest = self.wo_late[n1:] + dm + self.wd(o.get("wd2" if L else "wd20", 7 if L else 0))
        spread(ev, rest, cb + 2, (o.get("bgend", 68) - cb - 2) / len(rest))
        spread(ev, [self.touch(sWGU, sH16, 32 * KB * k) for k in range(2, 5)] + [self.touch(sWD, sH8, 0)], 10, 14)
        spread(ev, [f"s_and_b32 s{sA}, s{sJ}, 3\ns_lshl_b32 s{sB}, s{sA}, 10\ns_add_u32 s{sB}, s{sB}, s{sOme}\ns_add_u32 s{sB}, s{sB}, {obase}\n"
                    f"s_add_u32 s{sC}, s{sB}, 4096\nbuffer_store_dwordx4 v[164:167], v{vL16}, {s(WS,4)}, s{sC} offen sc1",
                    f"s_lshl_b32 s{sA}, s{sJ}, 9\ns_add_u32 s{sA}, s{sA}, s{sXB}\ns_add_u32 s{sA}, s{sA}, {obase + 64*KB}\n"
                    f"buffer_store_dwordx2 v[164:165], v{vO4}, {s(WS,4)}, s{sA} offen sc1"] + self.xpoison(2 * L + 1, 164), min(o.get("poi", 5), 20), 2)
        if o.get("senth", 0) and o.get("poiw", 1) == 0:
            assert o.get("ovl", 3) == 3
            spread(ev, self.hpoison(164, sP), o.get("poih", 20), 2)
        SO = self.SO = [sH8, sH16, sHX, sD]
        self.ol = ol = lambda st, i, va, off: f"buffer_load_dwordx4 {R(self.OF[(st,i)],4)}, v{va}, {s(WS,4)}, s{SO[i]} offen offset:{off} sc1"
        ev.setdefault(45, []).append(f"s_lshl_b32 s{sE_}, s{sW}, 14\ns_add_u32 s{sE_}, s{sE_}, {obase}\n" + "\n".join(f"s_add_u32 s{SO[i]}, s{sE_}, s{sT16+i}" for i in range(4)))
        self.aq = [self.poll_check(sTC, self.T(0, L), 8)] + sum([[ol(0, i, vU, 0), ol(1, i, vU, 2048)] for i in range(4)], [])
        oca = o.get("oca", 99)
        if oca < 70:
            pre.setdefault(oca, []).append(self.aq[0])
            spread(ev, self.aq[1:], oca, (70 - oca) / 8); self.aq = []
        st = {}
        def check(hd):
            def fn():
                Lo, Lb = E.label("FO"), E.label("FR")
                E(f"v_subrev_u32 v{TT}, {hex(63 << 23)}, v{O[hd]+12}\nv_cmp_le_u32 vcc, {hex(128 << 23)}, v{TT}\ns_cbranch_vccnz {Lo}")
                E.place(Lb)
                self.tail.append(f"{Lo}:\ns_call_b64 {s(sRET,2)}, FB{hd}\ns_branch {Lb}")
            return fn
        def norm(hd):
            r = [check(hd), f"v_rcp_f32 v{TT}, v{O[hd]+12}"]
            if hd: r += [f"v_pk_mul_f32 {v(O[hd]+k,2)}, {v(O[hd]+k,2)}, {v(TT,2)} op_sel_hi:[1,0]" for k in range(0, 12, 2)]
            else: r += [f"v_mul_f32 v{O[hd]+k}, v{TT}, v{O[hd]+k}" for k in range(12)]
            r += [f"v_cvt_pk_bf16_f32 v{D+8*hd+k}, v{O[hd]+2*k}, v{O[hd]+2*k+1}" for k in range(6)]
            return r
        def putOA():
            st["a"] = E(f"buffer_store_dwordx4 {v(D,4)}, v{vL16}, {s(WS,4)}, s{sB} offen sc1")
        slot = [0]
        def weave(mf, mems, valu):
            n = len(mf); mems = list(mems); valu = list(valu)
            for k, m in enumerate(mf):
                if o.get("w1", 2) == 2 and k >= 2 and k % 2 == 0 and k + 1 < n: E.need(Ins(m).src | Ins(mf[k + 1]).src)
                self.fine(f"t{L}", slot[0])
                for g in pre.pop(slot[0], []): self.do(g)
                E(m)
                for _ in range(-(-len(mems) // (n - k))): E(mems.pop(0))
                for g in ev.pop(slot[0], []): self.do(g)
                for _ in range(-(-len(valu) // (n - k))): self.do(valu.pop(0))
                slot[0] += 1
        seq = [(hd, i) for hd in range(2) for i in (7, 6, 5, 4, 3, 2, 1, 8, 0)]
        kslot = {x: K0[n % 3] for n, x in enumerate(seq)}
        kq = list(seq)
        def knext():
            if not kq: return []
            hd, i = kq.pop(0)
            return [self.kread(hd, i, kslot[(hd, i)])] + ([self.k1read(i)] if hd == 0 else [])
        for x in knext() + knext() + knext(): E(x)
        for x in self.smf(0, 7, S[0], kslot[(0, 7)]): E(x)
        pend = []; vn = 0
        sa_, pa_ = o.get("osa", 56), o.get("opa", 69)
        ev.setdefault(pa_, []).append(self.poll_issue(sTC, self.T(0, L)))
        ev.setdefault(sa_, []).append(self.signal(sTP, self.T(0, L), lambda: st["a"]))
        for hd in range(2):
            for n in range(8):
                mf = []; mems = []; va = []
                if n < 6:
                    mf += self.smf(hd, 6 - n, S[(n + 1) % 2], kslot[(hd, 6 - n)]); mems += knext()
                    mf += pend
                elif n == 6:
                    mf += self.smf(hd, 8, SD, kslot[(hd, 8)]) + self.smf(hd, 0, S[1], kslot[(hd, 0)]); mems += knext()
                    mf += pend
                else:
                    mf += pend
                    if hd == 0: mf += self.smf(1, 7, S[0], kslot[(1, 7)])
                    mems += knext() + knext()
                    if hd == 0: pre.setdefault(slot[0] + len(mf), []).append(lambda: (E.wait(vm=self.haltok[1]), E("s_barrier")))
                    if hd == 0 and o.get("ovl", 3) and not (L and o.get("ovl", 3) >= 2): ev.setdefault(slot[0] + len(mf), []).append(self.signal(sKVme, 16 + 4 * L, lambda: self.haltok[1]))
                if n < 7:
                    vf = VF[vn % 3]; vn += 1
                    vr = self.vreads(hd, 7 - n, vf)
                    mems = mems + vr
                    va += self.expops(S[n % 2], P[n % 2])
                    pend = self.pv(O[hd], vf, P[n % 2], n == 0)
                    if hd == 1 and n == 1: va = norm(0) + [putOA] + va
                else:
                    v8, v0_ = VF[vn % 3], VF[(vn + 1) % 3]; vn += 2
                    mems = mems + self.vreads(hd, 8, v8) + self.vreads(hd, 0, v0_)
                    va += self.mergeops(SD, S[1]) + self.expops(SD, P[1]) + self.splitops(P[1], PM)
                    pend = self.pv(O[hd], v8, P[1], False) + self.pv(O[hd], v0_, PM, False)
                weave(mf, mems, va)
            if hd == 0: self.stamp(f"L{L} att a")
        weave(pend, [], [])
        assert not ev and not pre, (ev, pre, slot)
        for x in norm(1): self.do(x)
        E(f"s_mov_b32 vcc_lo, -1\ns_mov_b32 vcc_hi, 0")
        for k in range(2): E(f"v_cndmask_b32 v{D+4+k}, v{D+12+k}, v{D+4+k}, vcc")
        E(f"buffer_store_dwordx4 {v(D+8,4)}, v{vL16}, {s(WS,4)}, s{sC} offen sc1")
        self.otok = E(f"buffer_store_dwordx2 {v(D+4,2)}, v{vO4}, {s(WS,4)}, s{sA} offen sc1")
        if o.get("obf", 0): E(f"buffer_atomic_add v{vONE}, v{vSIG}, {s(WS,4)}, s{sTP} offen offset:{self.T(1, L)} sc1")
        self.stamp(f"L{L} att done")
    def reduce_and_publish(self, ACC, steps, red, PT, xidx, wimm, final, bg, post, bg0=1, bgstep=5, vals=None):
        E = self.E
        bg = list(bg); rd = []; self.nextbg = 0
        sal = []
        if not final:
            sal = [f"s_add_u32 s{sA}, s{sT16+3}, {self.xt(xidx)}",
                   f"s_lshl_b32 s{sC}, s{sJ}, 2\ns_add_u32 s{sC}, s{sC}, s{sW}", f"s_lshl_b32 s{sC}, s{sC}, 7\ns_and_b32 s{sP}, s{sTC}, 0xffffe000",
                   f"s_add_u32 s{sC}, s{sC}, s{sP}\ns_add_u32 s{sC}, s{sC}, {(A_ST - A_CNT + xidx*16*KB) & 0xffffffff}"]
        AW = [PT + 56 + i for i in range(3)]
        for i in range(3): E(f"v_add_u32 v{AW[i]}, {red}, v{vRW+i}")
        E(f"v_add_u32 v{vT}, {red}, v{vRW+3}")
        order = [(q, nt) for nt in range(5) for q in range(3)]
        ns = len(steps); nr = 5 * ns; lag = self.o.get("wlag", 5)
        wat = {nr * i + ns * (nt + 1) - 1 + lag: f"ds_write_b128 v{AW[i]}, {v(ACC[i]+4*nt,4)} offset:{1024*nt}" for i in range(3) for nt in range(5)}
        bar = min(max(wat) + self.o.get("rbar", 4), 4 * nr - 1)
        bgq = []
        for i in range(4):
            left = [x for x in range(nr * i, nr * (i + 1)) if x not in wat]
            for nt in range(5):
                for si, (W, act) in enumerate(steps):
                    k = nr * i + ns * nt + si; d = ACC[i] + 4 * nt
                    E(f"v_mfma_f32_16x16x32_bf16 {v(d,4)}, {R(W[nt],4)}, {R(act[i],4)}, {v(d,4)}")
                    if k in wat: E(wat[k])
                    elif vals and i < 3 and len([x for x in left if x >= k]) <= len(vals[i + 1]): self.do(vals[i + 1].pop(0))
                    elif k == bar:
                        E.drain(vm=False); E("s_barrier")
                        rd = [f"ds_read_b128 {v(PT+20*q+4*n_,4)}, v{vT} offset:{1024*(5*q+n_)}" for q, n_ in order]
                    elif rd:
                        E(rd.pop(0))
                        if rd: E(rd.pop(0))
                    elif i == 0 and sal: E(sal.pop(0))
                    else:
                        if not bgq and bg and i >= bg0 and k >= self.nextbg: bgq = self.flat(bg.pop(0)); self.nextbg = k + bgstep
                        if bgq: self.do(bgq.pop(0))
            assert not (vals and i < 3 and vals[i + 1])
        for x in bgq: self.do(x)
        for x in rd: E(x)
        assert not sal
        self.stamp("  mfma done")
        D = ACC[0]
        if final:
            stores = [f"ds_write_b128 v{vRM}, {v(D,4)}", f"ds_write_b128 v{vRM}, {v(D+4,4)} offset:16", f"ds_write_b64 v{vRM5}, {v(D+8,2)} offset:128"]
        else:
            stores = [f"buffer_store_dwordx4 {v(D,4)}, v{vXW}, {s(WS,4)}, s{sA} offen sc1", f"buffer_store_dwordx4 {v(D+4,4)}, v{vXW}, {s(WS,4)}, s{sA} offen offset:512 sc1",
                      f"buffer_store_dwordx2 {v(D+8,2)}, v{vXW5}, {s(WS,4)}, s{sA} offen sc1"]
        for nts in ((0, 1), (2, 3), (4,)):
            ks = [4 * nt + e for nt in nts for e in (0, 2)]
            for k in ks: E(f"v_pk_add_f32 {v(PT+k,2)}, {v(PT+k,2)}, {v(PT+20+k,2)}")
            for k in ks: E(f"v_pk_add_f32 {v(vRES+k,2)}, {v(vRES+k,2)}, {v(PT+40+k,2)}")
            for k in ks: E(f"v_pk_add_f32 {v(vRES+k,2)}, {v(vRES+k,2)}, {v(PT+k,2)}")
            for k in ks: E(f"v_cvt_pk_bf16_f32 v{D+k//2}, v{vRES+k}, v{vRES+k+1}")
            if final: E(stores.pop(0))
        if final:
            for i in range(3): E(f"ds_read_b128 {v(D+12+4*i,4)}, v{vNM+3} offset:{1024*i}")
            for i in range(3): E(f"buffer_store_dwordx4 {v(D+12+4*i,4)}, v{vNM+i}, {s(OUT,4)}, s{sRM} offen {FINAL}")
            return
        for x in stores: data = E(x)
        early = self.o.get("early", 0)
        if early: E(f"buffer_atomic_add v{vONE}, v{vSR}, {s(WS,4)}, s{sWP} offen offset:{wimm} sc1")
        self.stamp("  stored")
        T = PT
        E(f"v_pk_add_f32 {v(T,2)}, {v(vRES,2)}, {v(vRES+2,2)}\nv_pk_mul_f32 {v(T+2,2)}, {v(vRES,2)}, {v(vRES,2)}")
        E(f"v_pk_fma_f32 {v(T+2,2)}, {v(vRES+2,2)}, {v(vRES+2,2)}, {v(T+2,2)}")
        for k in range(4, 20, 2):
            E(f"v_pk_add_f32 {v(T,2)}, {v(T,2)}, {v(vRES+k,2)}\nv_pk_fma_f32 {v(T+2,2)}, {v(vRES+k,2)}, {v(vRES+k,2)}, {v(T+2,2)}")
        E(f"v_add_f32 v{T}, v{T}, v{T+1}\nv_add_f32 v{T+1}, v{T+2}, v{T+3}")
        for sw in ("v_permlane32_swap_b32", "v_permlane16_swap_b32"):
            E(f"v_mov_b32 v{T+2}, v{T}\nv_mov_b32 v{T+3}, v{T+1}")
            E(f"{sw} v{T+2}, v{T}\n{sw} v{T+3}, v{T+1}")
            E(f"v_add_f32 v{T}, v{T}, v{T+2}\nv_add_f32 v{T+1}, v{T+1}, v{T+3}")
        last = E(f"buffer_store_dwordx2 {v(T,2)}, v{vSW}, {s(WS,4)}, s{sC} offen sc1")
        E("s_barrier")
        n0 = self.o.get("post0", 5); n1 = n0 + self.o.get("post1", 4)
        post = list(bg) + list(post)
        for g in post[:n0]: self.do(g)
        if wimm >= 512 and self.o.get("cstW", 3) == 1: self.idle_consts()
        self.window(3 if wimm < 512 else 5)
        if not early: self.signal(sWP, wimm, last, vSR)()
        self.stamp("  signalled")
        self.preissued = False
        pp = self.o.get("pp", 99)
        for k, g in enumerate(post[n0:]):
            if early and n0 + k == pp: E(self.poll_issue(sWC, wimm)); self.preissued = True
            self.do(g)
        self.statsig = self.signal(sWP, wimm + 8, last, vSR)
    def mk_wdload(self):
        self.WDF = {}
        def wdload(f):
            def fn():
                q = self.pool.get(); self.WDF[f] = q
                t = f"s_add_u32 s{sT0+1}, s{sWD}, {1024*f}\n" if f % 4 == 0 else ""
                assert t or self.E.lastw[f"s{sT0+1}"] == f"s_add_u32 s{sT0+1}, s{sWD}, {1024*(f & ~3)}"
                return self.E(t + f"buffer_load_dwordx4 {R(q,4)}, v{vL16}, {s(WS,4)}, s{sT0+1} offen offset:{1024*(f%4)} sc1")
            return fn
        self.wdq = [wdload(f) for f in range(60)]
    def wd(self, n):
        r = self.wdq[:n]; self.wdq = self.wdq[n:]
        return r
    def p3(self, L):
        E = self.E; o = self.o
        ACC = [48, 68, 88, vRES]
        W = lambda st: [self.WOF[5 * st + nt] for nt in range(5)]
        self.pool.add([188 + 4 * i for i in range(7)])
        SO = self.SO; ol = self.ol; vU4 = 172
        for g in self.aq: self.do(g)
        E(f"s_mul_i32 s{sE_}, s{sW}, {14*KB}\ns_sub_u32 s{sE_}, {60*KB}, s{sE_}\nv_add_u32 v{vU4}, s{sE_}, v{vU}")
        for i in range(4): E(f"s_add_u32 s{SO[i]}, s{SO[i]}, 4096")
        E("s_barrier")
        bl = [[ol(2, i, vU, 0), ol(3, i, vU, 2048), ol(4, i, vU4, 0)] for i in range(4)]
        vals = [self.validate([self.OF[(st, i)] for st in range(2, 5)], bl[i], 168) for i in range(4)]
        q = sum(bl, [])
        self.window(2)
        obf = o.get("obf", 0); k0 = 0
        if obf:
            k0 = o.get("obc", 30)
            if o.get("obp", 4) < 0: E(self.poll_issue(sTC, self.T(1, L)))
        else:
            if o.get("obw", 1): E.wait(vm=self.otok)
            for _ in range(o.get("obn", 3)): E(q.pop(0))
        k = 0
        for i in range(4):
            for nt in range(5):
                for st in range(2):
                    d = ACC[i] + 4 * nt
                    E(f"v_mfma_f32_16x16x32_bf16 {v(d,4)}, {R(W(st)[nt],4)}, {R(self.OF[(st,i)],4)}, {'0' if st == 0 and i < 3 else v(d,4)}")
                    if obf:
                        if k == o.get("obp", 4): E(self.poll_issue(sTC, self.T(1, L)))
                        if k == k0: self.poll_check(sTC, self.T(1, L), 8)()
                        if k >= k0 and q: E(q.pop(0))
                    elif k % o.get("obs", 3) == 0 and q: E(q.pop(0))
                    elif k >= 40 - len(vals[0]) and k < 39: self.do(vals[0].pop(0))
                    k += 1
        for g in q: E(g)
        for g in vals[0]: self.do(g)
        self.stamp(f"L{L} P3 synced")
        steps = [(W(st), [self.OF[(st, i)] for i in range(4)]) for st in range(2, 5)]
        self.CSG = 152
        bg = self.wd(o.get("wd3b", 6))
        self.vals = vals
        def freewo(): self.pool.add([176, 180, 184] + [AG + 104 + 4 * i for i in range(14)] + self.WOF[:10] + self.WOF[24:])
        self.gu_late = []
        self.gu_tok = []
        for c in range(6, 10): self.gu_late += self.dma4(sWGU, 16 * KB * c, 16 * KB * (c - 6), self.gu_tok)
        n = o.get("gu3", 16)
        post = [freewo] + self.gu_late[:n]
        self.gu_late = self.gu_late[n:]
        self.reduce_and_publish(ACC, steps, 0, 108 - 16 + 16, 2 * L + 1, 4 * L, False, bg, post, vals=vals)
        self.stamp(f"L{L} P3 done")
    def p4_32(self, L):
        E = self.E; o = self.o
        ACC = [[48, 64], [80, 96]]; RING = 112; HP = 136; T = 144
        allw = [1024 * ((64 + f) % 160) for f in range(240)]
        for f in range(6): E(self.wread(RING + 4 * f, allw[f]))
        self.poll_block(sWC, 4 * L, 16)
        self.stamp(f"L{L} P4 synced")
        self.xr = lambda ks: 4 * ks if ks < 26 else 200 + 4 * (ks - 26)
        xl = self.xloads(self.xt(2 * L + 1))
        self.xstart(xl, self.xt(2 * L + 1))
        c1 = -2 * 0.7978845608028654 * math.log2(math.e)
        so = self.stat_ops(T) + [f"v_mul_f32 v{vC1}, {f2u(c1)}, v{vRSTD}", f"v_mul_f32 v{T}, v{vRSTD}, v{vRSTD}", f"v_mul_f32 v{vC2}, {f2u(0.044715)}, v{vC1}",
                                 f"v_mul_f32 v{vC2}, v{T}, v{vC2}"]
        st = self.htok = {}
        def put(p, k):
            if k == 0: return f"buffer_store_dwordx4 {v(HP,4)}, v{vL16}, {s(WS,4)}, s{sA} offen sc1"
            return lambda: st.__setitem__(p, E(f"buffer_store_dwordx4 {v(HP+4,4)}, v{vL16}, {s(WS,4)}, s{sA} offen offset:1024 sc1"))
        haddr = lambda p: [f"s_add_u32 s{sA}, s{sJ}, {p}\ns_and_b32 s{sA}, s{sA}, 3\ns_lshl_b32 s{sA}, s{sA}, 11", f"s_and_b32 s{sB}, s{sHme}, 0xffffe000\ns_add_u32 s{sA}, s{sA}, s{sB}"]
        def epi(p):
            g, u = ACC[p % 2]; r = [haddr(p)]
            for k0 in range(0, 16, 4):
                ks = range(k0, k0 + 4)
                r += [f"v_mul_f32 v{T+k%4}, v{g+k}, v{g+k}" for k in ks]
                r += [f"v_fma_f32 v{T+k%4}, v{T+k%4}, v{vC2}, v{vC1}" for k in ks]
                r += [f"v_mul_f32 v{T+k%4}, v{T+k%4}, v{g+k}" for k in ks]
                r += [f"v_exp_f32 v{T+k%4}, v{T+k%4}" for k in ks]
                r += [f"v_mul_f32 v{g+k}, v{g+k}, v{u+k}" for k in ks]
                r += [f"v_fma_f32 v{T+k%4}, v{T+k%4}, v{vIV}, v{vIV}" for k in ks]
                r += [f"v_rcp_f32 v{T+k%4}, v{T+k%4}" for k in ks]
                r += [f"v_mul_f32 v{g+k}, v{g+k}, v{T+k%4}" for k in ks]
                r += [f"v_cvt_pk_bf16_f32 v{HP+k//2}, v{g+k}, v{g+k+1}" for k in ks if k % 2 == 0]
                if k0 in (4, 12): r.append([put(p, k0 // 8)])
            return [(2, x) for x in r]
        def epi_pk(p):
            g, u = ACC[p % 2]; r = []
            for k0 in range(0, 16, 8):
                ks = range(k0, k0 + 8, 2)
                r += [f"v_pk_mul_f32 {v(T+k%8,2)}, {v(g+k,2)}, {v(g+k,2)}" for k in ks]
                r += [f"v_pk_fma_f32 {v(T+k%8,2)}, {v(T+k%8,2)}, {v(vC1,2)}, {v(vC1,2)} op_sel:[0,1,0] op_sel_hi:[1,1,0]" for k in ks]
                r += [f"v_pk_mul_f32 {v(T+k%8,2)}, {v(T+k%8,2)}, {v(g+k,2)}" for k in ks]
                r += [f"v_exp_f32 v{T+k}, v{T+k}" for k in range(8)]
                r += [f"v_pk_mul_f32 {v(g+k,2)}, {v(g+k,2)}, {v(u+k,2)}" for k in ks]
                r += [f"v_pk_fma_f32 {v(T+k%8,2)}, {v(T+k%8,2)}, {v(vIV,2)}, {v(vIV,2)} op_sel_hi:[1,0,0]" for k in ks]
                r += [f"v_rcp_f32 v{T+k}, v{T+k}" for k in range(8)]
                r += [f"v_pk_mul_f32 {v(g+k,2)}, {v(g+k,2)}, {v(T+k%8,2)}" for k in ks]
                r += [f"v_cvt_pk_bf16_f32 v{HP+k//2}, v{g+k}, v{g+k+1}" for k in ks]
                r.append(put(p, k0 // 8))
            return r
        self.HF = {}
        def hload(stp, i, fixed=None):
            p, jj = divmod(stp, 4)
            if fixed is not None:
                self.HF[(stp, i)] = fixed
                return f"s_add_u32 s{sE_}, s{sT16H+i}, {A_H + 16*KB*jj + 2048*((p + jj) & 3)}\nbuffer_load_dwordx4 {R(fixed,4)}, v{vU}, {s(WS,4)}, s{sE_} offen sc1"
            def fn():
                q = self.pool.get(); self.HF[(stp, i)] = q
                E(f"buffer_load_dwordx4 {R(q,4)}, v{vU}, {s(WS,4)}, s{sE_} offen sc1")
            return (f"s_add_u32 s{sE_}, s{sT16H+i}, {A_H + 16*KB*jj + 2048*((p + jj) & 3)}", fn)
        self.hload = hload
        nv = o.get("bud4", 32)
        ev = {}; spread(ev, xl[NX0:], 0, o.get('xS', 20) / 10)
        if o.get("early", 0): ev.setdefault(11, []).append(self.statsig)
        spread(ev, self.stat_loads(2 * L + 1, T), 39, 2)
        csl = self.cs_loads(CSG, 6 * KB, 6, self.CSG)
        spread(ev, csl[:2], 47, 2)
        pre = {}
        if o.get("ovl", 3) and not (L and o.get("ovl", 3) >= 2):
            ev.setdefault(51, []).append(f"s_sub_u32 s{sH8}, 15, s{sR}\ns_min_u32 s{sH8}, s{sH8}, 2\n" + self.poll_issue(sKP, 16 + 4 * L))
            pre[76] = [self.poll_check(sKP, 16 + 4 * L, f"s{sH8}")]
        spread(ev, self.gu_late + self.wd(min(o.get("wd40", 10), 10 - len(self.gu_late))), 61, 2)
        spread(ev, [self.touch(sWGU, sH16, 32 * KB * 5), self.touch(sWD, sH8, 16 * KB), self.touch(sWGU, sH16, 32 * KB * 6)], 45, 15)
        pv = [(30, f"v_mov_b32 v{HP+i}, -1") for i in range(4)] + [(30, self.xpoison(2, HP))] if L == 0 and o.get("early", 0) else []
        sh = o.get("senth", 0)
        if sh and o.get("poiw", 1) == 1:
            assert o.get("ovl", 3) == 3
            pv += [(40, f"v_mov_b32 v{HP+4+i}, -1") for i in range(4)]
            spread(ev, [(f"s_add_u32 s{sB}, s{sHme}, {HB + L*HB_STRIDE + 2048}\n" if k == 0 else "") +
                        f"buffer_store_dwordx4 {v(HP+4,4)}, v{vL16}, {s(WS,4)}, s{sB} offen offset:{1024*k} sc1" for k in range(4)], o.get("poi0", 74), o.get("poiS", 2))
        self.wstream(self.pair_items(ACC[0], self.CSG), 0, allw, RING, ev, pv + [(65, x) for x in so], pre, tag=f"p0{L}")
        self.stamp(f"L{L} P4 p0")
        ev = {}; tok = []; fl = []
        for c in range(10, 15): fl += self.dma4(sWGU, 16 * KB * c, 64 * KB + 16 * KB * (c - 10), tok)
        spread(ev, fl, 2, 2.15)
        net = [self.nan_net(ACC[0][0], xl, self.pair_items(ACC[0], self.CSG) + self.pair_items(ACC[1], 0)[:2], allw, RING, 4 * L, self.stat_loads(2 * L + 1, T) + so)] if o.get("early", 0) else []
        n1 = min(o.get("wd41", 13), len(self.pool.free))
        spread(ev, csl[2:] + self.wd(n1), 46, 35 / max(n1 + 4, 16))
        spread(ev, [self.touch(sWGU, sH16, 32 * KB * 7), self.touch(sWD, sH8, 32 * KB), self.touch(sWD, sH8, 48 * KB)], 6, 24)
        self.wstream(self.pair_items(ACC[1], self.CSG + 8), 80, allw, RING, ev, epi(0),
                     {2: net + ["s_barrier"], 10: [lambda: (E.wait(vm=self.gu_tok[3]), E("s_barrier"))], 74: [lambda: (E.wait(vm=tok[4]), E("s_barrier"))]}, budget=nv, tag=f"p1{L}")
        self.stamp(f"L{L} P4 p1")
        ev = {}; pre = {}
        for ks in range(40): ev.setdefault(2 * ks + 1, []).append(lambda ks=ks: self.pool.put(AG + self.xr(ks)))
        n2 = min(len(self.wdq), o.get("wd42", 20))
        spread(ev, self.wd(n2), 3, 2.1)
        hp, hc = o.get("hp0", 22), o.get("hc0", 44)
        ev.setdefault(o.get("hs0", 2), []).append(self.signal(sTP, self.T(2, L), lambda: st[0]))
        if L == 0: spread(ev, [self.touch(sWQ, sH16, 32 * KB * k) for k in range(2)], 30, 30)
        ev.setdefault(hp, []).append(self.poll_issue(sTC, self.T(2, L)))
        pre.setdefault(hc, []).append(self.poll_check(sTC, self.T(2, L), 8))
        spread(ev, [hload(stp, i) for stp, i in self.horder(0)], max(hc + 1, 3 + 2.1 * n2), 2.2)
        if not sh: ev.setdefault(o.get("hs1", 81), []).append(self.signal(sTP, self.T(3, L), lambda: st[1]))
        self.wstream(self.pair_items(ACC[0], self.CSG + 16), 160, allw, RING, ev, epi(1), pre, budget=nv, tag=f"p2{L}")
        self.stamp(f"L{L} P4 p2")
        for x in haddr(2): E(x)
        ep = epi_pk(2)
        for k, x in enumerate(ep):
            self.do(x)
            if k == o.get("hp1", 70) and not sh: E(self.poll_issue(sTC, self.T(3, L)))
            elif k % 12 == 6 and k < 40 and self.wdq and self.pool.free: self.wd(1)[0]()
        self.stamp(f"L{L} P4 done")
    def p4(self, L):
        E = self.E; o = self.o
        if not o.get('m16', 1): return self.p4_32(L)
        ACC = [[48, 64], [80, 96]]; RING = 112; HP = 136; T = 144
        allw = [1024 * ((64 + f) % 160) for f in range(240)]
        for f in range(6): E(self.wread(RING + 4 * f, allw[f]))
        self.poll_block(sWC, 4 * L, 16)
        self.stamp(f"L{L} P4 synced")
        self.xr = lambda ks: 4 * ks if ks < 26 else 200 + 4 * (ks - 26)
        base = self.xt(2 * L + 1); xl = self.xloads16(base)
        self.x0 = len(E.out); self.vrate = o.get("vrate", 6)
        self.xstart(xl, base)
        c1 = -2 * 0.7978845608028654 * math.log2(math.e)
        CC = [(vC1, vIV), (248, 254)]
        sta, stl, so = self.stat16(2 * L + 1, T, HP)
        so2 = []
        for t in range(2):
            b_ = T + 4 * t; C, IV = CC[t]
            so += [f"v_mul_f32 v{b_}, {f2u(-1/640)}, v{b_}", f"v_cvt_pk_bf16_f32 v{vNM+2*t}, v{b_}, v{b_}", f"v_cvt_pk_bf16_f32 v{vNM+2*t+1}, v{b_}, v{b_}"]
            so2 += [f"v_mul_f32 v{b_+1}, {f2u(1/640)}, v{b_+1}", f"v_fma_f32 v{b_+1}, -v{b_}, v{b_}, v{b_+1}", f"v_max_f32 v{b_+1}, 0, v{b_+1}",
                    f"v_add_f32 v{IV}, {f2u(EPS)}, v{b_+1}", f"v_rsq_f32 v{b_+2}, v{IV}", f"v_rcp_f32 v{b_+3}, v{IV}", f"v_mul_f32 v{C}, {f2u(c1)}, v{b_+2}",
                    f"v_mul_f32 v{C+1}, {f2u(0.044715)}, v{C}", f"v_mul_f32 v{C+1}, v{b_+3}, v{C+1}"]
        so += so2
        st = self.htok = {}
        def put(p, k):
            if k == 0: return f"buffer_store_dwordx4 {v(HP,4)}, v{vU}, {s(WS,4)}, s{sA} offen sc1"
            return lambda: st.__setitem__(p, E(f"buffer_store_dwordx4 {v(HP+4,4)}, v{vU}, {s(WS,4)}, s{sA} offen offset:256 sc1"))
        haddr = lambda p: [f"s_add_u32 s{sA}, s{sJ}, {p}\ns_and_b32 s{sA}, s{sA}, 3\ns_lshl_b32 s{sA}, s{sA}, 11", f"s_and_b32 s{sB}, s{sHme}, 0xffffe000\ns_add_u32 s{sA}, s{sA}, s{sB}"]
        def epi(p):
            g, u = ACC[p % 2]; r = [haddr(p)]
            for k0 in range(0, 16, 4):
                ks = range(k0, k0 + 4); vC1, vIV = CC[k0 >> 3]; vC2 = vC1 + 1
                r += [f"v_mul_f32 v{T+k%4}, v{g+k}, v{g+k}" for k in ks]
                r += [f"v_fma_f32 v{T+k%4}, v{T+k%4}, v{vC2}, v{vC1}" for k in ks]
                r += [f"v_mul_f32 v{T+k%4}, v{T+k%4}, v{g+k}" for k in ks]
                r += [f"v_exp_f32 v{T+k%4}, v{T+k%4}" for k in ks]
                r += [f"v_mul_f32 v{g+k}, v{g+k}, v{u+k}" for k in ks]
                r += [f"v_fma_f32 v{T+k%4}, v{T+k%4}, v{vIV}, v{vIV}" for k in ks]
                r += [f"v_rcp_f32 v{T+k%4}, v{T+k%4}" for k in ks]
                r += [f"v_mul_f32 v{g+k}, v{g+k}, v{T+k%4}" for k in ks]
                r += [f"v_cvt_pk_bf16_f32 v{HP+k//2}, v{g+k}, v{g+k+1}" for k in ks if k % 2 == 0]
                if k0 in (4, 12): r.append([put(p, k0 // 8)])
            return [(2, x) for x in r]
        def epi_pk(p):
            g, u = ACC[p % 2]; r = []
            for k0 in range(0, 16, 8):
                ks = range(k0, k0 + 8, 2); vC1, vIV = CC[k0 >> 3]
                r += [f"v_pk_mul_f32 {v(T+k%8,2)}, {v(g+k,2)}, {v(g+k,2)}" for k in ks]
                r += [f"v_pk_fma_f32 {v(T+k%8,2)}, {v(T+k%8,2)}, {v(vC1,2)}, {v(vC1,2)} op_sel:[0,1,0] op_sel_hi:[1,1,0]" for k in ks]
                r += [f"v_pk_mul_f32 {v(T+k%8,2)}, {v(T+k%8,2)}, {v(g+k,2)}" for k in ks]
                r += [f"v_exp_f32 v{T+k}, v{T+k}" for k in range(8)]
                r += [f"v_pk_mul_f32 {v(g+k,2)}, {v(g+k,2)}, {v(u+k,2)}" for k in ks]
                r += [f"v_pk_fma_f32 {v(T+k%8,2)}, {v(T+k%8,2)}, {v(vIV,2)}, {v(vIV,2)} op_sel_hi:[1,0,0]" for k in ks]
                r += [f"v_rcp_f32 v{T+k}, v{T+k}" for k in range(8)]
                r += [f"v_pk_mul_f32 {v(g+k,2)}, {v(g+k,2)}, {v(T+k%8,2)}" for k in ks]
                r += [f"v_cvt_pk_bf16_f32 v{HP+k//2}, v{g+k}, v{g+k+1}" for k in ks]
                r.append(put(p, k0 // 8))
            return r
        self.HF = {}
        def hload(stp, i, fixed=None):
            p, jj = divmod(stp, 4)
            if fixed is not None:
                self.HF[(stp, i)] = fixed
                return f"s_add_u32 s{sE_}, s{sT16H+i}, {A_H + 16*KB*jj + 2048*((p + jj) & 3)}\nbuffer_load_dwordx4 {R(fixed,4)}, v{vU}, {s(WS,4)}, s{sE_} offen sc1"
            def fn():
                q = self.pool.get(); self.HF[(stp, i)] = q
                E(f"buffer_load_dwordx4 {R(q,4)}, v{vU}, {s(WS,4)}, s{sE_} offen sc1")
            return (f"s_add_u32 s{sE_}, s{sT16H+i}, {A_H + 16*KB*jj + 2048*((p + jj) & 3)}", fn)
        self.hload = hload
        nv = o.get("bud4", 32) // 2
        ev = {}; spread(ev, xl[NX0:], 0, o.get('xS', 20) / 10)
        if o.get("early", 0): ev.setdefault(11, []).append(self.statsig)
        spread(ev, stl, 27, 2)
        csl = self.cs_loads(CSG, 6 * KB, 6, self.CSG)
        spread(ev, csl[:2], 47, 2)
        pre = {}
        if o.get("ovl", 3) and not (L and o.get("ovl", 3) >= 2):
            ev.setdefault(51, []).append(f"s_sub_u32 s{sH8}, 15, s{sR}\ns_min_u32 s{sH8}, s{sH8}, 2\n" + self.poll_issue(sKP, 16 + 4 * L))
            pre[76] = [self.poll_check(sKP, 16 + 4 * L, f"s{sH8}")]
        spread(ev, self.gu_late + self.wd(min(o.get("wd40", 10), 10 - len(self.gu_late))), 61, 2)
        spread(ev, [self.touch(sWGU, sH16, 32 * KB * 5), self.touch(sWD, sH8, 16 * KB), self.touch(sWGU, sH16, 32 * KB * 6)], 45, 15)
        pv = [(30, f"v_mov_b32 v{HP+i}, -1") for i in range(4)] + [(30, self.xpoison(2, HP))] if L == 0 and o.get("early", 0) else []
        sh = o.get("senth", 0)
        if sh and o.get("poiw", 1) == 1:
            assert o.get("ovl", 3) == 3
            pv += [(40, f"v_mov_b32 v{HP+4+i}, -1") for i in range(4)]
            spread(ev, self.hpoison(HP + 4, sB), o.get("poi0", 72), o.get("poiS", 2))
        self.wstream16([(ACC[0], self.CSG)], 0, allw, RING, ev, [(4, x) for x in sta] + pv + [(54, x) for x in so], pre, tag=f"p0{L}")
        self.stamp(f"L{L} P4 p0")
        ev = {}; tok = []; fl = []
        for c in range(10, 15): fl += self.dma4(sWGU, 16 * KB * c, 64 * KB + 16 * KB * (c - 10), tok)
        spread(ev, fl, 2, 2.15)
        net = [self.nan_net(ACC[0][0], xl, self.pair_items(ACC[0], self.CSG) + self.pair_items(ACC[1], 0)[:2], allw, RING, 4 * L, self.stat_loads(2 * L + 1, T) + so)] if o.get("early", 0) else []
        n1 = min(o.get("wd41", 13), len(self.pool.free))
        spread(ev, csl[2:] + self.wd(n1), 46, 35 / max(n1 + 4, 16))
        spread(ev, [self.touch(sWGU, sH16, 32 * KB * 7), self.touch(sWD, sH8, 32 * KB), self.touch(sWD, sH8, 48 * KB)], 6, 24)
        self.wstream16([(ACC[1], self.CSG + 8)], 80, allw, RING, ev, epi(0),
                     {2: net + ["s_barrier"], 10: [lambda: (E.wait(vm=self.gu_tok[3]), E("s_barrier"))], 74: [lambda: (E.wait(vm=tok[4]), E("s_barrier"))]}, budget=nv, vend=o.get("ve1", 70), tag=f"p1{L}")
        self.stamp(f"L{L} P4 p1")
        ev = {}; pre = {}
        for ks in range(40): pre.setdefault(8 * (ks >> 2) + 7 + ((ks >> 1) & 1), []).append(lambda ks=ks: self.pool.put(AG + self.xr(ks)))
        n2 = min(len(self.wdq), o.get("wd42", 20))
        spread(ev, self.wd(n2), 3, 2.1)
        hp, hc = o.get("hp0", 22), o.get("hc0", 44)
        ev.setdefault(o.get("hs0", 2), []).append(self.signal(sTP, self.T(2, L), lambda: st[0]))
        if L == 0: spread(ev, [self.touch(sWQ, sH16, 32 * KB * k) for k in range(2)], 30, 30)
        ev.setdefault(hp, []).append(self.poll_issue(sTC, self.T(2, L)))
        pre.setdefault(hc, []).append(self.poll_check(sTC, self.T(2, L), 8))
        spread(ev, [hload(stp, i) for stp, i in self.horder(0)], max(hc + 1, 3 + 2.1 * n2), 2.2)
        if not sh: ev.setdefault(o.get("hs1", 81), []).append(self.signal(sTP, self.T(3, L), lambda: st[1]))
        self.wstream16([(ACC[0], self.CSG + 16)], 160, allw, RING, ev, epi(1), pre, budget=nv, vend=o.get("ve2", 60), tag=f"p2{L}")
        self.stamp(f"L{L} P4 p2")
        for x in haddr(2): E(x)
        ep = epi_pk(2)
        for k, x in enumerate(ep):
            self.do(x)
            if k == o.get("hp1", 70) and not sh: E(self.poll_issue(sTC, self.T(3, L)))
            elif k % 12 == 6 and k < 40 and self.wdq and self.pool.free: self.wd(1)[0]()
        self.stamp(f"L{L} P4 done")
    def p5(self, L):
        E = self.E; o = self.o
        ACC = [48, 68, 88, vRES]
        E("s_barrier")
        ev = {}; pre = {}; sh = o.get("senth", 0); vals = None; val1 = {}
        if sh:
            r1 = [108 + 4 * i for i in range(7)] + [144 + 4 * i for i in range(7)] + [136, 140]
            l1 = [[self.hload(stp, i, r1.pop(0)) for i in range(4)] for stp in range(4, 8)]
            l2 = [[self.hload(stp, i, 176 + 16 * i + 4 * (stp - 8)) for stp in range(8, 12)] for i in range(4)]
            rl = lambda x: [y.replace(f"s{sE_}", f"s{sP}") for y in x]
            for k in range(4): val1[4 + k] = self.validate([self.HF[(4 + k, i)] for i in range(4)], rl(l1[k]), 172)
            vals = [self.validate([self.HF[(stp, i)] for stp in range(8, 12)], rl(l2[i]), 172) for i in range(4)]
            val1[8] = vals[0]
            rest = sum(l1, []) + self.wd(60)
            nl = o.get("h2late", 4)
            l2f = sum(l2, []); late2 = l2f[16 - nl:]
            h2s = o.get("h2s", 104)
            spread(ev, rest, o.get("h1s", 2), (h2s - 4) / len(rest))
            spread(ev, l2f[:16 - nl], h2s, (150 - h2s) / (16 - nl))
        else:
            self.pool.add([108 + 4 * i for i in range(7)] + [144 + 4 * i for i in range(8)])
            hc1 = o.get("hc1", 30)
            pre.setdefault(hc1, []).append(self.poll_check(sTC, self.T(3, L), 8))
            spread(ev, [self.hload(stp, i) for stp, i in self.horder(4)] + self.wd(60), hc1, o.get('h1S', 32) / 10)
            ev.setdefault(o.get("hs2", 44), []).append(self.signal(sTP, self.T(4, L), self.htok[2]))
            hp, hc = o.get("hp2", 76), o.get("hc2", 112)
            ev.setdefault(hp, []).append(self.poll_issue(sTC, self.T(4, L)))
            pre.setdefault(hc, []).append(self.poll_check(sTC, self.T(4, L), 8))
            spread(ev, [self.hload(stp, i) for i in range(4) for stp in range(8, 12)], hc, o.get('h2S', 29) / 10)
        if L == 1:
            ta = self.tile_addrs(vNM, vC1) + [f"v_add_u32 v{vNM+3}, s{sLW}, v{vL16}"]
            spread(ev, [(lambda x="\n".join(ta[k:k + 2]): E(x)) for k in range(0, len(ta), 2)], 2, 2)
            spread(ev, [(lambda x=x: E(x)) for x in (f"s_or_b32 s{sA}, s{sR}, s{sJ}\ns_or_b32 s{sA}, s{sA}, s{sW}", f"s_cmp_eq_u32 s{sA}, 0\ns_cselect_b32 s{sA}, 0, {OOB}",
                        f"v_add_u32 v{vIV}, s{sA}, v{vSIG}\nv_mov_b32 v{vRSTD}, s0", f"s_mov_b32 s{sA}, {EPOCH}", f"buffer_store_dword v{vRSTD}, v{vIV}, {s(WS,4)}, s{sA} offen sc1")], 21, 1)
        self.wq_tok = []; dm = []
        if L == 0:
            for c in range(10): dm += self.dma4(sWQ, 16 * KB * c, 16 * KB * c, self.wq_tok)
            spread(ev, [self.touch(sWQ, sH16, 32 * KB * k) for k in range(2, 5)], 30, 36)
            if not sh: spread(ev, dm[:4], 96, 4); dm = dm[4:]
        sl = 0; q = []; ch = o.get("ch5", 2); assert not (sh and ch > 1)
        for s0 in range(0, 8, ch):
            for i in range(4):
                for nt in range(5):
                    for stp in range(s0, s0 + ch):
                        self.fine(f"d{L}", sl)
                        for g in pre.pop(sl, []): self.do(g)
                        d = ACC[i] + 4 * nt
                        E(f"v_mfma_f32_16x16x32_bf16 {v(d,4)}, {R(self.WDF[5*stp+nt],4)}, {R(self.HF[(stp,i)],4)}, {'0' if stp == 0 and i < 3 else v(d,4)}")
                        for g in ev.pop(sl, []): q += self.flat(g)
                        vv = val1.get(stp + 1)
                        if vv and 20 - sl % 20 <= len(vv): self.do(vv.pop(0))
                        elif q and (sl % 5 != 4 or len(q) > 3): self.do(q.pop(0))
                        sl += 1
                for stp in range(s0, s0 + ch):
                    if self.HF[(stp, i)] >= AG or (self.HF[(stp, i)] < 176 and not sh): self.pool.put(self.HF[(stp, i)])
            for f in range(5 * s0, 5 * (s0 + ch)):
                qq = self.WDF[f]
                assert not (sh and 176 <= qq < 244 and s0 > 3)
                if qq >= AG or qq < 176: self.pool.put(qq)
        for k in sorted(ev):
            for g in ev[k]: q.append(g)
        for g in q: self.do(g)
        assert not pre
        self.stamp("  8 steps")
        PT = 108 if sh else 176
        live = [self.WDF[f] for f in range(40, 60)] + [self.HF[(stp, i)] for stp in range(8, 12) for i in range(4)]
        assert not [q for q in live if PT <= q < PT + 60], live
        steps = [([self.WDF[5 * stp + nt] for nt in range(5)], [self.HF[(stp, i)] for i in range(4)]) for stp in range(8, 12)]
        bg = (late2 if sh else []) + dm[:12]; dm = dm[12:]
        n = o.get("wq5", 16 if sh else 12)
        post = (self.cs_loads(CSQ, 4 * KB, 4, 136) if L == 0 else []) + dm[:n]
        self.wq_late = dm[n:]
        self.reduce_and_publish(ACC, steps, 100 * KB, PT, 2 * L + 2, 512 + 4 * L, L == 1, bg, post, bg0=0, bgstep=4, vals=vals)
        self.stamp(f"L{L} P5 done")
    def finish(self):
        E = self.E
        if self.o.get("echo"):
            E(f"s_sub_u32 s{sA}, s{sTS+2}, s{sTS}\ns_mul_i32 s{sA}, s{sA}, {self.o.get('emul', 1)}\ns_lshr_b32 s{sA}, s{sA}, {2 if self.o.get('ecyc') else 0}\ns_memrealtime {s(sTS,2)}"); E.wait_smem()
            E.place("ECHO")
            E(f"s_memrealtime {s(sTS+2,2)}"); E.wait_smem()
            E(f"s_sub_u32 s{sB}, s{sTS+2}, s{sTS}\ns_cmp_lt_u32 s{sB}, s{sA}\ns_cbranch_scc1 ECHO")
        if self.stamps:
            E(f"v_readlane_b32 s{sB}, v{vTS2}, 63\ns_lshl_b32 s{sA}, s{sB}, 2\ns_add_u32 s{sA}, s{sA}, s{sW}\ns_lshl_b32 s{sA}, s{sA}, 8\ns_add_u32 s{sA}, s{sA}, {DBG}")
            E(f"v_lshlrev_b32 v{vT}, 2, v0\nbuffer_store_dword v{vTS}, v{vT}, {s(WS,4)}, s{sA} offen")
            E(f"s_add_u32 s{sA}, s{sA}, 0x40000\nbuffer_store_dword v{vTS2}, v{vT}, {s(WS,4)}, s{sA} offen")
        E("s_endpgm"); E.raw(";@END")
        for t in self.tail: E.raw(t.rstrip("\n"))
        E.raw("main_end:")
    def build(self):
        E = self.E
        globals()["NX0"] = self.o.get("nx0", 10)
        globals()["FINAL"] = ("", "sc1", "nt", "sc0 sc1")[self.o.get("fin", 0)]
        g = globals(); ru = self.o.get("reuse", 7)
        if ru & 1: g["HB_STRIDE"] = 0
        if ru & 2: g["OB_STRIDE"] = 0
        if ru & 8: g["KV_STRIDE"] = 0
        E.raw("; @launch grid=(256,1,1) block=(256,1,1) lds=163840")
        E.raw('.amdgcn_target "amdgcn-amd-amdhsa--gfx950"')
        self.prologue()
        n = 0
        for L in range(2):
            for ph in (self.p1, self.p2, self.p3, self.p4, self.p5):
                if n < self.stop: ph(L)
                n += 1
        self.finish()
        kernel_desc(E, KNAME, 256, 256, 102)
        return stubs.apply(E.text(), sW, self.o.get("verbose") == 3)

if __name__ == "__main__":
    out = sys.argv[1]
    opts = dict((k, int(x)) for k, x in (a_.split("=") for a_ in sys.argv[3:]))
    g = Gen(stamps=len(sys.argv) > 2 and sys.argv[2] == "ts", opts=opts, mapping="grp" if opts.get("grp") else "mix")
    t = g.build()
    open(out, "w").write(t)
    print(len(t), "bytes", g.E.ninst, "insts", g.E.nnop, "nop states", g.E.stats)
    if g.stamps: open(out + ".names", "w").write("\n".join(g.stnames))
```

```python
import sys, math, struct, stubs
from emit import *
from layout import *
from startup9 import Startup, NRACE, sTK, vTK, sONE, sRHO, OOB
KNAME = "interleave_layers__sliding_block__glu_gated_geglu__prompt_kernel"

def f2u(x): return hex(struct.unpack("<I", struct.pack("<f", x))[0])

WS = 4; OUT = 8; XIN = 12
sR, sJ, sW, sTH, sNB = 16, 17, 18, 19, 20
sWQ, sWGU, sWO, sWD, sLW = 21, 22, 23, 24, 25
sXB, sKVme, sOme, sHme = 26, 27, 28, 29
sT0 = 30
sMASK = 32
sRET = 64
sT16 = 66; sT16H = 70
sA, sB, sC, sD, sE_, sF = 74, 75, 76, 77, 78, 79
sFL = 80
sHAL = 89
sKP, sKC, sKT = 91, 92, 3
sRM = 93
sTS = 94
sTP, sTC, sWP, sWC = 98, 99, 100, 101
sP = 2
vL16, vL16b, vL16c = 1, 2, 3
vU = 4; vPOS = 5; vST = 6; vCS = 7; vSIG = 8; vONE = 9
vRW = 10
vXW = 14; vXW5 = 15; vO4 = 16; vSW = 17; vRSTD = 18; vT = 19
vRES = 20
vNM = 40
vC1, vC2, vIV = 44, 45, 46
vKR = 47
vRM, vRM5, vTS, vTS2 = 250, 251, 252, 253
vP = 255; vDUM = 254; vSR = 255
sAR = 1
vTL = 7
sPV = 15
sH8, sH16, sHX = 12, 13, 14
SLOT = 5248; ONES = 12 * SLOT; EPS = 1e-5
AG = 256
EARLY = [216 + 4 * i for i in range(7)]
FINAL = ""
NX0 = 10

class Opts(dict):
    L = 0
    def get(self, k, d=None): return dict.get(self, f"{k}_{self.L}", dict.get(self, k, d))

class Pool:
    def __init__(self, quads=()): self.free = list(quads)
    def get(self): return self.free.pop(0)
    def put(self, q): self.free.append(q)
    def add(self, qs): self.free += list(qs)

def spread(ev, groups, start, step):
    for i, g in enumerate(groups): ev.setdefault(int(start + i * step), []).append(g)

class Gen:
    def __init__(self, stop=99, stamps=False, mapping="mix", opts=None):
        self.E = Emit(); self.stop = stop; self.stamps = stamps; self.mapping = mapping
        self.sites = []; self.nst = 0; self.stnames = []; self.tail = []; self.o = Opts(opts or {})
    def do(self, g):
        if isinstance(g, tuple):
            for x in g: r = self.do(x)
            return r
        if callable(g): return g()
        return self.E(g)
    @staticmethod
    def flat(g):
        if isinstance(g, tuple): return list(g)
        if callable(g): return [g]
        l = g.split("\n")
        if not l[-1].startswith(("buffer_", "ds_", "s_load")): return [g]
        return [x for x in ("\n".join(l[:-1]), l[-1]) if x]
    def stamp(self, name):
        if self.o.get("verbose") == 2:
            print(f"{name:18s} issue cost {self.E.cost - getattr(self, 'c0', 0):6d}  vmem {self.E.stats.get('vmem', 0) - getattr(self, 'v0', 0)}"); self.c0 = self.E.cost; self.v0 = self.E.stats.get('vmem', 0)
        ec = self.o.get("echo", 0)
        if ec and name == ("", "WQ synced", "L0 halo in", "L0 P4 synced", "L1 P1 synced", "L1 P5 done", "L1 P4 synced", "L1 halo in", "L1 P3 synced", "L1 P4 p2", "L0 P3 synced")[ec]:
            self.E(f"{'s_memtime' if self.o.get('ecyc') else 's_memrealtime'} {s(sTS+2,2)}"); self.E.wait_smem()
        if ec and self.o.get("e0") and name == ("", "WQ synced", "L0 halo in", "L0 P4 synced", "L1 P1 synced", "L1 P5 done", "L1 P4 synced", "L1 halo in", "L1 P3 synced", "L1 P4 p2", "L0 P3 synced")[self.o["e0"]]:
            self.E(f"{'s_memtime' if self.o.get('ecyc') else 's_memrealtime'} {s(sTS,2)}"); self.E.wait_smem()
        if not self.stamps or self.E.smem_out: return
        if self.o.get("ends") and name not in ("L1 P5 done", "L1 P1 synced", "WQ synced", "L0 P4 synced", "L1 P4 synced", "L0 P3 synced", "L1 P3 synced", "L0 halo in", "L1 halo in") + (("L0 P1 passA", "L0 att a", "L0 P4 p0", "L0 P4 p1", "L0 P4 p2", "st S2 read") if self.o["ends"] == 2 else ()): return
        E = self.E
        E(f"s_memrealtime {s(sTS,2)}\ns_memtime {s(sTS+2,2)}"); E.wait_smem()
        E(f"v_writelane_b32 v{vTS}, s{sTS}, {self.nst}\nv_writelane_b32 v{vTS2}, s{sTS+2}, {self.nst}")
        self.nst += 1; self.stnames.append(name)
    def dma4(self, sbase, goff, ldsoff, rec=None):
        fl = self.wfl()
        g = [f"s_add_u32 m0, s{sLW}, {ldsoff}\ns_add_u32 s{sT0}, s{sbase}, {goff}\nbuffer_load_dwordx4 v{vL16}, {s(WS,4)}, s{sT0} offen {fl} lds"]
        for i in range(1, 4): g.append(f"buffer_load_dwordx4 v{vL16}, {s(WS,4)}, s{sT0} offen offset:{1024*i} {fl} lds")
        h = g[0].split("\n")
        def guarded(x, r):
            def fn():
                assert self.E.lastw["m0"] == h[0] and self.E.lastw[f"s{sT0}"] == h[1], "DMA group interleaved"
                t = self.E(x)
                if r is not None: r.append(t)
            return fn
        return [g[0], guarded(g[1], None), guarded(g[2], None), guarded(g[3], rec)]
    def wread(self, dst, ldsaddr):
        return f"ds_read_b128 {R(dst,4)}, v{vL16+(ldsaddr >> 16)} offset:{ldsaddr & 0xffff}"
    def signal(self, sreg, imm, tok, va=None):
        def fn():
            self.E.wait(vm=tok() if callable(tok) else tok)
            self.E(f"buffer_atomic_add v{vONE}, v{va or vSIG}, {s(WS,4)}, s{sreg} offen offset:{imm} sc1")
        return fn
    def poll_issue(self, sreg, imm):
        if self.o.get("spoll", 1): return f"s_load_dword s{sPV}, {s(WS,2)}, s{sreg} offset:{imm} glc"
        return f"buffer_load_dword v{vP}, v{vSIG}, {s(WS,4)}, s{sreg} offen offset:{imm} sc1"
    def poll_check(self, sreg, imm, thr, slp=None):
        def fn():
            E = self.E
            Ls, Lb = E.label("SP"), E.label("BK")
            sc = self.o.get("spoll", 1)
            assert E.lastw.get(f"s{sPV}") == self.poll_issue(sreg, imm), "poll checked without its load"
            E.lastw[f"s{sPV}"] = None
            if sc: E.wait_smem()
            else: E(f"v_readfirstlane_b32 s{sPV}, v{vP}")
            E(f"s_cmp_ge_u32 s{sPV}, {thr}\ns_cbranch_scc0 {Ls}")
            E.place(Lb)
            sl = self.o.get("slp", 0) if slp is None else slp
            cnt = ""
            if self.stamps and self.o.get("ends"):
                self.sites.append(f"{sreg}/{imm}")
                cnt = f"s_sub_u32 s{sPV}, 0x200001, s{sF}\nv_writelane_b32 v{vTS2}, s{sPV}, {18 + len(self.sites)}\n"
            self.tail.append(f"{Ls}:\ns_mov_b32 s{sF}, 0x200000\n{Ls}_l:\n" + cnt + (f"s_sleep {sl}\n" if sl else "") + self.poll_issue(sreg, imm) +
                             ("\ns_waitcnt lgkmcnt(0)\n" if sc else f"\ns_waitcnt vmcnt(0)\nv_readfirstlane_b32 s{sPV}, v{vP}\ns_nop 0\n") +
                             f"s_cmp_ge_u32 s{sPV}, {thr}\ns_cbranch_scc1 {Lb}\ns_sub_u32 s{sF}, s{sF}, 1\ns_cmp_lg_u32 s{sF}, 0\n"
                             f"s_cbranch_scc1 {Ls}_l\ns_branch {Lb}")
        return fn
    def validate(self, quads, reload, tmp):
        rs = [q + e for q in quads for e in range(4)]
        ops = [f"v_max3_u32 v{tmp}, v{rs[0]}, v{rs[1]}, v{rs[2]}"]
        rest = rs[3:]
        while rest:
            if len(rest) >= 2: ops.append(f"v_max3_u32 v{tmp}, v{rest[0]}, v{rest[1]}, v{tmp}"); rest = rest[2:]
            else: ops.append(f"v_max_u32 v{tmp}, v{rest[0]}, v{tmp}"); rest = []
        ops.append(f"v_cmp_eq_u32 vcc, -1, v{tmp}")
        def br():
            E = self.E
            Ls, Lb = E.label("RT"), E.label("RB")
            E(f"s_cbranch_vccnz {Ls}"); E.place(Lb)
            cnt = ""
            if self.stamps and self.o.get("ends"):
                self.sites.append("val")
                cnt = f"s_sub_u32 s{sTS}, 0x200001, s{sF}\nv_writelane_b32 v{vTS2}, s{sTS}, {18 + len(self.sites)}\n"
            self.tail.append(f"{Ls}:\ns_mov_b32 s{sF}, 0x200000\n{Ls}_l:\n" + cnt + "\n".join(reload) + "\ns_waitcnt vmcnt(0)\n" + "\n".join(ops) +
                             f"\ns_sub_u32 s{sF}, s{sF}, 1\ns_nop 0\ns_cbranch_vccz {Lb}\ns_cmp_lg_u32 s{sF}, 0\ns_cbranch_scc1 {Ls}_l\ns_branch {Lb}")
        g = ["\n".join(ops[k:k + 2]) for k in range(0, len(ops), 2)]
        n0 = len(self.E.out); g0 = g[0]
        def first():
            for q in quads:
                assert any(x.startswith(f"buffer_load_dwordx4 {v(q,4)},") for x in self.E.out[n0:]), q
            self.E(g0)
        return [first] + g[1:] + [br]
    def hpoison(self, reg, sr):
        r = []
        for p in (1, 2):
            r += [f"s_add_u32 s{sr}, s{sJ}, {p}\ns_and_b32 s{sr}, s{sr}, 3", f"s_lshl_b32 s{sr}, s{sr}, 11\ns_and_b32 s{sF}, s{sHme}, 0xffffe000\ns_add_u32 s{sr}, s{sr}, s{sF}\n"
                  f"buffer_store_dwordx4 {v(reg,4)}, v{vL16}, {s(WS,4)}, s{sr} offen sc1", f"buffer_store_dwordx4 {v(reg,4)}, v{vL16}, {s(WS,4)}, s{sr} offen offset:1024 sc1"]
        return r
    def xpoison(self, idx, reg):
        if not self.o.get("early", 0): return []
        return [f"s_add_u32 s{sP}, s{sT16+3}, {self.xt(idx)}\ns_mul_i32 s{sF}, s{sNB}, {5*KB}\ns_add_u32 s{sP}, s{sP}, s{sF}\nbuffer_store_dwordx4 {v(reg,4)}, v{vXW}, {s(WS,4)}, s{sP} offen sc1",
                f"buffer_store_dwordx4 {v(reg,4)}, v{vXW}, {s(WS,4)}, s{sP} offen offset:512 sc1",
                f"s_add_u32 s{sP}, s{sP}, 4096\nbuffer_store_dwordx2 {v(reg,2)}, v{vXW5}, {s(WS,4)}, s{sP} offen sc1",
                f"s_lshl_b32 s{sP}, s{sR}, 4\ns_add_u32 s{sP}, s{sP}, s{sJ}\ns_lshl_b32 s{sP}, s{sP}, 2\ns_add_u32 s{sP}, s{sP}, s{sW}",
                f"s_lshl_b32 s{sP}, s{sP}, 7\ns_add_u32 s{sP}, s{sP}, {STAT + idx*128*KB}\nbuffer_store_dwordx2 {v(reg,2)}, v{vSW}, {s(WS,4)}, s{sP} offen sc1"]
    def nan_net(self, acc, xl, items, allw, ring, imm, stat):
        xr = self.xr
        def fn():
            E = self.E
            Ls, Lb = E.label("NN"), E.label("NB")
            E(f"v_cmp_{'o' if self.o.get('forcenan') else 'u'}_f32 vcc, v{acc}, v{acc}\ns_cbranch_vccnz {Ls}"); E.place(Lb)
            F = Emit(); F.raw(f"{Ls}:")
            if self.stamps and self.o.get("ends"):
                self.sites.append("nan"); F(f"s_mov_b32 s{sTS}, 1\nv_writelane_b32 v{vTS2}, s{sTS}, {18 + len(self.sites)}")
            F("s_waitcnt vmcnt(0) lgkmcnt(0)"); F.settle()
            F(f"s_mov_b32 s{sF}, 0x200000"); F.raw(f"{Ls}_p:")
            F(self.poll_issue(sWC, imm + 8)); F.wait_smem()
            F(f"s_cmp_ge_u32 s{sPV}, 16\ns_cbranch_scc1 {Ls}_q\ns_sub_u32 s{sF}, s{sF}, 1\ns_cmp_lg_u32 s{sF}, 0\ns_cbranch_scc1 {Ls}_p"); F.raw(f"{Ls}_q:")
            F(f"s_mov_b32 s{sF}, s{sE_}")
            for g in xl: F(g)
            F(f"s_mov_b32 s{sE_}, s{sF}\ns_mov_b32 s{sF}, s{sC}")
            for g in stat: F(g)
            F(f"s_mov_b32 s{sC}, s{sF}")
            f = 0
            for k in range(6): F(self.wread(ring + 4 * k, allw[k]))
            for it in items:
                if it[0] == "cs": F(f"v_mfma_f32_32x32x16_bf16 {v(it[1],16)}, {R(it[2],4)}, {v(vNM,4)}, {v(it[1],16)}")
                else:
                    F(f"v_mfma_f32_32x32x16_bf16 {v(it[0],16)}, {R(ring+4*(f%6),4)}, {a(xr(it[1]),4)}, {'0' if it[2] else v(it[0],16)}")
                    F(self.wread(ring + 4 * (f % 6), allw[f + 6])); f += 1
            F.drain(); F.settle()
            F(f"s_branch {Lb}")
            self.tail.append(F.text())
        return fn
    def idle_consts(self):
        self.nC0 = len(self.E.out)
        for x in self.att_consts(): self.E(x.replace(s(sC, 2), "s[64:65]"))
    def wfl(self): return ("sc1", "", "sc0", "nt", "sc0 sc1")[self.o.get("wfl", 0)]
    def window(self, k):
        if self.o.get("stub", 70) >> k & 1: self.E.raw(";@WIN")
    def poll_block(self, sreg, imm, thr):
        if not self.preissued: self.E(self.poll_issue(sreg, imm))
        if imm >= 512 and self.o.get("cstW", 3) == 2: self.idle_consts()
        self.window(4 if imm < 512 else 6)
        self.poll_check(sreg, imm, thr)()
    def T(self, kind, L): return 1024 * kind + 4 * L if kind < 4 else 8 + 4 * L
    def touch(self, sreg, sh, off):
        def fn():
            self.E(f"s_add_u32 s{sP}, s{sreg}, s{sh}\ns_add_u32 s{sP}, s{sP}, {off}\nbuffer_load_dword v{vDUM}, v{vTL}, {s(WS,4)}, s{sP} offen sc1")
            self.E.pend.pop(f"v{vDUM}", None)
        m = self.o.get("touch", 0)
        return fn if (m & (1 if sh == sHX else 2)) else (lambda: None)
    def prologue(self):
        E = self.E
        kernel_header(E, KNAME)
        if self.stamps: E(f"s_memrealtime {s(sTS,2)}\ns_memtime {s(sTS+2,2)}")
        if self.o.get("echo"): E(f"s_memrealtime {s(sTS,2)}")
        E(f"s_load_dwordx2 {s(WS,2)}, s[0:1], 72\ns_load_dwordx2 {s(OUT,2)}, s[0:1], 56\ns_load_dwordx2 {s(XIN,2)}, s[0:1], 0")
        E("s_load_dwordx2 s[32:33], s[0:1], 8\ns_load_dwordx2 s[82:83], s[0:1], 16\ns_load_dwordx4 s[84:87], s[0:1], 32\ns_load_dwordx2 s[88:89], s[0:1], 48")
        E("s_cmp_ge_u32 s2, 256\ns_cbranch_scc1 EXIT")
        self.tail.append("EXIT:\ns_endpgm")
        Lp = E.label("PC")
        E(f"s_getpc_b64 {s(sRET,2)}"); E.place(Lp)
        E(f"s_lshr_b32 s{sA}, s2, 3\nv_lshl_add_u32 v{vT}, v0, 5, s{sA}\nv_lshlrev_b32 v{vT}, 7, v{vT}\nv_min_u32 v{vT}, main_end-{Lp}-4, v{vT}")
        E(f"global_load_dword v247, v{vT}, {s(sRET,2)}")
        E(f"s_mov_b32 s{WS+2}, {WS_BYTES - 2*MB}\ns_mov_b32 s{WS+3}, 0x00020000")
        for b in (OUT, XIN): E(f"s_mov_b32 s{b+2}, {2048*640*2}\ns_mov_b32 s{b+3}, 0x00020000")
        E(f"v_lshrrev_b32 v{vT}, 6, v0\nv_and_b32 v0, 63, v0\nv_readfirstlane_b32 s{sW}, v{vT}")
        E(f"s_and_b32 s{sA}, s2, 7\ns_lshr_b32 s{sB}, s2, 3")
        if self.mapping == "mix":
            E(f"s_lshr_b32 s{sC}, s{sA}, 1\ns_lshl_b32 s{sC}, s{sC}, 2\ns_lshr_b32 s{sR}, s{sB}, 3\ns_add_u32 s{sR}, s{sR}, s{sC}")
            E(f"s_and_b32 s{sC}, s{sA}, 1\ns_lshl_b32 s{sC}, s{sC}, 3\ns_and_b32 s{sJ}, s{sB}, 7\ns_add_u32 s{sJ}, s{sJ}, s{sC}")
        else:
            E(f"s_lshr_b32 s{sR}, s{sB}, 4\ns_lshl_b32 s{sC}, s{sA}, 1\ns_add_u32 s{sR}, s{sR}, s{sC}\ns_and_b32 s{sJ}, s{sB}, 15")
        E(f"s_and_b32 s{sTH}, s{sJ}, 1\ns_lshr_b32 s{sNB}, s{sJ}, 1\ns_lshl_b32 s{sLW}, s{sW}, 12")
        E(f"v_lshlrev_b32 v{vL16}, 4, v0")
        if self.stamps: E(f"v_mov_b32 v{vTS}, 0\nv_mov_b32 v{vTS2}, 0")
        S = self.S = Startup(self, sys.modules[__name__])
        S.roles0(); S.s1_load(); S.x_touch()
        if self.stamps:
            E(f"v_writelane_b32 v{vTS2}, s2, 63")
            E(f"v_writelane_b32 v{vTS}, s{sTS}, 0\nv_writelane_b32 v{vTS2}, s{sTS+2}, 0")
            self.nst = 1; self.stnames.append("entry")
        E(f"s_sub_u32 s{sA}, 0, s{WS}\ns_and_b32 s{sA}, s{sA}, 0x1fffff\ns_add_u32 s{WS}, s{WS}, s{sA}\ns_addc_u32 s{WS+1}, s{WS+1}, 0")
        S.leader_clear()
        E(f"v_mov_b32 v{vTK+1}, {EPOCH}\nbuffer_load_dword v{vTK}, v{vTK+1}, {s(WS,4)}, 0 offen sc1")
        self.stamp("st S1 issued")
        if self.o.get("alpos", 0): E.raw(";@ALIGN"); self.window(10)
        S.roles(82, 84, 86, 88)
        S.s2_addrs()
        self.s2q = [(lambda i=i: setattr(S, "tok2", E(S.s2_load(i)))) for i in range(8)]
        if self.o.get("s2when", 2) == 0:
            while self.s2q: self.s2q.pop(0)()
        E(f"s_lshl_b32 s{sA}, s{sR}, 2\ns_add_u32 s{sA}, s{sA}, s{sW}\ns_mul_i32 s{sTK}, s{sA}, {40*KB}")
    def masks(self):
        r = []
        for i in range(16):
            m = 0
            for l in range(64):
                if (i & 3) + 8 * (i >> 2) + 4 * (l >> 5) <= (l & 31): m |= 1 << l
            r.append(f"s_mov_b32 s{sMASK+2*i}, {hex(m & 0xffffffff)}\ns_mov_b32 s{sMASK+2*i+1}, {hex(m >> 32)}")
        return r
    def x_bounce(self, T, wdm):
        E = self.E; S = self.S
        XA = 96; XR = 100; TM = 104; PA, PD = 240, 242
        o = self.o; X0 = 64 * KB
        E(f"v_lshrrev_b32 v48, 3, v0\nv_mul_u32_u24 v48, 1280, v48\nv_and_b32 v49, 7, v0\nv_lshrrev_b32 v50, 4, v0\nv_xor_b32 v49, v49, v50\nv_lshl_add_u32 v{XA}, v49, 4, v48")
        E(f"v_xor_b32 v{XA+1}, 64, v{XA}\nv_add_u32 v{XA+2}, {2*9216}, v{XA}\nv_add_u32 v{XA+3}, {3*9216}, v{XA+1}\nv_add_u32 v{XA+1}, 9216, v{XA+1}")
        tok = []
        def dma(ch):
            E(f"s_add_u32 m0, s{sLW}, {X0 + 16*KB*(ch%4)}\ns_add_u32 s{sE_}, s{sTK}, {128*ch}")
            for i in range(4): t = E(f"buffer_load_dwordx4 v{XA+i}, {s(XIN,4)}, s{sE_} offen offset:{1024*i} lds")
            tok.append(t)
        E(f"s_mul_i32 s{sWQ}, s{sJ}, {160*KB}\ns_add_u32 s{sWQ}, s{sWQ}, s{sLW}\ns_add_u32 s{sWQ}, s{sWQ}, {WQ}")
        E(f"v_min_u32 v{vSIG}, 1, v0\nv_lshlrev_b32 v{vSIG}, 28, v{vSIG}\nv_mov_b32 v{vONE}, 1")
        E(f"v_and_b32 v48, 31, v0\nv_lshrrev_b32 v49, 5, v0\nv_bfe_u32 v50, v0, 1, 3\nv_xor_b32 v49, v49, v50\nv_lshlrev_b32 v49, 4, v49\nv_lshl_add_u32 v48, v48, 7, v49")
        q16 = o.get("q16", 1)
        if q16: E(f"v_and_b32 v48, 15, v0\nv_lshrrev_b32 v49, 4, v0\nv_xor_b32 v49, v49, v50\nv_lshlrev_b32 v49, 4, v49\nv_lshl_add_u32 v48, v48, 7, v49")
        E(f"s_add_u32 s{sA}, s{sLW}, {X0}\nv_add_u32 v{XR}, s{sA}, v48")
        for k in range(1, 4): E(f"v_xor_b32 v{XR+k}, {64*(k & 1) + 1024*(k & 2) if q16 else 32*k}, v{XR}")
        E(f"v_mov_b32 v{T}, 0\nv_mov_b32 v{T+1}, 0\nv_mov_b32 v{T+4}, 0\nv_mov_b32 v{T+5}, 0")
        E(f"s_lshl_b32 s{sA}, s{sNB}, 12\ns_add_u32 s{sA}, s{sA}, {F1}\ns_sub_u32 s{sB}, 15, s{sR}\ns_mov_b32 s{sC}, {F1 + 15*128}")
        E(f"v_and_b32 v49, 3, v0\nv_min_u32 v49, 2, v49\nv_add_u32 v49, s{sB}, v49\nv_min_u32 v49, 15, v49\nv_lshl_add_u32 v49, v49, 11, s{sC}")
        E(f"v_lshlrev_b32 v174, {o.get('vsh', 7)}, v0\nv_add_u32 v174, {VOTE}, v174")
        E(f"v_lshl_add_u32 v48, v0, 7, s{sA}\nv_cmp_gt_u32 vcc, 32, v0\nv_cndmask_b32 v{PA}, v49, v48, vcc")
        E(f"s_lshl_b32 s{sA}, s{sNB}, 12\ns_add_u32 s{sA}, s{sA}, {F2}\nv_and_b32 v48, 31, v0\nv_lshl_add_u32 v{PA+1}, v48, 7, s{sA}")
        prep = S.s2_prep if not o.get("s2when", 2) else (lambda: None)
        if o.get("cfirst", 1): self.prologue2(); prep()
        if not o.get("alpos", 0): E.raw(";@ALIGN")
        self.window(0)
        n0 = o.get("xpre", 0)
        for ch in range(n0): dma(ch)
        S.s1_proc()
        self.stamp("st S1 stored")
        for ch in range(n0, 2): dma(ch)
        if not o.get("cfirst", 1): self.prologue2(); prep()
        E(f"s_mov_b32 s{sA}, 0x9e3779b1\nv_mul_lo_u32 v{vTK}, v{vTK}, s{sA}\nv_add_u32 v{vTK}, 0x7f4a7c15, v{vTK}\nv_xor_b32 v{vTK+1}, 0x5bd1e995, v{vTK}")
        E(f"v_readfirstlane_b32 s0, v{vTK}")
        if o.get("racepos", 1) == 0: S.leader_race()
        if n0 < 3: dma(2)
        if o.get("racepos", 1) == 1: S.leader_race()
        self.window(1)
        def f1(): E.wait(vm=tok[n0] - 3); E("s_barrier"); S.flag1(); self.stamp("st F1")
        if n0 == 0: f1()
        dma(3)
        self.s2r = None
        nx = o.get("s2x", 10) if not o.get("s2when", 2) else 0
        if nx: self.s2r = S.s2_read()
        pi, pc = o.get("f1poll", 5), o.get("f1chk", 8)
        TMB = [TM, 80]
        def dots(ch):
            tm = TMB[ch & 1]
            for e in range(16):
                T_ = T + (4 if q16 and e >= 8 else 0)
                E(f"v_dot2c_f32_bf16 v{T_}, s{sONE}, v{tm+e}\nv_dot2c_f32_bf16 v{T_+1}, v{tm+e}, v{tm+e}")
        for ch in range(10):
            if n0 and ch == n0: f1()
            E.wait(vm=tok[ch])
            for k in range(4): E(f"ds_read_b128 {v(TMB[ch & 1]+4*k,4)}, v{XR+k} offset:{16*KB*(ch%4)}")
            for k in range(4): E(f"ds_read_b128 {a(16*ch+4*k,4)}, v{XR+k} offset:{16*KB*(ch%4)}")
            if ch == pi:
                E(f"s_cmp_eq_u32 s{sW}, 0\ns_cselect_b32 s{sA}, 0, {OOB}\nv_add_u32 v{PA}, s{sA}, v{PA}")
                E(S.vpoll_issue(PA, PD))
            if ch == o.get("vpos", 13) - 100: E(f"buffer_load_dword v175, v174, {s(WS,4)}, 0 offen sc1")
            if ch == o.get("resch", 1):
                for x in self.tile_addrs(140, 143): E(x)
                for i in range(3): rtok = E(f"s_add_u32 m0, s{sLW}, {16*KB + 1024*i}\nbuffer_load_dwordx4 v{140+i}, {s(XIN,4)}, s{sRM} offen lds")
            if ch == 7:
                E.wait(vm=rtok)
                E(f"ds_read_b128 v[136:139], v{vRM} offset:{16*KB}\nds_read_b128 v[140:143], v{vRM} offset:{16*KB+16}\nds_read_b64 v[144:145], v{vRM5} offset:{16*KB+128}")
            if ch == 8:
                for i in range(10): E(f"v_lshlrev_b32 v{vRES+2*i}, 16, v{136+i}\nv_and_b32 v{vRES+2*i+1}, 0xffff0000, v{136+i}")
            if ch: dots(ch - 1)
            E.drain(vm=False)
            if ch + 4 < 10: dma(ch + 4)
            if ch >= o.get("s2ch", 0) and self.s2q:
                for _ in range(min(o.get("s2k", 8), len(self.s2q))): self.s2q.pop(0)()
                if not self.s2q: S.s2_prep()
            for _ in range(o.get("s2n", 2)):
                if ch < nx and ch >= o.get("s2f", 5) and self.s2r[1]: E(self.s2r[1].pop(0))
            if ch == pc:
                Lw = E.label("PW")
                E.need(regs(v(PD, 2)))
                E(f"s_cmp_lg_u32 s{sW}, 0\ns_cbranch_scc1 {Lw}")
                S.vpoll_check(PA, PD, 4)()
                E.place(Lw)
                E("s_barrier")
                self.stamp("WQ synced")
            if ch >= pc and wdm:
                for _ in range(o.get("wfirst", 1)):
                    for g in wdm.pop(0): self.do(g)
            if ch == o.get("s2rd", 99):
                assert ch >= pc and S.tok2 <= tok[pc]
                self.s2r = S.s2_read()
        self.dots9 = lambda: dots(9)
        if not o.get("d9", 0): dots(9)
        self.stamp("st x done")
    def sharers(self):
        return [f"s_and_b32 s{sA}, s{sR}, 3\ns_lshl_b32 s{sH8}, s{sA}, 1\ns_add_u32 s{sH8}, s{sH8}, s{sTH}\ns_lshl_b32 s{sH8}, s{sH8}, 11",
                f"s_and_b32 s{sA}, s{sR}, 3\ns_lshl_b32 s{sH16}, s{sA}, 2\ns_add_u32 s{sH16}, s{sH16}, s{sW}\ns_lshl_b32 s{sH16}, s{sH16}, 11\ns_sub_u32 s{sH16}, s{sH16}, s{sLW}",
                f"s_and_b32 s{sHX}, s{sJ}, 7\ns_lshl_b32 s{sHX}, s{sHX}, 11"]
    def prologue2(self):
        E = self.E; NREP = self.o.get("nrep", 4)
        E(f"s_mul_i32 s{sWGU}, s{sJ}, {240*KB}\ns_add_u32 s{sWGU}, s{sWGU}, s{sLW}\ns_add_u32 s{sWGU}, s{sWGU}, {WGU}")
        E(f"s_mul_i32 s{sWO}, s{sNB}, {100*KB}\ns_mul_i32 s{sA}, s{sW}, {25*KB}\ns_add_u32 s{sWO}, s{sWO}, s{sA}\ns_add_u32 s{sWO}, s{sWO}, {WO}")
        E(f"s_mul_i32 s{sWD}, s{sNB}, {240*KB}\ns_mul_i32 s{sA}, s{sW}, {60*KB}\ns_add_u32 s{sWD}, s{sWD}, s{sA}\ns_add_u32 s{sWD}, s{sWD}, {WD}")
        E(f"s_lshl_b32 s{sA}, s{sR}, 2\ns_add_u32 s{sA}, s{sA}, s{sW}")
        for i in range(9):
            E(f"s_cmp_lt_u32 s{sA}, {8-i}\ns_cselect_b32 s{sFL+i}, 0x3f803f80, 0x3f800000" if False else
              f"s_cmp_lt_u32 s{sA}, {8-i}\ns_cselect_b32 s{sFL+i}, 0x3f80, 0\ns_or_b32 s{sFL+i}, s{sFL+i}, 1.0")
        E(f"v_lshlrev_b32 v{vSR}, 10, v0\nv_mov_b32 v48, {OOB}\nv_cmp_gt_u32 vcc, {NREP}, v0\nv_cndmask_b32 v{vSR}, v48, v{vSR}, vcc")
        for i in range(3):
            E(f"s_add_u32 s{sA}, s{sW}, {1+i}\ns_and_b32 s{sA}, s{sA}, 3\ns_mul_i32 s{sA}, s{sA}, {15*KB}\ns_add_u32 s{sA}, s{sA}, {5*KB*i}\nv_add_u32 v{vRW+i}, s{sA}, v{vL16}")
        E(f"s_mul_i32 s{sA}, s{sW}, {15*KB}\nv_add_u32 v{vRW+3}, s{sA}, v{vL16}")
        t0, t1, t2 = 48, 49, 50
        E(f"v_add_u32 v{vL16b}, 0x10000, v{vL16}\nv_add_u32 v{vL16c}, 0x20000, v{vL16}")
        E(f"v_lshrrev_b32 v{t0}, 4, v0\nv_and_b32 v{t1}, 15, v0")
        E(f"v_lshlrev_b32 v{t2}, 9, v{t0}\nv_lshl_add_u32 v{vU}, v{t1}, 4, v{t2}")
        E(f"v_lshlrev_b32 v{t2}, 10, v{t0}\nv_lshl_add_u32 v{vXW}, v{t1}, 4, v{t2}")
        E(f"v_lshrrev_b32 v{t2}, 1, v{t0}\nv_lshlrev_b32 v{t2}, 9, v{t2}\nv_lshl_add_u32 v{vXW5}, v{t1}, 4, v{t2}")
        E(f"v_and_b32 v{t2}, 1, v{t0}\nv_lshl_add_u32 v{vXW5}, v{t2}, 3, v{vXW5}")
        E(f"s_mul_i32 s{sA}, s{sNB}, {5*KB}\nv_add_u32 v{vXW}, s{sA}, v{vXW}\ns_add_u32 s{sA}, s{sA}, 4096\nv_add_u32 v{vXW5}, s{sA}, v{vXW5}")
        for r_ in (vXW, vXW5): E(f"v_and_b32 v{t2}, 0xffffe000, v{r_}\nv_add_u32 v{r_}, v{t2}, v{r_}")
        E(f"v_lshlrev_b32 v{vTL}, 7, v{t1}\nv_lshl_add_u32 v{vTL}, v{t0}, 28, v{vTL}")
        E(f"v_lshlrev_b32 v{vSW}, 3, v{t1}\nv_lshl_add_u32 v{vSW}, v{t0}, 28, v{vSW}")
        E(f"v_mul_u32_u24 v{t2}, 160, v{t1}\nv_add_u32 v{t2}, s{sLW}, v{t2}\nv_lshl_add_u32 v{vRM}, v{t0}, 5, v{t2}\nv_lshl_add_u32 v{vRM5}, v{t0}, 3, v{t2}")
        E(f"s_lshl_b32 s{sA}, s{sR}, 1\ns_add_u32 s{sA}, s{sA}, s{sTH}\ns_lshl_b32 s{sA}, s{sA}, 2\ns_add_u32 s{sA}, s{sA}, s{sW}")
        E(f"s_mul_i32 s{sA}, s{sA}, {16*1280}\ns_mul_i32 s{sB}, s{sNB}, 160\ns_add_u32 s{sRM}, s{sA}, s{sB}")
        E(f"v_lshrrev_b32 v{t0}, 5, v0\nv_and_b32 v{t1}, 31, v0")
        E(f"v_lshlrev_b32 v{t2}, 2, v{t0}\nv_xor_b32 v{t2}, v{t2}, v{t1}\nv_lshlrev_b32 v{t2}, 4, v{t2}\nv_lshl_add_u32 v{vPOS}, v{t0}, 9, v{t2}")
        E(f"v_lshlrev_b32 v{t2}, 3, v{t1}")
        E(f"s_lshl_b32 s{sA}, s{sW}, 8\nv_lshl_add_u32 v{vST}, v{t0}, 12, v{t2}\nv_add_u32 v{vST}, s{sA}, v{vST}")
        E(f"v_lshlrev_b32 v{t2}, 4, v{t1}\nv_lshl_add_u32 v{vO4}, v{t0}, 3, v{t2}")
        E(f"s_mul_i32 s{sA}, s{sW}, {SLOT}\nv_add_u32 v{vKR}, s{sA}, v{vPOS}")
        for g in self.arena_consts(): E(g)
    def arena_fix(self, VV):
        n = self.o.get("numa", -1)
        assert self.o.get("nrace", NRACE) == 1
        ld = f"buffer_load_dword v{VV}, v174, {s(WS,4)}, 0 offen sc1"
        chk = f"v_sub_u32 v{VV}, v{VV}, v{vTK}\nv_cmp_lt_u32 vcc, 7, v{VV}"
        Ls, Lb = self.E.label("VT"), self.E.label("VB")
        self.tail.append(f"{Ls}:\ns_mov_b32 s{sF}, 0x100000\n{Ls}_l:\ns_sleep 4\n{ld}\ns_waitcnt vmcnt(0)\n{chk}\ns_nop 1"
                         f"\ns_cbranch_vccz {Lb}\ns_sub_u32 s{sF}, s{sF}, 1\ns_cmp_lg_u32 s{sF}, 0\ns_cbranch_scc1 {Ls}_l\ns_branch {Lb}")
        va = [chk + f"\ns_cbranch_vccnz {Ls}\n@{Lb}", f"v_lshrrev_b32 v{VV-1}, 2, v{VV}", f"v_and_b32 v{VV}, 1, v{VV}",
              f"v_cmp_ne_u32 vcc, v{VV}, v{VV-1}\ns_bcnt1_i32_b64 s64, vcc\ns_cmp_ge_u32 s64, 32\ns_cselect_b32 s64, 1, 0",
              f"v_xor_b32 v{VV}, s64, v{VV-1}", f"v_lshlrev_b32 v{VV}, 13, v{VV}",
              f"s_lshr_b32 s65, s{sW}, 1\ns_add_u32 s65, s65, s{sR}\ns_max_u32 s65, s65, 2\ns_sub_u32 s65, s65, 2",
              f"s_lshl_b32 s65, s65, 2\ns_lshl_b32 s64, s{sR}, 2", f"v_readlane_b32 s64, v{VV}, s64", f"v_readlane_b32 s65, v{VV}, s65"]
        r = []
        if self.stamps: r.append(f"v_writelane_b32 v{vTS}, s64, 62")
        if n >= 0:
            r += [f"s_lshr_b32 s64, s{sR}, 3\ns_xor_b32 s64, s64, {n}\ns_lshl_b32 s64, s64, 13",
                  f"s_lshr_b32 s65, s{sW}, 1\ns_add_u32 s65, s65, s{sR}\ns_sub_u32 s65, s65, 2", f"s_bfe_u32 s65, s65, 0x10003\ns_xor_b32 s65, s65, {n}\ns_lshl_b32 s65, s65, 13"]
        own = [sXB, sHme, sKP, sOme, sTP, sTC, sWP, sWC] + [sT16 + i for i in range(8)]
        r += ["\n".join(f"s_add_u32 s{x}, s{x}, s64" for x in own[k:k + 2]) for k in range(0, 16, 2)]
        r += [f"s_cmp_eq_u32 s{sKT}, 0\ns_cselect_b32 s64, s64, s65\ns_cselect_b32 s65, 0, s65",
              f"s_add_u32 s{sHAL}, s{sHAL}, s65\ns_add_u32 s{sKC}, s{sKC}, s64\ns_add_u32 s{sKVme}, s{sKVme}, s64"]
        return va + [r]
    def arena_consts(self):
        NREP = self.o.get("nrep", 4)
        r = [f"s_mul_i32 s{sAR}, s{sR}, {ASTR}\ns_add_u32 s{sAR}, s{sAR}, {ARENA}",
             f"s_lshr_b32 s{sB}, s{sW}, 1\ns_mul_i32 s{sA}, s{sB}, {ASTR}\ns_add_u32 s{sA}, s{sA}, s{sAR}",
             f"s_sub_u32 s{sA}, s{sA}, {2*ASTR}",
             f"s_mul_i32 s{sXB}, s{sW}, {80*KB}\ns_add_u32 s{sXB}, s{sXB}, s{sAR}",
             f"s_lshl_b32 s{sC}, s{sJ}, 14\ns_and_b32 s{sD}, s{sJ}, 3\ns_lshl_b32 s{sD}, s{sD}, 10\ns_add_u32 s{sC}, s{sC}, s{sD}\ns_lshl_b32 s{sHme}, s{sW}, 18\ns_add_u32 s{sHme}, s{sHme}, s{sC}",
             f"s_add_u32 s{sHme}, s{sHme}, s{sAR}\ns_and_b32 s{sD}, s{sW}, 1\ns_lshl_b32 s{sHAL}, s{sD}, 19",
             f"s_add_u32 s{sHAL}, s{sHAL}, s{sC}\ns_add_u32 s{sHAL}, s{sHAL}, s{sA}\ns_add_u32 s{sHAL}, s{sHAL}, {A_KV1}\ns_lshl_b32 s{sC}, s{sJ}, 1",
             f"s_add_u32 s{sKC}, s{sC}, s{sD}\ns_lshl_b32 s{sKC}, s{sKC}, 7\ns_add_u32 s{sKC}, s{sKC}, s{sA}",
             f"s_add_u32 s{sKC}, s{sKC}, {A_KVF}\ns_add_u32 s{sKP}, s{sC}, s{sB}\ns_lshl_b32 s{sKP}, s{sKP}, 7",
             f"s_add_u32 s{sKP}, s{sKP}, s{sAR}\ns_add_u32 s{sKP}, s{sKP}, {A_KVF}\ns_add_u32 s{sKVme}, s{sKP}, 32",
             f"s_add_u32 s{sC}, s{sR}, s{sB}\ns_mov_b32 s{sHAL+1}, {256*KB}\ns_cmp_lt_u32 s{sC}, 2\ns_cselect_b32 s{sHAL}, s{sWQ}, s{sHAL}\n"
             f"s_cselect_b32 s{sHAL+1}, {5*KB}, s{sHAL+1}\ns_cselect_b32 s{sKVme}, s{sKVme}, s{sKC}\ns_cselect_b32 s{sKC}, s{sKP}, s{sKC}\ns_cselect_b32 s{sKT}, 0, 2",
             f"s_lshr_b32 s{sD}, s{sJ}, 2\ns_lshl_b32 s{sOme}, s{sD}, 14\ns_add_u32 s{sOme}, s{sOme}, s{sXB}",
             f"s_add_u32 s{sA}, s{sAR}, {A_CNT}\ns_lshl_b32 s{sC}, s{sB}, 2\ns_add_u32 s{sC}, s{sC}, s{sD}",
             f"s_lshl_b32 s{sC}, s{sC}, 7\ns_add_u32 s{sTP}, s{sA}, s{sC}\ns_lshl_b32 s{sC}, s{sTH}, 2",
             f"s_add_u32 s{sC}, s{sC}, s{sW}\ns_lshl_b32 s{sC}, s{sC}, 7\ns_add_u32 s{sTC}, s{sA}, s{sC}",
             f"s_and_b32 s{sD}, s{sNB}, {NREP-1}\ns_lshl_b32 s{sD}, s{sD}, 10",
             f"s_add_u32 s{sA}, s{sA}, {32*128}\ns_lshl_b32 s{sC}, s{sTH}, 1\ns_add_u32 s{sC}, s{sC}, s{sB}",
             f"s_lshl_b32 s{sC}, s{sC}, 7\ns_add_u32 s{sWP}, s{sA}, s{sC}\ns_lshl_b32 s{sC}, s{sW}, 7",
             f"s_add_u32 s{sWC}, s{sA}, s{sC}\ns_add_u32 s{sWC}, s{sWC}, s{sD}"]
        for i in range(4):
            r += [f"s_add_u32 s{sA}, s{sW}, {1+i}\ns_bfe_u32 s{sB}, s{sA}, 0x10001\ns_and_b32 s{sC}, s{sA}, 1",
                  f"s_lshl_b32 s{sC}, s{sC}, 8\ns_add_u32 s{sC}, s{sC}, s{sAR}\ns_lshl_b32 s{sD}, s{sTH}, 1",
                  f"s_add_u32 s{sB}, s{sB}, s{sD}\ns_mul_i32 s{sT16+i}, s{sB}, {80*KB}\ns_add_u32 s{sT16+i}, s{sT16+i}, s{sC}",
                  f"s_lshl_b32 s{sB}, s{sB}, 2\ns_add_u32 s{sB}, s{sB}, s{sW}\ns_lshl_b32 s{sB}, s{sB}, 16\ns_add_u32 s{sT16H+i}, s{sB}, s{sC}"]
        return r
    def tile_addrs(self, d, t):
        r = []
        for i in range(3):
            r += [f"v_add_u32 v{t}, {64*i}, v0", f"v_mul_u32_u24 v{t+1}, 6554, v{t}", f"v_lshrrev_b32 v{t+1}, 16, v{t+1}",
                  f"v_mul_u32_u24 v{t+1}, {1280 - 160}, v{t+1}", f"v_lshl_add_u32 v{d+i}, v{t}, 4, v{t+1}"]
        return r + [f"v_lshrrev_b32 v{t}, 5, v0", f"v_lshl_add_u32 v{d+2}, v{t}, 28, v{d+2}"]
    def stat_loads(self, idx, t):
        return [(f"s_and_b32 s{sC}, s{sTC}, 0xffffe000\ns_add_u32 s{sC}, s{sC}, {(A_ST - A_CNT + idx*16*KB) & 0xffffffff}\n" if q == 0 else "") +
                f"buffer_load_dwordx2 {v(t+2*q,2)}, v{vST}, {s(WS,4)}, s{sC} offen offset:{1024*q} sc1" for q in range(4)]
    def stat_ops(self, t):
        return [f"v_add_f32 v{t}, v{t}, v{t+2}", f"v_add_f32 v{t+1}, v{t+1}, v{t+3}", f"v_add_f32 v{t+4}, v{t+4}, v{t+6}", f"v_add_f32 v{t+5}, v{t+5}, v{t+7}",
              f"v_add_f32 v{t}, v{t}, v{t+4}", f"v_add_f32 v{t+1}, v{t+1}, v{t+5}", f"v_mov_b32 v{t+2}, v{t}", f"v_mov_b32 v{t+3}, v{t+1}",
              f"v_permlane32_swap_b32 v{t+2}, v{t}", f"v_permlane32_swap_b32 v{t+3}, v{t+1}",
              f"v_add_f32 v{t}, v{t}, v{t+2}", f"v_add_f32 v{t+1}, v{t+1}, v{t+3}",
              f"v_fma_f32 v{t}, v{t+1}, 0, v{t}",
              f"v_mul_f32 v{t}, {f2u(-1/640)}, v{t}", f"v_mul_f32 v{t+1}, {f2u(1/640)}, v{t+1}",
              f"v_fma_f32 v{t+1}, -v{t}, v{t}, v{t+1}", f"v_cvt_pk_bf16_f32 v{vNM}, v{t}, v{t}", f"v_max_f32 v{t+1}, 0, v{t+1}",
              f"v_mov_b32 v{vNM+1}, v{vNM}", f"v_add_f32 v{vIV}, {f2u(EPS)}, v{t+1}", f"v_mov_b32 v{vNM+2}, v{vNM}",
              f"v_rsq_f32 v{vRSTD}, v{vIV}", f"v_mov_b32 v{vNM+3}, v{vNM}"]
    def cs_loads(self, base, stride, ntile, dst):
        g = []
        for t in range(ntile):
            p = ""
            if t == 0: p = f"s_mul_i32 s{sD}, s{sJ}, {stride}\ns_add_u32 s{sD}, s{sD}, {base}\n"
            if t == 4: p = f"s_add_u32 s{sD}, s{sD}, 4096\n"
            g.append(p + f"buffer_load_dwordx4 {R(dst+4*t,4)}, v{vL16}, {s(WS,4)}, s{sD} offen offset:{1024*(t%4)} sc1")
        return g
    def xloads(self, base):
        g = []
        for ks in range(40):
            t = f"s_add_u32 s{sE_}, s{sXB}, {base + 16*KB*(ks >> 3) + 1024*(ks & 4)}\n" if ks % 4 == 0 else ""
            g.append(t + f"buffer_load_dwordx4 {a(self.xr(ks),4)}, v{vL16}, {s(WS,4)}, s{sE_} offen offset:{1024*(ks%4)} sc1")
        return g
    def xloads16(self, base):
        xl = []
        for k in range(40):
            t = f"s_add_u32 s{sE_}, s{sXB}, {base + 16*KB*(k >> 3) + 1024*(k & 4)}\n" if k % 4 == 0 else ""
            xl.append(t + f"buffer_load_dwordx4 {a(self.xr(k),4)}, v{vU}, {s(WS,4)}, s{sE_} offen offset:{2048*(k & 1) + 128*(k & 2)} sc1")
        return xl
    def stat16(self, idx, T, AD):
        stl = [(f"s_and_b32 s{sC}, s{sTC}, 0xffffe000\ns_add_u32 s{sC}, s{sC}, {(A_ST - A_CNT + idx*16*KB) & 0xffffffff}\n" if q == 0 else "") +
               f"buffer_load_dwordx2 {v(T+2*q,2)}, v{AD}, {s(WS,4)}, s{sC} offen offset:{1024*(q & 1) + 64*(q & 2)} sc1" for q in range(4)]
        sta = [f"v_lshrrev_b32 v{AD}, 4, v0", f"v_lshlrev_b32 v{AD}, 11, v{AD}", f"v_and_b32 v{AD+1}, 15, v0", f"v_lshl_add_u32 v{AD}, v{AD+1}, 3, v{AD}",
               f"v_lshl_add_u32 v{AD}, s{sW}, 8, v{AD}"]
        so = [f"v_add_f32 v{T+e}, v{T+e}, v{T+e+2}" for e in (0, 1, 4, 5)]
        for sw in ("v_permlane32_swap_b32", "v_permlane16_swap_b32"):
            so += [f"v_mov_b32 v{T+e+2}, v{T+e}" for e in (0, 1, 4, 5)] + [f"{sw} v{T+e+2}, v{T+e}" for e in (0, 1, 4, 5)]
            so += [f"v_add_f32 v{T+e}, v{T+e}, v{T+e+2}" for e in (0, 1, 4, 5)]
        return sta, stl, so
    def xstart(self, xl, base):
        n = self.o.get("xt", 2)
        for g in xl[:n]: self.E(g)
        for k in range(2): self.touch(sXB, sHX, base + 8 * KB + 16 * KB * k)()
        for g in xl[n:NX0]: self.E(g)
        if base == self.xt(2) and self.o.get("cstW", 3) == 3: self.idle_consts()
        self.window(7 if base == self.xt(2) else 8)
    def horder(self, b):
        ch = self.o.get('ch5', 2)
        return [(s0 + k, i) for s0 in range(b, b + 4, ch) for i in range(4) for k in range(ch)]
    def xt(self, i): return A_X[i] or 0
    def fine(self, tag, sl):
        st = self.o.get("fine_" + tag, 0)
        if st and sl and sl % st == 0: self.stamp(f"{tag}@{sl}")
    def wstream(self, items, pos0, allw, ring, ev=None, valu=None, pre=None, budget=32, tag=""):
        E = self.E; LA = 6
        ev = ev or {}; valu = list(valu or []); pre = pre or {}
        f = pos0; over = 0; defer = []
        for sl, it in enumerate(items):
            self.fine(tag, sl)
            for g in pre.get(sl, []): self.do(g)
            if it[0] == "cs":
                assert not any(isinstance(x, str) and f"v{vNM+3}," in x for _, x in valu), "stats not ready"
                E(f"v_mfma_f32_32x32x16_bf16 {v(it[1],16)}, {R(it[2],4)}, {v(vNM,4)}, {v(it[1],16)}")
                c0 = E.cost - 8
            else:
                acc, ks, first = it
                if f % 2 == 0: E.need(regs(R(ring + 4 * (f % LA), 4)) | regs(R(ring + 4 * ((f + 1) % LA), 4)) | regs(a(self.xr(ks), 4)))
                E(f"v_mfma_f32_32x32x16_bf16 {v(acc,16)}, {R(ring+4*(f%LA),4)}, {a(self.xr(ks),4)}, {'0' if first else v(acc,16)}")
                c0 = E.cost - 8
                if f + LA < len(allw): E(self.wread(ring + 4 * (f % LA), allw[f + LA]))
                f += 1
            for g in ev.get(sl, []): self.do(g)
            if defer and self.o.get("verbose") == 1: print("   ", tag, "deferred op at slot", sl)
            if defer: self.do(defer.pop(0))
            lim = budget - (4 if f % 2 == 0 else 0)
            while valu and valu[0][0] <= sl:
                x = valu[0][1]
                if isinstance(x, list): defer += x; valu.pop(0); continue
                c = sum(8 if y.startswith(TRANS) else 4 for y in x.split("\n"))
                if E.cost - c0 + c > lim and not (c > 16 and E.cost - c0 <= 12): break
                valu.pop(0); E(x)
            over += max(0, E.cost - c0 - lim)
        if self.o.get("verbose"): print(tag, "over budget", over, "left valu", len(valu))
        valu += [(0, defer)]
        assert max(list(ev) + list(pre) + [0]) < len(items), (max(list(ev) + list(pre)), len(items))
        for _, x in valu:
            for y in (x if isinstance(x, list) else [x]): self.do(y)
    def wstream16(self, segs, pos0, allw, ring, ev=None, valu=None, pre=None, budget=16, vend=84, tag="", xchk=True):
        E = self.E
        ev = ev or {}; valu = list(valu or []); pre = pre or {}
        cost = lambda x: sum(8 if y.startswith(TRANS) else 4 for y in x.split("\n") if y[0] != "@")
        q = []; over = 0; items = []; f0 = pos0
        for acc, cs in segs:
            for sp in range(10):
                for n in range(2 * len(acc)):
                    items += [(acc, f0, sp, n, 0), (acc, f0, sp, n, 1)]; f0 += 2
            items += [(acc, None, cs, n, 0) for n in range(2 * len(acc))]
        assert len(items) == 84
        for sl, (acc, fb, sp, n, t) in enumerate(items):
            self.fine(tag, sl)
            for g in pre.get(sl, []): self.do(g)
            for g in ev.get(sl, []): q += self.flat(g)
            for hf in range(2):
                rd = None
                if fb is not None:
                    f = fb + hf; w = ring + 4 * (f % 6); d = acc[n >> 1] + 8 * t + 4 * (n & 1)
                    xr = self.xr(4 * sp + 2 * t + hf)
                    if hf == 0:
                        nd = regs(a(xr, 4)) | regs(a(self.xr(4 * sp + 2 * t + 1), 4))
                        if t == 0: nd |= regs(v(w, 4)) | regs(v(ring + 4 * ((f + 1) % 6), 4))
                        E.need(nd)
                    assert not xchk or n or t or hf or any(x.startswith(f"buffer_load_dwordx4 {a(self.xr(4 * sp + 3), 4)},") for x in E.out[self.x0:])
                    E(f"v_mfma_f32_16x16x32_bf16 {v(d,4)}, {v(w,4)}, {a(xr,4)}, {'0' if sp == 0 and hf == 0 else v(d,4)}")
                    if t == 1 and f + 6 < len(allw): rd = self.wread(w, allw[f + 6])
                else:
                    assert not any(isinstance(x, str) and f"v{vNM+3}," in x for _, x in valu), "stats not ready"
                    d = acc[n >> 1] + 8 * hf + 4 * (n & 1)
                    E(f"v_mfma_f32_16x16x16_bf16 {v(d,4)}, {v(sp+2*n,2)}, {v(vNM+2*hf,2)}, {v(d,4)}")
                c0 = E.cost - 8
                if rd: E(rd)
                while q and (E.cost - c0 <= 8 or (len(q) > 4 and E.cost - c0 <= 12)):
                    self.do(q.pop(0))
                lim = (budget(sl) if callable(budget) else budget) - (4 if sl % 2 == 1 and hf == 1 else 0)
                left = sum(cost(x) for _, x in valu if isinstance(x, str)); gaps = max(1, 2 * (vend - sl) - hf)
                mind = left - (gaps - 1) * self.vrate if valu and valu[0][0] <= sl else 0
                done = 0
                while valu and valu[0][0] <= sl:
                    x = valu[0][1]
                    if isinstance(x, list):
                        for y in x: q += self.flat(y)
                        valu.pop(0); continue
                    c = cost(x)
                    if E.cost - c0 + c > lim and done >= mind and not (c > 8 and E.cost - c0 <= 8): break
                    valu.pop(0); E(x); done += c
                over += max(0, E.cost - c0 - lim)
        if self.o.get("verbose"): print(tag, "over budget", over, "left valu", len(valu), "left q", len(q))
        assert max(list(ev) + list(pre) + [0]) < 84
        for _, x in valu:
            for y in (x if isinstance(x, list) else [x]): self.do(y)
        for y in q: self.do(y)
    @staticmethod
    def pair_items(acc, cs):
        return [(acc[sl & 1], sl >> 1, sl < 2) for sl in range(80)] + [("cs", acc[0], cs), ("cs", acc[1], cs + 4)]
    def att_consts(self):
        MK, VAD = 188, [196, 205]
        t0, t1, t2 = 216, 217, 218
        cst = []
        for i in range(8):
            cst += [f"v_cndmask_b32 v{t0}, 0, -1, {s(sMASK+4*i,2)}", f"v_cndmask_b32 v{t1}, 0, -1, {s(sMASK+4*i+2,2)}",
                    f"v_and_b32 v{t0}, 0xffff, v{t0}", f"v_lshl_or_b32 v{MK+i}, v{t1}, 16, v{t0}"]
        cst += [f"v_lshrrev_b32 v{t0}, 5, v0", f"v_bfe_u32 v{t1}, v0, 2, 2", f"v_lshl_add_u32 v{t0}, v{t0}, 2, v{t1}",
                f"v_bfe_u32 v{t1}, v0, 4, 1", f"v_and_b32 v{t2}, 3, v0", f"v_lshl_add_u32 v{t1}, v{t1}, 2, v{t2}",
                f"v_and_b32 v{t2}, 1, v0", f"v_lshlrev_b32 v219, 2, v{t2}", f"v_xor_b32 v219, v219, v{t0}", f"v_lshlrev_b32 v219, 4, v219",
                f"v_lshl_add_u32 v219, v{t2}, 9, v219", f"v_bfe_u32 v220, v0, 1, 1", f"v_lshl_add_u32 v220, v220, 3, v219", f"v_add_u32 v221, {4096+128+8}, v219",
                f"v_mov_b32 v224, 128", f"v_mov_b32 v225, {SLOT}", f"v_subrev_u32 v226, v{vPOS}, v{vKR}"]
        cst += [f"s_lshl_b32 s{sC}, s{sW}, 7\ns_add_u32 s{sC}, s{sC}, {ONES+128}\nv_mov_b32 v227, s{sC}"]
        for hd in range(2):
            cst += [f"v_add_u32 v222, {2048+1024*hd}, v220", f"v_cmp_gt_u32 vcc, 4, v{t1}\nv_cndmask_b32 v222, v221, v222, vcc", f"v_add_u32 v222, v226, v222",
                    f"v_cmp_gt_u32 {s(sC,2)}, 4, v{t1}\nv_cmp_eq_u32 vcc, {4+hd}, v{t1}\ns_or_b64 vcc, vcc, {s(sC,2)}\nv_cndmask_b32 v{VAD[hd]}, v227, v222, vcc\nv_cndmask_b32 v223, v224, v225, vcc"]
            cst += [f"v_add_u32 v{VAD[hd]+i}, v{VAD[hd]+i-1}, v223" for i in range(1, 9)]
        cst = [f"v_mov_b32 v{228+i}, 0x3f803f80" for i in range(4)] + cst
        return cst
    def p1(self, L):
        E = self.E; o = self.o
        ACC = [48, 64, 80, 96]; RING = 112; CS = 136
        KA, KB_, KV1, VA, VB = 152, 156, 160, 164, 168
        QA0, QB0, QA1, QB1 = 172, 176, 180, 184
        self.Q = (QA0, QB0, QA1, QB1)
        MK = self.MK = 188; VAD = self.VAD = [196, 205]; K1 = self.K1 = AG
        self.WOF = [AG + 160 + 4 * f for f in range(24)] + [244]
        self.xr = lambda ks: 4 * ks
        q16 = o.get("q16", 1); qs = 20 ** -0.5 * math.log2(math.e)
        xl = self.xloads16(self.xt(2 * L)) if q16 else self.xloads(self.xt(2 * L))
        self.x0 = len(E.out); self.vrate = o.get("vrate", 6)
        allw = [1024 * f for f in range(80)] + [1024 * f for f in range(80, 160)]
        tok = []
        if L == 0:
            dm = [self.dma4(sWQ, 16 * KB * c, 16 * KB * c, tok) for c in range(10)]
            wdm = list(dm)
            self.x_bounce(152, wdm)
            c0 = 10 - len(wdm)
            assert o.get("f1chk", 8) >= 7
            assert c0 <= 4
            self.window(9)
            if o.get("s2when", 2) and not self.s2r: E.wait(vm=self.S.tok2); E("s_barrier")
            s2cs, s2st, s2last = self.s2r or self.S.s2_read()
            self.stamp("st S2 read")
            late = sum(dm[2:], [])
        else:
            E.wait(vm=self.wq_tok[1]); E("s_barrier")
            for f in range(6): E(self.wread(RING + 4 * f, allw[f]))
            self.poll_block(sWC, 512 + 4 * (L - 1), 16)
            self.stamp("L1 P1 synced")
            self.xstart(xl, self.xt(2 * L))
            resops = []; late = self.wq_late; tok = self.wq_tok
        def ready(c): return lambda: (E.wait(vm=tok[c]), E("s_barrier"))
        if L == 0:
            ready(0)()
            for f in range(6): E(self.wread(RING + 4 * f, allw[f]))
        cst = self.att_consts() if not (L and o.get("cstW", 3)) else []
        ev = {}; pre = {}
        so = self.stat_ops(152); stl = self.stat_loads(2, 152); sta = []; adr = []; skip = 6
        if q16:
            T = 152; RS = [vRSTD, vC1]; S2 = [vC2, vIV]; S3 = [214, 215]; skip = 4
            sta, stl, so = self.stat16(2, T, 160); so2 = []
            for t in range(2):
                b_ = T + 4 * t
                so += [f"v_mul_f32 v{b_}, {f2u(-1/640)}, v{b_}", f"v_cvt_pk_bf16_f32 v{vNM+2*t}, v{b_}, v{b_}", f"v_cvt_pk_bf16_f32 v{vNM+2*t+1}, v{b_}, v{b_}"]
                so2 += [f"v_mul_f32 v{b_+1}, {f2u(1/640)}, v{b_+1}", f"v_fma_f32 v{b_+1}, -v{b_}, v{b_}, v{b_+1}", f"v_max_f32 v{b_+1}, 0, v{b_+1}",
                        f"v_add_f32 v{b_+1}, {f2u(EPS)}, v{b_+1}", f"v_rsq_f32 v{RS[t]}, v{b_+1}"]
            so += so2
            gA0, gA1, gB, lA0, lA1, lB, lQ, vQR = range(232, 240)
            adr = [f"v_bfe_u32 v{lQ}, v0, 4, 1", f"v_and_b32 v{gB}, 15, v0", f"v_lshlrev_b32 v{lB}, 2, v{lQ}", f"v_xor_b32 v{gB}, v{gB}, v{lB}", f"v_lshlrev_b32 v{gB}, 4, v{gB}",
                   f"v_lshl_add_u32 v{gB}, v{lQ}, 9, v{gB}", f"v_lshrrev_b32 v{vQR}, 5, v0", f"v_lshl_add_u32 v{gA0}, v{vQR}, 10, v{gB}", f"v_lshl_add_u32 v{gA1}, v{vQR}, 11, v{gB}",
                   f"v_sub_u32 v{lB}, v{vKR}, v{vPOS}", f"v_add_u32 v{lB}, {8*SLOT}, v{lB}", f"v_add_u32 v{lA0}, v{lB}, v{gA0}", f"v_add_u32 v{lA1}, v{lB}, v{gA1}",
                   f"v_lshl_add_u32 v{lA1}, v{vQR}, 7, v{lA1}", f"v_add_u32 v{lQ}, s{sLW}, v{gA0}", f"v_add_u32 v{lQ}, {65*KB}, v{lQ}",
                   f"v_add_u32 v{lB}, 3072, v{lA0}", f"v_lshl_add_u32 v{gB}, v{vQR}, 28, v{gB}", f"v_subrev_u32 v{vQR}, 2048, v{lQ}",
                   f"s_mov_b32 vcc_lo, -1\ns_mov_b32 vcc_hi, 0\nv_cndmask_b32 v{lB}, v{vQR}, v{lB}, vcc", f"v_add_u32 v{vQR}, s{sLW}, v{vPOS}", f"v_add_u32 v{vQR}, {64*KB}, v{vQR}"]
        if L == 0:
            for c in range(1, 5): pre[16 * c - 6] = [ready(c)]
            nA = o.get("lateA", 9)
            seq = []
            for c in range(c0, nA):
                seq += dm[c]
                if c == 4: seq += self.cs_loads(CSQ, 4 * KB, 4, CS)
            spread(ev, seq, 0, o.get("lateS", 26) / 10)
            spread(ev, s2st, o.get("s2s0", 0), o.get("s2sS", 10) / 10)
            if o.get("d9", 0): pre.setdefault(o["d9"], []).append(self.dots9)
            cA = o.get("cstA", 0)
            spread(ev, self.masks(), *((1, 0.5) if cA else (31, 3)))
            lateB = sum(dm[nA:], [])
            if o.get("vpos", 13) < 100: ev.setdefault(o.get("vpos", 13), []).append(f"buffer_load_dword v175, v174, {s(WS,4)}, 0 offen sc1")
            so = [(1 + o.get('d9', 0), x) for x in so[skip:] + s2cs] + [(1, [s2last])]
            if cA:
                assert o.get("csdot") and cA > o.get("s2s0", 0) + o.get("s2sS", 10) + 8
                cst = [x.replace(s(sC, 2), "s[64:65]") for x in cst]
                so += [(cA, x) for x in cst]; cst = []
            so += [(50, x) for x in self.arena_fix(175)]
            assert o.get("s2s0", 0) + o.get("s2sS", 10) < 58
            so += [(62, x) for x in adr]
        else:
            pre[26] = [ready(len(tok) - 1)]
            assert len(tok) >= 7
            spread(ev, xl[NX0:] , 0, o.get('xS', 20) / 10)
            if o.get("early", 0): ev.setdefault(11, []).append(self.statsig)
            spread(ev, stl, 27 if q16 else 39, 2)
            nb_ = o.get("ltB", 0); lateB = late[len(late) - nb_:]; late = late[:len(late) - nb_]
            assert nb_ in (0, 4, 8)
            spread(ev, late, o.get('lt0', 60), (81.9 - o.get('lt0', 60)) / max(len(late), 1))
            so = [(4, x) for x in sta + adr] + [(54 if q16 else 66, x) for x in so]
        if L: spread(ev, [self.touch(sWO, sH8, 16 * KB * k) for k in range(2)], 61, 14)
        if L == 0: pre[74] = [ready(5)]
        self.nA0 = min(len(E.out), getattr(self, "nC0", 1 << 30))
        if q16: self.wstream16([(ACC[:2], CS)], 0, allw, RING, ev, so, pre, tag=f"A{L}", xchk=L > 0)
        else: self.wstream(self.pair_items(ACC[:2], CS), 0, allw, RING, ev, so, pre, tag=f"A{L}")
        self.stamp(f"L{L} P1 passA")
        def epi(G0, G1, dst, sc, at):
            r = []
            for G in range(G0, G1):
                b = ACC[0] + 4 * G
                r += [(at, f"v_mul_f32 v{b+i}, v{sc[G-G0]}, v{b+i}") for i in range(4)]
                r += [(at, f"v_cvt_pk_bf16_f32 v{dst[G-G0]+i}, v{b+2*i}, v{b+2*i+1}") for i in range(2)]
            return r
        kvg = A_KV1
        sKVme = sHme
        st = {}
        vKW = 214; vQS = 215
        stA = [f"buffer_store_dwordx4 {v(reg,4)}, v{vPOS}, {s(WS,4)}, s{sA} offen offset:{off} sc1" for reg, off in ((KA, 0), (KB_, 1024), (VA, 2048))]
        stA[0] = f"s_add_u32 s{sA}, s{sKVme}, {kvg}\ns_add_u32 s{sB}, s{sA}, 4096\n" + stA[0]
        stA.append(lambda: st.__setitem__("A", E(f"buffer_store_dwordx4 {v(KV1,4)}, v{vPOS}, {s(WS,4)}, s{sB} offen sc1")))
        ldsA = [f"ds_write_b128 v{vKW}, {v(reg,4)} offset:{off}" for reg, off in ((KA, 0), (KB_, 1024), (VA, 2048), (KV1, 4096 + 128))]
        putB = [lambda: st.__setitem__("B", E(f"s_add_u32 s{sA}, s{sKVme}, {kvg}\nbuffer_store_dwordx4 {v(VB,4)}, v{vPOS}, {s(WS,4)}, s{sA} offen offset:3072 sc1")),
                f"ds_write_b128 v{vKW}, {v(VB,4)} offset:3072"]
        qs = 20 ** -0.5 * math.log2(math.e)
        va = epi(0, 8, [KA, KA + 2, KV1, KB_, KB_ + 2, VA, VA + 2, KV1 + 2], [vRSTD] * 8, 1)
        for k, G in reversed(list(enumerate((1, 4, 6, 7)))): va.insert(6 * (G + 1), (1, [stA[k]]))
        va = [(0, f"v_add_u32 v{vKW}, {8*SLOT}, v{vKR}"), (0, f"v_mul_f32 v{vQS}, {f2u(qs)}, v{vRSTD}")] + va
        nB0 = len(E.out)
        def after(x, need):
            def fn():
                assert any(y.startswith(need) for y in E.out[self.nA0:]), need
                E(x)
            return fn
        ldsA = [after(x, f"v_cvt_pk_bf16_f32 v{r_+3},") for x, r_ in zip(ldsA, (KA, KB_, VA, KV1))]
        n1 = o.get("cst1", 50); dead = 52
        if q16:
            dead = 55; KA, KB_, KV1 = 64, 68, 72
            U = [[152, 156], [160, 164], [48, 52], [56, 60]]
            def epi16(P, t, sc, at):
                b = ACC[P] + 8 * t
                return [(at, f"v_mul_f32 v{b+i}, v{sc}, v{b+i}") for i in range(8)] + [(at, f"v_cvt_pk_bf16_f32 v{U[P][t]+i}, v{b+2*i}, v{b+2*i+1}") for i in range(4)]
            gst = lambda P, t: f"buffer_store_dwordx4 {v(U[P][t],4)}, v{(gA0, gA1, gB)[P]}, {s(WS,4)}, s{sA} offen offset:{(0, 2048, 3072)[P] + 256*t} sc1"
            va = [(0, [f"s_add_u32 s{sA}, s{sKVme}, {kvg}"])]
            for P in range(2):
                for t in range(2):
                    va += epi16(P, t, RS[t], 1) + [(1, [gst(P, t) if (P, t) != (1, 1) else (lambda: st.__setitem__("A", E(gst(1, 1))))])]
            va += [(1, f"v_mul_f32 v{S3[t]}, {f2u(qs)}, v{RS[t]}") for t in range(2)]
            va += [(1, f"s_mov_b32 vcc_lo, -1\ns_mov_b32 vcc_hi, 0\nv_cndmask_b32 v{S2[0]}, v{S3[0]}, v{RS[0]}, vcc\nv_cndmask_b32 v{S2[1]}, v{S3[1]}, v{RS[1]}, vcc")]
            ldsA = [after(f"ds_write_b128 v{(lA0, lA1)[P]}, {v(U[P][t],4)} offset:{2048*P + 256*t}", f"v_cvt_pk_bf16_f32 v{U[P][t]+3},") for P in range(2) for t in range(2)]
        va += [(1, x) for x in cst[:n1]]
        if q16:
            va += epi16(2, 0, S2[0], 44) + [(44, [f"s_add_u32 s{sA}, s{sKVme}, {kvg}\n" + gst(2, 0), f"ds_write_b128 v{lB}, {v(U[2][0],4)}"])]
            va += epi16(2, 1, S2[1], 44) + [(44, [lambda: st.__setitem__("B", E(gst(2, 1))), f"ds_write_b128 v{lB}, {v(U[2][1],4)} offset:256",
                   f"ds_read_b128 {v(QA0,4)}, v{vQR}", f"ds_read_b128 {v(KA,4)}, v{vKR} offset:{8*SLOT}", f"ds_read_b128 {v(KB_,4)}, v{vKR} offset:{8*SLOT+1024}",
                   f"ds_read_b64 {v(KV1,2)}, v{vKR} offset:{8*SLOT+4096+128}"])]
        else: va += epi(8, 10, [VB, VB + 2], [vRSTD] * 2, 43) + [(43, putB)] + epi(10, 12, [QA0, QA0 + 2], [vQS] * 2, 43)
        va += [(43, x) for x in cst[n1:]]
        for i in range(9):
            va += [(dead, f"v_accvgpr_write_b32 {R(K1+4*i+2)}, s{sFL+i}"), (dead, f"v_accvgpr_write_b32 {R(K1+4*i+3)}, 0")]
        va += [(52, f"v_mov_b32 v{q+3}, 0") for q in (QA1, QB1)] + [(52, f"v_mov_b32 v{164+i}, -1") for i in range(4)]
        items = [(ACC[2], k, k == 0) for k in range(40)] + [("cs", ACC[2], CS + 8)] + [(ACC[3], k, k == 0) for k in range(40)] + [("cs", ACC[3], CS + 12)]
        ev = {}; pre = {}
        if L == 0:
            pre[10] = [ready(6)]
            endA = E.vm_n
            pre[26] = [lambda: E.wait(vm=endA), ready(7), lambda: st["A"], self.S.flag2]
            pre[43] = [ready(9)]
            spread(ev, lateB, 0, 2.5)
        else:
            if o.get("early", 0):
                pre[2] = [self.nan_net(ACC[0], xl, self.pair_items(ACC[:2], CS) + items[:2], allw, RING, 512, self.stat_loads(2, 152) + self.stat_ops(152))]
                va = [(max(2, sl), x) for sl, x in va]
            if lateB:
                spread(ev, lateB, o.get("ltB0", 0), 2.5); pre[43] = [ready(9)]
            pre[26] = [ready(9 - len(lateB) // 4)]
        spread(ev, ldsA + [after(f"ds_write_b128 v{vL16}, v[228:231] offset:{ONES + k}", "v_mov_b32 v231, 0x3f80") for k in (0, 1024)], 26, 2)
        wo = []
        for f in range(25):
            t = f"s_add_u32 s{sT0+1}, s{sWO}, {1024*f}\n" if f % 4 == 0 else ""
            wo.append(t + f"buffer_load_dwordx4 {R(self.WOF[f],4)}, v{vL16}, {s(WS,4)}, s{sT0+1} offen offset:{1024*(f%4)} {self.wfl()}")
        if L == 0:
            pass
        nwo = o.get("wob", 14)
        if L == 0:
            nwo = 0
        else:
            spread(ev, wo[:nwo], o.get('wo0', 13), (o.get('wo1', 57) - o.get('wo0', 13)) / nwo)
        self.wo_late = wo[nwo:]
        spread(ev, [self.touch(sWGU, sH16, 32 * KB * k) for k in range(2)], 40, 16)
        sa, pa, ca, sb = o.get("sa", 34), o.get("pa", 50), o.get("ca", 70), o.get("sb", 79)
        if L == 0: sa, pa, ca = o.get("sa0", sa), o.get("pa0", pa), o.get("ca0", ca)
        ev.setdefault(sa, []).append(self.signal(sKP, 8 * L, lambda: st["A"]))
        ev.setdefault(pa, []).append(self.poll_issue(sKC, 8 * L))
        pre.setdefault(ca, []).append(self.poll_check(sKC, 8 * L, f"s{sKT}"))
        hal = []; self.haltok = []
        for t in range(2):
            p = f"s_mul_i32 s{sB}, s{sW}, {2*SLOT}\n" if t == 0 else ""
            hal.append(p + f"s_add_u32 m0, s{sB}, {t*SLOT}\ns_add_u32 s{sE_}, s{sHAL}, {s(sHAL+1) if t else 0}\nbuffer_load_dwordx4 v{vL16}, {s(WS,4)}, s{sE_} offen sc1 lds")
            hal += [f"buffer_load_dwordx4 v{vL16}, {s(WS,4)}, s{sE_} offen offset:{1024*i} sc1 lds" for i in (1, 2)]
            hal.append(f"s_add_u32 m0, s{sB}, {t*SLOT+4096+128}\ns_add_u32 s{sE_}, s{sE_}, 4096\nbuffer_load_dwordx4 v{vL16}, {s(WS,4)}, s{sE_} offen sc1 lds")
        lasth = hal[-1]; hal[-1] = lambda: self.haltok.append(E(lasth))
        assert ca > 44
        spread(ev, hal, ca, o.get("halS", 10) / 10)
        ev.setdefault(sb, []).append(self.signal(sKP, 8 * L + 4, lambda: st["B"]))
        if q16: self.wstream16([([ACC[2]], CS + 8), ([ACC[3]], CS + 12)], 80, allw, RING, ev, va, pre, budget=lambda sl: o.get("bq", 20) if sl < 20 else 16, tag=f"B{L}", xchk=False)
        else: self.wstream(items, 80, allw, RING, ev, va, pre, budget=o.get("budB", 32) if L else o.get("budB0", o.get("budB", 32)), tag=f"B{L}")
        self.stamp(f"L{L} P1 passB")
        if L == 0: E(self.S.vpoll_issue(241, 242))
        if q16:
            for t in range(2):
                b = ACC[3] + 8 * t
                for i in range(0, 8, 2): E(f"v_pk_mul_f32 {v(b+i,2)}, {v(b+i,2)}, {v(S3[0],2)} op_sel:[0,{t}] op_sel_hi:[1,{t}]")
                for i in range(4): E(f"v_cvt_pk_bf16_f32 v{U[3][t]+i}, v{b+2*i}, v{b+2*i+1}")
                E(f"ds_write_b128 v{lQ}, {v(U[3][t],4)} offset:{256*t}")
            E(f"ds_read_b64 {v(QA1,2)}, v{vQR} offset:2048\nds_read_b128 {v(QB0,4)}, v{vQR} offset:1024")
        else:
            for _, x in epi(12, 15, [QA1, QB0, QB0 + 2], [vQS] * 3, 0): E(x)
        E(f"s_mov_b32 vcc_lo, -1\ns_mov_b32 vcc_hi, 0")
        for i in range(2):
            E(f"v_cndmask_b32 v{QB1+i}, v{QA1+i}, v{QA1+3}, vcc")
            E(f"v_cndmask_b32 v{QA1+i}, 0, v{QA1+i}, vcc")
        for k in range(6):
            for hd, (q0, q1, k0) in enumerate(((QA0, QA1, KA), (QB0, QB1, KB_))):
                qa, ka = (q0 + k, k0 + k) if k < 4 else (q1 + k - 4, KV1 + k - 4)
                E(f"v_dot2_f32_bf16 v{216+hd}, v{qa}, v{ka}, {'0' if k == 0 else v(216+hd)}")
        E(f"s_mov_b32 s{sA}, {f2u(-1e38)}")
        for hd, q1 in enumerate((QA1, QB1)): E(f"v_cvt_pk_bf16_f32 v{q1+2}, s{sA}, -v{216+hd}")
    def att_defs(self):
        QA0, QB0, QA1, QB1 = self.Q
        d = self
        d.kread = lambda hd, i, dst: f"ds_read_b128 {R(dst,4)}, v{vKR} offset:{i*SLOT + 1024*hd}"
        d.k1read = lambda i: f"ds_read_b64 {R(self.K1+4*i,2)}, v{vKR} offset:{i*SLOT + 4096 + 128}"
        def smf(hd, i, dst, k0, C="0"):
            q0, q1 = (QA0, QA1) if hd == 0 else (QB0, QB1)
            return [f"v_mfma_f32_32x32x16_bf16 {v(dst,16)}, {R(k0,4)}, {v(q0,4)}, {C}",
                    f"v_mfma_f32_32x32x16_bf16 {v(dst,16)}, {R(self.K1+4*i,4)}, {v(q1,4)}, {v(dst,16)}"]
        d.smf = smf
        d.vreads = lambda hd, i, vf: [f"ds_read_b64_tr_b16 {R(vf+2*k,2)}, v{self.VAD[hd]+i} offset:{128*k}" for k in range(4)]
        def expops(src, p):
            r = []
            for k in range(8):
                r += [f"v_exp_f32 v{src+2*k}, v{src+2*k}", f"v_exp_f32 v{src+2*k+1}, v{src+2*k+1}"]
                if k: r.append(f"v_cvt_pk_bf16_f32 v{p+k-1}, v{src+2*k-2}, v{src+2*k-1}")
            r.append(f"v_cvt_pk_bf16_f32 v{p+7}, v{src+14}, v{src+15}")
            return r
        d.expops = expops
        d.mergeops = lambda dg, old: [f"v_cndmask_b32 v{dg+k}, v{old+k}, v{dg+k}, {s(sMASK+2*k,2)}" for k in range(16)]
        d.splitops = lambda p, pm: [f"v_bfi_b32 v{pm+k}, v{self.MK+k}, 0, v{p+k}" for k in range(8)] + [f"v_and_b32 v{p+k}, v{self.MK+k}, v{p+k}" for k in range(8)]
        d.pv = lambda O, vf, p, first: [f"v_mfma_f32_32x32x16_bf16 {v(O,16)}, {R(vf,4)}, {v(p,4)}, {'0' if first else v(O,16)}",
                                        f"v_mfma_f32_32x32x16_bf16 {v(O,16)}, {R(vf+4,4)}, {v(p+4,4)}, {v(O,16)}"]
    def fallback(self, hd):
        E = Emit(); O = self.O[hd]
        S, SD, NEG, P, PM, MX = 48, 64, 214, 230, 238 - 0, 246
        PM = 152 + 8
        K0 = AG + 136; VF = AG + 140; SP = AG + 104
        E.raw(f"FB{hd}:")
        E("s_waitcnt vmcnt(0) lgkmcnt(0)"); E.settle()
        for k in range(32): E(f"v_accvgpr_write_b32 {R(SP+k)}, v{48+k}")
        E(f"v_mov_b32 v{MX+2}, 0xff7fffff")
        for i in (8, 7, 6, 5, 4, 3, 2, 1, 0):
            E(self.kread(hd, i, K0))
            for x in self.smf(hd, i, SD if i == 8 else S, K0): E(x)
            if i == 8: continue
            src = S
            if i == 0:
                for x in self.mergeops(SD, S): E(x)
                src = SD
            for k in range(8): E(f"v_max3_f32 v{MX+2}, v{src+2*k}, v{src+2*k+1}, v{MX+2}")
        E(f"v_mov_b32 v{MX+3}, v{MX+2}\nv_permlane32_swap_b32 v{MX+3}, v{MX+2}\nv_max_f32 v{MX+2}, v{MX+2}, v{MX+3}")
        for k in range(16): E(f"v_sub_f32 v{NEG+k}, 0, v{MX+2}")
        for k in range(16): E(f"v_add_f32 v{SD+k}, v{NEG}, v{SD+k}")
        for x in self.expops(SD, P) + self.splitops(P, PM): E(x)
        for x in self.vreads(hd, 8, VF) + self.pv(O, VF, P, True): E(x)
        E.settle()
        for x in self.vreads(hd, 0, VF) + self.pv(O, VF, PM, False): E(x)
        for i in range(7, 0, -1):
            E.settle()
            E(self.kread(hd, i, K0))
            for x in self.vreads(hd, i, VF) + self.smf(hd, i, S, K0, v(NEG, 16)) + self.expops(S, P) + self.pv(O, VF, P, False): E(x)
        E.settle()
        for k in range(32): E(f"v_accvgpr_read_b32 v{48+k}, {R(SP+k)}")
        E.settle()
        for f, q in enumerate(EARLY):
            E(f"s_add_u32 s{sF}, s{sWD}, {1024*f}\nbuffer_load_dwordx4 {R(q,4)}, v{vL16}, {s(WS,4)}, s{sF} offen sc1")
        E.drain(); E.settle()
        E(f"s_setpc_b64 {s(sRET,2)}")
        return E.text()
    def p2(self, L):
        E = self.E; o = self.o
        self.att_defs()
        S = [48, 64]; SD = 80; P = [96, 104]; PM = 112; O = self.O = [120, 136]; D = 152; TT = 168
        K0 = [AG + 36, AG + 40, AG + 44]; VF = [AG + 48, AG + 56, AG + 64]
        self.OF = {}
        for st in range(2):
            for i in range(4): self.OF[(st, i)] = AG + 72 + 16 * st + 4 * i
        for st in range(2, 5):
            for i in range(4): self.OF[(st, i)] = (108 + 12 * i if i < 3 else 176) + 4 * (st - 2)
        if L == 0: self.tail += [self.fallback(0), self.fallback(1)]
        obase = self.obase = A_O
        E.wait(vm=self.haltok[0], ds=E.ds_n); E("s_barrier")
        self.stamp(f"L{L} halo in")
        ev = {}; pre = {}
        if L == 0: pre[o.get("f2c", 6)] = [self.S.vpoll_check(241, 242, 4)]
        dm = []
        for c in range(6): dm += self.dma4(sWGU, 16 * KB * c, 64 * KB + 16 * KB * c)
        hb = []
        for t in range(2):
            hb.append(f"s_mul_i32 s{sD}, s{sW}, {2*SLOT}\ns_add_u32 m0, s{sD}, {t*SLOT}\ns_add_u32 s{sE_}, s{sHAL}, {s(sHAL+1) if o.get('ovl', 3) and t else t*5*KB}\nbuffer_load_dwordx4 v{vL16}, {s(WS,4)}, s{sE_} offen offset:3072 sc1 lds")
        lasth = hb[-1]; hb[-1] = lambda: self.haltok.append(E(lasth))
        pb, cb = o.get("pb", 4), o.get("cb", 16)
        nl = len(self.wo_late)
        n1 = min(nl, int((cb - (0 if L else o.get('f2c', 6))) / 2.1))
        spread(ev, self.wo_late[:n1], 0 if L else o.get("f2c", 6), 2.1 if L else 1.8)
        ev.setdefault(pb, []).append(self.poll_issue(sKC, 8 * L + 4))
        pre.setdefault(cb, []).append(self.poll_check(sKC, 8 * L + 4, f"s{sKT}"))
        spread(ev, hb, cb, 1)
        self.pool = Pool(EARLY); self.mk_wdload()
        rest = self.wo_late[n1:] + dm + self.wd(o.get("wd2" if L else "wd20", 7 if L else 0))
        spread(ev, rest, cb + 2, (o.get("bgend", 68) - cb - 2) / len(rest))
        spread(ev, [self.touch(sWGU, sH16, 32 * KB * k) for k in range(2, 5)] + [self.touch(sWD, sH8, 0)], 10, 14)
        spread(ev, [f"s_and_b32 s{sA}, s{sJ}, 3\ns_lshl_b32 s{sB}, s{sA}, 10\ns_add_u32 s{sB}, s{sB}, s{sOme}\ns_add_u32 s{sB}, s{sB}, {obase}\n"
                    f"s_add_u32 s{sC}, s{sB}, 4096\nbuffer_store_dwordx4 v[164:167], v{vL16}, {s(WS,4)}, s{sC} offen sc1",
                    f"s_lshl_b32 s{sA}, s{sJ}, 9\ns_add_u32 s{sA}, s{sA}, s{sXB}\ns_add_u32 s{sA}, s{sA}, {obase + 64*KB}\n"
                    f"buffer_store_dwordx2 v[164:165], v{vO4}, {s(WS,4)}, s{sA} offen sc1"] + self.xpoison(2 * L + 1, 164), min(o.get("poi", 5), 20), 2)
        if o.get("senth", 0) and o.get("poiw", 1) == 0:
            assert o.get("ovl", 3) == 3
            spread(ev, self.hpoison(164, sP), o.get("poih", 20), 2)
        SO = self.SO = [sH8, sH16, sHX, sD]
        self.ol = ol = lambda st, i, va, off: f"buffer_load_dwordx4 {R(self.OF[(st,i)],4)}, v{va}, {s(WS,4)}, s{SO[i]} offen offset:{off} sc1"
        ev.setdefault(45, []).append(f"s_lshl_b32 s{sE_}, s{sW}, 14\ns_add_u32 s{sE_}, s{sE_}, {obase}\n" + "\n".join(f"s_add_u32 s{SO[i]}, s{sE_}, s{sT16+i}" for i in range(4)))
        self.aq = [self.poll_check(sTC, self.T(0, L), 8)] + sum([[ol(0, i, vU, 0), ol(1, i, vU, 2048)] for i in range(4)], [])
        oca = o.get("oca", 99)
        if oca < 70:
            pre.setdefault(oca, []).append(self.aq[0])
            spread(ev, self.aq[1:], oca, (70 - oca) / 8); self.aq = []
        st = {}
        def check(hd):
            def fn():
                Lo, Lb = E.label("FO"), E.label("FR")
                E(f"v_subrev_u32 v{TT}, {hex(63 << 23)}, v{O[hd]+12}\nv_cmp_le_u32 vcc, {hex(128 << 23)}, v{TT}\ns_cbranch_vccnz {Lo}")
                E.place(Lb)
                self.tail.append(f"{Lo}:\ns_call_b64 {s(sRET,2)}, FB{hd}\ns_branch {Lb}")
            return fn
        def norm(hd):
            r = [check(hd), f"v_rcp_f32 v{TT}, v{O[hd]+12}"]
            if hd: r += [f"v_pk_mul_f32 {v(O[hd]+k,2)}, {v(O[hd]+k,2)}, {v(TT,2)} op_sel_hi:[1,0]" for k in range(0, 12, 2)]
            else: r += [f"v_mul_f32 v{O[hd]+k}, v{TT}, v{O[hd]+k}" for k in range(12)]
            r += [f"v_cvt_pk_bf16_f32 v{D+8*hd+k}, v{O[hd]+2*k}, v{O[hd]+2*k+1}" for k in range(6)]
            return r
        def putOA():
            st["a"] = E(f"buffer_store_dwordx4 {v(D,4)}, v{vL16}, {s(WS,4)}, s{sB} offen sc1")
        slot = [0]
        def weave(mf, mems, valu):
            n = len(mf); mems = list(mems); valu = list(valu)
            for k, m in enumerate(mf):
                if o.get("w1", 2) == 2 and k >= 2 and k % 2 == 0 and k + 1 < n: E.need(Ins(m).src | Ins(mf[k + 1]).src)
                self.fine(f"t{L}", slot[0])
                for g in pre.pop(slot[0], []): self.do(g)
                E(m)
                for _ in range(-(-len(mems) // (n - k))): E(mems.pop(0))
                for g in ev.pop(slot[0], []): self.do(g)
                for _ in range(-(-len(valu) // (n - k))): self.do(valu.pop(0))
                slot[0] += 1
        seq = [(hd, i) for hd in range(2) for i in (7, 6, 5, 4, 3, 2, 1, 8, 0)]
        kslot = {x: K0[n % 3] for n, x in enumerate(seq)}
        kq = list(seq)
        def knext():
            if not kq: return []
            hd, i = kq.pop(0)
            return [self.kread(hd, i, kslot[(hd, i)])] + ([self.k1read(i)] if hd == 0 else [])
        for x in knext() + knext() + knext(): E(x)
        for x in self.smf(0, 7, S[0], kslot[(0, 7)]): E(x)
        pend = []; vn = 0
        sa_, pa_ = o.get("osa", 56), o.get("opa", 69)
        ev.setdefault(pa_, []).append(self.poll_issue(sTC, self.T(0, L)))
        ev.setdefault(sa_, []).append(self.signal(sTP, self.T(0, L), lambda: st["a"]))
        for hd in range(2):
            for n in range(8):
                mf = []; mems = []; va = []
                if n < 6:
                    mf += self.smf(hd, 6 - n, S[(n + 1) % 2], kslot[(hd, 6 - n)]); mems += knext()
                    mf += pend
                elif n == 6:
                    mf += self.smf(hd, 8, SD, kslot[(hd, 8)]) + self.smf(hd, 0, S[1], kslot[(hd, 0)]); mems += knext()
                    mf += pend
                else:
                    mf += pend
                    if hd == 0: mf += self.smf(1, 7, S[0], kslot[(1, 7)])
                    mems += knext() + knext()
                    if hd == 0: pre.setdefault(slot[0] + len(mf), []).append(lambda: (E.wait(vm=self.haltok[1]), E("s_barrier")))
                    if hd == 0 and o.get("ovl", 3) and not (L and o.get("ovl", 3) >= 2): ev.setdefault(slot[0] + len(mf), []).append(self.signal(sKVme, 16 + 4 * L, lambda: self.haltok[1]))
                if n < 7:
                    vf = VF[vn % 3]; vn += 1
                    vr = self.vreads(hd, 7 - n, vf)
                    mems = mems + vr
                    va += self.expops(S[n % 2], P[n % 2])
                    pend = self.pv(O[hd], vf, P[n % 2], n == 0)
                    if hd == 1 and n == 1: va = norm(0) + [putOA] + va
                else:
                    v8, v0_ = VF[vn % 3], VF[(vn + 1) % 3]; vn += 2
                    mems = mems + self.vreads(hd, 8, v8) + self.vreads(hd, 0, v0_)
                    va += self.mergeops(SD, S[1]) + self.expops(SD, P[1]) + self.splitops(P[1], PM)
                    pend = self.pv(O[hd], v8, P[1], False) + self.pv(O[hd], v0_, PM, False)
                weave(mf, mems, va)
            if hd == 0: self.stamp(f"L{L} att a")
        weave(pend, [], [])
        assert not ev and not pre, (ev, pre, slot)
        for x in norm(1): self.do(x)
        E(f"s_mov_b32 vcc_lo, -1\ns_mov_b32 vcc_hi, 0")
        for k in range(2): E(f"v_cndmask_b32 v{D+4+k}, v{D+12+k}, v{D+4+k}, vcc")
        E(f"buffer_store_dwordx4 {v(D+8,4)}, v{vL16}, {s(WS,4)}, s{sC} offen sc1")
        self.otok = E(f"buffer_store_dwordx2 {v(D+4,2)}, v{vO4}, {s(WS,4)}, s{sA} offen sc1")
        if o.get("obf", 0): E(f"buffer_atomic_add v{vONE}, v{vSIG}, {s(WS,4)}, s{sTP} offen offset:{self.T(1, L)} sc1")
        self.stamp(f"L{L} att done")
    def reduce_and_publish(self, ACC, steps, red, PT, xidx, wimm, final, bg, post, bg0=1, bgstep=5, vals=None):
        E = self.E
        bg = list(bg); rd = []; self.nextbg = 0
        sal = []
        if not final:
            sal = [f"s_add_u32 s{sA}, s{sT16+3}, {self.xt(xidx)}",
                   f"s_lshl_b32 s{sC}, s{sJ}, 2\ns_add_u32 s{sC}, s{sC}, s{sW}", f"s_lshl_b32 s{sC}, s{sC}, 7\ns_and_b32 s{sP}, s{sTC}, 0xffffe000",
                   f"s_add_u32 s{sC}, s{sC}, s{sP}\ns_add_u32 s{sC}, s{sC}, {(A_ST - A_CNT + xidx*16*KB) & 0xffffffff}"]
        AW = [PT + 56 + i for i in range(3)]
        for i in range(3): E(f"v_add_u32 v{AW[i]}, {red}, v{vRW+i}")
        E(f"v_add_u32 v{vT}, {red}, v{vRW+3}")
        order = [(q, nt) for nt in range(5) for q in range(3)]
        ns = len(steps); nr = 5 * ns; lag = self.o.get("wlag", 5)
        wat = {nr * i + ns * (nt + 1) - 1 + lag: f"ds_write_b128 v{AW[i]}, {v(ACC[i]+4*nt,4)} offset:{1024*nt}" for i in range(3) for nt in range(5)}
        bar = min(max(wat) + self.o.get("rbar", 4), 4 * nr - 1)
        bgq = []
        for i in range(4):
            left = [x for x in range(nr * i, nr * (i + 1)) if x not in wat]
            for nt in range(5):
                for si, (W, act) in enumerate(steps):
                    k = nr * i + ns * nt + si; d = ACC[i] + 4 * nt
                    E(f"v_mfma_f32_16x16x32_bf16 {v(d,4)}, {R(W[nt],4)}, {R(act[i],4)}, {v(d,4)}")
                    if k in wat: E(wat[k])
                    elif vals and i < 3 and len([x for x in left if x >= k]) <= len(vals[i + 1]): self.do(vals[i + 1].pop(0))
                    elif k == bar:
                        E.drain(vm=False); E("s_barrier")
                        rd = [f"ds_read_b128 {v(PT+20*q+4*n_,4)}, v{vT} offset:{1024*(5*q+n_)}" for q, n_ in order]
                    elif rd:
                        E(rd.pop(0))
                        if rd: E(rd.pop(0))
                    elif i == 0 and sal: E(sal.pop(0))
                    else:
                        if not bgq and bg and i >= bg0 and k >= self.nextbg: bgq = self.flat(bg.pop(0)); self.nextbg = k + bgstep
                        if bgq: self.do(bgq.pop(0))
            assert not (vals and i < 3 and vals[i + 1])
        for x in bgq: self.do(x)
        for x in rd: E(x)
        assert not sal
        self.stamp("  mfma done")
        D = ACC[0]
        if final:
            stores = [f"ds_write_b128 v{vRM}, {v(D,4)}", f"ds_write_b128 v{vRM}, {v(D+4,4)} offset:16", f"ds_write_b64 v{vRM5}, {v(D+8,2)} offset:128"]
        else:
            stores = [f"buffer_store_dwordx4 {v(D,4)}, v{vXW}, {s(WS,4)}, s{sA} offen sc1", f"buffer_store_dwordx4 {v(D+4,4)}, v{vXW}, {s(WS,4)}, s{sA} offen offset:512 sc1",
                      f"buffer_store_dwordx2 {v(D+8,2)}, v{vXW5}, {s(WS,4)}, s{sA} offen sc1"]
        for nts in ((0, 1), (2, 3), (4,)):
            ks = [4 * nt + e for nt in nts for e in (0, 2)]
            for k in ks: E(f"v_pk_add_f32 {v(PT+k,2)}, {v(PT+k,2)}, {v(PT+20+k,2)}")
            for k in ks: E(f"v_pk_add_f32 {v(vRES+k,2)}, {v(vRES+k,2)}, {v(PT+40+k,2)}")
            for k in ks: E(f"v_pk_add_f32 {v(vRES+k,2)}, {v(vRES+k,2)}, {v(PT+k,2)}")
            for k in ks: E(f"v_cvt_pk_bf16_f32 v{D+k//2}, v{vRES+k}, v{vRES+k+1}")
            if final: E(stores.pop(0))
        if final:
            for i in range(3): E(f"ds_read_b128 {v(D+12+4*i,4)}, v{vNM+3} offset:{1024*i}")
            for i in range(3): E(f"buffer_store_dwordx4 {v(D+12+4*i,4)}, v{vNM+i}, {s(OUT,4)}, s{sRM} offen {FINAL}")
            return
        for x in stores: data = E(x)
        early = self.o.get("early", 0)
        if early: E(f"buffer_atomic_add v{vONE}, v{vSR}, {s(WS,4)}, s{sWP} offen offset:{wimm} sc1")
        self.stamp("  stored")
        T = PT
        E(f"v_pk_add_f32 {v(T,2)}, {v(vRES,2)}, {v(vRES+2,2)}\nv_pk_mul_f32 {v(T+2,2)}, {v(vRES,2)}, {v(vRES,2)}")
        E(f"v_pk_fma_f32 {v(T+2,2)}, {v(vRES+2,2)}, {v(vRES+2,2)}, {v(T+2,2)}")
        for k in range(4, 20, 2):
            E(f"v_pk_add_f32 {v(T,2)}, {v(T,2)}, {v(vRES+k,2)}\nv_pk_fma_f32 {v(T+2,2)}, {v(vRES+k,2)}, {v(vRES+k,2)}, {v(T+2,2)}")
        E(f"v_add_f32 v{T}, v{T}, v{T+1}\nv_add_f32 v{T+1}, v{T+2}, v{T+3}")
        for sw in ("v_permlane32_swap_b32", "v_permlane16_swap_b32"):
            E(f"v_mov_b32 v{T+2}, v{T}\nv_mov_b32 v{T+3}, v{T+1}")
            E(f"{sw} v{T+2}, v{T}\n{sw} v{T+3}, v{T+1}")
            E(f"v_add_f32 v{T}, v{T}, v{T+2}\nv_add_f32 v{T+1}, v{T+1}, v{T+3}")
        last = E(f"buffer_store_dwordx2 {v(T,2)}, v{vSW}, {s(WS,4)}, s{sC} offen sc1")
        E("s_barrier")
        n0 = self.o.get("post0", 5); n1 = n0 + self.o.get("post1", 4)
        post = list(bg) + list(post)
        for g in post[:n0]: self.do(g)
        if wimm >= 512 and self.o.get("cstW", 3) == 1: self.idle_consts()
        self.window(3 if wimm < 512 else 5)
        if not early: self.signal(sWP, wimm, last, vSR)()
        self.stamp("  signalled")
        self.preissued = False
        pp = self.o.get("pp", 99)
        for k, g in enumerate(post[n0:]):
            if early and n0 + k == pp: E(self.poll_issue(sWC, wimm)); self.preissued = True
            self.do(g)
        self.statsig = self.signal(sWP, wimm + 8, last, vSR)
    def mk_wdload(self):
        self.WDF = {}
        def wdload(f):
            def fn():
                q = self.pool.get(); self.WDF[f] = q
                t = f"s_add_u32 s{sT0+1}, s{sWD}, {1024*f}\n" if f % 4 == 0 else ""
                assert t or self.E.lastw[f"s{sT0+1}"] == f"s_add_u32 s{sT0+1}, s{sWD}, {1024*(f & ~3)}"
                return self.E(t + f"buffer_load_dwordx4 {R(q,4)}, v{vL16}, {s(WS,4)}, s{sT0+1} offen offset:{1024*(f%4)} {self.wfl()}")
            return fn
        self.wdq = [wdload(f) for f in range(60)]
    def wd(self, n):
        r = self.wdq[:n]; self.wdq = self.wdq[n:]
        return r
    def p3(self, L):
        E = self.E; o = self.o
        ACC = [48, 68, 88, vRES]
        W = lambda st: [self.WOF[5 * st + nt] for nt in range(5)]
        self.pool.add([188 + 4 * i for i in range(7)] + [AG + 104 + 4 * i for i in range(14)])
        SO = self.SO; ol = self.ol; vU4 = 172
        for g in self.aq: self.do(g)
        E(f"s_mul_i32 s{sE_}, s{sW}, {14*KB}\ns_sub_u32 s{sE_}, {60*KB}, s{sE_}\nv_add_u32 v{vU4}, s{sE_}, v{vU}")
        for i in range(4): E(f"s_add_u32 s{SO[i]}, s{SO[i]}, 4096")
        E("s_barrier")
        bl = [[ol(2, i, vU, 0), ol(3, i, vU, 2048), ol(4, i, vU4, 0)] for i in range(4)]
        vals = [self.validate([self.OF[(st, i)] for st in range(2, 5)], bl[i], 168) for i in range(4)]
        q = sum(bl, [])
        for g in self.wd(o.get("wd3a", 0)): g()
        self.window(2)
        obf = o.get("obf", 0); k0 = 0
        if obf:
            k0 = o.get("obc", 30)
            if o.get("obp", 4) < 0: E(self.poll_issue(sTC, self.T(1, L)))
        else:
            if o.get("obw", 1) == 1: E.wait(vm=self.otok)
            for _ in range(o.get("obn", 3)): E(q.pop(0))
        k = 0
        for i in range(4):
            for nt in range(5):
                for st in range(2):
                    d = ACC[i] + 4 * nt
                    E(f"v_mfma_f32_16x16x32_bf16 {v(d,4)}, {R(W(st)[nt],4)}, {R(self.OF[(st,i)],4)}, {'0' if st == 0 and i < 3 else v(d,4)}")
                    if obf:
                        if k == o.get("obp", 4): E(self.poll_issue(sTC, self.T(1, L)))
                        if k == k0: self.poll_check(sTC, self.T(1, L), 8)()
                        if k >= k0 and q: E(q.pop(0))
                    elif k % o.get("obs", 3) == 0 and q and k >= o.get("obk", 0):
                        if o.get("obw", 1) == 2: E.wait(vm=self.otok)
                        E(q.pop(0))
                    elif k >= 40 - len(vals[0]) and k < 39 and not o.get("obk", 0): self.do(vals[0].pop(0))
                    k += 1
        for g in q: E(g)
        for g in vals[0]: self.do(g)
        self.stamp(f"L{L} P3 synced")
        steps = [(W(st), [self.OF[(st, i)] for i in range(4)]) for st in range(2, 5)]
        self.CSG = 152
        bg = self.wd(o.get("wd3b", 6))
        self.vals = vals
        def freewo(): self.pool.add([176, 180, 184] + self.WOF[:10] + self.WOF[24:])
        self.gu_late = []
        self.gu_tok = []
        for c in range(6, 10): self.gu_late += self.dma4(sWGU, 16 * KB * c, 16 * KB * (c - 6), self.gu_tok)
        n = o.get("gu3", 16)
        post = [freewo] + self.gu_late[:n]
        self.gu_late = self.gu_late[n:]
        self.reduce_and_publish(ACC, steps, 0, 108 - 16 + 16, 2 * L + 1, 4 * L, False, bg, post, bg0=o.get('bg3', 1), bgstep=o.get('bgs3', 5), vals=vals)
        self.stamp(f"L{L} P3 done")
    def p4_32(self, L):
        E = self.E; o = self.o
        ACC = [[48, 64], [80, 96]]; RING = 112; HP = 136; T = 144
        allw = [1024 * ((64 + f) % 160) for f in range(240)]
        for f in range(6): E(self.wread(RING + 4 * f, allw[f]))
        self.poll_block(sWC, 4 * L, 16)
        self.stamp(f"L{L} P4 synced")
        self.xr = lambda ks: 4 * ks if ks < 26 else 200 + 4 * (ks - 26)
        xl = self.xloads(self.xt(2 * L + 1))
        self.xstart(xl, self.xt(2 * L + 1))
        c1 = -2 * 0.7978845608028654 * math.log2(math.e)
        so = self.stat_ops(T) + [f"v_mul_f32 v{vC1}, {f2u(c1)}, v{vRSTD}", f"v_mul_f32 v{T}, v{vRSTD}, v{vRSTD}", f"v_mul_f32 v{vC2}, {f2u(0.044715)}, v{vC1}",
                                 f"v_mul_f32 v{vC2}, v{T}, v{vC2}"]
        st = self.htok = {}
        def put(p, k):
            if k == 0: return f"buffer_store_dwordx4 {v(HP,4)}, v{vL16}, {s(WS,4)}, s{sA} offen sc1"
            return lambda: st.__setitem__(p, E(f"buffer_store_dwordx4 {v(HP+4,4)}, v{vL16}, {s(WS,4)}, s{sA} offen offset:1024 sc1"))
        haddr = lambda p: [f"s_add_u32 s{sA}, s{sJ}, {p}\ns_and_b32 s{sA}, s{sA}, 3\ns_lshl_b32 s{sA}, s{sA}, 11", f"s_and_b32 s{sB}, s{sHme}, 0xffffe000\ns_add_u32 s{sA}, s{sA}, s{sB}"]
        def epi(p):
            g, u = ACC[p % 2]; r = [haddr(p)]
            for k0 in range(0, 16, 4):
                ks = range(k0, k0 + 4)
                r += [f"v_mul_f32 v{T+k%4}, v{g+k}, v{g+k}" for k in ks]
                r += [f"v_fma_f32 v{T+k%4}, v{T+k%4}, v{vC2}, v{vC1}" for k in ks]
                r += [f"v_mul_f32 v{T+k%4}, v{T+k%4}, v{g+k}" for k in ks]
                r += [f"v_exp_f32 v{T+k%4}, v{T+k%4}" for k in ks]
                r += [f"v_mul_f32 v{g+k}, v{g+k}, v{u+k}" for k in ks]
                r += [f"v_fma_f32 v{T+k%4}, v{T+k%4}, v{vIV}, v{vIV}" for k in ks]
                r += [f"v_rcp_f32 v{T+k%4}, v{T+k%4}" for k in ks]
                r += [f"v_mul_f32 v{g+k}, v{g+k}, v{T+k%4}" for k in ks]
                r += [f"v_cvt_pk_bf16_f32 v{HP+k//2}, v{g+k}, v{g+k+1}" for k in ks if k % 2 == 0]
                if k0 in (4, 12): r.append([put(p, k0 // 8)])
            return [(2, x) for x in r]
        def epi_pk(p):
            g, u = ACC[p % 2]; r = []
            for k0 in range(0, 16, 8):
                ks = range(k0, k0 + 8, 2)
                r += [f"v_pk_mul_f32 {v(T+k%8,2)}, {v(g+k,2)}, {v(g+k,2)}" for k in ks]
                r += [f"v_pk_fma_f32 {v(T+k%8,2)}, {v(T+k%8,2)}, {v(vC1,2)}, {v(vC1,2)} op_sel:[0,1,0] op_sel_hi:[1,1,0]" for k in ks]
                r += [f"v_pk_mul_f32 {v(T+k%8,2)}, {v(T+k%8,2)}, {v(g+k,2)}" for k in ks]
                r += [f"v_exp_f32 v{T+k}, v{T+k}" for k in range(8)]
                r += [f"v_pk_mul_f32 {v(g+k,2)}, {v(g+k,2)}, {v(u+k,2)}" for k in ks]
                r += [f"v_pk_fma_f32 {v(T+k%8,2)}, {v(T+k%8,2)}, {v(vIV,2)}, {v(vIV,2)} op_sel_hi:[1,0,0]" for k in ks]
                r += [f"v_rcp_f32 v{T+k}, v{T+k}" for k in range(8)]
                r += [f"v_pk_mul_f32 {v(g+k,2)}, {v(g+k,2)}, {v(T+k%8,2)}" for k in ks]
                r += [f"v_cvt_pk_bf16_f32 v{HP+k//2}, v{g+k}, v{g+k+1}" for k in ks]
                r.append(put(p, k0 // 8))
            return r
        self.HF = {}
        def hload(stp, i, fixed=None):
            p, jj = divmod(stp, 4)
            if fixed is not None:
                self.HF[(stp, i)] = fixed
                return f"s_add_u32 s{sE_}, s{sT16H+i}, {A_H + 16*KB*jj + 2048*((p + jj) & 3)}\nbuffer_load_dwordx4 {R(fixed,4)}, v{vU}, {s(WS,4)}, s{sE_} offen sc1"
            def fn():
                q = self.pool.get(); self.HF[(stp, i)] = q
                E(f"buffer_load_dwordx4 {R(q,4)}, v{vU}, {s(WS,4)}, s{sE_} offen sc1")
            return (f"s_add_u32 s{sE_}, s{sT16H+i}, {A_H + 16*KB*jj + 2048*((p + jj) & 3)}", fn)
        self.hload = hload
        nv = o.get("bud4", 32)
        ev = {}; spread(ev, xl[NX0:], 0, o.get('xS', 20) / 10)
        if o.get("early", 0): ev.setdefault(11, []).append(self.statsig)
        spread(ev, self.stat_loads(2 * L + 1, T), 39, 2)
        csl = self.cs_loads(CSG, 6 * KB, 6, self.CSG)
        spread(ev, csl[:2], 47, 2)
        pre = {}
        if o.get("ovl", 3) and not (L and o.get("ovl", 3) >= 2):
            ev.setdefault(51, []).append(f"s_sub_u32 s{sH8}, 15, s{sR}\ns_min_u32 s{sH8}, s{sH8}, 2\n" + self.poll_issue(sKP, 16 + 4 * L))
            pre[76] = [self.poll_check(sKP, 16 + 4 * L, f"s{sH8}")]
        spread(ev, self.gu_late + self.wd(min(o.get("wd40", 10), 10 - len(self.gu_late))), 61, 2)
        spread(ev, [self.touch(sWGU, sH16, 32 * KB * 5), self.touch(sWD, sH8, 16 * KB), self.touch(sWGU, sH16, 32 * KB * 6)], 45, 15)
        pv = [(30, f"v_mov_b32 v{HP+i}, -1") for i in range(4)] + [(30, self.xpoison(2, HP))] if L == 0 and o.get("early", 0) else []
        sh = o.get("senth", 0)
        if sh and o.get("poiw", 1) == 1:
            assert o.get("ovl", 3) == 3
            pv += [(40, f"v_mov_b32 v{HP+4+i}, -1") for i in range(4)]
            spread(ev, [(f"s_add_u32 s{sB}, s{sHme}, {HB + L*HB_STRIDE + 2048}\n" if k == 0 else "") +
                        f"buffer_store_dwordx4 {v(HP+4,4)}, v{vL16}, {s(WS,4)}, s{sB} offen offset:{1024*k} sc1" for k in range(4)], o.get("poi0", 74), o.get("poiS", 2))
        self.wstream(self.pair_items(ACC[0], self.CSG), 0, allw, RING, ev, pv + [(65, x) for x in so], pre, tag=f"p0{L}")
        self.stamp(f"L{L} P4 p0")
        ev = {}; tok = []; fl = []
        for c in range(10, 15): fl += self.dma4(sWGU, 16 * KB * c, 64 * KB + 16 * KB * (c - 10), tok)
        spread(ev, fl, 2, 2.15)
        net = [self.nan_net(ACC[0][0], xl, self.pair_items(ACC[0], self.CSG) + self.pair_items(ACC[1], 0)[:2], allw, RING, 4 * L, self.stat_loads(2 * L + 1, T) + so)] if o.get("early", 0) else []
        n1 = min(o.get("wd41", 13), len(self.pool.free))
        spread(ev, csl[2:] + self.wd(n1), 46, 35 / max(n1 + 4, 16))
        spread(ev, [self.touch(sWGU, sH16, 32 * KB * 7), self.touch(sWD, sH8, 32 * KB), self.touch(sWD, sH8, 48 * KB)], 6, 24)
        self.wstream(self.pair_items(ACC[1], self.CSG + 8), 80, allw, RING, ev, epi(0),
                     {2: net + ["s_barrier"], 10: [lambda: (E.wait(vm=self.gu_tok[3]), E("s_barrier"))], 74: [lambda: (E.wait(vm=tok[4]), E("s_barrier"))]}, budget=nv, tag=f"p1{L}")
        self.stamp(f"L{L} P4 p1")
        ev = {}; pre = {}
        for ks in range(40): ev.setdefault(2 * ks + 1, []).append(lambda ks=ks: self.pool.put(AG + self.xr(ks)))
        n2 = min(len(self.wdq), o.get("wd42", 20))
        spread(ev, self.wd(n2), 3, 2.1)
        hp, hc = o.get("hp0", 22), o.get("hc0", 44)
        ev.setdefault(o.get("hs0", 2), []).append(self.signal(sTP, self.T(2, L), lambda: st[0]))
        if L == 0: spread(ev, [self.touch(sWQ, sH16, 32 * KB * k) for k in range(2)], 30, 30)
        ev.setdefault(hp, []).append(self.poll_issue(sTC, self.T(2, L)))
        pre.setdefault(hc, []).append(self.poll_check(sTC, self.T(2, L), 8))
        spread(ev, [hload(stp, i) for stp, i in self.horder(0)], max(hc + 1, 3 + 2.1 * n2), 2.2)
        if not sh: ev.setdefault(o.get("hs1", 81), []).append(self.signal(sTP, self.T(3, L), lambda: st[1]))
        self.wstream(self.pair_items(ACC[0], self.CSG + 16), 160, allw, RING, ev, epi(1), pre, budget=nv, tag=f"p2{L}")
        self.stamp(f"L{L} P4 p2")
        for x in haddr(2): E(x)
        ep = epi_pk(2)
        for k, x in enumerate(ep):
            self.do(x)
            if k == o.get("hp1", 70) and not sh: E(self.poll_issue(sTC, self.T(3, L)))
            elif k % 12 == 6 and k < 40 and self.wdq and self.pool.free: self.wd(1)[0]()
        self.stamp(f"L{L} P4 done")
    def p4(self, L):
        E = self.E; o = self.o
        if not o.get('m16', 1): return self.p4_32(L)
        ACC = [[48, 64], [80, 96]]; RING = 112; HP = 136; T = 144
        allw = [1024 * ((64 + f) % 160) for f in range(240)]
        for f in range(6): E(self.wread(RING + 4 * f, allw[f]))
        self.poll_block(sWC, 4 * L, 16)
        self.stamp(f"L{L} P4 synced")
        self.xr = lambda ks: 4 * ks if ks < 26 else 200 + 4 * (ks - 26)
        base = self.xt(2 * L + 1); xl = self.xloads16(base)
        self.x0 = len(E.out); self.vrate = o.get("vrate", 6)
        self.xstart(xl, base)
        c1 = -2 * 0.7978845608028654 * math.log2(math.e)
        CC = [(vC1, vIV), (248, 254)]
        sta, stl, so = self.stat16(2 * L + 1, T, HP)
        so2 = []
        for t in range(2):
            b_ = T + 4 * t; C, IV = CC[t]
            so += [f"v_mul_f32 v{b_}, {f2u(-1/640)}, v{b_}", f"v_cvt_pk_bf16_f32 v{vNM+2*t}, v{b_}, v{b_}", f"v_cvt_pk_bf16_f32 v{vNM+2*t+1}, v{b_}, v{b_}"]
            so2 += [f"v_mul_f32 v{b_+1}, {f2u(1/640)}, v{b_+1}", f"v_fma_f32 v{b_+1}, -v{b_}, v{b_}, v{b_+1}", f"v_max_f32 v{b_+1}, 0, v{b_+1}",
                    f"v_add_f32 v{IV}, {f2u(EPS)}, v{b_+1}", f"v_rsq_f32 v{b_+2}, v{IV}", f"v_rcp_f32 v{b_+3}, v{IV}", f"v_mul_f32 v{C}, {f2u(c1)}, v{b_+2}",
                    f"v_mul_f32 v{C+1}, {f2u(0.044715)}, v{C}", f"v_mul_f32 v{C+1}, v{b_+3}, v{C+1}"]
        so += so2
        st = self.htok = {}
        def put(p, k):
            if k == 0: return f"buffer_store_dwordx4 {v(HP,4)}, v{vU}, {s(WS,4)}, s{sA} offen sc1"
            return lambda: st.__setitem__(p, E(f"buffer_store_dwordx4 {v(HP+4,4)}, v{vU}, {s(WS,4)}, s{sA} offen offset:256 sc1"))
        haddr = lambda p: [f"s_add_u32 s{sA}, s{sJ}, {p}\ns_and_b32 s{sA}, s{sA}, 3\ns_lshl_b32 s{sA}, s{sA}, 11", f"s_and_b32 s{sB}, s{sHme}, 0xffffe000\ns_add_u32 s{sA}, s{sA}, s{sB}"]
        def epi(p):
            g, u = ACC[p % 2]; r = [haddr(p)]
            for k0 in range(0, 16, 4):
                ks = range(k0, k0 + 4); vC1, vIV = CC[k0 >> 3]; vC2 = vC1 + 1
                r += [f"v_mul_f32 v{T+k%4}, v{g+k}, v{g+k}" for k in ks]
                r += [f"v_fma_f32 v{T+k%4}, v{T+k%4}, v{vC2}, v{vC1}" for k in ks]
                r += [f"v_mul_f32 v{T+k%4}, v{T+k%4}, v{g+k}" for k in ks]
                r += [f"v_exp_f32 v{T+k%4}, v{T+k%4}" for k in ks]
                r += [f"v_mul_f32 v{g+k}, v{g+k}, v{u+k}" for k in ks]
                r += [f"v_fma_f32 v{T+k%4}, v{T+k%4}, v{vIV}, v{vIV}" for k in ks]
                r += [f"v_rcp_f32 v{T+k%4}, v{T+k%4}" for k in ks]
                r += [f"v_mul_f32 v{g+k}, v{g+k}, v{T+k%4}" for k in ks]
                r += [f"v_cvt_pk_bf16_f32 v{HP+k//2}, v{g+k}, v{g+k+1}" for k in ks if k % 2 == 0]
                if k0 in (4, 12): r.append([put(p, k0 // 8)])
            return [(2, x) for x in r]
        def epi_pk(p):
            g, u = ACC[p % 2]; r = []
            for k0 in range(0, 16, 8):
                ks = range(k0, k0 + 8, 2); vC1, vIV = CC[k0 >> 3]
                r += [f"v_pk_mul_f32 {v(T+k%8,2)}, {v(g+k,2)}, {v(g+k,2)}" for k in ks]
                r += [f"v_pk_fma_f32 {v(T+k%8,2)}, {v(T+k%8,2)}, {v(vC1,2)}, {v(vC1,2)} op_sel:[0,1,0] op_sel_hi:[1,1,0]" for k in ks]
                r += [f"v_pk_mul_f32 {v(T+k%8,2)}, {v(T+k%8,2)}, {v(g+k,2)}" for k in ks]
                r += [f"v_exp_f32 v{T+k}, v{T+k}" for k in range(8)]
                r += [f"v_pk_mul_f32 {v(g+k,2)}, {v(g+k,2)}, {v(u+k,2)}" for k in ks]
                r += [f"v_pk_fma_f32 {v(T+k%8,2)}, {v(T+k%8,2)}, {v(vIV,2)}, {v(vIV,2)} op_sel_hi:[1,0,0]" for k in ks]
                r += [f"v_rcp_f32 v{T+k}, v{T+k}" for k in range(8)]
                r += [f"v_pk_mul_f32 {v(g+k,2)}, {v(g+k,2)}, {v(T+k%8,2)}" for k in ks]
                r += [f"v_cvt_pk_bf16_f32 v{HP+k//2}, v{g+k}, v{g+k+1}" for k in ks]
                r.append(put(p, k0 // 8))
            return r
        self.HF = {}
        def hload(stp, i, fixed=None):
            p, jj = divmod(stp, 4)
            if fixed is not None:
                self.HF[(stp, i)] = fixed
                return f"s_add_u32 s{sE_}, s{sT16H+i}, {A_H + 16*KB*jj + 2048*((p + jj) & 3)}\nbuffer_load_dwordx4 {R(fixed,4)}, v{vU}, {s(WS,4)}, s{sE_} offen sc1"
            def fn():
                q = self.pool.get(); self.HF[(stp, i)] = q
                E(f"buffer_load_dwordx4 {R(q,4)}, v{vU}, {s(WS,4)}, s{sE_} offen sc1")
            return (f"s_add_u32 s{sE_}, s{sT16H+i}, {A_H + 16*KB*jj + 2048*((p + jj) & 3)}", fn)
        self.hload = hload
        nv = o.get("bud4", 32) // 2
        ev = {}; spread(ev, xl[NX0:], 0, o.get('xS', 20) / 10)
        if o.get("early", 0): ev.setdefault(11, []).append(self.statsig)
        spread(ev, stl, 27, 2)
        csl = self.cs_loads(CSG, 6 * KB, 6, self.CSG)
        spread(ev, csl[:2], 47, 2)
        pre = {}
        if o.get("ovl", 3) and not (L and o.get("ovl", 3) >= 2):
            ev.setdefault(51, []).append(f"s_sub_u32 s{sH8}, 15, s{sR}\ns_min_u32 s{sH8}, s{sH8}, 2\n" + self.poll_issue(sKP, 16 + 4 * L))
            pre[76] = [self.poll_check(sKP, 16 + 4 * L, f"s{sH8}")]
        spread(ev, self.gu_late + self.wd(o.get("wd40", 10)), o.get('t0s', 61), min(2, (83.9 - o.get('t0s', 61)) / max(1, len(self.gu_late) + o.get("wd40", 10))))
        spread(ev, [self.touch(sWGU, sH16, 32 * KB * 5), self.touch(sWD, sH8, 16 * KB), self.touch(sWGU, sH16, 32 * KB * 6)], 45, 15)
        pv = [(30, f"v_mov_b32 v{HP+i}, -1") for i in range(4)] + [(30, self.xpoison(2, HP))] if L == 0 and o.get("early", 0) else []
        sh = o.get("senth", 0)
        if sh and o.get("poiw", 1) == 1:
            assert o.get("ovl", 3) == 3
            pv += [(40, f"v_mov_b32 v{HP+4+i}, -1") for i in range(4)]
            spread(ev, self.hpoison(HP + 4, sB), o.get("poi0", 72), o.get("poiS", 2))
        self.wstream16([(ACC[0], self.CSG)], 0, allw, RING, ev, [(4, x) for x in sta] + pv + [(54, x) for x in so], pre, tag=f"p0{L}")
        self.stamp(f"L{L} P4 p0")
        ev = {}; tok = []; fl = []
        for c in range(10, 15): fl += self.dma4(sWGU, 16 * KB * c, 64 * KB + 16 * KB * (c - 10), tok)
        spread(ev, fl, 2, o.get('flS', 21) / 10)
        net = [self.nan_net(ACC[0][0], xl, self.pair_items(ACC[0], self.CSG) + self.pair_items(ACC[1], 0)[:2], allw, RING, 4 * L, self.stat_loads(2 * L + 1, T) + so)] if o.get("early", 0) else []
        n1 = min(o.get("wd41", 13), len(self.pool.free))
        w0 = 3 + 2 * o.get('flS', 21); spread(ev, csl[2:] + self.wd(n1), w0, (83 - w0) / max(n1 + 4, 16))
        spread(ev, [self.touch(sWGU, sH16, 32 * KB * 7), self.touch(sWD, sH8, 32 * KB), self.touch(sWD, sH8, 48 * KB)], 6, 24)
        self.wstream16([(ACC[1], self.CSG + 8)], 80, allw, RING, ev, epi(0),
                     {2: net + ["s_barrier"], 10: [lambda: (E.wait(vm=self.gu_tok[3]), E("s_barrier"))], 74: [lambda: (E.wait(vm=tok[4]), E("s_barrier"))]}, budget=nv, vend=o.get("ve1", 70), tag=f"p1{L}")
        self.stamp(f"L{L} P4 p1")
        ev = {}; pre = {}
        for ks in range(40): pre.setdefault(8 * (ks >> 2) + 7 + ((ks >> 1) & 1), []).append(lambda ks=ks: self.pool.put(AG + self.xr(ks)))
        n2 = min(len(self.wdq), o.get("wd42", 20))
        spread(ev, self.wd(n2), 3, 2.1)
        hp, hc = o.get("hp0", 22), o.get("hc0", 44)
        ev.setdefault(o.get("hs0", 2), []).append(self.signal(sTP, self.T(2, L), lambda: st[0]))
        if L == 0: spread(ev, [self.touch(sWQ, sH16, 32 * KB * k) for k in range(2)], 30, 30)
        ev.setdefault(hp, []).append(self.poll_issue(sTC, self.T(2, L)))
        pre.setdefault(hc, []).append(self.poll_check(sTC, self.T(2, L), 8))
        spread(ev, [hload(stp, i) for stp, i in self.horder(0)], max(hc + 1, 3 + 2.1 * n2), 2.2)
        if not sh: ev.setdefault(o.get("hs1", 81), []).append(self.signal(sTP, self.T(3, L), lambda: st[1]))
        self.wstream16([(ACC[0], self.CSG + 16)], 160, allw, RING, ev, epi(1), pre, budget=nv, vend=o.get("ve2", 60), tag=f"p2{L}")
        self.stamp(f"L{L} P4 p2")
        for x in haddr(2): E(x)
        ep = epi_pk(2)
        for k, x in enumerate(ep):
            self.do(x)
            if k == o.get("hp1", 70) and not sh: E(self.poll_issue(sTC, self.T(3, L)))
            elif k % 12 == 6 and k < 40 and self.wdq and self.pool.free: self.wd(1)[0]()
        self.stamp(f"L{L} P4 done")
    def p5(self, L):
        E = self.E; o = self.o
        ACC = [48, 68, 88, vRES]
        E("s_barrier")
        ev = {}; pre = {}; sh = o.get("senth", 0); vals = None; val1 = {}
        if sh:
            r1 = [108 + 4 * i for i in range(7)] + [144 + 4 * i for i in range(7)] + [136, 140]
            l1 = [[self.hload(stp, i, r1.pop(0)) for i in range(4)] for stp in range(4, 8)]
            l2 = [[self.hload(stp, i, 176 + 16 * i + 4 * (stp - 8)) for stp in range(8, 12)] for i in range(4)]
            rl = lambda x: [y.replace(f"s{sE_}", f"s{sP}") for y in x]
            for k in range(4): val1[4 + k] = self.validate([self.HF[(4 + k, i)] for i in range(4)], rl(l1[k]), 172)
            vals = [self.validate([self.HF[(stp, i)] for stp in range(8, 12)], rl(l2[i]), 172) for i in range(4)]
            val1[8] = vals[0]
            rest = sum(l1, []) + self.wd(60)
            nl = o.get("h2late", 4)
            l2f = sum(l2, []); late2 = l2f[16 - nl:]
            h2s = o.get("h2s", 104)
            spread(ev, rest, o.get("h1s", 2), (h2s - 4) / len(rest))
            spread(ev, l2f[:16 - nl], h2s, (150 - h2s) / (16 - nl))
        else:
            self.pool.add([108 + 4 * i for i in range(7)] + [144 + 4 * i for i in range(8)])
            hc1 = o.get("hc1", 30)
            pre.setdefault(hc1, []).append(self.poll_check(sTC, self.T(3, L), 8))
            spread(ev, [self.hload(stp, i) for stp, i in self.horder(4)] + self.wd(60), hc1, o.get('h1S', 32) / 10)
            ev.setdefault(o.get("hs2", 44), []).append(self.signal(sTP, self.T(4, L), self.htok[2]))
            hp, hc = o.get("hp2", 76), o.get("hc2", 112)
            ev.setdefault(hp, []).append(self.poll_issue(sTC, self.T(4, L)))
            pre.setdefault(hc, []).append(self.poll_check(sTC, self.T(4, L), 8))
            spread(ev, [self.hload(stp, i) for i in range(4) for stp in range(8, 12)], hc, o.get('h2S', 29) / 10)
        if L == 1:
            ta = self.tile_addrs(vNM, vC1) + [f"v_add_u32 v{vNM+3}, s{sLW}, v{vL16}"]
            spread(ev, [(lambda x="\n".join(ta[k:k + 2]): E(x)) for k in range(0, len(ta), 2)], 2, 2)
            spread(ev, [(lambda x=x: E(x)) for x in (f"s_or_b32 s{sA}, s{sR}, s{sJ}\ns_or_b32 s{sA}, s{sA}, s{sW}", f"s_cmp_eq_u32 s{sA}, 0\ns_cselect_b32 s{sA}, 0, {OOB}",
                        f"v_add_u32 v{vIV}, s{sA}, v{vSIG}\nv_mov_b32 v{vRSTD}, s0", f"s_mov_b32 s{sA}, {EPOCH}", f"buffer_store_dword v{vRSTD}, v{vIV}, {s(WS,4)}, s{sA} offen sc1")], 21, 1)
        self.wq_tok = []; dm = []
        if L == 0:
            for c in range(10): dm += self.dma4(sWQ, 16 * KB * c, 16 * KB * c, self.wq_tok)
            spread(ev, [self.touch(sWQ, sH16, 32 * KB * k) for k in range(2, 5)], 30, 36)
            if not sh: spread(ev, dm[:4], 96, 4); dm = dm[4:]
        sl = 0; q = []; ch = o.get("ch5", 2); assert not (sh and ch > 1)
        for s0 in range(0, 8, ch):
            for i in range(4):
                for nt in range(5):
                    for stp in range(s0, s0 + ch):
                        self.fine(f"d{L}", sl)
                        for g in pre.pop(sl, []): self.do(g)
                        d = ACC[i] + 4 * nt
                        E(f"v_mfma_f32_16x16x32_bf16 {v(d,4)}, {R(self.WDF[5*stp+nt],4)}, {R(self.HF[(stp,i)],4)}, {'0' if stp == 0 and i < 3 else v(d,4)}")
                        for g in ev.pop(sl, []): q += self.flat(g)
                        vv = val1.get(stp + 1)
                        if vv and 20 - sl % 20 <= len(vv): self.do(vv.pop(0))
                        elif q and (sl % 5 != 4 or len(q) > 3): self.do(q.pop(0))
                        sl += 1
                for stp in range(s0, s0 + ch):
                    if self.HF[(stp, i)] >= AG or (self.HF[(stp, i)] < 176 and not sh): self.pool.put(self.HF[(stp, i)])
            for f in range(5 * s0, 5 * (s0 + ch)):
                qq = self.WDF[f]
                assert not (sh and 176 <= qq < 244 and s0 > 3)
                if qq >= AG or qq < 176: self.pool.put(qq)
        for k in sorted(ev):
            for g in ev[k]: q.append(g)
        for g in q: self.do(g)
        assert not pre
        self.stamp("  8 steps")
        PT = 108 if sh else 176
        live = [self.WDF[f] for f in range(40, 60)] + [self.HF[(stp, i)] for stp in range(8, 12) for i in range(4)]
        assert not [q for q in live if PT <= q < PT + 60], live
        steps = [([self.WDF[5 * stp + nt] for nt in range(5)], [self.HF[(stp, i)] for i in range(4)]) for stp in range(8, 12)]
        n5 = o.get('bgn5', 12); assert n5 <= 20; bg = (late2 if sh else []) + dm[:n5]; dm = dm[n5:]
        n = o.get("wq5", 16 if sh else 12)
        post = (self.cs_loads(CSQ, 4 * KB, 4, 136) if L == 0 else []) + dm[:n]
        self.wq_late = dm[n:]
        self.reduce_and_publish(ACC, steps, 100 * KB, PT, 2 * L + 2, 512 + 4 * L, L == 1, bg, post, bg0=0, bgstep=o.get('bgs5', 4), vals=vals)
        self.stamp(f"L{L} P5 done")
    def finish(self):
        E = self.E
        if self.o.get("echo"):
            E(f"s_sub_u32 s{sA}, s{sTS+2}, s{sTS}\ns_mul_i32 s{sA}, s{sA}, {self.o.get('emul', 1)}\ns_lshr_b32 s{sA}, s{sA}, {2 if self.o.get('ecyc') else 0}\ns_memrealtime {s(sTS,2)}"); E.wait_smem()
            E.place("ECHO")
            E(f"s_memrealtime {s(sTS+2,2)}"); E.wait_smem()
            E(f"s_sub_u32 s{sB}, s{sTS+2}, s{sTS}\ns_cmp_lt_u32 s{sB}, s{sA}\ns_cbranch_scc1 ECHO")
        if self.stamps:
            E(f"v_readlane_b32 s{sB}, v{vTS2}, 63\ns_lshl_b32 s{sA}, s{sB}, 2\ns_add_u32 s{sA}, s{sA}, s{sW}\ns_lshl_b32 s{sA}, s{sA}, 8\ns_add_u32 s{sA}, s{sA}, {DBG}")
            E(f"v_lshlrev_b32 v{vT}, 2, v0\nbuffer_store_dword v{vTS}, v{vT}, {s(WS,4)}, s{sA} offen")
            E(f"s_add_u32 s{sA}, s{sA}, 0x40000\nbuffer_store_dword v{vTS2}, v{vT}, {s(WS,4)}, s{sA} offen")
        E("s_endpgm"); E.raw(";@END")
        for t in self.tail: E.raw(t.rstrip("\n"))
        E.raw("main_end:")
    def build(self):
        E = self.E
        globals()["NX0"] = self.o.get("nx0", 10)
        globals()["FINAL"] = ("", "sc1", "nt", "sc0 sc1")[self.o.get("fin", 0)]
        g = globals(); ru = self.o.get("reuse", 7)
        if ru & 1: g["HB_STRIDE"] = 0
        if ru & 2: g["OB_STRIDE"] = 0
        if ru & 8: g["KV_STRIDE"] = 0
        E.raw("; @launch grid=(256,1,1) block=(256,1,1) lds=163840")
        E.raw('.amdgcn_target "amdgcn-amd-amdhsa--gfx950"')
        self.prologue()
        n = 0
        for L in range(2):
            for ph in (self.p1, self.p2, self.p3, self.p4, self.p5):
                self.o.L = L
                if n < self.stop: ph(L)
                n += 1
        self.finish()
        kernel_desc(E, KNAME, 256, 256, 102)
        return stubs.apply(E.text(), sW, self.o.get("verbose") == 3)

if __name__ == "__main__":
    out = sys.argv[1]
    opts = dict((k, int(x)) for k, x in (a_.split("=") for a_ in sys.argv[3:]))
    g = Gen(stamps=len(sys.argv) > 2 and sys.argv[2] == "ts", opts=opts, mapping="grp" if opts.get("grp") else "mix")
    t = g.build()
    open(out, "w").write(t)
    print(len(t), "bytes", g.E.ninst, "insts", g.E.nnop, "nop states", g.E.stats)
    if g.stamps: open(out + ".names", "w").write("\n".join(g.stnames))
```
